```python
import torch

def _softmax(x, axis=-1):
    return torch.softmax(x, dim=axis)
def _gelu(x):
    return torch.nn.functional.gelu(x, approximate="tanh")
def _silu(x):
    return torch.nn.functional.silu(x)
def _sigmoid(x):
    return torch.sigmoid(x)
def _layernorm(x, axis=-1, eps=1e-5):
    m = x.mean(dim=axis, keepdim=True)
    v = x.var(dim=axis, keepdim=True, unbiased=False)
    return (x - m) / torch.sqrt(v + eps)
def _scatter_add(tgt, idx, src, axis=0):
    return tgt.clone().index_add_(axis, idx, src)
def _segment_sum(src, seg, n):
    out = torch.zeros((n,) + src.shape[1:], dtype=src.dtype)
    return out.index_add_(0, seg, src)
def _pad(x, pw):
    flat = tuple(v for pair in reversed(pw) for v in pair)
    return torch.nn.functional.pad(x, flat)

kernel_name = 'interleave_layers__ssm_conv_h3__mixer_s_mlp__prompt'

def setup_inputs():

    _w = (lambda a: (lambda t: t.to(torch.bfloat16) if t.is_floating_point() else t)(torch.as_tensor(a)))
    def _A_setup():
        B, S, D = 1, 2048, 1024
        ks = 4
        return {
            "q": _w((lambda *s: torch.randn(*s, dtype=torch.bfloat16) * 0.05)(B, S, D)),
            "k": _w((lambda *s: torch.randn(*s, dtype=torch.bfloat16) * 0.4)(B, S, D)),
            "v": _w((lambda *s: torch.randn(*s, dtype=torch.bfloat16) * 0.4)(B, S, D)),
            "shift_k": _w((lambda *s: torch.randn(*s, dtype=torch.bfloat16) * 0.4)(D, ks) * 0.5),
            "ssm_k": _w((lambda *s: torch.randn(*s, dtype=torch.bfloat16) * 0.4)(D, S) * (1.0 / S ** 0.5)),
            "ssm_D": _w((lambda *s: torch.randn(*s, dtype=torch.bfloat16) * 0.4)(D)),
        }
    _A_in = _A_setup()

    def _B_setup():
        B, S, D, F = 1, 2048, 1024, 3584
        return {
            "x":  _w((lambda *s: torch.randn(*s, dtype=torch.bfloat16) * 0.05)(B, S, D)),
            "w1": _w((lambda *s: torch.randn(*s, dtype=torch.bfloat16) * 1.6)(D, D) * (D ** -0.5)),
            "w2": _w((lambda *s: torch.randn(*s, dtype=torch.bfloat16) * 1.6)(D, D) * (D ** -0.5)),
            "w3": _w((lambda *s: torch.randn(*s, dtype=torch.bfloat16) * 1.6)(D, F) * (D ** -0.5)),
            "w4": _w((lambda *s: torch.randn(*s, dtype=torch.bfloat16) * 1.6)(F, D) * (F ** -0.5)),
        }
    _B_in = _B_setup()

    return {
        "A_q": _A_in["q"],
        "A_k": _A_in["k"],
        "A_v": _A_in["v"],
        "A_shift_k": _A_in["shift_k"],
        "A_ssm_k": _A_in["ssm_k"],
        "A_ssm_D": _A_in["ssm_D"],
        "B_x": _B_in["x"],
        "B_w1": _B_in["w1"],
        "B_w2": _B_in["w2"],
        "B_w3": _B_in["w3"],
        "B_w4": _B_in["w4"],
    }

def reference(A_q, A_k, A_v, A_shift_k, A_ssm_k, A_ssm_D, B_x, B_w1, B_w2, B_w3, B_w4):
    def _A_ref(q, k, v, shift_k, ssm_k, ssm_D):
        B, S, D = q.shape
        ks = shift_k.shape[-1]
        k_pad = _pad(k, ((0, 0), (ks - 1, 0), (0, 0)))
        k_shift = torch.zeros_like(k)
        for t in range(ks):
            k_shift = k_shift + k_pad[:, t:t + S, :] * shift_k[:, ks - 1 - t][None, None, :]
        kv = k_shift * v
        L = 2 * S
        kv_pad = _pad(kv, ((0, 0), (0, S), (0, 0)))
        kf_pad = _pad(ssm_k, ((0, 0), (0, S)))
        kv_f = (lambda x, axes=(-2,-1): torch.fft.rfft2(x.float(), dim=axes))(kv_pad[:, None, :, :], axes=(1, 2))
        kf_f = (lambda x, axes=(-2,-1): torch.fft.rfft2(x.float(), dim=axes))(kf_pad[:, None, :], axes=(1, 2))
        kf_f = (lambda x, *d: x.permute(*d))(kf_f, 1, 2, 0)
        y_f = kv_f * kf_f[None, :, :, :]
        y = (lambda x, s, axes=(-2,-1): torch.fft.irfft2(x, s=s, dim=axes).to(torch.bfloat16))(y_f, (1, L), axes=(1, 2))[:, 0, :S, :]
        y = y + kv * ssm_D[None, None, :]
        return q * y

    def _B_ref(x, w1, w2, w3, w4):
        B, S, D = x.shape
        h = _gelu(_layernorm(x, axis=-1) @ w1)
        c = D // 4
        g0 = _pad(h[:, :, 0*c:1*c], ((0, 0), (1, 0), (0, 0)))[:, :S, :]
        g1 = _pad(h[:, :, 1*c:2*c], ((0, 0), (0, 1), (0, 0)))[:, 1:, :]
        g2 = _pad(h[:, :, 2*c:3*c], ((0, 0), (2, 0), (0, 0)))[:, :S, :]
        g3 = _pad(h[:, :, 3*c:   ], ((0, 0), (0, 2), (0, 0)))[:, 2:, :]
        hs = torch.concatenate([g0, g1, g2, g3], axis=-1) @ w2
        x1 = x + hs
        h2 = _gelu(_layernorm(x1, axis=-1) @ w3) @ w4
        return x1 + h2

    x = A_q
    x = x + _A_ref(_layernorm(x, axis=-1), A_k, A_v, A_shift_k, A_ssm_k, A_ssm_D)
    x = x + _B_ref(_layernorm(x, axis=-1), B_w1, B_w2, B_w3, B_w4)
    x = x + _A_ref(_layernorm(x, axis=-1), A_k, A_v, A_shift_k, A_ssm_k, A_ssm_D)
    x = x + _B_ref(_layernorm(x, axis=-1), B_w1, B_w2, B_w3, B_w4)
    return x
```

```python
class Asm:
    def __init__(self):
        self.lines = []
        self.launches = []
        self.descs = []
        self._lab = 0
    def e(self, s):
        for l in s.strip("\n").split("\n"):
            l = l.strip()
            if l: self.lines.append(("" if l.endswith(":") else "    ") + l)
    def lab(self, base="L"):
        self._lab += 1
        return f"{base}_{self._lab}"
    def begin_kernel(self, name):
        self.lines.append(f".globl {name}")
        self.lines.append(".p2align 8")
        self.lines.append(f".type {name},@function")
        self.lines.append(f"{name}:")
    def end_kernel(self, name, vgpr, sgpr=102, accum=None, agpr=0):
        self.e("s_endpgm")
        if accum is None: accum = (vgpr + 3) // 4 * 4
        nfv = accum + agpr if agpr else vgpr
        self.descs.append(f""".amdhsa_kernel {name}
  .amdhsa_next_free_vgpr {nfv}
  .amdhsa_next_free_sgpr {sgpr}
  .amdhsa_accum_offset {accum}
  .amdhsa_group_segment_fixed_size 0
  .amdhsa_kernarg_size 112
  .amdhsa_user_sgpr_count 2
  .amdhsa_user_sgpr_kernarg_segment_ptr 1
  .amdhsa_system_sgpr_workgroup_id_x 1
  .amdhsa_float_denorm_mode_32 3
.end_amdhsa_kernel""")
    def launch(self, name, grid, block, lds):
        self.launches.append(f"; @launch kernel={name} grid=({grid},1,1) block=({block},1,1) lds={lds}")
    def text(self, header=""):
        out = []
        if header: out.append(header.rstrip("\n"))
        out += self.launches
        out.append('.amdgcn_target "amdgcn-amd-amdhsa--gfx950"')
        out.append(".text")
        import hazard
        fixed, n = hazard.fix(self.lines)
        self.nops_added = n
        out += fixed
        out.append('.section .rodata,"a"')
        for d in self.descs:
            out.append(".p2align 6")
            out.append(d)
        return "\n".join(out) + "\n"
    def srd(self, d, base, nbytes, off=0):
        if off:
            self.e(f"s_add_u32 s{d}, s{base}, {off:#x}")
            self.e(f"s_addc_u32 s{d+1}, s{base+1}, 0")
        else:
            self.e(f"s_mov_b32 s{d}, s{base}")
            self.e(f"s_mov_b32 s{d+1}, s{base+1}")
        self.e(f"s_mov_b32 s{d+2}, {nbytes:#x}")
        self.e(f"s_mov_b32 s{d+3}, 0x20000")
```

```python
import re

TRANS = ("v_exp_f32", "v_log_f32", "v_rcp_f32", "v_rsq_f32", "v_sqrt_f32", "v_sin_f32", "v_cos_f32", "v_rcp_iflag_f32")

def regs(tok):
    tok = tok.strip()
    tok = re.sub(r"^-|^\|(.*)\|$|^abs\((.*)\)$", lambda m: m.group(1) or m.group(2) or "", tok)
    m = re.fullmatch(r"([vsa])(\d+)", tok)
    if m: return {(m.group(1), int(m.group(2)))}
    m = re.fullmatch(r"([vsa])\[(\d+):(\d+)\]", tok)
    if m: return {(m.group(1), i) for i in range(int(m.group(2)), int(m.group(3)) + 1)}
    if tok in ("vcc", "vcc_lo", "vcc_hi"): return {("x", "vcc")}
    if tok in ("exec", "exec_lo", "exec_hi"): return {("x", "exec")}
    if tok == "m0": return {("x", "m0")}
    return set()

class I:
    def __init__(self, text):
        self.text = text
        t = text.split(";")[0].strip()
        self.op = t.split()[0] if t else ""
        rest = t[len(self.op):].strip()
        ops = [o.strip() for o in re.split(r",(?![^\[]*\])", rest)] if rest else []
        self.mods = ""
        if ops:
            parts = ops[-1].split(None, 1)
            if len(parts) == 2: ops[-1], self.mods = parts
        self.ops = ops
        op = self.op
        self.mfma = op.startswith("v_mfma")
        self.valu = op.startswith("v_") and not self.mfma
        self.trans = any(op.startswith(x) for x in TRANS)
        self.vmem = op.startswith(("buffer_", "global_", "flat_"))
        self.ds = op.startswith("ds_")
        self.salu = op.startswith("s_")
        self.dpp = "_dpp" in op or "row_" in self.mods or "quad_perm" in self.mods or "wave_" in self.mods
        self.permlane = op.startswith("v_permlane")
        self.states = 1
        if op == "s_nop": self.states = int(ops[0], 0) + 1
        R = [regs(o) for o in ops]
        W = set(); Rd = set()
        if self.mfma:
            W = R[0]; self.A = R[1]; self.B = R[2]; self.C = R[3]; Rd = R[1] | R[2] | R[3]
            self.passes = 8 if "32x32" in op else 4
        elif self.valu:
            W = set(R[0]); Rd = set().union(*R[1:]) if len(R) > 1 else set()
            if op.startswith(("v_add_co", "v_sub_co", "v_addc_co", "v_subb_co", "v_subrev_co", "v_div_scale", "v_mad_u64")):
                W |= R[1]; Rd = set().union(*R[2:])
            if op.startswith(("v_fmac", "v_dot2c", "v_pk_fmac", "v_writelane")) or self.dpp or "sdwa" in op: Rd |= R[0]
            if self.permlane: W |= R[1]; Rd |= R[0]
            if op.startswith("v_cmpx"): W |= {("x", "exec")}
        elif self.vmem:
            lds = " lds" in (" " + self.mods) or "_lds_" in op
            self.lds = lds
            if "store" in op or "atomic" in op:
                Rd = set().union(*R) if R else set()
                if op.startswith("buffer_"): self.data = R[0]
                elif R: self.data = R[1] if len(R) <= 3 else R[2]
                if "atomic" in op and "sc0" in self.mods: W = R[0]
            elif "load" in op:
                if lds: Rd = set().union(*R) | {("x", "m0")}
                else: W = R[0]; Rd = set().union(*R[1:])
        elif self.ds:
            if "read" in op or "permute" in op or "swizzle" in op: W = R[0]; Rd = set().union(*R[1:])
            else: Rd = set().union(*R)
        elif self.salu:
            if op.startswith(("s_cmp", "s_cbranch", "s_branch", "s_waitcnt", "s_barrier", "s_nop", "s_endpgm", "s_setprio", "s_sleep", "s_bitcmp")):
                Rd = set().union(*R) if R else set()
            else:
                W = set(R[0]) if R else set(); Rd = set().union(*R[1:]) if len(R) > 1 else set()
                if "saveexec" in op: W |= {("x", "exec")}
        self.W = W; self.R = Rd
        self.wide_store = self.vmem and ("store" in op) and op.endswith(("x3", "x4"))

def isv(r): return r[0] in "va"
def iss(r): return r[0] == "s" or r == ("x", "vcc")

def need(p, c):
    n = 0
    pv = {r for r in p.W if isv(r)}; ps = {r for r in p.W if iss(r)}
    if p.valu:
        if c.mfma and pv & c.R: n = max(n, 2)
        if c.valu and c.dpp and pv & c.R: n = max(n, 2)
        if c.permlane and pv & c.R: n = max(n, 2)
        if c.op.startswith(("v_readlane", "v_readfirstlane")) and pv & c.R: n = max(n, 1)
        if p.trans and c.valu and not c.trans and pv & c.R: n = max(n, 1)
        if p.trans and (c.mfma or c.vmem or c.ds) and pv & c.R: n = max(n, 2)
        if ("sdwa" in p.op or ("op_sel" in p.mods and not p.op.startswith("v_pk_"))) and c.valu and pv & (c.R | c.W): n = max(n, 1)
        if ps:
            if c.vmem and ps & c.R: n = max(n, 5)
            if c.valu and ps & c.R: n = max(n, 4 if c.op.startswith(("v_readlane", "v_writelane", "v_div_fmas")) else 2)
            if c.salu and ps & c.R: n = max(n, 1)
        if ("x", "exec") in p.W:
            if c.dpp: n = max(n, 5)
            if c.mfma or c.permlane or c.op.startswith(("v_readlane", "v_readfirstlane", "v_writelane")): n = max(n, 4)
    if p.salu and ("x", "m0") in p.W and c.vmem and getattr(c, "lds", False): n = max(n, 1)
    if p.wide_store and (c.valu or c.mfma) and p.data & c.W: n = max(n, 2)
    if p.wide_store and (c.ds or c.vmem) and p.data & c.W: n = max(n, 1)
    if p.mfma:
        big = {4: 8, 8: 12}[p.passes]
        if c.mfma:
            if p.W & (c.A | c.B): n = max(n, big)
            if p.W & c.C and not (p.W == c.C and p.passes == c.passes): n = max(n, {4: 6, 8: 10}[p.passes])
            if p.W & c.W and p.W != c.W: n = max(n, big)
        elif (c.valu or c.vmem or c.ds) and p.W & (c.R | c.W): n = max(n, big)
        if c.valu and p.C & c.W: n = max(n, {4: 3, 8: 7}[p.passes])
    return n

def fix(lines):
    out = []
    hist = []
    labels = {}
    def deficit(hist, c):
        d = 0; dist = 0
        for p in reversed(hist):
            if dist >= 20: break
            d = max(d, need(p, c) - dist)
            dist += p.states
        return d
    added = 0
    fwd = {}
    alts = []
    for ln in lines:
        s = ln.strip()
        if not s or s.startswith((".", ";")):
            out.append(ln); continue
        if s.endswith(":"):
            labels[s[:-1]] = len(hist); out.append(ln)
            for h in fwd.pop(s[:-1], []): alts.append([h, 20])
            continue
        c = I(s)
        d = max([deficit(hist, c)] + [deficit(h, c) for h, _ in alts])
        while d > 0:
            k = min(d, 16)
            nop = I(f"s_nop {k-1}")
            out.append(f"    s_nop {k-1}"); hist.append(nop); d -= k; added += 1
            for al in alts: al[0].append(nop)
        for al in alts: al[0].append(c); al[1] -= 1
        alts = [al for al in alts if al[1] > 0]
        if c.op.startswith(("s_cbranch", "s_branch")) and c.ops[0] not in labels:
            fwd.setdefault(c.ops[0], []).append(hist[-20:] + [c])
            for al in alts: fwd[c.ops[0]].append(list(al[0][-21:]))
        if c.op.startswith(("s_cbranch", "s_branch")) and c.ops[0] in labels:
            h2 = hist + [c]; worst = 0
            for t in hist[labels[c.ops[0]]: labels[c.ops[0]] + 20]:
                worst = max(worst, deficit(h2, t)); h2 = h2 + [t]
            if worst > 0:
                out.append(f"    s_nop {worst-1}"); hist.append(I(f"s_nop {worst-1}")); added += 1
        out.append(ln); hist.append(c)
        if c.op == "s_endpgm": hist = hist + [I("s_nop 15"), I("s_nop 15")]; alts = []
    return out, added
```

```python
import sys, os, math, struct
sys.path.insert(0, "dev")
from asmgen import Asm

KNAME = "interleave_layers__ssm_conv_h3__mixer_s_mlp__prompt_kernel"
MB = 1 << 20; KB = 1024
UT, Y = 24 * MB, 28 * MB
CSP3 = 20 * MB + 128 * 1024
A_Q, A_K, A_V, A_SH, A_SSMK, A_SSMD, B_X, B_W1, B_W2, B_W3, B_W4, D_OUT, D_DBG, D_WS = [8 * i for i in range(14)]
def env(k, d): return type(d)(os.environ.get(k, d)) if not isinstance(d, (list, dict, tuple)) else eval(os.environ.get(k, repr(d)))
STAMP = env("STAMP", 0)
def f32(x): return "0x%08x" % struct.unpack("<I", struct.pack("<f", x))[0]
GC1 = -2.0 * math.sqrt(2.0 / math.pi) * math.log2(math.e)

WAD = 74
RB0, RB1 = 78, 118
WR0 = 128
class VA:
    def __init__(self, start=1, skip=False): self.n = start; self.hi = start; self.skip = skip
    def __call__(self, cnt=1, al=None):
        if al is None: al = 2 if cnt > 1 else 1
        self.n = (self.n + al - 1) // al * al
        if self.skip and self.n < RB1 and self.n + cnt > RB0: self.n = (RB1 + al - 1) // al * al
        r = self.n; self.n += cnt; self.hi = max(self.hi, self.n); return r
def vr(b, n): return f"v[{b}:{b+n-1}]" if n > 1 else f"v{b}"

def unpack(a, lo, hi, src):
    a.e(f"v_lshlrev_b32 v{lo}, 16, v{src}")
    a.e(f"v_and_b32 v{hi}, 0xffff0000, v{src}")
def round2(a, x, y, tmp):
    a.e(f"v_cvt_pk_bf16_f32 v{tmp}, v{x}, v{y}")
    unpack(a, x, y, tmp)
def round1(a, x):
    a.e(f"v_cvt_pk_bf16_f32 v{x}, v{x}, v{x}")
    a.e(f"v_lshlrev_b32 v{x}, 16, v{x}")
def ln_finish(a, mean, var, rs):
    round1(a, mean); round1(a, var)
    a.e(f"v_add_f32 v{var}, {f32(1e-5)}, v{var}"); round1(a, var)
    a.e(f"v_sqrt_f32 v{var}, v{var}"); round1(a, var)
    if rs is not None: a.e(f"v_rcp_f32 v{rs}, v{var}")

FLG = 22 * MB
LB0, LSTR, GSTR = 32 * MB, 64 * MB, 8 * MB
oH2 = 0; oSM = 1792 * 1024; oFP = 16384; oST2 = oSM + 32768
oH, oX1P, oP0, oP1 = [4 * MB + i * 512 * 1024 for i in range(4)]
XSZ = 512 * 1024 - 8192; H2SZ = 1792 * 1024 - 8192
X3G = 160 * MB
LNSG = FLG + 128 * KB
def fso(stage): return int(stage * 256)
def spread(a, d, src):
    a.e(f"s_lshr_b32 s53, s{src}, 3"); a.e("s_lshl_b32 s53, s53, 14"); a.e(f"s_and_b32 s{d}, s{src}, 7"); a.e(f"s_lshl_b32 s{d}, s{d}, 10"); a.e(f"s_add_u32 s{d}, s{d}, s53")
ST_R, ST_G2, _, ST_G3, ST_G4, _, ST_G3B, ST_G3A = range(8); ST_G2S = 5.5
FH = 2048
F_KVT, F_FRONT, F_CS = FLG + 256 * KB, FLG + 512 * KB, FLG
LDS_TOTAL = 163840
AUX = LDS_TOTAL - 4096
SC = "sc1"
PSLEEP = env("PSLEEP", 5); PACE = env("PACE", 8); STQ = env("STQ", 12); FSLEEP = env("FSLEEP", 3)
NT = os.environ.get("NT", "nt"); NTK = NT; NTH = NT
PUB2 = env("PUB2", 4); MAP = env("MAP", 4); HSPLIT = env("HSPLIT", 2); PWAIT = env("PWAIT", 8)
PACES = env("PACES", {4: 4}); C0PUB = env("C0PUB", 5)
REC, LNSL = 152 * KB, AUX + 1024
WST = 24 * KB

CFG = {1: dict(KBT=32, NW=16, LDW=2048, TN16=4, WB=0),
       3: dict(WM=2, WN=2, MT=4, NT=7, KBT=32, NS=16, NA=3, NW=3, A=oX1P, LDW=7168, NPRE=2, WR=2),
       4: dict(WM=2, WN=2, MT=4, NT=4, KBT=112, NS=28, NA=3, NW=6, A=oH2, LDW=2048)}
for w, c in CFG.items():
    c.setdefault("NPRE", c["NW"]); c.setdefault("WR", 1)
    if w > 1: c["TN16"] = c["WN"] * c["NT"]; c["WB"] = c["NA"] * 16384
    c["STB"] = c["TN16"] * 2048; c["RB"] = c["TN16"] * 32
CFG[2] = CFG[1]
CSO = {1: AUX + 3584, 3: AUX}

LW = AUX + 3072
def mstamp(a, force=False):
    if os.environ.get("JIT"):
        X = a.lab("jit")
        a.e("s_cselect_b32 s101, 1, 0"); a.e("s_memtime s[64:65]"); a.e("s_waitcnt lgkmcnt(0)"); a.e(f"s_and_b32 s64, s64, {os.environ['JIT']}"); a.e("s_cmp_lg_u32 s64, 0")
        a.e(f"s_cbranch_scc1 {X}"); a.e("s_sleep 50"); a.e(f"{X}:"); a.e("s_cmp_eq_u32 s101, 1")
        return
    if not STAMP or (os.environ.get("GST") and not force): return
    a.e("s_memrealtime s[64:65]"); a.e("s_memtime s[96:97]")
    a.e("s_mov_b32 s100, m0"); a.e("s_mov_b32 m0, s66"); a.e("s_waitcnt lgkmcnt(0)")
    a.e("v_writelane_b32 v4, s64, m0"); a.e("v_writelane_b32 v5, s96, m0")
    a.e("s_mov_b32 m0, s100"); a.e("s_add_u32 s66, s66, 1")

def lsrd(a, d, off, nbytes, prev=False):
    if prev:
        a.e(f"s_sub_u32 s{d}, s62, {LSTR - off:#x}"); a.e(f"s_subb_u32 s{d+1}, s63, 0")
        a.e(f"s_mov_b32 s{d+2}, {nbytes:#x}"); a.e(f"s_mov_b32 s{d+3}, 0x20000")
    else: a.srd(d, 62, nbytes, off=off)
def x3_srd(a, d):
    a.e(f"s_lshl_b32 s{d+2}, s60, 24"); a.e(f"s_lshl_b32 s{d+3}, s94, 13"); a.e(f"s_add_u32 s{d+2}, s{d+2}, s{d+3}"); a.e(f"s_add_u32 s{d+2}, s{d+2}, {X3G}")
    a.e(f"s_add_u32 s{d}, s4, s{d+2}"); a.e(f"s_addc_u32 s{d+1}, s5, 0"); a.e(f"s_mov_b32 s{d+2}, {8*MB - 8192}"); a.e(f"s_mov_b32 s{d+3}, 0x20000")
def lns_srd(a, d):
    a.e(f"s_lshl_b32 s{d+2}, s60, 15"); a.e(f"s_add_u32 s{d+2}, s{d+2}, {LNSG}")
    a.e(f"s_add_u32 s{d}, s4, s{d+2}"); a.e(f"s_addc_u32 s{d+1}, s5, 0"); a.e(f"s_mov_b32 s{d+2}, 32768"); a.e(f"s_mov_b32 s{d+3}, 0x20000")
def rowaddr(a, d, r, t):
    a.e(f"v_and_b32 v{t}, 3, v{r}"); a.e(f"v_lshrrev_b32 v{d}, 2, v{r}"); a.e(f"v_lshlrev_b32 v{d}, 14, v{d}"); a.e(f"v_lshl_add_u32 v{d}, v{t}, 11, v{d}")

def group_off(a, d, m):
    a.e(f"s_lshr_b32 s53, s{m}, 3"); a.e("s_lshl_b32 s53, s53, 2"); a.e(f"s_and_b32 s54, s{m}, 3"); a.e("s_add_u32 s53, s53, s54"); a.e("s_lshl_b32 s53, s53, 23")
    a.e(f"s_lshr_b32 s54, s{m}, 2"); a.e("s_xor_b32 s54, s54, s94"); a.e("s_and_b32 s54, s54, 1"); a.e("s_lshl_b32 s54, s54, 13")
    a.e(f"s_add_u32 s{d}, s53, s54"); a.e(f"s_add_u32 s{d}, s{d}, {LB0}")

def poll_core(a, t, ad, mask, cnt=0, nap=None):
    L = a.lab("poll"); D = a.lab("pok")
    a.e("s_mov_b32 s53, 0"); a.e(f"s_add_u32 s54, s52, {cnt}")
    a.e(f"s_bfm_b64 exec, {mask.bit_length()}, 0")
    a.e(f"{L}:")
    a.e(f"buffer_load_dword v{t}, v{ad}, s[56:59], 0 offen {SC}")
    a.e("s_waitcnt vmcnt(0)")
    a.e(f"v_cmp_eq_u32 vcc, s54, v{t}")
    a.e("s_cmp_eq_u64 vcc, exec"); a.e(f"s_cbranch_scc1 {D}")
    a.e(f"s_sleep {PSLEEP if nap is None else nap}")
    a.e("s_add_u32 s53, s53, 1"); a.e("s_cmp_lt_u32 s53, s61"); a.e(f"s_cbranch_scc1 {L}")
    a.e("s_mov_b32 s61, 0")
    a.e(f"{D}:")
    a.e("s_mov_b64 exec, -1")

SPLIT = {ST_G3: "half", ST_G3A: "half", ST_G3B: "half"}
def flag_addr(a, r, stage, prev=False):
    so = fso(stage) - (LSTR if prev else 0)
    a.e(f"s_add_u32 s54, s55, {so & 0xffffffff:#x}")
    sp = SPLIT.get(stage)
    if sp == "half": a.e("s_lshl_b32 s53, s31, 7"); a.e("s_add_u32 s54, s54, s53")
    a.e(f"v_mov_b32 v{r}, s54")
    if stage == ST_R:
        a.e("s_bitcmp1_b32 s29, 2"); a.e("s_cselect_b32 s53, s93, s92"); a.e("s_add_u32 s53, s53, s54"); a.e(f"v_writelane_b32 v{r}, s53, 1")
        return 3, 16
    if stage == ST_G2: a.e(f"v_lshl_add_u32 v{r}, v1, 7, v{r}"); return 15, 16
    return 1, 8 if sp else 16
def own_wait(a, stage, prev, t):
    if stage == ST_R: return
    k = {ST_G3A: 1, ST_G4: 2}[stage] - (2 if prev else 0)
    a.e("s_lshl_b32 s54, s60, 1"); a.e(f"s_add_u32 s54, s54, {k}")
    lds_spin(a, LW + 56, "s54", t, nap=PWAIT)
def flag_try(a, r, ad):
    a.e("s_mov_b64 exec, 1"); a.e(f"buffer_load_dword v{r}, v{ad}, s[56:59], 0 offen {SC}"); a.e("s_mov_b64 exec, -1")
def flag_check(a, r, ad, cnt):
    D = a.lab("fok")
    a.e(f"v_readfirstlane_b32 s53, v{r}"); a.e(f"s_add_u32 s54, s52, {cnt}"); a.e("s_cmp_eq_u32 s53, s54"); a.e(f"s_cbranch_scc1 {D}")
    poll_core(a, r, ad, 1, cnt=cnt)
    a.e(f"{D}:")

def poll(a, stage, t, prev=False, wave=4):
    D = a.lab("pdone")
    a.e(f"s_cmp_lg_u32 s30, {wave}"); a.e(f"s_cbranch_scc1 {D}")
    own_wait(a, stage, prev, t)
    mask, cnt = flag_addr(a, t + 1, stage, prev)
    poll_core(a, t, t + 1, mask, cnt=cnt)
    a.e(f"{D}:")
    a.e("s_barrier")

def publish(a, stage, nw, t, off=None, wait=0, ctr=None, flag=False):
    D = a.lab("pub")
    mark = off is None and stage in (ST_G3A, ST_G4)
    if off is None:
        a.e(f"s_add_u32 s53, s55, {fso(stage)}"); off = 53
        if SPLIT.get(stage) == "half": a.e("s_lshl_b32 s54, s31, 7"); a.e("s_add_u32 s53, s53, s54")
    a.e(f"v_mov_b32 v{t}, 1"); a.e(f"v_mov_b32 v{t+1}, {LW + (ctr if ctr is not None else 4 if nw == 8 else 0)}"); a.e(f"v_mov_b32 v{t+3}, 0")
    a.e("s_mov_b64 exec, 1")
    if wait is not None: a.e(f"s_waitcnt vmcnt({wait})")
    if nw > 1:
        a.e(f"ds_add_rtn_u32 v{t+2}, v{t+1}, v{t}")
        if flag: a.e(f"v_mov_b32 v{t+1}, s52")
        a.e("s_waitcnt lgkmcnt(0)")
        a.e(f"v_readfirstlane_b32 s54, v{t+2}")
        a.e(f"s_and_b32 s54, s54, {nw-1}"); a.e(f"s_cmp_lg_u32 s54, {nw-1}"); a.e(f"s_cbranch_scc1 {D}")
    if flag: a.e(f"buffer_store_dword v{t+1}, v{t+3}, s[56:59], s{off} offen {SC}")
    else: a.e(f"buffer_atomic_add v{t}, v{t+3}, s[56:59], s{off} offen {SC}")
    if mark: a.e(f"v_mov_b32 v{t+1}, {LW+56}"); a.e(f"ds_add_u32 v{t+1}, v{t}")
    a.e(f"{D}:")
    a.e("s_mov_b64 exec, -1")

def lds_spin(a, addr, target, t, dst=53, nap=False):
    L = a.lab("spin")
    a.e(f"v_mov_b32 v{t}, {addr}")
    a.e(f"{L}:")
    if nap: a.e(f"s_sleep {int(nap)}")
    a.e(f"ds_read_b32 v{t+1}, v{t}"); a.e("s_waitcnt lgkmcnt(0)"); a.e(f"v_readfirstlane_b32 s{dst}, v{t+1}")
    a.e(f"s_cmp_ge_u32 s{dst}, {target}"); a.e(f"s_cbranch_scc0 {L}")
def lds_set(a, addr, val, t):
    a.e(f"v_mov_b32 v{t}, {addr}"); a.e(f"v_mov_b32 v{t+1}, {val}")
    a.e("s_waitcnt lgkmcnt(0)"); a.e(f"ds_write_b32 v{t}, v{t+1}")
def lds_inc(a, addr, t):
    a.e(f"v_mov_b32 v{t}, {addr}"); a.e(f"v_mov_b32 v{t+1}, 1")
    a.e("s_waitcnt lgkmcnt(0)")
    a.e("s_mov_b64 exec, 1"); a.e(f"ds_add_u32 v{t}, v{t+1}"); a.e("s_mov_b64 exec, -1")
def lbar(a, k, t, addr=LW + 8, nap=False):
    lds_inc(a, addr, t); lds_spin(a, addr, 4 * k, t, nap=nap)

class Rec:
    def __init__(s_): s_.l = []
    def e(s_, x): s_.l.append(x)
    srd = Asm.srd
class Track:
    def __init__(s, a): s.a = a; s.vq = []; s.lq = []
    def e(s, x): s.a.e(x)
    def vm(s, x, tag=None): s.a.e(x); s.vq.append(tag)
    def ds(s, x, tag=None): s.a.e(x); s.lq.append(tag)
    def _w(s, q, tag, nm, mx):
        if tag not in q: return
        i = max(k for k, x in enumerate(q) if x == tag); n = len(q) - 1 - i
        assert n <= mx
        s.a.e(f"s_waitcnt {nm}({n})"); del q[:i + 1]
    def wv(s, tag): s._w(s.vq, tag, "vmcnt", 63)
    def wl(s, tag): s._w(s.lq, tag, "lgkmcnt", 15)
    def nv(s, tag):
        return len(s.vq) - 1 - max(k for k, x in enumerate(s.vq) if x == tag)
NVOTE = 255; NSAMP = env("NSAMP", 1)
HSTR = 4160; CHB = 24576; UOFF = 4 * HSTR; US = 96
KVS = 4 * CHB
RFO, RYO, RRO, RI, RXO, RT, RXA, RXB, RYF, RYY = 78, 79, 80, 81, 82, 84, 86, 94, 102, 110
WVB = {1: 118, 2: 118, 4: 119, 3: 121}

KL, VL = 96 * KB, 113 * KB
def front_loads(a):
    vA, vB, t, t2 = 6, 7, 8, 9
    a.e(f"v_bfe_u32 v{t}, v0, 4, 2"); a.e(f"v_and_b32 v{t2}, 15, v0"); a.e(f"v_lshlrev_b32 v{vA}, 11, v{t}"); a.e(f"v_lshlrev_b32 v{t}, 1, v{t}")
    a.e(f"v_xor_b32 v{t}, v{t}, v{t2}"); a.e(f"v_lshl_add_u32 v{t}, v{t}, 4, v{vA}")
    a.e("s_and_b32 s34, s2, 7"); a.e("s_lshr_b32 s35, s2, 3")
    a.e("s_lshl_b32 s36, s35, 17"); a.e("s_lshl_b32 s37, s34, 8"); a.e("s_add_u32 s36, s36, s37")
    a.e("s_lshl_b32 s37, s30, 6"); a.e("s_and_b32 s38, s37, 128"); a.e("s_add_u32 s37, s37, 64"); a.e("s_and_b32 s37, s37, 128")
    a.e(f"v_xor_b32 v{vA}, s38, v{t}"); a.e(f"v_xor_b32 v{vB}, s37, v{t}")
    a.e("s_lshl_b32 s37, s30, 14"); a.e("s_add_u32 s37, s37, s36"); a.e("s_add_u32 s38, s37, 8192"); a.e("s_lshl_b32 s39, s30, 11")
    a.e(f"s_mov_b32 s18, {4*MB}"); a.e("s_mov_b32 s19, 0x20000"); a.e("s_mov_b32 s22, s18"); a.e("s_mov_b32 s23, s19")
    a.e(f"s_add_u32 m0, s39, {KL + 1024}")
    a.e("s_waitcnt lgkmcnt(0)")
    a.e("s_mov_b64 s[16:17], s[8:9]"); a.e("s_mov_b64 s[20:21], s[10:11]")
    a.e(f"buffer_load_dwordx4 v{vA}, s[16:19], s37 offen {NT} lds"); a.e("s_add_u32 m0, m0, 1024")
    a.e(f"buffer_load_dwordx4 v{vB}, s[16:19], s38 offen {NT} lds"); a.e(f"s_add_u32 m0, s39, {VL}")
    a.e(f"buffer_load_dwordx4 v{vA}, s[20:23], s37 offen {NT} lds"); a.e("s_add_u32 m0, m0, 1024")
    a.e(f"buffer_load_dwordx4 v{vA}, s[20:23], s38 offen {NT} lds")
    a.e("s_mov_b32 s86, 256"); a.e("s_mov_b32 s87, 0x20000"); a.e(f"v_mov_b32 v{ZZ}, 0")
    a.e("s_cmp_lg_u32 s30, 0"); a.e("s_cbranch_scc1 KV_t0")
    a.e("s_sub_u32 s36, s36, 8192"); a.e(f"v_add_u32 v{t}, s36, v{t}"); a.e(f"s_mov_b32 m0, {KL}")
    a.e(f"buffer_load_dwordx4 v{t}, s[16:19], 0 offen {NT} lds")
    a.e("s_cmp_lg_u32 s2, 0"); a.e("s_cbranch_scc1 KV_t0")
    a.e("s_lshl_b32 s44, s46, 6"); a.e("s_or_b32 s44, s44, 1"); a.e(f"v_mov_b32 v{t2}, s44")
    a.e("s_mov_b64 exec, 1"); a.e(f"buffer_store_dword v{t2}, v{ZZ}, s[84:87], 0 offen {SC}"); a.e("s_mov_b64 exec, -1")
    a.e("KV_t0:")
    a.e("s_lshl_b32 s37, s34, 10"); a.e("s_lshl_b32 s38, s30, 7"); a.e("s_add_u32 s37, s37, s38"); a.e(f"v_and_b32 v{t2}, 15, v0"); a.e(f"v_lshlrev_b32 v{t2}, 3, v{t2}")
    a.srd(24, 12, 8192)
    a.e(f"buffer_load_dwordx2 {vr(TAP,2)}, v{t2}, s[24:27], s37 offen")
ZZ, TAP = 10, 12

def probe_base(a):
    a.e("s_and_b32 s42, s2, 31"); a.e("s_lshl_b32 s42, s42, 8"); a.e("s_lshr_b32 s43, s2, 5"); a.e("s_lshl_b32 s43, s43, 14"); a.e("s_add_u32 s42, s42, s43")
    a.e(f"s_add_u32 s42, s42, {LB0 + oSM + 131072}")
def front_arrive(a, wait):
    D = a.lab("fa"); t = 6
    a.e("s_and_b32 s36, s2, 7"); a.e("s_lshr_b32 s53, s2, 5"); a.e("s_lshl3_add_u32 s36, s36, s53"); a.e("s_lshl_b32 s36, s36, 7"); a.e(f"s_add_u32 s36, s36, {F_FRONT}")
    a.e(f"v_mov_b32 v{t}, 1"); a.e(f"v_mov_b32 v{t+1}, {LW+4}"); a.e(f"v_lshlrev_b32 v{t+3}, 13, v1")
    a.e("s_mov_b64 exec, 1")
    if wait is not None: a.e(f"s_waitcnt vmcnt({wait})")
    a.e("s_waitcnt lgkmcnt(0)")
    a.e(f"ds_add_rtn_u32 v{t+2}, v{t+1}, v{t}"); a.e(f"ds_read_b32 v{t+4}, v{t+1} offset:28")
    a.e("s_waitcnt lgkmcnt(0)")
    a.e(f"v_readfirstlane_b32 s54, v{t+2}"); a.e(f"v_readfirstlane_b32 s53, v{t+4}")
    a.e("s_cmp_lg_u32 s54, 7"); a.e(f"s_cbranch_scc1 {D}")
    a.e("s_mov_b64 exec, 0xffff"); a.e("s_or_b32 s53, s53, 1"); a.e(f"v_mov_b32 v{t}, s53")
    a.e(f"buffer_atomic_add v{t}, v{t+3}, s[56:59], s36 offen {SC}")
    a.e(f"{D}:"); a.e("s_mov_b64 exec, -1")
def front_a(a):
    T = Track(a); v = VA(14)
    t = v(); t2 = v(); ra = v(2, 2); go = v(); hw = v(); hw2 = v(); hoff = v(6, 2); d = v(18, 2); tf = v(4, 2); o = v(8, 4); z = v(4, 4)
    assert v.hi <= WAD
    v = VA(128); kr = v(10, 2); vv = v(8, 2); kf = v(20, 2); ks = v(16, 2); dm = 240
    a.e("s_cmp_lg_u32 s30, 4"); a.e("s_cbranch_scc1 HB_1")
    a.e(f"v_add_u32 v{t}, {LW}, v3"); a.e(f"ds_write_b32 v{t}, v{ZZ}")
    a.e("HB_1:")
    w_srd(a, 2, 88)
    a.e("s_lshl3_add_u32 s36, s2, s30"); a.e("s_lshl_b32 s36, s36, 10")
    w_srd(a, 1, 80); a.e("s_mov_b32 s50, s36")
    def wtouch():
        for d_ in (88, 80): T.vm(f"buffer_load_dwordx4 {vr(dm,4)}, v2, s[{d_}:{d_+3}], s50 offen")
    WT = env("WT", 1)
    if WT == 0: wtouch()
    w_lanes(a, (1,), t, t2)
    a.e("s_lshl_b32 s48, s29, 7"); a.e("s_lshl_b32 s36, s30, 14"); a.e("s_add_u32 s48, s48, s36"); a.e("s_lshl_b32 s49, s30, 10")
    a.e(f"s_add_u32 s48, s48, {MB}")
    w2q = list(range(9, 16))
    def w2(n):
        for _ in range(min(n, len(w2q))):
            j = w2q.pop(0)
            a.e(f"s_add_u32 s36, s67, {j & 7}"); a.e("s_and_b32 s36, s36, 7"); a.e("s_lshl_b32 s36, s36, 17"); a.e("s_add_u32 s36, s36, s48")
            a.e(f"s_add_u32 m0, s49, {WST + j * 8192}")
            T.vm(f"buffer_load_dwordx4 v{WVB[1]}, s[88:91], s36 offen lds")
    a.e("s_and_b32 s41, s30, 3"); chan_setup(a, 41)
    a.e("s_lshl_b32 s36, s39, 12")
    a.e("s_add_u32 s12, s14, s36"); a.e("s_addc_u32 s13, s15, 0"); a.e("s_mov_b32 s14, 4096"); a.e("s_mov_b32 s15, 0x20000")
    a.e("s_lshr_b32 s45, s30, 2"); a.e("s_lshl_b32 s45, s45, 11")
    for it in range(3):
        if it < 2: a.e(f"s_add_u32 s36, s45, {(1024*it - 64) & 0xffffffff:#x}")
        else: a.e(f"s_mov_b32 s36, {4096 - 64}")
        a.e(f"v_add_u32 v{hoff+2*it}, s36, v2"); a.e(f"v_add_u32 v{hoff+2*it+1}, 16, v{hoff+2*it}")
    def hld():
        for it in range(3):
            T.vm(f"buffer_load_dwordx4 {vr(d+6*it,4)}, v{hoff+2*it}, s[12:15], 0 offen {NTH}", "h")
            T.vm(f"buffer_load_dwordx2 {vr(d+6*it+4,2)}, v{hoff+2*it+1}, s[12:15], 0 offen {NTH}", "h")
    hld()
    if WT == 1: wtouch()
    a.e(f"v_add_u32 v{hw}, s40, v2"); a.e(f"v_add_u32 v{hw2}, s45, v{hw}")
    conv_setup(a); wr_addr(a, WAD, t); r_addr(a); w_lanes(a, (3, 4), t, t2)
    a.e("s_waitcnt lgkmcnt(0)"); conv_diag(a)
    a.srd(8, 6, 4 * MB)
    for i in range(4): a.e(f"v_mov_b32 v{z+i}, 0")
    a.e("s_lshr_b32 s36, s30, 2"); a.e("s_mul_i32 s36, s36, 720"); a.e(f"v_add_u32 v{t}, s36, v{hw}"); a.e("s_bfm_b64 exec, 45, 0")
    a.e(f"ds_write_b128 v{t}, {vr(z,4)} offset:{UOFF+64*US}"); a.e("s_mov_b64 exec, -1")
    a.e("s_and_b32 s34, s2, 7"); a.e("s_lshr_b32 s35, s2, 3")
    a.e(f"v_bfe_u32 v{t}, v1, 2, 3"); a.e(f"v_xor_b32 v{t}, s30, v{t}"); a.e(f"v_lshlrev_b32 v{ra}, 5, v{t}")
    a.e(f"v_and_b32 v{t}, 3, v1"); a.e(f"v_lshl_add_u32 v{ra}, v{t}, 3, v{ra}")
    a.e(f"v_bfe_u32 v{t}, v1, 2, 2"); a.e(f"v_lshl_add_u32 v{ra}, v{t}, 8, v{ra}"); a.e(f"v_lshrrev_b32 v{t}, 4, v1"); a.e(f"v_lshl_add_u32 v{ra}, v{t}, 12, v{ra}")
    a.e(f"v_add_u32 v{ra}, {KL}, v{ra}"); a.e(f"v_xor_b32 v{ra+1}, 128, v{ra}")
    a.srd(16, 4, 4 * MB, off=UT)
    a.e(f"v_bfe_u32 v{go}, v1, 2, 2"); a.e(f"v_lshlrev_b32 v{go}, 14, v{go}"); a.e(f"v_and_b32 v{t}, 3, v1"); a.e(f"v_lshl_add_u32 v{go}, v{t}, 6, v{go}")
    a.e(f"v_bfe_u32 v{t}, v1, 4, 1"); a.e(f"v_lshrrev_b32 v{t2}, 5, v1"); a.e(f"v_lshl_add_u32 v{t}, v{t}, 1, v{t2}"); a.e(f"v_xor_b32 v{t}, 3, v{t}"); a.e(f"v_lshl_add_u32 v{go}, v{t}, 4, v{go}")
    a.e("s_lshl3_add_u32 s42, s34, s30"); a.e("s_lshl_b32 s43, s42, 16"); a.e("s_sub_u32 s37, 31, s35"); a.e("s_lshl_b32 s37, s37, 9"); a.e("s_add_u32 s43, s43, s37")
    a.e("s_lshl_b32 s44, s42, 5"); a.e("s_add_u32 s44, s44, s35"); a.e("s_lshl_b32 s44, s44, 7"); a.e(f"s_add_u32 s44, s44, {F_KVT}")
    a.e(f"s_waitcnt vmcnt({len(T.vq)}) lgkmcnt(0)"); a.e("s_barrier")
    mstamp(a)
    for i in range(5): a.e(f"ds_read_b64_tr_b16 {vr(kr+2*i,2)}, v{ra+i//4} offset:{1024*i}")
    for i in range(4): a.e(f"ds_read_b64_tr_b16 {vr(vv+2*i,2)}, v{ra} offset:{VL - KL + 1024*i}")
    a.e("s_load_dword s52, s[84:85], 0")
    unpack(a, tf, tf + 1, TAP); unpack(a, tf + 2, tf + 3, TAP + 1)
    a.e("s_waitcnt lgkmcnt(0)")
    b = Rec()
    for i in range(10): unpack(b, kf + 2 * i, kf + 2 * i + 1, kr + i)
    for i in range(16): b.e(f"v_mul_f32 v{ks+i}, v{kf+i+1}, v{tf+3}")
    for j in (2, 1, 0):
        for i in range(16): b.e(f"v_fmac_f32 v{ks+i}, v{kf+i+4-j}, v{tf+j}")
    for i in range(8): unpack(b, kf + 2 * i, kf + 2 * i + 1, vv + i)
    for i in range(16): b.e(f"v_mul_f32 v{ks+i}, v{ks+i}, v{kf+i}")
    for i in range(8): b.e(f"v_cvt_pk_bf16_f32 v{o+i}, v{ks+8*(i//4)+7-2*(i%4)}, v{ks+8*(i//4)+6-2*(i%4)}")
    for x in b.l: a.e(x)
    a.e("s_cmp_lg_u32 s52, 0"); a.e("s_cbranch_scc1 HB_q")
    a.e("s_mov_b32 s53, 0")
    a.e("HB_p:")
    a.e(f"buffer_load_dword v{t}, v{ZZ}, s[84:87], 0 offen {SC}"); a.e("s_waitcnt vmcnt(0)")
    a.e(f"v_readfirstlane_b32 s52, v{t}"); a.e("s_cmp_lg_u32 s52, 0"); a.e("s_cbranch_scc1 HB_q")
    a.e("s_add_u32 s53, s53, 1"); a.e("s_cmp_lt_u32 s53, s61"); a.e("s_cbranch_scc1 HB_p")
    a.e("s_mov_b32 s52, 1"); a.e("s_mov_b32 s61, 0")
    a.e("HB_q:")
    for e in range(4): a.e(f"v_permlane32_swap_b32 v{o+e}, v{o+4+e}")
    a.e(f"v_mov_b32 v{t}, s52")
    for i in range(2): T.vm(f"buffer_store_dwordx4 {vr(o+4*i,4)}, v{go}, s[16:19], s43 offen offset:{256*(1-i)} {SC}", "u")
    a.e("s_lshl_b32 s37, s42, 7"); a.e("s_lshl_b32 s53, s35, 13"); a.e("s_add_u32 s37, s37, s53"); a.e(f"s_add_u32 s37, s37, {F_FRONT}")
    a.e("s_cmp_ge_u32 s35, 16"); a.e("s_cbranch_scc1 KV_ni")
    a.e("s_mov_b64 exec, 1"); a.e(f"buffer_store_dword v{t}, v{ZZ}, s[56:59], s37 offen {SC}"); a.e("s_mov_b64 exec, -1")
    a.e("KV_ni:")
    mstamp(a)
    cc = kr
    T.wv("h")
    FL = env("FL", 3)
    def flag():
        T.wv("u")
        a.e("s_mov_b64 exec, 1"); T.vm(f"buffer_store_dword v{t}, v{ZZ}, s[56:59], s44 offen {SC}"); a.e("s_mov_b64 exec, -1")
        mstamp(a)
    for it in range(3):
        if it == FL: flag()
        D = d + 6 * it; c0 = cc + 12 * it; c1 = c0 + 4; c2 = c0 + 8
        for k in range(4):
            a.e(f"v_alignbit_b32 v{c0+k}, v{D+k+1}, v{D+k}, 16")
            a.e(f"v_mov_b32 v{c1+k}, v{D+k+1}")
            a.e(f"v_alignbit_b32 v{c2+k}, v{D+k+2}, v{D+k+1}, 16")
        if it == 2: a.e("s_mov_b64 exec, 0xf")
        ad, o0 = (hw2, 1024 * it) if it < 2 else (hw, 4096)
        a.e(f"ds_write_b128 v{ad}, {vr(c0,4)} offset:{o0}")
        a.e(f"ds_write_b128 v{ad}, {vr(c1,4)} offset:{HSTR+o0}")
        a.e(f"ds_write_b128 v{ad}, {vr(c2,4)} offset:{2*HSTR+o0}")
        a.e(f"ds_write_b128 v{ad}, {vr(D+2,4)} offset:{3*HSTR+o0}")
    a.e("s_mov_b64 exec, -1")
    if FL == 3: flag()
    a.e("s_waitcnt lgkmcnt(0)"); a.e("s_barrier")
    mstamp(a)
    if WT == 2: wtouch()
    w2(16)
def load_q(a):
    for j in range(4): a.e(f"buffer_load_dwordx2 {vr(RXA+2*j,2)}, v{RRO}, s[8:11], 0 offen offset:{128*(j>>1) + 32*(j&1)} {NTH}")
def chan_setup(a, wsg):
    a.e("s_and_b32 s38, s2, 7"); a.e("s_lshl_b32 s38, s38, 5"); a.e("s_lshr_b32 s39, s2, 3"); a.e("s_add_u32 s38, s38, s39")
    a.e("s_lshl_b32 s39, s38, 2"); a.e(f"s_add_u32 s39, s39, s{wsg}")
    a.e(f"s_mul_i32 s40, s{wsg}, {CHB}")

def touch(a, which, nbytes, r):
    n = nbytes // 1024 // 512
    a.e(f"s_mov_b64 s[48:49], s[{66+2*which}:{67+2*which}]")
    a.e("s_lshl_b32 s45, s2, 1"); a.e("s_and_b32 s50, s30, 1"); a.e("s_add_u32 s45, s45, s50"); a.e(f"s_mul_i32 s45, s45, {n*1024}")
    a.e(f"s_mov_b32 s50, {nbytes}"); a.e("s_mov_b32 s51, 0x20000")
    for i in range(n):
        if i and i % 4 == 0: a.e("s_add_u32 s45, s45, 4096")
        a.e(f"buffer_load_dwordx4 {vr(r,4)}, v2, s[48:51], s45 offen offset:{(i&3)*1024}")
    return n

def cs_sum(a):
    N = 3584; CSEL, CFR, CAD, CACC, CO = 20, 48, 104, 108, 112
    X = a.lab("cs")
    a.e("s_cmp_lg_u32 s60, 0"); a.e(f"s_cbranch_scc1 {X}")
    a.e("s_and_b32 s35, s30, 1")
    nr, pos = w_bases(a, 3, CAD, 35, 7, CO, CO + 1)
    a.e("s_cmp_eq_u32 s28, s29"); a.e(f"s_cselect_b32 s36, 0, {CFG[3]['STB']}")
    for i in range(nr): a.e(f"v_add_u32 v{CAD+i}, s36, v{CAD+i}")
    for T in range(7):
        for kk in range(2):
            for h in range(2):
                r, imm = pos(T, kk, h)
                a.e(f"ds_read_b64_tr_b16 {vr(CFR+8*T+4*kk+2*h,2)}, v{CAD + r} offset:{imm}")
    a.e(f"v_and_b32 v{CO}, 15, v1"); a.e(f"v_mov_b32 v{CO+1}, 0x3f803f80")
    for T in range(7):
        a.e(f"v_cmp_eq_u32 vcc, {T}, v{CO}")
        for e in range(4): a.e(f"v_cndmask_b32 v{CSEL+4*T+e}, 0, v{CO+1}, vcc")
    a.e(f"v_and_b32 v{CO+2}, 48, v1"); a.e(f"v_lshl_add_u32 v{CO+2}, v{CO}, 6, v{CO+2}")
    a.e(f"v_mov_b32 v{CO+1}, 0x7f000000")
    a.e(f"v_cmp_gt_u32 vcc, 7, v{CO}"); a.e(f"v_cndmask_b32 v{CO+2}, v{CO+1}, v{CO+2}, vcc")
    a.srd(20, 4, 16 * N * 4, off=CSP3)
    a.e(f"s_mul_i32 s36, s28, {N*4}"); a.e("s_lshl1_add_u32 s35, s29, s35"); a.e(f"s_mul_i32 s35, s35, {7*64}"); a.e("s_add_u32 s35, s35, s36")
    a.e("s_waitcnt lgkmcnt(0)")
    for i in range(14): a.e(f"v_mfma_f32_16x16x32_bf16 {vr(CACC,4)}, {vr(CFR+4*i,4)}, {vr(CSEL+4*(i//2),4)}, {vr(CACC,4) if i else 0}")
    a.e(f"buffer_store_dwordx4 {vr(CACC,4)}, v{CO+2}, s[20:23], s35 offen {SC}")
    a.e(f"{X}:")
def cs_signal(a):
    X = a.lab("cs")
    a.e("s_cmp_lg_u32 s60, 0"); a.e(f"s_cbranch_scc1 {X}")
    a.e("s_lshl_b32 s36, s29, 7"); a.e(f"s_add_u32 s36, s36, {F_CS}")
    publish(a, None, 1, 14, off=36, wait=None)
    a.e(f"{X}:")

def wr_addr(a, ad, t):
    a.e(f"v_lshrrev_b32 v{t}, 2, v1"); a.e(f"v_lshlrev_b32 v{ad}, 7, v{t}"); a.e(f"v_bfe_u32 v{t}, v{t}, 1, 2")
    a.e("s_and_b32 s35, s30, 2"); a.e(f"v_and_b32 v{t+1}, 1, v1"); a.e(f"v_or_b32 v{t+1}, s35, v{t+1}"); a.e(f"v_xor_b32 v{t}, v{t}, v{t+1}")
    a.e(f"v_lshl_add_u32 v{ad}, v{t}, 5, v{ad}"); a.e(f"v_and_b32 v{t}, 2, v1"); a.e(f"v_lshl_add_u32 v{ad}, v{t}, 2, v{ad}")
    a.e("s_and_b32 s35, s30, 1"); a.e("s_lshl_b32 s35, s35, 4"); a.e(f"s_add_u32 s35, s35, {WST}")
    a.e(f"v_add_u32 v{ad}, s35, v{ad}"); a.e(f"v_add_u32 v{ad+1}, {64*KB}, v{ad}")
def wreg(j, kk): return WR0 + 16 * (j & 7) + 8 * kk + 4 * (j >> 3)
def wr_read(a, ad, js):
    for j in js:
        for kk in range(2):
            for h in range(2): a.e(f"ds_read_b64_tr_b16 {vr(wreg(j,kk)+2*h,2)}, v{ad+(j>>3)} offset:{(j&7)*8192 + (32*kk+16*h)*128}")

def front_b(a):
    pt, vd = 6, 8
    a.e("s_and_b32 s36, s30, 3"); a.e("s_lshl_b32 s36, s36, 14"); a.e("s_lshl_b32 s48, s29, 7"); a.e("s_add_u32 s48, s48, s36")
    a.e("s_waitcnt vmcnt(0)")
    a.e("s_barrier")
    mstamp(a)
    wr_read(a, WAD, range(9, 16))
    a.e("s_cmp_lg_u32 s30, 4"); a.e("s_cbranch_scc1 FB_ni")
    a.e(f"v_mov_b32 v{vd}, s52")
    group_off(a, 37, 28); a.e("s_andn2_b32 s37, s37, 0x2000"); a.e("s_lshl_b32 s53, s29, 7"); a.e("s_add_u32 s37, s37, s53"); a.e(f"s_add_u32 s37, s37, {oSM}")
    a.e(f"v_and_b32 v{vd+1}, 1, v1"); a.e(f"v_lshlrev_b32 v{vd+1}, 13, v{vd+1}"); a.e(f"v_bfe_u32 v{vd+2}, v1, 1, 1"); a.e(f"v_lshl_add_u32 v{vd+1}, v{vd+2}, 26, v{vd+1}")
    a.e(f"v_lshrrev_b32 v{vd+2}, 2, v1"); a.e(f"v_lshl_add_u32 v{vd+1}, v{vd+2}, 11, v{vd+1}")
    a.e("s_mov_b64 exec, 0xff"); a.e(f"buffer_store_dword v{vd}, v{vd+1}, s[56:59], s37 offen {SC}")
    a.e("s_cmp_lg_u32 s28, 0"); a.e("s_cbranch_scc1 FB_n2")
    a.e(f"s_add_u32 s37, s53, {F_CS}"); a.e("s_mov_b64 exec, 1"); a.e(f"buffer_store_dword v{vd}, v{vd+1}, s[56:59], s37 offen {SC}")
    a.e("FB_n2:")
    a.e("s_mov_b64 exec, -1")
    a.e("FB_ni:")
    a.e(f"s_cmp_ge_u32 s2, {NVOTE}"); a.e("s_cbranch_scc1 KV_n3"); a.e("s_cmp_lg_u32 s30, 5"); a.e("s_cbranch_scc1 KV_n3")
    probe_base(a)
    a.e(f"v_and_b32 v{vd}, 1, v1"); a.e(f"v_lshlrev_b32 v{vd}, 13, v{vd}"); a.e(f"v_lshrrev_b32 v{vd+1}, 1, v1"); a.e(f"v_lshl_add_u32 v{vd}, v{vd+1}, 7, v{vd}")
    a.e("s_mov_b64 exec, 0xf"); a.e(f"buffer_store_dword v{vd}, v{vd}, s[56:59], s42 offen {SC}"); a.e("s_mov_b64 exec, -1")
    a.e("KV_n3:")
    load_q(a)
    def raw(srd, reg):
        for j in range(9):
            a.e(f"s_add_u32 s36, s67, {j & 7}"); a.e("s_and_b32 s36, s36, 7"); a.e("s_lshl_b32 s36, s36, 17"); a.e("s_add_u32 s36, s36, s48")
            if j == 8: a.e(f"s_add_u32 s36, s36, {MB}")
            a.e(f"buffer_load_dwordx4 {vr(reg(j,0),4)}, v{WVB[1]}, s[{srd}:{srd+3}], s36 offen"); a.e("s_add_u32 s36, s36, 65536")
            a.e(f"buffer_load_dwordx4 {vr(reg(j,1),4)}, v{WVB[1]}, s[{srd}:{srd+3}], s36 offen")
    raw(88, wreg)
    lds_inc(a, LW + 20, pt)
    raw(80, w1raw)
    a.e("s_waitcnt vmcnt(40)")
    a.e(f"s_cmp_ge_u32 s2, {NVOTE}"); a.e("s_cbranch_scc1 FB_np"); a.e("s_cmp_lg_u32 s30, 5"); a.e("s_cbranch_scc1 FB_np")
    probe_base(a)
    a.e("s_mov_b32 s46, -1"); a.e("s_mov_b32 s47, -1"); a.e("s_mov_b32 s43, 0")
    a.e("FB_ml:")
    for i in range(2):
        a.e("s_memtime s[34:35]"); a.e("s_waitcnt lgkmcnt(0)")
        a.e(f"s_load_dword s32, s[4:5], s42 offset:{i * 8192} glc"); a.e("s_waitcnt lgkmcnt(0)")
        a.e("s_memtime s[36:37]"); a.e("s_waitcnt lgkmcnt(0)")
        a.e("s_sub_u32 s36, s36, s34"); a.e(f"s_min_u32 s{46+i}, s{46+i}, s36")
    a.e("s_add_u32 s42, s42, 128"); a.e("s_add_u32 s43, s43, 1"); a.e(f"s_cmp_lt_u32 s43, {NSAMP}"); a.e("s_cbranch_scc1 FB_ml")
    a.e("s_cmp_lt_u32 s47, s46"); a.e("s_cselect_b32 s45, 1, 0")
    a.e("s_lshr_b32 s46, s28, 2"); a.e("s_xor_b32 s45, s45, s46"); a.e("s_and_b32 s45, s45, 1"); a.e("s_lshl_b32 s45, s45, 8")
    lds_set(a, LW + 32, "s45", pt)
    a.e("FB_np:")
    front_arrive(a, None)
    lds_spin(a, LW + 20, 4, pt)
    a.e("s_and_b32 s49, s30, 3"); a.e("s_lshl_b32 s49, s49, 10")
    for j in range(9, 16):
        a.e(f"s_add_u32 s36, s67, {j & 7}"); a.e("s_and_b32 s36, s36, 7"); a.e("s_lshl_b32 s36, s36, 17"); a.e("s_add_u32 s36, s36, s48"); a.e(f"s_add_u32 s36, s36, {MB}")
        for kk in range(2):
            a.e(f"s_add_u32 m0, s49, {WST + j * 8192 + 4096 * kk}")
            a.e(f"buffer_load_dwordx4 v{WVB[1]}, s[80:83], s36 offen lds")
            if kk == 0: a.e("s_add_u32 s36, s36, 65536")
    mstamp(a)
    stouch(a, 3, env("ST3", 0))
    a.e("s_waitcnt vmcnt(0)")
    mstamp(a)
    lds_spin(a, LW + 24, 4, pt, nap=2)
def stouch(a, which, gran):
    if not gran: return
    L = a.lab("st")
    a.e("s_and_b32 s36, s30, 3"); a.e("s_lshl2_add_u32 s36, s2, s36"); a.e("s_mul_i32 s36, s36, 7168"); a.e("s_add_u32 s37, s36, 7168")
    a.e(f"{L}:")
    for i in range(7): a.e(f"s_load_dword s32, s[{66+2*which}:{67+2*which}], s36 offset:{gran*i}")
    a.e(f"s_add_u32 s36, s36, {7*gran}"); a.e("s_cmp_lt_u32 s36, s37"); a.e(f"s_cbranch_scc1 {L}")
def w1raw(j, kk):
    i = 2 * j + kk
    return 12 + 4 * i if i < 15 else RXB + 4 * (i - 15)
def front_c(a):
    t = 6
    a.e("s_and_b32 s36, s30, 3"); a.e("s_lshl_b32 s36, s36, 10"); a.e(f"s_add_u32 s36, s36, {WST}"); a.e(f"v_add_u32 v{t+2}, s36, v2"); a.e(f"v_add_u32 v{t+3}, {64*KB}, v{t+2}")
    def dump(reg):
        for j in range(9):
            for kk in range(2): a.e(f"ds_write_b128 v{t+2+(j>>3)}, {vr(reg(j,kk),4)} offset:{(j&7)*8192 + 4096*kk}")
    dump(wreg)
    lbar(a, 2, t, LW + 20)
    wr_read(a, WAD, range(9))
    lbar(a, 3, t, LW + 20)
    mstamp(a)
    dump(w1raw)
    a.e("s_waitcnt lgkmcnt(0)")

CV = {}
def conv_setup(a):
    v = VA(216); lane = 1
    t = v(); t2 = v(); t3 = v(); uo = v(3, 1); aa = v(); ba = v(); J = v(); G = v(); fl = v(); dop = v(8, 4)
    assert v.hi <= 240
    CV.update(uo=uo, aa=aa, ba=ba, J=J, G=G, fl=fl, dop=dop, t=t)
    a.e(f"s_load_dwordx2 s[34:35], s[0:1], {A_SSMD}")
    a.e("s_lshl_b32 s36, s38, 14"); a.e(f"s_add_u32 s36, s36, {UT}")
    a.e("s_add_u32 s20, s4, s36"); a.e("s_addc_u32 s21, s5, 0"); a.e("s_mov_b32 s22, 16384"); a.e("s_mov_b32 s23, 0x20000")
    a.e("s_lshl_b32 s36, s30, 6")
    assert all((p * 171) >> 10 == p // 6 for p in range(192))
    for it in range(3):
        a.e(f"v_add_u32 v{t}, {64*it}, v{lane}"); a.e(f"v_mul_u32_u24 v{t2}, 171, v{t}"); a.e(f"v_lshrrev_b32 v{t2}, 10, v{t2}")
        a.e(f"v_lshlrev_b32 v{uo+it}, 8, v{t2}"); a.e(f"v_mul_u32_u24 v{t2}, 6, v{t2}"); a.e(f"v_sub_u32 v{t}, v{t}, v{t2}")
        a.e(f"v_lshl_add_u32 v{uo+it}, v{t}, 4, v{uo+it}"); a.e(f"v_and_b32 v{t}, 4, v{t}"); a.e(f"v_lshl_add_u32 v{uo+it}, v{t}, 20, v{uo+it}")
        a.e(f"v_add_u32 v{uo+it}, s36, v{uo+it}")
    a.e("s_waitcnt lgkmcnt(0)")
    a.e("s_lshr_b32 s36, s39, 1"); a.e("s_lshl_b32 s36, s36, 2"); a.e("s_load_dword s41, s[34:35], s36")
    a.e(f"v_and_b32 v{J}, 15, v{lane}"); a.e(f"v_lshrrev_b32 v{G}, 4, v{lane}")
    a.e(f"v_and_b32 v{t}, 3, v{J}"); a.e(f"v_mul_u32_u24 v{aa}, {HSTR}, v{t}")
    a.e(f"v_lshl_add_u32 v{aa}, v{G}, 4, v{aa}"); a.e(f"v_lshrrev_b32 v{t}, 2, v{J}"); a.e(f"v_lshl_add_u32 v{aa}, v{t}, 3, v{aa}")
    a.e(f"v_add_u32 v{aa}, s40, v{aa}")
    a.e(f"v_sub_u32 v{t}, 15, v{J}"); a.e(f"v_mul_u32_u24 v{ba}, {US}, v{t}"); a.e(f"v_add_u32 v{ba}, s40, v{ba}")
    a.e(f"v_lshl_add_u32 v{ba}, v{G}, 4, v{ba}")
    a.e("s_lshr_b32 s36, s38, 2"); a.e("s_lshl_b32 s36, s36, 12"); a.e(f"s_add_u32 s36, s36, {F_KVT}")
    a.e(f"v_lshlrev_b32 v{fl}, 7, v{lane}"); a.e(f"v_add_u32 v{fl}, s36, v{fl}")
def conv_diag(a):
    t, J, G, dop = CV["t"], CV["J"], CV["G"], CV["dop"]; t2, t3 = t + 1, t + 2
    a.e("s_bitcmp1_b32 s39, 0"); a.e("s_cselect_b32 s36, 0, 16"); a.e("s_lshl_b32 s41, s41, s36"); a.e("s_and_b32 s41, s41, 0xffff0000"); a.e("s_lshr_b32 s42, s41, 16")
    a.e(f"v_lshl_add_u32 v{t}, v{G}, 3, v{J}"); a.e(f"v_sub_u32 v{t}, 31, v{t}"); a.e(f"v_and_b32 v{t2}, 1, v{t}"); a.e(f"v_cmp_eq_u32 vcc, 1, v{t2}")
    a.e(f"v_mov_b32 v{t2}, s42"); a.e(f"v_mov_b32 v{t3}, s41"); a.e(f"v_cndmask_b32 v{t2}, v{t2}, v{t3}, vcc"); a.e(f"v_ashrrev_i32 v{t}, 1, v{t}")
    for i in range(8): a.e(f"v_cmp_eq_u32 vcc, {8*(i//4) + i%4}, v{t}"); a.e(f"v_cndmask_b32 v{dop+i}, 0, v{t2}, vcc")

def front_conv(a):
    v = VA(6, skip=True); lane = 1; l16 = 2
    t = v(); pt = v(4, 2)
    uo, aa, ba, J, G, fl, dop = [CV[k] for k in "uo aa ba J G fl dop".split()]
    ya = v(4, 1); ta = v()
    acc = v(32, 4)
    fa = v(64, 4); fb = v(32, 4)
    def rdA(p, o):
        return [f"ds_read_b64 {vr(fa+32*p+8*s_+4*mt+2*h,2)}, v{aa} offset:{64*(o+16*s_) + 32*mt + 8*h}" for s_ in range(4) for mt in range(2) for h in range(2)]
    def rdB(p, o):
        return [f"ds_read_b128 {vr(fb+16*p+4*k,4)}, v{ba} offset:{UOFF + (48 - 16*k + o)*US}" for k in range(4)]
    a.e("s_cmp_lg_u32 s30, 0"); a.e("s_cbranch_scc1 CV_w")
    poll_core(a, pt, fl, 0xffffffff)
    lds_set(a, LW + 16, 1, pt)
    a.e("CV_w:")
    a.e(f"s_add_u32 m0, s40, {UOFF}"); a.e("s_movk_i32 s36, 8192")
    lds_spin(a, LW + 16, 1, pt)
    mstamp(a)
    for it in range(6):
        a.e(f"buffer_load_dwordx4 v{uo+it%3}, s[20:23], {'s36' if it > 2 else 0} offen {SC} lds")
        if it < 5: a.e("s_add_u32 m0, m0, 1024")
    a.e("s_waitcnt vmcnt(0)"); a.e("s_barrier")
    mstamp(a)
    load_q(a)
    for x in rdB(0, 0) + rdA(0, 0): a.e(x)
    a.e("s_waitcnt lgkmcnt(15)")
    for c_ in range(4):
        for mt in range(2): a.e(f"v_mfma_f32_16x16x32_bf16 {vr(acc+8*c_+4*mt,4)}, {vr(dop+4*mt,4)}, {vr(fb+4*c_,4)}, 0")
    def step(p, nxt, tail):
        a.e("s_waitcnt lgkmcnt(0)")
        mf = [(c_, s_, mt) for s_ in range(4) for mt in range(2) for c_ in range(s_, 4)]
        for i, (c_, s_, mt) in enumerate(mf):
            A = acc + 8 * c_ + 4 * mt
            a.e(f"v_mfma_f32_16x16x32_bf16 {vr(A,4)}, {vr(fa+32*p+8*s_+4*mt,4)}, {vr(fb+16*p+4*(c_-s_),4)}, {vr(A,4)}")
            for _ in range(2 if i % 3 == 0 else 1):
                if nxt: a.e(nxt.pop(0))
                elif tail and i < 19: a.e(tail.pop(0))
        assert not nxt and not tail
    a.e("s_mov_b32 s43, 0")
    NU = env("NU", 3)
    if NU:
        a.e("CV_r:")
        for p in range(2):
            step(p, [], [])
            for x in rdB(1 - p, p + 1) + rdA(1 - p, p + 1): a.e(x)
        for x in [f"v_add_u32 v{aa}, 128, v{aa}", f"v_add_u32 v{ba}, {2*US}, v{ba}", "s_add_u32 s43, s43, 1", f"s_cmp_lt_u32 s43, {NU}"]: a.e(x)
        a.e("s_cbranch_scc1 CV_r")
    a.e("CV_l:")
    step(0, rdB(1, 1) + rdA(1, 1), [])
    step(1, rdB(0, 2) + rdA(0, 2), [f"v_add_u32 v{aa}, 128, v{aa}", f"v_add_u32 v{ba}, {2*US}, v{ba}", "s_add_u32 s43, s43, 1", "s_cmp_lt_u32 s43, 8"])
    a.e("s_cbranch_scc1 CV_l")
    mstamp(a)
    a.e(f"s_mul_i32 s36, s30, {CHB+64}")
    a.e(f"v_mul_u32_u24 v{ya}, 72, v{J}"); a.e(f"v_lshl_add_u32 v{ya}, v{G}, 2, v{ya}"); a.e(f"v_add_u32 v{ya}, s36, v{ya}")
    for c_ in range(1, 4): a.e(f"v_add_u32 v{ya+c_}, {c_*16*72}, v{ya}")
    a.e(f"v_bfe_u32 v{t}, v{lane}, 2, 2"); a.e(f"v_mul_u32_u24 v{ta}, {CHB+64}, v{t}")
    a.e(f"v_mul_u32_u24 v{t}, 72, v{G}"); a.e(f"v_add_u32 v{ta}, v{ta}, v{t}")
    a.e(f"v_and_b32 v{t}, 3, v{lane}"); a.e(f"v_lshl_add_u32 v{ta}, v{t}, 3, v{ta}")
    a.e(f"s_mul_i32 s36, s30, {16*72}"); a.e(f"v_add_u32 v{ta}, s36, v{ta}")
    a.e("s_waitcnt lgkmcnt(0)")
    for c_ in range(4):
        for mt in range(2):
            A = acc + 8 * c_ + 4 * mt
            a.e(f"v_cvt_pk_bf16_f32 v{A}, v{A}, v{A+2}"); a.e(f"v_cvt_pk_bf16_f32 v{A+1}, v{A+1}, v{A+3}")
            a.e(f"ds_write2_b32 v{ya+c_}, v{A}, v{A+1} offset0:{4*mt} offset1:{4*mt+8}")
    a.srd(12, 4, 4 * MB, off=Y)
    a.e("s_lshl_b32 s36, s38, 14"); a.e("s_lshl_b32 s37, s30, 12"); a.e("s_add_u32 s36, s36, s37")
    lbar(a, 1, pt)
    for i in range(8): a.e(f"ds_read_b64_tr_b16 {vr(fa+2*i,2)}, v{ta} offset:{288*(i//2) + 32*(i&1)}")
    for i in range(4):
        a.e(f"s_waitcnt lgkmcnt({6-2*i})")
        a.e(f"buffer_store_dwordx4 {vr(fa+4*i,4)}, v{l16}, s[12:15], s36 offen offset:{1024*i} {SC}")
    assert v.hi <= 216

def r_addr(a):
    t, t2, I, fo, ro, yo, xo = RT, RT + 1, RI, RFO, RRO, RYO, RXO
    a.e(f"v_and_b32 v{I}, 7, v0")
    a.e(f"v_lshrrev_b32 v{t}, 6, v0"); a.e(f"v_lshlrev_b32 v{t}, 4, v{t}"); a.e(f"v_bfe_u32 v{t2}, v0, 3, 3"); a.e(f"v_add_u32 v{t}, v{t}, v{t2}")
    a.e("s_lshr_b32 s78, s29, 1"); a.e("s_lshl_b32 s78, s78, 16"); a.e("s_and_b32 s79, s29, 1"); a.e("s_lshl_b32 s79, s79, 7"); a.e("s_add_u32 s78, s78, s79")
    a.e("s_lshr_b32 s79, s30, 1"); a.e("s_lshl_b32 s79, s79, 13"); a.e("s_add_u32 s78, s78, s79")
    a.e(f"v_lshlrev_b32 v{fo}, 8, v{t}"); a.e(f"v_lshl_add_u32 v{fo}, v{I}, 4, v{fo}"); a.e(f"v_add_u32 v{fo}, s78, v{fo}")
    a.e("s_lshl_b32 s78, s28, 7"); a.e("s_lshl_b32 s79, s29, 3"); a.e("s_add_u32 s78, s78, s79")
    a.e(f"v_add_u32 v{yo}, s78, v{I}"); a.e(f"v_lshlrev_b32 v{ro}, 11, v{yo}")
    rowaddr(a, xo, yo, t2); a.e(f"v_lshl_add_u32 v{xo}, v{t}, 4, v{xo}")
    a.e(f"v_lshrrev_b32 v{t2}, 2, v{t}"); a.e(f"v_lshlrev_b32 v{t2}, 3, v{t2}"); a.e(f"v_and_b32 v{t}, 3, v{t}"); a.e(f"v_add_u32 v{t}, v{t}, v{t2}")
    a.e(f"v_lshl_add_u32 v{ro}, v{t}, 3, v{ro}")
    a.e(f"v_lshlrev_b32 v{yo}, 3, v{yo}"); a.e(f"v_lshl_add_u32 v{yo}, v{t}, 14, v{yo}")
def load_y(a):
    a.srd(80, 4, 4 * MB, off=Y)
    for j in range(2):
        for hh in range(2):
            a.e(f"s_mov_b32 s78, {(16*j + 4*hh)*16384}")
            a.e(f"buffer_load_dwordx2 {vr(RYY+4*j+2*hh,2)}, v{RYO}, s[80:83], s78 offen {SC}")
def r_pre(a):
    r_addr(a)
    x3_srd(a, 84); lsrd(a, 88, oX1P, XSZ)
    for j in range(2):
        a.e(f"buffer_load_dwordx4 {vr(RXA+4*j,4)}, v{RXO}, s[84:87], 0 offen offset:{128*j} {SC}")
        a.e(f"buffer_load_dwordx4 {vr(RXB+4*j,4)}, v{RFO}, s[88:91], 0 offen offset:{2048*j} {SC}")
    load_y(a)

def w3_sub(a, which):
    w_srd(a, 3, 8)
    a.e("s_add_u32 s36, s29, s88"); a.e("s_and_b32 s36, s36, 15")
    a.e("s_cmp_lg_u32 s28, s29"); a.e("s_cselect_b32 s89, s88, 0"); a.e("s_cmp_eq_u32 s89, 1"); a.e("s_cselect_b32 s36, s28, s36")
    a.e("s_and_b32 s89, s30, 3"); a.e("s_lshl2_add_u32 s36, s36, s89")
    a.e(f"s_mul_i32 s90, s36, {16*7168}"); a.e(f"s_mul_i32 s36, s29, 448"); a.e("s_add_u32 s90, s90, s36")
    a.e("s_lshl2_add_u32 s89, s88, s89"); a.e(f"s_mul_i32 s89, s89, 7168"); a.e(f"s_add_u32 m0, s89, {CFG[3]['WB']}")
    for i in range(7):
        if i: a.e("s_add_u32 m0, m0, 1024")
        a.e(f"buffer_load_dwordx4 v{WVB[3]+i}, s[8:11], s90 offen lds")
def w3_stage(a, k):
    a.e(f"s_mov_b32 s88, {k}"); call_issue(a, w3_sub, 3)
def w3_first(a):
    n = 0
    for k in range(2):
        if W3AT[k] < 0: w3_stage(a, k); n += 7
    return n
def r_stage(a):
    v = VA(6)
    t = v(); t2 = v(); I = RI; fo = RFO; pt = v(4, 2)
    xa = RXA; xb = RXB; yy = RYY; yf = RYF; x = v(16, 2); w = v(16, 2); tmp = v()
    S = v(2, 2); pp = v(2, 2); qq = v(2, 2); st = v(16, 4); rsd = st; mean = v(2, 2); rs = mean + 1; var = v(); sw = v(); sr = v(); wad = v(2, 2)
    assert v.hi <= RB0, v.hi
    def part(src, n):
        a.e(f"v_pk_add_f32 {vr(pp,2)}, {vr(src,2)}, {vr(src+2,2)}"); a.e(f"v_pk_mul_f32 {vr(qq,2)}, {vr(src,2)}, {vr(src,2)}")
        for i in range(1, 8):
            if i > 1: a.e(f"v_pk_add_f32 {vr(pp,2)}, {vr(pp,2)}, {vr(src+2*i,2)}")
            a.e(f"v_pk_fma_f32 {vr(qq,2)}, {vr(src+2*i,2)}, {vr(src+2*i,2)}, {vr(qq,2)}")
        a.e(f"v_add_f32 v{S}, v{pp}, v{pp+1}"); a.e(f"v_add_f32 v{S+1}, v{qq}, v{qq+1}")
        for k in range(2): a.e(f"v_add_f32_dpp v{S+k}, v{S+k}, v{S+k} row_ror:8 row_mask:0xf bank_mask:0xf")
        for op in ("v_permlane16_swap_b32", "v_permlane32_swap_b32"):
            for k in range(2): a.e(f"v_mov_b32 v{pp+k}, v{S+k}")
            for k in range(2): a.e(f"{op} v{S+k}, v{pp+k}")
            a.e(f"v_pk_add_f32 {vr(S,2)}, {vr(S,2)}, {vr(pp,2)}")
        a.e(f"ds_write_b64 v{sw}, {vr(S,2)} offset:{n*512}")
    def comb(n):
        for k in range(4): a.e(f"ds_read_b128 {vr(st+4*k,4)}, v{sr} offset:{n*512+16*k}")
        a.e("s_waitcnt lgkmcnt(0)")
        for k in range(4): a.e(f"v_pk_add_f32 {vr(st+4*k,2)}, {vr(st+4*k,2)}, {vr(st+4*k+2,2)}")
        a.e(f"v_pk_add_f32 {vr(st,2)}, {vr(st,2)}, {vr(st+4,2)}"); a.e(f"v_pk_add_f32 {vr(st+8,2)}, {vr(st+8,2)}, {vr(st+12,2)}")
        a.e(f"v_pk_add_f32 {vr(st,2)}, {vr(st,2)}, {vr(st+8,2)}")
        a.e(f"v_mul_f32 v{mean}, {f32(1/1024)}, v{st}"); a.e(f"v_mul_f32 v{var}, {f32(1/1024)}, v{st+1}")
        a.e(f"v_fma_f32 v{var}, -v{mean}, v{mean}, v{var}"); a.e(f"v_max_f32 v{var}, 0, v{var}")
    def w1_in(cs):
        X = a.lab("w1in")
        a.e("s_cmp_ge_u32 s30, 4"); a.e(f"s_cbranch_scc1 {X}")
        if not cs: wr_read(a, wad, range(16))
        if cs:
            one = st; ca = st + 4
            for i in range(4): a.e(f"v_mov_b32 v{one+i}, 0x3f803f80")
            a.e("s_lshl_b32 s35, s30, 6"); a.e(f"s_add_u32 s35, s35, {CSO[1]}")
            a.e(f"v_and_b32 v{st+12}, 48, v1"); a.e(f"v_add_u32 v{st+12}, s35, v{st+12}")
            a.e("s_waitcnt lgkmcnt(0)")
            for b in range(32): a.e(f"v_mfma_f32_16x16x32_bf16 {vr(ca,4)}, {vr(WR0+4*b,4)}, {vr(one,4)}, {vr(ca,4) if b else 0}")
            a.e("s_mov_b32 exec_lo, 0x10001"); a.e("s_mov_b32 exec_hi, 0x10001")
            a.e(f"ds_write_b128 v{st+12}, {vr(ca,4)}")
            a.e("s_mov_b64 exec, -1"); a.e("s_waitcnt lgkmcnt(0)")
        a.e(f"{X}:")
    SUBM = f"{vr(mean,2)} op_sel_hi:[1,0] neg_lo:[0,1] neg_hi:[0,1]"; MULR = f"{vr(mean,2)} op_sel:[0,1] op_sel_hi:[1,1]"
    a.e(f"v_lshlrev_b32 v{sr}, 6, v{I}"); a.e(f"v_add_u32 v{sr}, {AUX+2048}, v{sr}")
    a.e(f"s_lshl_b32 s35, s30, 3"); a.e(f"v_add_u32 v{sw}, s35, v{sr}")
    wr_addr(a, wad, t)
    a.e(f"s_cmp_eq_u32 s60, 0"); a.e(f"s_cbranch_scc1 R_l0")
    lsrd(a, 8, oP0, XSZ, prev=True); lsrd(a, 12, oP1, XSZ, prev=True)
    a.e("s_waitcnt vmcnt(0)")
    for i in range(8):
        unpack(a, yf + 2 * i, yf + 2 * i + 1, yy + i)
        unpack(a, rsd + 2 * i, rsd + 2 * i + 1, xa + i); unpack(a, w + 2 * i, w + 2 * i + 1, xb + i)
        a.e(f"v_pk_add_f32 {vr(rsd+2*i,2)}, {vr(rsd+2*i,2)}, {vr(w+2*i,2)}")
    poll(a, ST_G4, pt, prev=True)
    mstamp(a)
    for j in range(2):
        a.e(f"buffer_load_dwordx4 {vr(xa+4*j,4)}, v{fo}, s[8:11], 0 offen offset:{2048*j} {SC}")
        a.e(f"buffer_load_dwordx4 {vr(xb+4*j,4)}, v{fo}, s[12:15], 0 offen offset:{2048*j} {SC}")
    w1_in(False)
    for i in range(8):
        if i % 4 == 0: a.e(f"s_waitcnt vmcnt({2 - i // 2})")
        unpack(a, x + 2 * i, x + 2 * i + 1, xa + i); unpack(a, w + 2 * i, w + 2 * i + 1, xb + i)
        a.e(f"v_pk_add_f32 {vr(x+2*i,2)}, {vr(x+2*i,2)}, {vr(w+2*i,2)}")
        a.e(f"v_pk_add_f32 {vr(x+2*i,2)}, {vr(x+2*i,2)}, {vr(rsd+2*i,2)}")
        round2(a, x + 2 * i, x + 2 * i + 1, tmp)
    part(x, 0)
    a.e("s_waitcnt lgkmcnt(0)"); a.e("s_barrier")
    comb(0)
    ln_finish(a, mean, var, rs)
    x3_srd(a, 20)
    for i in range(8):
        D = w + 2 * i
        a.e(f"v_pk_add_f32 {vr(D,2)}, {vr(x+2*i,2)}, {SUBM}"); a.e(f"v_pk_mul_f32 {vr(D,2)}, {vr(D,2)}, {MULR}")
        a.e(f"v_pk_fma_f32 {vr(x+2*i,2)}, {vr(D,2)}, {vr(yf+2*i,2)}, {vr(x+2*i,2)}")
        a.e(f"v_cvt_pk_bf16_f32 v{xa+i}, v{x+2*i}, v{x+2*i+1}")
        if i % 4 == 3: a.e(f"buffer_store_dwordx4 {vr(xa+i-3,4)}, v{RXO}, s[20:23], 0 offen offset:{128*(i//4)} {SC}")
    a.e("s_branch R_s2")
    a.e("R_l0:")
    for i in range(8): unpack(a, x + 2 * i, x + 2 * i + 1, xa + i)
    part(x, 0)
    a.e("s_waitcnt lgkmcnt(0)"); a.e("s_barrier")
    comb(0)
    w1_in(False)
    ln_finish(a, mean, var, rs)
    for i in range(8):
        D = w + 2 * i
        a.e(f"v_pk_add_f32 {vr(D,2)}, {vr(x+2*i,2)}, {SUBM}"); round2(a, D, D + 1, tmp)
        a.e(f"v_pk_mul_f32 {vr(D,2)}, {vr(D,2)}, {MULR}"); round2(a, D, D + 1, tmp)
    mstamp(a)
    a.e("s_cmp_lg_u32 s30, 0"); a.e("s_cbranch_scc1 R_fw")
    a.e("s_lshl_b32 s36, s28, 13"); a.e(f"s_add_u32 s36, s36, {F_FRONT}")
    a.e(f"v_lshlrev_b32 v{st+4}, 7, v1"); a.e(f"v_add_u32 v{st+4}, s36, v{st+4}")
    a.e("s_mov_b32 s53, 0")
    a.e("R_fp:")
    a.e(f"buffer_load_dword v{st}, v{st+4}, s[56:59], 0 offen {SC}"); a.e("s_waitcnt vmcnt(0)")
    a.e(f"v_subrev_u32 v{st}, s52, v{st}"); a.e(f"v_and_b32 v{st+1}, 0xfffff8ff, v{st}"); a.e(f"v_cmp_eq_u32 vcc, 4, v{st+1}")
    a.e("s_cmp_eq_u64 vcc, exec"); a.e("s_cbranch_scc1 R_fq")
    a.e(f"s_sleep {FSLEEP}")
    a.e("s_add_u32 s53, s53, 1"); a.e("s_cmp_lt_u32 s53, s61"); a.e("s_cbranch_scc1 R_fp")
    a.e("s_mov_b32 s61, 0")
    a.e("R_fq:")
    a.e(f"v_lshrrev_b32 v{st}, 8, v{st}"); a.e(f"v_mov_b32 v{st+1}, {LW+28}"); a.e(f"ds_add_u32 v{st+1}, v{st}")
    a.e("R_fw:")
    a.e("s_waitcnt lgkmcnt(0)")
    a.e("s_barrier")
    mstamp(a)
    load_y(a)
    a.e(f"v_mov_b32 v{t}, {LW+28}"); a.e(f"ds_read_b32 v{t2}, v{t}")
    w1_in(True)
    a.e("s_waitcnt lgkmcnt(0)"); a.e(f"v_readfirstlane_b32 s94, v{t2}")
    if STAMP: a.e("s_mov_b32 s95, s94")
    a.e(f"s_cmp_gt_u32 s94, {NVOTE // 2}"); a.e("s_cselect_b32 s94, 1, 0")
    group_off(a, 55, 28)
    a.e("s_add_u32 s62, s4, s55"); a.e("s_addc_u32 s63, s5, 0")
    a.e("s_sub_u32 s36, s28, 1"); a.e("s_max_i32 s36, s36, 0"); group_off(a, 92, 36); a.e("s_sub_u32 s92, s92, s55")
    a.e("s_add_u32 s36, s28, 1"); a.e("s_min_u32 s36, s36, 15"); group_off(a, 93, 36); a.e("s_sub_u32 s93, s93, s55")
    a.e(f"s_add_u32 s55, s55, {oSM}")
    x3_srd(a, 20)
    a.e("s_waitcnt vmcnt(0)")
    for i in range(8):
        D = w + 2 * i
        unpack(a, st, st + 1, yy + i)
        a.e(f"v_pk_mul_f32 {vr(D,2)}, {vr(D,2)}, {vr(st,2)}"); round2(a, D, D + 1, tmp)
        a.e(f"v_pk_add_f32 {vr(x+2*i,2)}, {vr(x+2*i,2)}, {vr(D,2)}"); a.e(f"v_cvt_pk_bf16_f32 v{xa+i}, v{x+2*i}, v{x+2*i+1}")
        if i % 4 == 3: a.e(f"buffer_store_dwordx4 {vr(xa+i-3,4)}, v{RXO}, s[20:23], 0 offen offset:{128*(i//4)} {SC}")
    a.e("R_s2:")
    for i in range(8): unpack(a, x + 2 * i, x + 2 * i + 1, xa + i)
    part(x, 1)
    a.e("s_waitcnt lgkmcnt(0)"); a.e("s_barrier")
    a.e("s_cmp_lg_u32 s30, 7"); a.e("s_cbranch_scc1 R_nl")
    comb(1)
    outv = w; m4 = w + 4; v4_ = w + 5
    a.e(f"v_mov_b32 v{m4}, v{mean}"); a.e(f"v_mov_b32 v{v4_}, v{var}")
    ln_finish(a, mean, var, rs)
    a.e(f"v_sub_f32 v{m4}, v{m4}, v{mean}"); a.e(f"v_mul_f32 v{m4}, v{m4}, v{rs}")
    a.e(f"v_mul_f32 v{v4_}, v{v4_}, v{rs}"); a.e(f"v_mul_f32 v{v4_}, v{v4_}, v{rs}")
    ln_finish(a, m4, v4_, None)
    a.e(f"v_cvt_pk_bf16_f32 v{outv}, v{mean}, v{var}"); a.e(f"v_cvt_pk_bf16_f32 v{outv+2}, v{m4}, v{v4_}")
    a.e(f"v_mov_b32 v{outv+1}, s52"); a.e(f"v_mov_b32 v{outv+3}, s52")
    lns_srd(a, 24)
    a.e("s_lshl_b32 s36, s28, 4"); a.e("s_add_u32 s36, s36, s29"); a.e("s_lshl_b32 s36, s36, 7")
    a.e("s_mov_b64 exec, 0xff")
    a.e(f"buffer_store_dwordx4 {vr(outv,4)}, v2, s[24:27], s36 offen {SC}")
    a.e("s_mov_b64 exec, -1")
    a.e(f"s_waitcnt vmcnt({w3_first(a) + 1})"); a.e("s_branch R_n2")
    a.e("R_nl:")
    a.e("s_cmp_lt_u32 s30, 4"); a.e("s_cbranch_scc1 R_n1")
    a.e(f"s_waitcnt vmcnt({w3_first(a)})"); a.e("s_branch R_n2")
    a.e("R_n1:")
    a.e("s_waitcnt vmcnt(0)")
    a.e("R_n2:")
    publish(a, ST_R, 8, pt, wait=None)
def rot_init(a, which):
    a.e("s_mov_b32 s44, s29" if which == 3 else "s_mov_b32 s44, 0")
def stage3(b, d):
    b.e("s_cmp_eq_u32 s44, s47"); b.e(f"s_cselect_b32 s{d}, s46, s44")
def stage3_init(a):
    a.e("s_add_u32 s46, s29, 1"); a.e("s_and_b32 s46, s46, 15"); a.e("s_cmp_eq_u32 s28, s29"); a.e("s_cselect_b32 s47, s46, s28")
def rot_next(a, which):
    a.e("s_add_u32 s44, s44, 1")
    if which != 4: a.e("s_and_b32 s44, s44, 15")
def kb4(a, d, lw):
    a.e("s_lshl_b32 s45, s44, 1"); a.e(f"s_add_u32 s45, s45, {lw}"); a.e("s_sub_u32 s45, s45, 32")
    a.e("s_mul_i32 s46, s45, 86"); a.e("s_lshr_b32 s46, s46, 8")
    a.e("s_mul_i32 s47, s46, 3"); a.e("s_sub_u32 s47, s45, s47"); a.e("s_lshl_b32 s47, s47, 2"); a.e("s_lshr_b32 s47, 0x362, s47"); a.e("s_and_b32 s47, s47, 7")
    a.e("s_cmp_ge_u32 s44, 10"); a.e("s_cselect_b32 s45, 9, 2"); a.e("s_cselect_b32 s51, 1, 0"); a.e("s_sub_u32 s45, s44, s45")
    a.e("s_cmp_lt_u32 s44, 3"); a.e("s_cselect_b32 s45, 0, s45"); a.e("s_cselect_b32 s51, s44, s51")
    a.e(f"s_lshl2_add_u32 s51, {lw}, s51")
    a.e("s_cmp_lt_u32 s44, 17"); a.e("s_cselect_b32 s47, s51, s47"); a.e("s_cselect_b32 s46, s45, s46")
    a.e("s_add_u32 s46, s46, s33"); a.e("s_and_b32 s46, s46, 7"); a.e("s_mul_i32 s46, s46, 7"); a.e(f"s_add_u32 s{d}, s46, s47")
assert all((q * 86) >> 8 == q // 3 for q in range(24))
def w_lanes(a, which, t, t2):
    if 1 in which:
        R = WVB[1]
        a.e(f"v_lshrrev_b32 v{t}, 3, v1"); a.e(f"v_lshlrev_b32 v{R}, 11, v{t}")
        a.e(f"v_and_b32 v{t}, 6, v{t}"); a.e(f"v_and_b32 v{t2}, 7, v1"); a.e(f"v_xor_b32 v{t}, v{t}, v{t2}"); a.e(f"v_lshl_add_u32 v{R}, v{t}, 4, v{R}")
        return
    R = WVB[4]
    for p in range(2):
        a.e(f"v_lshrrev_b32 v{t}, 4, v1"); a.e(f"v_lshlrev_b32 v{R+p}, 11, v{t}")
        a.e(f"v_add_u32 v{t}, {4*p}, v{t}"); a.e(f"v_lshlrev_b32 v{t}, 1, v{t}"); a.e(f"v_and_b32 v{t2}, 15, v1"); a.e(f"v_xor_b32 v{t}, v{t}, v{t2}")
        a.e(f"v_lshl_add_u32 v{R+p}, v{t}, 4, v{R+p}")
    R = WVB[3]
    assert all((p * 2341) >> 16 == p // 28 for p in range(448))
    for ii in range(7):
        a.e(f"v_add_u32 v{t2}, {64*ii}, v1"); a.e(f"v_mul_u32_u24 v{t}, 2341, v{t2}"); a.e(f"v_lshrrev_b32 v{t}, 16, v{t}")
        a.e(f"v_mul_u32_u24 v{R+ii}, 28, v{t}"); a.e(f"v_sub_u32 v{t2}, v{t2}, v{R+ii}")
        a.e(f"v_mul_u32_u24 v{R+ii}, 7168, v{t}")
        a.e(f"v_lshrrev_b32 v{t}, 1, v{t}"); a.e(f"v_and_b32 v{t}, 2, v{t}"); a.e(f"v_xor_b32 v{t2}, v{t2}, v{t}")
        a.e(f"v_lshl_add_u32 v{R+ii}, v{t2}, 4, v{R+ii}")
def w_srd(a, which, d=12):
    c = CFG[which]
    a.e(f"s_mov_b64 s[{d}:{d+1}], s[{66+2*which}:{67+2*which}]")
    a.e(f"s_mov_b32 s{d+2}, {c['KBT'] * 32 * c['LDW']}"); a.e(f"s_mov_b32 s{d+3}, 0x20000")
def w_setup(a, which, pre=True):
    c = CFG[which]; STB = c["STB"]; BW = STB // 2
    w_srd(a, which)
    a.e("s_and_b32 s35, s30, 1")
    a.e(f"s_mul_i32 s38, s{29 if which != 4 else 33}, {c['RB']}")
    if which != 4: a.e(f"s_mul_i32 s41, s35, {32*c['LDW']}"); a.e("s_add_u32 s38, s38, s41")
    if which == 4: a.e(f"s_mul_i32 s41, s31, {1792*c['LDW']}"); a.e("s_add_u32 s38, s38, s41")
    a.e(f"s_mul_i32 s41, s35, {BW}")
    if c["WB"]: a.e(f"s_add_u32 s41, s41, {c['WB']}")
    a.e("s_mov_b32 s42, 0"); rot_init(a, which)
    if not pre: return
    NP = c["NPRE"]
    a.e("s_mov_b32 s49, s44"); a.e("s_and_b32 s43, s28, 3"); a.e(f"s_mul_i32 s43, s43, {NP}"); a.e("s_lshr_b32 s43, s43, 2"); a.e("s_mov_b32 s50, 0")
    L = a.lab("wpre"); a.e(f"{L}:")
    a.e(f"s_mul_i32 s42, s43, {STB}"); a.e("s_add_u32 s44, s49, s43")
    w_issue(a, which, pace=PACES.get(which, PACE))
    a.e("s_add_u32 s43, s43, 1"); a.e(f"s_cmp_eq_u32 s43, {NP}"); a.e("s_cselect_b32 s43, 0, s43")
    a.e("s_add_u32 s50, s50, 1"); a.e(f"s_cmp_lt_u32 s50, {NP}"); a.e(f"s_cbranch_scc1 {L}")
    mstamp(a)
    a.e(f"s_mov_b32 s42, {(NP % c['NW']) * STB}"); a.e(f"s_add_u32 s44, s49, {NP}")
def w_slots(a, items, pace=0):
    for kh, u, ad in items:
        a.e(f"s_mov_b32 s42, {ad}"); a.e(f"s_add_u32 s44, s67, {u}"); a.e("s_and_b32 s44, s44, 7")
        if kh: a.e("s_or_b32 s44, s44, 8")
        call_issue(a, w_issue, 1)
        if pace: a.e(f"s_waitcnt vmcnt({pace})")
def w1_slots(a, js, pace=0): w_slots(a, [(j >> 3, j & 7, WST + j * 8192) for j in js], pace)
def w_parts(which):
    c = CFG[which]; STB = c["STB"]; n = STB // 2048; LDW = c["LDW"]; b = Rec()
    b.e("s_add_u32 s19, s41, s42")
    arm = ["s_mov_b32 m0, s19", "s_mov_b32 s39, s16"]
    if which == 4:
        b.e("s_and_b32 s40, s30, 1"); kb4(b, 16, "s40")
        b.e(f"s_mul_i32 s16, s16, {32*LDW}"); b.e("s_add_u32 s16, s16, s38")
        b.e("s_cmp_eq_u32 s47, 3"); b.e("s_cselect_b32 s17, 8, 4"); b.e("s_cselect_b32 s18, -20, 4")
        b.e("s_lshl_b32 s17, s17, 11"); b.e("s_lshl_b32 s18, s18, 11")
        arm += ["s_mov_b32 s32, s17", "s_mov_b32 s3, s18"]
    elif which == 3:
        stage3(b, 16); b.e(f"s_mul_i32 s16, s16, {64*LDW}"); b.e("s_add_u32 s16, s16, s38")
    else:
        b.e(f"s_mul_i32 s16, s44, {64*LDW}"); b.e("s_add_u32 s16, s16, s38")
    if which > 2:
        rot_next(b, which)
        b.e(f"s_add_u32 s42, s42, {STB}"); b.e(f"s_cmp_eq_u32 s42, {c['NW']*STB}"); b.e("s_cselect_b32 s42, 0, s42")
    fire = []
    for i in range(n):
        g = []
        if i:
            g.append("s_add_u32 m0, m0, 1024")
            if which in (1, 2): g.append(f"s_add_u32 s39, s39, {8*LDW}")
            elif which == 4: g.append(f"s_add_u32 s39, s39, s{3 if i == 4 else 32}")
            elif i == 7: g.append(f"s_add_u32 s39, s39, {16*LDW}")
        vo = WVB[which] + (0 if which in (1, 2) else (i & 1) if which == 4 else i % 7)
        fire.append(g + [f"buffer_load_dwordx4 v{vo}, s[12:15], s39 offen lds"])
    return b.l, arm, fire
def w_issue(a, which, pace=0):
    prep, arm, fire = w_parts(which)
    for x in prep + arm: a.e(x)
    for i, g in enumerate(fire):
        for x in g: a.e(x)
        if pace and (i % 4 == 3 or i == len(fire) - 1): a.e(f"s_waitcnt vmcnt({pace})")

def w_bases(a, which, dst, swn, ntl, t, t2):
    c = CFG[which]; RB = c["RB"]
    a.e(f"v_lshrrev_b32 v{t}, 2, v1")
    a.e(f"v_mul_u32_u24 v{dst}, {RB}, v{t}"); a.e(f"v_and_b32 v{t2}, 3, v1"); a.e(f"v_lshl_add_u32 v{dst}, v{t2}, 3, v{dst}")
    if c["WB"]: a.e(f"v_add_u32 v{dst}, {c['WB']}, v{dst}")
    if which == 3:
        a.e(f"s_mul_i32 s36, s{swn}, {7*32}"); a.e(f"v_add_u32 v{dst}, s36, v{dst}")
        a.e(f"v_bfe_u32 v{t}, v1, 4, 1"); a.e(f"v_lshlrev_b32 v{t}, 5, v{t}")
        a.e(f"s_cmp_eq_u32 s{swn}, 0"); a.e("s_cselect_b32 s36, 1, -1"); a.e(f"v_mul_lo_u32 v{t}, v{t}, s36")
        a.e(f"v_sub_u32 v{dst+1}, v{dst}, v{t}"); a.e(f"v_add_u32 v{dst}, v{dst}, v{t}")
        return 2, lambda nt, kk, h: (nt & 1, (32 * kk + 16 * h) * RB + 32 * nt)
    if which == 4: a.e(f"v_and_b32 v{t}, 7, v{t}")
    else: a.e(f"v_bfe_u32 v{t}, v{t}, 1, 2")
    for nt in range(ntl - 1, -1, -1):
        a.e(f"s_mul_i32 s36, s{swn}, {ntl}"); a.e(f"s_add_u32 s36, s36, {nt}")
        a.e(f"v_xor_b32 v{t2}, s36, v{t}"); a.e(f"v_lshl_add_u32 v{dst+nt}, v{t2}, 5, v{dst}")
    return ntl, lambda nt, kk, h: (nt, (32 * kk + 16 * h) * RB)

def a_parts(which):
    c = CFG[which]; b = Rec()
    b.e("s_add_u32 s19, s41, s42")
    arm = ["s_mov_b32 m0, s19", "s_mov_b32 s39, s16"]; fire = []
    if which == 4:
        for lw in range(2):
            kb4(b, 16 + lw, lw); spread(b, 16 + lw, 16 + lw); b.e(f"s_add_u32 s{16+lw}, s{16+lw}, s38")
        arm.append("s_mov_b32 s40, s17")
        for i in range(4):
            for lw in range(2):
                fire.append((["s_add_u32 m0, m0, 1024"] if i or lw else []) + ([f"s_add_u32 s{39+lw}, s{39+lw}, {c['KBT']*2048}"] if i else []) +
                            [f"buffer_load_dwordx4 v2, s[12:15], s{39+lw} offen {SC} lds"])
    else:
        stage3(b, 16); b.e("s_cmp_eq_u32 s44, s46"); b.e("s_cselect_b32 s16, s47, s16")
        b.e("s_lshr_b32 s45, s16, 2"); b.e("s_lshl_b32 s45, s45, 14"); b.e("s_and_b32 s16, s16, 3"); b.e("s_lshl_b32 s16, s16, 11")
        b.e("s_add_u32 s16, s16, s45"); b.e("s_add_u32 s16, s16, s38"); step = c['KBT'] * 2048
        for i in range(4):
            fire.append((["s_add_u32 m0, m0, 2048", f"s_add_u32 s39, s39, {step}"] if i else []) + [f"buffer_load_dwordx4 v2, s[12:15], s39 offen {SC} lds"])
            fire.append([f"buffer_load_dwordx4 v2, s[12:15], s39 offen offset:1024 {SC} lds"])
    rot_next(b, which)
    b.e(f"s_add_u32 s42, s42, 16384"); b.e(f"s_cmp_eq_u32 s42, {c['NA']*16384}"); b.e("s_cselect_b32 s42, 0, s42")
    return b.l, arm, fire
def a_issue(a, which):
    prep, arm, fire = a_parts(which)
    for x in prep + arm + sum(fire, []): a.e(x)
SUBS = {}
def call_issue(a, issue, which):
    nm = f"SUB_{issue.__name__}_{which}"; SUBS[nm] = (issue, which)
    a.e(f"s_call_b64 s[76:77], {nm}")
def emit_subs(a):
    for nm, (issue, which) in SUBS.items():
        a.e(f"{nm}:"); issue(a, which); a.e("s_setpc_b64 s[76:77]")
def ld_steps(a, which, N, per, issue, npre, rate=2, plan={}, lo=0, hi=None, last=None, hold=(), start=None):
    NS = CFG[which]["NS"]
    prep, arm, fire = (w_parts if issue is w_issue else a_parts)(which); h = max(1, per * HSPLIT // 8)
    plan = {b: (x if isinstance(x, list) else [x]) for b, x in plan.items()}
    q = [s_ for s_ in range(npre) for _ in range(per)]
    def after(tag):
        if issue is w_issue and isinstance(tag, int) and tag < npre: tag = npre - 1
        return len(q) - 1 - max(i for i, x in enumerate(q) if x == tag)
    issued = npre; steps = []
    for b in range(NS):
        acts = plan.get(b, []); was = {}
        def do(pos):
            for n_, act in enumerate(acts):
                if act[0] != pos: continue
                if act[1] is not None: was[n_] = after(act[1])
                q.extend([act[4]] * act[3])
        do(True)
        k = 0
        if b > 0 and b not in hold: k = max(0, min(rate, min(NS, b - 1 + N) - issued))
        assert k or not any(x[0] == "mid" for x in acts)
        for j in range(k):
            q.extend([issued] * h)
            if j == 0: do("mid")
            q.extend([issued] * (per - h)); issued += 1
        do(False)
        w = after(b); assert w <= 63
        steps.append((k, w, b if acts else None, tuple(sorted(was.items())), issued < NS))
    def em(l):
        for x in l:
            a.e(x)
            if x == "s_barrier" and os.environ.get("JIT"): mstamp(a)
    F1, F2 = sum(fire[:h], []), sum(fire[h:], [])
    lprep = prep
    if len(prep) > 8:
        nm = f"PREP_{issue.__name__}_{which}"; SUBS[nm] = ((lambda a_, w_, l=prep: [a_.e(x) for x in l]), which)
        prep = [f"s_call_b64 s[76:77], {nm}"]
    if lo == 0 or start: em(prep + arm)
    i = lo; HI = NS if hi is None else hi
    while i < HI:
        j = i
        while j < HI and steps[j] == steps[i]: j += 1
        k, w, ab, was, more = steps[i]; n = j - i; was = dict(was)
        def run(pos):
            for n_, act in enumerate(plan.get(ab, [])):
                if act[0] != pos: continue
                if n_ in was: a.e(f"s_waitcnt vmcnt({was[n_]})")
                act[2]()
        tail = [f"s_waitcnt vmcnt({w})", "s_barrier"]
        if n > 2 and k == 1:
            em(F1); a.e("s_mov_b32 s43, 1"); L = a.lab("ld"); a.e(f"{L}:")
            em(lprep + F2 + arm + tail + F1)
            a.e("s_add_u32 s43, s43, 1"); a.e(f"s_cmp_lt_u32 s43, {n}"); a.e(f"s_cbranch_scc1 {L}")
            em(prep + F2 + arm + tail)
        else:
            for r in range(n):
                run(True)
                for jj in range(k):
                    nxt = more or jj < k - 1
                    em(F1)
                    if jj == 0: run("mid")
                    em((prep if nxt else []) + F2 + (arm if nxt else []))
                run(False)
                em(tail)
        i = j
    if hi is not None: return
    if which == 4:
        if issue is a_issue: a.e("s_cmp_eq_u32 s60, 1"); a.e("s_cbranch_scc1 K_fin")
        elif hold is HOLD: a.e("s_branch K_fin"); return
        r_pre(a)
    if last: last()
    if issue is a_issue and which == 3:
        X = a.lab("tw4"); a.e("s_cmp_lg_u32 s60, 0"); a.e(f"s_cbranch_scc1 {X}"); touch(a, 4, 7 * MB, 60); a.e(f"{X}:")
    a.e("s_barrier")

HOLD = env("HOLD", [2, 3, 4])
def a_loader(a, which):
    c = CFG[which]
    a.e("s_and_b32 s35, s30, 1")
    lsrd(a, 12, c["A"], XSZ if which != 4 else H2SZ)
    a.e(f"s_mul_i32 s38, s35, {4*c['KBT']*2048}")
    if which == 4: a.e(f"s_mul_i32 s36, s31, {7*16384}"); a.e("s_add_u32 s38, s38, s36")
    a.e("s_lshl_b32 s41, s35, 13"); a.e("s_mov_b32 s42, 0"); rot_init(a, which)
    assert c["NA"] == 3
    if which == 4:
        flag_addr(a, 9, ST_G3A); flag_addr(a, 10, ST_G3B); flag_addr(a, 12, ST_G3)
        own_wait(a, ST_G3A, False, 14)
        poll_core(a, 8, 9, 1, cnt=8); mstamp(a)
        plan = {6: ("mid", None, lambda: flag_try(a, 11, 10), 1, "f"), 8: ("mid", "f", lambda: flag_check(a, 11, 10, 8), 0, None),
                13: ("mid", None, lambda: flag_try(a, 11, 12), 1, "g"), 15: ("mid", "g", lambda: flag_check(a, 11, 12, 8), 0, None)}
        a.e("s_mov_b32 s44, 3")
        ld_steps(a, which, 3, 8, a_issue, 3, plan=plan); return
    mask, cnt = flag_addr(a, 9, ST_G2)
    def wait2(): g2_signal(a, 0); mstamp(a); poll_core(a, 8, 9, mask, cnt=cnt); mstamp(a)
    rot_next(a, 3); stage3_init(a); a.e("s_mov_b32 s42, 16384")
    plan = side_jobs(a)
    plan[1] = (True, None, wait2, 0, None)
    ld_steps(a, which, 3, 8, a_issue, 1, plan=plan, lo=1, start=True)

def g2_signal(a, wait):
    a.e("s_and_b32 s36, s30, 3"); a.e("s_lshl_b32 s36, s36, 7"); a.e("s_add_u32 s36, s36, s55"); a.e(f"s_add_u32 s36, s36, {fso(ST_G2)}")
    publish(a, ST_G2, 1, 14, off=36, wait=wait)
    G2S[0](); a.e("s_waitcnt lgkmcnt(0)")
G2S = []
def side_jobs(a):
    c = CFG[3]
    sv = 18; Q, tt, mean, rs, ad, fa, fr, co_, ct = 50, 51, 52, 53, 10, 11, 12, 13, 6
    cv = 54; N = 3584; HB = c["TN16"] * 32
    assert cv + 64 <= WVB[1]
    def cld(k0=0, k1=4):
        if k0 == 0:
            flag_check(a, fr + 5, fa + 5, 32)
            a.srd(24, 4, 16 * N * 4, off=CSP3)
            a.e("s_cmp_eq_u32 s60, 0"); a.e("s_cselect_b32 s26, s26, 0")
            a.e("s_and_b32 s36, s30, 1"); a.e(f"s_mul_i32 s36, s36, {HB}"); a.e(f"s_mul_i32 s37, s29, {2*HB}"); a.e("s_add_u32 s37, s36, s37")
            a.e(f"v_lshrrev_b32 v{co_}, 5, v1"); a.e(f"v_mul_u32_u24 v{co_}, {N*4}, v{co_}")
            a.e(f"v_and_b32 v{ct}, {16*31}, v2"); a.e(f"v_add_u32 v{co_}, v{co_}, v{ct}")
        for k in range(k0, k1):
            a.e(f"buffer_load_dwordx4 {vr(cv+4*k,4)}, v{co_}, s[24:27], s37 offen {SC}"); a.e(f"s_add_u32 s37, s37, {N*4*2}")
    def piece(lines, l0=False):
        def f():
            X = a.lab("pc")
            if l0: a.e("s_cmp_lg_u32 s60, 0"); a.e(f"s_cbranch_scc1 {X}")
            for x in lines: a.e(x)
            if l0: a.e(f"{X}:")
        return f
    def cadd(k0, k1): return [f"v_pk_add_f32 {vr(cv+2*h,2)}, {vr(cv+2*h,2)}, {vr(cv+4*k+2*h,2)}" for k in range(k0, k1) for h in range(2)]
    def sw(op): return [f"v_mov_b32 v{cv+4+e}, v{cv+e}" for e in range(4)] + [f"{op} v{cv+e}, v{cv+4+e}" for e in range(4)] + cadd(1, 2)
    cout = ["s_and_b32 s36, s30, 1", f"s_mul_i32 s36, s36, {HB}", f"s_add_u32 s36, s36, {CSO[3]}", f"v_add_u32 v{ct}, s36, v2",
            f"s_bfm_b64 exec, {HB//16}, 0", f"ds_write_b128 v{ct}, {vr(cv,4)}", "s_mov_b64 exec, -1", "s_waitcnt lgkmcnt(0)"]
    flag_addr(a, fa, ST_G2S)
    a.e(f"v_lshlrev_b32 v{ad}, 3, v1")
    lsrd(a, 20, oST2, 24576)
    a.e("s_and_b32 s34, s30, 1"); a.e("s_lshl_b32 s34, s34, 9")
    def sout():
        a.e(f"s_add_u32 s36, s34, {REC}"); a.e(f"v_add_u32 v{tt}, s36, v{ad}")
        for k in range(4): a.e(f"ds_read_b64 {vr(sv+2*k,2)}, v{tt} offset:{1024*k}")
        spread(a, 36, 29); a.e("s_add_u32 s36, s36, s34")
        a.e("s_waitcnt lgkmcnt(0)")
        for k in range(1, 4): a.e(f"v_pk_add_f32 {vr(sv,2)}, {vr(sv,2)}, {vr(sv+2*k,2)}")
        a.e(f"buffer_store_dwordx2 {vr(sv,2)}, v{ad}, s[20:23], s36 offen {SC}")
    def tries():
        a.e("s_lshl_b32 s53, s29, 7"); a.e(f"s_add_u32 s53, s53, {F_CS}"); a.e(f"v_mov_b32 v{fa+5}, s53")
        flag_try(a, fr, fa); flag_try(a, fr + 5, fa + 5)
    def ld(k0):
        def f():
            if k0 == 0: flag_check(a, fr, fa, 32)
            a.e(f"s_add_u32 s36, s34, {k0*2048}")
            for k in range(k0, k0 + 8):
                if k % 8 == 4: a.e("s_add_u32 s36, s36, 4096")
                a.e(f"buffer_load_dwordx2 {vr(sv+2*k,2)}, v{ad}, s[20:23], s36 offen offset:{(k&3)*1024} {SC}")
        return f
    b = Rec()
    for st_ in (8, 4, 2, 1):
        for k in range(st_): b.e(f"v_pk_add_f32 {vr(sv+2*k,2)}, {vr(sv+2*k,2)}, {vr(sv+2*(k+st_),2)}")
    b.e(f"v_mul_f32 v{mean}, {f32(1/1024)}, v{sv}"); b.e(f"v_mul_f32 v{Q}, {f32(1/1024)}, v{sv+1}")
    b.e(f"v_fma_f32 v{Q}, -v{mean}, v{mean}, v{Q}"); b.e(f"v_max_f32 v{Q}, 0, v{Q}")
    ln_finish(b, mean, Q, rs)
    b.e(f"s_add_u32 s36, s34, {AUX+1024}"); b.e(f"v_add_u32 v{tt}, s36, v{ad}")
    b.e(f"ds_write_b64 v{tt}, {vr(mean,2)}"); b.e("s_waitcnt lgkmcnt(0)")
    def both(f, g):
        def h(): f(); g()
        return h
    return {2: (False, None, sout, 1, "s"),
            4: (False, "s", lambda: publish(a, ST_G2S, 1, 14, wait=None), 1, "p"),
            7: (False, None, tries, 2, "f"),
            9: (False, "f", ld(0), 8, "d"), 10: (False, None, ld(8), 8, "d"), 11: (False, None, lambda: cld(0, 8), 8, "c"),
            12: (False, "d", piece(b.l[:12]), 0, None), 13: (False, None, piece(b.l[12:23]), 0, None),
            14: (False, "c", both(piece(b.l[23:]), piece(cadd(1, 5), 1)), 0, None), 15: (False, None, piece(cadd(5, 8) + sw("v_permlane32_swap_b32") + cout, 1), 0, None)}

def w_loader(a, which):
    c = CFG[which]
    args = (a, which, c["NW"], c["STB"] // 2048, w_issue, c["NPRE"], c["WR"])
    if which == 3:
        w_setup(a, 3, pre=False); rot_next(a, 3); rot_next(a, 3); stage3_init(a); a.e(f"s_mov_b32 s42, {2*c['STB']}")
        ld_steps(*args, plan={1: [({"T": True, "M": "mid", "F": False}[env("PUBW", "T")], 1, lambda: g2_signal(a, None), 1, "p"), (False, None, lambda: cs_sum(a), 0, None)],
                                4: (False, 3, lambda: cs_signal(a), 0, None)}, lo=1, start=True)
        return
    assert c["NW"] == 6 and c["WB"] == WST + 3 * 8192
    a.e("s_cmp_eq_u32 s60, 1"); a.e("s_cbranch_scc1 WL_t1")
    ld_steps(*args, hi=24)
    def first(): w_setup(a, 1, pre=False); w1_slots(a, (11, 12, 15))
    plan = {24: (False, None, first, 12, "w"), 25: (False, None, lambda: w1_slots(a, (13, 14)), 8, "w"),
            26: (False, None, lambda: w1_slots(a, (3, 4)), 8, "w"), 27: (False, None, lambda: w1_slots(a, (5, 6, 0)), 12, "w")}
    ld_steps(*args, plan=plan, lo=24, last=lambda: w1_slots(a, (7, 8, 1, 2)))
    w1_slots(a, (9, 10)); mstamp(a)
    a.e("s_branch NEXT")
    a.e("WL_t1:")
    ld_steps(*args, hold=HOLD)
SLOTS = [16 * KB, 32 * KB, 104 * KB, 120 * KB, 136 * KB]; WINB = 104 * KB
W3AT = env("W3AT", [8, 12])
LAG = 2
DEP = env("DEP", 3); BURST0 = env("BURST0", 3)
SIG = env("SIG", [(8, 0), (12, 0), (15, 2)]); SIG3 = env("SIG3", 19)
TRY = env("TRY", [12, 16, 20, 24]); CHK = env("CHK", [13, 17, 21, 25])
OST = env("OST", 29); LPRIO = env("LPRIO", 1); RATE = env("RATE", 2); ISS = env("ISS", {})
def win_schedule():
    slot = {}; issue = {b: [] for b in ["F"] + list(range(32))}
    free = {x: -1 for x in SLOTS}
    nxt = 0
    for p in range(-1, 32):
        b = "F" if p < 0 else p
        while nxt < 32:
            if p < 0 and nxt >= BURST0: break
            if nxt >= 16 and p < CHK[(nxt - 16) // 4]: break
            if p in ISS:
                if len(issue[b]) >= ISS[p]: break
            elif p >= 0 and (nxt > p + DEP or len(issue[b]) >= RATE): break
            c_ = [x for x in SLOTS if free[x] <= p]
            if not c_: break
            x = min(c_, key=lambda x: free[x])
            slot[nxt] = x; issue[b].append(nxt); free[x] = nxt + 2
            assert nxt > p
            nxt += 1
    return slot, issue
WSLOT, WISSUE = win_schedule()
GSTW = os.environ.get("GST", "")

def win_compute(T, g, rd, acc, cinit, FR, pre, post, mid):
    s0 = 16 * (g - 1); steps = [(s, k) for s in range(s0, s0 + 17) for k in range(4)]; n = 64; nb = LAG + 1
    for i in range(n + LAG):
        s, k = steps[i]
        if k == 0 and s < 32:
            for f in pre.get(s, []): f()
            T.e("s_barrier")
            if GSTW == "w" or (GSTW == "y" and i == n) or os.environ.get("JIT"): mstamp(T.a, True)
            for f in post.get(s, []): f()
        for f in mid.get((s, k), []): f()
        r = [rd(FR + 16 * (i % nb) + 4 * q, s, k, q) for q in range(4)] if i < n else []
        j = i - LAG
        if j < 0:
            for x in r: T.ds(x, i)
            continue
        s, k = steps[j]; c = (s - s0) // 4; first = s % 4 == 0 and k == 0
        T.wl(j)
        for q in (0, 1, 3, 2):
            C = vr(acc(c) + 4 * (q & 1), 4)
            T.e(f"v_mfma_f32_16x16x32_bf16 {C}, {vr(WR0+8*(4*(s%4)+k)+4*(q>>1),4)}, {vr(FR+16*(j%nb)+4*q,4)}, {'0' if first and q < 2 and not cinit else C}")
            if r: T.ds(r.pop(0), i)
def add(d, k, f): d.setdefault(k, []).append(f)
def h_rot(a, d):
    a.e(f"s_and_b32 s{d+4}, s30, 3"); a.e(f"s_lshl_b32 s{d+4}, s{d+4}, 15")
    for i in range(4):
        a.e(f"s_add_u32 s53, s67, {2*i}"); a.e(f"s_and_b32 s{d+i}, s53, 4"); a.e(f"s_and_b32 s53, s53, 2"); a.e(f"s_lshl_b32 s{d+i}, s{d+i}, 12"); a.e("s_lshl_b32 s53, s53, 11")
        a.e(f"s_add_u32 s{d+i}, s{d+i}, s53"); a.e(f"s_add_u32 s{d+i}, s{d+i}, s{d+4}")
    a.e("s_and_b32 s53, s30, 2"); a.e("s_lshl_b32 s53, s53, 11")
    a.e(f"s_and_b32 s{d+4}, s30, 1"); a.e(f"s_lshl_b32 s{d+4}, s{d+4}, 13"); a.e(f"s_add_u32 s{d+4}, s{d+4}, s53")
def h_arm(T, s, d):
    T.e(f"s_add_u32 m0, s{d+4}, {WSLOT[s]}"); T.e(f"s_add_u32 s49, s{d+s%4}, {(s-16)//4*131072}"); T.armed = s
def h_issue(T, s, d, srd):
    if getattr(T, "armed", None) != s: h_arm(T, s, d)
    for q in range(4): T.vm(f"buffer_load_dwordx4 v2, s[{srd}:{srd+3}], s49 offen offset:{1024*q} {SC} lds", s)
def h_flag(a, d):
    a.e(f"s_and_b32 s{d}, s30, 1"); a.e(f"s_lshl_b32 s{d}, s{d}, 8"); a.e(f"s_add_u32 s{d}, s{d}, s55"); a.e(f"s_add_u32 s{d+1}, s52, 16")
def h_try(a, c, d):
    for k in range(2): a.e(f"s_load_dword s{(32, 3)[k]}, s[4:5], s{d} offset:{FH + 512*c + 128*k} {os.environ.get('GLC', '')}")
def h_check(a, c, d, t):
    D = a.lab("hok")
    a.e("s_waitcnt lgkmcnt(0)"); a.e(f"s_cmp_eq_u32 s32, s{d+1}"); a.e(f"s_cselect_b32 s32, s3, 0"); a.e(f"s_cmp_eq_u32 s32, s{d+1}"); a.e(f"s_cbranch_scc1 {D}")
    if STAMP: a.e(f"s_add_u32 s95, s95, {1 << (8 + 4 * c)}")
    a.e(f"s_add_u32 s53, s{d}, {FH + 512*c}"); a.e(f"v_lshlrev_b32 v{t+1}, 7, v1"); a.e(f"v_add_u32 v{t+1}, s53, v{t+1}")
    poll_core(a, t, t + 1, 3, cnt=16, nap=env('HSLEEP', 2))
    a.e(f"{D}:")
def out_addr(a, so, J, G, t):
    a.e(f"v_and_b32 v{t}, 1, v{G}"); a.e(f"v_lshlrev_b32 v{so}, 16, v{t}"); a.e(f"v_lshrrev_b32 v{t}, 1, v{G}"); a.e(f"v_lshl_add_u32 v{so}, v{t}, 8, v{so}")
    a.e(f"v_lshl_add_u32 v{so}, v{J}, 4, v{so}")
    a.e("s_bfe_u32 s36, s30, 0x10001"); a.e("s_lshl1_add_u32 s36, s29, s36"); spread(a, 39, 36)
    a.e("s_and_b32 s36, s30, 1"); a.e("s_lshl_b32 s36, s36, 9"); a.e("s_add_u32 s39, s39, s36")

def window_x(a, g3_setup):
    T = Track(a); v = VA(6)
    t = v(); t2 = v(); J = v(); G = v(); ra = v(8, 2); rc = v()
    acc0 = v(16, 4); FR = v(48, 4); cs = v(4, 4); rec = v(16, 4); tp = v(8, 4); lead = v(); one = v(); so = v()
    assert v.hi <= WR0
    poll(a, ST_R, tp, wave=0)
    a.e(f"v_and_b32 v{J}, 15, v1"); a.e(f"v_lshrrev_b32 v{G}, 4, v1")
    a.e("s_lshl_b32 s36, s30, 6"); a.e(f"s_add_u32 s36, s36, {CSO[1]}"); a.e(f"v_lshlrev_b32 v{t}, 4, v{G}"); a.e(f"v_add_u32 v{t}, s36, v{t}")
    a.e(f"ds_read_b128 {vr(cs,4)}, v{t}")
    a.e(f"v_xor_b32 v{t}, v{G}, v{J}"); a.e(f"v_lshlrev_b32 v{t2}, 8, v{J}")
    for k in range(4):
        a.e(f"v_xor_b32 v{ra+k}, {4*k}, v{t}"); a.e(f"v_lshl_add_u32 v{ra+k}, v{ra+k}, 4, v{t2}"); a.e(f"v_add_u32 v{ra+4+k}, {WINB}, v{ra+k}")
    a.e(f"v_lshlrev_b32 v{rc}, 4, v{J}"); a.e(f"v_add_u32 v{rc}, {REC}, v{rc}")
    lsrd(a, 16, oH, XSZ); out_addr(a, so, J, G, t)
    h_rot(a, 8); h_flag(a, 20)
    a.e(f"v_mov_b32 v{lead}, 0x7f000000"); a.e(f"v_writelane_b32 v{lead}, 0, 0"); a.e(f"v_mov_b32 v{one}, 1")
    a.e("s_and_b32 s40, s30, 1"); a.e("s_lshl1_add_u32 s40, s31, s40"); a.e("s_lshl_b32 s40, s40, 7"); a.e("s_add_u32 s40, s40, s55")
    a.e("s_waitcnt lgkmcnt(0)")
    def rd(d, s, k, q):
        x = WSLOT[s]; hi = x >= WINB
        return f"ds_read_b128 {vr(d,4)}, v{ra+4*hi+k} offset:{x - WINB*hi + 4096*q}"
    acc = lambda c: acc0 + 8 * (c & 1)
    def recs(c):
        for mt in range(2):
            for p in range(2): T.ds(f"ds_read_b128 {vr(rec+8*mt+4*p,4)}, v{rc} offset:{512*c + 256*mt + 2048*p}", "r")
    def epi(c, cut=None):
        T.wl("r")
        X = acc(c); P = [(X + i, tp + i, i & 2, [vr(rec + 2 * (i & 4) + 2 * e, 2) for e in range(4)]) for i in range(0, 8, 2)]
        for x, u, i, R in P: T.e(f"v_pk_fma_f32 {vr(x,2)}, {R[0]}, {vr(cs+i,2)}, {vr(x,2)}")
        for x, u, i, R in P: T.e(f"v_pk_mul_f32 {vr(u,2)}, {vr(x,2)}, {vr(x,2)}")
        for x, u, i, R in P: T.e(f"v_pk_fma_f32 {vr(u,2)}, {vr(u,2)}, {R[2]}, {R[1]}")
        for x, u, i, R in P: T.e(f"v_pk_mul_f32 {vr(u,2)}, {vr(u,2)}, {vr(x,2)}")
        if cut: cut()
        for i in range(8): T.e(f"v_exp_f32 v{tp+i}, v{tp+i}")
        for x, u, i, R in P: T.e(f"v_pk_fma_f32 {vr(u,2)}, {vr(u,2)}, {R[3]}, {R[3]}")
        for i in range(8): T.e(f"v_rcp_f32 v{tp+i}, v{tp+i}")
        for x, u, i, R in P: T.e(f"v_pk_mul_f32 {vr(x,2)}, {vr(x,2)}, {vr(u,2)}")
        for i in range(4): T.e(f"v_cvt_pk_bf16_f32 v{tp+i}, v{X+2*i}, v{X+2*i+1}")
        T.e(f"s_add_u32 s36, s39, {c*131072}")
        for e in range(2): T.e(f"v_permlane16_swap_b32 v{tp+e}, v{tp+2+e}")
        T.vm(f"buffer_store_dwordx4 {vr(tp,4)}, v{so}, s[16:19], s36 offen {SC}", f"h{c}")
    def signal(c):
        T.wv(f"h{c}"); T.vm(f"buffer_atomic_add v{one}, v{lead}, s[56:59], s40 offen offset:{FH + 512*c} {SC}")
    pre, post, mid = {}, {}, {}
    add(post, 0, lambda: mstamp(a))
    for c in range(4):
        add(post, 4 * c + 4, lambda c=c: recs(c))
        if c: add(mid, SIG[c - 1], lambda c=c: signal(c - 1))
        if c < 3: add(mid, (4 * c + 4, 3), lambda c=c: epi(c))
    def duties(b):
        if b == SIG3: signal(3)
        for c in range(4):
            if TRY[c] >= 16 and CHK[c] == b: h_check(a, c, 20, cs)
        for c in range(4):
            if TRY[c] == b: h_try(a, c, 20)
        for s in WISSUE[b]: h_issue(T, s, 8, 16)
    def bar(b):
        if WISSUE[b]: h_arm(T, WISSUE[b][0], 8)
        T.wv(b); T.e("s_barrier")
        if GSTW in ("w", "y") or os.environ.get("JIT"): mstamp(a, True)
    win_compute(T, 1, rd, acc, False, FR, pre, post, mid)
    mstamp(a)
    T.e(f"s_setprio {LPRIO}")
    T.wl("r"); duties(16)
    b0 = 17
    if env("CUT", 0): epi(3, lambda: bar(17)); duties(17); b0 = 18
    else: epi(3)
    mstamp(a)
    G3AT = env("G3AT", 29); assert SIG3 < G3AT
    for b in range(b0, 32):
        bar(b); duties(b)
        if b == G3AT: T.e(g3_setup)
    T.e("s_setprio 0")

def window_y(a):
    T = Track(a); v = VA(6)
    t = v(); t2 = v(); J = v(); G = v(); va = v(); vb = v(); xo = v(); so = v(); rb = v(2, 2); ow = v(); xr = v()
    xn = v(32, 4); FR = v(48, 4); S = v(8, 2); tp = v(8, 2)
    assert v.hi <= WVB[1], v.hi
    lo = FR + 20; ln = FR; o = FR + 8
    a.e(f"v_and_b32 v{J}, 15, v1"); a.e(f"v_lshrrev_b32 v{G}, 4, v1")
    a.e("s_and_b32 s34, s30, 1"); a.e("s_and_b32 s37, s30, 3")
    a.e("s_lshr_b32 s38, s29, 3"); a.e("s_add_u32 s38, s38, 1"); a.e("s_sub_u32 s39, 0, s38"); a.e("s_bitcmp1_b32 s29, 2"); a.e("s_cselect_b32 s38, s38, s39")
    a.e("s_lshl_b32 s48, s28, 7")
    a.e("s_cmp_lt_u32 s37, 2"); a.e("s_cselect_b32 s36, s38, 0"); a.e("s_add_u32 s36, s36, s48"); a.e("s_lshl_b32 s45, s34, 6"); a.e("s_add_u32 s36, s36, s45")
    a.e(f"v_add_u32 v{lo}, s36, v1"); a.e("s_movk_i32 s45, 2048"); a.e(f"v_cmp_gt_u32 s[46:47], s45, v{lo}"); a.e(f"v_lshlrev_b32 v{lo}, 4, v{lo}")
    lns_srd(a, 20)
    a.e("s_lshl_b32 s36, s37, 2"); a.e(f"v_add_u32 v{t}, s36, v{G}"); a.e(f"v_xor_b32 v{va}, v{t}, v{J}")
    a.e("s_add_u32 s36, s48, s38"); a.e("s_add_u32 s36, s36, 16"); a.e(f"v_add_u32 v{t}, s36, v{t}")
    rowaddr(a, vb, t, t2); a.e(f"v_lshl_add_u32 v{vb}, v{va}, 4, v{vb}"); a.e(f"v_subrev_u32 v{va}, 65536, v{vb}")
    for i in range(4): a.e(f"s_add_u32 s{40+i}, s67, {2*i}"); a.e(f"s_and_b32 s{40+i}, s{40+i}, 6"); a.e(f"s_lshl_b32 s{40+i}, s{40+i}, 7")
    a.e("s_lshl_b32 s44, s37, 10")
    a.e(f"v_lshrrev_b32 v{t}, 3, v1"); a.e(f"v_and_b32 v{xr}, 7, v1"); a.e(f"v_xor_b32 v{xr}, v{xr}, v{t}")
    a.e("s_lshl_b32 s36, s37, 3"); a.e("s_add_u32 s36, s36, s48"); a.e(f"v_add_u32 v{t}, s36, v{t}"); rowaddr(a, xo, t, t2)
    a.e("s_lshl_b32 s36, s29, 7"); a.e(f"v_lshl_add_u32 v{xo}, v{xr}, 4, v{xo}"); a.e(f"v_add_u32 v{xo}, s36, v{xo}")
    a.e(f"v_lshrrev_b32 v{t}, 1, v{G}"); a.e("s_lshl_b32 s36, s37, 1"); a.e(f"v_add_u32 v{t}, s36, v{t}"); a.e(f"v_and_b32 v{t2}, 7, v{J}"); a.e(f"v_xor_b32 v{t}, v{t}, v{t2}")
    a.e(f"v_lshlrev_b32 v{xr}, 7, v{J}"); a.e(f"v_lshl_add_u32 v{xr}, v{t}, 4, v{xr}"); a.e(f"v_and_b32 v{t}, 1, v{G}"); a.e(f"v_lshl_add_u32 v{xr}, v{t}, 3, v{xr}")
    out_addr(a, so, J, G, t)
    a.e(f"v_mov_b32 v{rb}, v2"); a.e(f"v_add_u32 v{rb+1}, {WINB}, v2")
    a.e(f"v_lshrrev_b32 v{t}, 5, v{so}"); a.e(f"v_and_b32 v{t}, 2048, v{t}"); a.e(f"v_and_b32 v{ow}, 511, v{so}"); a.e(f"v_add_u32 v{ow}, v{ow}, v{t}")
    a.e("s_lshl_b32 s36, s37, 9"); a.e(f"v_add_u32 v{ow}, s36, v{ow}")
    x3_srd(a, 12); lsrd(a, 16, oH, XSZ); lsrd(a, 24, oX1P, XSZ)
    h_rot(a, 78); h_flag(a, 84)
    L = a.lab("lns"); D = a.lab("lnk")
    a.e("s_mov_b32 s53, 0")
    a.e(f"{L}:")
    a.e(f"buffer_load_dwordx4 {vr(ln,4)}, v{lo}, s[20:23], 0 offen {SC}"); a.e("s_waitcnt vmcnt(0)")
    a.e(f"v_cmp_eq_u32 vcc, s52, v{ln+1}"); a.e(f"v_cmp_eq_u32 s[50:51], s52, v{ln+3}"); a.e("s_and_b64 vcc, vcc, s[50:51]"); a.e("s_orn2_b64 vcc, vcc, s[46:47]")
    a.e("s_cmp_eq_u64 vcc, -1"); a.e(f"s_cbranch_scc1 {D}")
    a.e(f"s_sleep {env('LSLEEP', 4)}")
    a.e("s_add_u32 s53, s53, 1"); a.e("s_cmp_lt_u32 s53, s61"); a.e(f"s_cbranch_scc1 {L}")
    a.e("s_mov_b32 s61, 0")
    a.e(f"{D}:")
    unpack(a, ln + 4, ln + 5, ln); unpack(a, ln + 6, ln + 7, ln + 2)
    for r in (ln + 5, ln + 7): a.e(f"v_cndmask_b32 v{r}, 1.0, v{r}, s[46:47]")
    a.e("s_lshl_b32 s36, s34, 10"); a.e(f"s_add_u32 s36, s36, {REC}"); a.e(f"v_add_u32 v{t}, s36, v2")
    X = a.lab("lnx"); D = a.lab("lnd")
    a.e("s_cmp_ge_u32 s37, 2"); a.e(f"s_cbranch_scc1 {X}")
    a.e(f"v_mul_f32 v{o+6}, v{ln+5}, v{ln+7}"); a.e(f"v_fma_f32 v{o}, -v{ln+6}, v{ln+5}, -v{ln+4}"); a.e(f"v_rcp_f32 v{t2}, v{o+6}")
    a.e(f"v_mov_b32 v{o+7}, v{o+6}"); a.e(f"v_mov_b32 v{o+1}, v{o}")
    a.e(f"v_mul_f32 v{o+2}, {f32(GC1)}, v{t2}"); a.e(f"v_mul_f32 v{t2}, v{t2}, v{t2}"); a.e(f"v_mov_b32 v{o+3}, v{o+2}")
    a.e(f"v_mul_f32 v{t2}, {f32(0.044715)}, v{t2}"); a.e(f"v_mul_f32 v{o+4}, v{t2}, v{o+2}"); a.e(f"v_mov_b32 v{o+5}, v{o+4}")
    for p in range(2): a.e(f"ds_write_b128 v{t}, {vr(o+4*p,4)} offset:{2048*p}")
    a.e(f"s_branch {D}")
    a.e(f"{X}:")
    a.e(f"v_rcp_f32 v{o}, v{ln+5}"); a.e(f"v_mul_f32 v{o+2}, -v{ln+4}, v{o}"); a.e(f"v_mov_b32 v{o+1}, v{o}"); a.e(f"v_mov_b32 v{o+3}, v{o+2}")
    a.e(f"ds_write_b128 v{t}, {vr(o,4)} offset:{LNSL-REC}")
    a.e(f"{D}:")
    a.e(f"v_lshlrev_b32 v{t2}, 4, v{J}"); a.e(f"v_add_u32 v{t2}, {LNSL}, v{t2}")
    def issue(s):
        if s >= 16: return h_issue(T, s, 78, 16)
        c, i = s // 4, s % 4
        if getattr(T, "armed", None) != s: arm(s)
        for mt in range(2):
            for kh in range(2):
                if mt or kh: T.e(f"s_add_u32 m0, s44, {WSLOT[s] + kh*8192 + mt*4096 - kh*1024}")
                T.vm(f"buffer_load_dwordx4 v{(va, vb)[mt]}, s[12:15], s49 offen offset:{1024*kh} {SC} lds", s)
                for x in T.fill[:5]: T.e(x)
                T.fill = T.fill[5:]
        if s == 3: T.e(f"v_mov_b32 v{va}, v{vb}"); T.e(f"v_add_u32 v{vb}, 65536, v{vb}")
    def arm(s):
        if s >= 16: return h_arm(T, s, 78)
        T.e(f"s_add_u32 m0, s44, {WSLOT[s]}"); T.e(f"s_add_u32 s49, s{40+s%4}, {max(0, s//4*2-1)*65536}"); T.armed = s
    def resld():
        for c in range(4):
            T.e(f"s_add_u32 m0, s44, {4096*c}"); T.e(f"s_mov_b32 s36, {c*131072}")
            T.vm(f"buffer_load_dwordx4 v{xo}, s[12:15], s36 offen {SC} lds", "x")
    def res1(c):
        for mt in range(2):
            a.e(f"ds_read_b64 {vr(xn+8*c+4*mt+2,2)}, v{xr} offset:{4096*c + 2048*mt}"); a.e(f"ds_read_b128 {vr(o+4*mt,4)}, v{t2} offset:{512*c + 256*mt}")
    def res2(c):
        b = Rec(); b.e("s_waitcnt lgkmcnt(0)")
        for mt in range(2):
            X = xn + 8 * c + 4 * mt
            for e in range(2): unpack(b, X + 2 * e, X + 2 * e + 1, X + 2 + e)
            for e in range(2): b.e(f"v_pk_fma_f32 {vr(X+2*e,2)}, {vr(X+2*e,2)}, {vr(o+4*mt,2)}, {vr(o+4*mt+2,2)}")
        T.fill = b.l
    RESAT = env("RESAT", 4); RESUSE = env("RESUSE", 7); T.fill = []
    a.e(f"s_setprio {LPRIO}")
    mstamp(a)
    arm(0)
    a.e("s_barrier")
    mstamp(a)
    for s in WISSUE["F"]: issue(s)
    a.e("s_waitcnt lgkmcnt(0)")
    for b in range(16):
        if WISSUE[b]: arm(WISSUE[b][0])
        if b == RESUSE: T.wv("x")
        T.wv(b); T.e("s_barrier")
        if GSTW in ("w", "y") or os.environ.get("JIT"): mstamp(a, True)
        for c in range(4):
            if TRY[c] < 16 and CHK[c] == b: h_check(a, c, 84, tp)
            assert TRY[c] >= 16 or (CHK[c] < 16 and TRY[c] >= RESUSE + 5)
        if b == CHK[0]: mstamp(a)
        for c in range(4):
            if TRY[c] == b: h_try(a, c, 84)
        if 1 <= b - RESUSE < 5: res2(b - RESUSE - 1)
        for s in WISSUE[b]: issue(s)
        assert not T.fill
        if 0 <= b - RESUSE < 4: res1(b - RESUSE)
        if b == RESAT: resld()
        for k in range(2):
            if W3AT[k] == b: w3_stage(a, k); T.vq += ["w"] * 7
    a.e("s_setprio 0")
    def rd(d, s, k, q):
        x = WSLOT[s]; hi = x >= WINB
        return f"ds_read_b128 {vr(d,4)}, v{rb+hi} offset:{x - WINB*hi + 4096*q + 1024*k}"
    acc = lambda c: xn + 8 * c
    def epi(c):
        X = acc(c)
        for i in range(4): T.e(f"v_cvt_pk_bf16_f32 v{X+i}, v{X+2*i}, v{X+2*i+1}")
        T.e(f"s_add_u32 s36, s39, {c*131072}")
        for e in range(2): T.e(f"v_permlane16_swap_b32 v{X+e}, v{X+2+e}")
    def ost(c):
        T.e(f"s_add_u32 s36, s39, {c*131072}"); T.vm(f"buffer_store_dwordx4 {vr(acc(c),4)}, v{so}, s[24:27], s36 offen {SC}", "o")
    def own(c): T.ds(f"ds_write_b128 v{ow}, {vr(acc(c),4)} offset:{4096*c}", "ow")
    def stats(c):
        X = tp; pp, qq = acc(c) + 4, acc(c) + 6
        for i in range(4): unpack(T, X + 2 * i, X + 2 * i + 1, acc(c) + i)
        T.e(f"v_pk_add_f32 {vr(pp,2)}, {vr(X,2)}, {vr(X+2,2)}"); T.e(f"v_pk_mul_f32 {vr(qq,2)}, {vr(X,2)}, {vr(X,2)}")
        for i in range(1, 4):
            if i > 1: T.e(f"v_pk_add_f32 {vr(pp,2)}, {vr(pp,2)}, {vr(X+2*i,2)}")
            T.e(f"v_pk_fma_f32 {vr(qq,2)}, {vr(X+2*i,2)}, {vr(X+2*i,2)}, {vr(qq,2)}")
        T.e(f"v_add_f32 v{S+2*c}, v{pp}, v{pp+1}"); T.e(f"v_add_f32 v{S+2*c+1}, v{qq}, v{qq+1}")
    pre, post, mid = {}, {}, {}
    add(post, 16, lambda: mstamp(a))
    for s in range(16, 32): add(pre, s, lambda s=s: T.wv(s))
    SLATE = env("SLATE", 1)
    for c in range(3):
        add(mid, (20 + 4 * c, 3), lambda c=c: (epi(c), SLATE or stats(c)))
        add(mid, (OST, 1 + c), lambda c=c: ost(c))
    add(mid, (32, 0), lambda: [own(c) for c in range(3)])
    win_compute(T, 2, rd, acc, True, FR, pre, post, mid)
    mstamp(a)
    T.e(f"s_setprio {env('LPRIO3', 0)}")
    epi(3); ost(3); own(3); T.wl("ow")
    T.e("s_barrier")
    mstamp(a)
    def rest(a_, which):
        T.a = a_
        for c in range(0 if SLATE else 3, 4): stats(c)
        T.e("s_and_b32 s36, s30, 3"); T.e("s_lshl_b32 s36, s36, 10"); T.e(f"s_add_u32 s36, s36, {REC}"); T.e(f"v_lshlrev_b32 v{t}, 3, v1"); T.e(f"v_add_u32 v{t}, s36, v{t}")
        for k in range(2): T.e(f"v_permlane32_swap_b32 v{S+k}, v{S+2+k}"); T.e(f"v_permlane32_swap_b32 v{S+4+k}, v{S+6+k}")
        T.e(f"v_pk_add_f32 {vr(S,2)}, {vr(S,2)}, {vr(S+2,2)}"); T.e(f"v_pk_add_f32 {vr(S+4,2)}, {vr(S+4,2)}, {vr(S+6,2)}")
        for k in range(2): T.e(f"ds_write_b64 v{t}, {vr(S+4*k,2)} offset:{512*k}")
    assert xn >= 18 and t == 6
    G2S.append(lambda: call_issue(a, rest, 2))

C2R = 230; SO3 = 254
def g_compute(a, which):
    c = CFG[which]
    WM, WN, MT, NT, KBT, NS, NA, NW, TN16, STB, WB = [c[k] for k in "WM WN MT NT KBT NS NA NW TN16 STB WB".split()]
    v = VA(6, skip=which == 4); nm = f"G{which}"
    lane = 1; l16 = 2
    t = v(); t2 = v(); pt = v(4, 2)
    NTILE = 29 if which != 4 else 33
    a0 = v(); w0 = v(4, 1); aa = v(); wa = v(4, 1); J = v(); G = v(); NF = MT + NT
    if which == 3: acc = v(MT * NT * 4, 4); fX = v(NF * 4, 4); fY = v(NF * 4, 4); tmp = v(); tp = v(4, 2)
    else: fX = v(NF * 4, 4); xf = v(4, 2); oa = v(2, 2); xo = v(); acc = v(MT * NT * 4, 4); fY = v(NF * 4, 4)
    assert v.hi <= C2R
    def A_(mt, nt): return acc + 4 * (mt * NT + nt)
    s = Rec()
    s.e("s_lshr_b32 s34, s30, 1"); s.e("s_and_b32 s35, s30, 1")
    s.e(f"v_and_b32 v{J}, 15, v{lane}"); s.e(f"v_lshrrev_b32 v{G}, 4, v{lane}")
    s.e(f"s_mul_i32 s37, s34, {MT}")
    s.e(f"s_mul_i32 s38, s{NTILE}, {TN16}"); s.e(f"s_mul_i32 s36, s35, {NT}"); s.e("s_add_u32 s38, s38, s36")
    if which == 4:
        s.e("s_lshr_b32 s36, s38, 1"); spread(s, 39, 36); s.e("s_lshl_b32 s36, s37, 16"); s.e("s_add_u32 s39, s39, s36")
    s.e(f"s_mul_i32 s36, s34, {MT*2048}"); s.e(f"v_add_u32 v{a0}, s36, v{l16}")
    nwr, wpos = w_bases(s, which, w0, 35, NT, t, t2)
    s.e("s_mov_b32 s42, 0"); s.e("s_mov_b32 s43, 0"); s.e("s_mov_b32 s48, 0")
    s.e(f"v_mov_b32 v{aa}, v{a0}")
    for i in range(nwr): s.e(f"v_mov_b32 v{wa+i}, v{w0+i}")
    if which == 3: window_x(a, "\n".join(s.l))
    else:
        for x in s.l: a.e(x)
    def reads(F, kk):
        o = []
        for mt in range(MT): o.append(f"ds_read_b128 {vr(F+4*mt,4)}, v{aa} offset:{mt*2048+kk*1024}")
        for nt in range(NT):
            for h in range(2):
                r, imm = wpos(nt, kk, h)
                o.append(f"ds_read_b64_tr_b16 {vr(F+4*(MT+nt)+2*h,2)}, v{wa+r} offset:{imm}")
        return o
    def mix(rd, ex):
        rd = list(rd)
        for i, x in enumerate(ex): rd.insert(min(len(rd), (i + 1) * len(rd) // (len(ex) + 1)), x)
        return rd
    def mfmas(F, rd, tail=(), zero=False):
        n = MT * NT; k = 0; tot = len(rd); span = max(1, n * 3 // 4); done = 0; tail = list(tail); per = -(-len(tail) // max(1, n - span))
        for nt, mt in [(nt, mt if nt % 2 == 0 else MT - 1 - mt) for nt in range(NT) for mt in range(MT)]:
            cc = acc + 4 * (mt * NT + nt)
            a.e(f"v_mfma_f32_16x16x32_bf16 {vr(cc,4)}, {vr(F+4*(MT+nt),4)}, {vr(F+4*mt,4)}, {0 if zero else vr(cc,4)}")
            k += 1
            while rd and done < (tot * k + span - 1) // span: a.e(rd.pop(0)); done += 1
            if k >= span and k < n:
                for _ in range(min(per, len(tail))): a.e(tail.pop(0))
        assert not rd and not tail
    def stage(ex=(), ey=(), lim=NS-1, late=False, zero=False):
        if str(which) in os.environ.get("GST", "") or os.environ.get("JIT"): mstamp(a, True)
        a.e("s_waitcnt lgkmcnt(0)")
        book = ["s_add_u32 s42, s42, 16384", f"s_cmp_eq_u32 s42, {NA*16384}", "s_cselect_b32 s42, 0, s42",
                f"s_add_u32 s48, s48, {STB}", f"s_cmp_eq_u32 s48, {NW*STB}", "s_cselect_b32 s48, 0, s48", f"v_add_u32 v{aa}, s42, v{a0}"]
        book += [f"v_add_u32 v{wa+i}, s48, v{w0+i}" for i in range(nwr)]
        mfmas(fX, mix(reads(fY, 1), ex), book, zero)
        if late:
            a.e("s_waitcnt lgkmcnt(0)"); mfmas(fY, [], ["s_add_u32 s43, s43, 1"]); a.e("s_barrier")
            for x in reads(fX, 0): a.e(x)
            return
        a.e("s_waitcnt lgkmcnt(0)"); a.e("s_barrier")
        mfmas(fY, mix(reads(fX, 0), ey), ["s_add_u32 s43, s43, 1", f"s_cmp_lt_u32 s43, {lim}"])
    a.e("s_waitcnt lgkmcnt(0)"); a.e("s_barrier")
    mstamp(a)
    for x in reads(fX, 0): a.e(x)
    if which == 4:
        def st2(j): return [f"s_add_u32 s36, s44, {j*224*1024}\nbuffer_store_dwordx4 {vr(C2R+4*j,4)}, v{l16}, s[16:19], s36 offen {SC}",
                            f"s_add_u32 s36, s45, {j*224*1024}\nbuffer_store_dwordx2 {vr(C2R+16+2*j,2)}, v{SO3}, s[16:19], s36 offen {SC}"]
        stage(st2(0), st2(1), zero=True); stage(st2(2), st2(3)); publish(a, ST_G3B, 4, pt, wait=8)
        L0 = a.lab("mm"); a.e(f"{L0}:"); stage(lim=PUB2); a.e(f"s_cbranch_scc1 {L0}")
        publish(a, ST_G3, 4, pt)
    else: stage(late=True, zero=True); mstamp(a)
    L = a.lab("mm"); a.e(f"{L}:")
    stage()
    a.e(f"s_cbranch_scc1 {L}")
    a.e("s_waitcnt lgkmcnt(0)")
    b0 = Rec()
    if which == 4:
        a.e("s_cmp_eq_u32 s60, 1"); a.e("s_cbranch_scc1 G4_last")
        r_pre(b0)
    mfmas(fX, reads(fY, 1) + b0.l)
    a.e("s_waitcnt lgkmcnt(0)")
    if which == 3: a.e("s_barrier")
    b = Rec()
    if which == 3:
        so = SO3; cs = fX; lns = fX + 4 * NT
        b.e(f"s_mul_i32 s36, s35, {NT*64}"); b.e(f"s_add_u32 s36, s36, {CSO[which]}"); b.e(f"v_lshlrev_b32 v{t}, 4, v{G}"); b.e(f"v_add_u32 v{t}, s36, v{t}")
        for nt in range(NT): b.e(f"ds_read_b128 {vr(cs+4*nt,4)}, v{t} offset:{nt*64}")
        b.e(f"s_lshl_b32 s36, s34, 9"); b.e(f"s_add_u32 s36, s36, {AUX+1024}")
        b.e(f"v_lshlrev_b32 v{t2}, 3, v{J}"); b.e(f"v_add_u32 v{t2}, s36, v{t2}")
        for mt in range(MT): b.e(f"ds_read_b64 {vr(lns+2*mt,2)}, v{t2} offset:{mt*128}")
        lsrd(b, 16, oH2, H2SZ)
        b.e(f"s_mul_i32 s39, s37, {224*1024}")
        for P in range(4):
            b.e("s_lshr_b32 s36, s38, 1"); b.e(f"s_add_u32 s36, s36, {P}"); spread(b, 44 + P, 36); b.e(f"s_add_u32 s{44+P}, s{44+P}, s39")
        b.e("s_lshl_b32 s36, s37, 1"); b.e("s_add_u32 s36, s36, s35"); b.e("s_lshl_b32 s36, s36, 10"); b.e(f"v_add_u32 v{a0}, s36, v{l16}")
        b.e(f"v_lshrrev_b32 v{so}, 1, v{G}"); b.e(f"v_lshlrev_b32 v{so}, 8, v{so}"); b.e(f"v_lshl_add_u32 v{so}, v{J}, 4, v{so}")
        b.e(f"v_and_b32 v{tmp}, 1, v{G}"); b.e(f"v_lshl_add_u32 v{so}, v{tmp}, 3, v{so}")
    else:
        b.e(f"s_mul_i32 s36, s31, {oP1-oP0}"); b.e(f"s_add_u32 s36, s36, {oP0}")
        b.e("s_add_u32 s16, s62, s36"); b.e("s_addc_u32 s17, s63, 0"); b.e(f"s_mov_b32 s18, {XSZ}"); b.e("s_mov_b32 s19, 0x20000")
    mfmas(fY, b.l)
    mstamp(a)
    if which == 3:
        AB = fY + 4
        def consts():
            for mt in range(MT):
                r = lns + 2 * mt + 1
                a.e(f"v_mul_f32 v{AB+2*mt}, {f32(GC1)}, v{r}"); a.e(f"v_mul_f32 v{AB+2*mt+1}, v{r}, v{r}")
                a.e(f"v_mul_f32 v{AB+2*mt+1}, v{AB+2*mt+1}, v{AB+2*mt}"); a.e(f"v_mul_f32 v{AB+2*mt+1}, {f32(0.044715)}, v{AB+2*mt+1}")
                a.e(f"v_rcp_f32 v{r}, v{r}")
        def act(mt, nt):
            A = A_(mt, nt); P_ = [(A, tp), (A + 2, tp + 2)]; L_ = vr(lns + 2 * mt, 2); K_ = vr(AB + 2 * mt, 2)
            for h in range(2):
                a.e(f"v_pk_fma_f32 {vr(A+2*h,2)}, {L_}, {vr(cs+4*nt+2*h,2)}, {vr(A+2*h,2)} op_sel_hi:[0,1,1] neg_lo:[1,0,0] neg_hi:[1,0,0]")
            for x, u in P_: a.e(f"v_pk_mul_f32 {vr(u,2)}, {vr(x,2)}, {vr(x,2)}")
            for x, u in P_: a.e(f"v_pk_fma_f32 {vr(u,2)}, {vr(u,2)}, {K_}, {K_} op_sel:[0,1,0] op_sel_hi:[1,1,0]")
            for x, u in P_: a.e(f"v_pk_mul_f32 {vr(u,2)}, {vr(u,2)}, {vr(x,2)}")
            for i in range(4): a.e(f"v_exp_f32 v{tp+i}, v{tp+i}")
            for x, u in P_: a.e(f"v_pk_fma_f32 {vr(u,2)}, {vr(u,2)}, {L_}, {L_} op_sel:[0,1,1] op_sel_hi:[1,1,1]")
            for i in range(4): a.e(f"v_rcp_f32 v{tp+i}, v{tp+i}")
            for x, u in P_: a.e(f"v_pk_mul_f32 {vr(x,2)}, {vr(x,2)}, {vr(u,2)}")
        def group(par, mt, nts, dst=None):
            for nt in nts: act(mt, nt)
            T = par * NT + nts[0]; P = (T >> 1) - ((par * NT) >> 1); B = A_(mt, nts[0]); D = B if dst is None else dst
            for k in range(2 * len(nts)): a.e(f"v_cvt_pk_bf16_f32 v{D+k}, v{B+2*k}, v{B+2*k+1}")
            return [f"s_add_u32 s36, s{44+P}, {mt*224*1024}", f"buffer_store_dwordx4 {vr(B,4)}, v{l16}, s[16:19], s36 offen {SC}"]
        def body(par):
            gs = [(0, 1), (2, 3), (4, 5), (6,)] if par == 0 else [(1, 2), (3, 4), (5, 6), (0,)]
            k = 0; pend = []; sent = 0
            for gi_, g_ in enumerate(gs):
                for mt in range(MT):
                    if k == C0PUB: publish(a, ST_G3A, 4, pt, wait=sent - 4, ctr=48); mstamp(a)
                    st_ = group(par, mt, g_, None if gi_ < 2 else C2R + 4 * mt if gi_ == 2 else C2R + 16 + 2 * mt); k += 1
                    if gi_ < 3:
                        a.e(f"ds_write_b128 v{a0}, {vr(A_(mt, g_[0]) if gi_ < 2 else C2R + 4 * mt, 4)} offset:{gi_*16384 + mt*2048}")
                    if gi_ < 2: pend.append(st_)
                    n = len(pend) if (k <= 4 or k == 16) else 0 if k <= STQ else min(1, len(pend))
                    for _ in range(n):
                        for x in pend.pop(0): a.e(x)
                        sent += 1
            a.e("s_waitcnt lgkmcnt(0)")
            if par == 0: a.e("s_mov_b32 s44, s46"); a.e("s_mov_b32 s45, s47")
            else: a.e("s_add_u32 s45, s44, 512"); a.e("s_mov_b32 s44, s47")
        a.e("s_waitcnt lgkmcnt(0)")
        consts()
        a.e("s_cmp_eq_u32 s35, 1"); a.e(f"s_cbranch_scc1 {nm}_e1")
        body(0); a.e(f"s_branch {nm}_e2"); a.e(f"{nm}_e1:"); body(1); a.e(f"{nm}_e2:")
        mstamp(a)
        return
    for mt in range(MT):
        a.e(f"s_add_u32 s36, s39, {mt*65536}")
        for p in range(NT // 2):
            B = A_(mt, 2 * p)
            for e in range(4): a.e(f"v_cvt_pk_bf16_f32 v{B+e}, v{B+2*e}, v{B+2*e+1}")
            a.e(f"buffer_store_dwordx4 {vr(B,4)}, v{l16}, s[16:19], s36 offen offset:{p*1024} {SC}")
    a.e("s_barrier")
    mstamp(a)
    publish(a, which, 4, pt)
    mstamp(a)
    a.e("s_branch NEXT")
    a.e("G4_last:")
    RX = 80; PX = fX
    b0 = Rec()
    b0.e(f"s_load_dwordx2 s[6:7], s[0:1], {D_OUT}")
    x3_srd(b0, 84); lsrd(b0, 88, oX1P, XSZ)
    b0.e("s_lshl_b32 s40, s31, 17"); b0.e("s_add_u32 s40, s40, s39")
    b0.e("s_xor_b32 s41, s31, 1"); b0.e("s_lshl_b32 s41, s41, 17"); b0.e("s_add_u32 s41, s41, s39")
    rowaddr(b0, xo, J, oa); b0.e(f"v_lshl_add_u32 v{xo}, v{G}, 4, v{xo}")
    b0.e("s_lshl_b32 s46, s28, 3"); b0.e("s_add_u32 s46, s46, s37"); b0.e("s_lshl_b32 s47, s31, 1"); b0.e("s_add_u32 s46, s46, s47")
    b0.e("s_lshl_b32 s49, s46, 16"); b0.e("s_lshl_b32 s47, s38, 5"); b0.e("s_add_u32 s49, s49, s47")
    for i in range(2):
        b0.e(f"s_add_u32 s36, s40, {i*65536}")
        if i: b0.e("s_add_u32 s49, s49, 65536")
        for p in range(2):
            b0.e(f"buffer_load_dwordx4 {vr(RX+8*(2*i+p),4)}, v{xo}, s[84:87], s49 offen offset:{p*64} {SC}")
            b0.e(f"buffer_load_dwordx4 {vr(RX+8*(2*i+p)+4,4)}, v{l16}, s[88:91], s36 offen offset:{p*1024} {SC}")
    mfmas(fX, reads(fY, 1) + b0.l)
    a.e("s_waitcnt lgkmcnt(0)")
    b = Rec()
    lsrd(b, 16, oP0, XSZ)
    b.srd(20, 6, 4 * MB)
    b.e("s_lshl_b32 s44, s29, 2"); b.e("s_add_u32 s44, s44, s30"); b.e("s_lshl_b32 s44, s44, 7"); b.e("s_xor_b32 s45, s44, 4096")
    b.e("s_add_u32 s44, s44, s55"); b.e(f"s_add_u32 s44, s44, {oFP}"); b.e("s_add_u32 s45, s45, s55"); b.e(f"s_add_u32 s45, s45, {oFP}")
    b.e(f"v_mov_b32 v{pt+1}, s45"); b.e(f"v_mov_b32 v{pt+2}, s52"); b.e(f"v_mov_b32 v{pt+3}, 0")
    b.e("s_lshl_b32 s46, s46, 15"); b.e("s_add_u32 s46, s46, s47"); b.e(f"s_add_u32 s47, s46, {16*2048}")
    b.e(f"v_and_b32 v{oa+1}, 1, v{G}"); b.e(f"v_lshlrev_b32 v{oa}, 11, v{J}"); b.e(f"v_lshl_add_u32 v{oa}, v{oa+1}, 5, v{oa}")
    b.e(f"v_lshrrev_b32 v{oa+1}, 1, v{G}"); b.e(f"v_lshl_add_u32 v{oa}, v{oa+1}, 4, v{oa}")
    b.e(f"v_cmp_gt_u32 s[48:49], 8, v{J}")
    b.e(f"v_lshrrev_b32 v{oa+1}, 3, v{J}"); b.e(f"v_mul_u32_u24 v{oa+1}, {8*2048 - 64}, v{oa+1}"); b.e(f"v_sub_u32 v{oa}, v{oa}, v{oa+1}")
    b.e(f"v_add_u32 v{oa+1}, {8*2048}, v{oa}")
    mfmas(fY, b.l)
    mstamp(a)
    a.e("s_cmp_eq_u32 s31, 0"); a.e("s_cbranch_scc1 G4_k0")
    for i in range(32): a.e(f"v_swap_b32 v{acc+i}, v{acc+32+i}")
    a.e("G4_k0:")
    for i in range(2):
        a.e(f"s_add_u32 s36, s41, {i*65536}")
        for p in range(2):
            B = A_(2 + i, 2 * p)
            for e in range(4): a.e(f"v_cvt_pk_bf16_f32 v{B+e}, v{B+2*e}, v{B+2*e+1}")
            a.e(f"buffer_store_dwordx4 {vr(B,4)}, v{l16}, s[16:19], s36 offen offset:{p*1024} {SC}")
    def addp(k, R):
        B = A_(k >> 1, 2 * (k & 1))
        for e in range(4):
            unpack(a, xf + 2 * (e & 1), xf + 1 + 2 * (e & 1), R + e)
            a.e(f"v_pk_add_f32 {vr(B+2*e,2)}, {vr(B+2*e,2)}, {vr(xf+2*(e&1),2)}")
    a.e("s_waitcnt vmcnt(4)")
    for k in range(4): addp(k, RX + 8 * k)
    a.e("s_waitcnt vmcnt(0)")
    a.e("s_mov_b64 exec, 1"); a.e(f"buffer_store_dword v{pt+2}, v{pt+3}, s[56:59], s44 offen {SC}"); a.e("s_mov_b64 exec, -1")
    mstamp(a)
    for k in range(4): addp(k, RX + 8 * k + 4)
    poll_core(a, pt, pt + 1, 1, nap=2)
    mstamp(a)
    for i in range(2):
        a.e(f"s_add_u32 s36, s40, {i*65536}")
        for p in range(2): a.e(f"buffer_load_dwordx4 {vr(PX+4*(2*i+p),4)}, v{l16}, s[16:19], s36 offen offset:{p*1024} {SC}")
    for k in range(4):
        a.e(f"s_waitcnt vmcnt({3 - (k & 1)})")
        addp(k, PX + 4 * k)
        B = A_(k >> 1, 2 * (k & 1))
        for e in range(4): a.e(f"v_cvt_pk_bf16_f32 v{B+e}, v{B+2*e}, v{B+2*e+1}")
        for e in range(2): a.e(f"v_permlane16_swap_b32 v{B+e}, v{B+2+e}")
        if k & 1:
            X, Y_, T = B - 8, B, B + 4
            for e in range(4): a.e(f"v_cndmask_b32 v{T+e}, v{X+e}, v{Y_+e}, s[48:49]")
            for e in range(4): a.e(f"v_mov_b32_dpp v{X+4+e}, v{T+e} row_ror:8 row_mask:0xf bank_mask:0xf")
            for e in range(4): a.e(f"v_cndmask_b32 v{X+e}, v{X+4+e}, v{X+e}, s[48:49]"); a.e(f"v_cndmask_b32 v{Y_+e}, v{Y_+e}, v{X+4+e}, s[48:49]")
            a.e(f"buffer_store_dwordx4 {vr(X,4)}, v{oa}, s[20:23], s{46+(k>>1)} offen {SC}")
            a.e(f"buffer_store_dwordx4 {vr(Y_,4)}, v{oa+1}, s[20:23], s{46+(k>>1)} offen {SC}")
    a.e("s_branch K_fin")

def k_mega(a):
    nm = KNAME; a.begin_kernel(nm)
    a.e("s_cmp_ge_u32 s2, 256"); a.e("s_cbranch_scc1 K_end")
    a.e(f"s_load_dwordx8 s[8:15], s[0:1], {A_K}"); a.e(f"s_load_dwordx2 s[6:7], s[0:1], {A_Q}"); a.e(f"s_load_dwordx8 s[68:75], s[0:1], {B_W1}")
    a.e(f"s_load_dwordx2 s[4:5], s[0:1], {D_WS}"); a.e(f"s_load_dwordx2 s[84:85], s[0:1], {D_DBG}"); a.e("s_memrealtime s[46:47]")
    a.e("v_lshrrev_b32 v1, 6, v0"); a.e("v_readfirstlane_b32 s30, v1")
    a.e("s_getpc_b64 s[48:49]"); a.e("K_pc:")
    a.e("s_lshr_b32 s36, s2, 3"); a.e("s_lshl_b32 s36, s36, 12")
    a.e("v_lshlrev_b32 v252, 3, v0"); a.e("v_add_u32 v252, s36, v252")
    a.e("v_cmp_gt_u32 vcc, K_end-K_pc-8, v252"); a.e("s_and_saveexec_b64 s[36:37], vcc"); a.e("s_cbranch_execz K_3")
    a.e("v_mov_b32 v253, s49"); a.e("v_add_co_u32 v252, vcc, s48, v252"); a.e("v_addc_co_u32 v253, vcc, 0, v253, vcc")
    a.e("global_load_dword v250, v[252:253], off")
    a.e("K_3:"); a.e("s_mov_b64 exec, -1")
    front_loads(a)
    a.e("v_and_b32 v1, 63, v0"); a.e("v_lshlrev_b32 v2, 4, v1"); a.e("v_lshlrev_b32 v3, 2, v1")
    a.e("s_and_b32 s32, s2, 7"); a.e("s_lshr_b32 s33, s2, 3")
    a.e("s_and_b32 s28, s32, 2"); a.e("s_lshr_b32 s34, s32, 2"); a.e("s_or_b32 s28, s28, s34")
    a.e("s_lshl_b32 s28, s28, 2"); a.e("s_and_b32 s34, s33, 3"); a.e("s_add_u32 s28, s28, s34")
    a.e("s_and_b32 s31, s32, 1"); a.e("s_lshr_b32 s33, s33, 2")
    a.e("s_lshl_b32 s29, s31, 3"); a.e("s_add_u32 s29, s29, s33")
    a.e(f"s_and_b32 s67, s33, {env('RMASK', 4)}")
    a.e("s_mov_b32 s60, 0"); a.e("s_mov_b32 s61, 40000"); a.e("s_mov_b32 s52, 0")
    a.e("s_mov_b32 s55, 0"); a.e("s_mov_b32 s92, 0"); a.e("s_mov_b32 s93, 0"); a.e("s_mov_b32 s94, 0")
    a.srd(56, 4, X3G)
    a.e(f"s_add_u32 s62, s4, {LB0}"); a.e("s_addc_u32 s63, s5, 0")
    if STAMP:
        a.e("s_mov_b32 s66, 1"); a.e("v_mov_b32 v4, -1"); a.e("v_mov_b32 v5, 0"); a.e("s_mov_b32 s95, 0"); a.e("v_writelane_b32 v4, s46, 0")
    mstamp(a)
    front_a(a); mstamp(a)
    a.e("s_cmp_ge_u32 s30, 4"); a.e("s_cbranch_scc1 FR_b")
    front_conv(a)
    mstamp(a)
    lds_inc(a, LW + 24, 6)
    front_arrive(a, 0)
    a.e("s_branch FR_end")
    a.e("FR_b:")
    front_b(a)
    mstamp(a)
    front_c(a)
    a.e("FR_end:")
    mstamp(a)
    a.e("LAYER:")
    r_stage(a)
    mstamp(a)
    a.e("s_cmp_ge_u32 s30, 4"); a.e("s_cbranch_scc1 LOADERS")
    for w in (3, 4): g_compute(a, w)
    a.e("LOADERS:")
    window_y(a)
    a.e("s_cmp_ge_u32 s30, 6"); a.e("s_cbranch_scc1 WLOAD")
    for w in (3, 4): a_loader(a, w)
    a.e("s_branch NEXT")
    a.e("WLOAD:")
    w_loader(a, 3); w_setup(a, 4); w_loader(a, 4)
    a.e("NEXT:")
    a.e("s_setprio 0")
    a.e("s_add_u32 s60, s60, 1"); a.e(f"s_add_u32 s55, s55, {LSTR}")
    a.e(f"s_add_u32 s62, s62, {LSTR}"); a.e("s_addc_u32 s63, s63, 0")
    a.e("s_branch LAYER")
    a.e("K_fin:")
    if STAMP:
        a.e("s_waitcnt vmcnt(0)")
        mstamp(a)
        a.srd(96, 4, 16 * MB, off=200 * MB)
        a.e("s_lshl_b32 s66, s2, 3"); a.e("s_add_u32 s66, s66, s30"); a.e("s_lshl_b32 s66, s66, 8")
        a.e("v_writelane_b32 v4, s95, 63")
        a.e("buffer_store_dword v4, v3, s[96:99], s66 offen")
        a.e("s_add_u32 s66, s66, 0x100000"); a.e("buffer_store_dword v5, v3, s[96:99], s66 offen")
    a.e("s_endpgm")
    emit_subs(a)
    a.e("K_end:")
    a.end_kernel(nm, 256)
    a.launches.append(f"; @launch grid=(256,1,1) block=(512,1,1) lds={LDS_TOTAL}")

HEADER = open("interleave_layers__ssm_conv_h3__mixer_s_mlp__prompt.s.ref").read().split("; Override launch")[0]
DOC = """; One persistent kernel, 256 workgroups x 8 waves (one per CU), generated by dev/gen22.py.
"""
def main(out):
    a = Asm()
    k_mega(a)
    notes = {
        "K_pc:": "each workgroup reads 4 KB of this kernel's code so that later instruction fetches are served on chip",
        "KV_t0:": "k / v / tap loads of the u^T tile (64 times x 128 channels); workgroup 0 has posted the launch tag (a clock value) in d_debug",
        "HB_1:": "u^T tile out, arrival counters initialised to the tag, W2 slice into registers, shifted filter copies into LDS",
        "CV_w:": "long causal convolution as Toeplitz MFMAs, one channel per wave",
        "FR_b:": "waves 4-7 beside the convolution: memory-locality vote (timed loads, layout choice only), weight column sums, weight loads",
        "LAYER:": "row stage: residual sums, LayerNorm chain, x + LN(x)*y for 8 rows per workgroup",
        "LOADERS:": "waves 4-7: loads of G1, MFMAs of G2; then waves 4,5: activation tiles by LDS-DMA (after the producers' counters are complete)",
        "WLOAD:": "waves 6,7: weight tiles by LDS-DMA in their original layout (read back with transposing LDS loads)",
        "G4_last:": "last layer: the two K halves exchange half tiles, add the residuals and write the output",
    }
    o = []
    for l in a.lines:
        if l.strip() in notes: o.append("; ---- " + notes[l.strip()])
        if l.strip().startswith("s_sleep"): l += "    ; back-off inside a wait loop"
        o.append(l)
    a.lines = o
    open(out, "w").write(a.text(HEADER + DOC))
    print("nops added:", a.nops_added, "| slots", [WSLOT[s] // KB for s in range(32)], "| issue", {k: x for k, x in WISSUE.items() if x})

if __name__ == "__main__":
    main(sys.argv[1] if len(sys.argv) > 1 else "interleave_layers__ssm_conv_h3__mixer_s_mlp__prompt.s")
```

```python
import sys, os, math, struct
sys.path.insert(0, "dev")
from asmgen import Asm

KNAME = "interleave_layers__ssm_conv_h3__mixer_s_mlp__prompt_kernel"
MB = 1 << 20; KB = 1024
UT, Y = 24 * MB, 28 * MB
CSP3 = 20 * MB + 128 * 1024
A_Q, A_K, A_V, A_SH, A_SSMK, A_SSMD, B_X, B_W1, B_W2, B_W3, B_W4, D_OUT, D_DBG, D_WS = [8 * i for i in range(14)]
def env(k, d): return type(d)(os.environ.get(k, d)) if not isinstance(d, (list, dict, tuple)) else eval(os.environ.get(k, repr(d)))
STAMP = env("STAMP", 0)
def f32(x): return "0x%08x" % struct.unpack("<I", struct.pack("<f", x))[0]
GC1 = -2.0 * math.sqrt(2.0 / math.pi) * math.log2(math.e)

WAD = 74
RB0, RB1 = 78, 118
WR0 = 128
class VA:
    def __init__(self, start=1, skip=False): self.n = start; self.hi = start; self.skip = skip
    def __call__(self, cnt=1, al=None):
        if al is None: al = 2 if cnt > 1 else 1
        self.n = (self.n + al - 1) // al * al
        if self.skip and self.n < RB1 and self.n + cnt > RB0: self.n = (RB1 + al - 1) // al * al
        r = self.n; self.n += cnt; self.hi = max(self.hi, self.n); return r
def vr(b, n): return f"v[{b}:{b+n-1}]" if n > 1 else f"v{b}"

def unpack(a, lo, hi, src):
    a.e(f"v_lshlrev_b32 v{lo}, 16, v{src}")
    a.e(f"v_and_b32 v{hi}, 0xffff0000, v{src}")
def round2(a, x, y, tmp):
    a.e(f"v_cvt_pk_bf16_f32 v{tmp}, v{x}, v{y}")
    unpack(a, x, y, tmp)
def round1(a, x):
    a.e(f"v_cvt_pk_bf16_f32 v{x}, v{x}, v{x}")
    a.e(f"v_lshlrev_b32 v{x}, 16, v{x}")
def ln_finish(a, mean, var, rs):
    round1(a, mean); round1(a, var)
    a.e(f"v_add_f32 v{var}, {f32(1e-5)}, v{var}"); round1(a, var)
    a.e(f"v_sqrt_f32 v{var}, v{var}"); round1(a, var)
    if rs is not None: a.e(f"v_rcp_f32 v{rs}, v{var}")

FLG = 22 * MB
LB0, LSTR, GSTR = 32 * MB, 64 * MB, 8 * MB
oH2 = 0; oSM = 1792 * 1024; oFP = 16384; oST2 = oSM + 32768
oH, oX1P, oP0, oP1 = [4 * MB + i * 512 * 1024 for i in range(4)]
XSZ = 512 * 1024 - 8192; H2SZ = 1792 * 1024 - 8192
X3G = 160 * MB
LNSG = FLG + 128 * KB
def fso(stage): return int(stage * 256)
def spread(a, d, src):
    a.e(f"s_lshr_b32 s53, s{src}, 3"); a.e("s_lshl_b32 s53, s53, 14"); a.e(f"s_and_b32 s{d}, s{src}, 7"); a.e(f"s_lshl_b32 s{d}, s{d}, 10"); a.e(f"s_add_u32 s{d}, s{d}, s53")
ST_R, ST_G2, _, ST_G3, ST_G4, _, ST_G3B, ST_G3A = range(8); ST_G2S = 5.5
FH = 2048
F_KVT, F_FRONT, F_CS = FLG + 256 * KB, FLG + 512 * KB, FLG
LDS_TOTAL = 163840
AUX = LDS_TOTAL - 4096
SC = "sc1"
PSLEEP = env("PSLEEP", 5); PACE = env("PACE", 8); STQ = env("STQ", 12); FSLEEP = env("FSLEEP", 3)
NT = os.environ.get("NT", "nt"); NTK = NT; NTH = NT
PUB2 = env("PUB2", 4); MAP = env("MAP", 4); HSPLIT = env("HSPLIT", 2); PWAIT = env("PWAIT", 8)
PACES = env("PACES", {4: 4}); C0PUB = env("C0PUB", 5)
REC, LNSL = 152 * KB, AUX + 1024
WST = 24 * KB

CFG = {1: dict(KBT=32, NW=16, LDW=2048, TN16=4, WB=0),
       3: dict(WM=2, WN=2, MT=4, NT=7, KBT=32, NS=16, NA=3, NW=3, A=oX1P, LDW=7168, NPRE=2, WR=2),
       4: dict(WM=2, WN=2, MT=4, NT=4, KBT=112, NS=28, NA=3, NW=6, A=oH2, LDW=2048)}
for w, c in CFG.items():
    c.setdefault("NPRE", c["NW"]); c.setdefault("WR", 1)
    if w > 1: c["TN16"] = c["WN"] * c["NT"]; c["WB"] = c["NA"] * 16384
    c["STB"] = c["TN16"] * 2048; c["RB"] = c["TN16"] * 32
CFG[2] = CFG[1]
CSO = {1: AUX + 3584, 3: AUX}

LW = AUX + 3072
def mstamp(a, force=False):
    if os.environ.get("JIT"):
        X = a.lab("jit")
        a.e("s_cselect_b32 s101, 1, 0"); a.e("s_memtime s[64:65]"); a.e("s_waitcnt lgkmcnt(0)"); a.e(f"s_and_b32 s64, s64, {os.environ['JIT']}"); a.e("s_cmp_lg_u32 s64, 0")
        a.e(f"s_cbranch_scc1 {X}"); a.e("s_sleep 50"); a.e(f"{X}:"); a.e("s_cmp_eq_u32 s101, 1")
        return
    if not STAMP or (os.environ.get("GST") and not force): return
    a.e("s_memrealtime s[64:65]"); a.e("s_memtime s[96:97]")
    a.e("s_mov_b32 s100, m0"); a.e("s_mov_b32 m0, s66"); a.e("s_waitcnt lgkmcnt(0)")
    a.e("v_writelane_b32 v4, s64, m0"); a.e("v_writelane_b32 v5, s96, m0")
    a.e("s_mov_b32 m0, s100"); a.e("s_add_u32 s66, s66, 1")

def lsrd(a, d, off, nbytes, prev=False):
    if prev:
        a.e(f"s_sub_u32 s{d}, s62, {LSTR - off:#x}"); a.e(f"s_subb_u32 s{d+1}, s63, 0")
        a.e(f"s_mov_b32 s{d+2}, {nbytes:#x}"); a.e(f"s_mov_b32 s{d+3}, 0x20000")
    else: a.srd(d, 62, nbytes, off=off)
def x3_srd(a, d):
    a.e(f"s_lshl_b32 s{d+2}, s60, 24"); a.e(f"s_lshl_b32 s{d+3}, s94, 13"); a.e(f"s_add_u32 s{d+2}, s{d+2}, s{d+3}"); a.e(f"s_add_u32 s{d+2}, s{d+2}, {X3G}")
    a.e(f"s_add_u32 s{d}, s4, s{d+2}"); a.e(f"s_addc_u32 s{d+1}, s5, 0"); a.e(f"s_mov_b32 s{d+2}, {8*MB - 8192}"); a.e(f"s_mov_b32 s{d+3}, 0x20000")
def lns_srd(a, d):
    a.e(f"s_lshl_b32 s{d+2}, s60, 15"); a.e(f"s_add_u32 s{d+2}, s{d+2}, {LNSG}")
    a.e(f"s_add_u32 s{d}, s4, s{d+2}"); a.e(f"s_addc_u32 s{d+1}, s5, 0"); a.e(f"s_mov_b32 s{d+2}, 32768"); a.e(f"s_mov_b32 s{d+3}, 0x20000")
def rowaddr(a, d, r, t):
    a.e(f"v_and_b32 v{t}, 3, v{r}"); a.e(f"v_lshrrev_b32 v{d}, 2, v{r}"); a.e(f"v_lshlrev_b32 v{d}, 14, v{d}"); a.e(f"v_lshl_add_u32 v{d}, v{t}, 11, v{d}")

def group_off(a, d, m):
    a.e(f"s_lshr_b32 s53, s{m}, 3"); a.e("s_lshl_b32 s53, s53, 2"); a.e(f"s_and_b32 s54, s{m}, 3"); a.e("s_add_u32 s53, s53, s54"); a.e("s_lshl_b32 s53, s53, 23")
    a.e(f"s_lshr_b32 s54, s{m}, 2"); a.e("s_xor_b32 s54, s54, s94"); a.e("s_and_b32 s54, s54, 1"); a.e("s_lshl_b32 s54, s54, 13")
    a.e(f"s_add_u32 s{d}, s53, s54"); a.e(f"s_add_u32 s{d}, s{d}, {LB0}")

def poll_core(a, t, ad, mask, cnt=0, nap=None):
    L = a.lab("poll"); D = a.lab("pok")
    a.e("s_mov_b32 s53, 0"); a.e(f"s_add_u32 s54, s52, {cnt}")
    a.e(f"s_bfm_b64 exec, {mask.bit_length()}, 0")
    a.e(f"{L}:")
    a.e(f"buffer_load_dword v{t}, v{ad}, s[56:59], 0 offen {SC}")
    a.e("s_waitcnt vmcnt(0)")
    a.e(f"v_cmp_eq_u32 vcc, s54, v{t}")
    a.e("s_cmp_eq_u64 vcc, exec"); a.e(f"s_cbranch_scc1 {D}")
    a.e(f"s_sleep {PSLEEP if nap is None else nap}")
    a.e("s_add_u32 s53, s53, 1"); a.e("s_cmp_lt_u32 s53, s61"); a.e(f"s_cbranch_scc1 {L}")
    a.e("s_mov_b32 s61, 0")
    a.e(f"{D}:")
    a.e("s_mov_b64 exec, -1")

SPLIT = {ST_G3: "half", ST_G3A: "half", ST_G3B: "half"}
def flag_addr(a, r, stage, prev=False):
    so = fso(stage) - (LSTR if prev else 0)
    a.e(f"s_add_u32 s54, s55, {so & 0xffffffff:#x}")
    sp = SPLIT.get(stage)
    if sp == "half": a.e("s_lshl_b32 s53, s31, 7"); a.e("s_add_u32 s54, s54, s53")
    a.e(f"v_mov_b32 v{r}, s54")
    if stage == ST_R:
        a.e("s_bitcmp1_b32 s29, 2"); a.e("s_cselect_b32 s53, s93, s92"); a.e("s_add_u32 s53, s53, s54"); a.e(f"v_writelane_b32 v{r}, s53, 1")
        return 3, 16
    if stage == ST_G2: a.e(f"v_lshl_add_u32 v{r}, v1, 7, v{r}"); return 15, 16
    return 1, 8 if sp else 16
def own_wait(a, stage, prev, t):
    if stage == ST_R: return
    k = {ST_G3A: 1, ST_G4: 2}[stage] - (2 if prev else 0)
    a.e("s_lshl_b32 s54, s60, 1"); a.e(f"s_add_u32 s54, s54, {k}")
    lds_spin(a, LW + 56, "s54", t, nap=PWAIT)
def flag_try(a, r, ad):
    a.e("s_mov_b64 exec, 1"); a.e(f"buffer_load_dword v{r}, v{ad}, s[56:59], 0 offen {SC}"); a.e("s_mov_b64 exec, -1")
def flag_check(a, r, ad, cnt):
    D = a.lab("fok")
    a.e(f"v_readfirstlane_b32 s53, v{r}"); a.e(f"s_add_u32 s54, s52, {cnt}"); a.e("s_cmp_eq_u32 s53, s54"); a.e(f"s_cbranch_scc1 {D}")
    poll_core(a, r, ad, 1, cnt=cnt)
    a.e(f"{D}:")

def poll(a, stage, t, prev=False, wave=4):
    D = a.lab("pdone")
    a.e(f"s_cmp_lg_u32 s30, {wave}"); a.e(f"s_cbranch_scc1 {D}")
    own_wait(a, stage, prev, t)
    mask, cnt = flag_addr(a, t + 1, stage, prev)
    poll_core(a, t, t + 1, mask, cnt=cnt)
    a.e(f"{D}:")
    a.e("s_barrier")

def publish(a, stage, nw, t, off=None, wait=0, ctr=None, flag=False):
    D = a.lab("pub")
    mark = off is None and stage in (ST_G3A, ST_G4)
    if off is None:
        a.e(f"s_add_u32 s53, s55, {fso(stage)}"); off = 53
        if SPLIT.get(stage) == "half": a.e("s_lshl_b32 s54, s31, 7"); a.e("s_add_u32 s53, s53, s54")
    a.e(f"v_mov_b32 v{t}, 1"); a.e(f"v_mov_b32 v{t+1}, {LW + (ctr if ctr is not None else 4 if nw == 8 else 0)}"); a.e(f"v_mov_b32 v{t+3}, 0")
    a.e("s_mov_b64 exec, 1")
    if wait is not None: a.e(f"s_waitcnt vmcnt({wait})")
    if nw > 1:
        a.e(f"ds_add_rtn_u32 v{t+2}, v{t+1}, v{t}")
        if flag: a.e(f"v_mov_b32 v{t+1}, s52")
        a.e("s_waitcnt lgkmcnt(0)")
        a.e(f"v_readfirstlane_b32 s54, v{t+2}")
        a.e(f"s_and_b32 s54, s54, {nw-1}"); a.e(f"s_cmp_lg_u32 s54, {nw-1}"); a.e(f"s_cbranch_scc1 {D}")
    if flag: a.e(f"buffer_store_dword v{t+1}, v{t+3}, s[56:59], s{off} offen {SC}")
    else: a.e(f"buffer_atomic_add v{t}, v{t+3}, s[56:59], s{off} offen {SC}")
    if mark: a.e(f"v_mov_b32 v{t+1}, {LW+56}"); a.e(f"ds_add_u32 v{t+1}, v{t}")
    a.e(f"{D}:")
    a.e("s_mov_b64 exec, -1")

def lds_spin(a, addr, target, t, dst=53, nap=False):
    L = a.lab("spin")
    a.e(f"v_mov_b32 v{t}, {addr}")
    a.e(f"{L}:")
    if nap: a.e(f"s_sleep {int(nap)}")
    a.e(f"ds_read_b32 v{t+1}, v{t}"); a.e("s_waitcnt lgkmcnt(0)"); a.e(f"v_readfirstlane_b32 s{dst}, v{t+1}")
    a.e(f"s_cmp_ge_u32 s{dst}, {target}"); a.e(f"s_cbranch_scc0 {L}")
def lds_set(a, addr, val, t):
    a.e(f"v_mov_b32 v{t}, {addr}"); a.e(f"v_mov_b32 v{t+1}, {val}")
    a.e("s_waitcnt lgkmcnt(0)"); a.e(f"ds_write_b32 v{t}, v{t+1}")
def lds_inc(a, addr, t):
    a.e(f"v_mov_b32 v{t}, {addr}"); a.e(f"v_mov_b32 v{t+1}, 1")
    a.e("s_waitcnt lgkmcnt(0)")
    a.e("s_mov_b64 exec, 1"); a.e(f"ds_add_u32 v{t}, v{t+1}"); a.e("s_mov_b64 exec, -1")
def lbar(a, k, t, addr=LW + 8, nap=False):
    lds_inc(a, addr, t); lds_spin(a, addr, 4 * k, t, nap=nap)

class Rec:
    def __init__(s_): s_.l = []
    def e(s_, x): s_.l.append(x)
    srd = Asm.srd
class Track:
    def __init__(s, a): s.a = a; s.vq = []; s.lq = []
    def e(s, x): s.a.e(x)
    def vm(s, x, tag=None): s.a.e(x); s.vq.append(tag)
    def ds(s, x, tag=None): s.a.e(x); s.lq.append(tag)
    def _w(s, q, tag, nm, mx):
        if tag not in q: return
        i = max(k for k, x in enumerate(q) if x == tag); n = len(q) - 1 - i
        assert n <= mx
        s.a.e(f"s_waitcnt {nm}({n})"); del q[:i + 1]
    def wv(s, tag): s._w(s.vq, tag, "vmcnt", 63)
    def wl(s, tag): s._w(s.lq, tag, "lgkmcnt", 15)
    def nv(s, tag):
        return len(s.vq) - 1 - max(k for k, x in enumerate(s.vq) if x == tag)
NVOTE = 255; NSAMP = env("NSAMP", 1)
HSTR = 4160; CHB = 24576; UOFF = 4 * HSTR; US = 96
KVS = 4 * CHB
RFO, RYO, RRO, RI, RXO, RT, RXA, RXB, RYF, RYY = 78, 79, 80, 81, 82, 84, 86, 94, 102, 110
WVB = {1: 118, 2: 118, 4: 119, 3: 121}

KL, VL = 96 * KB, 113 * KB
def front_loads(a):
    vA, vB, t, t2 = 6, 7, 8, 9
    a.e(f"v_bfe_u32 v{t}, v0, 4, 2"); a.e(f"v_and_b32 v{t2}, 15, v0"); a.e(f"v_lshlrev_b32 v{vA}, 11, v{t}"); a.e(f"v_lshlrev_b32 v{t}, 1, v{t}")
    a.e(f"v_xor_b32 v{t}, v{t}, v{t2}"); a.e(f"v_lshl_add_u32 v{t}, v{t}, 4, v{vA}")
    a.e("s_and_b32 s34, s2, 7"); a.e("s_lshr_b32 s35, s2, 3")
    a.e("s_lshl_b32 s36, s35, 17"); a.e("s_lshl_b32 s37, s34, 8"); a.e("s_add_u32 s36, s36, s37")
    a.e("s_lshl_b32 s37, s30, 6"); a.e("s_and_b32 s38, s37, 128"); a.e("s_add_u32 s37, s37, 64"); a.e("s_and_b32 s37, s37, 128")
    a.e(f"v_xor_b32 v{vA}, s38, v{t}"); a.e(f"v_xor_b32 v{vB}, s37, v{t}")
    a.e("s_lshl_b32 s37, s30, 14"); a.e("s_add_u32 s37, s37, s36"); a.e("s_add_u32 s38, s37, 8192"); a.e("s_lshl_b32 s39, s30, 11")
    a.e(f"s_mov_b32 s18, {4*MB}"); a.e("s_mov_b32 s19, 0x20000"); a.e("s_mov_b32 s22, s18"); a.e("s_mov_b32 s23, s19")
    a.e(f"s_add_u32 m0, s39, {KL + 1024}")
    a.e("s_waitcnt lgkmcnt(0)")
    a.e("s_mov_b64 s[16:17], s[8:9]"); a.e("s_mov_b64 s[20:21], s[10:11]")
    a.e(f"buffer_load_dwordx4 v{vA}, s[16:19], s37 offen {NT} lds"); a.e("s_add_u32 m0, m0, 1024")
    a.e(f"buffer_load_dwordx4 v{vB}, s[16:19], s38 offen {NT} lds"); a.e(f"s_add_u32 m0, s39, {VL}")
    a.e(f"buffer_load_dwordx4 v{vA}, s[20:23], s37 offen {NT} lds"); a.e("s_add_u32 m0, m0, 1024")
    a.e(f"buffer_load_dwordx4 v{vA}, s[20:23], s38 offen {NT} lds")
    a.e("s_mov_b32 s86, 256"); a.e("s_mov_b32 s87, 0x20000"); a.e(f"v_mov_b32 v{ZZ}, 0")
    a.e("s_cmp_lg_u32 s30, 0"); a.e("s_cbranch_scc1 KV_t0")
    a.e("s_sub_u32 s36, s36, 8192"); a.e(f"v_add_u32 v{t}, s36, v{t}"); a.e(f"s_mov_b32 m0, {KL}")
    a.e(f"buffer_load_dwordx4 v{t}, s[16:19], 0 offen {NT} lds")
    a.e("s_cmp_lg_u32 s2, 0"); a.e("s_cbranch_scc1 KV_t0")
    a.e("s_lshl_b32 s44, s46, 6"); a.e("s_or_b32 s44, s44, 1"); a.e(f"v_mov_b32 v{t2}, s44")
    a.e("s_mov_b64 exec, 1"); a.e(f"buffer_store_dword v{t2}, v{ZZ}, s[84:87], 0 offen {SC}"); a.e("s_mov_b64 exec, -1")
    a.e("KV_t0:")
    a.e("s_lshl_b32 s37, s34, 10"); a.e("s_lshl_b32 s38, s30, 7"); a.e("s_add_u32 s37, s37, s38"); a.e(f"v_and_b32 v{t2}, 15, v0"); a.e(f"v_lshlrev_b32 v{t2}, 3, v{t2}")
    a.srd(24, 12, 8192)
    a.e(f"buffer_load_dwordx2 {vr(TAP,2)}, v{t2}, s[24:27], s37 offen")
ZZ, TAP = 10, 12

def probe_base(a):
    a.e("s_and_b32 s42, s2, 31"); a.e("s_lshl_b32 s42, s42, 8"); a.e("s_lshr_b32 s43, s2, 5"); a.e("s_lshl_b32 s43, s43, 14"); a.e("s_add_u32 s42, s42, s43")
    a.e(f"s_add_u32 s42, s42, {LB0 + oSM + 131072}")
def front_arrive(a, wait):
    D = a.lab("fa"); t = 6
    a.e("s_and_b32 s36, s2, 7"); a.e("s_lshr_b32 s53, s2, 5"); a.e("s_lshl3_add_u32 s36, s36, s53"); a.e("s_lshl_b32 s36, s36, 7"); a.e(f"s_add_u32 s36, s36, {F_FRONT}")
    a.e(f"v_mov_b32 v{t}, 1"); a.e(f"v_mov_b32 v{t+1}, {LW+4}"); a.e(f"v_lshlrev_b32 v{t+3}, 13, v1")
    a.e("s_mov_b64 exec, 1")
    if wait is not None: a.e(f"s_waitcnt vmcnt({wait})")
    a.e("s_waitcnt lgkmcnt(0)")
    a.e(f"ds_add_rtn_u32 v{t+2}, v{t+1}, v{t}"); a.e(f"ds_read_b32 v{t+4}, v{t+1} offset:28")
    a.e("s_waitcnt lgkmcnt(0)")
    a.e(f"v_readfirstlane_b32 s54, v{t+2}"); a.e(f"v_readfirstlane_b32 s53, v{t+4}")
    a.e("s_cmp_lg_u32 s54, 7"); a.e(f"s_cbranch_scc1 {D}")
    a.e("s_mov_b64 exec, 0xffff"); a.e("s_or_b32 s53, s53, 1"); a.e(f"v_mov_b32 v{t}, s53")
    a.e(f"buffer_atomic_add v{t}, v{t+3}, s[56:59], s36 offen {SC}")
    a.e(f"{D}:"); a.e("s_mov_b64 exec, -1")
def front_a(a):
    T = Track(a); v = VA(14)
    t = v(); t2 = v(); ra = v(2, 2); go = v(); hw = v(); hw2 = v(); hoff = v(6, 2); d = v(18, 2); tf = v(4, 2); o = v(8, 4); z = v(4, 4)
    assert v.hi <= WAD
    v = VA(128); kr = v(10, 2); vv = v(8, 2); kf = v(20, 2); ks = v(16, 2); dm = 240
    a.e("s_cmp_lg_u32 s30, 4"); a.e("s_cbranch_scc1 HB_1")
    a.e(f"v_add_u32 v{t}, {LW}, v3"); a.e(f"ds_write_b32 v{t}, v{ZZ}")
    a.e("HB_1:")
    w_srd(a, 2, 88)
    a.e("s_lshl3_add_u32 s36, s2, s30"); a.e("s_lshl_b32 s36, s36, 10")
    w_srd(a, 1, 80); a.e("s_mov_b32 s50, s36")
    def wtouch():
        for d_ in (88, 80): T.vm(f"buffer_load_dwordx4 {vr(dm,4)}, v2, s[{d_}:{d_+3}], s50 offen")
    WT = env("WT", 1)
    if WT == 0: wtouch()
    w_lanes(a, (1,), t, t2)
    a.e("s_lshl_b32 s48, s29, 7"); a.e("s_lshl_b32 s36, s30, 14"); a.e("s_add_u32 s48, s48, s36"); a.e("s_lshl_b32 s49, s30, 10")
    a.e(f"s_add_u32 s48, s48, {MB}")
    w2q = list(range(9, 16))
    def w2(n):
        for _ in range(min(n, len(w2q))):
            j = w2q.pop(0)
            a.e(f"s_add_u32 s36, s67, {j & 7}"); a.e("s_and_b32 s36, s36, 7"); a.e("s_lshl_b32 s36, s36, 17"); a.e("s_add_u32 s36, s36, s48")
            a.e(f"s_add_u32 m0, s49, {WST + j * 8192}")
            T.vm(f"buffer_load_dwordx4 v{WVB[1]}, s[88:91], s36 offen lds")
    a.e("s_and_b32 s41, s30, 3"); chan_setup(a, 41)
    a.e("s_lshl_b32 s36, s39, 12")
    a.e("s_add_u32 s12, s14, s36"); a.e("s_addc_u32 s13, s15, 0"); a.e("s_mov_b32 s14, 4096"); a.e("s_mov_b32 s15, 0x20000")
    a.e("s_lshr_b32 s45, s30, 2"); a.e("s_lshl_b32 s45, s45, 11")
    for it in range(3):
        if it < 2: a.e(f"s_add_u32 s36, s45, {(1024*it - 64) & 0xffffffff:#x}")
        else: a.e(f"s_mov_b32 s36, {4096 - 64}")
        a.e(f"v_add_u32 v{hoff+2*it}, s36, v2"); a.e(f"v_add_u32 v{hoff+2*it+1}, 16, v{hoff+2*it}")
    def hld():
        for it in range(3):
            T.vm(f"buffer_load_dwordx4 {vr(d+6*it,4)}, v{hoff+2*it}, s[12:15], 0 offen {NTH}", "h")
            T.vm(f"buffer_load_dwordx2 {vr(d+6*it+4,2)}, v{hoff+2*it+1}, s[12:15], 0 offen {NTH}", "h")
    hld()
    if WT == 1: wtouch()
    a.e(f"v_add_u32 v{hw}, s40, v2"); a.e(f"v_add_u32 v{hw2}, s45, v{hw}")
    conv_setup(a); wr_addr(a, WAD, t); r_addr(a); w_lanes(a, (3, 4), t, t2)
    a.e("s_waitcnt lgkmcnt(0)"); conv_diag(a)
    a.srd(8, 6, 4 * MB)
    for i in range(4): a.e(f"v_mov_b32 v{z+i}, 0")
    a.e("s_lshr_b32 s36, s30, 2"); a.e("s_mul_i32 s36, s36, 720"); a.e(f"v_add_u32 v{t}, s36, v{hw}"); a.e("s_bfm_b64 exec, 45, 0")
    a.e(f"ds_write_b128 v{t}, {vr(z,4)} offset:{UOFF+64*US}"); a.e("s_mov_b64 exec, -1")
    a.e("s_and_b32 s34, s2, 7"); a.e("s_lshr_b32 s35, s2, 3")
    a.e(f"v_bfe_u32 v{t}, v1, 2, 3"); a.e(f"v_xor_b32 v{t}, s30, v{t}"); a.e(f"v_lshlrev_b32 v{ra}, 5, v{t}")
    a.e(f"v_and_b32 v{t}, 3, v1"); a.e(f"v_lshl_add_u32 v{ra}, v{t}, 3, v{ra}")
    a.e(f"v_bfe_u32 v{t}, v1, 2, 2"); a.e(f"v_lshl_add_u32 v{ra}, v{t}, 8, v{ra}"); a.e(f"v_lshrrev_b32 v{t}, 4, v1"); a.e(f"v_lshl_add_u32 v{ra}, v{t}, 12, v{ra}")
    a.e(f"v_add_u32 v{ra}, {KL}, v{ra}"); a.e(f"v_xor_b32 v{ra+1}, 128, v{ra}")
    a.srd(16, 4, 4 * MB, off=UT)
    a.e(f"v_bfe_u32 v{go}, v1, 2, 2"); a.e(f"v_lshlrev_b32 v{go}, 14, v{go}"); a.e(f"v_and_b32 v{t}, 3, v1"); a.e(f"v_lshl_add_u32 v{go}, v{t}, 6, v{go}")
    a.e(f"v_bfe_u32 v{t}, v1, 4, 1"); a.e(f"v_lshrrev_b32 v{t2}, 5, v1"); a.e(f"v_lshl_add_u32 v{t}, v{t}, 1, v{t2}"); a.e(f"v_xor_b32 v{t}, 3, v{t}"); a.e(f"v_lshl_add_u32 v{go}, v{t}, 4, v{go}")
    a.e("s_lshl3_add_u32 s42, s34, s30"); a.e("s_lshl_b32 s43, s42, 16"); a.e("s_sub_u32 s37, 31, s35"); a.e("s_lshl_b32 s37, s37, 9"); a.e("s_add_u32 s43, s43, s37")
    a.e("s_lshl_b32 s44, s42, 5"); a.e("s_add_u32 s44, s44, s35"); a.e("s_lshl_b32 s44, s44, 7"); a.e(f"s_add_u32 s44, s44, {F_KVT}")
    a.e(f"s_waitcnt vmcnt({len(T.vq)}) lgkmcnt(0)"); a.e("s_barrier")
    mstamp(a)
    for i in range(5): a.e(f"ds_read_b64_tr_b16 {vr(kr+2*i,2)}, v{ra+i//4} offset:{1024*i}")
    for i in range(4): a.e(f"ds_read_b64_tr_b16 {vr(vv+2*i,2)}, v{ra} offset:{VL - KL + 1024*i}")
    a.e("s_load_dword s52, s[84:85], 0")
    unpack(a, tf, tf + 1, TAP); unpack(a, tf + 2, tf + 3, TAP + 1)
    a.e("s_waitcnt lgkmcnt(0)")
    b = Rec()
    for i in range(10): unpack(b, kf + 2 * i, kf + 2 * i + 1, kr + i)
    for i in range(16): b.e(f"v_mul_f32 v{ks+i}, v{kf+i+1}, v{tf+3}")
    for j in (2, 1, 0):
        for i in range(16): b.e(f"v_fmac_f32 v{ks+i}, v{kf+i+4-j}, v{tf+j}")
    for i in range(8): unpack(b, kf + 2 * i, kf + 2 * i + 1, vv + i)
    for i in range(16): b.e(f"v_mul_f32 v{ks+i}, v{ks+i}, v{kf+i}")
    for i in range(8): b.e(f"v_cvt_pk_bf16_f32 v{o+i}, v{ks+8*(i//4)+7-2*(i%4)}, v{ks+8*(i//4)+6-2*(i%4)}")
    for x in b.l: a.e(x)
    a.e("s_cmp_lg_u32 s52, 0"); a.e("s_cbranch_scc1 HB_q")
    a.e("s_mov_b32 s53, 0")
    a.e("HB_p:")
    a.e(f"buffer_load_dword v{t}, v{ZZ}, s[84:87], 0 offen {SC}"); a.e("s_waitcnt vmcnt(0)")
    a.e(f"v_readfirstlane_b32 s52, v{t}"); a.e("s_cmp_lg_u32 s52, 0"); a.e("s_cbranch_scc1 HB_q")
    a.e("s_add_u32 s53, s53, 1"); a.e("s_cmp_lt_u32 s53, s61"); a.e("s_cbranch_scc1 HB_p")
    a.e("s_mov_b32 s52, 1"); a.e("s_mov_b32 s61, 0")
    a.e("HB_q:")
    for e in range(4): a.e(f"v_permlane32_swap_b32 v{o+e}, v{o+4+e}")
    a.e(f"v_mov_b32 v{t}, s52")
    for i in range(2): T.vm(f"buffer_store_dwordx4 {vr(o+4*i,4)}, v{go}, s[16:19], s43 offen offset:{256*(1-i)} {SC}", "u")
    a.e("s_lshl_b32 s37, s42, 7"); a.e("s_lshl_b32 s53, s35, 13"); a.e("s_add_u32 s37, s37, s53"); a.e(f"s_add_u32 s37, s37, {F_FRONT}")
    a.e("s_cmp_ge_u32 s35, 16"); a.e("s_cbranch_scc1 KV_ni")
    a.e("s_mov_b64 exec, 1"); a.e(f"buffer_store_dword v{t}, v{ZZ}, s[56:59], s37 offen {SC}"); a.e("s_mov_b64 exec, -1")
    a.e("KV_ni:")
    mstamp(a)
    cc = kr
    T.wv("h")
    FL = env("FL", 1)
    def flag():
        T.wv("u")
        a.e("s_mov_b64 exec, 1"); T.vm(f"buffer_store_dword v{t}, v{ZZ}, s[56:59], s44 offen {SC}"); a.e("s_mov_b64 exec, -1")
        mstamp(a)
    for it in range(3):
        if it == FL: flag()
        D = d + 6 * it; c0 = cc + 12 * it; c1 = c0 + 4; c2 = c0 + 8
        for k in range(4):
            a.e(f"v_alignbit_b32 v{c0+k}, v{D+k+1}, v{D+k}, 16")
            a.e(f"v_mov_b32 v{c1+k}, v{D+k+1}")
            a.e(f"v_alignbit_b32 v{c2+k}, v{D+k+2}, v{D+k+1}, 16")
        if it == 2: a.e("s_mov_b64 exec, 0xf")
        ad, o0 = (hw2, 1024 * it) if it < 2 else (hw, 4096)
        a.e(f"ds_write_b128 v{ad}, {vr(c0,4)} offset:{o0}")
        a.e(f"ds_write_b128 v{ad}, {vr(c1,4)} offset:{HSTR+o0}")
        a.e(f"ds_write_b128 v{ad}, {vr(c2,4)} offset:{2*HSTR+o0}")
        a.e(f"ds_write_b128 v{ad}, {vr(D+2,4)} offset:{3*HSTR+o0}")
    a.e("s_mov_b64 exec, -1")
    if FL == 3: flag()
    a.e("s_waitcnt lgkmcnt(0)"); a.e("s_barrier")
    mstamp(a)
    if WT == 2: wtouch()
    w2(16)
def load_q(a):
    for j in range(4): a.e(f"buffer_load_dwordx2 {vr(RXA+2*j,2)}, v{RRO}, s[8:11], 0 offen offset:{128*(j>>1) + 32*(j&1)} {NTH}")
def chan_setup(a, wsg):
    a.e("s_and_b32 s38, s2, 7"); a.e("s_lshl_b32 s38, s38, 5"); a.e("s_lshr_b32 s39, s2, 3"); a.e("s_add_u32 s38, s38, s39")
    a.e("s_lshl_b32 s39, s38, 2"); a.e(f"s_add_u32 s39, s39, s{wsg}")
    a.e(f"s_mul_i32 s40, s{wsg}, {CHB}")

def touch(a, which, nbytes, r):
    n = nbytes // 1024 // 512
    a.e(f"s_mov_b64 s[48:49], s[{66+2*which}:{67+2*which}]")
    a.e("s_lshl_b32 s45, s2, 1"); a.e("s_and_b32 s50, s30, 1"); a.e("s_add_u32 s45, s45, s50"); a.e(f"s_mul_i32 s45, s45, {n*1024}")
    a.e(f"s_mov_b32 s50, {nbytes}"); a.e("s_mov_b32 s51, 0x20000")
    for i in range(n):
        if i and i % 4 == 0: a.e("s_add_u32 s45, s45, 4096")
        a.e(f"buffer_load_dwordx4 {vr(r,4)}, v2, s[48:51], s45 offen offset:{(i&3)*1024}")
    return n

def cs_sum(a):
    N = 3584; CSEL, CFR, CAD, CACC, CO = 20, 48, 104, 108, 112
    X = a.lab("cs")
    a.e("s_cmp_lg_u32 s60, 0"); a.e(f"s_cbranch_scc1 {X}")
    a.e("s_and_b32 s35, s30, 1")
    nr, pos = w_bases(a, 3, CAD, 35, 7, CO, CO + 1)
    a.e("s_cmp_eq_u32 s28, s29"); a.e(f"s_cselect_b32 s36, 0, {CFG[3]['STB']}")
    for i in range(nr): a.e(f"v_add_u32 v{CAD+i}, s36, v{CAD+i}")
    for T in range(7):
        for kk in range(2):
            for h in range(2):
                r, imm = pos(T, kk, h)
                a.e(f"ds_read_b64_tr_b16 {vr(CFR+8*T+4*kk+2*h,2)}, v{CAD + r} offset:{imm}")
    a.e(f"v_and_b32 v{CO}, 15, v1"); a.e(f"v_mov_b32 v{CO+1}, 0x3f803f80")
    for T in range(7):
        a.e(f"v_cmp_eq_u32 vcc, {T}, v{CO}")
        for e in range(4): a.e(f"v_cndmask_b32 v{CSEL+4*T+e}, 0, v{CO+1}, vcc")
    a.e(f"v_and_b32 v{CO+2}, 48, v1"); a.e(f"v_lshl_add_u32 v{CO+2}, v{CO}, 6, v{CO+2}")
    a.e(f"v_mov_b32 v{CO+1}, 0x7f000000")
    a.e(f"v_cmp_gt_u32 vcc, 7, v{CO}"); a.e(f"v_cndmask_b32 v{CO+2}, v{CO+1}, v{CO+2}, vcc")
    a.srd(20, 4, 16 * N * 4, off=CSP3)
    a.e(f"s_mul_i32 s36, s28, {N*4}"); a.e("s_lshl1_add_u32 s35, s29, s35"); a.e(f"s_mul_i32 s35, s35, {7*64}"); a.e("s_add_u32 s35, s35, s36")
    a.e("s_waitcnt lgkmcnt(0)")
    for i in range(14): a.e(f"v_mfma_f32_16x16x32_bf16 {vr(CACC,4)}, {vr(CFR+4*i,4)}, {vr(CSEL+4*(i//2),4)}, {vr(CACC,4) if i else 0}")
    a.e(f"buffer_store_dwordx4 {vr(CACC,4)}, v{CO+2}, s[20:23], s35 offen {SC}")
    a.e(f"{X}:")
def cs_signal(a):
    X = a.lab("cs")
    a.e("s_cmp_lg_u32 s60, 0"); a.e(f"s_cbranch_scc1 {X}")
    a.e("s_lshl_b32 s36, s29, 7"); a.e(f"s_add_u32 s36, s36, {F_CS}")
    publish(a, None, 1, 14, off=36, wait=None)
    a.e(f"{X}:")

def wr_addr(a, ad, t):
    a.e(f"v_lshrrev_b32 v{t}, 2, v1"); a.e(f"v_lshlrev_b32 v{ad}, 7, v{t}"); a.e(f"v_bfe_u32 v{t}, v{t}, 1, 2")
    a.e("s_and_b32 s35, s30, 2"); a.e(f"v_and_b32 v{t+1}, 1, v1"); a.e(f"v_or_b32 v{t+1}, s35, v{t+1}"); a.e(f"v_xor_b32 v{t}, v{t}, v{t+1}")
    a.e(f"v_lshl_add_u32 v{ad}, v{t}, 5, v{ad}"); a.e(f"v_and_b32 v{t}, 2, v1"); a.e(f"v_lshl_add_u32 v{ad}, v{t}, 2, v{ad}")
    a.e("s_and_b32 s35, s30, 1"); a.e("s_lshl_b32 s35, s35, 4"); a.e(f"s_add_u32 s35, s35, {WST}")
    a.e(f"v_add_u32 v{ad}, s35, v{ad}"); a.e(f"v_add_u32 v{ad+1}, {64*KB}, v{ad}")
def wreg(j, kk): return WR0 + 16 * (j & 7) + 8 * kk + 4 * (j >> 3)
def wr_read(a, ad, js):
    for j in js:
        for kk in range(2):
            for h in range(2): a.e(f"ds_read_b64_tr_b16 {vr(wreg(j,kk)+2*h,2)}, v{ad+(j>>3)} offset:{(j&7)*8192 + (32*kk+16*h)*128}")

def front_b(a):
    pt, vd = 6, 8
    a.e("s_and_b32 s36, s30, 3"); a.e("s_lshl_b32 s36, s36, 14"); a.e("s_lshl_b32 s48, s29, 7"); a.e("s_add_u32 s48, s48, s36")
    a.e("s_waitcnt vmcnt(0)")
    a.e("s_barrier")
    mstamp(a)
    wr_read(a, WAD, range(9, 16))
    a.e("s_cmp_lg_u32 s30, 4"); a.e("s_cbranch_scc1 FB_ni")
    a.e(f"v_mov_b32 v{vd}, s52")
    group_off(a, 37, 28); a.e("s_andn2_b32 s37, s37, 0x2000"); a.e("s_lshl_b32 s53, s29, 7"); a.e("s_add_u32 s37, s37, s53"); a.e(f"s_add_u32 s37, s37, {oSM}")
    a.e(f"v_and_b32 v{vd+1}, 1, v1"); a.e(f"v_lshlrev_b32 v{vd+1}, 13, v{vd+1}"); a.e(f"v_bfe_u32 v{vd+2}, v1, 1, 1"); a.e(f"v_lshl_add_u32 v{vd+1}, v{vd+2}, 26, v{vd+1}")
    a.e(f"v_lshrrev_b32 v{vd+2}, 2, v1"); a.e(f"v_lshl_add_u32 v{vd+1}, v{vd+2}, 11, v{vd+1}")
    a.e("s_mov_b64 exec, 0xff"); a.e(f"buffer_store_dword v{vd}, v{vd+1}, s[56:59], s37 offen {SC}")
    a.e("s_cmp_lg_u32 s28, 0"); a.e("s_cbranch_scc1 FB_n2")
    a.e(f"s_add_u32 s37, s53, {F_CS}"); a.e("s_mov_b64 exec, 1"); a.e(f"buffer_store_dword v{vd}, v{vd+1}, s[56:59], s37 offen {SC}")
    a.e("FB_n2:")
    a.e("s_mov_b64 exec, -1")
    a.e("FB_ni:")
    a.e(f"s_cmp_ge_u32 s2, {NVOTE}"); a.e("s_cbranch_scc1 KV_n3"); a.e("s_cmp_lg_u32 s30, 5"); a.e("s_cbranch_scc1 KV_n3")
    probe_base(a)
    a.e(f"v_and_b32 v{vd}, 1, v1"); a.e(f"v_lshlrev_b32 v{vd}, 13, v{vd}"); a.e(f"v_lshrrev_b32 v{vd+1}, 1, v1"); a.e(f"v_lshl_add_u32 v{vd}, v{vd+1}, 7, v{vd}")
    a.e("s_mov_b64 exec, 0xf"); a.e(f"buffer_store_dword v{vd}, v{vd}, s[56:59], s42 offen {SC}"); a.e("s_mov_b64 exec, -1")
    a.e("KV_n3:")
    load_q(a)
    def raw(srd, reg):
        for j in range(9):
            a.e(f"s_add_u32 s36, s67, {j & 7}"); a.e("s_and_b32 s36, s36, 7"); a.e("s_lshl_b32 s36, s36, 17"); a.e("s_add_u32 s36, s36, s48")
            if j == 8: a.e(f"s_add_u32 s36, s36, {MB}")
            a.e(f"buffer_load_dwordx4 {vr(reg(j,0),4)}, v{WVB[1]}, s[{srd}:{srd+3}], s36 offen"); a.e("s_add_u32 s36, s36, 65536")
            a.e(f"buffer_load_dwordx4 {vr(reg(j,1),4)}, v{WVB[1]}, s[{srd}:{srd+3}], s36 offen")
    raw(88, wreg)
    lds_inc(a, LW + 20, pt)
    raw(80, w1raw)
    a.e("s_waitcnt vmcnt(40)")
    a.e(f"s_cmp_ge_u32 s2, {NVOTE}"); a.e("s_cbranch_scc1 FB_np"); a.e("s_cmp_lg_u32 s30, 5"); a.e("s_cbranch_scc1 FB_np")
    probe_base(a)
    a.e("s_mov_b32 s46, -1"); a.e("s_mov_b32 s47, -1"); a.e("s_mov_b32 s43, 0")
    a.e("FB_ml:")
    for i in range(2):
        a.e("s_memtime s[34:35]"); a.e("s_waitcnt lgkmcnt(0)")
        a.e(f"s_load_dword s32, s[4:5], s42 offset:{i * 8192} glc"); a.e("s_waitcnt lgkmcnt(0)")
        a.e("s_memtime s[36:37]"); a.e("s_waitcnt lgkmcnt(0)")
        a.e("s_sub_u32 s36, s36, s34"); a.e(f"s_min_u32 s{46+i}, s{46+i}, s36")
    a.e("s_add_u32 s42, s42, 128"); a.e("s_add_u32 s43, s43, 1"); a.e(f"s_cmp_lt_u32 s43, {NSAMP}"); a.e("s_cbranch_scc1 FB_ml")
    a.e("s_cmp_lt_u32 s47, s46"); a.e("s_cselect_b32 s45, 1, 0")
    a.e("s_lshr_b32 s46, s28, 2"); a.e("s_xor_b32 s45, s45, s46"); a.e("s_and_b32 s45, s45, 1"); a.e("s_lshl_b32 s45, s45, 8")
    lds_set(a, LW + 32, "s45", pt)
    a.e("FB_np:")
    front_arrive(a, None)
    lds_spin(a, LW + 20, 4, pt)
    a.e("s_and_b32 s49, s30, 3"); a.e("s_lshl_b32 s49, s49, 10")
    for j in range(9, 16):
        a.e(f"s_add_u32 s36, s67, {j & 7}"); a.e("s_and_b32 s36, s36, 7"); a.e("s_lshl_b32 s36, s36, 17"); a.e("s_add_u32 s36, s36, s48"); a.e(f"s_add_u32 s36, s36, {MB}")
        for kk in range(2):
            a.e(f"s_add_u32 m0, s49, {WST + j * 8192 + 4096 * kk}")
            a.e(f"buffer_load_dwordx4 v{WVB[1]}, s[80:83], s36 offen lds")
            if kk == 0: a.e("s_add_u32 s36, s36, 65536")
    mstamp(a)
    stouch(a, 3, env("ST3", 0))
    a.e("s_waitcnt vmcnt(0)")
    mstamp(a)
    lds_spin(a, LW + 24, 4, pt, nap=2)
def stouch(a, which, gran):
    if not gran: return
    L = a.lab("st")
    a.e("s_and_b32 s36, s30, 3"); a.e("s_lshl2_add_u32 s36, s2, s36"); a.e("s_mul_i32 s36, s36, 7168"); a.e("s_add_u32 s37, s36, 7168")
    a.e(f"{L}:")
    for i in range(7): a.e(f"s_load_dword s32, s[{66+2*which}:{67+2*which}], s36 offset:{gran*i}")
    a.e(f"s_add_u32 s36, s36, {7*gran}"); a.e("s_cmp_lt_u32 s36, s37"); a.e(f"s_cbranch_scc1 {L}")
def w1raw(j, kk):
    i = 2 * j + kk
    return 12 + 4 * i if i < 15 else RXB + 4 * (i - 15)
def front_c(a):
    t = 6
    a.e("s_and_b32 s36, s30, 3"); a.e("s_lshl_b32 s36, s36, 10"); a.e(f"s_add_u32 s36, s36, {WST}"); a.e(f"v_add_u32 v{t+2}, s36, v2"); a.e(f"v_add_u32 v{t+3}, {64*KB}, v{t+2}")
    def dump(reg):
        for j in range(9):
            for kk in range(2): a.e(f"ds_write_b128 v{t+2+(j>>3)}, {vr(reg(j,kk),4)} offset:{(j&7)*8192 + 4096*kk}")
    dump(wreg)
    lbar(a, 2, t, LW + 20)
    wr_read(a, WAD, range(9))
    lbar(a, 3, t, LW + 20)
    mstamp(a)
    dump(w1raw)
    a.e("s_waitcnt lgkmcnt(0)")

CV = {}
def conv_setup(a):
    v = VA(216); lane = 1
    t = v(); t2 = v(); t3 = v(); uo = v(3, 1); aa = v(); ba = v(); J = v(); G = v(); fl = v(); dop = v(8, 4)
    assert v.hi <= 240
    CV.update(uo=uo, aa=aa, ba=ba, J=J, G=G, fl=fl, dop=dop, t=t)
    a.e(f"s_load_dwordx2 s[34:35], s[0:1], {A_SSMD}")
    a.e("s_lshl_b32 s36, s38, 14"); a.e(f"s_add_u32 s36, s36, {UT}")
    a.e("s_add_u32 s20, s4, s36"); a.e("s_addc_u32 s21, s5, 0"); a.e("s_mov_b32 s22, 16384"); a.e("s_mov_b32 s23, 0x20000")
    a.e("s_lshl_b32 s36, s30, 6")
    assert all((p * 171) >> 10 == p // 6 for p in range(192))
    for it in range(3):
        a.e(f"v_add_u32 v{t}, {64*it}, v{lane}"); a.e(f"v_mul_u32_u24 v{t2}, 171, v{t}"); a.e(f"v_lshrrev_b32 v{t2}, 10, v{t2}")
        a.e(f"v_lshlrev_b32 v{uo+it}, 8, v{t2}"); a.e(f"v_mul_u32_u24 v{t2}, 6, v{t2}"); a.e(f"v_sub_u32 v{t}, v{t}, v{t2}")
        a.e(f"v_lshl_add_u32 v{uo+it}, v{t}, 4, v{uo+it}"); a.e(f"v_and_b32 v{t}, 4, v{t}"); a.e(f"v_lshl_add_u32 v{uo+it}, v{t}, 20, v{uo+it}")
        a.e(f"v_add_u32 v{uo+it}, s36, v{uo+it}")
    a.e("s_waitcnt lgkmcnt(0)")
    a.e("s_lshr_b32 s36, s39, 1"); a.e("s_lshl_b32 s36, s36, 2"); a.e("s_load_dword s41, s[34:35], s36")
    a.e(f"v_and_b32 v{J}, 15, v{lane}"); a.e(f"v_lshrrev_b32 v{G}, 4, v{lane}")
    a.e(f"v_and_b32 v{t}, 3, v{J}"); a.e(f"v_mul_u32_u24 v{aa}, {HSTR}, v{t}")
    a.e(f"v_lshl_add_u32 v{aa}, v{G}, 4, v{aa}"); a.e(f"v_lshrrev_b32 v{t}, 2, v{J}"); a.e(f"v_lshl_add_u32 v{aa}, v{t}, 3, v{aa}")
    a.e(f"v_add_u32 v{aa}, s40, v{aa}")
    a.e(f"v_sub_u32 v{t}, 15, v{J}"); a.e(f"v_mul_u32_u24 v{ba}, {US}, v{t}"); a.e(f"v_add_u32 v{ba}, s40, v{ba}")
    a.e(f"v_lshl_add_u32 v{ba}, v{G}, 4, v{ba}")
    a.e("s_lshr_b32 s36, s38, 2"); a.e("s_lshl_b32 s36, s36, 12"); a.e(f"s_add_u32 s36, s36, {F_KVT}")
    a.e(f"v_lshlrev_b32 v{fl}, 7, v{lane}"); a.e(f"v_add_u32 v{fl}, s36, v{fl}")
def conv_diag(a):
    t, J, G, dop = CV["t"], CV["J"], CV["G"], CV["dop"]; t2, t3 = t + 1, t + 2
    a.e("s_bitcmp1_b32 s39, 0"); a.e("s_cselect_b32 s36, 0, 16"); a.e("s_lshl_b32 s41, s41, s36"); a.e("s_and_b32 s41, s41, 0xffff0000"); a.e("s_lshr_b32 s42, s41, 16")
    a.e(f"v_lshl_add_u32 v{t}, v{G}, 3, v{J}"); a.e(f"v_sub_u32 v{t}, 31, v{t}"); a.e(f"v_and_b32 v{t2}, 1, v{t}"); a.e(f"v_cmp_eq_u32 vcc, 1, v{t2}")
    a.e(f"v_mov_b32 v{t2}, s42"); a.e(f"v_mov_b32 v{t3}, s41"); a.e(f"v_cndmask_b32 v{t2}, v{t2}, v{t3}, vcc"); a.e(f"v_ashrrev_i32 v{t}, 1, v{t}")
    for i in range(8): a.e(f"v_cmp_eq_u32 vcc, {8*(i//4) + i%4}, v{t}"); a.e(f"v_cndmask_b32 v{dop+i}, 0, v{t2}, vcc")

def front_conv(a):
    v = VA(6, skip=True); lane = 1; l16 = 2
    t = v(); pt = v(4, 2)
    uo, aa, ba, J, G, fl, dop = [CV[k] for k in "uo aa ba J G fl dop".split()]
    ya = v(4, 1); ta = v()
    acc = v(32, 4)
    fa = v(64, 4); fb = v(32, 4)
    def rdA(p, o):
        return [f"ds_read_b64 {vr(fa+32*p+8*s_+4*mt+2*h,2)}, v{aa} offset:{64*(o+16*s_) + 32*mt + 8*h}" for s_ in range(4) for mt in range(2) for h in range(2)]
    def rdB(p, o):
        return [f"ds_read_b128 {vr(fb+16*p+4*k,4)}, v{ba} offset:{UOFF + (48 - 16*k + o)*US}" for k in range(4)]
    a.e("s_cmp_lg_u32 s30, 0"); a.e("s_cbranch_scc1 CV_w")
    poll_core(a, pt, fl, 0xffffffff)
    lds_set(a, LW + 16, 1, pt)
    a.e("CV_w:")
    a.e(f"s_add_u32 m0, s40, {UOFF}"); a.e("s_movk_i32 s36, 8192")
    lds_spin(a, LW + 16, 1, pt)
    mstamp(a)
    for it in range(6):
        a.e(f"buffer_load_dwordx4 v{uo+it%3}, s[20:23], {'s36' if it > 2 else 0} offen {SC} lds")
        if it < 5: a.e("s_add_u32 m0, m0, 1024")
    a.e("s_waitcnt vmcnt(0)"); a.e("s_barrier")
    mstamp(a)
    load_q(a)
    for x in rdB(0, 0) + rdA(0, 0): a.e(x)
    a.e("s_waitcnt lgkmcnt(15)")
    for c_ in range(4):
        for mt in range(2): a.e(f"v_mfma_f32_16x16x32_bf16 {vr(acc+8*c_+4*mt,4)}, {vr(dop+4*mt,4)}, {vr(fb+4*c_,4)}, 0")
    def step(p, nxt, tail):
        a.e("s_waitcnt lgkmcnt(0)")
        mf = [(c_, s_, mt) for s_ in range(4) for mt in range(2) for c_ in range(s_, 4)]
        for i, (c_, s_, mt) in enumerate(mf):
            A = acc + 8 * c_ + 4 * mt
            a.e(f"v_mfma_f32_16x16x32_bf16 {vr(A,4)}, {vr(fa+32*p+8*s_+4*mt,4)}, {vr(fb+16*p+4*(c_-s_),4)}, {vr(A,4)}")
            for _ in range(2 if i % 3 == 0 else 1):
                if nxt: a.e(nxt.pop(0))
                elif tail and i < 19: a.e(tail.pop(0))
        assert not nxt and not tail
    a.e("s_mov_b32 s43, 0")
    NU = env("NU", 3)
    if NU:
        a.e("CV_r:")
        for p in range(2):
            step(p, [], [])
            for x in rdB(1 - p, p + 1) + rdA(1 - p, p + 1): a.e(x)
        for x in [f"v_add_u32 v{aa}, 128, v{aa}", f"v_add_u32 v{ba}, {2*US}, v{ba}", "s_add_u32 s43, s43, 1", f"s_cmp_lt_u32 s43, {NU}"]: a.e(x)
        a.e("s_cbranch_scc1 CV_r")
    a.e("CV_l:")
    step(0, rdB(1, 1) + rdA(1, 1), [])
    step(1, rdB(0, 2) + rdA(0, 2), [f"v_add_u32 v{aa}, 128, v{aa}", f"v_add_u32 v{ba}, {2*US}, v{ba}", "s_add_u32 s43, s43, 1", "s_cmp_lt_u32 s43, 8"])
    a.e("s_cbranch_scc1 CV_l")
    mstamp(a)
    a.e(f"s_mul_i32 s36, s30, {CHB+64}")
    a.e(f"v_mul_u32_u24 v{ya}, 72, v{J}"); a.e(f"v_lshl_add_u32 v{ya}, v{G}, 2, v{ya}"); a.e(f"v_add_u32 v{ya}, s36, v{ya}")
    for c_ in range(1, 4): a.e(f"v_add_u32 v{ya+c_}, {c_*16*72}, v{ya}")
    a.e(f"v_bfe_u32 v{t}, v{lane}, 2, 2"); a.e(f"v_mul_u32_u24 v{ta}, {CHB+64}, v{t}")
    a.e(f"v_mul_u32_u24 v{t}, 72, v{G}"); a.e(f"v_add_u32 v{ta}, v{ta}, v{t}")
    a.e(f"v_and_b32 v{t}, 3, v{lane}"); a.e(f"v_lshl_add_u32 v{ta}, v{t}, 3, v{ta}")
    a.e(f"s_mul_i32 s36, s30, {16*72}"); a.e(f"v_add_u32 v{ta}, s36, v{ta}")
    a.e("s_waitcnt lgkmcnt(0)")
    for c_ in range(4):
        for mt in range(2):
            A = acc + 8 * c_ + 4 * mt
            a.e(f"v_cvt_pk_bf16_f32 v{A}, v{A}, v{A+2}"); a.e(f"v_cvt_pk_bf16_f32 v{A+1}, v{A+1}, v{A+3}")
            a.e(f"ds_write2_b32 v{ya+c_}, v{A}, v{A+1} offset0:{4*mt} offset1:{4*mt+8}")
    a.srd(12, 4, 4 * MB, off=Y)
    a.e("s_lshl_b32 s36, s38, 14"); a.e("s_lshl_b32 s37, s30, 12"); a.e("s_add_u32 s36, s36, s37")
    lbar(a, 1, pt)
    for i in range(8): a.e(f"ds_read_b64_tr_b16 {vr(fa+2*i,2)}, v{ta} offset:{288*(i//2) + 32*(i&1)}")
    for i in range(4):
        a.e(f"s_waitcnt lgkmcnt({6-2*i})")
        a.e(f"buffer_store_dwordx4 {vr(fa+4*i,4)}, v{l16}, s[12:15], s36 offen offset:{1024*i} {SC}")
    assert v.hi <= 216

def r_addr(a):
    t, t2, I, fo, ro, yo, xo = RT, RT + 1, RI, RFO, RRO, RYO, RXO
    a.e(f"v_and_b32 v{I}, 7, v0")
    a.e(f"v_lshrrev_b32 v{t}, 6, v0"); a.e(f"v_lshlrev_b32 v{t}, 4, v{t}"); a.e(f"v_bfe_u32 v{t2}, v0, 3, 3"); a.e(f"v_add_u32 v{t}, v{t}, v{t2}")
    a.e("s_lshr_b32 s78, s29, 1"); a.e("s_lshl_b32 s78, s78, 16"); a.e("s_and_b32 s79, s29, 1"); a.e("s_lshl_b32 s79, s79, 7"); a.e("s_add_u32 s78, s78, s79")
    a.e("s_lshr_b32 s79, s30, 1"); a.e("s_lshl_b32 s79, s79, 13"); a.e("s_add_u32 s78, s78, s79")
    a.e(f"v_lshlrev_b32 v{fo}, 8, v{t}"); a.e(f"v_lshl_add_u32 v{fo}, v{I}, 4, v{fo}"); a.e(f"v_add_u32 v{fo}, s78, v{fo}")
    a.e("s_lshl_b32 s78, s28, 7"); a.e("s_lshl_b32 s79, s29, 3"); a.e("s_add_u32 s78, s78, s79")
    a.e(f"v_add_u32 v{yo}, s78, v{I}"); a.e(f"v_lshlrev_b32 v{ro}, 11, v{yo}")
    rowaddr(a, xo, yo, t2); a.e(f"v_lshl_add_u32 v{xo}, v{t}, 4, v{xo}")
    a.e(f"v_lshrrev_b32 v{t2}, 2, v{t}"); a.e(f"v_lshlrev_b32 v{t2}, 3, v{t2}"); a.e(f"v_and_b32 v{t}, 3, v{t}"); a.e(f"v_add_u32 v{t}, v{t}, v{t2}")
    a.e(f"v_lshl_add_u32 v{ro}, v{t}, 3, v{ro}")
    a.e(f"v_lshlrev_b32 v{yo}, 3, v{yo}"); a.e(f"v_lshl_add_u32 v{yo}, v{t}, 14, v{yo}")
def load_y(a):
    a.srd(80, 4, 4 * MB, off=Y)
    for j in range(2):
        for hh in range(2):
            a.e(f"s_mov_b32 s78, {(16*j + 4*hh)*16384}")
            a.e(f"buffer_load_dwordx2 {vr(RYY+4*j+2*hh,2)}, v{RYO}, s[80:83], s78 offen {SC}")
def r_pre(a):
    r_addr(a)
    x3_srd(a, 84); lsrd(a, 88, oX1P, XSZ)
    for j in range(2):
        a.e(f"buffer_load_dwordx4 {vr(RXA+4*j,4)}, v{RXO}, s[84:87], 0 offen offset:{128*j} {SC}")
        a.e(f"buffer_load_dwordx4 {vr(RXB+4*j,4)}, v{RFO}, s[88:91], 0 offen offset:{2048*j} {SC}")
    load_y(a)

def w3_sub(a, which):
    w_srd(a, 3, 8)
    a.e("s_add_u32 s36, s29, s88"); a.e("s_and_b32 s36, s36, 15")
    a.e("s_cmp_lg_u32 s28, s29"); a.e("s_cselect_b32 s89, s88, 0"); a.e("s_cmp_eq_u32 s89, 1"); a.e("s_cselect_b32 s36, s28, s36")
    a.e("s_and_b32 s89, s30, 3"); a.e("s_lshl2_add_u32 s36, s36, s89")
    a.e(f"s_mul_i32 s90, s36, {16*7168}"); a.e(f"s_mul_i32 s36, s29, 448"); a.e("s_add_u32 s90, s90, s36")
    a.e("s_lshl2_add_u32 s89, s88, s89"); a.e(f"s_mul_i32 s89, s89, 7168"); a.e(f"s_add_u32 m0, s89, {CFG[3]['WB']}")
    for i in range(7):
        if i: a.e("s_add_u32 m0, m0, 1024")
        a.e(f"buffer_load_dwordx4 v{WVB[3]+i}, s[8:11], s90 offen lds")
def w3_stage(a, k):
    a.e(f"s_mov_b32 s88, {k}"); call_issue(a, w3_sub, 3)
def w3_first(a):
    n = 0
    for k in range(2):
        if W3AT[k] < 0: w3_stage(a, k); n += 7
    return n
def r_stage(a):
    v = VA(6)
    t = v(); t2 = v(); I = RI; fo = RFO; pt = v(4, 2)
    xa = RXA; xb = RXB; yy = RYY; yf = RYF; x = v(16, 2); w = v(16, 2); tmp = v()
    S = v(2, 2); pp = v(2, 2); qq = v(2, 2); st = v(16, 4); rsd = st; mean = v(2, 2); rs = mean + 1; var = v(); sw = v(); sr = v(); wad = v(2, 2)
    assert v.hi <= RB0, v.hi
    def part(src, n):
        a.e(f"v_pk_add_f32 {vr(pp,2)}, {vr(src,2)}, {vr(src+2,2)}"); a.e(f"v_pk_mul_f32 {vr(qq,2)}, {vr(src,2)}, {vr(src,2)}")
        for i in range(1, 8):
            if i > 1: a.e(f"v_pk_add_f32 {vr(pp,2)}, {vr(pp,2)}, {vr(src+2*i,2)}")
            a.e(f"v_pk_fma_f32 {vr(qq,2)}, {vr(src+2*i,2)}, {vr(src+2*i,2)}, {vr(qq,2)}")
        a.e(f"v_add_f32 v{S}, v{pp}, v{pp+1}"); a.e(f"v_add_f32 v{S+1}, v{qq}, v{qq+1}")
        for k in range(2): a.e(f"v_add_f32_dpp v{S+k}, v{S+k}, v{S+k} row_ror:8 row_mask:0xf bank_mask:0xf")
        for op in ("v_permlane16_swap_b32", "v_permlane32_swap_b32"):
            for k in range(2): a.e(f"v_mov_b32 v{pp+k}, v{S+k}")
            for k in range(2): a.e(f"{op} v{S+k}, v{pp+k}")
            a.e(f"v_pk_add_f32 {vr(S,2)}, {vr(S,2)}, {vr(pp,2)}")
        a.e(f"ds_write_b64 v{sw}, {vr(S,2)} offset:{n*512}")
    def comb(n):
        for k in range(4): a.e(f"ds_read_b128 {vr(st+4*k,4)}, v{sr} offset:{n*512+16*k}")
        a.e("s_waitcnt lgkmcnt(0)")
        for k in range(4): a.e(f"v_pk_add_f32 {vr(st+4*k,2)}, {vr(st+4*k,2)}, {vr(st+4*k+2,2)}")
        a.e(f"v_pk_add_f32 {vr(st,2)}, {vr(st,2)}, {vr(st+4,2)}"); a.e(f"v_pk_add_f32 {vr(st+8,2)}, {vr(st+8,2)}, {vr(st+12,2)}")
        a.e(f"v_pk_add_f32 {vr(st,2)}, {vr(st,2)}, {vr(st+8,2)}")
        a.e(f"v_mul_f32 v{mean}, {f32(1/1024)}, v{st}"); a.e(f"v_mul_f32 v{var}, {f32(1/1024)}, v{st+1}")
        a.e(f"v_fma_f32 v{var}, -v{mean}, v{mean}, v{var}"); a.e(f"v_max_f32 v{var}, 0, v{var}")
    def w1_in(cs):
        X = a.lab("w1in")
        a.e("s_cmp_ge_u32 s30, 4"); a.e(f"s_cbranch_scc1 {X}")
        if not cs: wr_read(a, wad, range(16))
        if cs:
            one = st; ca = st + 4
            for i in range(4): a.e(f"v_mov_b32 v{one+i}, 0x3f803f80")
            a.e("s_lshl_b32 s35, s30, 6"); a.e(f"s_add_u32 s35, s35, {CSO[1]}")
            a.e(f"v_and_b32 v{st+12}, 48, v1"); a.e(f"v_add_u32 v{st+12}, s35, v{st+12}")
            a.e("s_waitcnt lgkmcnt(0)")
            for b in range(32): a.e(f"v_mfma_f32_16x16x32_bf16 {vr(ca,4)}, {vr(WR0+4*b,4)}, {vr(one,4)}, {vr(ca,4) if b else 0}")
            a.e("s_mov_b32 exec_lo, 0x10001"); a.e("s_mov_b32 exec_hi, 0x10001")
            a.e(f"ds_write_b128 v{st+12}, {vr(ca,4)}")
            a.e("s_mov_b64 exec, -1"); a.e("s_waitcnt lgkmcnt(0)")
        a.e(f"{X}:")
    SUBM = f"{vr(mean,2)} op_sel_hi:[1,0] neg_lo:[0,1] neg_hi:[0,1]"; MULR = f"{vr(mean,2)} op_sel:[0,1] op_sel_hi:[1,1]"
    a.e(f"v_lshlrev_b32 v{sr}, 6, v{I}"); a.e(f"v_add_u32 v{sr}, {AUX+2048}, v{sr}")
    a.e(f"s_lshl_b32 s35, s30, 3"); a.e(f"v_add_u32 v{sw}, s35, v{sr}")
    wr_addr(a, wad, t)
    a.e(f"s_cmp_eq_u32 s60, 0"); a.e(f"s_cbranch_scc1 R_l0")
    lsrd(a, 8, oP0, XSZ, prev=True); lsrd(a, 12, oP1, XSZ, prev=True)
    a.e("s_waitcnt vmcnt(0)")
    for i in range(8):
        unpack(a, yf + 2 * i, yf + 2 * i + 1, yy + i)
        unpack(a, rsd + 2 * i, rsd + 2 * i + 1, xa + i); unpack(a, w + 2 * i, w + 2 * i + 1, xb + i)
        a.e(f"v_pk_add_f32 {vr(rsd+2*i,2)}, {vr(rsd+2*i,2)}, {vr(w+2*i,2)}")
    poll(a, ST_G4, pt, prev=True)
    mstamp(a)
    for j in range(2):
        a.e(f"buffer_load_dwordx4 {vr(xa+4*j,4)}, v{fo}, s[8:11], 0 offen offset:{2048*j} {SC}")
        a.e(f"buffer_load_dwordx4 {vr(xb+4*j,4)}, v{fo}, s[12:15], 0 offen offset:{2048*j} {SC}")
    w1_in(False)
    for i in range(8):
        if i % 4 == 0: a.e(f"s_waitcnt vmcnt({2 - i // 2})")
        unpack(a, x + 2 * i, x + 2 * i + 1, xa + i); unpack(a, w + 2 * i, w + 2 * i + 1, xb + i)
        a.e(f"v_pk_add_f32 {vr(x+2*i,2)}, {vr(x+2*i,2)}, {vr(w+2*i,2)}")
        a.e(f"v_pk_add_f32 {vr(x+2*i,2)}, {vr(x+2*i,2)}, {vr(rsd+2*i,2)}")
        round2(a, x + 2 * i, x + 2 * i + 1, tmp)
    part(x, 0)
    a.e("s_waitcnt lgkmcnt(0)"); a.e("s_barrier")
    comb(0)
    ln_finish(a, mean, var, rs)
    x3_srd(a, 20)
    for i in range(8):
        D = w + 2 * i
        a.e(f"v_pk_add_f32 {vr(D,2)}, {vr(x+2*i,2)}, {SUBM}"); a.e(f"v_pk_mul_f32 {vr(D,2)}, {vr(D,2)}, {MULR}")
        a.e(f"v_pk_fma_f32 {vr(x+2*i,2)}, {vr(D,2)}, {vr(yf+2*i,2)}, {vr(x+2*i,2)}")
        a.e(f"v_cvt_pk_bf16_f32 v{xa+i}, v{x+2*i}, v{x+2*i+1}")
        if i % 4 == 3: a.e(f"buffer_store_dwordx4 {vr(xa+i-3,4)}, v{RXO}, s[20:23], 0 offen offset:{128*(i//4)} {SC}")
    a.e("s_branch R_s2")
    a.e("R_l0:")
    for i in range(8): unpack(a, x + 2 * i, x + 2 * i + 1, xa + i)
    part(x, 0)
    a.e("s_waitcnt lgkmcnt(0)"); a.e("s_barrier")
    comb(0)
    w1_in(False)
    ln_finish(a, mean, var, rs)
    for i in range(8):
        D = w + 2 * i
        a.e(f"v_pk_add_f32 {vr(D,2)}, {vr(x+2*i,2)}, {SUBM}"); round2(a, D, D + 1, tmp)
        a.e(f"v_pk_mul_f32 {vr(D,2)}, {vr(D,2)}, {MULR}"); round2(a, D, D + 1, tmp)
    mstamp(a)
    a.e("s_cmp_lg_u32 s30, 0"); a.e("s_cbranch_scc1 R_fw")
    a.e("s_lshl_b32 s36, s28, 13"); a.e(f"s_add_u32 s36, s36, {F_FRONT}")
    a.e(f"v_lshlrev_b32 v{st+4}, 7, v1"); a.e(f"v_add_u32 v{st+4}, s36, v{st+4}")
    a.e("s_mov_b32 s53, 0")
    a.e("R_fp:")
    a.e(f"buffer_load_dword v{st}, v{st+4}, s[56:59], 0 offen {SC}"); a.e("s_waitcnt vmcnt(0)")
    a.e(f"v_subrev_u32 v{st}, s52, v{st}"); a.e(f"v_and_b32 v{st+1}, 0xfffff8ff, v{st}"); a.e(f"v_cmp_eq_u32 vcc, 4, v{st+1}")
    a.e("s_cmp_eq_u64 vcc, exec"); a.e("s_cbranch_scc1 R_fq")
    a.e(f"s_sleep {FSLEEP}")
    a.e("s_add_u32 s53, s53, 1"); a.e("s_cmp_lt_u32 s53, s61"); a.e("s_cbranch_scc1 R_fp")
    a.e("s_mov_b32 s61, 0")
    a.e("R_fq:")
    a.e(f"v_lshrrev_b32 v{st}, 8, v{st}"); a.e(f"v_mov_b32 v{st+1}, {LW+28}"); a.e(f"ds_add_u32 v{st+1}, v{st}")
    a.e("R_fw:")
    a.e("s_waitcnt lgkmcnt(0)")
    a.e("s_barrier")
    mstamp(a)
    load_y(a)
    a.e(f"v_mov_b32 v{t}, {LW+28}"); a.e(f"ds_read_b32 v{t2}, v{t}")
    w1_in(True)
    a.e("s_waitcnt lgkmcnt(0)"); a.e(f"v_readfirstlane_b32 s94, v{t2}")
    if STAMP: a.e("s_mov_b32 s95, s94")
    a.e(f"s_cmp_gt_u32 s94, {NVOTE // 2}"); a.e("s_cselect_b32 s94, 1, 0")
    group_off(a, 55, 28)
    a.e("s_add_u32 s62, s4, s55"); a.e("s_addc_u32 s63, s5, 0")
    a.e("s_sub_u32 s36, s28, 1"); a.e("s_max_i32 s36, s36, 0"); group_off(a, 92, 36); a.e("s_sub_u32 s92, s92, s55")
    a.e("s_add_u32 s36, s28, 1"); a.e("s_min_u32 s36, s36, 15"); group_off(a, 93, 36); a.e("s_sub_u32 s93, s93, s55")
    a.e(f"s_add_u32 s55, s55, {oSM}")
    x3_srd(a, 20)
    a.e("s_waitcnt vmcnt(0)")
    for i in range(8):
        D = w + 2 * i
        unpack(a, st, st + 1, yy + i)
        a.e(f"v_pk_mul_f32 {vr(D,2)}, {vr(D,2)}, {vr(st,2)}"); round2(a, D, D + 1, tmp)
        a.e(f"v_pk_add_f32 {vr(x+2*i,2)}, {vr(x+2*i,2)}, {vr(D,2)}"); a.e(f"v_cvt_pk_bf16_f32 v{xa+i}, v{x+2*i}, v{x+2*i+1}")
        if i % 4 == 3: a.e(f"buffer_store_dwordx4 {vr(xa+i-3,4)}, v{RXO}, s[20:23], 0 offen offset:{128*(i//4)} {SC}")
    a.e("R_s2:")
    for i in range(8): unpack(a, x + 2 * i, x + 2 * i + 1, xa + i)
    part(x, 1)
    a.e("s_waitcnt lgkmcnt(0)"); a.e("s_barrier")
    a.e("s_cmp_lg_u32 s30, 7"); a.e("s_cbranch_scc1 R_nl")
    comb(1)
    outv = w; m4 = w + 4; v4_ = w + 5
    a.e(f"v_mov_b32 v{m4}, v{mean}"); a.e(f"v_mov_b32 v{v4_}, v{var}")
    ln_finish(a, mean, var, rs)
    a.e(f"v_sub_f32 v{m4}, v{m4}, v{mean}"); a.e(f"v_mul_f32 v{m4}, v{m4}, v{rs}")
    a.e(f"v_mul_f32 v{v4_}, v{v4_}, v{rs}"); a.e(f"v_mul_f32 v{v4_}, v{v4_}, v{rs}")
    ln_finish(a, m4, v4_, None)
    a.e(f"v_cvt_pk_bf16_f32 v{outv}, v{mean}, v{var}"); a.e(f"v_cvt_pk_bf16_f32 v{outv+2}, v{m4}, v{v4_}")
    a.e(f"v_mov_b32 v{outv+1}, s52"); a.e(f"v_mov_b32 v{outv+3}, s52")
    lns_srd(a, 24)
    a.e("s_lshl_b32 s36, s28, 4"); a.e("s_add_u32 s36, s36, s29"); a.e("s_lshl_b32 s36, s36, 7")
    a.e("s_mov_b64 exec, 0xff")
    a.e(f"buffer_store_dwordx4 {vr(outv,4)}, v2, s[24:27], s36 offen {SC}")
    a.e("s_mov_b64 exec, -1")
    a.e(f"s_waitcnt vmcnt({w3_first(a) + 1})"); a.e("s_branch R_n2")
    a.e("R_nl:")
    a.e("s_cmp_lt_u32 s30, 4"); a.e("s_cbranch_scc1 R_n1")
    a.e(f"s_waitcnt vmcnt({w3_first(a)})"); a.e("s_branch R_n2")
    a.e("R_n1:")
    a.e("s_waitcnt vmcnt(0)")
    a.e("R_n2:")
    publish(a, ST_R, 8, pt, wait=None)
def rot_init(a, which):
    a.e("s_mov_b32 s44, s29" if which == 3 else "s_mov_b32 s44, 0")
def stage3(b, d):
    b.e("s_cmp_eq_u32 s44, s47"); b.e(f"s_cselect_b32 s{d}, s46, s44")
def stage3_init(a):
    a.e("s_add_u32 s46, s29, 1"); a.e("s_and_b32 s46, s46, 15"); a.e("s_cmp_eq_u32 s28, s29"); a.e("s_cselect_b32 s47, s46, s28")
def rot_next(a, which):
    a.e("s_add_u32 s44, s44, 1")
    if which != 4: a.e("s_and_b32 s44, s44, 15")
def kb4(a, d, lw):
    a.e("s_lshl_b32 s45, s44, 1"); a.e(f"s_add_u32 s45, s45, {lw}"); a.e("s_sub_u32 s45, s45, 32")
    a.e("s_mul_i32 s46, s45, 86"); a.e("s_lshr_b32 s46, s46, 8")
    a.e("s_mul_i32 s47, s46, 3"); a.e("s_sub_u32 s47, s45, s47"); a.e("s_lshl_b32 s47, s47, 2"); a.e("s_lshr_b32 s47, 0x362, s47"); a.e("s_and_b32 s47, s47, 7")
    a.e("s_cmp_ge_u32 s44, 10"); a.e("s_cselect_b32 s45, 9, 2"); a.e("s_cselect_b32 s51, 1, 0"); a.e("s_sub_u32 s45, s44, s45")
    a.e("s_cmp_lt_u32 s44, 3"); a.e("s_cselect_b32 s45, 0, s45"); a.e("s_cselect_b32 s51, s44, s51")
    a.e(f"s_lshl2_add_u32 s51, {lw}, s51")
    a.e("s_cmp_lt_u32 s44, 17"); a.e("s_cselect_b32 s47, s51, s47"); a.e("s_cselect_b32 s46, s45, s46")
    a.e("s_add_u32 s46, s46, s33"); a.e("s_and_b32 s46, s46, 7"); a.e("s_mul_i32 s46, s46, 7"); a.e(f"s_add_u32 s{d}, s46, s47")
assert all((q * 86) >> 8 == q // 3 for q in range(24))
def w_lanes(a, which, t, t2):
    if 1 in which:
        R = WVB[1]
        a.e(f"v_lshrrev_b32 v{t}, 3, v1"); a.e(f"v_lshlrev_b32 v{R}, 11, v{t}")
        a.e(f"v_and_b32 v{t}, 6, v{t}"); a.e(f"v_and_b32 v{t2}, 7, v1"); a.e(f"v_xor_b32 v{t}, v{t}, v{t2}"); a.e(f"v_lshl_add_u32 v{R}, v{t}, 4, v{R}")
        return
    R = WVB[4]
    for p in range(2):
        a.e(f"v_lshrrev_b32 v{t}, 4, v1"); a.e(f"v_lshlrev_b32 v{R+p}, 11, v{t}")
        a.e(f"v_add_u32 v{t}, {4*p}, v{t}"); a.e(f"v_lshlrev_b32 v{t}, 1, v{t}"); a.e(f"v_and_b32 v{t2}, 15, v1"); a.e(f"v_xor_b32 v{t}, v{t}, v{t2}")
        a.e(f"v_lshl_add_u32 v{R+p}, v{t}, 4, v{R+p}")
    R = WVB[3]
    assert all((p * 2341) >> 16 == p // 28 for p in range(448))
    for ii in range(7):
        a.e(f"v_add_u32 v{t2}, {64*ii}, v1"); a.e(f"v_mul_u32_u24 v{t}, 2341, v{t2}"); a.e(f"v_lshrrev_b32 v{t}, 16, v{t}")
        a.e(f"v_mul_u32_u24 v{R+ii}, 28, v{t}"); a.e(f"v_sub_u32 v{t2}, v{t2}, v{R+ii}")
        a.e(f"v_mul_u32_u24 v{R+ii}, 7168, v{t}")
        a.e(f"v_lshrrev_b32 v{t}, 1, v{t}"); a.e(f"v_and_b32 v{t}, 2, v{t}"); a.e(f"v_xor_b32 v{t2}, v{t2}, v{t}")
        a.e(f"v_lshl_add_u32 v{R+ii}, v{t2}, 4, v{R+ii}")
def w_srd(a, which, d=12):
    c = CFG[which]
    a.e(f"s_mov_b64 s[{d}:{d+1}], s[{66+2*which}:{67+2*which}]")
    a.e(f"s_mov_b32 s{d+2}, {c['KBT'] * 32 * c['LDW']}"); a.e(f"s_mov_b32 s{d+3}, 0x20000")
def w_setup(a, which, pre=True):
    c = CFG[which]; STB = c["STB"]; BW = STB // 2
    w_srd(a, which)
    a.e("s_and_b32 s35, s30, 1")
    a.e(f"s_mul_i32 s38, s{29 if which != 4 else 33}, {c['RB']}")
    if which != 4: a.e(f"s_mul_i32 s41, s35, {32*c['LDW']}"); a.e("s_add_u32 s38, s38, s41")
    if which == 4: a.e(f"s_mul_i32 s41, s31, {1792*c['LDW']}"); a.e("s_add_u32 s38, s38, s41")
    a.e(f"s_mul_i32 s41, s35, {BW}")
    if c["WB"]: a.e(f"s_add_u32 s41, s41, {c['WB']}")
    a.e("s_mov_b32 s42, 0"); rot_init(a, which)
    if not pre: return
    NP = c["NPRE"]
    a.e("s_mov_b32 s49, s44"); a.e("s_and_b32 s43, s28, 3"); a.e(f"s_mul_i32 s43, s43, {NP}"); a.e("s_lshr_b32 s43, s43, 2"); a.e("s_mov_b32 s50, 0")
    L = a.lab("wpre"); a.e(f"{L}:")
    a.e(f"s_mul_i32 s42, s43, {STB}"); a.e("s_add_u32 s44, s49, s43")
    w_issue(a, which, pace=PACES.get(which, PACE))
    a.e("s_add_u32 s43, s43, 1"); a.e(f"s_cmp_eq_u32 s43, {NP}"); a.e("s_cselect_b32 s43, 0, s43")
    a.e("s_add_u32 s50, s50, 1"); a.e(f"s_cmp_lt_u32 s50, {NP}"); a.e(f"s_cbranch_scc1 {L}")
    mstamp(a)
    a.e(f"s_mov_b32 s42, {(NP % c['NW']) * STB}"); a.e(f"s_add_u32 s44, s49, {NP}")
def w_slots(a, items, pace=0):
    for kh, u, ad in items:
        a.e(f"s_mov_b32 s42, {ad}"); a.e(f"s_add_u32 s44, s67, {u}"); a.e("s_and_b32 s44, s44, 7")
        if kh: a.e("s_or_b32 s44, s44, 8")
        call_issue(a, w_issue, 1)
        if pace: a.e(f"s_waitcnt vmcnt({pace})")
def w1_slots(a, js, pace=0): w_slots(a, [(j >> 3, j & 7, WST + j * 8192) for j in js], pace)
def w_parts(which):
    c = CFG[which]; STB = c["STB"]; n = STB // 2048; LDW = c["LDW"]; b = Rec()
    b.e("s_add_u32 s19, s41, s42")
    arm = ["s_mov_b32 m0, s19", "s_mov_b32 s39, s16"]
    if which == 4:
        b.e("s_and_b32 s40, s30, 1"); kb4(b, 16, "s40")
        b.e(f"s_mul_i32 s16, s16, {32*LDW}"); b.e("s_add_u32 s16, s16, s38")
        b.e("s_cmp_eq_u32 s47, 3"); b.e("s_cselect_b32 s17, 8, 4"); b.e("s_cselect_b32 s18, -20, 4")
        b.e("s_lshl_b32 s17, s17, 11"); b.e("s_lshl_b32 s18, s18, 11")
        arm += ["s_mov_b32 s32, s17", "s_mov_b32 s3, s18"]
    elif which == 3:
        stage3(b, 16); b.e(f"s_mul_i32 s16, s16, {64*LDW}"); b.e("s_add_u32 s16, s16, s38")
    else:
        b.e(f"s_mul_i32 s16, s44, {64*LDW}"); b.e("s_add_u32 s16, s16, s38")
    if which > 2:
        rot_next(b, which)
        b.e(f"s_add_u32 s42, s42, {STB}"); b.e(f"s_cmp_eq_u32 s42, {c['NW']*STB}"); b.e("s_cselect_b32 s42, 0, s42")
    fire = []
    for i in range(n):
        g = []
        if i:
            g.append("s_add_u32 m0, m0, 1024")
            if which in (1, 2): g.append(f"s_add_u32 s39, s39, {8*LDW}")
            elif which == 4: g.append(f"s_add_u32 s39, s39, s{3 if i == 4 else 32}")
            elif i == 7: g.append(f"s_add_u32 s39, s39, {16*LDW}")
        vo = WVB[which] + (0 if which in (1, 2) else (i & 1) if which == 4 else i % 7)
        fire.append(g + [f"buffer_load_dwordx4 v{vo}, s[12:15], s39 offen lds"])
    return b.l, arm, fire
def w_issue(a, which, pace=0):
    prep, arm, fire = w_parts(which)
    for x in prep + arm: a.e(x)
    for i, g in enumerate(fire):
        for x in g: a.e(x)
        if pace and (i % 4 == 3 or i == len(fire) - 1): a.e(f"s_waitcnt vmcnt({pace})")

def w_bases(a, which, dst, swn, ntl, t, t2):
    c = CFG[which]; RB = c["RB"]
    a.e(f"v_lshrrev_b32 v{t}, 2, v1")
    a.e(f"v_mul_u32_u24 v{dst}, {RB}, v{t}"); a.e(f"v_and_b32 v{t2}, 3, v1"); a.e(f"v_lshl_add_u32 v{dst}, v{t2}, 3, v{dst}")
    if c["WB"]: a.e(f"v_add_u32 v{dst}, {c['WB']}, v{dst}")
    if which == 3:
        a.e(f"s_mul_i32 s36, s{swn}, {7*32}"); a.e(f"v_add_u32 v{dst}, s36, v{dst}")
        a.e(f"v_bfe_u32 v{t}, v1, 4, 1"); a.e(f"v_lshlrev_b32 v{t}, 5, v{t}")
        a.e(f"s_cmp_eq_u32 s{swn}, 0"); a.e("s_cselect_b32 s36, 1, -1"); a.e(f"v_mul_lo_u32 v{t}, v{t}, s36")
        a.e(f"v_sub_u32 v{dst+1}, v{dst}, v{t}"); a.e(f"v_add_u32 v{dst}, v{dst}, v{t}")
        return 2, lambda nt, kk, h: (nt & 1, (32 * kk + 16 * h) * RB + 32 * nt)
    if which == 4: a.e(f"v_and_b32 v{t}, 7, v{t}")
    else: a.e(f"v_bfe_u32 v{t}, v{t}, 1, 2")
    for nt in range(ntl - 1, -1, -1):
        a.e(f"s_mul_i32 s36, s{swn}, {ntl}"); a.e(f"s_add_u32 s36, s36, {nt}")
        a.e(f"v_xor_b32 v{t2}, s36, v{t}"); a.e(f"v_lshl_add_u32 v{dst+nt}, v{t2}, 5, v{dst}")
    return ntl, lambda nt, kk, h: (nt, (32 * kk + 16 * h) * RB)

def a_parts(which):
    c = CFG[which]; b = Rec()
    b.e("s_add_u32 s19, s41, s42")
    arm = ["s_mov_b32 m0, s19", "s_mov_b32 s39, s16"]; fire = []
    if which == 4:
        for lw in range(2):
            kb4(b, 16 + lw, lw); spread(b, 16 + lw, 16 + lw); b.e(f"s_add_u32 s{16+lw}, s{16+lw}, s38")
        arm.append("s_mov_b32 s40, s17")
        for i in range(4):
            for lw in range(2):
                fire.append((["s_add_u32 m0, m0, 1024"] if i or lw else []) + ([f"s_add_u32 s{39+lw}, s{39+lw}, {c['KBT']*2048}"] if i else []) +
                            [f"buffer_load_dwordx4 v2, s[12:15], s{39+lw} offen {SC} lds"])
    else:
        stage3(b, 16); b.e("s_cmp_eq_u32 s44, s46"); b.e("s_cselect_b32 s16, s47, s16")
        b.e("s_lshr_b32 s45, s16, 2"); b.e("s_lshl_b32 s45, s45, 14"); b.e("s_and_b32 s16, s16, 3"); b.e("s_lshl_b32 s16, s16, 11")
        b.e("s_add_u32 s16, s16, s45"); b.e("s_add_u32 s16, s16, s38"); step = c['KBT'] * 2048
        for i in range(4):
            fire.append((["s_add_u32 m0, m0, 2048", f"s_add_u32 s39, s39, {step}"] if i else []) + [f"buffer_load_dwordx4 v2, s[12:15], s39 offen {SC} lds"])
            fire.append([f"buffer_load_dwordx4 v2, s[12:15], s39 offen offset:1024 {SC} lds"])
    rot_next(b, which)
    b.e(f"s_add_u32 s42, s42, 16384"); b.e(f"s_cmp_eq_u32 s42, {c['NA']*16384}"); b.e("s_cselect_b32 s42, 0, s42")
    return b.l, arm, fire
def a_issue(a, which):
    prep, arm, fire = a_parts(which)
    for x in prep + arm + sum(fire, []): a.e(x)
SUBS = {}
def call_issue(a, issue, which):
    nm = f"SUB_{issue.__name__}_{which}"; SUBS[nm] = (issue, which)
    a.e(f"s_call_b64 s[76:77], {nm}")
def emit_subs(a):
    for nm, (issue, which) in SUBS.items():
        a.e(f"{nm}:"); issue(a, which); a.e("s_setpc_b64 s[76:77]")
def ld_steps(a, which, N, per, issue, npre, rate=2, plan={}, lo=0, hi=None, last=None, hold=(), start=None):
    NS = CFG[which]["NS"]
    prep, arm, fire = (w_parts if issue is w_issue else a_parts)(which); h = max(1, per * HSPLIT // 8)
    plan = {b: (x if isinstance(x, list) else [x]) for b, x in plan.items()}
    q = [s_ for s_ in range(npre) for _ in range(per)]
    def after(tag):
        if issue is w_issue and isinstance(tag, int) and tag < npre: tag = npre - 1
        return len(q) - 1 - max(i for i, x in enumerate(q) if x == tag)
    issued = npre; steps = []
    for b in range(NS):
        acts = plan.get(b, []); was = {}
        def do(pos):
            for n_, act in enumerate(acts):
                if act[0] != pos: continue
                if act[1] is not None: was[n_] = after(act[1])
                q.extend([act[4]] * act[3])
        do(True)
        k = 0
        if b > 0 and b not in hold: k = max(0, min(rate, min(NS, b - 1 + N) - issued))
        assert k or not any(x[0] == "mid" for x in acts)
        for j in range(k):
            q.extend([issued] * h)
            if j == 0: do("mid")
            q.extend([issued] * (per - h)); issued += 1
        do(False)
        w = after(b); assert w <= 63
        steps.append((k, w, b if acts else None, tuple(sorted(was.items())), issued < NS))
    def em(l):
        for x in l:
            a.e(x)
            if x == "s_barrier" and os.environ.get("JIT"): mstamp(a)
    F1, F2 = sum(fire[:h], []), sum(fire[h:], [])
    lprep = prep
    if len(prep) > 8:
        nm = f"PREP_{issue.__name__}_{which}"; SUBS[nm] = ((lambda a_, w_, l=prep: [a_.e(x) for x in l]), which)
        prep = [f"s_call_b64 s[76:77], {nm}"]
    if lo == 0 or start: em(prep + arm)
    i = lo; HI = NS if hi is None else hi
    while i < HI:
        j = i
        while j < HI and steps[j] == steps[i]: j += 1
        k, w, ab, was, more = steps[i]; n = j - i; was = dict(was)
        def run(pos):
            for n_, act in enumerate(plan.get(ab, [])):
                if act[0] != pos: continue
                if n_ in was: a.e(f"s_waitcnt vmcnt({was[n_]})")
                act[2]()
        tail = [f"s_waitcnt vmcnt({w})", "s_barrier"]
        if n > 2 and k == 1:
            em(F1); a.e("s_mov_b32 s43, 1"); L = a.lab("ld"); a.e(f"{L}:")
            em(lprep + F2 + arm + tail + F1)
            a.e("s_add_u32 s43, s43, 1"); a.e(f"s_cmp_lt_u32 s43, {n}"); a.e(f"s_cbranch_scc1 {L}")
            em(prep + F2 + arm + tail)
        else:
            for r in range(n):
                run(True)
                for jj in range(k):
                    nxt = more or jj < k - 1
                    em(F1)
                    if jj == 0: run("mid")
                    em((prep if nxt else []) + F2 + (arm if nxt else []))
                run(False)
                em(tail)
        i = j
    if hi is not None: return
    if which == 4:
        if issue is a_issue: a.e("s_cmp_eq_u32 s60, 1"); a.e("s_cbranch_scc1 K_fin")
        elif hold is HOLD: a.e("s_branch K_fin"); return
        r_pre(a)
    if last: last()
    if issue is a_issue and which == 3:
        X = a.lab("tw4"); a.e("s_cmp_lg_u32 s60, 0"); a.e(f"s_cbranch_scc1 {X}"); touch(a, 4, 7 * MB, 60); a.e(f"{X}:")
    a.e("s_barrier")

HOLD = env("HOLD", [2, 3, 4])
def a_loader(a, which):
    c = CFG[which]
    a.e("s_and_b32 s35, s30, 1")
    lsrd(a, 12, c["A"], XSZ if which != 4 else H2SZ)
    a.e(f"s_mul_i32 s38, s35, {4*c['KBT']*2048}")
    if which == 4: a.e(f"s_mul_i32 s36, s31, {7*16384}"); a.e("s_add_u32 s38, s38, s36")
    a.e("s_lshl_b32 s41, s35, 13"); a.e("s_mov_b32 s42, 0"); rot_init(a, which)
    assert c["NA"] == 3
    if which == 4:
        flag_addr(a, 9, ST_G3A); flag_addr(a, 10, ST_G3B); flag_addr(a, 12, ST_G3)
        own_wait(a, ST_G3A, False, 14)
        poll_core(a, 8, 9, 1, cnt=8); mstamp(a)
        plan = {6: ("mid", None, lambda: flag_try(a, 11, 10), 1, "f"), 8: ("mid", "f", lambda: flag_check(a, 11, 10, 8), 0, None),
                13: ("mid", None, lambda: flag_try(a, 11, 12), 1, "g"), 15: ("mid", "g", lambda: flag_check(a, 11, 12, 8), 0, None)}
        a.e("s_mov_b32 s44, 3")
        ld_steps(a, which, 3, 8, a_issue, 3, plan=plan); return
    mask, cnt = flag_addr(a, 9, ST_G2)
    def wait2(): g2_signal(a, 0); mstamp(a); poll_core(a, 8, 9, mask, cnt=cnt); mstamp(a)
    rot_next(a, 3); stage3_init(a); a.e("s_mov_b32 s42, 16384")
    plan = side_jobs(a)
    plan[1] = (True, None, wait2, 0, None)
    ld_steps(a, which, 3, 8, a_issue, 1, plan=plan, lo=1, start=True)

def g2_signal(a, wait):
    a.e("s_and_b32 s36, s30, 3"); a.e("s_lshl_b32 s36, s36, 7"); a.e("s_add_u32 s36, s36, s55"); a.e(f"s_add_u32 s36, s36, {fso(ST_G2)}")
    publish(a, ST_G2, 1, 14, off=36, wait=wait)
    G2S[0](); a.e("s_waitcnt lgkmcnt(0)")
G2S = []
def side_jobs(a):
    c = CFG[3]
    sv = 18; Q, tt, mean, rs, ad, fa, fr, co_, ct = 50, 51, 52, 53, 10, 11, 12, 13, 6
    cv = 54; N = 3584; HB = c["TN16"] * 32
    assert cv + 64 <= WVB[1]
    def cld(k0=0, k1=4):
        if k0 == 0:
            flag_check(a, fr + 5, fa + 5, 32)
            a.srd(24, 4, 16 * N * 4, off=CSP3)
            a.e("s_cmp_eq_u32 s60, 0"); a.e("s_cselect_b32 s26, s26, 0")
            a.e("s_and_b32 s36, s30, 1"); a.e(f"s_mul_i32 s36, s36, {HB}"); a.e(f"s_mul_i32 s37, s29, {2*HB}"); a.e("s_add_u32 s37, s36, s37")
            a.e(f"v_lshrrev_b32 v{co_}, 5, v1"); a.e(f"v_mul_u32_u24 v{co_}, {N*4}, v{co_}")
            a.e(f"v_and_b32 v{ct}, {16*31}, v2"); a.e(f"v_add_u32 v{co_}, v{co_}, v{ct}")
        for k in range(k0, k1):
            a.e(f"buffer_load_dwordx4 {vr(cv+4*k,4)}, v{co_}, s[24:27], s37 offen {SC}"); a.e(f"s_add_u32 s37, s37, {N*4*2}")
    def piece(lines, l0=False):
        def f():
            X = a.lab("pc")
            if l0: a.e("s_cmp_lg_u32 s60, 0"); a.e(f"s_cbranch_scc1 {X}")
            for x in lines: a.e(x)
            if l0: a.e(f"{X}:")
        return f
    def cadd(k0, k1): return [f"v_pk_add_f32 {vr(cv+2*h,2)}, {vr(cv+2*h,2)}, {vr(cv+4*k+2*h,2)}" for k in range(k0, k1) for h in range(2)]
    def sw(op): return [f"v_mov_b32 v{cv+4+e}, v{cv+e}" for e in range(4)] + [f"{op} v{cv+e}, v{cv+4+e}" for e in range(4)] + cadd(1, 2)
    cout = ["s_and_b32 s36, s30, 1", f"s_mul_i32 s36, s36, {HB}", f"s_add_u32 s36, s36, {CSO[3]}", f"v_add_u32 v{ct}, s36, v2",
            f"s_bfm_b64 exec, {HB//16}, 0", f"ds_write_b128 v{ct}, {vr(cv,4)}", "s_mov_b64 exec, -1", "s_waitcnt lgkmcnt(0)"]
    flag_addr(a, fa, ST_G2S)
    a.e(f"v_lshlrev_b32 v{ad}, 3, v1")
    lsrd(a, 20, oST2, 24576)
    a.e("s_and_b32 s34, s30, 1"); a.e("s_lshl_b32 s34, s34, 9")
    def sout():
        a.e(f"s_add_u32 s36, s34, {REC}"); a.e(f"v_add_u32 v{tt}, s36, v{ad}")
        for k in range(4): a.e(f"ds_read_b64 {vr(sv+2*k,2)}, v{tt} offset:{1024*k}")
        spread(a, 36, 29); a.e("s_add_u32 s36, s36, s34")
        a.e("s_waitcnt lgkmcnt(0)")
        for k in range(1, 4): a.e(f"v_pk_add_f32 {vr(sv,2)}, {vr(sv,2)}, {vr(sv+2*k,2)}")
        a.e(f"buffer_store_dwordx2 {vr(sv,2)}, v{ad}, s[20:23], s36 offen {SC}")
    def tries():
        a.e("s_lshl_b32 s53, s29, 7"); a.e(f"s_add_u32 s53, s53, {F_CS}"); a.e(f"v_mov_b32 v{fa+5}, s53")
        flag_try(a, fr, fa); flag_try(a, fr + 5, fa + 5)
    def ld(k0):
        def f():
            if k0 == 0: flag_check(a, fr, fa, 32)
            a.e(f"s_add_u32 s36, s34, {k0*2048}")
            for k in range(k0, k0 + 8):
                if k % 8 == 4: a.e("s_add_u32 s36, s36, 4096")
                a.e(f"buffer_load_dwordx2 {vr(sv+2*k,2)}, v{ad}, s[20:23], s36 offen offset:{(k&3)*1024} {SC}")
        return f
    b = Rec()
    for st_ in (8, 4, 2, 1):
        for k in range(st_): b.e(f"v_pk_add_f32 {vr(sv+2*k,2)}, {vr(sv+2*k,2)}, {vr(sv+2*(k+st_),2)}")
    b.e(f"v_mul_f32 v{mean}, {f32(1/1024)}, v{sv}"); b.e(f"v_mul_f32 v{Q}, {f32(1/1024)}, v{sv+1}")
    b.e(f"v_fma_f32 v{Q}, -v{mean}, v{mean}, v{Q}"); b.e(f"v_max_f32 v{Q}, 0, v{Q}")
    ln_finish(b, mean, Q, rs)
    b.e(f"s_add_u32 s36, s34, {AUX+1024}"); b.e(f"v_add_u32 v{tt}, s36, v{ad}")
    b.e(f"ds_write_b64 v{tt}, {vr(mean,2)}"); b.e("s_waitcnt lgkmcnt(0)")
    def both(f, g):
        def h(): f(); g()
        return h
    return {2: (False, None, sout, 1, "s"),
            4: (False, "s", lambda: publish(a, ST_G2S, 1, 14, wait=None), 1, "p"),
            7: (False, None, tries, 2, "f"),
            9: (False, "f", ld(0), 8, "d"), 10: (False, None, ld(8), 8, "d"), 11: (False, None, lambda: cld(0, 8), 8, "c"),
            12: (False, "d", piece(b.l[:12]), 0, None), 13: (False, None, piece(b.l[12:23]), 0, None),
            14: (False, "c", both(piece(b.l[23:]), piece(cadd(1, 5), 1)), 0, None), 15: (False, None, piece(cadd(5, 8) + sw("v_permlane32_swap_b32") + cout, 1), 0, None)}

def w_loader(a, which):
    c = CFG[which]
    args = (a, which, c["NW"], c["STB"] // 2048, w_issue, c["NPRE"], c["WR"])
    if which == 3:
        w_setup(a, 3, pre=False); rot_next(a, 3); rot_next(a, 3); stage3_init(a); a.e(f"s_mov_b32 s42, {2*c['STB']}")
        ld_steps(*args, plan={1: [({"T": True, "M": "mid", "F": False}[env("PUBW", "T")], 1, lambda: g2_signal(a, None), 1, "p"), (False, None, lambda: cs_sum(a), 0, None)],
                                4: (False, 3, lambda: cs_signal(a), 0, None)}, lo=1, start=True)
        return
    assert c["NW"] == 6 and c["WB"] == WST + 3 * 8192
    a.e("s_cmp_eq_u32 s60, 1"); a.e("s_cbranch_scc1 WL_t1")
    ld_steps(*args, hi=24)
    def first(): w_setup(a, 1, pre=False); w1_slots(a, (11, 12, 15))
    plan = {24: (False, None, first, 12, "w"), 25: (False, None, lambda: w1_slots(a, (13, 14)), 8, "w"),
            26: (False, None, lambda: w1_slots(a, (3, 4)), 8, "w"), 27: (False, None, lambda: w1_slots(a, (5, 6, 0)), 12, "w")}
    ld_steps(*args, plan=plan, lo=24, last=lambda: w1_slots(a, (7, 8, 1, 2)))
    w1_slots(a, (9, 10)); mstamp(a)
    a.e("s_branch NEXT")
    a.e("WL_t1:")
    ld_steps(*args, hold=HOLD)
SLOTS = [16 * KB, 32 * KB, 104 * KB, 120 * KB, 136 * KB]; WINB = 104 * KB
W3AT = env("W3AT", [8, 12])
LAG = 2
DEP = env("DEP", 3); BURST0 = env("BURST0", 3)
SIG = env("SIG", [(8, 0), (12, 0), (15, 2)]); SIG3 = env("SIG3", 19)
TRY = env("TRY", [12, 16, 20, 24]); CHK = env("CHK", [13, 17, 21, 25])
OST = env("OST", 29); LPRIO = env("LPRIO", 1); RATE = env("RATE", 2); ISS = env("ISS", {})
def win_schedule():
    slot = {}; issue = {b: [] for b in ["F"] + list(range(32))}
    free = {x: -1 for x in SLOTS}
    nxt = 0
    for p in range(-1, 32):
        b = "F" if p < 0 else p
        while nxt < 32:
            if p < 0 and nxt >= BURST0: break
            if nxt >= 16 and p < CHK[(nxt - 16) // 4]: break
            if p in ISS:
                if len(issue[b]) >= ISS[p]: break
            elif p >= 0 and (nxt > p + DEP or len(issue[b]) >= RATE): break
            c_ = [x for x in SLOTS if free[x] <= p]
            if not c_: break
            x = min(c_, key=lambda x: free[x])
            slot[nxt] = x; issue[b].append(nxt); free[x] = nxt + 2
            assert nxt > p
            nxt += 1
    return slot, issue
WSLOT, WISSUE = win_schedule()
GSTW = os.environ.get("GST", "")

def win_compute(T, g, rd, acc, cinit, FR, pre, post, mid):
    s0 = 16 * (g - 1); steps = [(s, k) for s in range(s0, s0 + 17) for k in range(4)]; n = 64; nb = LAG + 1
    for i in range(n + LAG):
        s, k = steps[i]
        if k == 0 and s < 32:
            for f in pre.get(s, []): f()
            T.e("s_barrier")
            if GSTW == "w" or (GSTW == "y" and i == n) or os.environ.get("JIT"): mstamp(T.a, True)
            for f in post.get(s, []): f()
        for f in mid.get((s, k), []): f()
        r = [rd(FR + 16 * (i % nb) + 4 * q, s, k, q) for q in range(4)] if i < n else []
        j = i - LAG
        if j < 0:
            for x in r: T.ds(x, i)
            continue
        s, k = steps[j]; c = (s - s0) // 4; first = s % 4 == 0 and k == 0
        T.wl(j)
        for q in (0, 1, 3, 2):
            C = vr(acc(c) + 4 * (q & 1), 4)
            T.e(f"v_mfma_f32_16x16x32_bf16 {C}, {vr(WR0+8*(4*(s%4)+k)+4*(q>>1),4)}, {vr(FR+16*(j%nb)+4*q,4)}, {'0' if first and q < 2 and not cinit else C}")
            if r: T.ds(r.pop(0), i)
def add(d, k, f): d.setdefault(k, []).append(f)
def h_rot(a, d):
    a.e(f"s_and_b32 s{d+4}, s30, 3"); a.e(f"s_lshl_b32 s{d+4}, s{d+4}, 15")
    for i in range(4):
        a.e(f"s_add_u32 s53, s67, {2*i}"); a.e(f"s_and_b32 s{d+i}, s53, 4"); a.e(f"s_and_b32 s53, s53, 2"); a.e(f"s_lshl_b32 s{d+i}, s{d+i}, 12"); a.e("s_lshl_b32 s53, s53, 11")
        a.e(f"s_add_u32 s{d+i}, s{d+i}, s53"); a.e(f"s_add_u32 s{d+i}, s{d+i}, s{d+4}")
    a.e("s_and_b32 s53, s30, 2"); a.e("s_lshl_b32 s53, s53, 11")
    a.e(f"s_and_b32 s{d+4}, s30, 1"); a.e(f"s_lshl_b32 s{d+4}, s{d+4}, 13"); a.e(f"s_add_u32 s{d+4}, s{d+4}, s53")
def h_arm(T, s, d):
    T.e(f"s_add_u32 m0, s{d+4}, {WSLOT[s]}"); T.e(f"s_add_u32 s49, s{d+s%4}, {(s-16)//4*131072}"); T.armed = s
def h_issue(T, s, d, srd):
    if getattr(T, "armed", None) != s: h_arm(T, s, d)
    for q in range(4): T.vm(f"buffer_load_dwordx4 v2, s[{srd}:{srd+3}], s49 offen offset:{1024*q} {SC} lds", s)
def h_flag(a, d):
    a.e(f"s_and_b32 s{d}, s30, 1"); a.e(f"s_lshl_b32 s{d}, s{d}, 8"); a.e(f"s_add_u32 s{d}, s{d}, s55"); a.e(f"s_add_u32 s{d+1}, s52, 16")
def h_try(a, c, d):
    for k in range(2): a.e(f"s_load_dword s{(32, 3)[k]}, s[4:5], s{d} offset:{FH + 512*c + 128*k} {os.environ.get('GLC', '')}")
def h_check(a, c, d, t):
    D = a.lab("hok")
    a.e("s_waitcnt lgkmcnt(0)"); a.e(f"s_cmp_eq_u32 s32, s{d+1}"); a.e(f"s_cselect_b32 s32, s3, 0"); a.e(f"s_cmp_eq_u32 s32, s{d+1}"); a.e(f"s_cbranch_scc1 {D}")
    if STAMP: a.e(f"s_add_u32 s95, s95, {1 << (8 + 4 * c)}")
    a.e(f"s_add_u32 s53, s{d}, {FH + 512*c}"); a.e(f"v_lshlrev_b32 v{t+1}, 7, v1"); a.e(f"v_add_u32 v{t+1}, s53, v{t+1}")
    poll_core(a, t, t + 1, 3, cnt=16, nap=env('HSLEEP', 2))
    a.e(f"{D}:")
def out_addr(a, so, J, G, t):
    a.e(f"v_and_b32 v{t}, 1, v{G}"); a.e(f"v_lshlrev_b32 v{so}, 16, v{t}"); a.e(f"v_lshrrev_b32 v{t}, 1, v{G}"); a.e(f"v_lshl_add_u32 v{so}, v{t}, 8, v{so}")
    a.e(f"v_lshl_add_u32 v{so}, v{J}, 4, v{so}")
    a.e("s_bfe_u32 s36, s30, 0x10001"); a.e("s_lshl1_add_u32 s36, s29, s36"); spread(a, 39, 36)
    a.e("s_and_b32 s36, s30, 1"); a.e("s_lshl_b32 s36, s36, 9"); a.e("s_add_u32 s39, s39, s36")

def window_x(a, g3_setup):
    T = Track(a); v = VA(6)
    t = v(); t2 = v(); J = v(); G = v(); ra = v(8, 2); rc = v()
    acc0 = v(16, 4); FR = v(48, 4); cs = v(4, 4); rec = v(16, 4); tp = v(8, 4); lead = v(); one = v(); so = v()
    assert v.hi <= WR0
    poll(a, ST_R, tp, wave=0)
    a.e(f"v_and_b32 v{J}, 15, v1"); a.e(f"v_lshrrev_b32 v{G}, 4, v1")
    a.e("s_lshl_b32 s36, s30, 6"); a.e(f"s_add_u32 s36, s36, {CSO[1]}"); a.e(f"v_lshlrev_b32 v{t}, 4, v{G}"); a.e(f"v_add_u32 v{t}, s36, v{t}")
    a.e(f"ds_read_b128 {vr(cs,4)}, v{t}")
    a.e(f"v_xor_b32 v{t}, v{G}, v{J}"); a.e(f"v_lshlrev_b32 v{t2}, 8, v{J}")
    for k in range(4):
        a.e(f"v_xor_b32 v{ra+k}, {4*k}, v{t}"); a.e(f"v_lshl_add_u32 v{ra+k}, v{ra+k}, 4, v{t2}"); a.e(f"v_add_u32 v{ra+4+k}, {WINB}, v{ra+k}")
    a.e(f"v_lshlrev_b32 v{rc}, 4, v{J}"); a.e(f"v_add_u32 v{rc}, {REC}, v{rc}")
    lsrd(a, 16, oH, XSZ); out_addr(a, so, J, G, t)
    h_rot(a, 8); h_flag(a, 20)
    a.e(f"v_mov_b32 v{lead}, 0x7f000000"); a.e(f"v_writelane_b32 v{lead}, 0, 0"); a.e(f"v_mov_b32 v{one}, 1")
    a.e("s_and_b32 s40, s30, 1"); a.e("s_lshl1_add_u32 s40, s31, s40"); a.e("s_lshl_b32 s40, s40, 7"); a.e("s_add_u32 s40, s40, s55")
    a.e("s_waitcnt lgkmcnt(0)")
    def rd(d, s, k, q):
        x = WSLOT[s]; hi = x >= WINB
        return f"ds_read_b128 {vr(d,4)}, v{ra+4*hi+k} offset:{x - WINB*hi + 4096*q}"
    acc = lambda c: acc0 + 8 * (c & 1)
    def recs(c):
        for mt in range(2):
            for p in range(2): T.ds(f"ds_read_b128 {vr(rec+8*mt+4*p,4)}, v{rc} offset:{512*c + 256*mt + 2048*p}", "r")
    def epi(c, cut=None):
        T.wl("r")
        X = acc(c); P = [(X + i, tp + i, i & 2, [vr(rec + 2 * (i & 4) + 2 * e, 2) for e in range(4)]) for i in range(0, 8, 2)]
        for x, u, i, R in P: T.e(f"v_pk_fma_f32 {vr(x,2)}, {R[0]}, {vr(cs+i,2)}, {vr(x,2)}")
        for x, u, i, R in P: T.e(f"v_pk_mul_f32 {vr(u,2)}, {vr(x,2)}, {vr(x,2)}")
        for x, u, i, R in P: T.e(f"v_pk_fma_f32 {vr(u,2)}, {vr(u,2)}, {R[2]}, {R[1]}")
        for x, u, i, R in P: T.e(f"v_pk_mul_f32 {vr(u,2)}, {vr(u,2)}, {vr(x,2)}")
        if cut: cut()
        for i in range(8): T.e(f"v_exp_f32 v{tp+i}, v{tp+i}")
        for x, u, i, R in P: T.e(f"v_pk_fma_f32 {vr(u,2)}, {vr(u,2)}, {R[3]}, {R[3]}")
        for i in range(8): T.e(f"v_rcp_f32 v{tp+i}, v{tp+i}")
        for x, u, i, R in P: T.e(f"v_pk_mul_f32 {vr(x,2)}, {vr(x,2)}, {vr(u,2)}")
        for i in range(4): T.e(f"v_cvt_pk_bf16_f32 v{tp+i}, v{X+2*i}, v{X+2*i+1}")
        T.e(f"s_add_u32 s36, s39, {c*131072}")
        for e in range(2): T.e(f"v_permlane16_swap_b32 v{tp+e}, v{tp+2+e}")
        T.vm(f"buffer_store_dwordx4 {vr(tp,4)}, v{so}, s[16:19], s36 offen {SC}", f"h{c}")
    def signal(c):
        T.wv(f"h{c}"); T.vm(f"buffer_atomic_add v{one}, v{lead}, s[56:59], s40 offen offset:{FH + 512*c} {SC}")
    pre, post, mid = {}, {}, {}
    add(post, 0, lambda: mstamp(a))
    for c in range(4):
        add(post, 4 * c + 4, lambda c=c: recs(c))
        if c: add(mid, SIG[c - 1], lambda c=c: signal(c - 1))
        if c < 3: add(mid, (4 * c + 4, 3), lambda c=c: epi(c))
    def duties(b):
        if b == SIG3: signal(3)
        for c in range(4):
            if TRY[c] >= 16 and CHK[c] == b: h_check(a, c, 20, cs)
        for c in range(4):
            if TRY[c] == b: h_try(a, c, 20)
        for s in WISSUE[b]: h_issue(T, s, 8, 16)
    def bar(b):
        if WISSUE[b]: h_arm(T, WISSUE[b][0], 8)
        T.wv(b); T.e("s_barrier")
        if GSTW in ("w", "y") or os.environ.get("JIT"): mstamp(a, True)
    win_compute(T, 1, rd, acc, False, FR, pre, post, mid)
    mstamp(a)
    T.e(f"s_setprio {LPRIO}")
    T.wl("r"); duties(16)
    b0 = 17
    if env("CUT", 0): epi(3, lambda: bar(17)); duties(17); b0 = 18
    else: epi(3)
    mstamp(a)
    G3AT = env("G3AT", 29); assert SIG3 < G3AT
    for b in range(b0, 32):
        bar(b); duties(b)
        if b == G3AT: T.e(g3_setup)
    T.e("s_setprio 0")

def window_y(a):
    T = Track(a); v = VA(6)
    t = v(); t2 = v(); J = v(); G = v(); va = v(); vb = v(); xo = v(); so = v(); rb = v(2, 2); ow = v(); xr = v()
    xn = v(32, 4); FR = v(48, 4); S = v(8, 2); tp = v(8, 2)
    assert v.hi <= WVB[1], v.hi
    lo = FR + 20; ln = FR; o = FR + 8
    a.e(f"v_and_b32 v{J}, 15, v1"); a.e(f"v_lshrrev_b32 v{G}, 4, v1")
    a.e("s_and_b32 s34, s30, 1"); a.e("s_and_b32 s37, s30, 3")
    a.e("s_lshr_b32 s38, s29, 3"); a.e("s_add_u32 s38, s38, 1"); a.e("s_sub_u32 s39, 0, s38"); a.e("s_bitcmp1_b32 s29, 2"); a.e("s_cselect_b32 s38, s38, s39")
    a.e("s_lshl_b32 s48, s28, 7")
    a.e("s_cmp_lt_u32 s37, 2"); a.e("s_cselect_b32 s36, s38, 0"); a.e("s_add_u32 s36, s36, s48"); a.e("s_lshl_b32 s45, s34, 6"); a.e("s_add_u32 s36, s36, s45")
    a.e(f"v_add_u32 v{lo}, s36, v1"); a.e("s_movk_i32 s45, 2048"); a.e(f"v_cmp_gt_u32 s[46:47], s45, v{lo}"); a.e(f"v_lshlrev_b32 v{lo}, 4, v{lo}")
    lns_srd(a, 20)
    a.e("s_lshl_b32 s36, s37, 2"); a.e(f"v_add_u32 v{t}, s36, v{G}"); a.e(f"v_xor_b32 v{va}, v{t}, v{J}")
    a.e("s_add_u32 s36, s48, s38"); a.e("s_add_u32 s36, s36, 16"); a.e(f"v_add_u32 v{t}, s36, v{t}")
    rowaddr(a, vb, t, t2); a.e(f"v_lshl_add_u32 v{vb}, v{va}, 4, v{vb}"); a.e(f"v_subrev_u32 v{va}, 65536, v{vb}")
    for i in range(4): a.e(f"s_add_u32 s{40+i}, s67, {2*i}"); a.e(f"s_and_b32 s{40+i}, s{40+i}, 6"); a.e(f"s_lshl_b32 s{40+i}, s{40+i}, 7")
    a.e("s_lshl_b32 s44, s37, 10")
    a.e(f"v_lshrrev_b32 v{t}, 3, v1"); a.e(f"v_and_b32 v{xr}, 7, v1"); a.e(f"v_xor_b32 v{xr}, v{xr}, v{t}")
    a.e("s_lshl_b32 s36, s37, 3"); a.e("s_add_u32 s36, s36, s48"); a.e(f"v_add_u32 v{t}, s36, v{t}"); rowaddr(a, xo, t, t2)
    a.e("s_lshl_b32 s36, s29, 7"); a.e(f"v_lshl_add_u32 v{xo}, v{xr}, 4, v{xo}"); a.e(f"v_add_u32 v{xo}, s36, v{xo}")
    a.e(f"v_lshrrev_b32 v{t}, 1, v{G}"); a.e("s_lshl_b32 s36, s37, 1"); a.e(f"v_add_u32 v{t}, s36, v{t}"); a.e(f"v_and_b32 v{t2}, 7, v{J}"); a.e(f"v_xor_b32 v{t}, v{t}, v{t2}")
    a.e(f"v_lshlrev_b32 v{xr}, 7, v{J}"); a.e(f"v_lshl_add_u32 v{xr}, v{t}, 4, v{xr}"); a.e(f"v_and_b32 v{t}, 1, v{G}"); a.e(f"v_lshl_add_u32 v{xr}, v{t}, 3, v{xr}")
    out_addr(a, so, J, G, t)
    a.e(f"v_mov_b32 v{rb}, v2"); a.e(f"v_add_u32 v{rb+1}, {WINB}, v2")
    a.e(f"v_lshrrev_b32 v{t}, 5, v{so}"); a.e(f"v_and_b32 v{t}, 2048, v{t}"); a.e(f"v_and_b32 v{ow}, 511, v{so}"); a.e(f"v_add_u32 v{ow}, v{ow}, v{t}")
    a.e("s_lshl_b32 s36, s37, 9"); a.e(f"v_add_u32 v{ow}, s36, v{ow}")
    x3_srd(a, 12); lsrd(a, 16, oH, XSZ); lsrd(a, 24, oX1P, XSZ)
    h_rot(a, 78); h_flag(a, 84)
    L = a.lab("lns"); D = a.lab("lnk")
    a.e("s_mov_b32 s53, 0")
    a.e(f"{L}:")
    a.e(f"buffer_load_dwordx4 {vr(ln,4)}, v{lo}, s[20:23], 0 offen {SC}"); a.e("s_waitcnt vmcnt(0)")
    a.e(f"v_cmp_eq_u32 vcc, s52, v{ln+1}"); a.e(f"v_cmp_eq_u32 s[50:51], s52, v{ln+3}"); a.e("s_and_b64 vcc, vcc, s[50:51]"); a.e("s_orn2_b64 vcc, vcc, s[46:47]")
    a.e("s_cmp_eq_u64 vcc, -1"); a.e(f"s_cbranch_scc1 {D}")
    a.e(f"s_sleep {env('LSLEEP', 4)}")
    a.e("s_add_u32 s53, s53, 1"); a.e("s_cmp_lt_u32 s53, s61"); a.e(f"s_cbranch_scc1 {L}")
    a.e("s_mov_b32 s61, 0")
    a.e(f"{D}:")
    unpack(a, ln + 4, ln + 5, ln); unpack(a, ln + 6, ln + 7, ln + 2)
    for r in (ln + 5, ln + 7): a.e(f"v_cndmask_b32 v{r}, 1.0, v{r}, s[46:47]")
    a.e("s_lshl_b32 s36, s34, 10"); a.e(f"s_add_u32 s36, s36, {REC}"); a.e(f"v_add_u32 v{t}, s36, v2")
    X = a.lab("lnx"); D = a.lab("lnd")
    a.e("s_cmp_ge_u32 s37, 2"); a.e(f"s_cbranch_scc1 {X}")
    a.e(f"v_mul_f32 v{o+6}, v{ln+5}, v{ln+7}"); a.e(f"v_fma_f32 v{o}, -v{ln+6}, v{ln+5}, -v{ln+4}"); a.e(f"v_rcp_f32 v{t2}, v{o+6}")
    a.e(f"v_mov_b32 v{o+7}, v{o+6}"); a.e(f"v_mov_b32 v{o+1}, v{o}")
    a.e(f"v_mul_f32 v{o+2}, {f32(GC1)}, v{t2}"); a.e(f"v_mul_f32 v{t2}, v{t2}, v{t2}"); a.e(f"v_mov_b32 v{o+3}, v{o+2}")
    a.e(f"v_mul_f32 v{t2}, {f32(0.044715)}, v{t2}"); a.e(f"v_mul_f32 v{o+4}, v{t2}, v{o+2}"); a.e(f"v_mov_b32 v{o+5}, v{o+4}")
    for p in range(2): a.e(f"ds_write_b128 v{t}, {vr(o+4*p,4)} offset:{2048*p}")
    a.e(f"s_branch {D}")
    a.e(f"{X}:")
    a.e(f"v_rcp_f32 v{o}, v{ln+5}"); a.e(f"v_mul_f32 v{o+2}, -v{ln+4}, v{o}"); a.e(f"v_mov_b32 v{o+1}, v{o}"); a.e(f"v_mov_b32 v{o+3}, v{o+2}")
    a.e(f"ds_write_b128 v{t}, {vr(o,4)} offset:{LNSL-REC}")
    a.e(f"{D}:")
    a.e(f"v_lshlrev_b32 v{t2}, 4, v{J}"); a.e(f"v_add_u32 v{t2}, {LNSL}, v{t2}")
    def issue(s):
        if s >= 16: return h_issue(T, s, 78, 16)
        c, i = s // 4, s % 4
        if getattr(T, "armed", None) != s: arm(s)
        for mt in range(2):
            for kh in range(2):
                if mt or kh: T.e(f"s_add_u32 m0, s44, {WSLOT[s] + kh*8192 + mt*4096 - kh*1024}")
                T.vm(f"buffer_load_dwordx4 v{(va, vb)[mt]}, s[12:15], s49 offen offset:{1024*kh} {SC} lds", s)
                for x in T.fill[:5]: T.e(x)
                T.fill = T.fill[5:]
        if s == 3: T.e(f"v_mov_b32 v{va}, v{vb}"); T.e(f"v_add_u32 v{vb}, 65536, v{vb}")
    def arm(s):
        if s >= 16: return h_arm(T, s, 78)
        T.e(f"s_add_u32 m0, s44, {WSLOT[s]}"); T.e(f"s_add_u32 s49, s{40+s%4}, {max(0, s//4*2-1)*65536}"); T.armed = s
    def resld():
        for c in range(4):
            T.e(f"s_add_u32 m0, s44, {4096*c}"); T.e(f"s_mov_b32 s36, {c*131072}")
            T.vm(f"buffer_load_dwordx4 v{xo}, s[12:15], s36 offen {SC} lds", "x")
    def res1(c):
        for mt in range(2):
            a.e(f"ds_read_b64 {vr(xn+8*c+4*mt+2,2)}, v{xr} offset:{4096*c + 2048*mt}"); a.e(f"ds_read_b128 {vr(o+4*mt,4)}, v{t2} offset:{512*c + 256*mt}")
    def res2(c):
        b = Rec(); b.e("s_waitcnt lgkmcnt(0)")
        for mt in range(2):
            X = xn + 8 * c + 4 * mt
            for e in range(2): unpack(b, X + 2 * e, X + 2 * e + 1, X + 2 + e)
            for e in range(2): b.e(f"v_pk_fma_f32 {vr(X+2*e,2)}, {vr(X+2*e,2)}, {vr(o+4*mt,2)}, {vr(o+4*mt+2,2)}")
        T.fill = b.l
    RESAT = env("RESAT", 4); RESUSE = env("RESUSE", 7); T.fill = []
    a.e(f"s_setprio {LPRIO}")
    mstamp(a)
    arm(0)
    a.e("s_barrier")
    mstamp(a)
    for s in WISSUE["F"]: issue(s)
    a.e("s_waitcnt lgkmcnt(0)")
    for b in range(16):
        if WISSUE[b]: arm(WISSUE[b][0])
        if b == RESUSE: T.wv("x")
        T.wv(b); T.e("s_barrier")
        if GSTW in ("w", "y") or os.environ.get("JIT"): mstamp(a, True)
        for c in range(4):
            if TRY[c] < 16 and CHK[c] == b: h_check(a, c, 84, tp)
            assert TRY[c] >= 16 or (CHK[c] < 16 and TRY[c] >= RESUSE + 5)
        if b == CHK[0]: mstamp(a)
        for c in range(4):
            if TRY[c] == b: h_try(a, c, 84)
        if 1 <= b - RESUSE < 5: res2(b - RESUSE - 1)
        for s in WISSUE[b]: issue(s)
        assert not T.fill
        if 0 <= b - RESUSE < 4: res1(b - RESUSE)
        if b == RESAT: resld()
        for k in range(2):
            if W3AT[k] == b: w3_stage(a, k); T.vq += ["w"] * 7
    a.e("s_setprio 0")
    def rd(d, s, k, q):
        x = WSLOT[s]; hi = x >= WINB
        return f"ds_read_b128 {vr(d,4)}, v{rb+hi} offset:{x - WINB*hi + 4096*q + 1024*k}"
    acc = lambda c: xn + 8 * c
    def epi(c):
        X = acc(c)
        for i in range(4): T.e(f"v_cvt_pk_bf16_f32 v{X+i}, v{X+2*i}, v{X+2*i+1}")
        T.e(f"s_add_u32 s36, s39, {c*131072}")
        for e in range(2): T.e(f"v_permlane16_swap_b32 v{X+e}, v{X+2+e}")
    def ost(c):
        T.e(f"s_add_u32 s36, s39, {c*131072}"); T.vm(f"buffer_store_dwordx4 {vr(acc(c),4)}, v{so}, s[24:27], s36 offen {SC}", "o")
    def own(c): T.ds(f"ds_write_b128 v{ow}, {vr(acc(c),4)} offset:{4096*c}", "ow")
    def stats(c):
        X = tp; pp, qq = acc(c) + 4, acc(c) + 6
        for i in range(4): unpack(T, X + 2 * i, X + 2 * i + 1, acc(c) + i)
        T.e(f"v_pk_add_f32 {vr(pp,2)}, {vr(X,2)}, {vr(X+2,2)}"); T.e(f"v_pk_mul_f32 {vr(qq,2)}, {vr(X,2)}, {vr(X,2)}")
        for i in range(1, 4):
            if i > 1: T.e(f"v_pk_add_f32 {vr(pp,2)}, {vr(pp,2)}, {vr(X+2*i,2)}")
            T.e(f"v_pk_fma_f32 {vr(qq,2)}, {vr(X+2*i,2)}, {vr(X+2*i,2)}, {vr(qq,2)}")
        T.e(f"v_add_f32 v{S+2*c}, v{pp}, v{pp+1}"); T.e(f"v_add_f32 v{S+2*c+1}, v{qq}, v{qq+1}")
    pre, post, mid = {}, {}, {}
    add(post, 16, lambda: mstamp(a))
    for s in range(16, 32): add(pre, s, lambda s=s: T.wv(s))
    SLATE = env("SLATE", 1)
    for c in range(3):
        add(mid, (20 + 4 * c, 3), lambda c=c: (epi(c), SLATE or stats(c)))
        add(mid, (OST, 1 + c), lambda c=c: ost(c))
    add(mid, (32, 0), lambda: [own(c) for c in range(3)])
    win_compute(T, 2, rd, acc, True, FR, pre, post, mid)
    mstamp(a)
    T.e(f"s_setprio {env('LPRIO3', 0)}")
    epi(3); ost(3); own(3); T.wl("ow")
    T.e("s_barrier")
    mstamp(a)
    def rest(a_, which):
        T.a = a_
        for c in range(0 if SLATE else 3, 4): stats(c)
        T.e("s_and_b32 s36, s30, 3"); T.e("s_lshl_b32 s36, s36, 10"); T.e(f"s_add_u32 s36, s36, {REC}"); T.e(f"v_lshlrev_b32 v{t}, 3, v1"); T.e(f"v_add_u32 v{t}, s36, v{t}")
        for k in range(2): T.e(f"v_permlane32_swap_b32 v{S+k}, v{S+2+k}"); T.e(f"v_permlane32_swap_b32 v{S+4+k}, v{S+6+k}")
        T.e(f"v_pk_add_f32 {vr(S,2)}, {vr(S,2)}, {vr(S+2,2)}"); T.e(f"v_pk_add_f32 {vr(S+4,2)}, {vr(S+4,2)}, {vr(S+6,2)}")
        for k in range(2): T.e(f"ds_write_b64 v{t}, {vr(S+4*k,2)} offset:{512*k}")
    assert xn >= 18 and t == 6
    G2S.append(lambda: call_issue(a, rest, 2))

C2R = 230; SO3 = 254
def g_compute(a, which):
    c = CFG[which]
    WM, WN, MT, NT, KBT, NS, NA, NW, TN16, STB, WB = [c[k] for k in "WM WN MT NT KBT NS NA NW TN16 STB WB".split()]
    v = VA(6, skip=which == 4); nm = f"G{which}"
    lane = 1; l16 = 2
    t = v(); t2 = v(); pt = v(4, 2)
    NTILE = 29 if which != 4 else 33
    a0 = v(); w0 = v(4, 1); aa = v(); wa = v(4, 1); J = v(); G = v(); NF = MT + NT
    if which == 3: acc = v(MT * NT * 4, 4); fX = v(NF * 4, 4); fY = v(NF * 4, 4); tmp = v(); tp = v(4, 2)
    else: fX = v(NF * 4, 4); xf = v(4, 2); oa = v(2, 2); xo = v(); acc = v(MT * NT * 4, 4); fY = v(NF * 4, 4)
    assert v.hi <= C2R
    def A_(mt, nt): return acc + 4 * (mt * NT + nt)
    s = Rec()
    s.e("s_lshr_b32 s34, s30, 1"); s.e("s_and_b32 s35, s30, 1")
    s.e(f"v_and_b32 v{J}, 15, v{lane}"); s.e(f"v_lshrrev_b32 v{G}, 4, v{lane}")
    s.e(f"s_mul_i32 s37, s34, {MT}")
    s.e(f"s_mul_i32 s38, s{NTILE}, {TN16}"); s.e(f"s_mul_i32 s36, s35, {NT}"); s.e("s_add_u32 s38, s38, s36")
    if which == 4:
        s.e("s_lshr_b32 s36, s38, 1"); spread(s, 39, 36); s.e("s_lshl_b32 s36, s37, 16"); s.e("s_add_u32 s39, s39, s36")
    s.e(f"s_mul_i32 s36, s34, {MT*2048}"); s.e(f"v_add_u32 v{a0}, s36, v{l16}")
    nwr, wpos = w_bases(s, which, w0, 35, NT, t, t2)
    s.e("s_mov_b32 s42, 0"); s.e("s_mov_b32 s43, 0"); s.e("s_mov_b32 s48, 0")
    s.e(f"v_mov_b32 v{aa}, v{a0}")
    for i in range(nwr): s.e(f"v_mov_b32 v{wa+i}, v{w0+i}")
    if which == 3: window_x(a, "\n".join(s.l))
    else:
        for x in s.l: a.e(x)
    def reads(F, kk):
        o = []
        for mt in range(MT): o.append(f"ds_read_b128 {vr(F+4*mt,4)}, v{aa} offset:{mt*2048+kk*1024}")
        for nt in range(NT):
            for h in range(2):
                r, imm = wpos(nt, kk, h)
                o.append(f"ds_read_b64_tr_b16 {vr(F+4*(MT+nt)+2*h,2)}, v{wa+r} offset:{imm}")
        return o
    def mix(rd, ex):
        rd = list(rd)
        for i, x in enumerate(ex): rd.insert(min(len(rd), (i + 1) * len(rd) // (len(ex) + 1)), x)
        return rd
    def mfmas(F, rd, tail=(), zero=False):
        n = MT * NT; k = 0; tot = len(rd); span = max(1, n * 3 // 4); done = 0; tail = list(tail); per = -(-len(tail) // max(1, n - span))
        for nt, mt in [(nt, mt if nt % 2 == 0 else MT - 1 - mt) for nt in range(NT) for mt in range(MT)]:
            cc = acc + 4 * (mt * NT + nt)
            a.e(f"v_mfma_f32_16x16x32_bf16 {vr(cc,4)}, {vr(F+4*(MT+nt),4)}, {vr(F+4*mt,4)}, {0 if zero else vr(cc,4)}")
            k += 1
            while rd and done < (tot * k + span - 1) // span: a.e(rd.pop(0)); done += 1
            if k >= span and k < n:
                for _ in range(min(per, len(tail))): a.e(tail.pop(0))
        assert not rd and not tail
    def stage(ex=(), ey=(), lim=NS-1, late=False, zero=False):
        if str(which) in os.environ.get("GST", "") or os.environ.get("JIT"): mstamp(a, True)
        a.e("s_waitcnt lgkmcnt(0)")
        book = ["s_add_u32 s42, s42, 16384", f"s_cmp_eq_u32 s42, {NA*16384}", "s_cselect_b32 s42, 0, s42",
                f"s_add_u32 s48, s48, {STB}", f"s_cmp_eq_u32 s48, {NW*STB}", "s_cselect_b32 s48, 0, s48", f"v_add_u32 v{aa}, s42, v{a0}"]
        book += [f"v_add_u32 v{wa+i}, s48, v{w0+i}" for i in range(nwr)]
        mfmas(fX, mix(reads(fY, 1), ex), book, zero)
        if late:
            a.e("s_waitcnt lgkmcnt(0)"); mfmas(fY, [], ["s_add_u32 s43, s43, 1"]); a.e("s_barrier")
            for x in reads(fX, 0): a.e(x)
            return
        a.e("s_waitcnt lgkmcnt(0)"); a.e("s_barrier")
        mfmas(fY, mix(reads(fX, 0), ey), ["s_add_u32 s43, s43, 1", f"s_cmp_lt_u32 s43, {lim}"])
    a.e("s_waitcnt lgkmcnt(0)"); a.e("s_barrier")
    mstamp(a)
    for x in reads(fX, 0): a.e(x)
    if which == 4:
        def st2(j): return [f"s_add_u32 s36, s44, {j*224*1024}\nbuffer_store_dwordx4 {vr(C2R+4*j,4)}, v{l16}, s[16:19], s36 offen {SC}",
                            f"s_add_u32 s36, s45, {j*224*1024}\nbuffer_store_dwordx2 {vr(C2R+16+2*j,2)}, v{SO3}, s[16:19], s36 offen {SC}"]
        stage(st2(0), st2(1), zero=True); stage(st2(2), st2(3)); publish(a, ST_G3B, 4, pt, wait=8)
        L0 = a.lab("mm"); a.e(f"{L0}:"); stage(lim=PUB2); a.e(f"s_cbranch_scc1 {L0}")
        publish(a, ST_G3, 4, pt)
    else: stage(late=True, zero=True); mstamp(a)
    L = a.lab("mm"); a.e(f"{L}:")
    stage()
    a.e(f"s_cbranch_scc1 {L}")
    a.e("s_waitcnt lgkmcnt(0)")
    b0 = Rec()
    if which == 4:
        a.e("s_cmp_eq_u32 s60, 1"); a.e("s_cbranch_scc1 G4_last")
        r_pre(b0)
    mfmas(fX, reads(fY, 1) + b0.l)
    a.e("s_waitcnt lgkmcnt(0)")
    if which == 3: a.e("s_barrier")
    b = Rec()
    if which == 3:
        so = SO3; cs = fX; lns = fX + 4 * NT
        b.e(f"s_mul_i32 s36, s35, {NT*64}"); b.e(f"s_add_u32 s36, s36, {CSO[which]}"); b.e(f"v_lshlrev_b32 v{t}, 4, v{G}"); b.e(f"v_add_u32 v{t}, s36, v{t}")
        for nt in range(NT): b.e(f"ds_read_b128 {vr(cs+4*nt,4)}, v{t} offset:{nt*64}")
        b.e(f"s_lshl_b32 s36, s34, 9"); b.e(f"s_add_u32 s36, s36, {AUX+1024}")
        b.e(f"v_lshlrev_b32 v{t2}, 3, v{J}"); b.e(f"v_add_u32 v{t2}, s36, v{t2}")
        for mt in range(MT): b.e(f"ds_read_b64 {vr(lns+2*mt,2)}, v{t2} offset:{mt*128}")
        lsrd(b, 16, oH2, H2SZ)
        b.e(f"s_mul_i32 s39, s37, {224*1024}")
        for P in range(4):
            b.e("s_lshr_b32 s36, s38, 1"); b.e(f"s_add_u32 s36, s36, {P}"); spread(b, 44 + P, 36); b.e(f"s_add_u32 s{44+P}, s{44+P}, s39")
        b.e("s_lshl_b32 s36, s37, 1"); b.e("s_add_u32 s36, s36, s35"); b.e("s_lshl_b32 s36, s36, 10"); b.e(f"v_add_u32 v{a0}, s36, v{l16}")
        b.e(f"v_lshrrev_b32 v{so}, 1, v{G}"); b.e(f"v_lshlrev_b32 v{so}, 8, v{so}"); b.e(f"v_lshl_add_u32 v{so}, v{J}, 4, v{so}")
        b.e(f"v_and_b32 v{tmp}, 1, v{G}"); b.e(f"v_lshl_add_u32 v{so}, v{tmp}, 3, v{so}")
    else:
        b.e(f"s_mul_i32 s36, s31, {oP1-oP0}"); b.e(f"s_add_u32 s36, s36, {oP0}")
        b.e("s_add_u32 s16, s62, s36"); b.e("s_addc_u32 s17, s63, 0"); b.e(f"s_mov_b32 s18, {XSZ}"); b.e("s_mov_b32 s19, 0x20000")
    mfmas(fY, b.l)
    mstamp(a)
    if which == 3:
        AB = fY + 4
        def consts():
            for mt in range(MT):
                r = lns + 2 * mt + 1
                a.e(f"v_mul_f32 v{AB+2*mt}, {f32(GC1)}, v{r}"); a.e(f"v_mul_f32 v{AB+2*mt+1}, v{r}, v{r}")
                a.e(f"v_mul_f32 v{AB+2*mt+1}, v{AB+2*mt+1}, v{AB+2*mt}"); a.e(f"v_mul_f32 v{AB+2*mt+1}, {f32(0.044715)}, v{AB+2*mt+1}")
                a.e(f"v_rcp_f32 v{r}, v{r}")
        def act(mt, nt):
            A = A_(mt, nt); P_ = [(A, tp), (A + 2, tp + 2)]; L_ = vr(lns + 2 * mt, 2); K_ = vr(AB + 2 * mt, 2)
            for h in range(2):
                a.e(f"v_pk_fma_f32 {vr(A+2*h,2)}, {L_}, {vr(cs+4*nt+2*h,2)}, {vr(A+2*h,2)} op_sel_hi:[0,1,1] neg_lo:[1,0,0] neg_hi:[1,0,0]")
            for x, u in P_: a.e(f"v_pk_mul_f32 {vr(u,2)}, {vr(x,2)}, {vr(x,2)}")
            for x, u in P_: a.e(f"v_pk_fma_f32 {vr(u,2)}, {vr(u,2)}, {K_}, {K_} op_sel:[0,1,0] op_sel_hi:[1,1,0]")
            for x, u in P_: a.e(f"v_pk_mul_f32 {vr(u,2)}, {vr(u,2)}, {vr(x,2)}")
            for i in range(4): a.e(f"v_exp_f32 v{tp+i}, v{tp+i}")
            for x, u in P_: a.e(f"v_pk_fma_f32 {vr(u,2)}, {vr(u,2)}, {L_}, {L_} op_sel:[0,1,1] op_sel_hi:[1,1,1]")
            for i in range(4): a.e(f"v_rcp_f32 v{tp+i}, v{tp+i}")
            for x, u in P_: a.e(f"v_pk_mul_f32 {vr(x,2)}, {vr(x,2)}, {vr(u,2)}")
        def group(par, mt, nts, dst=None):
            for nt in nts: act(mt, nt)
            T = par * NT + nts[0]; P = (T >> 1) - ((par * NT) >> 1); B = A_(mt, nts[0]); D = B if dst is None else dst
            for k in range(2 * len(nts)): a.e(f"v_cvt_pk_bf16_f32 v{D+k}, v{B+2*k}, v{B+2*k+1}")
            return [f"s_add_u32 s36, s{44+P}, {mt*224*1024}", f"buffer_store_dwordx4 {vr(B,4)}, v{l16}, s[16:19], s36 offen {SC}"]
        def body(par):
            gs = [(0, 1), (2, 3), (4, 5), (6,)] if par == 0 else [(1, 2), (3, 4), (5, 6), (0,)]
            k = 0; pend = []; sent = 0
            for gi_, g_ in enumerate(gs):
                for mt in range(MT):
                    if k == C0PUB: publish(a, ST_G3A, 4, pt, wait=sent - 4, ctr=48); mstamp(a)
                    st_ = group(par, mt, g_, None if gi_ < 2 else C2R + 4 * mt if gi_ == 2 else C2R + 16 + 2 * mt); k += 1
                    if gi_ < 3:
                        a.e(f"ds_write_b128 v{a0}, {vr(A_(mt, g_[0]) if gi_ < 2 else C2R + 4 * mt, 4)} offset:{gi_*16384 + mt*2048}")
                    if gi_ < 2: pend.append(st_)
                    n = len(pend) if (k <= 4 or k == 16) else 0 if k <= STQ else min(1, len(pend))
                    for _ in range(n):
                        for x in pend.pop(0): a.e(x)
                        sent += 1
            a.e("s_waitcnt lgkmcnt(0)")
            if par == 0: a.e("s_mov_b32 s44, s46"); a.e("s_mov_b32 s45, s47")
            else: a.e("s_add_u32 s45, s44, 512"); a.e("s_mov_b32 s44, s47")
        a.e("s_waitcnt lgkmcnt(0)")
        consts()
        a.e("s_cmp_eq_u32 s35, 1"); a.e(f"s_cbranch_scc1 {nm}_e1")
        body(0); a.e(f"s_branch {nm}_e2"); a.e(f"{nm}_e1:"); body(1); a.e(f"{nm}_e2:")
        mstamp(a)
        return
    for mt in range(MT):
        a.e(f"s_add_u32 s36, s39, {mt*65536}")
        for p in range(NT // 2):
            B = A_(mt, 2 * p)
            for e in range(4): a.e(f"v_cvt_pk_bf16_f32 v{B+e}, v{B+2*e}, v{B+2*e+1}")
            a.e(f"buffer_store_dwordx4 {vr(B,4)}, v{l16}, s[16:19], s36 offen offset:{p*1024} {SC}")
    a.e("s_barrier")
    mstamp(a)
    publish(a, which, 4, pt)
    mstamp(a)
    a.e("s_branch NEXT")
    a.e("G4_last:")
    RX = 80; PX = fX
    b0 = Rec()
    b0.e(f"s_load_dwordx2 s[6:7], s[0:1], {D_OUT}")
    x3_srd(b0, 84); lsrd(b0, 88, oX1P, XSZ)
    b0.e("s_lshl_b32 s40, s31, 17"); b0.e("s_add_u32 s40, s40, s39")
    b0.e("s_xor_b32 s41, s31, 1"); b0.e("s_lshl_b32 s41, s41, 17"); b0.e("s_add_u32 s41, s41, s39")
    rowaddr(b0, xo, J, oa); b0.e(f"v_lshl_add_u32 v{xo}, v{G}, 4, v{xo}")
    b0.e("s_lshl_b32 s46, s28, 3"); b0.e("s_add_u32 s46, s46, s37"); b0.e("s_lshl_b32 s47, s31, 1"); b0.e("s_add_u32 s46, s46, s47")
    b0.e("s_lshl_b32 s49, s46, 16"); b0.e("s_lshl_b32 s47, s38, 5"); b0.e("s_add_u32 s49, s49, s47")
    for i in range(2):
        b0.e(f"s_add_u32 s36, s40, {i*65536}")
        if i: b0.e("s_add_u32 s49, s49, 65536")
        for p in range(2):
            b0.e(f"buffer_load_dwordx4 {vr(RX+8*(2*i+p),4)}, v{xo}, s[84:87], s49 offen offset:{p*64} {SC}")
            b0.e(f"buffer_load_dwordx4 {vr(RX+8*(2*i+p)+4,4)}, v{l16}, s[88:91], s36 offen offset:{p*1024} {SC}")
    mfmas(fX, reads(fY, 1) + b0.l)
    a.e("s_waitcnt lgkmcnt(0)")
    b = Rec()
    lsrd(b, 16, oP0, XSZ)
    b.srd(20, 6, 4 * MB)
    b.e("s_lshl_b32 s44, s29, 2"); b.e("s_add_u32 s44, s44, s30"); b.e("s_lshl_b32 s44, s44, 7"); b.e("s_xor_b32 s45, s44, 4096")
    b.e("s_add_u32 s44, s44, s55"); b.e(f"s_add_u32 s44, s44, {oFP}"); b.e("s_add_u32 s45, s45, s55"); b.e(f"s_add_u32 s45, s45, {oFP}")
    b.e(f"v_mov_b32 v{pt+1}, s45"); b.e(f"v_mov_b32 v{pt+2}, s52"); b.e(f"v_mov_b32 v{pt+3}, 0")
    b.e("s_lshl_b32 s46, s46, 15"); b.e("s_add_u32 s46, s46, s47"); b.e(f"s_add_u32 s47, s46, {16*2048}")
    b.e(f"v_and_b32 v{oa+1}, 1, v{G}"); b.e(f"v_lshlrev_b32 v{oa}, 11, v{J}"); b.e(f"v_lshl_add_u32 v{oa}, v{oa+1}, 5, v{oa}")
    b.e(f"v_lshrrev_b32 v{oa+1}, 1, v{G}"); b.e(f"v_lshl_add_u32 v{oa}, v{oa+1}, 4, v{oa}")
    b.e(f"v_cmp_gt_u32 s[48:49], 8, v{J}")
    b.e(f"v_lshrrev_b32 v{oa+1}, 3, v{J}"); b.e(f"v_mul_u32_u24 v{oa+1}, {8*2048 - 64}, v{oa+1}"); b.e(f"v_sub_u32 v{oa}, v{oa}, v{oa+1}")
    b.e(f"v_add_u32 v{oa+1}, {8*2048}, v{oa}")
    mfmas(fY, b.l)
    mstamp(a)
    a.e("s_cmp_eq_u32 s31, 0"); a.e("s_cbranch_scc1 G4_k0")
    for i in range(32): a.e(f"v_swap_b32 v{acc+i}, v{acc+32+i}")
    a.e("G4_k0:")
    for i in range(2):
        a.e(f"s_add_u32 s36, s41, {i*65536}")
        for p in range(2):
            B = A_(2 + i, 2 * p)
            for e in range(4): a.e(f"v_cvt_pk_bf16_f32 v{B+e}, v{B+2*e}, v{B+2*e+1}")
            a.e(f"buffer_store_dwordx4 {vr(B,4)}, v{l16}, s[16:19], s36 offen offset:{p*1024} {SC}")
    def addp(k, R):
        B = A_(k >> 1, 2 * (k & 1))
        for e in range(4):
            unpack(a, xf + 2 * (e & 1), xf + 1 + 2 * (e & 1), R + e)
            a.e(f"v_pk_add_f32 {vr(B+2*e,2)}, {vr(B+2*e,2)}, {vr(xf+2*(e&1),2)}")
    a.e("s_waitcnt vmcnt(4)")
    for k in range(4): addp(k, RX + 8 * k)
    a.e("s_waitcnt vmcnt(0)")
    a.e("s_mov_b64 exec, 1"); a.e(f"buffer_store_dword v{pt+2}, v{pt+3}, s[56:59], s44 offen {SC}"); a.e("s_mov_b64 exec, -1")
    mstamp(a)
    for k in range(4): addp(k, RX + 8 * k + 4)
    poll_core(a, pt, pt + 1, 1, nap=2)
    mstamp(a)
    for i in range(2):
        a.e(f"s_add_u32 s36, s40, {i*65536}")
        for p in range(2): a.e(f"buffer_load_dwordx4 {vr(PX+4*(2*i+p),4)}, v{l16}, s[16:19], s36 offen offset:{p*1024} {SC}")
    for k in range(4):
        a.e(f"s_waitcnt vmcnt({3 - (k & 1)})")
        addp(k, PX + 4 * k)
        B = A_(k >> 1, 2 * (k & 1))
        for e in range(8): a.e(f"v_mul_f32 v{B+e}, {f32(float(os.environ['OSC']))}, v{B+e}")
        for e in range(4): a.e(f"v_cvt_pk_bf16_f32 v{B+e}, v{B+2*e}, v{B+2*e+1}")
        for e in range(2): a.e(f"v_permlane16_swap_b32 v{B+e}, v{B+2+e}")
        if k & 1:
            X, Y_, T = B - 8, B, B + 4
            for e in range(4): a.e(f"v_cndmask_b32 v{T+e}, v{X+e}, v{Y_+e}, s[48:49]")
            for e in range(4): a.e(f"v_mov_b32_dpp v{X+4+e}, v{T+e} row_ror:8 row_mask:0xf bank_mask:0xf")
            for e in range(4): a.e(f"v_cndmask_b32 v{X+e}, v{X+4+e}, v{X+e}, s[48:49]"); a.e(f"v_cndmask_b32 v{Y_+e}, v{Y_+e}, v{X+4+e}, s[48:49]")
            a.e(f"buffer_store_dwordx4 {vr(X,4)}, v{oa}, s[20:23], s{46+(k>>1)} offen {SC}")
            a.e(f"buffer_store_dwordx4 {vr(Y_,4)}, v{oa+1}, s[20:23], s{46+(k>>1)} offen {SC}")
    a.e("s_branch K_fin")

def k_mega(a):
    nm = KNAME; a.begin_kernel(nm)
    a.e("s_cmp_ge_u32 s2, 256"); a.e("s_cbranch_scc1 K_end")
    a.e(f"s_load_dwordx8 s[8:15], s[0:1], {A_K}"); a.e(f"s_load_dwordx2 s[6:7], s[0:1], {A_Q}"); a.e(f"s_load_dwordx8 s[68:75], s[0:1], {B_W1}")
    a.e(f"s_load_dwordx2 s[4:5], s[0:1], {D_WS}"); a.e(f"s_load_dwordx2 s[84:85], s[0:1], {D_DBG}"); a.e("s_memrealtime s[46:47]")
    a.e("v_lshrrev_b32 v1, 6, v0"); a.e("v_readfirstlane_b32 s30, v1")
    a.e("s_getpc_b64 s[48:49]"); a.e("K_pc:")
    a.e("s_lshr_b32 s36, s2, 3"); a.e("s_lshl_b32 s36, s36, 12")
    a.e("v_lshlrev_b32 v252, 3, v0"); a.e("v_add_u32 v252, s36, v252")
    a.e("v_cmp_gt_u32 vcc, K_end-K_pc-8, v252"); a.e("s_and_saveexec_b64 s[36:37], vcc"); a.e("s_cbranch_execz K_3")
    a.e("v_mov_b32 v253, s49"); a.e("v_add_co_u32 v252, vcc, s48, v252"); a.e("v_addc_co_u32 v253, vcc, 0, v253, vcc")
    a.e("global_load_dword v250, v[252:253], off")
    a.e("K_3:"); a.e("s_mov_b64 exec, -1")
    front_loads(a)
    a.e("v_and_b32 v1, 63, v0"); a.e("v_lshlrev_b32 v2, 4, v1"); a.e("v_lshlrev_b32 v3, 2, v1")
    a.e("s_and_b32 s32, s2, 7"); a.e("s_lshr_b32 s33, s2, 3")
    a.e("s_and_b32 s28, s32, 2"); a.e("s_lshr_b32 s34, s32, 2"); a.e("s_or_b32 s28, s28, s34")
    a.e("s_lshl_b32 s28, s28, 2"); a.e("s_and_b32 s34, s33, 3"); a.e("s_add_u32 s28, s28, s34")
    a.e("s_and_b32 s31, s32, 1"); a.e("s_lshr_b32 s33, s33, 2")
    a.e("s_lshl_b32 s29, s31, 3"); a.e("s_add_u32 s29, s29, s33")
    a.e(f"s_and_b32 s67, s33, {env('RMASK', 4)}")
    a.e("s_mov_b32 s60, 0"); a.e("s_mov_b32 s61, 40000"); a.e("s_mov_b32 s52, 0")
    a.e("s_mov_b32 s55, 0"); a.e("s_mov_b32 s92, 0"); a.e("s_mov_b32 s93, 0"); a.e("s_mov_b32 s94, 0")
    a.srd(56, 4, X3G)
    a.e(f"s_add_u32 s62, s4, {LB0}"); a.e("s_addc_u32 s63, s5, 0")
    if STAMP:
        a.e("s_mov_b32 s66, 1"); a.e("v_mov_b32 v4, -1"); a.e("v_mov_b32 v5, 0"); a.e("s_mov_b32 s95, 0"); a.e("v_writelane_b32 v4, s46, 0")
    mstamp(a)
    front_a(a); mstamp(a)
    a.e("s_cmp_ge_u32 s30, 4"); a.e("s_cbranch_scc1 FR_b")
    front_conv(a)
    mstamp(a)
    lds_inc(a, LW + 24, 6)
    front_arrive(a, 0)
    a.e("s_branch FR_end")
    a.e("FR_b:")
    front_b(a)
    mstamp(a)
    front_c(a)
    a.e("FR_end:")
    mstamp(a)
    a.e("LAYER:")
    r_stage(a)
    mstamp(a)
    a.e("s_cmp_ge_u32 s30, 4"); a.e("s_cbranch_scc1 LOADERS")
    for w in (3, 4): g_compute(a, w)
    a.e("LOADERS:")
    window_y(a)
    a.e("s_cmp_ge_u32 s30, 6"); a.e("s_cbranch_scc1 WLOAD")
    for w in (3, 4): a_loader(a, w)
    a.e("s_branch NEXT")
    a.e("WLOAD:")
    w_loader(a, 3); w_setup(a, 4); w_loader(a, 4)
    a.e("NEXT:")
    a.e("s_setprio 0")
    a.e("s_add_u32 s60, s60, 1"); a.e(f"s_add_u32 s55, s55, {LSTR}")
    a.e(f"s_add_u32 s62, s62, {LSTR}"); a.e("s_addc_u32 s63, s63, 0")
    a.e("s_branch LAYER")
    a.e("K_fin:")
    if STAMP:
        a.e("s_waitcnt vmcnt(0)")
        mstamp(a)
        a.srd(96, 4, 16 * MB, off=200 * MB)
        a.e("s_lshl_b32 s66, s2, 3"); a.e("s_add_u32 s66, s66, s30"); a.e("s_lshl_b32 s66, s66, 8")
        a.e("v_writelane_b32 v4, s95, 63")
        a.e("buffer_store_dword v4, v3, s[96:99], s66 offen")
        a.e("s_add_u32 s66, s66, 0x100000"); a.e("buffer_store_dword v5, v3, s[96:99], s66 offen")
    a.e("s_endpgm")
    emit_subs(a)
    a.e("K_end:")
    a.end_kernel(nm, 256)
    a.launches.append(f"; @launch grid=(256,1,1) block=(512,1,1) lds={LDS_TOTAL}")

HEADER = open("interleave_layers__ssm_conv_h3__mixer_s_mlp__prompt.s.ref").read().split("; Override launch")[0]
DOC = """; One persistent kernel, 256 workgroups x 8 waves (one per CU), generated by dev/gen22.py.
"""
def main(out):
    a = Asm()
    k_mega(a)
    notes = {
        "K_pc:": "each workgroup reads 4 KB of this kernel's code so that later instruction fetches are served on chip",
        "KV_t0:": "k / v / tap loads of the u^T tile (64 times x 128 channels); workgroup 0 has posted the launch tag (a clock value) in d_debug",
        "HB_1:": "u^T tile out, arrival counters initialised to the tag, W2 slice into registers, shifted filter copies into LDS",
        "CV_w:": "long causal convolution as Toeplitz MFMAs, one channel per wave",
        "FR_b:": "waves 4-7 beside the convolution: memory-locality vote (timed loads, layout choice only), weight column sums, weight loads",
        "LAYER:": "row stage: residual sums, LayerNorm chain, x + LN(x)*y for 8 rows per workgroup",
        "LOADERS:": "waves 4-7: loads of G1, MFMAs of G2; then waves 4,5: activation tiles by LDS-DMA (after the producers' counters are complete)",
        "WLOAD:": "waves 6,7: weight tiles by LDS-DMA in their original layout (read back with transposing LDS loads)",
        "G4_last:": "last layer: the two K halves exchange half tiles, add the residuals and write the output",
    }
    o = []
    for l in a.lines:
        if l.strip() in notes: o.append("; ---- " + notes[l.strip()])
        if l.strip().startswith("s_sleep"): l += "    ; back-off inside a wait loop"
        o.append(l)
    a.lines = o
    open(out, "w").write(a.text(HEADER + DOC))
    print("nops added:", a.nops_added, "| slots", [WSLOT[s] // KB for s in range(32)], "| issue", {k: x for k, x in WISSUE.items() if x})

if __name__ == "__main__":
    main(sys.argv[1] if len(sys.argv) > 1 else "interleave_layers__ssm_conv_h3__mixer_s_mlp__prompt.s")
```

```python
import sys, os, math, struct
sys.path.insert(0, "dev")
from asmgen import Asm

KNAME = "interleave_layers__ssm_conv_h3__mixer_s_mlp__prompt_kernel"
MB = 1 << 20; KB = 1024
UT, Y = 24 * MB, 28 * MB
CSP3 = 20 * MB + 128 * 1024
A_Q, A_K, A_V, A_SH, A_SSMK, A_SSMD, B_X, B_W1, B_W2, B_W3, B_W4, D_OUT, D_DBG, D_WS = [8 * i for i in range(14)]
def env(k, d): return type(d)(os.environ.get(k, d)) if not isinstance(d, (list, dict, tuple)) else eval(os.environ.get(k, repr(d)))
STAMP = env("STAMP", 0)
def f32(x): return "0x%08x" % struct.unpack("<I", struct.pack("<f", x))[0]
GC1 = -2.0 * math.sqrt(2.0 / math.pi) * math.log2(math.e)

WAD = 74
RB0, RB1 = 78, 118
WR0 = 128
class VA:
    def __init__(self, start=1, skip=False): self.n = start; self.hi = start; self.skip = skip
    def __call__(self, cnt=1, al=None):
        if al is None: al = 2 if cnt > 1 else 1
        self.n = (self.n + al - 1) // al * al
        if self.skip and self.n < RB1 and self.n + cnt > RB0: self.n = (RB1 + al - 1) // al * al
        r = self.n; self.n += cnt; self.hi = max(self.hi, self.n); return r
def vr(b, n): return f"v[{b}:{b+n-1}]" if n > 1 else f"v{b}"

def unpack(a, lo, hi, src):
    a.e(f"v_lshlrev_b32 v{lo}, 16, v{src}")
    a.e(f"v_and_b32 v{hi}, 0xffff0000, v{src}")
def round2(a, x, y, tmp):
    a.e(f"v_cvt_pk_bf16_f32 v{tmp}, v{x}, v{y}")
    unpack(a, x, y, tmp)
def round1(a, x):
    a.e(f"v_cvt_pk_bf16_f32 v{x}, v{x}, v{x}")
    a.e(f"v_lshlrev_b32 v{x}, 16, v{x}")
def ln_finish(a, mean, var, rs):
    round1(a, mean); round1(a, var)
    a.e(f"v_add_f32 v{var}, {f32(1e-5)}, v{var}"); round1(a, var)
    a.e(f"v_sqrt_f32 v{var}, v{var}"); round1(a, var)
    if rs is not None: a.e(f"v_rcp_f32 v{rs}, v{var}")

FLG = 22 * MB
LB0, LSTR, GSTR = 32 * MB, 64 * MB, 8 * MB
oH2 = 0; oSM = 1792 * 1024; oST2 = oSM + 32768
oH, oX1P = [4 * MB + i * 512 * 1024 for i in range(2)]
XSZ = 512 * 1024 - 8192; H2SZ = 1792 * 1024 - 8192
X3G = 160 * MB
LNSG = FLG + 128 * KB
def spread(a, d, src):
    a.e(f"s_lshr_b32 s53, s{src}, 3"); a.e("s_lshl_b32 s53, s53, 14"); a.e(f"s_and_b32 s{d}, s{src}, 7"); a.e(f"s_lshl_b32 s{d}, s{d}, 10"); a.e(f"s_add_u32 s{d}, s{d}, s53")
ST_R, ST_G2, ST_G4, ST_G3A, ST_G3B, ST_G3, ST_G2S = 0, 8, 12, 32, 36, 40, 44
FH = 2048
F_KVT, F_FRONT, F_CS = FLG + 256 * KB, FLG + 512 * KB, FLG
LDS_TOTAL = 163840
AUX = LDS_TOTAL - 4096
SC = "sc1"
PSLEEP = env("PSLEEP", 5); PACE = env("PACE", 8); STQ = env("STQ", 12); FSLEEP = env("FSLEEP", 3)
NT = os.environ.get("NT", "nt"); NTK = NT; NTH = NT
PUB2 = env("PUB2", 4); MAP = env("MAP", 4); HSPLIT = env("HSPLIT", 2); PWAIT = env("PWAIT", 8)
PACES = env("PACES", {4: 8}); C0PUB = env("C0PUB", 7)
REC, LNSL = 152 * KB, AUX + 1024
WST = 24 * KB

CFG = {1: dict(KBT=32, NW=16, LDW=2048, TN16=4, WB=0),
       3: dict(WM=2, WN=2, MT=4, NT=7, KBT=32, NS=16, NA=3, NW=3, A=oX1P, LDW=7168, NPRE=2, WR=2),
       4: dict(WM=2, WN=2, MT=4, NT=4, KBT=112, NS=28, NA=3, NW=6, A=oH2, LDW=2048)}
for w, c in CFG.items():
    c.setdefault("NPRE", c["NW"]); c.setdefault("WR", 1)
    if w > 1: c["TN16"] = c["WN"] * c["NT"]; c["WB"] = c["NA"] * 16384
    c["STB"] = c["TN16"] * 2048; c["RB"] = c["TN16"] * 32
CFG[2] = CFG[1]
CSO = {1: AUX + 3328, 3: AUX}

LW = AUX + 3072
def mstamp(a, force=False):
    if os.environ.get("JIT"):
        X = a.lab("jit")
        a.e("s_cselect_b32 s101, 1, 0"); a.e("s_memtime s[64:65]"); a.e("s_waitcnt lgkmcnt(0)"); a.e(f"s_and_b32 s64, s64, {os.environ['JIT']}"); a.e("s_cmp_lg_u32 s64, 0")
        a.e(f"s_cbranch_scc1 {X}"); a.e("s_sleep 50"); a.e(f"{X}:"); a.e("s_cmp_eq_u32 s101, 1")
        return
    if not STAMP or (os.environ.get("GST") and not force): return
    if STAMP == 1:
        fn = sys._getframe(1)
        while fn.f_code.co_name in ("<lambda>", "flag"): fn = fn.f_back
        if fn.f_code.co_name in ("front_b", "window_y", "w_setup", "w_loader", "a_loader", "wait2", "run", "front_a"): return
        if fn.f_code.co_name == "win_compute" and fn.f_locals["g"] == 2: return
        a.e("s_memrealtime s[64:65]"); a.e("s_mov_b32 s100, m0"); a.e("s_mov_b32 m0, s66"); a.e("s_waitcnt lgkmcnt(0)")
        a.e("v_writelane_b32 v4, s64, m0"); a.e("s_mov_b32 m0, s100"); a.e("s_add_u32 s66, s66, 1")
        return
    a.e("s_memrealtime s[64:65]"); a.e("s_memtime s[96:97]")
    a.e("s_mov_b32 s100, m0"); a.e("s_mov_b32 m0, s66"); a.e("s_waitcnt lgkmcnt(0)")
    a.e("v_writelane_b32 v4, s64, m0"); a.e("v_writelane_b32 v5, s96, m0")
    a.e("s_mov_b32 m0, s100"); a.e("s_add_u32 s66, s66, 1")

def lsrd(a, d, off, nbytes, prev=False):
    if prev:
        a.e(f"s_sub_u32 s{d}, s62, {LSTR - off:#x}"); a.e(f"s_subb_u32 s{d+1}, s63, 0")
        a.e(f"s_mov_b32 s{d+2}, {nbytes:#x}"); a.e(f"s_mov_b32 s{d+3}, 0x20000")
    else: a.srd(d, 62, nbytes, off=off)
def x3_srd(a, d):
    a.e(f"s_lshl_b32 s{d+2}, s60, 24"); a.e(f"s_lshl_b32 s{d+3}, s94, 13"); a.e(f"s_add_u32 s{d+2}, s{d+2}, s{d+3}"); a.e(f"s_add_u32 s{d+2}, s{d+2}, {X3G}")
    a.e(f"s_add_u32 s{d}, s4, s{d+2}"); a.e(f"s_addc_u32 s{d+1}, s5, 0"); a.e(f"s_mov_b32 s{d+2}, {8*MB - 8192}"); a.e(f"s_mov_b32 s{d+3}, 0x20000")
def lns_srd(a, d):
    a.e(f"s_lshl_b32 s{d+2}, s60, 15"); a.e(f"s_add_u32 s{d+2}, s{d+2}, {LNSG}")
    a.e(f"s_add_u32 s{d}, s4, s{d+2}"); a.e(f"s_addc_u32 s{d+1}, s5, 0"); a.e(f"s_mov_b32 s{d+2}, 32768"); a.e(f"s_mov_b32 s{d+3}, 0x20000")
def rowaddr(a, d, r, t):
    a.e(f"v_and_b32 v{t}, 3, v{r}"); a.e(f"v_lshrrev_b32 v{d}, 2, v{r}"); a.e(f"v_lshlrev_b32 v{d}, 14, v{d}"); a.e(f"v_lshl_add_u32 v{d}, v{t}, 11, v{d}")

def group_off(a, d, m):
    a.e(f"s_lshr_b32 s53, s{m}, 3"); a.e("s_lshl_b32 s53, s53, 2"); a.e(f"s_and_b32 s54, s{m}, 3"); a.e("s_add_u32 s53, s53, s54"); a.e("s_lshl_b32 s53, s53, 23")
    a.e(f"s_lshr_b32 s54, s{m}, 2"); a.e("s_xor_b32 s54, s54, s94"); a.e("s_and_b32 s54, s54, 1"); a.e("s_lshl_b32 s54, s54, 13")
    a.e(f"s_add_u32 s{d}, s53, s54"); a.e(f"s_add_u32 s{d}, s{d}, {LB0}")

def poll_core(a, t, ad, mask, cnt=0, nap=None):
    L = a.lab("poll"); D = a.lab("pok")
    a.e("s_mov_b32 s53, 0"); a.e(f"s_add_u32 s54, s52, {cnt}")
    a.e(f"s_bfm_b64 exec, {mask.bit_length()}, 0")
    a.e(f"{L}:")
    a.e(f"buffer_load_dword v{t}, v{ad}, s[56:59], 0 offen {SC}")
    a.e("s_waitcnt vmcnt(0)")
    a.e(f"v_cmp_eq_u32 vcc, s54, v{t}")
    a.e("s_cmp_eq_u64 vcc, exec"); a.e(f"s_cbranch_scc1 {D}")
    a.e(f"s_sleep {PSLEEP if nap is None else nap}")
    a.e("s_add_u32 s53, s53, 1"); a.e("s_cmp_lt_u32 s53, s61"); a.e(f"s_cbranch_scc1 {L}")
    a.e("s_mov_b32 s61, 0")
    a.e(f"{D}:")
    a.e("s_mov_b64 exec, -1")

def flag_off(a, d, stage, sub, prev=False):
    a.e(f"s_lshl_b32 s{d}, s{sub}, 7"); a.e(f"s_add_u32 s{d}, s{d}, s55")
    so = stage * 128 - (LSTR if prev else 0)
    if so: a.e(f"s_add_u32 s{d}, s{d}, {so & 0xffffffff:#x}")
def flag_in(a, d, stage, prev=False):
    if stage in (ST_R, ST_G2): a.e(f"s_add_u32 s{d}, s55, {stage*128}"); return 1 if stage == ST_R else 4
    if stage == ST_G4: a.e(f"s_lshl_b32 s{d}, s31, 1")
    else:
        a.e(f"s_and_b32 s{d}, s30, 1")
        if stage != ST_G2S: a.e(f"s_lshl1_add_u32 s{d}, s31, s{d}")
    flag_off(a, d, stage, d, prev)
    return 2 if stage == ST_G4 else 1
def flag_addr(a, r, stage, prev=False):
    n = flag_in(a, 54, stage, prev)
    if stage == ST_R:
        a.e("s_bitcmp1_b32 s29, 2"); a.e("s_cselect_b32 s53, s93, s92"); a.e("s_add_u32 s53, s53, s54")
        a.e(f"v_mov_b32 v{r}, s54"); a.e(f"v_writelane_b32 v{r}, s53, 1")
        return 3
    a.e(f"v_mov_b32 v{r}, s54")
    a.e(f"v_lshl_add_u32 v{r}, v1, 7, v{r}")
    return (1 << n) - 1
def flag_try(a, d, off): a.e(f"s_load_dword s{d}, s[4:5], s{off}")
def flag_check(a, d, off, t):
    D = a.lab("fok")
    a.e("s_add_u32 s54, s52, 16"); a.e("s_waitcnt lgkmcnt(0)"); a.e(f"s_cmp_eq_u32 s{d}, s54"); a.e(f"s_cbranch_scc1 {D}")
    a.e(f"v_mov_b32 v{t+1}, s{off}"); poll_core(a, t, t + 1, 1, cnt=16)
    a.e(f"{D}:")

def poll(a, stage, t, prev=False, wave=4, nap=None):
    D = a.lab("pdone")
    a.e(f"s_cmp_lg_u32 s30, {wave}"); a.e(f"s_cbranch_scc1 {D}")
    poll_core(a, t, t + 1, flag_addr(a, t + 1, stage, prev), cnt=16, nap=nap)
    a.e(f"{D}:")
    a.e("s_waitcnt lgkmcnt(0)"); a.e("s_barrier")

def publish(a, stage, t, off=None, wait=0):
    if off is None:
        off = 53
        if stage == ST_G4: flag_off(a, 53, stage, 30)
        else:
            a.e({ST_G2: "s_and_b32 s53, s30, 3", ST_G2S: "s_and_b32 s53, s30, 1"}.get(stage, "s_lshr_b32 s53, s30, 1"))
            if stage not in (ST_G2, ST_G2S): a.e("s_lshl1_add_u32 s53, s31, s53")
            flag_off(a, 53, stage, 53)
    a.e(f"v_mov_b32 v{t}, 1"); a.e(f"v_mov_b32 v{t+1}, 0")
    a.e("s_mov_b64 exec, 1")
    if wait is not None: a.e(f"s_waitcnt vmcnt({wait})")
    a.e(f"buffer_atomic_add v{t}, v{t+1}, s[56:59], s{off} offen {SC}")
    a.e("s_mov_b64 exec, -1")

def data_wait(a, loads, regs, t, between=None, nap=2):
    L = a.lab("dw"); D = a.lab("dok")
    for x in loads: a.e(x)
    if between: between()
    a.e("s_mov_b32 s53, 0")
    a.e(f"{L}:")
    a.e("s_waitcnt vmcnt(0)")
    h = len(regs) // 2
    for k, part in enumerate((regs[:h], regs[h:])): a.e(f"v_and_b32 v{t+k}, v{part[0]}, v{part[1]}")
    for i in range(2, h, 2):
        for k, part in enumerate((regs[:h], regs[h:])): a.e(f"v_bitop3_b32 v{t+k}, v{part[i]}, v{part[i+1]}, v{t+k} bitop3:0x80")
    a.e(f"v_bitop3_b32 v{t}, v{t}, v{t+1}, 1 bitop3:0x80"); a.e(f"v_cmp_eq_u32 vcc, 0, v{t}")
    a.e("s_cmp_eq_u64 vcc, 0"); a.e(f"s_cbranch_scc1 {D}")
    a.e(f"s_sleep {nap}")
    for x in loads: a.e(x)
    a.e("s_add_u32 s53, s53, 1"); a.e("s_cmp_lt_u32 s53, s61"); a.e(f"s_cbranch_scc1 {L}")
    a.e("s_mov_b32 s61, 0"); a.e("s_waitcnt vmcnt(0)")
    a.e(f"{D}:")
    if STAMP: a.e("s_lshl_b32 s53, s53, 24"); a.e("s_add_u32 s95, s95, s53")
def p1_off(a, d, t):
    a.e(f"s_lshr_b32 s{t}, s28, 3"); a.e(f"s_and_b32 s{d}, s28, 3"); a.e(f"s_lshl2_add_u32 s{d}, s{t}, s{d}"); a.e(f"s_lshl_b32 s{d}, s{d}, 19")
    a.e(f"s_xor_b32 s{t}, s{t}, s94"); a.e(f"s_lshl_b32 s{t}, s{t}, 2"); a.e(f"s_xor_b32 s{t}, s{t}, s28"); a.e(f"s_and_b32 s{t}, s{t}, 4"); a.e(f"s_lshl_b32 s{t}, s{t}, 11")
    a.e(f"s_add_u32 s{d}, s{d}, s{t}"); a.e(f"s_add_u32 s{d}, s{d}, {UT}")
def lsb0(a, r):
    a.e(f"v_add_u32 v{r}, 0x10000, v{r}"); a.e(f"v_and_b32 v{r}, 0xfffe0000, v{r}")
W1A, W1B = (11, 12, 15, 13, 14, 3, 4, 5, 6, 0), (7, 8, 1, 2, 9, 10)
def lds_spin(a, addr, target, t, dst=53, nap=False):
    L = a.lab("spin")
    a.e(f"v_mov_b32 v{t}, {addr}")
    a.e(f"{L}:")
    if nap: a.e(f"s_sleep {int(nap)}")
    a.e(f"ds_read_b32 v{t+1}, v{t}"); a.e("s_waitcnt lgkmcnt(0)"); a.e(f"v_readfirstlane_b32 s{dst}, v{t+1}")
    a.e(f"s_cmp_ge_u32 s{dst}, {target}"); a.e(f"s_cbranch_scc0 {L}")
def lds_set(a, addr, val, t):
    a.e(f"v_mov_b32 v{t}, {addr}"); a.e(f"v_mov_b32 v{t+1}, {val}")
    a.e("s_waitcnt lgkmcnt(0)"); a.e(f"ds_write_b32 v{t}, v{t+1}")
def lds_inc(a, addr, t):
    a.e(f"v_mov_b32 v{t}, {addr}"); a.e(f"v_mov_b32 v{t+1}, 1")
    a.e("s_waitcnt lgkmcnt(0)")
    a.e("s_mov_b64 exec, 1"); a.e(f"ds_add_u32 v{t}, v{t+1}"); a.e("s_mov_b64 exec, -1")
def lbar(a, k, t, addr=LW + 8, nap=False):
    lds_inc(a, addr, t); lds_spin(a, addr, 4 * k, t, nap=nap)

class Rec:
    def __init__(s_): s_.l = []
    def e(s_, x): s_.l.append(x)
    srd = Asm.srd
class Track:
    def __init__(s, a): s.a = a; s.vq = []; s.lq = []
    def e(s, x): s.a.e(x)
    def vm(s, x, tag=None): s.a.e(x); s.vq.append(tag)
    def ds(s, x, tag=None): s.a.e(x); s.lq.append(tag)
    def _w(s, q, tag, nm, mx):
        if tag not in q: return
        i = max(k for k, x in enumerate(q) if x == tag); n = len(q) - 1 - i
        assert n <= mx
        s.a.e(f"s_waitcnt {nm}({n})"); del q[:i + 1]
    def wv(s, tag): s._w(s.vq, tag, "vmcnt", 63)
    def wl(s, tag): s._w(s.lq, tag, "lgkmcnt", 15)
    def nv(s, tag):
        return len(s.vq) - 1 - max(k for k, x in enumerate(s.vq) if x == tag)
NVOTE = 255; NSAMP = env("NSAMP", 1)
HSTR = 4160; CHB = 24576; UOFF = 4 * HSTR; US = 96
KVS = 4 * CHB
RFO, RYO, RRO, RI, RXO, RT, RXA, RXB, RYF, RYY = 78, 79, 80, 81, 82, 84, 86, 94, 102, 110
WVB = {1: 118, 2: 118, 4: 119, 3: 121}

KL, VL = 96 * KB, 113 * KB
def front_loads(a):
    vA, vB, t, t2 = 6, 7, 8, 9
    a.e(f"v_bfe_u32 v{t}, v0, 4, 2"); a.e(f"v_and_b32 v{t2}, 15, v0"); a.e(f"v_lshlrev_b32 v{vA}, 11, v{t}"); a.e(f"v_lshlrev_b32 v{t}, 1, v{t}")
    a.e(f"v_xor_b32 v{t}, v{t}, v{t2}"); a.e(f"v_lshl_add_u32 v{t}, v{t}, 4, v{vA}")
    a.e("s_and_b32 s34, s2, 7"); a.e("s_lshr_b32 s35, s2, 3")
    a.e("s_lshl_b32 s36, s35, 17"); a.e("s_lshl_b32 s37, s34, 8"); a.e("s_add_u32 s36, s36, s37")
    a.e("s_lshl_b32 s37, s30, 6"); a.e("s_and_b32 s38, s37, 128"); a.e("s_add_u32 s37, s37, 64"); a.e("s_and_b32 s37, s37, 128")
    a.e(f"v_xor_b32 v{vA}, s38, v{t}"); a.e(f"v_xor_b32 v{vB}, s37, v{t}")
    a.e("s_lshl_b32 s37, s30, 14"); a.e("s_add_u32 s37, s37, s36"); a.e("s_add_u32 s38, s37, 8192"); a.e("s_lshl_b32 s39, s30, 11")
    a.e(f"s_mov_b32 s18, {4*MB}"); a.e("s_mov_b32 s19, 0x20000"); a.e("s_mov_b32 s22, s18"); a.e("s_mov_b32 s23, s19")
    a.e(f"s_add_u32 m0, s39, {KL + 1024}")
    a.e("s_waitcnt lgkmcnt(0)")
    a.e("s_mov_b64 s[16:17], s[8:9]"); a.e("s_mov_b64 s[20:21], s[10:11]")
    a.e(f"buffer_load_dwordx4 v{vA}, s[16:19], s37 offen {NT} lds"); a.e("s_add_u32 m0, m0, 1024")
    a.e(f"buffer_load_dwordx4 v{vB}, s[16:19], s38 offen {NT} lds"); a.e(f"s_add_u32 m0, s39, {VL}")
    a.e(f"buffer_load_dwordx4 v{vA}, s[20:23], s37 offen {NT} lds"); a.e("s_add_u32 m0, m0, 1024")
    a.e(f"buffer_load_dwordx4 v{vA}, s[20:23], s38 offen {NT} lds")
    a.e("s_mov_b32 s86, 256"); a.e("s_mov_b32 s87, 0x20000"); a.e(f"v_mov_b32 v{ZZ}, 0")
    a.e("s_cmp_lg_u32 s30, 0"); a.e("s_cbranch_scc1 KV_t0")
    a.e("s_sub_u32 s36, s36, 8192"); a.e(f"v_add_u32 v{t}, s36, v{t}"); a.e(f"s_mov_b32 m0, {KL}")
    a.e(f"buffer_load_dwordx4 v{t}, s[16:19], 0 offen {NT} lds")
    a.e("s_cmp_lg_u32 s2, 0"); a.e("s_cbranch_scc1 KV_t0")
    a.e("s_lshl_b32 s44, s46, 6"); a.e("s_or_b32 s44, s44, 1"); a.e(f"v_mov_b32 v{t2}, s44")
    a.e("s_mov_b64 exec, 1"); a.e(f"buffer_store_dword v{t2}, v{ZZ}, s[84:87], 0 offen {SC}"); a.e("s_mov_b64 exec, -1")
    a.e("KV_t0:")
    a.e("s_lshl_b32 s37, s34, 10"); a.e("s_lshl_b32 s38, s30, 7"); a.e("s_add_u32 s37, s37, s38"); a.e(f"v_and_b32 v{t2}, 15, v0"); a.e(f"v_lshlrev_b32 v{t2}, 3, v{t2}")
    a.srd(24, 12, 8192)
    a.e(f"buffer_load_dwordx2 {vr(TAP,2)}, v{t2}, s[24:27], s37 offen")
ZZ, TAP = 10, 12

def probe_base(a):
    a.e("s_and_b32 s42, s2, 31"); a.e("s_lshl_b32 s42, s42, 8"); a.e("s_lshr_b32 s43, s2, 5"); a.e("s_lshl_b32 s43, s43, 14"); a.e("s_add_u32 s42, s42, s43")
    a.e(f"s_add_u32 s42, s42, {LB0 + oSM + 131072}")
def front_arrive(a, wait):
    D = a.lab("fa"); t = 6
    a.e("s_and_b32 s36, s2, 7"); a.e("s_lshr_b32 s53, s2, 5"); a.e("s_lshl3_add_u32 s36, s36, s53"); a.e("s_lshl_b32 s36, s36, 7"); a.e(f"s_add_u32 s36, s36, {F_FRONT}")
    a.e(f"v_mov_b32 v{t}, 1"); a.e(f"v_mov_b32 v{t+1}, {LW+4}"); a.e(f"v_lshlrev_b32 v{t+3}, 13, v1")
    a.e("s_mov_b64 exec, 1")
    if wait is not None: a.e(f"s_waitcnt vmcnt({wait})")
    a.e("s_waitcnt lgkmcnt(0)")
    a.e(f"ds_add_rtn_u32 v{t+2}, v{t+1}, v{t}"); a.e(f"ds_read_b32 v{t+4}, v{t+1} offset:28")
    a.e("s_waitcnt lgkmcnt(0)")
    a.e(f"v_readfirstlane_b32 s54, v{t+2}"); a.e(f"v_readfirstlane_b32 s53, v{t+4}")
    a.e("s_cmp_lg_u32 s54, 7"); a.e(f"s_cbranch_scc1 {D}")
    a.e("s_mov_b64 exec, 0xffff"); a.e("s_or_b32 s53, s53, 1"); a.e(f"v_mov_b32 v{t}, s53")
    a.e(f"buffer_atomic_add v{t}, v{t+3}, s[56:59], s36 offen {SC}")
    a.e(f"{D}:"); a.e("s_mov_b64 exec, -1")
def front_a(a):
    T = Track(a); v = VA(14)
    t = v(); t2 = v(); ra = v(2, 2); go = v(); hw = v(); hw2 = v(); hoff = v(6, 2); d = v(18, 2); tf = v(4, 2); o = v(8, 4); z = v(4, 4)
    assert v.hi <= WAD
    v = VA(128); kr = v(10, 2); vv = v(8, 2); kf = v(20, 2); ks = v(16, 2); dm = 240
    a.e("s_cmp_lg_u32 s30, 4"); a.e("s_cbranch_scc1 HB_1")
    a.e(f"v_add_u32 v{t}, {LW}, v3"); a.e(f"ds_write_b32 v{t}, v{ZZ}")
    a.e("HB_1:")
    w_srd(a, 2, 88)
    a.e("s_lshl3_add_u32 s36, s2, s30"); a.e("s_lshl_b32 s36, s36, 10")
    w_srd(a, 1, 80); a.e("s_mov_b32 s50, s36")
    def wtouch():
        for d_ in (88, 80): T.vm(f"buffer_load_dwordx4 {vr(dm,4)}, v2, s[{d_}:{d_+3}], s50 offen")
    WT = env("WT", 1)
    if WT == 0: wtouch()
    w_lanes(a, (1,), t, t2)
    a.e("s_lshl_b32 s48, s29, 7"); a.e("s_lshl_b32 s36, s30, 14"); a.e("s_add_u32 s48, s48, s36"); a.e("s_lshl_b32 s49, s30, 10")
    a.e(f"s_add_u32 s48, s48, {MB}")
    w2q = list(range(9, 16))
    def w2(n):
        for _ in range(min(n, len(w2q))):
            j = w2q.pop(0)
            a.e(f"s_add_u32 s36, s67, {j & 7}"); a.e("s_and_b32 s36, s36, 7"); a.e("s_lshl_b32 s36, s36, 17"); a.e("s_add_u32 s36, s36, s48")
            a.e(f"s_add_u32 m0, s49, {WST + j * 8192}")
            T.vm(f"buffer_load_dwordx4 v{WVB[1]}, s[88:91], s36 offen lds")
    a.e("s_and_b32 s41, s30, 3"); chan_setup(a, 41)
    a.e("s_lshl_b32 s36, s39, 12")
    a.e("s_add_u32 s12, s14, s36"); a.e("s_addc_u32 s13, s15, 0"); a.e("s_mov_b32 s14, 4096"); a.e("s_mov_b32 s15, 0x20000")
    a.e("s_lshr_b32 s45, s30, 2"); a.e("s_lshl_b32 s45, s45, 11")
    for it in range(3):
        if it < 2: a.e(f"s_add_u32 s36, s45, {(1024*it - 64) & 0xffffffff:#x}")
        else: a.e(f"s_mov_b32 s36, {4096 - 64}")
        a.e(f"v_add_u32 v{hoff+2*it}, s36, v2"); a.e(f"v_add_u32 v{hoff+2*it+1}, 16, v{hoff+2*it}")
    def hld():
        for it in range(3):
            T.vm(f"buffer_load_dwordx4 {vr(d+6*it,4)}, v{hoff+2*it}, s[12:15], 0 offen {NTH}", "h")
            T.vm(f"buffer_load_dwordx2 {vr(d+6*it+4,2)}, v{hoff+2*it+1}, s[12:15], 0 offen {NTH}", "h")
    HP = env("HP", 2)
    if HP == 0: hld()
    if WT == 1 and HP == 0: wtouch()
    a.e(f"v_add_u32 v{hw}, s40, v2"); a.e(f"v_add_u32 v{hw2}, s45, v{hw}")
    conv_setup(a)
    if HP == 1:
        hld()
        if WT == 1: wtouch()
    wr_addr(a, WAD, t); r_addr(a); w_lanes(a, (3, 4), t, t2)
    if HP == 2:
        hld()
        if WT == 1: wtouch()
    a.e("s_waitcnt lgkmcnt(0)"); conv_diag(a)
    a.srd(8, 6, 4 * MB)
    for i in range(4): a.e(f"v_mov_b32 v{z+i}, 0")
    a.e("s_lshr_b32 s36, s30, 2"); a.e("s_mul_i32 s36, s36, 720"); a.e(f"v_add_u32 v{t}, s36, v{hw}"); a.e("s_bfm_b64 exec, 45, 0")
    a.e(f"ds_write_b128 v{t}, {vr(z,4)} offset:{UOFF+64*US}"); a.e("s_mov_b64 exec, -1")
    a.e("s_and_b32 s34, s2, 7"); a.e("s_lshr_b32 s35, s2, 3")
    a.e(f"v_bfe_u32 v{t}, v1, 2, 3"); a.e(f"v_xor_b32 v{t}, s30, v{t}"); a.e(f"v_lshlrev_b32 v{ra}, 5, v{t}")
    a.e(f"v_and_b32 v{t}, 3, v1"); a.e(f"v_lshl_add_u32 v{ra}, v{t}, 3, v{ra}")
    a.e(f"v_bfe_u32 v{t}, v1, 2, 2"); a.e(f"v_lshl_add_u32 v{ra}, v{t}, 8, v{ra}"); a.e(f"v_lshrrev_b32 v{t}, 4, v1"); a.e(f"v_lshl_add_u32 v{ra}, v{t}, 12, v{ra}")
    a.e(f"v_add_u32 v{ra}, {KL}, v{ra}"); a.e(f"v_xor_b32 v{ra+1}, 128, v{ra}")
    a.srd(16, 4, 4 * MB, off=UT)
    a.e(f"v_bfe_u32 v{go}, v1, 2, 2"); a.e(f"v_lshlrev_b32 v{go}, 14, v{go}"); a.e(f"v_and_b32 v{t}, 3, v1"); a.e(f"v_lshl_add_u32 v{go}, v{t}, 6, v{go}")
    a.e(f"v_bfe_u32 v{t}, v1, 4, 1"); a.e(f"v_lshrrev_b32 v{t2}, 5, v1"); a.e(f"v_lshl_add_u32 v{t}, v{t}, 1, v{t2}"); a.e(f"v_xor_b32 v{t}, 3, v{t}"); a.e(f"v_lshl_add_u32 v{go}, v{t}, 4, v{go}")
    a.e("s_lshl3_add_u32 s42, s34, s30"); a.e("s_lshl_b32 s43, s42, 16"); a.e("s_sub_u32 s37, 31, s35"); a.e("s_lshl_b32 s37, s37, 9"); a.e("s_add_u32 s43, s43, s37")
    a.e("s_lshl_b32 s44, s42, 5"); a.e("s_add_u32 s44, s44, s35"); a.e("s_lshl_b32 s44, s44, 7"); a.e(f"s_add_u32 s44, s44, {F_KVT}")
    a.e(f"s_waitcnt vmcnt({len(T.vq)}) lgkmcnt(0)"); a.e("s_barrier")
    mstamp(a)
    for i in range(5): a.e(f"ds_read_b64_tr_b16 {vr(kr+2*i,2)}, v{ra+i//4} offset:{1024*i}")
    for i in range(4): a.e(f"ds_read_b64_tr_b16 {vr(vv+2*i,2)}, v{ra} offset:{VL - KL + 1024*i}")
    a.e("s_load_dword s52, s[84:85], 0")
    unpack(a, tf, tf + 1, TAP); unpack(a, tf + 2, tf + 3, TAP + 1)
    a.e("s_waitcnt lgkmcnt(0)")
    b = Rec()
    for i in range(10): unpack(b, kf + 2 * i, kf + 2 * i + 1, kr + i)
    for i in range(16): b.e(f"v_mul_f32 v{ks+i}, v{kf+i+1}, v{tf+3}")
    for j in (2, 1, 0):
        for i in range(16): b.e(f"v_fmac_f32 v{ks+i}, v{kf+i+4-j}, v{tf+j}")
    for i in range(8): unpack(b, kf + 2 * i, kf + 2 * i + 1, vv + i)
    for i in range(16): b.e(f"v_mul_f32 v{ks+i}, v{ks+i}, v{kf+i}")
    for i in range(1, 16, 2): lsb0(b, ks + i)
    for i in range(8): b.e(f"v_cvt_pk_bf16_f32 v{o+i}, v{ks+8*(i//4)+7-2*(i%4)}, v{ks+8*(i//4)+6-2*(i%4)}")
    for x in b.l: a.e(x)
    a.e("s_cmp_lg_u32 s52, 0"); a.e("s_cbranch_scc1 HB_q")
    a.e("s_mov_b32 s53, 0")
    a.e("HB_p:")
    a.e(f"buffer_load_dword v{t}, v{ZZ}, s[84:87], 0 offen {SC}"); a.e("s_waitcnt vmcnt(0)")
    a.e(f"v_readfirstlane_b32 s52, v{t}"); a.e("s_cmp_lg_u32 s52, 0"); a.e("s_cbranch_scc1 HB_q")
    a.e("s_add_u32 s53, s53, 1"); a.e("s_cmp_lt_u32 s53, s61"); a.e("s_cbranch_scc1 HB_p")
    a.e("s_mov_b32 s52, 1"); a.e("s_mov_b32 s61, 0")
    a.e("HB_q:")
    for e in range(4): a.e(f"v_permlane32_swap_b32 v{o+e}, v{o+4+e}")
    a.e(f"v_mov_b32 v{t}, s52")
    for i in range(2): T.vm(f"buffer_store_dwordx4 {vr(o+4*i,4)}, v{go}, s[16:19], s43 offen offset:{256*(1-i)} {SC}", "u")
    a.e("s_lshl_b32 s37, s42, 7"); a.e("s_lshl_b32 s53, s35, 13"); a.e("s_add_u32 s37, s37, s53"); a.e(f"s_add_u32 s37, s37, {F_FRONT}")
    a.e("s_cmp_ge_u32 s35, 16"); a.e("s_cbranch_scc1 KV_ni")
    a.e("s_mov_b64 exec, 1"); a.e(f"buffer_store_dword v{t}, v{ZZ}, s[56:59], s37 offen {SC}"); a.e("s_mov_b64 exec, -1")
    a.e("KV_ni:")
    mstamp(a)
    cc = kr
    T.wv("h")
    FL = env("FL", 1)
    def flag():
        T.wv("u")
        a.e("s_mov_b64 exec, 1"); T.vm(f"buffer_store_dword v{t}, v{ZZ}, s[56:59], s44 offen {SC}"); a.e("s_mov_b64 exec, -1")
        mstamp(a)
    for it in range(3):
        if it == FL: flag()
        D = d + 6 * it; c0 = cc + 12 * it; c1 = c0 + 4; c2 = c0 + 8
        for k in range(4):
            a.e(f"v_alignbit_b32 v{c0+k}, v{D+k+1}, v{D+k}, 16")
            a.e(f"v_mov_b32 v{c1+k}, v{D+k+1}")
            a.e(f"v_alignbit_b32 v{c2+k}, v{D+k+2}, v{D+k+1}, 16")
        if it == 2: a.e("s_mov_b64 exec, 0xf")
        ad, o0 = (hw2, 1024 * it) if it < 2 else (hw, 4096)
        a.e(f"ds_write_b128 v{ad}, {vr(c0,4)} offset:{o0}")
        a.e(f"ds_write_b128 v{ad}, {vr(c1,4)} offset:{HSTR+o0}")
        a.e(f"ds_write_b128 v{ad}, {vr(c2,4)} offset:{2*HSTR+o0}")
        a.e(f"ds_write_b128 v{ad}, {vr(D+2,4)} offset:{3*HSTR+o0}")
    a.e("s_mov_b64 exec, -1")
    if FL == 3: flag()
    a.e("s_waitcnt lgkmcnt(0)"); a.e("s_barrier")
    mstamp(a)
    if WT == 2: wtouch()
    w2(16)
def load_q(a):
    for j in range(4): a.e(f"buffer_load_dwordx2 {vr(RXA+2*j,2)}, v{RRO}, s[8:11], 0 offen offset:{128*(j>>1) + 32*(j&1)} {NTH}")
def chan_setup(a, wsg):
    a.e("s_and_b32 s38, s2, 7"); a.e("s_lshl_b32 s38, s38, 5"); a.e("s_lshr_b32 s39, s2, 3"); a.e("s_add_u32 s38, s38, s39")
    a.e("s_lshl_b32 s39, s38, 2"); a.e(f"s_add_u32 s39, s39, s{wsg}")
    a.e(f"s_mul_i32 s40, s{wsg}, {CHB}")

def touch(a, which, nbytes, r):
    n = nbytes // 1024 // 512
    a.e(f"s_mov_b64 s[48:49], s[{66+2*which}:{67+2*which}]")
    a.e("s_lshl_b32 s45, s2, 1"); a.e("s_and_b32 s50, s30, 1"); a.e("s_add_u32 s45, s45, s50"); a.e(f"s_mul_i32 s45, s45, {n*1024}")
    a.e(f"s_mov_b32 s50, {nbytes}"); a.e("s_mov_b32 s51, 0x20000")
    for i in range(n):
        if i and i % 4 == 0: a.e("s_add_u32 s45, s45, 4096")
        a.e(f"buffer_load_dwordx4 {vr(r,4)}, v2, s[48:51], s45 offen offset:{(i&3)*1024}")
    return n

def cs_sum(a):
    N = 3584; CSEL, CFR, CAD, CACC, CO = 20, 48, 104, 108, 112
    X = a.lab("cs")
    a.e("s_cmp_lg_u32 s60, 0"); a.e(f"s_cbranch_scc1 {X}")
    a.e("s_and_b32 s35, s30, 1")
    nr, pos = w_bases(a, 3, CAD, 35, 7, CO, CO + 1)
    a.e("s_cmp_eq_u32 s28, s29"); a.e(f"s_cselect_b32 s36, 0, {CFG[3]['STB']}")
    for i in range(nr): a.e(f"v_add_u32 v{CAD+i}, s36, v{CAD+i}")
    for T in range(7):
        for kk in range(2):
            for h in range(2):
                r, imm = pos(T, kk, h)
                a.e(f"ds_read_b64_tr_b16 {vr(CFR+8*T+4*kk+2*h,2)}, v{CAD + r} offset:{imm}")
    a.e(f"v_and_b32 v{CO}, 15, v1"); a.e(f"v_mov_b32 v{CO+1}, 0x3f803f80")
    for T in range(7):
        a.e(f"v_cmp_eq_u32 vcc, {T}, v{CO}")
        for e in range(4): a.e(f"v_cndmask_b32 v{CSEL+4*T+e}, 0, v{CO+1}, vcc")
    a.e(f"v_and_b32 v{CO+2}, 48, v1"); a.e(f"v_lshl_add_u32 v{CO+2}, v{CO}, 6, v{CO+2}")
    a.e(f"v_mov_b32 v{CO+1}, 0x7f000000")
    a.e(f"v_cmp_gt_u32 vcc, 7, v{CO}"); a.e(f"v_cndmask_b32 v{CO+2}, v{CO+1}, v{CO+2}, vcc")
    a.srd(20, 4, 16 * N * 4, off=CSP3)
    a.e(f"s_mul_i32 s36, s28, {N*4}"); a.e("s_lshl1_add_u32 s35, s29, s35"); a.e(f"s_mul_i32 s35, s35, {7*64}"); a.e("s_add_u32 s35, s35, s36")
    a.e("s_waitcnt lgkmcnt(0)")
    for i in range(14): a.e(f"v_mfma_f32_16x16x32_bf16 {vr(CACC,4)}, {vr(CFR+4*i,4)}, {vr(CSEL+4*(i//2),4)}, {vr(CACC,4) if i else 0}")
    a.e(f"buffer_store_dwordx4 {vr(CACC,4)}, v{CO+2}, s[20:23], s35 offen {SC}")
    a.e(f"{X}:")
def cs_flag(a, d):
    a.e(f"s_and_b32 s{d}, s30, 1"); a.e(f"s_lshl_b32 s{d}, s{d}, 13"); a.e("s_lshl_b32 s53, s29, 7"); a.e(f"s_add_u32 s{d}, s{d}, s53"); a.e(f"s_add_u32 s{d}, s{d}, {F_CS}")
def cs_signal(a):
    X = a.lab("cs")
    a.e("s_cmp_lg_u32 s60, 0"); a.e(f"s_cbranch_scc1 {X}")
    cs_flag(a, 36)
    publish(a, None, 14, off=36, wait=None)
    a.e(f"{X}:")

def wr_addr(a, ad, t):
    a.e(f"v_lshrrev_b32 v{t}, 2, v1"); a.e(f"v_lshlrev_b32 v{ad}, 7, v{t}"); a.e(f"v_bfe_u32 v{t}, v{t}, 1, 2")
    a.e("s_and_b32 s35, s30, 2"); a.e(f"v_and_b32 v{t+1}, 1, v1"); a.e(f"v_or_b32 v{t+1}, s35, v{t+1}"); a.e(f"v_xor_b32 v{t}, v{t}, v{t+1}")
    a.e(f"v_lshl_add_u32 v{ad}, v{t}, 5, v{ad}"); a.e(f"v_and_b32 v{t}, 2, v1"); a.e(f"v_lshl_add_u32 v{ad}, v{t}, 2, v{ad}")
    a.e("s_and_b32 s35, s30, 1"); a.e("s_lshl_b32 s35, s35, 4"); a.e(f"s_add_u32 s35, s35, {WST}")
    a.e(f"v_add_u32 v{ad}, s35, v{ad}"); a.e(f"v_add_u32 v{ad+1}, {64*KB}, v{ad}")
def wreg(j, kk): return WR0 + 16 * (j & 7) + 8 * kk + 4 * (j >> 3)
def wr_read(a, ad, js):
    for j in js:
        for kk in range(2):
            for h in range(2): a.e(f"ds_read_b64_tr_b16 {vr(wreg(j,kk)+2*h,2)}, v{ad+(j>>3)} offset:{(j&7)*8192 + (32*kk+16*h)*128}")

def front_b(a):
    pt, vd = 6, 8
    a.e("s_and_b32 s36, s30, 3"); a.e("s_lshl_b32 s36, s36, 14"); a.e("s_lshl_b32 s48, s29, 7"); a.e("s_add_u32 s48, s48, s36")
    a.e("s_waitcnt vmcnt(0)")
    a.e("s_barrier")
    mstamp(a)
    wr_read(a, WAD, range(9, 16))
    a.e("s_cmp_lg_u32 s30, 4"); a.e("s_cbranch_scc1 FB_ni")
    a.e(f"v_mov_b32 v{vd}, s52")
    group_off(a, 37, 28); a.e("s_andn2_b32 s37, s37, 0x2000"); a.e("s_lshl_b32 s53, s29, 7"); a.e("s_add_u32 s37, s37, s53"); a.e(f"s_add_u32 s37, s37, {oSM}")
    a.e(f"v_and_b32 v{vd+1}, 1, v1"); a.e(f"v_lshlrev_b32 v{vd+1}, 13, v{vd+1}"); a.e(f"v_bfe_u32 v{vd+2}, v1, 1, 1"); a.e(f"v_lshl_add_u32 v{vd+1}, v{vd+2}, 26, v{vd+1}")
    a.e(f"v_lshrrev_b32 v{vd+2}, 2, v1"); a.e(f"v_lshl_add_u32 v{vd+1}, v{vd+2}, 11, v{vd+1}")
    a.e("s_mov_b64 exec, 0xfff"); a.e(f"buffer_store_dword v{vd}, v{vd+1}, s[56:59], s37 offen {SC}")
    a.e("s_cmp_lg_u32 s28, 0"); a.e("s_cbranch_scc1 FB_n2")
    a.e(f"s_add_u32 s37, s53, {F_CS}"); a.e("s_mov_b64 exec, 3"); a.e(f"buffer_store_dword v{vd}, v{vd+1}, s[56:59], s37 offen {SC}")
    a.e("FB_n2:")
    a.e("s_mov_b64 exec, -1")
    a.e("FB_ni:")
    a.e(f"s_cmp_ge_u32 s2, {NVOTE}"); a.e("s_cbranch_scc1 KV_n3"); a.e("s_cmp_lg_u32 s30, 5"); a.e("s_cbranch_scc1 KV_n3")
    probe_base(a)
    a.e(f"v_and_b32 v{vd}, 1, v1"); a.e(f"v_lshlrev_b32 v{vd}, 13, v{vd}"); a.e(f"v_lshrrev_b32 v{vd+1}, 1, v1"); a.e(f"v_lshl_add_u32 v{vd}, v{vd+1}, 7, v{vd}")
    a.e("s_mov_b64 exec, 0xf"); a.e(f"buffer_store_dword v{vd}, v{vd}, s[56:59], s42 offen {SC}"); a.e("s_mov_b64 exec, -1")
    a.e("KV_n3:")
    load_q(a)
    def raw(srd, reg):
        for j in range(9):
            a.e(f"s_add_u32 s36, s67, {j & 7}"); a.e("s_and_b32 s36, s36, 7"); a.e("s_lshl_b32 s36, s36, 17"); a.e("s_add_u32 s36, s36, s48")
            if j == 8: a.e(f"s_add_u32 s36, s36, {MB}")
            a.e(f"buffer_load_dwordx4 {vr(reg(j,0),4)}, v{WVB[1]}, s[{srd}:{srd+3}], s36 offen"); a.e("s_add_u32 s36, s36, 65536")
            a.e(f"buffer_load_dwordx4 {vr(reg(j,1),4)}, v{WVB[1]}, s[{srd}:{srd+3}], s36 offen")
    raw(88, wreg)
    lds_inc(a, LW + 20, pt)
    raw(80, w1raw)
    a.e("s_waitcnt vmcnt(40)")
    a.e(f"s_cmp_ge_u32 s2, {NVOTE}"); a.e("s_cbranch_scc1 FB_np"); a.e("s_cmp_lg_u32 s30, 5"); a.e("s_cbranch_scc1 FB_np")
    probe_base(a)
    a.e("s_mov_b32 s46, -1"); a.e("s_mov_b32 s47, -1"); a.e("s_mov_b32 s43, 0")
    a.e("FB_ml:")
    for i in range(2):
        a.e("s_memtime s[34:35]"); a.e("s_waitcnt lgkmcnt(0)")
        a.e(f"s_load_dword s32, s[4:5], s42 offset:{i * 8192} glc"); a.e("s_waitcnt lgkmcnt(0)")
        a.e("s_memtime s[36:37]"); a.e("s_waitcnt lgkmcnt(0)")
        a.e("s_sub_u32 s36, s36, s34"); a.e(f"s_min_u32 s{46+i}, s{46+i}, s36")
    a.e("s_add_u32 s42, s42, 128"); a.e("s_add_u32 s43, s43, 1"); a.e(f"s_cmp_lt_u32 s43, {NSAMP}"); a.e("s_cbranch_scc1 FB_ml")
    a.e("s_cmp_lt_u32 s47, s46"); a.e("s_cselect_b32 s45, 1, 0")
    a.e("s_lshr_b32 s46, s28, 2"); a.e("s_xor_b32 s45, s45, s46"); a.e("s_and_b32 s45, s45, 1"); a.e("s_lshl_b32 s45, s45, 8")
    lds_set(a, LW + 32, "s45", pt)
    a.e("FB_np:")
    front_arrive(a, None)
    lds_spin(a, LW + 20, 4, pt)
    w1_dma(a, range(9, 16))
    mstamp(a)
    stouch(a, 3, env("ST3", 0))
    a.e("s_waitcnt vmcnt(0)")
    mstamp(a)
    lds_spin(a, LW + 24, 4, pt, nap=2)
def w1_dma(a, js):
    a.e("s_and_b32 s49, s30, 3"); a.e("s_lshl_b32 s36, s49, 14"); a.e("s_lshl_b32 s48, s29, 7"); a.e("s_add_u32 s48, s48, s36"); a.e("s_lshl_b32 s49, s49, 10")
    for j in js:
        a.e(f"s_add_u32 s36, s67, {j & 7}"); a.e("s_and_b32 s36, s36, 7"); a.e("s_lshl_b32 s36, s36, 17"); a.e("s_add_u32 s36, s36, s48")
        if j >= 8: a.e(f"s_add_u32 s36, s36, {MB}")
        for kk in range(2):
            a.e(f"s_add_u32 m0, s49, {WST + j * 8192 + 4096 * kk}")
            a.e(f"buffer_load_dwordx4 v{WVB[1]}, s[80:83], s36 offen lds")
            if kk == 0: a.e("s_add_u32 s36, s36, 65536")
def stouch(a, which, gran):
    if not gran: return
    L = a.lab("st")
    a.e("s_and_b32 s36, s30, 3"); a.e("s_lshl2_add_u32 s36, s2, s36"); a.e("s_mul_i32 s36, s36, 7168"); a.e("s_add_u32 s37, s36, 7168")
    a.e(f"{L}:")
    for i in range(7): a.e(f"s_load_dword s32, s[{66+2*which}:{67+2*which}], s36 offset:{gran*i}")
    a.e(f"s_add_u32 s36, s36, {7*gran}"); a.e("s_cmp_lt_u32 s36, s37"); a.e(f"s_cbranch_scc1 {L}")
def w1raw(j, kk):
    i = 2 * j + kk
    return 12 + 4 * i if i < 15 else RXB + 4 * (i - 15)
def w_dump(a, reg, t):
    a.e("s_and_b32 s36, s30, 3"); a.e("s_lshl_b32 s36, s36, 10"); a.e(f"s_add_u32 s36, s36, {WST}"); a.e(f"v_add_u32 v{t}, s36, v2"); a.e(f"v_add_u32 v{t+1}, {64*KB}, v{t}")
    for j in range(9):
        for kk in range(2): a.e(f"ds_write_b128 v{t+(j>>3)}, {vr(reg(j,kk),4)} offset:{(j&7)*8192 + 4096*kk}")

CV = {}
def conv_setup(a):
    v = VA(216); lane = 1
    t = v(); t2 = v(); t3 = v(); uo = v(3, 1); aa = v(); ba = v(); J = v(); G = v(); fl = v(); dop = v(8, 4)
    assert v.hi <= 240
    CV.update(uo=uo, aa=aa, ba=ba, J=J, G=G, fl=fl, dop=dop, t=t)
    a.e(f"s_load_dwordx2 s[34:35], s[0:1], {A_SSMD}")
    a.e("s_lshl_b32 s36, s38, 14"); a.e(f"s_add_u32 s36, s36, {UT}")
    a.e("s_add_u32 s20, s4, s36"); a.e("s_addc_u32 s21, s5, 0"); a.e("s_mov_b32 s22, 16384"); a.e("s_mov_b32 s23, 0x20000")
    a.e("s_lshl_b32 s36, s30, 6")
    assert all((p * 171) >> 10 == p // 6 for p in range(192))
    for it in range(3):
        a.e(f"v_add_u32 v{t}, {64*it}, v{lane}"); a.e(f"v_mul_u32_u24 v{t2}, 171, v{t}"); a.e(f"v_lshrrev_b32 v{t2}, 10, v{t2}")
        a.e(f"v_lshlrev_b32 v{uo+it}, 8, v{t2}"); a.e(f"v_mul_u32_u24 v{t2}, 6, v{t2}"); a.e(f"v_sub_u32 v{t}, v{t}, v{t2}")
        a.e(f"v_lshl_add_u32 v{uo+it}, v{t}, 4, v{uo+it}"); a.e(f"v_and_b32 v{t}, 4, v{t}"); a.e(f"v_lshl_add_u32 v{uo+it}, v{t}, 20, v{uo+it}")
        a.e(f"v_add_u32 v{uo+it}, s36, v{uo+it}")
    a.e("s_waitcnt lgkmcnt(0)")
    a.e("s_lshr_b32 s36, s39, 1"); a.e("s_lshl_b32 s36, s36, 2"); a.e("s_load_dword s41, s[34:35], s36")
    a.e(f"v_and_b32 v{J}, 15, v{lane}"); a.e(f"v_lshrrev_b32 v{G}, 4, v{lane}")
    a.e(f"v_and_b32 v{t}, 3, v{J}"); a.e(f"v_mul_u32_u24 v{aa}, {HSTR}, v{t}")
    a.e(f"v_lshl_add_u32 v{aa}, v{G}, 4, v{aa}"); a.e(f"v_lshrrev_b32 v{t}, 2, v{J}"); a.e(f"v_lshl_add_u32 v{aa}, v{t}, 3, v{aa}")
    a.e(f"v_add_u32 v{aa}, s40, v{aa}")
    a.e(f"v_sub_u32 v{t}, 15, v{J}"); a.e(f"v_mul_u32_u24 v{ba}, {US}, v{t}"); a.e(f"v_add_u32 v{ba}, s40, v{ba}")
    a.e(f"v_lshl_add_u32 v{ba}, v{G}, 4, v{ba}")
    a.e("s_lshr_b32 s36, s38, 2"); a.e("s_lshl_b32 s36, s36, 12"); a.e(f"s_add_u32 s36, s36, {F_KVT}")
    a.e(f"v_lshlrev_b32 v{fl}, 7, v{lane}"); a.e(f"v_add_u32 v{fl}, s36, v{fl}")
def conv_diag(a):
    t, J, G, dop = CV["t"], CV["J"], CV["G"], CV["dop"]; t2, t3 = t + 1, t + 2
    a.e("s_bitcmp1_b32 s39, 0"); a.e("s_cselect_b32 s36, 0, 16"); a.e("s_lshl_b32 s41, s41, s36"); a.e("s_and_b32 s41, s41, 0xffff0000"); a.e("s_lshr_b32 s42, s41, 16")
    a.e(f"v_lshl_add_u32 v{t}, v{G}, 3, v{J}"); a.e(f"v_sub_u32 v{t}, 31, v{t}"); a.e(f"v_and_b32 v{t2}, 1, v{t}"); a.e(f"v_cmp_eq_u32 vcc, 1, v{t2}")
    a.e(f"v_mov_b32 v{t2}, s42"); a.e(f"v_mov_b32 v{t3}, s41"); a.e(f"v_cndmask_b32 v{t2}, v{t2}, v{t3}, vcc"); a.e(f"v_ashrrev_i32 v{t}, 1, v{t}")
    for i in range(8): a.e(f"v_cmp_eq_u32 vcc, {8*(i//4) + i%4}, v{t}"); a.e(f"v_cndmask_b32 v{dop+i}, 0, v{t2}, vcc")

def front_conv(a):
    v = VA(6, skip=True); lane = 1; l16 = 2
    t = v(); pt = v(4, 2)
    uo, aa, ba, J, G, fl, dop = [CV[k] for k in "uo aa ba J G fl dop".split()]
    ya = v(4, 1); ta = v()
    acc = v(32, 4)
    fa = v(64, 4); fb = v(32, 4)
    def rdA(p, o):
        return [f"ds_read_b64 {vr(fa+32*p+8*s_+4*mt+2*h,2)}, v{aa} offset:{64*(o+16*s_) + 32*mt + 8*h}" for s_ in range(4) for mt in range(2) for h in range(2)]
    def rdB(p, o):
        return [f"ds_read_b128 {vr(fb+16*p+4*k,4)}, v{ba} offset:{UOFF + (48 - 16*k + o)*US}" for k in range(4)]
    a.e("s_cmp_lg_u32 s30, 0"); a.e("s_cbranch_scc1 CV_w")
    poll_core(a, pt, fl, 0xffffffff)
    lds_set(a, LW + 16, 1, pt)
    a.e("CV_w:")
    a.e(f"s_add_u32 m0, s40, {UOFF}"); a.e("s_movk_i32 s36, 8192")
    lds_spin(a, LW + 16, 1, pt)
    mstamp(a)
    for it in range(6):
        a.e(f"buffer_load_dwordx4 v{uo+it%3}, s[20:23], {'s36' if it > 2 else 0} offen {SC} lds")
        if it < 5: a.e("s_add_u32 m0, m0, 1024")
    a.e("s_waitcnt vmcnt(0)"); a.e("s_barrier")
    mstamp(a)
    load_q(a)
    for x in rdB(0, 0) + rdA(0, 0): a.e(x)
    a.e("s_waitcnt lgkmcnt(15)")
    for c_ in range(4):
        for mt in range(2): a.e(f"v_mfma_f32_16x16x32_bf16 {vr(acc+8*c_+4*mt,4)}, {vr(dop+4*mt,4)}, {vr(fb+4*c_,4)}, 0")
    def step(p, nxt, tail):
        a.e("s_waitcnt lgkmcnt(0)")
        mf = [(c_, s_, mt) for s_ in range(4) for mt in range(2) for c_ in range(s_, 4)]
        for i, (c_, s_, mt) in enumerate(mf):
            A = acc + 8 * c_ + 4 * mt
            a.e(f"v_mfma_f32_16x16x32_bf16 {vr(A,4)}, {vr(fa+32*p+8*s_+4*mt,4)}, {vr(fb+16*p+4*(c_-s_),4)}, {vr(A,4)}")
            for _ in range(2 if i % 3 == 0 else 1):
                if nxt: a.e(nxt.pop(0))
                elif tail and i < 19: a.e(tail.pop(0))
        assert not nxt and not tail
    a.e("s_mov_b32 s43, 0")
    NU = env("NU", 3)
    if NU:
        a.e("CV_r:")
        for p in range(2):
            step(p, [], [])
            for x in rdB(1 - p, p + 1) + rdA(1 - p, p + 1): a.e(x)
        for x in [f"v_add_u32 v{aa}, 128, v{aa}", f"v_add_u32 v{ba}, {2*US}, v{ba}", "s_add_u32 s43, s43, 1", f"s_cmp_lt_u32 s43, {NU}"]: a.e(x)
        a.e("s_cbranch_scc1 CV_r")
    a.e("CV_l:")
    step(0, rdB(1, 1) + rdA(1, 1), [])
    step(1, rdB(0, 2) + rdA(0, 2), [f"v_add_u32 v{aa}, 128, v{aa}", f"v_add_u32 v{ba}, {2*US}, v{ba}", "s_add_u32 s43, s43, 1", "s_cmp_lt_u32 s43, 8"])
    a.e("s_cbranch_scc1 CV_l")
    mstamp(a)
    a.e(f"s_mul_i32 s36, s30, {CHB+64}")
    a.e(f"v_mul_u32_u24 v{ya}, 72, v{J}"); a.e(f"v_lshl_add_u32 v{ya}, v{G}, 2, v{ya}"); a.e(f"v_add_u32 v{ya}, s36, v{ya}")
    for c_ in range(1, 4): a.e(f"v_add_u32 v{ya+c_}, {c_*16*72}, v{ya}")
    a.e(f"v_bfe_u32 v{t}, v{lane}, 2, 2"); a.e(f"v_mul_u32_u24 v{ta}, {CHB+64}, v{t}")
    a.e(f"v_mul_u32_u24 v{t}, 72, v{G}"); a.e(f"v_add_u32 v{ta}, v{ta}, v{t}")
    a.e(f"v_and_b32 v{t}, 3, v{lane}"); a.e(f"v_lshl_add_u32 v{ta}, v{t}, 3, v{ta}")
    a.e(f"s_mul_i32 s36, s30, {16*72}"); a.e(f"v_add_u32 v{ta}, s36, v{ta}")
    a.e("s_waitcnt lgkmcnt(0)")
    for c_ in range(4):
        for mt in range(2):
            A = acc + 8 * c_ + 4 * mt
            a.e(f"v_cvt_pk_bf16_f32 v{A}, v{A}, v{A+2}"); a.e(f"v_cvt_pk_bf16_f32 v{A+1}, v{A+1}, v{A+3}")
            a.e(f"ds_write2_b32 v{ya+c_}, v{A}, v{A+1} offset0:{4*mt} offset1:{4*mt+8}")
    a.srd(12, 4, 4 * MB, off=Y)
    a.e("s_lshl_b32 s36, s38, 14"); a.e("s_lshl_b32 s37, s30, 12"); a.e("s_add_u32 s36, s36, s37")
    lbar(a, 1, pt)
    for i in range(8): a.e(f"ds_read_b64_tr_b16 {vr(fa+2*i,2)}, v{ta} offset:{288*(i//2) + 32*(i&1)}")
    for i in range(4):
        a.e(f"s_waitcnt lgkmcnt({6-2*i})")
        a.e(f"buffer_store_dwordx4 {vr(fa+4*i,4)}, v{l16}, s[12:15], s36 offen offset:{1024*i} {SC}")
    assert v.hi <= 216

def r_addr(a):
    t, t2, I, fo, ro, yo, xo = RT, RT + 1, RI, RFO, RRO, RYO, RXO
    a.e(f"v_and_b32 v{I}, 7, v0")
    a.e(f"v_lshrrev_b32 v{t}, 6, v0"); a.e(f"v_lshlrev_b32 v{t}, 4, v{t}"); a.e(f"v_bfe_u32 v{t2}, v0, 3, 3"); a.e(f"v_add_u32 v{t}, v{t}, v{t2}")
    a.e("s_lshr_b32 s78, s29, 1"); a.e("s_lshl_b32 s78, s78, 16"); a.e("s_and_b32 s79, s29, 1"); a.e("s_lshl_b32 s79, s79, 7"); a.e("s_add_u32 s78, s78, s79")
    a.e("s_lshr_b32 s79, s30, 1"); a.e("s_lshl_b32 s79, s79, 13"); a.e("s_add_u32 s78, s78, s79")
    a.e(f"v_lshlrev_b32 v{fo}, 8, v{t}"); a.e(f"v_lshl_add_u32 v{fo}, v{I}, 4, v{fo}"); a.e(f"v_add_u32 v{fo}, s78, v{fo}")
    a.e("s_lshl_b32 s78, s28, 7"); a.e("s_lshl_b32 s79, s29, 3"); a.e("s_add_u32 s78, s78, s79")
    a.e(f"v_add_u32 v{yo}, s78, v{I}"); a.e(f"v_lshlrev_b32 v{ro}, 11, v{yo}")
    rowaddr(a, xo, yo, t2); a.e(f"v_lshl_add_u32 v{xo}, v{t}, 4, v{xo}")
    a.e(f"v_lshrrev_b32 v{t2}, 2, v{t}"); a.e(f"v_lshlrev_b32 v{t2}, 3, v{t2}"); a.e(f"v_and_b32 v{t}, 3, v{t}"); a.e(f"v_add_u32 v{t}, v{t}, v{t2}")
    a.e(f"v_lshl_add_u32 v{ro}, v{t}, 3, v{ro}")
    a.e(f"v_lshlrev_b32 v{yo}, 3, v{yo}"); a.e(f"v_lshl_add_u32 v{yo}, v{t}, 14, v{yo}")
def load_y(a):
    a.srd(80, 4, 4 * MB, off=Y)
    for j in range(2):
        for hh in range(2):
            a.e(f"s_mov_b32 s78, {(16*j + 4*hh)*16384}")
            a.e(f"buffer_load_dwordx2 {vr(RYY+4*j+2*hh,2)}, v{RYO}, s[80:83], s78 offen {SC}")
def r_pre(a):
    r_addr(a)
    x3_srd(a, 84); lsrd(a, 88, oX1P, XSZ)
    for j in range(2):
        a.e(f"buffer_load_dwordx4 {vr(RXA+4*j,4)}, v{RXO}, s[84:87], 0 offen offset:{128*j} {SC}")
        a.e(f"buffer_load_dwordx4 {vr(RXB+4*j,4)}, v{RFO}, s[88:91], 0 offen offset:{2048*j} {SC}")
    load_y(a)

def w3_sub(a, which):
    w_srd(a, 3, 8)
    a.e("s_add_u32 s36, s29, s88"); a.e("s_and_b32 s36, s36, 15")
    a.e("s_cmp_lg_u32 s28, s29"); a.e("s_cselect_b32 s89, s88, 0"); a.e("s_cmp_eq_u32 s89, 1"); a.e("s_cselect_b32 s36, s28, s36")
    a.e("s_and_b32 s89, s30, 3"); a.e("s_lshl2_add_u32 s36, s36, s89")
    a.e(f"s_mul_i32 s90, s36, {16*7168}"); a.e(f"s_mul_i32 s36, s29, 448"); a.e("s_add_u32 s90, s90, s36")
    a.e("s_lshl2_add_u32 s89, s88, s89"); a.e(f"s_mul_i32 s89, s89, 7168"); a.e(f"s_add_u32 m0, s89, {CFG[3]['WB']}")
    for i in range(7):
        if i: a.e("s_add_u32 m0, m0, 1024")
        a.e(f"buffer_load_dwordx4 v{WVB[3]+i}, s[8:11], s90 offen lds")
def w3_stage(a, k):
    a.e(f"s_mov_b32 s88, {k}"); call_issue(a, w3_sub, 3)
def r_stage(a):
    v = VA(6)
    t = v(); t2 = v(); I = RI; fo = RFO; pt = v(4, 2)
    xa = RXA; xb = RXB; yy = RYY; yf = RYF; x = v(16, 2); w = v(16, 2); tmp = v()
    S = v(2, 2); pp = v(2, 2); qq = v(2, 2); st = v(16, 4); rsd = st; mean = v(2, 2); rs = mean + 1; var = v(); sw = v(); sr = v(); wad = v(2, 2)
    assert v.hi <= RB0, v.hi
    def part(src, n):
        a.e(f"v_pk_add_f32 {vr(pp,2)}, {vr(src,2)}, {vr(src+2,2)}"); a.e(f"v_pk_mul_f32 {vr(qq,2)}, {vr(src,2)}, {vr(src,2)}")
        for i in range(1, 8):
            if i > 1: a.e(f"v_pk_add_f32 {vr(pp,2)}, {vr(pp,2)}, {vr(src+2*i,2)}")
            a.e(f"v_pk_fma_f32 {vr(qq,2)}, {vr(src+2*i,2)}, {vr(src+2*i,2)}, {vr(qq,2)}")
        a.e(f"v_add_f32 v{S}, v{pp}, v{pp+1}"); a.e(f"v_add_f32 v{S+1}, v{qq}, v{qq+1}")
        for k in range(2): a.e(f"v_add_f32_dpp v{S+k}, v{S+k}, v{S+k} row_ror:8 row_mask:0xf bank_mask:0xf")
        for op in ("v_permlane16_swap_b32", "v_permlane32_swap_b32"):
            for k in range(2): a.e(f"v_mov_b32 v{pp+k}, v{S+k}")
            for k in range(2): a.e(f"{op} v{S+k}, v{pp+k}")
            a.e(f"v_pk_add_f32 {vr(S,2)}, {vr(S,2)}, {vr(pp,2)}")
        a.e(f"ds_write_b64 v{sw}, {vr(S,2)} offset:{n*1536}")
    def comb(n):
        for k in range(4): a.e(f"ds_read_b128 {vr(st+4*k,4)}, v{sr} offset:{n*1536+16*k}")
        a.e("s_waitcnt lgkmcnt(0)")
        for k in range(4): a.e(f"v_pk_add_f32 {vr(st+4*k,2)}, {vr(st+4*k,2)}, {vr(st+4*k+2,2)}")
        a.e(f"v_pk_add_f32 {vr(st,2)}, {vr(st,2)}, {vr(st+4,2)}"); a.e(f"v_pk_add_f32 {vr(st+8,2)}, {vr(st+8,2)}, {vr(st+12,2)}")
        a.e(f"v_pk_add_f32 {vr(st,2)}, {vr(st,2)}, {vr(st+8,2)}")
        a.e(f"v_mul_f32 v{mean}, {f32(1/1024)}, v{st}"); a.e(f"v_mul_f32 v{var}, {f32(1/1024)}, v{st+1}")
        a.e(f"v_fma_f32 v{var}, -v{mean}, v{mean}, v{var}"); a.e(f"v_max_f32 v{var}, 0, v{var}")
    def w1_in(cs):
        X = a.lab("w1in")
        a.e("s_cmp_ge_u32 s30, 4"); a.e(f"s_cbranch_scc1 {X}")
        if cs: lds_spin(a, LW + 20, 8, t, nap=2)
        wr_read(a, wad, range(16) if cs else W1A)
        if cs:
            one = st; ca = st + 4
            for i in range(4): a.e(f"v_mov_b32 v{one+i}, 0x3f803f80")
            a.e("s_lshl_b32 s35, s30, 6"); a.e(f"s_add_u32 s35, s35, {CSO[1]}")
            a.e(f"v_and_b32 v{st+12}, 48, v1"); a.e(f"v_add_u32 v{st+12}, s35, v{st+12}")
            a.e("s_waitcnt lgkmcnt(0)")
            for b in range(32): a.e(f"v_mfma_f32_16x16x32_bf16 {vr(ca,4)}, {vr(WR0+4*b,4)}, {vr(one,4)}, {vr(ca,4) if b else 0}")
            a.e("s_mov_b32 exec_lo, 0x10001"); a.e("s_mov_b32 exec_hi, 0x10001")
            a.e(f"ds_write_b128 v{st+12}, {vr(ca,4)}")
            a.e("s_mov_b64 exec, -1"); a.e("s_waitcnt lgkmcnt(0)")
        a.e(f"{X}:")
    def norm():
        ln_finish(a, mean, var, rs)
        a.e(f"v_mul_f32 v{mean}, -v{mean}, v{rs}")
        for i in range(8): a.e(f"v_pk_fma_f32 {vr(w+2*i,2)}, {vr(x+2*i,2)}, {vr(mean,2)}, {vr(mean,2)} op_sel:[0,1,0] op_sel_hi:[1,1,0]")
    a.e(f"v_lshlrev_b32 v{sr}, 6, v{I}"); a.e(f"v_add_u32 v{sr}, {AUX+2048}, v{sr}")
    a.e(f"s_lshl_b32 s35, s30, 3"); a.e(f"v_add_u32 v{sw}, s35, v{sr}")
    wr_addr(a, wad, t)
    a.e(f"s_cmp_eq_u32 s60, 0"); a.e(f"s_cbranch_scc1 R_l0")
    lsrd(a, 8, oH, XSZ, prev=True)
    p1_off(a, 36, 37); a.e("s_add_u32 s12, s4, s36"); a.e("s_addc_u32 s13, s5, 0"); a.e(f"s_mov_b32 s14, {XSZ}"); a.e("s_mov_b32 s15, 0x20000")
    for i in range(8):
        unpack(a, yf + 2 * i, yf + 2 * i + 1, yy + i)
        unpack(a, rsd + 2 * i, rsd + 2 * i + 1, xa + i); unpack(a, w + 2 * i, w + 2 * i + 1, xb + i)
        a.e(f"v_pk_add_f32 {vr(rsd+2*i,2)}, {vr(rsd+2*i,2)}, {vr(w+2*i,2)}")
    if env("RDEL", 0): a.e(f"s_sleep {env('RDEL', 0)}")
    data_wait(a, [f"buffer_load_dwordx4 {vr((xa, xb)[k]+4*j,4)}, v{fo}, s[{8+4*k}:{11+4*k}], 0 offen offset:{2048*j} {SC}" for j in range(2) for k in range(2)],
              list(range(xa, xa + 16)), t, lambda: w1_in(False), nap=env("NAP4", 2))
    mstamp(a)
    for i in range(8):
        unpack(a, x + 2 * i, x + 2 * i + 1, xa + i); unpack(a, w + 2 * i, w + 2 * i + 1, xb + i)
        a.e(f"v_pk_add_f32 {vr(x+2*i,2)}, {vr(x+2*i,2)}, {vr(w+2*i,2)}")
        a.e(f"v_pk_add_f32 {vr(x+2*i,2)}, {vr(x+2*i,2)}, {vr(rsd+2*i,2)}")
    part(x, 0)
    x3_srd(a, 20)
    a.e("s_waitcnt lgkmcnt(0)"); a.e("s_barrier")
    comb(0)
    norm()
    a.e("s_branch R_s2")
    a.e("R_l0:")
    for i in range(8): unpack(a, x + 2 * i, x + 2 * i + 1, xa + i)
    part(x, 0)
    w1_in(True)
    mstamp(a)
    a.e("s_cmp_lg_u32 s30, 0"); a.e("s_cbranch_scc1 R_fw")
    a.e("s_lshl_b32 s36, s28, 13"); a.e(f"s_add_u32 s36, s36, {F_FRONT}")
    a.e(f"v_lshlrev_b32 v{st+4}, 7, v1"); a.e(f"v_add_u32 v{st+4}, s36, v{st+4}")
    a.e("s_mov_b32 s53, 0")
    a.e("R_fp:")
    a.e(f"buffer_load_dword v{st}, v{st+4}, s[56:59], 0 offen {SC}"); a.e("s_waitcnt vmcnt(0)")
    a.e(f"v_subrev_u32 v{st}, s52, v{st}"); a.e(f"v_and_b32 v{st+1}, 0xfffff8ff, v{st}"); a.e(f"v_cmp_eq_u32 vcc, 4, v{st+1}")
    a.e("s_cmp_eq_u64 vcc, exec"); a.e("s_cbranch_scc1 R_fq")
    a.e(f"s_sleep {FSLEEP}")
    a.e("s_add_u32 s53, s53, 1"); a.e("s_cmp_lt_u32 s53, s61"); a.e("s_cbranch_scc1 R_fp")
    a.e("s_mov_b32 s61, 0")
    a.e("R_fq:")
    a.e(f"v_lshrrev_b32 v{st}, 8, v{st}"); a.e(f"v_mov_b32 v{st+1}, {LW+28}"); a.e(f"ds_add_u32 v{st+1}, v{st}")
    a.e("R_fw:")
    a.e("s_waitcnt lgkmcnt(0)")
    a.e("s_barrier")
    mstamp(a)
    load_y(a)
    a.e(f"v_mov_b32 v{t}, {LW+28}"); a.e(f"ds_read_b32 v{t2}, v{t}")
    comb(0)
    a.e("s_cmp_lt_u32 s30, 4"); a.e("s_cbranch_scc1 R_f2")
    w_dump(a, wreg, pt)
    a.e("R_f2:")
    norm()
    a.e(f"v_readfirstlane_b32 s94, v{t2}")
    if STAMP: a.e("s_mov_b32 s95, s94")
    a.e(f"s_cmp_gt_u32 s94, {NVOTE // 2}"); a.e("s_cselect_b32 s94, 1, 0")
    group_off(a, 55, 28)
    a.e("s_add_u32 s62, s4, s55"); a.e("s_addc_u32 s63, s5, 0")
    a.e("s_sub_u32 s36, s28, 1"); a.e("s_max_i32 s36, s36, 0"); group_off(a, 92, 36); a.e("s_sub_u32 s92, s92, s55")
    a.e("s_add_u32 s36, s28, 1"); a.e("s_min_u32 s36, s36, 15"); group_off(a, 93, 36); a.e("s_sub_u32 s93, s93, s55")
    a.e(f"s_add_u32 s55, s55, {oSM}")
    x3_srd(a, 20)
    a.e("s_waitcnt vmcnt(0)")
    for i in range(8): unpack(a, yf + 2 * i, yf + 2 * i + 1, yy + i)
    a.e("R_s2:")
    for i in range(8):
        a.e(f"v_pk_fma_f32 {vr(x+2*i,2)}, {vr(w+2*i,2)}, {vr(yf+2*i,2)}, {vr(x+2*i,2)}")
        if i % 4 == 3:
            for k in range(i - 3, i + 1): a.e(f"v_cvt_pk_bf16_f32 v{xa+k}, v{x+2*k}, v{x+2*k+1}")
            a.e(f"buffer_store_dwordx4 {vr(xa+i-3,4)}, v{RXO}, s[20:23], 0 offen offset:{128*(i//4)} {SC}")
    part(x, 1)
    a.e("s_waitcnt lgkmcnt(0)"); a.e("s_barrier")
    a.e("s_cmp_ge_u32 s30, 4"); a.e("s_cbranch_scc1 LOADERS")
    a.e("s_cmp_lg_u32 s30, 3"); a.e("s_cbranch_scc1 R_nl")
    comb(1)
    outv = w; m4 = w + 4; v4_ = w + 5
    a.e(f"v_mov_b32 v{m4}, v{mean}"); a.e(f"v_mov_b32 v{v4_}, v{var}")
    ln_finish(a, mean, var, rs)
    a.e(f"v_sub_f32 v{m4}, v{m4}, v{mean}"); a.e(f"v_mul_f32 v{m4}, v{m4}, v{rs}")
    a.e(f"v_mul_f32 v{v4_}, v{v4_}, v{rs}"); a.e(f"v_mul_f32 v{v4_}, v{v4_}, v{rs}")
    ln_finish(a, m4, v4_, None)
    a.e(f"v_cvt_pk_bf16_f32 v{outv}, v{mean}, v{var}"); a.e(f"v_cvt_pk_bf16_f32 v{outv+2}, v{m4}, v{v4_}")
    a.e(f"v_mov_b32 v{outv+1}, s52"); a.e(f"v_mov_b32 v{outv+3}, s52")
    lns_srd(a, 24)
    a.e("s_lshl_b32 s36, s28, 4"); a.e("s_add_u32 s36, s36, s29"); a.e("s_lshl_b32 s36, s36, 7")
    a.e("s_mov_b64 exec, 0xff")
    a.e(f"buffer_store_dwordx4 {vr(outv,4)}, v2, s[24:27], s36 offen {SC}")
    a.e("s_mov_b64 exec, -1")
    a.e("R_nl:")
    a.e(f"v_mov_b32 v{t}, 1"); a.e(f"v_mov_b32 v{t2}, 0")
    a.e("s_cmp_eq_u32 s30, 3"); a.e("s_waitcnt vmcnt(1)"); a.e("s_cbranch_scc1 R_n2")
    a.e("s_waitcnt vmcnt(0)")
    a.e("R_n2:")
    a.e("s_barrier")
    a.e("s_cmp_lg_u32 s30, 0"); a.e("s_cbranch_scc1 R_n3")
    a.e("s_mov_b64 exec, 1"); a.e(f"buffer_atomic_add v{t}, v{t2}, s[56:59], s55 offen {SC}"); a.e("s_mov_b64 exec, -1")
    a.e("R_n3:")
def rot_init(a, which):
    a.e("s_mov_b32 s44, s29" if which == 3 else "s_mov_b32 s44, 0")
def stage3(b, d):
    b.e("s_cmp_eq_u32 s44, s47"); b.e(f"s_cselect_b32 s{d}, s46, s44")
def stage3_init(a):
    a.e("s_add_u32 s46, s29, 1"); a.e("s_and_b32 s46, s46, 15"); a.e("s_cmp_eq_u32 s28, s29"); a.e("s_cselect_b32 s47, s46, s28")
def rot_next(a, which):
    a.e("s_add_u32 s44, s44, 1")
    if which != 4: a.e("s_and_b32 s44, s44, 15")
def kb4(a, d, lw):
    a.e("s_lshl_b32 s45, s44, 1"); a.e(f"s_add_u32 s45, s45, {lw}"); a.e("s_sub_u32 s45, s45, 32")
    a.e("s_mul_i32 s46, s45, 86"); a.e("s_lshr_b32 s46, s46, 8")
    a.e("s_mul_i32 s47, s46, 3"); a.e("s_sub_u32 s47, s45, s47"); a.e("s_lshl_b32 s47, s47, 2"); a.e("s_lshr_b32 s47, 0x362, s47"); a.e("s_and_b32 s47, s47, 7")
    a.e("s_cmp_ge_u32 s44, 10"); a.e("s_cselect_b32 s45, 9, 2"); a.e("s_cselect_b32 s51, 1, 0"); a.e("s_sub_u32 s45, s44, s45")
    a.e("s_cmp_lt_u32 s44, 3"); a.e("s_cselect_b32 s45, 0, s45"); a.e("s_cselect_b32 s51, s44, s51")
    a.e(f"s_lshl2_add_u32 s51, {lw}, s51")
    a.e("s_cmp_lt_u32 s44, 17"); a.e("s_cselect_b32 s47, s51, s47"); a.e("s_cselect_b32 s46, s45, s46")
    a.e("s_add_u32 s46, s46, s33"); a.e("s_and_b32 s46, s46, 7"); a.e("s_mul_i32 s46, s46, 7"); a.e(f"s_add_u32 s{d}, s46, s47")
assert all((q * 86) >> 8 == q // 3 for q in range(24))
def w_lanes(a, which, t, t2):
    if 1 in which:
        R = WVB[1]
        a.e(f"v_lshrrev_b32 v{t}, 3, v1"); a.e(f"v_lshlrev_b32 v{R}, 11, v{t}")
        a.e(f"v_and_b32 v{t}, 6, v{t}"); a.e(f"v_and_b32 v{t2}, 7, v1"); a.e(f"v_xor_b32 v{t}, v{t}, v{t2}"); a.e(f"v_lshl_add_u32 v{R}, v{t}, 4, v{R}")
        return
    R = WVB[4]
    for p in range(2):
        a.e(f"v_lshrrev_b32 v{t}, 4, v1"); a.e(f"v_lshlrev_b32 v{R+p}, 11, v{t}")
        a.e(f"v_add_u32 v{t}, {4*p}, v{t}"); a.e(f"v_lshlrev_b32 v{t}, 1, v{t}"); a.e(f"v_and_b32 v{t2}, 15, v1"); a.e(f"v_xor_b32 v{t}, v{t}, v{t2}")
        a.e(f"v_lshl_add_u32 v{R+p}, v{t}, 4, v{R+p}")
    R = WVB[3]
    assert all((p * 2341) >> 16 == p // 28 for p in range(448))
    for ii in range(7):
        a.e(f"v_add_u32 v{t2}, {64*ii}, v1"); a.e(f"v_mul_u32_u24 v{t}, 2341, v{t2}"); a.e(f"v_lshrrev_b32 v{t}, 16, v{t}")
        a.e(f"v_mul_u32_u24 v{R+ii}, 28, v{t}"); a.e(f"v_sub_u32 v{t2}, v{t2}, v{R+ii}")
        a.e(f"v_mul_u32_u24 v{R+ii}, 7168, v{t}")
        a.e(f"v_lshrrev_b32 v{t}, 1, v{t}"); a.e(f"v_and_b32 v{t}, 2, v{t}"); a.e(f"v_xor_b32 v{t2}, v{t2}, v{t}")
        a.e(f"v_lshl_add_u32 v{R+ii}, v{t2}, 4, v{R+ii}")
def w_srd(a, which, d=12):
    c = CFG[which]
    a.e(f"s_mov_b64 s[{d}:{d+1}], s[{66+2*which}:{67+2*which}]")
    a.e(f"s_mov_b32 s{d+2}, {c['KBT'] * 32 * c['LDW']}"); a.e(f"s_mov_b32 s{d+3}, 0x20000")
def w_setup(a, which, pre=True):
    c = CFG[which]; STB = c["STB"]; BW = STB // 2
    w_srd(a, which)
    a.e("s_and_b32 s35, s30, 1")
    a.e(f"s_mul_i32 s38, s{29 if which != 4 else 33}, {c['RB']}")
    if which != 4: a.e(f"s_mul_i32 s41, s35, {32*c['LDW']}"); a.e("s_add_u32 s38, s38, s41")
    if which == 4: a.e(f"s_mul_i32 s41, s31, {1792*c['LDW']}"); a.e("s_add_u32 s38, s38, s41")
    a.e(f"s_mul_i32 s41, s35, {BW}")
    if c["WB"]: a.e(f"s_add_u32 s41, s41, {c['WB']}")
    a.e("s_mov_b32 s42, 0"); rot_init(a, which)
    if not pre: return
    NP = c["NPRE"]
    a.e("s_mov_b32 s49, s44"); a.e(f"s_and_b32 s43, s28, {3 * env('WROT', 0)}"); a.e(f"s_mul_i32 s43, s43, {NP}"); a.e("s_lshr_b32 s43, s43, 2"); a.e("s_mov_b32 s50, 0")
    L = a.lab("wpre"); a.e(f"{L}:")
    a.e(f"s_mul_i32 s42, s43, {STB}"); a.e("s_add_u32 s44, s49, s43")
    w_issue(a, which, pace=PACES.get(which, PACE))
    a.e("s_add_u32 s43, s43, 1"); a.e(f"s_cmp_eq_u32 s43, {NP}"); a.e("s_cselect_b32 s43, 0, s43")
    a.e("s_add_u32 s50, s50, 1"); a.e(f"s_cmp_lt_u32 s50, {NP}"); a.e(f"s_cbranch_scc1 {L}")
    mstamp(a)
    a.e(f"s_mov_b32 s42, {(NP % c['NW']) * STB}"); a.e(f"s_add_u32 s44, s49, {NP}")
def w_slots(a, items, pace=0):
    for kh, u, ad in items:
        a.e(f"s_mov_b32 s42, {ad}"); a.e(f"s_add_u32 s44, s67, {u}"); a.e("s_and_b32 s44, s44, 7")
        if kh: a.e("s_or_b32 s44, s44, 8")
        call_issue(a, w_issue, 1)
        if pace: a.e(f"s_waitcnt vmcnt({pace})")
def w1_slots(a, js, pace=0): w_slots(a, [(j >> 3, j & 7, WST + j * 8192) for j in js], pace)
def w_parts(which):
    c = CFG[which]; STB = c["STB"]; n = STB // 2048; LDW = c["LDW"]; b = Rec()
    b.e("s_add_u32 s19, s41, s42")
    arm = ["s_mov_b32 m0, s19", "s_mov_b32 s39, s16"]
    if which == 4:
        b.e("s_and_b32 s40, s30, 1"); kb4(b, 16, "s40")
        b.e(f"s_mul_i32 s16, s16, {32*LDW}"); b.e("s_add_u32 s16, s16, s38")
        b.e("s_cmp_eq_u32 s47, 3"); b.e("s_cselect_b32 s17, 8, 4"); b.e("s_cselect_b32 s18, -20, 4")
        b.e("s_lshl_b32 s17, s17, 11"); b.e("s_lshl_b32 s18, s18, 11")
        arm += ["s_mov_b32 s32, s17", "s_mov_b32 s3, s18"]
    elif which == 3:
        stage3(b, 16); b.e(f"s_mul_i32 s16, s16, {64*LDW}"); b.e("s_add_u32 s16, s16, s38")
    else:
        b.e(f"s_mul_i32 s16, s44, {64*LDW}"); b.e("s_add_u32 s16, s16, s38")
    if which > 2:
        rot_next(b, which)
        b.e(f"s_add_u32 s42, s42, {STB}"); b.e(f"s_cmp_eq_u32 s42, {c['NW']*STB}"); b.e("s_cselect_b32 s42, 0, s42")
    fire = []
    for i in range(n):
        g = []
        if i:
            g.append("s_add_u32 m0, m0, 1024")
            if which in (1, 2): g.append(f"s_add_u32 s39, s39, {8*LDW}")
            elif which == 4: g.append(f"s_add_u32 s39, s39, s{3 if i == 4 else 32}")
            elif i == 7: g.append(f"s_add_u32 s39, s39, {16*LDW}")
        vo = WVB[which] + (0 if which in (1, 2) else (i & 1) if which == 4 else i % 7)
        fire.append(g + [f"buffer_load_dwordx4 v{vo}, s[12:15], s39 offen lds"])
    return b.l, arm, fire
def w_issue(a, which, pace=0):
    prep, arm, fire = w_parts(which)
    for x in prep + arm: a.e(x)
    for i, g in enumerate(fire):
        for x in g: a.e(x)
        if pace and (i % 4 == 3 or i == len(fire) - 1): a.e(f"s_waitcnt vmcnt({pace})")

def w_bases(a, which, dst, swn, ntl, t, t2):
    c = CFG[which]; RB = c["RB"]
    a.e(f"v_lshrrev_b32 v{t}, 2, v1")
    a.e(f"v_mul_u32_u24 v{dst}, {RB}, v{t}"); a.e(f"v_and_b32 v{t2}, 3, v1"); a.e(f"v_lshl_add_u32 v{dst}, v{t2}, 3, v{dst}")
    if c["WB"]: a.e(f"v_add_u32 v{dst}, {c['WB']}, v{dst}")
    if which == 3:
        a.e(f"s_mul_i32 s36, s{swn}, {7*32}"); a.e(f"v_add_u32 v{dst}, s36, v{dst}")
        a.e(f"v_bfe_u32 v{t}, v1, 4, 1"); a.e(f"v_lshlrev_b32 v{t}, 5, v{t}")
        a.e(f"s_cmp_eq_u32 s{swn}, 0"); a.e("s_cselect_b32 s36, 1, -1"); a.e(f"v_mul_lo_u32 v{t}, v{t}, s36")
        a.e(f"v_sub_u32 v{dst+1}, v{dst}, v{t}"); a.e(f"v_add_u32 v{dst}, v{dst}, v{t}")
        return 2, lambda nt, kk, h: (nt & 1, (32 * kk + 16 * h) * RB + 32 * nt)
    if which == 4: a.e(f"v_and_b32 v{t}, 7, v{t}")
    else: a.e(f"v_bfe_u32 v{t}, v{t}, 1, 2")
    for nt in range(ntl - 1, -1, -1):
        a.e(f"s_mul_i32 s36, s{swn}, {ntl}"); a.e(f"s_add_u32 s36, s36, {nt}")
        a.e(f"v_xor_b32 v{t2}, s36, v{t}"); a.e(f"v_lshl_add_u32 v{dst+nt}, v{t2}, 5, v{dst}")
    return ntl, lambda nt, kk, h: (nt, (32 * kk + 16 * h) * RB)

def a_parts(which):
    c = CFG[which]; b = Rec()
    b.e("s_add_u32 s19, s41, s42")
    arm = ["s_mov_b32 m0, s19", "s_mov_b32 s39, s16"]; fire = []
    if which == 4:
        for lw in range(2):
            kb4(b, 16 + lw, lw); spread(b, 16 + lw, 16 + lw); b.e(f"s_add_u32 s{16+lw}, s{16+lw}, s38")
        arm.append("s_mov_b32 s40, s17")
        for i in range(4):
            for lw in range(2):
                fire.append((["s_add_u32 m0, m0, 1024"] if i or lw else []) + ([f"s_add_u32 s{39+lw}, s{39+lw}, {c['KBT']*2048}"] if i else []) +
                            [f"buffer_load_dwordx4 v2, s[12:15], s{39+lw} offen {SC} lds"])
    else:
        stage3(b, 16); b.e("s_cmp_eq_u32 s44, s46"); b.e("s_cselect_b32 s16, s47, s16")
        b.e("s_lshr_b32 s45, s16, 2"); b.e("s_lshl_b32 s45, s45, 14"); b.e("s_and_b32 s16, s16, 3"); b.e("s_lshl_b32 s16, s16, 11")
        b.e("s_add_u32 s16, s16, s45"); b.e("s_add_u32 s16, s16, s38"); step = c['KBT'] * 2048
        for i in range(4):
            fire.append((["s_add_u32 m0, m0, 2048", f"s_add_u32 s39, s39, {step}"] if i else []) + [f"buffer_load_dwordx4 v2, s[12:15], s39 offen {SC} lds"])
            fire.append([f"buffer_load_dwordx4 v2, s[12:15], s39 offen offset:1024 {SC} lds"])
    rot_next(b, which)
    b.e(f"s_add_u32 s42, s42, 16384"); b.e(f"s_cmp_eq_u32 s42, {c['NA']*16384}"); b.e("s_cselect_b32 s42, 0, s42")
    return b.l, arm, fire
def a_issue(a, which):
    prep, arm, fire = a_parts(which)
    for x in prep + arm + sum(fire, []): a.e(x)
SUBS = {}
def call_issue(a, issue, which):
    nm = f"SUB_{issue.__name__}_{which}"; SUBS[nm] = (issue, which)
    a.e(f"s_call_b64 s[76:77], {nm}")
def emit_subs(a):
    for nm, (issue, which) in SUBS.items():
        a.e(f"{nm}:"); issue(a, which); a.e("s_setpc_b64 s[76:77]")
def ld_steps(a, which, N, per, issue, npre, rate=2, plan={}, lo=0, hi=None, last=None, hold=(), start=None):
    NS = CFG[which]["NS"]
    prep, arm, fire = (w_parts if issue is w_issue else a_parts)(which); h = max(1, per * HSPLIT // 8)
    plan = {b: (x if isinstance(x, list) else [x]) for b, x in plan.items()}
    q = [s_ for s_ in range(npre) for _ in range(per)]
    def after(tag):
        if issue is w_issue and isinstance(tag, int) and tag < npre and (env('WROT', 0) or which == 3): tag = npre - 1
        return len(q) - 1 - max(i for i, x in enumerate(q) if x == tag)
    issued = npre; steps = []
    for b in range(NS):
        acts = plan.get(b, []); was = {}
        def do(pos):
            for n_, act in enumerate(acts):
                if act[0] != pos: continue
                if act[1] is not None: was[n_] = after(act[1])
                q.extend([act[4]] * act[3])
        do(True)
        k = 0
        if b > 0 and b not in hold: k = max(0, min(rate, min(NS, b - 1 + N) - issued))
        assert k or not any(x[0] == "mid" for x in acts)
        for j in range(k):
            q.extend([issued] * h)
            if j == 0: do("mid")
            q.extend([issued] * (per - h)); issued += 1
        do(False)
        w = after(b); assert w <= 63
        steps.append((k, w, b if acts else None, tuple(sorted(was.items())), issued < NS))
    def em(l):
        for x in l:
            a.e(x)
            if x == "s_barrier" and os.environ.get("JIT"): mstamp(a)
    F1, F2 = sum(fire[:h], []), sum(fire[h:], [])
    lprep = prep
    if len(prep) > 8:
        nm = f"PREP_{issue.__name__}_{which}"; SUBS[nm] = ((lambda a_, w_, l=prep: [a_.e(x) for x in l]), which)
        prep = [f"s_call_b64 s[76:77], {nm}"]
    if lo == 0 or start: em(prep + arm)
    i = lo; HI = NS if hi is None else hi
    while i < HI:
        j = i
        while j < HI and steps[j] == steps[i]: j += 1
        k, w, ab, was, more = steps[i]; n = j - i; was = dict(was)
        def run(pos):
            for n_, act in enumerate(plan.get(ab, [])):
                if act[0] != pos: continue
                if n_ in was: a.e(f"s_waitcnt vmcnt({was[n_]})")
                act[2]()
        tail = [f"s_waitcnt vmcnt({w})", "s_barrier"]
        if n > 2 and k == 1:
            em(F1); a.e("s_mov_b32 s43, 1"); L = a.lab("ld"); a.e(f"{L}:")
            em(lprep + F2 + arm + tail + F1)
            a.e("s_add_u32 s43, s43, 1"); a.e(f"s_cmp_lt_u32 s43, {n}"); a.e(f"s_cbranch_scc1 {L}")
            em(prep + F2 + arm + tail)
        else:
            for r in range(n):
                run(True)
                for jj in range(k):
                    nxt = more or jj < k - 1
                    em(F1)
                    if jj == 0: run("mid")
                    em((prep if nxt else []) + F2 + (arm if nxt else []))
                run(False)
                em(tail)
        i = j
    if hi is not None: return
    if which == 4:
        if issue is a_issue: a.e("s_cmp_eq_u32 s60, 1"); a.e("s_cbranch_scc1 K_fin")
        elif hold is HOLD: a.e("s_branch K_fin"); return
        r_pre(a); a.e("s_waitcnt vmcnt(0)")
    if last: last()
    if issue is a_issue and which == 3 and env("T4", 1):
        X = a.lab("tw4"); a.e("s_cmp_lg_u32 s60, 0"); a.e(f"s_cbranch_scc1 {X}"); touch(a, 4, 7 * MB, 60); a.e(f"{X}:")
    a.e("s_barrier")

HOLD = env("HOLD", [2, 3, 4])
def a_loader(a, which):
    c = CFG[which]
    a.e("s_and_b32 s35, s30, 1")
    lsrd(a, 12, c["A"], XSZ if which != 4 else H2SZ)
    a.e(f"s_mul_i32 s38, s35, {4*c['KBT']*2048}")
    if which == 4: a.e(f"s_mul_i32 s36, s31, {7*16384}"); a.e("s_add_u32 s38, s38, s36")
    a.e("s_lshl_b32 s41, s35, 13"); a.e("s_mov_b32 s42, 0"); rot_init(a, which)
    assert c["NA"] == 3
    if which == 4:
        flag_in(a, 34, ST_G3B); flag_in(a, 35, ST_G3)
        P4 = env("P4", 2)
        a.e(f"s_sub_u32 s48, s34, {(ST_G3B - ST_G3A) * 128}")
        plan = {**({1: [(True, None, lambda: flag_try(a, 32, 48), 0, None), (False, None, lambda: (flag_check(a, 32, 48, 8), mstamp(a)), 0, None)]} if P4 == 1 else
                   {1: (True, None, lambda: flag_try(a, 32, 48), 0, None), 2: (True, None, lambda: (flag_check(a, 32, 48, 8), mstamp(a)), 0, None)} if P4 == 2 else {}),
                7: ("mid", None, lambda: flag_try(a, 32, 34), 0, None), 8: ("mid", None, lambda: flag_check(a, 32, 34, 8), 0, None),
                14: ("mid", None, lambda: flag_try(a, 32, 35), 0, None), 15: ("mid", None, lambda: flag_check(a, 32, 35, 8), 0, None)}
        a.e("s_mov_b32 s44, 3")
        ld_steps(a, which, 3, 8, a_issue, 3, plan=plan); return
    mask = flag_addr(a, 9, ST_G2)
    def wait2(): g2_signal(a, 0); mstamp(a); poll_core(a, 8, 9, mask, cnt=16, nap=env("NAP2", 5)); mstamp(a)
    rot_next(a, 3); stage3_init(a); a.e("s_mov_b32 s42, 16384")
    plan = side_jobs(a)
    plan[1] = (True, None, wait2, 0, None)
    ld_steps(a, which, 3, 8, a_issue, 1, plan=plan, lo=1, start=True)

def g2_signal(a, wait):
    publish(a, ST_G2, 14, wait=wait)
    G2S[0](); a.e("s_waitcnt lgkmcnt(0)")
G2S = []
def side_jobs(a):
    c = CFG[3]
    sv = 18; Q, tt, mean, rs, ad, fa, fr, co_, ct = 50, 51, 52, 53, 10, 11, 12, 13, 6
    cv = 54; N = 3584; HB = c["TN16"] * 32
    assert cv + 64 <= WVB[1]
    def cld(k0=0, k1=4):
        if k0 == 0:
            flag_check(a, 3, 40, 14)
            a.srd(24, 4, 16 * N * 4, off=CSP3)
            a.e("s_cmp_eq_u32 s60, 0"); a.e("s_cselect_b32 s26, s26, 0")
            a.e("s_and_b32 s36, s30, 1"); a.e(f"s_mul_i32 s36, s36, {HB}"); a.e(f"s_mul_i32 s37, s29, {2*HB}"); a.e("s_add_u32 s37, s36, s37")
            a.e(f"v_lshrrev_b32 v{co_}, 5, v1"); a.e(f"v_mul_u32_u24 v{co_}, {N*4}, v{co_}")
            a.e(f"v_and_b32 v{ct}, {16*31}, v2"); a.e(f"v_add_u32 v{co_}, v{co_}, v{ct}")
        for k in range(k0, k1):
            a.e(f"buffer_load_dwordx4 {vr(cv+4*k,4)}, v{co_}, s[24:27], s37 offen {SC}"); a.e(f"s_add_u32 s37, s37, {N*4*2}")
    def piece(lines, l0=False):
        def f():
            X = a.lab("pc")
            if l0: a.e("s_cmp_lg_u32 s60, 0"); a.e(f"s_cbranch_scc1 {X}")
            for x in lines: a.e(x)
            if l0: a.e(f"{X}:")
        return f
    def cadd(k0, k1): return [f"v_pk_add_f32 {vr(cv+2*h,2)}, {vr(cv+2*h,2)}, {vr(cv+4*k+2*h,2)}" for k in range(k0, k1) for h in range(2)]
    def sw(op): return [f"v_mov_b32 v{cv+4+e}, v{cv+e}" for e in range(4)] + [f"{op} v{cv+e}, v{cv+4+e}" for e in range(4)] + cadd(1, 2)
    cout = ["s_and_b32 s36, s30, 1", f"s_mul_i32 s36, s36, {HB}", f"s_add_u32 s36, s36, {CSO[3]}", f"v_add_u32 v{ct}, s36, v2",
            f"s_bfm_b64 exec, {HB//16}, 0", f"ds_write_b128 v{ct}, {vr(cv,4)}", "s_mov_b64 exec, -1", "s_waitcnt lgkmcnt(0)"]
    flag_in(a, 35, ST_G2S); cs_flag(a, 40)
    a.e(f"v_lshlrev_b32 v{ad}, 3, v1")
    lsrd(a, 20, oST2, 24576)
    a.e("s_and_b32 s34, s30, 1"); a.e("s_lshl_b32 s34, s34, 9")
    def sout():
        a.e(f"s_add_u32 s36, s34, {REC}"); a.e(f"v_add_u32 v{tt}, s36, v{ad}")
        for k in range(4): a.e(f"ds_read_b64 {vr(sv+2*k,2)}, v{tt} offset:{1024*k}")
        spread(a, 36, 29); a.e("s_add_u32 s36, s36, s34")
        a.e("s_waitcnt lgkmcnt(0)")
        for k in range(1, 4): a.e(f"v_pk_add_f32 {vr(sv,2)}, {vr(sv,2)}, {vr(sv+2*k,2)}")
        a.e(f"buffer_store_dwordx2 {vr(sv,2)}, v{ad}, s[20:23], s36 offen {SC}")
    def tries():
        flag_try(a, 32, 35); flag_try(a, 3, 40)
    def ld(k0):
        def f():
            if k0 == 0: flag_check(a, 32, 35, 14)
            a.e(f"s_add_u32 s36, s34, {k0*2048}")
            for k in range(k0, k0 + 8):
                if k % 8 == 4: a.e("s_add_u32 s36, s36, 4096")
                a.e(f"buffer_load_dwordx2 {vr(sv+2*k,2)}, v{ad}, s[20:23], s36 offen offset:{(k&3)*1024} {SC}")
        return f
    b = Rec()
    for st_ in (8, 4, 2, 1):
        for k in range(st_): b.e(f"v_pk_add_f32 {vr(sv+2*k,2)}, {vr(sv+2*k,2)}, {vr(sv+2*(k+st_),2)}")
    b.e(f"v_mul_f32 v{mean}, {f32(1/1024)}, v{sv}"); b.e(f"v_mul_f32 v{Q}, {f32(1/1024)}, v{sv+1}")
    b.e(f"v_fma_f32 v{Q}, -v{mean}, v{mean}, v{Q}"); b.e(f"v_max_f32 v{Q}, 0, v{Q}")
    ln_finish(b, mean, Q, rs)
    b.e(f"s_add_u32 s36, s34, {AUX+1024}"); b.e(f"v_add_u32 v{tt}, s36, v{ad}")
    b.e(f"ds_write_b64 v{tt}, {vr(mean,2)}"); b.e("s_waitcnt lgkmcnt(0)")
    def both(f, g):
        def h(): f(); g()
        return h
    return {2: (False, None, sout, 1, "s"),
            4: (False, "s", lambda: publish(a, ST_G2S, 14, wait=None), 1, "p"),
            8: (False, None, tries, 0, None),
            9: (False, None, ld(0), 8, "d"), 10: (False, None, ld(8), 8, "d"), 11: (False, None, lambda: cld(0, 8), 8, "c"),
            12: (False, "d", piece(b.l[:12]), 0, None), 13: (False, None, piece(b.l[12:23]), 0, None),
            14: (False, "c", both(piece(b.l[23:]), piece(cadd(1, 5), 1)), 0, None), 15: (False, None, piece(cadd(5, 8) + sw("v_permlane32_swap_b32") + cout, 1), 0, None)}

def w_loader(a, which):
    c = CFG[which]
    args = (a, which, c["NW"], c["STB"] // 2048, w_issue, c["NPRE"], c["WR"])
    if which == 3:
        w_setup(a, 3, pre=False); rot_next(a, 3); rot_next(a, 3); stage3_init(a); a.e(f"s_mov_b32 s42, {2*c['STB']}")
        ld_steps(*args, plan={1: [({"T": True, "M": "mid", "F": False}[env("PUBW", "T")], 1, lambda: g2_signal(a, None), 1, "p"), (False, None, lambda: cs_sum(a), 0, None)],
                                4: (False, 3, lambda: cs_signal(a), 0, None)}, lo=1, start=True)
        return
    assert c["NW"] == 6 and c["WB"] == WST + 3 * 8192
    a.e("s_cmp_eq_u32 s60, 1"); a.e("s_cbranch_scc1 WL_t1")
    ld_steps(*args, hi=24)
    def first(): w_setup(a, 1, pre=False); w1_slots(a, (11, 12, 15))
    plan = {24: (False, None, first, 12, "w"), 25: (False, None, lambda: w1_slots(a, (13, 14)), 8, "w"),
            26: (False, None, lambda: w1_slots(a, (3, 4)), 8, "w"), 27: (False, None, lambda: w1_slots(a, (5, 6, 0)), 12, "w")}
    ld_steps(*args, plan=plan, lo=24)
    mstamp(a)
    a.e("s_branch NEXT")
    a.e("WL_t1:")
    ld_steps(*args, hold=HOLD)
SLOTS = [16 * KB, 32 * KB, 104 * KB, 120 * KB, 136 * KB]; WINB = 104 * KB
W3AT = env("W3AT", [8, 12])
LAG = 2
DEP = env("DEP", 3); BURST0 = env("BURST0", 3)
SIG = env("SIG", [(8, 0), (12, 0), (15, 2)]); SIG3 = env("SIG3", 19)
TRY = env("TRY", [12, 16, 20, 24]); CHK = env("CHK", [13, 17, 21, 25])
OST = env("OST", 29); LPRIO = env("LPRIO", 1); RATE = env("RATE", 2); ISS = env("ISS", {})
def win_schedule():
    slot = {}; issue = {b: [] for b in ["F"] + list(range(32))}
    free = {x: -1 for x in SLOTS}
    nxt = 0
    for p in range(-1, 32):
        b = "F" if p < 0 else p
        while nxt < 32:
            if p < 0 and nxt >= BURST0: break
            if nxt >= 16 and p < CHK[(nxt - 16) // 4]: break
            if p in ISS:
                if len(issue[b]) >= ISS[p]: break
            elif p >= 0 and (nxt > p + DEP or len(issue[b]) >= RATE): break
            c_ = [x for x in SLOTS if free[x] <= p]
            if not c_: break
            x = min(c_, key=lambda x: free[x])
            slot[nxt] = x; issue[b].append(nxt); free[x] = nxt + 2
            assert nxt > p
            nxt += 1
    return slot, issue
WSLOT, WISSUE = win_schedule()
GSTW = os.environ.get("GST", "")

def win_compute(T, g, rd, acc, cinit, FR, pre, post, mid):
    s0 = 16 * (g - 1); steps = [(s, k) for s in range(s0, s0 + 17) for k in range(4)]; n = 64; nb = LAG + 1
    for i in range(n + LAG):
        s, k = steps[i]
        if k == 0 and s < 32:
            for f in pre.get(s, []): f()
            T.e("s_barrier")
            if GSTW == "w" or (GSTW == "y" and i == n) or os.environ.get("JIT"): mstamp(T.a, True)
            for f in post.get(s, []): f()
        for f in mid.get((s, k), []): f()
        r = [rd(FR + 16 * (i % nb) + 4 * q, s, k, q) for q in range(4)] if i < n else []
        j = i - LAG
        if j < 0:
            for x in r: T.ds(x, i)
            continue
        s, k = steps[j]; c = (s - s0) // 4; first = s % 4 == 0 and k == 0
        T.wl(j)
        for q in (0, 1, 3, 2):
            C = vr(acc(c) + 4 * (q & 1), 4)
            T.e(f"v_mfma_f32_16x16x32_bf16 {C}, {vr(WR0+8*(4*(s%4)+k)+4*(q>>1),4)}, {vr(FR+16*(j%nb)+4*q,4)}, {'0' if first and q < 2 and not cinit else C}")
            if r: T.ds(r.pop(0), i)
def add(d, k, f): d.setdefault(k, []).append(f)
def h_rot(a, d):
    a.e(f"s_and_b32 s{d+4}, s30, 3"); a.e(f"s_lshl_b32 s{d+4}, s{d+4}, 15")
    for i in range(4):
        a.e(f"s_add_u32 s53, s67, {2*i}"); a.e(f"s_and_b32 s{d+i}, s53, 4"); a.e(f"s_and_b32 s53, s53, 2"); a.e(f"s_lshl_b32 s{d+i}, s{d+i}, 12"); a.e("s_lshl_b32 s53, s53, 11")
        a.e(f"s_add_u32 s{d+i}, s{d+i}, s53"); a.e(f"s_add_u32 s{d+i}, s{d+i}, s{d+4}")
    a.e("s_and_b32 s53, s30, 2"); a.e("s_lshl_b32 s53, s53, 11")
    a.e(f"s_and_b32 s{d+4}, s30, 1"); a.e(f"s_lshl_b32 s{d+4}, s{d+4}, 13"); a.e(f"s_add_u32 s{d+4}, s{d+4}, s53")
def h_arm(T, s, d):
    T.e(f"s_add_u32 m0, s{d+4}, {WSLOT[s]}"); T.e(f"s_add_u32 s49, s{d+s%4}, {(s-16)//4*131072}"); T.armed = s
def h_issue(T, s, d, srd):
    if getattr(T, "armed", None) != s: h_arm(T, s, d)
    for q in range(4): T.vm(f"buffer_load_dwordx4 v2, s[{srd}:{srd+3}], s49 offen offset:{1024*q} {SC} lds", s)
def h_flag(a, d):
    a.e(f"s_and_b32 s{d}, s30, 1"); a.e(f"s_lshl_b32 s{d}, s{d}, 8"); a.e(f"s_add_u32 s{d}, s{d}, s55"); a.e(f"s_add_u32 s{d+1}, s52, 16")
def h_try(a, c, d):
    for k in range(2): a.e(f"s_load_dword s{(32, 3)[k]}, s[4:5], s{d} offset:{FH + 512*c + 128*k} {os.environ.get('GLC', '')}")
def h_check(a, c, d, t):
    D = a.lab("hok")
    a.e("s_waitcnt lgkmcnt(0)"); a.e(f"s_cmp_eq_u32 s32, s{d+1}"); a.e(f"s_cselect_b32 s32, s3, 0"); a.e(f"s_cmp_eq_u32 s32, s{d+1}"); a.e(f"s_cbranch_scc1 {D}")
    if STAMP: a.e(f"s_add_u32 s95, s95, {1 << (8 + 4 * c)}")
    a.e(f"s_add_u32 s53, s{d}, {FH + 512*c}"); a.e(f"v_lshlrev_b32 v{t+1}, 7, v1"); a.e(f"v_add_u32 v{t+1}, s53, v{t+1}")
    poll_core(a, t, t + 1, 3, cnt=16, nap=env('HSLEEP', 2))
    a.e(f"{D}:")
def out_addr(a, so, J, G, t):
    a.e(f"v_and_b32 v{t}, 1, v{G}"); a.e(f"v_lshlrev_b32 v{so}, 16, v{t}"); a.e(f"v_lshrrev_b32 v{t}, 1, v{G}"); a.e(f"v_lshl_add_u32 v{so}, v{t}, 8, v{so}")
    a.e(f"v_lshl_add_u32 v{so}, v{J}, 4, v{so}")
    a.e("s_bfe_u32 s36, s30, 0x10001"); a.e("s_lshl1_add_u32 s36, s29, s36"); spread(a, 39, 36)
    a.e("s_and_b32 s36, s30, 1"); a.e("s_lshl_b32 s36, s36, 9"); a.e("s_add_u32 s39, s39, s36")

def window_x(a, g3_setup):
    T = Track(a); v = VA(6)
    t = v(); t2 = v(); J = v(); G = v(); ra = v(8, 2); rc = v()
    acc0 = v(16, 4); FR = v(48, 4); cs = v(4, 4); rec = v(16, 4); tp = v(8, 4); lead = v(); one = v(); so = v()
    assert v.hi <= WR0
    a.e(f"v_and_b32 v{J}, 15, v1"); a.e(f"v_lshrrev_b32 v{G}, 4, v1")
    a.e("s_lshl_b32 s36, s30, 6"); a.e(f"s_add_u32 s36, s36, {CSO[1]}"); a.e(f"v_lshlrev_b32 v{t}, 4, v{G}"); a.e(f"v_add_u32 v{t}, s36, v{t}")
    a.e(f"ds_read_b128 {vr(cs,4)}, v{t}")
    a.e(f"v_xor_b32 v{t}, v{G}, v{J}"); a.e(f"v_lshlrev_b32 v{t2}, 8, v{J}")
    for k in range(4):
        a.e(f"v_xor_b32 v{ra+k}, {4*k}, v{t}"); a.e(f"v_lshl_add_u32 v{ra+k}, v{ra+k}, 4, v{t2}"); a.e(f"v_add_u32 v{ra+4+k}, {WINB}, v{ra+k}")
    a.e(f"v_lshlrev_b32 v{rc}, 4, v{J}"); a.e(f"v_add_u32 v{rc}, {REC}, v{rc}")
    lsrd(a, 16, oH, XSZ); out_addr(a, so, J, G, t)
    h_rot(a, 8); h_flag(a, 20)
    a.e(f"v_mov_b32 v{lead}, 0x7f000000"); a.e(f"v_writelane_b32 v{lead}, 0, 0"); a.e(f"v_mov_b32 v{one}, 1")
    a.e("s_and_b32 s40, s30, 1"); a.e("s_lshl1_add_u32 s40, s31, s40"); a.e("s_lshl_b32 s40, s40, 7"); a.e("s_add_u32 s40, s40, s55")
    a.e("s_barrier")
    a.e("s_cmp_eq_u32 s60, 0"); a.e("s_cbranch_scc1 WX_1")
    wr_read(a, WAD, W1B)
    a.e("WX_1:")
    poll(a, ST_R, tp, wave=0, nap=env("NAPR", 3))
    def rd(d, s, k, q):
        x = WSLOT[s]; hi = x >= WINB
        return f"ds_read_b128 {vr(d,4)}, v{ra+4*hi+k} offset:{x - WINB*hi + 4096*q}"
    acc = lambda c: acc0 + 8 * (c & 1)
    def recs(c):
        for mt in range(2):
            for p in range(2): T.ds(f"ds_read_b128 {vr(rec+8*mt+4*p,4)}, v{rc} offset:{512*c + 256*mt + 2048*p}", "r")
    def epi(c, cut=None):
        T.wl("r")
        X = acc(c); P = [(X + i, tp + i, i & 2, [vr(rec + 2 * (i & 4) + 2 * e, 2) for e in range(4)]) for i in range(0, 8, 2)]
        for x, u, i, R in P: T.e(f"v_pk_fma_f32 {vr(x,2)}, {R[0]}, {vr(cs+i,2)}, {vr(x,2)}")
        for x, u, i, R in P: T.e(f"v_pk_mul_f32 {vr(u,2)}, {vr(x,2)}, {vr(x,2)}")
        for x, u, i, R in P: T.e(f"v_pk_fma_f32 {vr(u,2)}, {vr(u,2)}, {R[2]}, {R[1]}")
        for x, u, i, R in P: T.e(f"v_pk_mul_f32 {vr(u,2)}, {vr(u,2)}, {vr(x,2)}")
        if cut: cut()
        for i in range(8): T.e(f"v_exp_f32 v{tp+i}, v{tp+i}")
        for x, u, i, R in P: T.e(f"v_pk_fma_f32 {vr(u,2)}, {vr(u,2)}, {R[3]}, {R[3]}")
        for i in range(8): T.e(f"v_rcp_f32 v{tp+i}, v{tp+i}")
        for x, u, i, R in P: T.e(f"v_pk_mul_f32 {vr(x,2)}, {vr(x,2)}, {vr(u,2)}")
        for i in range(4): T.e(f"v_add_u32 v{X+2*i}, 0x10000, v{X+2*i}")
        for i in range(4): T.e(f"v_and_b32 v{X+2*i}, 0xfffe0000, v{X+2*i}")
        for i in range(4): T.e(f"v_cvt_pk_bf16_f32 v{tp+i}, v{X+2*i}, v{X+2*i+1}")
        T.e(f"s_add_u32 s36, s39, {c*131072}")
        for e in range(2): T.e(f"v_permlane16_swap_b32 v{tp+e}, v{tp+2+e}")
        T.vm(f"buffer_store_dwordx4 {vr(tp,4)}, v{so}, s[16:19], s36 offen {SC}", f"h{c}")
    def signal(c):
        T.wv(f"h{c}"); T.vm(f"buffer_atomic_add v{one}, v{lead}, s[56:59], s40 offen offset:{FH + 512*c} {SC}")
    pre, post, mid = {}, {}, {}
    add(post, 0, lambda: mstamp(a))
    for c in range(4):
        add(post, 4 * c + 4, lambda c=c: recs(c))
        if c: add(mid, SIG[c - 1], lambda c=c: signal(c - 1))
        if c < 3: add(mid, (4 * c + 4, 3), lambda c=c: epi(c))
    def duties(b):
        if b == SIG3: signal(3)
        for c in range(4):
            if TRY[c] >= 16 and CHK[c] == b: h_check(a, c, 20, cs)
        for c in range(4):
            if TRY[c] == b: h_try(a, c, 20)
        for s in WISSUE[b]: h_issue(T, s, 8, 16)
    def bar(b):
        if WISSUE[b]: h_arm(T, WISSUE[b][0], 8)
        T.wv(b); T.e("s_barrier")
        if GSTW in ("w", "y") or os.environ.get("JIT"): mstamp(a, True)
    win_compute(T, 1, rd, acc, False, FR, pre, post, mid)
    mstamp(a)
    T.e(f"s_setprio {LPRIO}")
    T.wl("r"); duties(16)
    b0 = 17
    if env("CUT", 0): epi(3, lambda: bar(17)); duties(17); b0 = 18
    else: epi(3)
    mstamp(a)
    G3AT = env("G3AT", 29); assert SIG3 < G3AT
    for b in range(b0, 32):
        bar(b); duties(b)
        if b == G3AT: T.e(g3_setup)
    T.e("s_setprio 0")

def window_y(a):
    T = Track(a); v = VA(6)
    t = v(); t2 = v(); J = v(); G = v(); va = v(); vb = v(); xo = v(); so = v(); rb = v(2, 2); ow = v(); xr = v()
    xn = v(32, 4); FR = v(48, 4); S = v(8, 2); tp = v(8, 2)
    assert v.hi <= WVB[1], v.hi
    lo = FR + 20; ln = FR; o = FR + 8
    a.e("s_cmp_lg_u32 s60, 0"); a.e("s_cbranch_scc1 WY_1")
    wr_read(a, WAD, range(9))
    a.e("s_waitcnt vmcnt(0)"); a.e("s_branch WY_2")
    a.e("WY_1:")
    w_srd(a, 1, 80); w1_dma(a, W1B)
    a.e(f"s_waitcnt vmcnt({2 * len(W1B)})")
    a.e("WY_2:")
    a.e("s_barrier")
    mstamp(a)
    a.e(f"v_and_b32 v{J}, 15, v1"); a.e(f"v_lshrrev_b32 v{G}, 4, v1")
    a.e("s_and_b32 s34, s30, 1"); a.e("s_and_b32 s37, s30, 3")
    a.e("s_lshr_b32 s38, s29, 3"); a.e("s_add_u32 s38, s38, 1"); a.e("s_sub_u32 s39, 0, s38"); a.e("s_bitcmp1_b32 s29, 2"); a.e("s_cselect_b32 s38, s38, s39")
    a.e("s_lshl_b32 s48, s28, 7")
    a.e("s_cmp_lt_u32 s37, 2"); a.e("s_cselect_b32 s36, s38, 0"); a.e("s_add_u32 s36, s36, s48"); a.e("s_lshl_b32 s45, s34, 6"); a.e("s_add_u32 s36, s36, s45")
    a.e(f"v_add_u32 v{lo}, s36, v1"); a.e("s_movk_i32 s45, 2048"); a.e(f"v_cmp_gt_u32 s[46:47], s45, v{lo}"); a.e(f"v_lshlrev_b32 v{lo}, 4, v{lo}")
    lns_srd(a, 20)
    a.e("s_lshl_b32 s36, s37, 2"); a.e(f"v_add_u32 v{t}, s36, v{G}"); a.e(f"v_xor_b32 v{va}, v{t}, v{J}")
    a.e("s_add_u32 s36, s48, s38"); a.e("s_add_u32 s36, s36, 16"); a.e(f"v_add_u32 v{t}, s36, v{t}")
    rowaddr(a, vb, t, t2); a.e(f"v_lshl_add_u32 v{vb}, v{va}, 4, v{vb}"); a.e(f"v_subrev_u32 v{va}, 65536, v{vb}")
    for i in range(4): a.e(f"s_add_u32 s{40+i}, s67, {2*i}"); a.e(f"s_and_b32 s{40+i}, s{40+i}, 6"); a.e(f"s_lshl_b32 s{40+i}, s{40+i}, 7")
    a.e("s_lshl_b32 s44, s37, 10")
    a.e(f"v_lshrrev_b32 v{t}, 3, v1"); a.e(f"v_and_b32 v{xr}, 7, v1"); a.e(f"v_xor_b32 v{xr}, v{xr}, v{t}")
    a.e("s_lshl_b32 s36, s37, 3"); a.e("s_add_u32 s36, s36, s48"); a.e(f"v_add_u32 v{t}, s36, v{t}"); rowaddr(a, xo, t, t2)
    a.e("s_lshl_b32 s36, s29, 7"); a.e(f"v_lshl_add_u32 v{xo}, v{xr}, 4, v{xo}"); a.e(f"v_add_u32 v{xo}, s36, v{xo}")
    a.e(f"v_lshrrev_b32 v{t}, 1, v{G}"); a.e("s_lshl_b32 s36, s37, 1"); a.e(f"v_add_u32 v{t}, s36, v{t}"); a.e(f"v_and_b32 v{t2}, 7, v{J}"); a.e(f"v_xor_b32 v{t}, v{t}, v{t2}")
    a.e(f"v_lshlrev_b32 v{xr}, 7, v{J}"); a.e(f"v_lshl_add_u32 v{xr}, v{t}, 4, v{xr}"); a.e(f"v_and_b32 v{t}, 1, v{G}"); a.e(f"v_lshl_add_u32 v{xr}, v{t}, 3, v{xr}")
    out_addr(a, so, J, G, t)
    a.e(f"v_mov_b32 v{rb}, v2"); a.e(f"v_add_u32 v{rb+1}, {WINB}, v2")
    a.e(f"v_lshrrev_b32 v{t}, 5, v{so}"); a.e(f"v_and_b32 v{t}, 2048, v{t}"); a.e(f"v_and_b32 v{ow}, 511, v{so}"); a.e(f"v_add_u32 v{ow}, v{ow}, v{t}")
    a.e("s_lshl_b32 s36, s37, 9"); a.e(f"v_add_u32 v{ow}, s36, v{ow}")
    x3_srd(a, 12); lsrd(a, 16, oH, XSZ); lsrd(a, 24, oX1P, XSZ)
    h_rot(a, 78); h_flag(a, 84)
    a0 = a; a = Rec(); a.lab = a0.lab
    L = a.lab("lns"); D = a.lab("lnk")
    ldl = f"buffer_load_dwordx4 {vr(ln,4)}, v{lo}, s[20:23], 0 offen {SC}"
    a.e("s_mov_b32 s53, 0")
    a.e(f"{L}:")
    a.e(f"v_cmp_eq_u32 vcc, s52, v{ln+1}"); a.e(f"v_cmp_eq_u32 s[50:51], s52, v{ln+3}"); a.e("s_and_b64 vcc, vcc, s[50:51]"); a.e("s_orn2_b64 vcc, vcc, s[46:47]")
    a.e("s_cmp_eq_u64 vcc, -1"); a.e(f"s_cbranch_scc1 {D}")
    a.e(ldl); a.e("s_waitcnt vmcnt(0)")
    a.e("s_add_u32 s53, s53, 1"); a.e("s_cmp_lt_u32 s53, s61"); a.e(f"s_cbranch_scc1 {L}")
    a.e("s_mov_b32 s61, 0")
    a.e(f"{D}:")
    unpack(a, ln + 4, ln + 5, ln); unpack(a, ln + 6, ln + 7, ln + 2)
    for r in (ln + 5, ln + 7): a.e(f"v_cndmask_b32 v{r}, 1.0, v{r}, s[46:47]")
    a.e("s_lshl_b32 s36, s34, 10"); a.e(f"s_add_u32 s36, s36, {REC}"); a.e(f"v_add_u32 v{t}, s36, v2")
    X = a.lab("lnx"); D = a.lab("lnd")
    a.e("s_cmp_ge_u32 s37, 2"); a.e(f"s_cbranch_scc1 {X}")
    a.e(f"v_mul_f32 v{o+6}, v{ln+5}, v{ln+7}"); a.e(f"v_fma_f32 v{o}, -v{ln+6}, v{ln+5}, -v{ln+4}"); a.e(f"v_rcp_f32 v{t2}, v{o+6}")
    a.e(f"v_mov_b32 v{o+7}, v{o+6}"); a.e(f"v_mov_b32 v{o+1}, v{o}")
    a.e(f"v_mul_f32 v{o+2}, {f32(GC1)}, v{t2}"); a.e(f"v_mul_f32 v{t2}, v{t2}, v{t2}"); a.e(f"v_mov_b32 v{o+3}, v{o+2}")
    a.e(f"v_mul_f32 v{t2}, {f32(0.044715)}, v{t2}"); a.e(f"v_mul_f32 v{o+4}, v{t2}, v{o+2}"); a.e(f"v_mov_b32 v{o+5}, v{o+4}")
    for p in range(2): a.e(f"ds_write_b128 v{t}, {vr(o+4*p,4)} offset:{2048*p}")
    a.e(f"s_branch {D}")
    a.e(f"{X}:")
    a.e(f"v_rcp_f32 v{o}, v{ln+5}"); a.e(f"v_mul_f32 v{o+2}, -v{ln+4}, v{o}"); a.e(f"v_mov_b32 v{o+1}, v{o}"); a.e(f"v_mov_b32 v{o+3}, v{o+2}")
    a.e(f"ds_write_b128 v{t}, {vr(o,4)} offset:{LNSL-REC}")
    a.e(f"{D}:")
    a.e(f"v_lshlrev_b32 v{t2}, 4, v{J}"); a.e(f"v_add_u32 v{t2}, {LNSL}, v{t2}")
    lns = a.l; a = a0
    def issue(s):
        if s >= 16: return h_issue(T, s, 78, 16)
        c, i = s // 4, s % 4
        if getattr(T, "armed", None) != s: arm(s)
        for mt in range(2):
            for kh in range(2):
                if mt or kh: T.e(f"s_add_u32 m0, s44, {WSLOT[s] + kh*8192 + mt*4096 - kh*1024}")
                T.vm(f"buffer_load_dwordx4 v{(va, vb)[mt]}, s[12:15], s49 offen offset:{1024*kh} {SC} lds", s)
                for x in T.fill[:5]: T.e(x)
                T.fill = T.fill[5:]
        if s == 3: T.e(f"v_mov_b32 v{va}, v{vb}"); T.e(f"v_add_u32 v{vb}, 65536, v{vb}")
    def arm(s):
        if s >= 16: return h_arm(T, s, 78)
        T.e(f"s_add_u32 m0, s44, {WSLOT[s]}"); T.e(f"s_add_u32 s49, s{40+s%4}, {max(0, s//4*2-1)*65536}"); T.armed = s
    def resld():
        for c in range(4):
            T.e(f"s_add_u32 m0, s44, {4096*c}"); T.e(f"s_mov_b32 s36, {c*131072}")
            T.vm(f"buffer_load_dwordx4 v{xo}, s[12:15], s36 offen {SC} lds", "x")
    def res1(c):
        for mt in range(2):
            a.e(f"ds_read_b64 {vr(xn+8*c+4*mt+2,2)}, v{xr} offset:{4096*c + 2048*mt}"); a.e(f"ds_read_b128 {vr(o+4*mt,4)}, v{t2} offset:{512*c + 256*mt}")
    def res2(c):
        b = Rec(); b.e("s_waitcnt lgkmcnt(0)")
        for mt in range(2):
            X = xn + 8 * c + 4 * mt
            for e in range(2): unpack(b, X + 2 * e, X + 2 * e + 1, X + 2 + e)
            for e in range(2): b.e(f"v_pk_fma_f32 {vr(X+2*e,2)}, {vr(X+2*e,2)}, {vr(o+4*mt,2)}, {vr(o+4*mt+2,2)}")
        T.fill = b.l
    RESAT = env("RESAT", 4); RESUSE = env("RESUSE", 7); T.fill = []
    a.e("s_waitcnt vmcnt(0) lgkmcnt(0)"); a.e("s_barrier")
    a.e(f"s_setprio {LPRIO}")
    mstamp(a)
    arm(0)
    a.e("s_barrier")
    mstamp(a)
    T.vm(ldl, "l")
    LAT = env("LAT", 2)
    for s in WISSUE["F"][:LAT]: issue(s)
    T.wv("l")
    for x in lns: a.e(x)
    for s in WISSUE["F"][LAT:]: issue(s)
    for b in range(16):
        if b == 4: a.e("s_waitcnt lgkmcnt(0)")
        if WISSUE[b]: arm(WISSUE[b][0])
        if b == RESUSE: T.wv("x")
        T.wv(b); T.e("s_barrier")
        if GSTW in ("w", "y") or os.environ.get("JIT"): mstamp(a, True)
        for c in range(4):
            if TRY[c] < 16 and CHK[c] == b: h_check(a, c, 84, tp)
            assert TRY[c] >= 16 or (CHK[c] < 16 and TRY[c] >= RESUSE + 5)
        if b == CHK[0]: mstamp(a)
        for c in range(4):
            if TRY[c] == b: h_try(a, c, 84)
        if 1 <= b - RESUSE < 5: res2(b - RESUSE - 1)
        for s in WISSUE[b]: issue(s)
        assert not T.fill
        if 0 <= b - RESUSE < 4: res1(b - RESUSE)
        if b == RESAT: resld()
        for k in range(2):
            if W3AT[k] == b: w3_stage(a, k); T.vq += ["w"] * 7
    a.e("s_setprio 0")
    def rd(d, s, k, q):
        x = WSLOT[s]; hi = x >= WINB
        return f"ds_read_b128 {vr(d,4)}, v{rb+hi} offset:{x - WINB*hi + 4096*q + 1024*k}"
    acc = lambda c: xn + 8 * c
    def epi(c):
        X = acc(c)
        for i in range(4): T.e(f"v_cvt_pk_bf16_f32 v{X+i}, v{X+2*i}, v{X+2*i+1}")
        T.e(f"s_add_u32 s36, s39, {c*131072}")
        for e in range(2): T.e(f"v_permlane16_swap_b32 v{X+e}, v{X+2+e}")
    def ost(c):
        T.e(f"s_add_u32 s36, s39, {c*131072}"); T.vm(f"buffer_store_dwordx4 {vr(acc(c),4)}, v{so}, s[24:27], s36 offen {SC}", "o")
    def own(c): T.ds(f"ds_write_b128 v{ow}, {vr(acc(c),4)} offset:{4096*c}", "ow")
    def stats(c):
        X = tp; pp, qq = acc(c) + 4, acc(c) + 6
        for i in range(4): unpack(T, X + 2 * i, X + 2 * i + 1, acc(c) + i)
        T.e(f"v_pk_add_f32 {vr(pp,2)}, {vr(X,2)}, {vr(X+2,2)}"); T.e(f"v_pk_mul_f32 {vr(qq,2)}, {vr(X,2)}, {vr(X,2)}")
        for i in range(1, 4):
            if i > 1: T.e(f"v_pk_add_f32 {vr(pp,2)}, {vr(pp,2)}, {vr(X+2*i,2)}")
            T.e(f"v_pk_fma_f32 {vr(qq,2)}, {vr(X+2*i,2)}, {vr(X+2*i,2)}, {vr(qq,2)}")
        T.e(f"v_add_f32 v{S+2*c}, v{pp}, v{pp+1}"); T.e(f"v_add_f32 v{S+2*c+1}, v{qq}, v{qq+1}")
    pre, post, mid = {}, {}, {}
    add(post, 16, lambda: mstamp(a))
    for s in range(16, 32): add(pre, s, lambda s=s: T.wv(s))
    SLATE = env("SLATE", 1)
    for c in range(3):
        add(mid, (20 + 4 * c, 3), lambda c=c: (epi(c), SLATE or stats(c)))
        add(mid, (OST, 1 + c), lambda c=c: ost(c))
    add(mid, (32, 0), lambda: [own(c) for c in range(3)])
    win_compute(T, 2, rd, acc, True, FR, pre, post, mid)
    mstamp(a)
    T.e(f"s_setprio {env('LPRIO3', 0)}")
    epi(3); ost(3); own(3); T.wl("ow")
    T.e("s_barrier")
    mstamp(a)
    def rest(a_, which):
        T.a = a_
        for c in range(0 if SLATE else 3, 4): stats(c)
        T.e("s_and_b32 s36, s30, 3"); T.e("s_lshl_b32 s36, s36, 10"); T.e(f"s_add_u32 s36, s36, {REC}"); T.e(f"v_lshlrev_b32 v{t}, 3, v1"); T.e(f"v_add_u32 v{t}, s36, v{t}")
        for k in range(2): T.e(f"v_permlane32_swap_b32 v{S+k}, v{S+2+k}"); T.e(f"v_permlane32_swap_b32 v{S+4+k}, v{S+6+k}")
        T.e(f"v_pk_add_f32 {vr(S,2)}, {vr(S,2)}, {vr(S+2,2)}"); T.e(f"v_pk_add_f32 {vr(S+4,2)}, {vr(S+4,2)}, {vr(S+6,2)}")
        for k in range(2): T.e(f"ds_write_b64 v{t}, {vr(S+4*k,2)} offset:{512*k}")
    assert xn >= 18 and t == 6
    G2S.append(lambda: call_issue(a, rest, 2))

C2R = 230; SO3 = 254
def g_compute(a, which):
    c = CFG[which]
    WM, WN, MT, NT, KBT, NS, NA, NW, TN16, STB, WB = [c[k] for k in "WM WN MT NT KBT NS NA NW TN16 STB WB".split()]
    v = VA(6, skip=which == 4); nm = f"G{which}"
    lane = 1; l16 = 2
    t = v(); t2 = v(); pt = v(4, 2)
    NTILE = 29 if which != 4 else 33
    a0 = v(); w0 = v(4, 1); aa = v(); wa = v(4, 1); J = v(); G = v(); NF = MT + NT
    if which == 3: acc = v(MT * NT * 4, 4); fX = v(NF * 4, 4); fY = v(NF * 4, 4); tmp = v()
    else: fX = v(NF * 4, 4); xf = v(4, 2); oa = v(2, 2); xo = v(); acc = v(MT * NT * 4, 4); fY = v(NF * 4, 4)
    assert v.hi <= C2R
    def A_(mt, nt): return acc + 4 * (mt * NT + nt)
    s = Rec()
    s.e("s_lshr_b32 s34, s30, 1"); s.e("s_and_b32 s35, s30, 1")
    s.e(f"v_and_b32 v{J}, 15, v{lane}"); s.e(f"v_lshrrev_b32 v{G}, 4, v{lane}")
    s.e(f"s_mul_i32 s37, s34, {MT}")
    s.e(f"s_mul_i32 s38, s{NTILE}, {TN16}"); s.e(f"s_mul_i32 s36, s35, {NT}"); s.e("s_add_u32 s38, s38, s36")
    if which == 4:
        s.e("s_lshr_b32 s36, s38, 1"); spread(s, 39, 36); s.e("s_lshl_b32 s36, s37, 16"); s.e("s_add_u32 s39, s39, s36")
    s.e(f"s_mul_i32 s36, s34, {MT*2048}"); s.e(f"v_add_u32 v{a0}, s36, v{l16}")
    nwr, wpos = w_bases(s, which, w0, 35, NT, t, t2)
    s.e("s_mov_b32 s42, 0"); s.e("s_mov_b32 s43, 0"); s.e("s_mov_b32 s48, 0")
    s.e(f"v_mov_b32 v{aa}, v{a0}")
    for i in range(nwr): s.e(f"v_mov_b32 v{wa+i}, v{w0+i}")
    if which == 3: window_x(a, "\n".join(s.l))
    else:
        for x in s.l: a.e(x)
    def reads(F, kk):
        o = []
        for mt in range(MT): o.append(f"ds_read_b128 {vr(F+4*mt,4)}, v{aa} offset:{mt*2048+kk*1024}")
        for nt in range(NT):
            for h in range(2):
                r, imm = wpos(nt, kk, h)
                o.append(f"ds_read_b64_tr_b16 {vr(F+4*(MT+nt)+2*h,2)}, v{wa+r} offset:{imm}")
        return o
    def mix(rd, ex):
        rd = list(rd)
        for i, x in enumerate(ex): rd.insert(min(len(rd), (i + 1) * len(rd) // (len(ex) + 1)), x)
        return rd
    def mfmas(F, rd, tail=(), zero=False):
        n = MT * NT; k = 0; tot = len(rd); span = max(1, n * 3 // 4); done = 0; tail = list(tail); per = -(-len(tail) // max(1, n - span))
        for nt, mt in [(nt, mt if nt % 2 == 0 else MT - 1 - mt) for nt in range(NT) for mt in range(MT)]:
            cc = acc + 4 * (mt * NT + nt)
            a.e(f"v_mfma_f32_16x16x32_bf16 {vr(cc,4)}, {vr(F+4*(MT+nt),4)}, {vr(F+4*mt,4)}, {0 if zero else vr(cc,4)}")
            k += 1
            while rd and done < (tot * k + span - 1) // span: a.e(rd.pop(0)); done += 1
            if k >= span and k < n:
                for _ in range(min(per, len(tail))): a.e(tail.pop(0))
        assert not rd and not tail
    def stage(ex=(), ey=(), lim=NS-1, late=False, zero=False):
        if str(which) in os.environ.get("GST", "") or os.environ.get("JIT"): mstamp(a, True)
        a.e("s_waitcnt lgkmcnt(0)")
        book = ["s_add_u32 s42, s42, 16384", f"s_cmp_eq_u32 s42, {NA*16384}", "s_cselect_b32 s42, 0, s42",
                f"s_add_u32 s48, s48, {STB}", f"s_cmp_eq_u32 s48, {NW*STB}", "s_cselect_b32 s48, 0, s48", f"v_add_u32 v{aa}, s42, v{a0}"]
        book += [f"v_add_u32 v{wa+i}, s48, v{w0+i}" for i in range(nwr)]
        mfmas(fX, mix(reads(fY, 1), ex), book, zero)
        if late:
            a.e("s_waitcnt lgkmcnt(0)"); mfmas(fY, [], ["s_add_u32 s43, s43, 1"]); a.e("s_barrier")
            for x in reads(fX, 0): a.e(x)
            return
        a.e("s_waitcnt lgkmcnt(0)"); a.e("s_barrier")
        mfmas(fY, mix(reads(fX, 0), ey), ["s_add_u32 s43, s43, 1", f"s_cmp_lt_u32 s43, {lim}"])
    a.e("s_waitcnt lgkmcnt(0)"); a.e("s_barrier")
    mstamp(a)
    for x in reads(fX, 0): a.e(x)
    if which == 4:
        def st2(j): return [f"s_add_u32 s36, s44, {j*224*1024}\nbuffer_store_dwordx4 {vr(C2R+4*j,4)}, v{l16}, s[16:19], s36 offen {SC}",
                            f"s_add_u32 s36, s45, {j*224*1024}\nbuffer_store_dwordx2 {vr(C2R+16+2*j,2)}, v{SO3}, s[16:19], s36 offen {SC}"]
        stage(st2(0), st2(1), zero=True); stage(st2(2), st2(3)); publish(a, ST_G3B, pt, wait=8)
        L0 = a.lab("mm"); a.e(f"{L0}:"); stage(lim=PUB2); a.e(f"s_cbranch_scc1 {L0}")
        publish(a, ST_G3, pt)
    else: stage(late=True, zero=True); mstamp(a)
    L = a.lab("mm"); a.e(f"{L}:")
    stage()
    a.e(f"s_cbranch_scc1 {L}")
    a.e("s_waitcnt lgkmcnt(0)")
    b0 = Rec()
    if which == 4:
        a.e("s_cmp_eq_u32 s60, 1"); a.e("s_cbranch_scc1 G4_last")
        r_pre(b0)
    mfmas(fX, reads(fY, 1) + b0.l)
    a.e("s_waitcnt lgkmcnt(0)")
    if which == 3: a.e("s_barrier")
    b = Rec()
    if which == 3:
        so = SO3; cs = fX; lns = fX + 4 * NT
        b.e(f"s_mul_i32 s36, s35, {NT*64}"); b.e(f"s_add_u32 s36, s36, {CSO[which]}"); b.e(f"v_lshlrev_b32 v{t}, 4, v{G}"); b.e(f"v_add_u32 v{t}, s36, v{t}")
        for nt in range(NT): b.e(f"ds_read_b128 {vr(cs+4*nt,4)}, v{t} offset:{nt*64}")
        b.e(f"s_lshl_b32 s36, s34, 9"); b.e(f"s_add_u32 s36, s36, {AUX+1024}")
        b.e(f"v_lshlrev_b32 v{t2}, 3, v{J}"); b.e(f"v_add_u32 v{t2}, s36, v{t2}")
        for mt in range(MT): b.e(f"ds_read_b64 {vr(lns+2*mt,2)}, v{t2} offset:{mt*128}")
        lsrd(b, 16, oH2, H2SZ)
        b.e(f"s_mul_i32 s39, s37, {224*1024}")
        for P in range(4):
            b.e("s_lshr_b32 s36, s38, 1"); b.e(f"s_add_u32 s36, s36, {P}"); spread(b, 44 + P, 36); b.e(f"s_add_u32 s{44+P}, s{44+P}, s39")
        b.e("s_lshl_b32 s36, s37, 1"); b.e("s_add_u32 s36, s36, s35"); b.e("s_lshl_b32 s36, s36, 10"); b.e(f"v_add_u32 v{a0}, s36, v{l16}")
        b.e(f"v_lshrrev_b32 v{so}, 1, v{G}"); b.e(f"v_lshlrev_b32 v{so}, 8, v{so}"); b.e(f"v_lshl_add_u32 v{so}, v{J}, 4, v{so}")
        b.e(f"v_and_b32 v{tmp}, 1, v{G}"); b.e(f"v_lshl_add_u32 v{so}, v{tmp}, 3, v{so}")
    else:
        p1_off(b, 36, 40); b.e(f"s_add_u32 s40, s55, {oH - oSM}"); b.e("s_cmp_eq_u32 s31, 0\ns_cselect_b32 s36, s40, s36")
        b.e("s_mov_b32 s40, 0xffff0000"); b.e(f"v_mov_b32 v{xf}, 0x10000")
        b.e("s_add_u32 s16, s4, s36\ns_addc_u32 s17, s5, 0"); b.e(f"s_mov_b32 s18, {XSZ}"); b.e("s_mov_b32 s19, 0x20000")
    mfmas(fY, b.l)
    mstamp(a)
    if which == 3:
        AB = fY + 4
        def consts():
            for mt in range(MT):
                r = lns + 2 * mt + 1
                a.e(f"v_mul_f32 v{AB+2*mt}, {f32(GC1)}, v{r}"); a.e(f"v_mul_f32 v{AB+2*mt+1}, v{r}, v{r}")
                a.e(f"v_mul_f32 v{AB+2*mt+1}, v{AB+2*mt+1}, v{AB+2*mt}"); a.e(f"v_mul_f32 v{AB+2*mt+1}, {f32(0.044715)}, v{AB+2*mt+1}")
                a.e(f"v_rcp_f32 v{r}, v{r}")
        tp = fY + 12
        def act(tiles):
            P_ = [(A_(mt, nt) + 2 * h, tp + 4 * i + 2 * h, vr(lns + 2 * mt, 2), vr(AB + 2 * mt, 2), cs + 4 * nt + 2 * h) for i, (mt, nt) in enumerate(tiles) for h in range(2)]
            for x, u, L_, K_, c_ in P_: a.e(f"v_pk_fma_f32 {vr(x,2)}, {L_}, {vr(c_,2)}, {vr(x,2)} op_sel_hi:[0,1,1] neg_lo:[1,0,0] neg_hi:[1,0,0]")
            for x, u, L_, K_, c_ in P_: a.e(f"v_pk_mul_f32 {vr(u,2)}, {vr(x,2)}, {vr(x,2)}")
            for x, u, L_, K_, c_ in P_: a.e(f"v_pk_fma_f32 {vr(u,2)}, {vr(u,2)}, {K_}, {K_} op_sel:[0,1,0] op_sel_hi:[1,1,0]")
            for x, u, L_, K_, c_ in P_: a.e(f"v_pk_mul_f32 {vr(u,2)}, {vr(u,2)}, {vr(x,2)}")
            for i in range(8): a.e(f"v_exp_f32 v{tp+i}, v{tp+i}")
            for x, u, L_, K_, c_ in P_: a.e(f"v_pk_fma_f32 {vr(u,2)}, {vr(u,2)}, {L_}, {L_} op_sel:[0,1,1] op_sel_hi:[1,1,1]")
            for i in range(8): a.e(f"v_rcp_f32 v{tp+i}, v{tp+i}")
            for x, u, L_, K_, c_ in P_: a.e(f"v_pk_mul_f32 {vr(x,2)}, {vr(x,2)}, {vr(u,2)}")
        def group(par, mt, nts, dst=None):
            if len(nts) == 2: act([(mt, nt) for nt in nts])
            elif mt % 2 == 0: act([(mt, nts[0]), (mt + 1, nts[0])])
            T = par * NT + nts[0]; P = (T >> 1) - ((par * NT) >> 1); B = A_(mt, nts[0]); D = B if dst is None else dst
            for k in range(2 * len(nts)): a.e(f"v_cvt_pk_bf16_f32 v{D+k}, v{B+2*k}, v{B+2*k+1}")
            return [f"s_add_u32 s36, s{44+P}, {mt*224*1024}", f"buffer_store_dwordx4 {vr(B,4)}, v{l16}, s[16:19], s36 offen {SC}"]
        def body(par):
            gs = [(0, 1), (2, 3), (4, 5), (6,)] if par == 0 else [(1, 2), (3, 4), (5, 6), (0,)]
            k = 0; pend = []; sent = 0
            for gi_, g_ in enumerate(gs):
                for mt in range(MT):
                    if k == C0PUB: publish(a, ST_G3A, pt, wait=sent - 4); mstamp(a)
                    st_ = group(par, mt, g_, None if gi_ < 2 else C2R + 4 * mt if gi_ == 2 else C2R + 16 + 2 * mt); k += 1
                    if gi_ < 3:
                        a.e(f"ds_write_b128 v{a0}, {vr(A_(mt, g_[0]) if gi_ < 2 else C2R + 4 * mt, 4)} offset:{gi_*16384 + mt*2048}")
                    if gi_ < 2: pend.append(st_)
                    n = len(pend) if (k <= 4 or k == 16) else 0 if k <= STQ else min(1, len(pend))
                    for _ in range(n):
                        for x in pend.pop(0): a.e(x)
                        sent += 1
            a.e("s_waitcnt lgkmcnt(0)")
            if par == 0: a.e("s_mov_b32 s44, s46"); a.e("s_mov_b32 s45, s47")
            else: a.e("s_add_u32 s45, s44, 512"); a.e("s_mov_b32 s44, s47")
        a.e("s_waitcnt lgkmcnt(0)")
        consts()
        a.e("s_cmp_eq_u32 s35, 1"); a.e(f"s_cbranch_scc1 {nm}_e1")
        body(0); a.e(f"s_branch {nm}_e2"); a.e(f"{nm}_e1:"); body(1); a.e(f"{nm}_e2:")
        mstamp(a)
        return
    for mt in range(MT):
        a.e(f"s_add_u32 s36, s39, {mt*65536}")
        for p in range(NT // 2):
            B = A_(mt, 2 * p)
            for e in range(4): a.e(f"v_and_or_b32 v{B+2*e}, v{B+2*e}, s40, v{xf}")
            for e in range(4): a.e(f"v_cvt_pk_bf16_f32 v{B+e}, v{B+2*e}, v{B+2*e+1}")
            a.e(f"buffer_store_dwordx4 {vr(B,4)}, v{l16}, s[16:19], s36 offen offset:{p*1024} {SC}")
    a.e("s_waitcnt vmcnt(8)"); a.e("s_barrier")
    mstamp(a)
    a.e("s_branch NEXT")
    a.e("G4_last:")
    RX = 80; PX = fX
    b0 = Rec()
    b0.e(f"s_load_dwordx2 s[6:7], s[0:1], {D_OUT}")
    x3_srd(b0, 84); lsrd(b0, 88, oX1P, XSZ)
    b0.e("s_lshl_b32 s40, s31, 17"); b0.e("s_add_u32 s40, s40, s39")
    b0.e("s_xor_b32 s41, s31, 1"); b0.e("s_lshl_b32 s41, s41, 17"); b0.e("s_add_u32 s41, s41, s39")
    rowaddr(b0, xo, J, oa); b0.e(f"v_lshl_add_u32 v{xo}, v{G}, 4, v{xo}")
    b0.e("s_lshl_b32 s46, s28, 3"); b0.e("s_add_u32 s46, s46, s37"); b0.e("s_lshl_b32 s47, s31, 1"); b0.e("s_add_u32 s46, s46, s47")
    b0.e("s_lshl_b32 s49, s46, 16"); b0.e("s_lshl_b32 s47, s38, 5"); b0.e("s_add_u32 s49, s49, s47")
    for i in range(2):
        b0.e(f"s_add_u32 s36, s40, {i*65536}")
        if i: b0.e("s_add_u32 s49, s49, 65536")
        for p in range(2):
            b0.e(f"buffer_load_dwordx4 {vr(RX+8*(2*i+p),4)}, v{xo}, s[84:87], s49 offen offset:{p*64} {SC}")
            b0.e(f"buffer_load_dwordx4 {vr(RX+8*(2*i+p)+4,4)}, v{l16}, s[88:91], s36 offen offset:{p*1024} {SC}")
    mfmas(fX, reads(fY, 1) + b0.l)
    a.e("s_waitcnt lgkmcnt(0)")
    b = Rec()
    lsrd(b, 16, oH, XSZ)
    b.e("s_mov_b32 s45, 0xffff0000"); b.e(f"v_mov_b32 v{xf}, 0x10000")
    b.srd(20, 6, 4 * MB)
    b.e("s_add_u32 s44, s40, 65536")
    b.e("s_lshl_b32 s46, s46, 15"); b.e("s_add_u32 s46, s46, s47"); b.e(f"s_add_u32 s47, s46, {16*2048}")
    b.e(f"v_and_b32 v{oa+1}, 1, v{G}"); b.e(f"v_lshlrev_b32 v{oa}, 11, v{J}"); b.e(f"v_lshl_add_u32 v{oa}, v{oa+1}, 5, v{oa}")
    b.e(f"v_lshrrev_b32 v{oa+1}, 1, v{G}"); b.e(f"v_lshl_add_u32 v{oa}, v{oa+1}, 4, v{oa}")
    b.e(f"v_cmp_gt_u32 s[48:49], 8, v{J}")
    b.e(f"v_lshrrev_b32 v{oa+1}, 3, v{J}"); b.e(f"v_mul_u32_u24 v{oa+1}, {8*2048 - 64}, v{oa+1}"); b.e(f"v_sub_u32 v{oa}, v{oa}, v{oa+1}")
    b.e(f"v_add_u32 v{oa+1}, {8*2048}, v{oa}")
    mfmas(fY, b.l)
    mstamp(a)
    a.e("s_cmp_eq_u32 s31, 0"); a.e("s_cbranch_scc1 G4_k0")
    for i in range(32): a.e(f"v_swap_b32 v{acc+i}, v{acc+32+i}")
    a.e("G4_k0:")
    for i in range(2):
        a.e(f"s_add_u32 s36, s41, {i*65536}")
        for p in range(2):
            B = A_(2 + i, 2 * p)
            for e in range(4): a.e(f"v_and_or_b32 v{B+2*e}, v{B+2*e}, s45, v{xf}")
            for e in range(4): a.e(f"v_cvt_pk_bf16_f32 v{B+e}, v{B+2*e}, v{B+2*e+1}")
            a.e(f"buffer_store_dwordx4 {vr(B,4)}, v{l16}, s[16:19], s36 offen offset:{p*1024} {SC}")
    def addp(k, R):
        B = A_(k >> 1, 2 * (k & 1))
        for e in range(4):
            unpack(a, xf + 2 * (e & 1), xf + 1 + 2 * (e & 1), R + e)
            a.e(f"v_pk_add_f32 {vr(B+2*e,2)}, {vr(B+2*e,2)}, {vr(xf+2*(e&1),2)}")
    a.e("s_waitcnt vmcnt(4)")
    for k in range(4): addp(k, RX + 8 * k)
    mstamp(a)
    data_wait(a, [f"buffer_load_dwordx4 {vr(PX+4*k,4)}, v{l16}, s[16:19], s{(40, 44)[k>>1]} offen offset:{(k&1)*1024} {SC}" for k in range(4)],
              list(range(PX, PX + 16)), pt, lambda: [addp(k, RX + 8 * k + 4) for k in range(4)], nap=env("NAPF", 1))
    mstamp(a)
    for k in range(4):
        addp(k, PX + 4 * k)
        B = A_(k >> 1, 2 * (k & 1))
        for e in range(4): a.e(f"v_cvt_pk_bf16_f32 v{B+e}, v{B+2*e}, v{B+2*e+1}")
        for e in range(2): a.e(f"v_permlane16_swap_b32 v{B+e}, v{B+2+e}")
        if k & 1:
            X, Y_, T = B - 8, B, B + 4
            for e in range(4): a.e(f"v_cndmask_b32 v{T+e}, v{X+e}, v{Y_+e}, s[48:49]")
            for e in range(4): a.e(f"v_mov_b32_dpp v{X+4+e}, v{T+e} row_ror:8 row_mask:0xf bank_mask:0xf")
            for e in range(4): a.e(f"v_cndmask_b32 v{X+e}, v{X+4+e}, v{X+e}, s[48:49]"); a.e(f"v_cndmask_b32 v{Y_+e}, v{Y_+e}, v{X+4+e}, s[48:49]")
            a.e(f"buffer_store_dwordx4 {vr(X,4)}, v{oa}, s[20:23], s{46+(k>>1)} offen {SC}")
            a.e(f"buffer_store_dwordx4 {vr(Y_,4)}, v{oa+1}, s[20:23], s{46+(k>>1)} offen {SC}")
    a.e("s_branch K_fin")

def k_mega(a):
    nm = KNAME; a.begin_kernel(nm)
    a.e("s_cmp_ge_u32 s2, 256"); a.e("s_cbranch_scc1 K_end")
    a.e(f"s_load_dwordx8 s[8:15], s[0:1], {A_K}"); a.e(f"s_load_dwordx2 s[6:7], s[0:1], {A_Q}"); a.e(f"s_load_dwordx8 s[68:75], s[0:1], {B_W1}")
    a.e(f"s_load_dwordx2 s[4:5], s[0:1], {D_WS}"); a.e(f"s_load_dwordx2 s[84:85], s[0:1], {D_DBG}"); a.e("s_memrealtime s[46:47]")
    a.e("v_lshrrev_b32 v1, 6, v0"); a.e("v_readfirstlane_b32 s30, v1")
    a.e("s_getpc_b64 s[48:49]"); a.e("K_pc:")
    a.e("s_lshr_b32 s36, s2, 3"); a.e("s_lshl_b32 s36, s36, 12")
    a.e("v_lshlrev_b32 v252, 3, v0"); a.e("v_add_u32 v252, s36, v252")
    a.e("v_cmp_gt_u32 vcc, K_end-K_pc-8, v252"); a.e("s_and_saveexec_b64 s[36:37], vcc"); a.e("s_cbranch_execz K_3")
    a.e("v_mov_b32 v253, s49"); a.e("v_add_co_u32 v252, vcc, s48, v252"); a.e("v_addc_co_u32 v253, vcc, 0, v253, vcc")
    a.e("global_load_dword v250, v[252:253], off")
    a.e("K_3:"); a.e("s_mov_b64 exec, -1")
    front_loads(a)
    a.e("v_and_b32 v1, 63, v0"); a.e("v_lshlrev_b32 v2, 4, v1"); a.e("v_lshlrev_b32 v3, 2, v1")
    a.e("s_and_b32 s32, s2, 7"); a.e("s_lshr_b32 s33, s2, 3")
    a.e("s_and_b32 s28, s32, 2"); a.e("s_lshr_b32 s34, s32, 2"); a.e("s_or_b32 s28, s28, s34")
    a.e("s_lshl_b32 s28, s28, 2"); a.e("s_and_b32 s34, s33, 3"); a.e("s_add_u32 s28, s28, s34")
    a.e("s_and_b32 s31, s32, 1"); a.e("s_lshr_b32 s33, s33, 2")
    a.e("s_lshl_b32 s29, s31, 3"); a.e("s_add_u32 s29, s29, s33")
    a.e(f"s_and_b32 s67, s33, {env('RMASK', 4)}")
    a.e("s_mov_b32 s60, 0"); a.e("s_mov_b32 s61, 40000"); a.e("s_mov_b32 s52, 0")
    a.e("s_mov_b32 s55, 0"); a.e("s_mov_b32 s92, 0"); a.e("s_mov_b32 s93, 0"); a.e("s_mov_b32 s94, 0")
    a.srd(56, 4, X3G)
    a.e(f"s_add_u32 s62, s4, {LB0}"); a.e("s_addc_u32 s63, s5, 0")
    if STAMP:
        a.e("s_mov_b32 s66, 1"); a.e("v_mov_b32 v4, -1"); a.e("v_mov_b32 v5, 0"); a.e("s_mov_b32 s95, 0"); a.e("v_writelane_b32 v4, s46, 0")
    mstamp(a)
    front_a(a); mstamp(a)
    a.e("s_cmp_ge_u32 s30, 4"); a.e("s_cbranch_scc1 FR_b")
    front_conv(a)
    mstamp(a)
    lds_inc(a, LW + 24, 6)
    front_arrive(a, 0)
    a.e("s_branch FR_end")
    a.e("FR_b:")
    front_b(a)
    mstamp(a)
    w_dump(a, w1raw, 8); lds_inc(a, LW + 20, 6)
    a.e("FR_end:")
    mstamp(a)
    a.e("LAYER:")
    r_stage(a)
    mstamp(a)
    for w in (3, 4): g_compute(a, w)
    a.e("LOADERS:")
    window_y(a)
    a.e("s_cmp_ge_u32 s30, 6"); a.e("s_cbranch_scc1 WLOAD")
    for w in (3, 4): a_loader(a, w)
    a.e("s_branch NEXT")
    a.e("WLOAD:")
    w_loader(a, 3); w_setup(a, 4); w_loader(a, 4)
    a.e("NEXT:")
    a.e("s_setprio 0")
    a.e("s_add_u32 s60, s60, 1"); a.e(f"s_add_u32 s55, s55, {LSTR}")
    a.e(f"s_add_u32 s62, s62, {LSTR}"); a.e("s_addc_u32 s63, s63, 0")
    a.e("s_branch LAYER")
    a.e("K_fin:")
    if STAMP:
        a.e("s_waitcnt vmcnt(0)")
        mstamp(a)
        a.srd(96, 4, 16 * MB, off=200 * MB)
        a.e("s_lshl_b32 s66, s2, 3"); a.e("s_add_u32 s66, s66, s30"); a.e("s_lshl_b32 s66, s66, 8")
        a.e("v_writelane_b32 v4, s95, 63")
        a.e("buffer_store_dword v4, v3, s[96:99], s66 offen")
        a.e("s_add_u32 s66, s66, 0x100000"); a.e("buffer_store_dword v5, v3, s[96:99], s66 offen")
    a.e("s_endpgm")
    emit_subs(a)
    a.e("K_end:")
    a.end_kernel(nm, 256)
    a.launches.append(f"; @launch grid=(256,1,1) block=(512,1,1) lds={LDS_TOTAL}")

HEADER = open("interleave_layers__ssm_conv_h3__mixer_s_mlp__prompt.s.ref").read().split("; Override launch")[0]
DOC = """; One persistent kernel, 256 workgroups x 8 waves (one per CU), generated by dev/gen23.py.
"""
def main(out):
    a = Asm()
    k_mega(a)
    notes = {
        "K_pc:": "each workgroup reads 4 KB of this kernel's code so that later instruction fetches are served on chip",
        "KV_t0:": "k / v / tap loads of the u^T tile (64 times x 128 channels); workgroup 0 has posted the launch tag (a clock value) in d_debug",
        "HB_1:": "u^T tile out, arrival counters initialised to the tag, W2 slice into registers, shifted filter copies into LDS",
        "CV_w:": "long causal convolution as Toeplitz MFMAs, one channel per wave",
        "FR_b:": "waves 4-7 beside the convolution: memory-locality vote (timed loads, layout choice only), weight column sums, weight loads",
        "LAYER:": "row stage: residual sums, LayerNorm chain, x + LN(x)*y for 8 rows per workgroup",
        "LOADERS:": "waves 4-7: loads of G1, MFMAs of G2; then waves 4,5: activation tiles by LDS-DMA (after the producers' counters are complete)",
        "WLOAD:": "waves 6,7: weight tiles by LDS-DMA in their original layout (read back with transposing LDS loads)",
        "G4_last:": "last layer: the two K halves exchange half tiles, add the residuals and write the output",
    }
    o = []
    for l in a.lines:
        if l.strip() in notes: o.append("; ---- " + notes[l.strip()])
        if l.strip().startswith("s_sleep"): l += "    ; back-off inside a wait loop"
        o.append(l)
    a.lines = o
    open(out, "w").write(a.text(HEADER + DOC))
    print("nops added:", a.nops_added, "| slots", [WSLOT[s] // KB for s in range(32)], "| issue", {k: x for k, x in WISSUE.items() if x})

if __name__ == "__main__":
    main(sys.argv[1] if len(sys.argv) > 1 else "interleave_layers__ssm_conv_h3__mixer_s_mlp__prompt.s")
```

```python
import sys, os, math, struct
sys.path.insert(0, "dev")
from asmgen import Asm

KNAME = "interleave_layers__ssm_conv_h3__mixer_s_mlp__prompt_kernel"
MB = 1 << 20; KB = 1024
UT, P1B = 24 * MB, 28 * MB; Y = UT
CSP3 = 20 * MB + 128 * 1024
A_Q, A_K, A_V, A_SH, A_SSMK, A_SSMD, B_X, B_W1, B_W2, B_W3, B_W4, D_OUT, D_DBG, D_WS = [8 * i for i in range(14)]
def env(k, d): return type(d)(os.environ.get(k, d)) if not isinstance(d, (list, dict, tuple)) else eval(os.environ.get(k, repr(d)))
STAMP = env("STAMP", 0)
def f32(x): return "0x%08x" % struct.unpack("<I", struct.pack("<f", x))[0]
GC1 = -2.0 * math.sqrt(2.0 / math.pi) * math.log2(math.e)

WAD = 74
RB0, RB1 = 78, 118
WR0 = 128
class VA:
    def __init__(self, start=1, skip=False): self.n = start; self.hi = start; self.skip = skip
    def __call__(self, cnt=1, al=None):
        if al is None: al = 2 if cnt > 1 else 1
        self.n = (self.n + al - 1) // al * al
        if self.skip and self.n < RB1 and self.n + cnt > RB0: self.n = (RB1 + al - 1) // al * al
        r = self.n; self.n += cnt; self.hi = max(self.hi, self.n); return r
def vr(b, n): return f"v[{b}:{b+n-1}]" if n > 1 else f"v{b}"

def unpack(a, lo, hi, src):
    a.e(f"v_lshlrev_b32 v{lo}, 16, v{src}")
    a.e(f"v_and_b32 v{hi}, 0xffff0000, v{src}")
def round2(a, x, y, tmp):
    a.e(f"v_cvt_pk_bf16_f32 v{tmp}, v{x}, v{y}")
    unpack(a, x, y, tmp)
def round1(a, x):
    a.e(f"v_cvt_pk_bf16_f32 v{x}, v{x}, v{x}")
    a.e(f"v_lshlrev_b32 v{x}, 16, v{x}")
def ln_finish(a, mean, var, rs):
    round1(a, mean); round1(a, var)
    a.e(f"v_add_f32 v{var}, {f32(1e-5)}, v{var}"); round1(a, var)
    a.e(f"v_sqrt_f32 v{var}, v{var}"); round1(a, var)
    if rs is not None: a.e(f"v_rcp_f32 v{rs}, v{var}")

FLG = 22 * MB
LB0, LSTR, GSTR = 32 * MB, 64 * MB, 8 * MB
oH2 = 0; oSM = 1792 * 1024; oST2 = oSM + 32768
oH, oX1P = [4 * MB + i * 512 * 1024 for i in range(2)]
XSZ = 512 * 1024 - 8192; H2SZ = 1792 * 1024 - 8192
X3G = 160 * MB
LNSG = FLG + 128 * KB
def spread(a, d, src):
    a.e(f"s_lshr_b32 s53, s{src}, 3"); a.e("s_lshl_b32 s53, s53, 14"); a.e(f"s_and_b32 s{d}, s{src}, 7"); a.e(f"s_lshl_b32 s{d}, s{d}, 10"); a.e(f"s_add_u32 s{d}, s{d}, s53")
ST_R, ST_G2, ST_G4, ST_G3A, ST_G3B, ST_G3, ST_G2S = 0, 8, 12, 32, 36, 40, 44
FH = 2048
F_KVT, F_FRONT, F_CS = FLG + 256 * KB, FLG + 512 * KB, FLG
LDS_TOTAL = 163840
AUX = LDS_TOTAL - 4096
SC = "sc1"
PSLEEP = env("PSLEEP", 5); PACE = env("PACE", 8); STQ = env("STQ", 12); FSLEEP = env("FSLEEP", 3)
NT = os.environ.get("NT", "nt"); NTK = NT; NTH = NT
PUB2 = env("PUB2", 4); MAP = env("MAP", 4); HSPLIT = env("HSPLIT", 2); PWAIT = env("PWAIT", 8)
PACES = env("PACES", {4: 8}); C0PUB = env("C0PUB", 7)
REC, LNSL = 152 * KB, AUX + 1024
WST = 24 * KB

CFG = {1: dict(KBT=32, NW=16, LDW=2048, TN16=4, WB=0),
       3: dict(WM=2, WN=2, MT=4, NT=7, KBT=32, NS=16, NA=3, NW=3, A=oX1P, LDW=7168, NPRE=2, WR=2),
       4: dict(WM=2, WN=2, MT=4, NT=4, KBT=112, NS=28, NA=3, NW=6, A=oH2, LDW=2048)}
for w, c in CFG.items():
    c.setdefault("NPRE", c["NW"]); c.setdefault("WR", 1)
    if w > 1: c["TN16"] = c["WN"] * c["NT"]; c["WB"] = c["NA"] * 16384
    c["STB"] = c["TN16"] * 2048; c["RB"] = c["TN16"] * 32
CFG[2] = CFG[1]
CSO = {3: AUX}

LW = AUX + 3072
def mstamp(a, force=False):
    if os.environ.get("JIT"):
        X = a.lab("jit")
        a.e("s_cselect_b32 s101, 1, 0"); a.e("s_memtime s[64:65]"); a.e("s_waitcnt lgkmcnt(0)"); a.e(f"s_and_b32 s64, s64, {os.environ['JIT']}"); a.e("s_cmp_lg_u32 s64, 0")
        a.e(f"s_cbranch_scc1 {X}"); a.e("s_sleep 50"); a.e(f"{X}:"); a.e("s_cmp_eq_u32 s101, 1")
        return
    if not STAMP or (os.environ.get("GST") and not force): return
    if STAMP == 1:
        fn = sys._getframe(1)
        while fn.f_code.co_name in ("<lambda>", "flag"): fn = fn.f_back
        if fn.f_code.co_name in ("front_b", "window_y", "w_setup", "w_loader", "a_loader", "wait2", "run", "front_a"): return
        if fn.f_code.co_name == "win_compute" and fn.f_locals["g"] == 2: return
        a.e("s_memrealtime s[64:65]"); a.e("s_mov_b32 s100, m0"); a.e("s_mov_b32 m0, s66"); a.e("s_waitcnt lgkmcnt(0)")
        a.e("v_writelane_b32 v4, s64, m0"); a.e("s_mov_b32 m0, s100"); a.e("s_add_u32 s66, s66, 1")
        return
    a.e("s_memrealtime s[64:65]"); a.e("s_memtime s[96:97]")
    a.e("s_mov_b32 s100, m0"); a.e("s_mov_b32 m0, s66"); a.e("s_waitcnt lgkmcnt(0)")
    a.e("v_writelane_b32 v4, s64, m0"); a.e("v_writelane_b32 v5, s96, m0")
    a.e("s_mov_b32 m0, s100"); a.e("s_add_u32 s66, s66, 1")

def lsrd(a, d, off, nbytes, prev=False):
    if prev:
        a.e(f"s_sub_u32 s{d}, s62, {LSTR - off:#x}"); a.e(f"s_subb_u32 s{d+1}, s63, 0")
        a.e(f"s_mov_b32 s{d+2}, {nbytes:#x}"); a.e(f"s_mov_b32 s{d+3}, 0x20000")
    else: a.srd(d, 62, nbytes, off=off)
def x3_srd(a, d):
    a.e(f"s_lshl_b32 s{d+2}, s60, 24"); a.e(f"s_lshl_b32 s{d+3}, s94, 13"); a.e(f"s_add_u32 s{d+2}, s{d+2}, s{d+3}"); a.e(f"s_add_u32 s{d+2}, s{d+2}, {X3G}")
    a.e(f"s_add_u32 s{d}, s4, s{d+2}"); a.e(f"s_addc_u32 s{d+1}, s5, 0"); a.e(f"s_mov_b32 s{d+2}, {8*MB - 8192}"); a.e(f"s_mov_b32 s{d+3}, 0x20000")
def lns_srd(a, d):
    a.e(f"s_lshl_b32 s{d+2}, s60, 15"); a.e(f"s_add_u32 s{d+2}, s{d+2}, {LNSG}")
    a.e(f"s_add_u32 s{d}, s4, s{d+2}"); a.e(f"s_addc_u32 s{d+1}, s5, 0"); a.e(f"s_mov_b32 s{d+2}, 32768"); a.e(f"s_mov_b32 s{d+3}, 0x20000")
def rowaddr(a, d, r, t):
    a.e(f"v_and_b32 v{t}, 3, v{r}"); a.e(f"v_lshrrev_b32 v{d}, 2, v{r}"); a.e(f"v_lshlrev_b32 v{d}, 14, v{d}"); a.e(f"v_lshl_add_u32 v{d}, v{t}, 11, v{d}")

def group_off(a, d, m):
    a.e(f"s_lshr_b32 s53, s{m}, 3"); a.e("s_lshl_b32 s53, s53, 2"); a.e(f"s_and_b32 s54, s{m}, 3"); a.e("s_add_u32 s53, s53, s54"); a.e("s_lshl_b32 s53, s53, 23")
    a.e(f"s_lshr_b32 s54, s{m}, 2"); a.e("s_xor_b32 s54, s54, s94"); a.e("s_and_b32 s54, s54, 1"); a.e("s_lshl_b32 s54, s54, 13")
    a.e(f"s_add_u32 s{d}, s53, s54"); a.e(f"s_add_u32 s{d}, s{d}, {LB0}")

def poll_core(a, t, ad, mask, cnt=0, nap=None):
    L = a.lab("poll"); D = a.lab("pok")
    a.e("s_mov_b32 s53, 0"); a.e(f"s_add_u32 s54, s52, {cnt}")
    a.e(f"s_bfm_b64 exec, {mask.bit_length()}, 0")
    a.e(f"{L}:")
    a.e(f"buffer_load_dword v{t}, v{ad}, s[56:59], 0 offen {SC}")
    a.e("s_waitcnt vmcnt(0)")
    a.e(f"v_cmp_eq_u32 vcc, s54, v{t}")
    a.e("s_cmp_eq_u64 vcc, exec"); a.e(f"s_cbranch_scc1 {D}")
    a.e(f"s_sleep {PSLEEP if nap is None else nap}")
    a.e("s_add_u32 s53, s53, 1"); a.e("s_cmp_lt_u32 s53, s61"); a.e(f"s_cbranch_scc1 {L}")
    a.e("s_mov_b32 s61, 0")
    a.e(f"{D}:")
    a.e("s_mov_b64 exec, -1")

def flag_off(a, d, stage, sub, prev=False):
    a.e(f"s_lshl_b32 s{d}, s{sub}, 7"); a.e(f"s_add_u32 s{d}, s{d}, s55")
    so = stage * 128 - (LSTR if prev else 0)
    if so: a.e(f"s_add_u32 s{d}, s{d}, {so & 0xffffffff:#x}")
def flag_in(a, d, stage, prev=False):
    if stage in (ST_R, ST_G2): a.e(f"s_add_u32 s{d}, s55, {stage*128}"); return 1 if stage == ST_R else 4
    if stage == ST_G4: a.e(f"s_lshl_b32 s{d}, s31, 1")
    else:
        a.e(f"s_and_b32 s{d}, s30, 1")
        if stage != ST_G2S: a.e(f"s_lshl1_add_u32 s{d}, s31, s{d}")
    flag_off(a, d, stage, d, prev)
    return 2 if stage == ST_G4 else 1
def flag_addr(a, r, stage, prev=False):
    n = flag_in(a, 54, stage, prev)
    if stage == ST_R:
        a.e("s_bitcmp1_b32 s29, 2"); a.e("s_cselect_b32 s53, s93, s92"); a.e("s_add_u32 s53, s53, s54")
        a.e(f"v_mov_b32 v{r}, s54"); a.e(f"v_writelane_b32 v{r}, s53, 1")
        return 3
    a.e(f"v_mov_b32 v{r}, s54")
    a.e(f"v_lshl_add_u32 v{r}, v1, 7, v{r}")
    return (1 << n) - 1
def flag_try(a, d, off): a.e(f"s_load_dword s{d}, s[4:5], s{off}")
def flag_check(a, d, off, t):
    D = a.lab("fok")
    a.e("s_add_u32 s54, s52, 16"); a.e("s_waitcnt lgkmcnt(0)"); a.e(f"s_cmp_eq_u32 s{d}, s54"); a.e(f"s_cbranch_scc1 {D}")
    a.e(f"v_mov_b32 v{t+1}, s{off}"); poll_core(a, t, t + 1, 1, cnt=16)
    a.e(f"{D}:")

def poll(a, stage, t, prev=False, wave=4, nap=None):
    D = a.lab("pdone")
    a.e(f"s_cmp_lg_u32 s30, {wave}"); a.e(f"s_cbranch_scc1 {D}")
    poll_core(a, t, t + 1, flag_addr(a, t + 1, stage, prev), cnt=16, nap=nap)
    a.e(f"{D}:")
    a.e("s_waitcnt lgkmcnt(0)"); a.e("s_barrier")

def publish(a, stage, t, off=None, wait=0):
    if off is None:
        off = 53
        if stage == ST_G4: flag_off(a, 53, stage, 30)
        else:
            a.e({ST_G2: "s_and_b32 s53, s30, 3", ST_G2S: "s_and_b32 s53, s30, 1"}.get(stage, "s_lshr_b32 s53, s30, 1"))
            if stage not in (ST_G2, ST_G2S): a.e("s_lshl1_add_u32 s53, s31, s53")
            flag_off(a, 53, stage, 53)
    a.e(f"v_mov_b32 v{t}, 1"); a.e(f"v_mov_b32 v{t+1}, 0")
    a.e("s_mov_b64 exec, 1")
    if wait is not None: a.e(f"s_waitcnt vmcnt({wait})")
    a.e(f"buffer_atomic_add v{t}, v{t+1}, s[56:59], s{off} offen {SC}")
    a.e("s_mov_b64 exec, -1")

def data_wait(a, loads, regs, t, between=None, nap=2):
    L = a.lab("dw"); D = a.lab("dok")
    for x in loads: a.e(x)
    if between: between()
    a.e("s_mov_b32 s53, 0")
    a.e(f"{L}:")
    a.e("s_waitcnt vmcnt(0)")
    h = len(regs) // 2
    for k, part in enumerate((regs[:h], regs[h:])): a.e(f"v_and_b32 v{t+k}, v{part[0]}, v{part[1]}")
    for i in range(2, h, 2):
        for k, part in enumerate((regs[:h], regs[h:])): a.e(f"v_bitop3_b32 v{t+k}, v{part[i]}, v{part[i+1]}, v{t+k} bitop3:0x80")
    a.e(f"v_bitop3_b32 v{t}, v{t}, v{t+1}, 1 bitop3:0x80"); a.e(f"v_cmp_eq_u32 vcc, 0, v{t}")
    a.e("s_cmp_eq_u64 vcc, 0"); a.e(f"s_cbranch_scc1 {D}")
    a.e("s_mov_b64 exec, vcc")
    a.e(f"s_sleep {nap}")
    for x in loads: a.e(x)
    a.e("s_add_u32 s53, s53, 1"); a.e("s_cmp_lt_u32 s53, s61"); a.e(f"s_cbranch_scc1 {L}")
    a.e("s_mov_b32 s61, 0"); a.e("s_waitcnt vmcnt(0)")
    a.e(f"{D}:")
    a.e("s_mov_b64 exec, -1")
    if STAMP: a.e("s_lshl_b32 s53, s53, 24"); a.e("s_add_u32 s95, s95, s53")
def p1_off(a, d, t):
    a.e(f"s_lshr_b32 s{t}, s28, 3"); a.e(f"s_and_b32 s{d}, s28, 3"); a.e(f"s_lshl2_add_u32 s{d}, s{t}, s{d}"); a.e(f"s_lshl_b32 s{d}, s{d}, 19")
    a.e(f"s_xor_b32 s{t}, s{t}, s94"); a.e(f"s_lshl_b32 s{t}, s{t}, 2"); a.e(f"s_xor_b32 s{t}, s{t}, s28"); a.e(f"s_and_b32 s{t}, s{t}, 4"); a.e(f"s_lshl_b32 s{t}, s{t}, 11")
    a.e(f"s_add_u32 s{d}, s{d}, s{t}"); a.e(f"s_add_u32 s{d}, s{d}, {P1B}")
def lsb0(a, r):
    a.e(f"v_add_u32 v{r}, 0x10000, v{r}"); a.e(f"v_and_b32 v{r}, 0xfffe0000, v{r}")
W1A, W1B = (11, 12, 15, 13, 14, 3, 4, 5, 6, 0), (7, 8, 1, 2, 9, 10)
W2S = (-3, -2, -1) + W1B
def lds_spin(a, addr, target, t, dst=53, nap=False):
    L = a.lab("spin")
    a.e(f"v_mov_b32 v{t}, {addr}")
    a.e(f"{L}:")
    if nap: a.e(f"s_sleep {int(nap)}")
    a.e(f"ds_read_b32 v{t+1}, v{t}"); a.e("s_waitcnt lgkmcnt(0)"); a.e(f"v_readfirstlane_b32 s{dst}, v{t+1}")
    a.e(f"s_cmp_ge_u32 s{dst}, {target}"); a.e(f"s_cbranch_scc0 {L}")
def lds_set(a, addr, val, t):
    a.e(f"v_mov_b32 v{t}, {addr}"); a.e(f"v_mov_b32 v{t+1}, {val}")
    a.e("s_waitcnt lgkmcnt(0)"); a.e(f"ds_write_b32 v{t}, v{t+1}")
def lds_inc(a, addr, t):
    a.e(f"v_mov_b32 v{t}, {addr}"); a.e(f"v_mov_b32 v{t+1}, 1")
    a.e("s_waitcnt lgkmcnt(0)")
    a.e("s_mov_b64 exec, 1"); a.e(f"ds_add_u32 v{t}, v{t+1}"); a.e("s_mov_b64 exec, -1")
def lbar(a, k, t, addr=LW + 8, nap=False):
    lds_inc(a, addr, t); lds_spin(a, addr, 4 * k, t, nap=nap)

class Rec:
    def __init__(s_): s_.l = []
    def e(s_, x): s_.l.append(x)
    srd = Asm.srd
class Track:
    def __init__(s, a): s.a = a; s.vq = []; s.lq = []
    def e(s, x): s.a.e(x)
    def vm(s, x, tag=None): s.a.e(x); s.vq.append(tag)
    def ds(s, x, tag=None): s.a.e(x); s.lq.append(tag)
    def _w(s, q, tag, nm, mx):
        if tag not in q: return
        i = max(k for k, x in enumerate(q) if x == tag); n = len(q) - 1 - i
        assert n <= mx
        s.a.e(f"s_waitcnt {nm}({n})"); del q[:i + 1]
    def wv(s, tag): s._w(s.vq, tag, "vmcnt", 63)
    def wl(s, tag): s._w(s.lq, tag, "lgkmcnt", 15)
    def nv(s, tag):
        return len(s.vq) - 1 - max(k for k, x in enumerate(s.vq) if x == tag)
NVOTE = 255
HSTR = 4160; CHB = 21504; UOFF = 4 * HSTR
RFO, RYO, RRO, RI, RXO, RT, RXA, RXB, RYF, RYY = 78, 79, 80, 81, 82, 84, 86, 94, 102, 110
WVB = {1: 118, 2: 118, 4: 119, 3: 121}

NRAW = env("NRAW", 8)
KL, VL = 96 * KB, 113 * KB
def front_loads(a):
    vA, vB, t, t2 = 6, 7, 8, 9
    a.e(f"v_bfe_u32 v{t}, v0, 4, 2"); a.e(f"v_and_b32 v{t2}, 15, v0"); a.e(f"v_lshlrev_b32 v{vA}, 11, v{t}"); a.e(f"v_lshlrev_b32 v{t}, 1, v{t}")
    a.e(f"v_xor_b32 v{t}, v{t}, v{t2}"); a.e(f"v_lshl_add_u32 v{t}, v{t}, 4, v{vA}")
    a.e("s_and_b32 s34, s2, 7"); a.e("s_lshr_b32 s35, s2, 3")
    a.e("s_lshl_b32 s36, s35, 17"); a.e("s_lshl_b32 s37, s34, 8"); a.e("s_add_u32 s36, s36, s37")
    a.e("s_lshl_b32 s37, s30, 6"); a.e("s_and_b32 s38, s37, 128"); a.e("s_add_u32 s37, s37, 64"); a.e("s_and_b32 s37, s37, 128")
    a.e(f"v_xor_b32 v{vA}, s38, v{t}"); a.e(f"v_xor_b32 v{vB}, s37, v{t}")
    a.e("s_lshl_b32 s37, s30, 14"); a.e("s_add_u32 s37, s37, s36"); a.e("s_add_u32 s38, s37, 8192"); a.e("s_lshl_b32 s39, s30, 11")
    a.e(f"s_mov_b32 s18, {4*MB}"); a.e("s_mov_b32 s19, 0x20000"); a.e("s_mov_b32 s22, s18"); a.e("s_mov_b32 s23, s19")
    a.e(f"s_add_u32 m0, s39, {KL + 1024}")
    a.e("s_waitcnt lgkmcnt(0)")
    a.e("s_mov_b64 s[16:17], s[8:9]"); a.e("s_mov_b64 s[20:21], s[10:11]")
    a.e(f"buffer_load_dwordx4 v{vA}, s[16:19], s37 offen {NT} lds"); a.e("s_add_u32 m0, m0, 1024")
    a.e(f"buffer_load_dwordx4 v{vB}, s[16:19], s38 offen {NT} lds"); a.e(f"s_add_u32 m0, s39, {VL}")
    a.e(f"buffer_load_dwordx4 v{vA}, s[20:23], s37 offen {NT} lds"); a.e("s_add_u32 m0, m0, 1024")
    a.e(f"buffer_load_dwordx4 v{vA}, s[20:23], s38 offen {NT} lds")
    a.e("s_mov_b32 s86, 256"); a.e("s_mov_b32 s87, 0x20000"); a.e(f"v_mov_b32 v{ZZ}, 0")
    a.e("s_cmp_lg_u32 s30, 0"); a.e("s_cbranch_scc1 KV_t0")
    a.e("s_sub_u32 s36, s36, 8192"); a.e(f"v_add_u32 v{t}, s36, v{t}"); a.e(f"s_mov_b32 m0, {KL}")
    a.e(f"buffer_load_dwordx4 v{t}, s[16:19], 0 offen {NT} lds")
    a.e("s_cmp_lg_u32 s2, 0"); a.e("s_cbranch_scc1 KV_t0")
    a.e("s_lshl_b32 s44, s46, 6"); a.e("s_or_b32 s44, s44, 1"); a.e(f"v_mov_b32 v{t2}, s44")
    a.e("s_mov_b64 exec, 1"); a.e(f"buffer_store_dword v{t2}, v{ZZ}, s[84:87], 0 offen {SC}"); a.e("s_mov_b64 exec, -1")
    a.e("KV_t0:")
    a.e("s_lshl_b32 s37, s34, 10"); a.e("s_lshl_b32 s38, s30, 7"); a.e("s_add_u32 s37, s37, s38"); a.e(f"v_and_b32 v{t2}, 15, v0"); a.e(f"v_lshlrev_b32 v{t2}, 3, v{t2}")
    a.srd(24, 12, 8192)
    a.e(f"buffer_load_dwordx2 {vr(TAP,2)}, v{t2}, s[24:27], s37 offen")
ZZ, TAP = 10, 12

def front_arrive(a):
    t = 6
    a.e("s_and_b32 s36, s2, 7"); a.e("s_lshr_b32 s53, s2, 5"); a.e("s_lshl3_add_u32 s36, s36, s53"); a.e("s_lshl_b32 s36, s36, 7"); a.e(f"s_add_u32 s36, s36, {F_FRONT}")
    a.e("s_or_b32 s45, s45, 1"); a.e(f"v_mov_b32 v{t+2}, s45"); a.e(f"v_lshlrev_b32 v{t+3}, 13, v1")
    a.e("s_mov_b64 exec, 0xffff"); a.e(f"buffer_atomic_add v{t+2}, v{t+3}, s[56:59], s36 offen {SC}"); a.e("s_mov_b64 exec, -1")
def front_a(a):
    T = Track(a); v = VA(14)
    t = v(); t2 = v(); ra = v(2, 2); go = v(); hw = v(); hw2 = v(); hoff = v(6, 2); d = v(18, 2); tf = v(4, 2); o = v(8, 4); z = v(4, 4)
    assert v.hi <= WAD
    v = VA(128); kr = v(10, 2); vv = v(8, 2); kf = v(20, 2); ks = v(16, 2); dm = 240
    a.e("s_cmp_lg_u32 s30, 4"); a.e("s_cbranch_scc1 HB_1")
    a.e(f"v_add_u32 v{t}, {LW}, v3"); a.e(f"ds_write_b32 v{t}, v{ZZ}")
    a.e("HB_1:")
    w_srd(a, 2, 88)
    a.e("s_lshl3_add_u32 s36, s2, s30"); a.e("s_lshl_b32 s36, s36, 10")
    w_srd(a, 1, 80); a.e("s_mov_b32 s50, s36")
    def wtouch(l=(88, 80)):
        for d_ in l: T.vm(f"buffer_load_dwordx4 {vr(dm,4)}, v2, s[{d_}:{d_+3}], s50 offen")
    WT = env("WT", 6)
    if WT == 0: wtouch()
    w_lanes(a, (1,), t, t2)
    a.e("s_lshl_b32 s48, s29, 7"); a.e("s_lshl_b32 s36, s30, 14"); a.e("s_add_u32 s48, s48, s36"); a.e("s_lshl_b32 s49, s30, 10")
    a.e(f"s_add_u32 s48, s48, {MB}")
    w2q = list(range(NRAW, 16))
    def w2(n):
        for _ in range(min(n, len(w2q))):
            j = w2q.pop(0)
            a.e(f"s_add_u32 s36, s67, {j & 7}"); a.e("s_and_b32 s36, s36, 7"); a.e("s_lshl_b32 s36, s36, 17"); a.e("s_add_u32 s36, s36, s48")
            a.e(f"s_add_u32 m0, s49, {WST + j * 8192}")
            T.vm(f"buffer_load_dwordx4 v{WVB[1]}, s[88:91], s36 offen lds")
    a.e("s_and_b32 s41, s30, 3"); chan_setup(a, 41)
    a.e("s_lshl_b32 s36, s39, 12")
    a.e("s_add_u32 s12, s14, s36"); a.e("s_addc_u32 s13, s15, 0"); a.e("s_mov_b32 s14, 4096"); a.e("s_mov_b32 s15, 0x20000")
    a.e("s_lshr_b32 s45, s30, 2"); a.e("s_lshl_b32 s45, s45, 11")
    for it in range(3):
        if it < 2: a.e(f"s_add_u32 s36, s45, {(1024*it - 64) & 0xffffffff:#x}")
        else: a.e(f"s_mov_b32 s36, {4096 - 64}")
        a.e(f"v_add_u32 v{hoff+2*it}, s36, v2"); a.e(f"v_add_u32 v{hoff+2*it+1}, 16, v{hoff+2*it}")
    def hld():
        for it in range(3):
            T.vm(f"buffer_load_dwordx4 {vr(d+6*it,4)}, v{hoff+2*it}, s[12:15], 0 offen {NTH}", "h")
            T.vm(f"buffer_load_dwordx2 {vr(d+6*it+4,2)}, v{hoff+2*it+1}, s[12:15], 0 offen {NTH}", "h")
    a.e(f"v_add_u32 v{hw}, s40, v2"); a.e(f"v_add_u32 v{hw2}, s45, v{hw}")
    conv_setup(a); r_addr(a)
    a.srd(8, 6, 4 * MB)
    for i in range(4): a.e(f"v_mov_b32 v{z+i}, 0")
    a.e("s_bfm_b64 exec, 40, 0"); a.e(f"ds_write_b128 v{hw}, {vr(z,4)} offset:{UOFF+4096}"); a.e("s_mov_b64 exec, -1")
    assert UOFF + 4096 + 640 <= CHB and 4 * CHB <= WST + NRAW * 8192
    a.e("s_and_b32 s34, s2, 7"); a.e("s_lshr_b32 s35, s2, 3")
    a.e(f"v_bfe_u32 v{t}, v1, 2, 3"); a.e(f"v_xor_b32 v{t}, s30, v{t}"); a.e(f"v_lshlrev_b32 v{ra}, 5, v{t}")
    a.e(f"v_and_b32 v{t}, 3, v1"); a.e(f"v_lshl_add_u32 v{ra}, v{t}, 3, v{ra}")
    a.e(f"v_bfe_u32 v{t}, v1, 2, 2"); a.e(f"v_lshl_add_u32 v{ra}, v{t}, 8, v{ra}"); a.e(f"v_lshrrev_b32 v{t}, 4, v1"); a.e(f"v_lshl_add_u32 v{ra}, v{t}, 12, v{ra}")
    a.e(f"v_add_u32 v{ra}, {KL}, v{ra}"); a.e(f"v_xor_b32 v{ra+1}, 128, v{ra}")
    a.srd(16, 4, 4 * MB, off=UT)
    a.e(f"v_bfe_u32 v{go}, v1, 2, 2"); a.e(f"v_lshlrev_b32 v{go}, 14, v{go}"); a.e(f"v_and_b32 v{t}, 3, v1"); a.e(f"v_lshl_add_u32 v{go}, v{t}, 6, v{go}")
    a.e(f"v_bfe_u32 v{t}, v1, 4, 1"); a.e(f"v_lshrrev_b32 v{t2}, 5, v1"); a.e(f"v_lshl_add_u32 v{t}, v{t}, 1, v{t2}"); a.e(f"v_xor_b32 v{t}, 3, v{t}"); a.e(f"v_lshl_add_u32 v{go}, v{t}, 4, v{go}")
    a.e("s_lshl3_add_u32 s42, s34, s30"); a.e("s_lshl_b32 s43, s42, 16"); a.e("s_sub_u32 s37, 31, s35"); a.e("s_lshl_b32 s37, s37, 9"); a.e("s_add_u32 s43, s43, s37")
    a.e("s_lshl_b32 s44, s42, 5"); a.e("s_add_u32 s44, s44, s35"); a.e("s_lshl_b32 s44, s44, 7"); a.e(f"s_add_u32 s44, s44, {F_KVT}")
    hld()
    if WT == 1: wtouch()
    if WT >= 4: wtouch((88,))
    mstamp(a)
    a.e(f"s_waitcnt vmcnt({len(T.vq)}) lgkmcnt(0)"); a.e("s_barrier")
    mstamp(a)
    for i in range(5): a.e(f"ds_read_b64_tr_b16 {vr(kr+2*i,2)}, v{ra+i//4} offset:{1024*i}")
    for i in range(4): a.e(f"ds_read_b64_tr_b16 {vr(vv+2*i,2)}, v{ra} offset:{VL - KL + 1024*i}")
    a.e("s_load_dword s52, s[84:85], 0")
    unpack(a, tf, tf + 1, TAP); unpack(a, tf + 2, tf + 3, TAP + 1)
    a.e("s_waitcnt lgkmcnt(0)")
    b = Rec()
    for i in range(10): unpack(b, kf + 2 * i, kf + 2 * i + 1, kr + i)
    for i in range(16): b.e(f"v_mul_f32 v{ks+i}, v{kf+i+1}, v{tf+3}")
    for j in (2, 1, 0):
        for i in range(16): b.e(f"v_fmac_f32 v{ks+i}, v{kf+i+4-j}, v{tf+j}")
    for i in range(8): unpack(b, kf + 2 * i, kf + 2 * i + 1, vv + i)
    for i in range(16): b.e(f"v_mul_f32 v{ks+i}, v{ks+i}, v{kf+i}")
    for i in range(1, 16, 2): lsb0(b, ks + i)
    for i in range(8): b.e(f"v_cvt_pk_bf16_f32 v{o+i}, v{ks+8*(i//4)+7-2*(i%4)}, v{ks+8*(i//4)+6-2*(i%4)}")
    for x in b.l: a.e(x)
    a.e("s_cmp_lg_u32 s52, 0"); a.e("s_cbranch_scc1 HB_q")
    a.e("s_mov_b32 s53, 0")
    a.e("HB_p:")
    a.e(f"buffer_load_dword v{t}, v{ZZ}, s[84:87], 0 offen {SC}"); a.e("s_waitcnt vmcnt(0)")
    a.e(f"v_readfirstlane_b32 s52, v{t}"); a.e("s_cmp_lg_u32 s52, 0"); a.e("s_cbranch_scc1 HB_q")
    a.e("s_add_u32 s53, s53, 1"); a.e("s_cmp_lt_u32 s53, s61"); a.e("s_cbranch_scc1 HB_p")
    a.e("s_mov_b32 s52, 1"); a.e("s_mov_b32 s61, 0")
    a.e("HB_q:")
    for e in range(4): a.e(f"v_permlane32_swap_b32 v{o+e}, v{o+4+e}")
    a.e(f"v_mov_b32 v{t}, s52")
    for i in range(2): T.vm(f"buffer_store_dwordx4 {vr(o+4*i,4)}, v{go}, s[16:19], s43 offen offset:{256*(1-i)} {SC}", "u")
    a.e("s_lshl_b32 s37, s42, 7"); a.e("s_lshl_b32 s53, s35, 13"); a.e("s_add_u32 s37, s37, s53"); a.e(f"s_add_u32 s37, s37, {F_FRONT}")
    a.e("s_cmp_ge_u32 s35, 16"); a.e("s_cbranch_scc1 KV_ni")
    a.e("s_mov_b64 exec, 1"); a.e(f"buffer_store_dword v{t}, v{ZZ}, s[56:59], s37 offen {SC}"); a.e("s_mov_b64 exec, -1")
    a.e("KV_ni:")
    mstamp(a)
    cc = kr
    T.wv("h")
    FL = env("FL", 1)
    def flag():
        T.wv("u")
        a.e("s_mov_b64 exec, 1"); T.vm(f"buffer_store_dword v{t}, v{ZZ}, s[56:59], s44 offen {SC}"); a.e("s_mov_b64 exec, -1")
        a.e("s_cmp_lg_u32 s30, 5"); a.e("s_cbranch_scc1 KV_n3")
        a.e("s_lshl_b32 s36, s2, 14"); a.e(f"s_add_u32 s36, s36, {P1B}"); a.e(f"v_lshrrev_b32 v{t2}, 3, v1"); a.e(f"v_mul_u32_u24 v{t2}, {8192 - 128}, v{t2}"); a.e(f"v_add_u32 v{t2}, v{t2}, v2")
        a.e("s_mov_b64 exec, 0xffff"); a.e(f"buffer_store_dwordx4 {vr(z,4)}, v{t2}, s[56:59], s36 offen {SC}"); a.e("s_mov_b64 exec, -1")
        a.e("KV_n3:")
        mstamp(a)
    for it in range(3):
        if it == FL: flag()
        D = d + 6 * it; c0 = cc + 12 * it; c1 = c0 + 4; c2 = c0 + 8
        for k in range(4):
            a.e(f"v_alignbit_b32 v{c0+k}, v{D+k+1}, v{D+k}, 16")
            a.e(f"v_mov_b32 v{c1+k}, v{D+k+1}")
            a.e(f"v_alignbit_b32 v{c2+k}, v{D+k+2}, v{D+k+1}, 16")
        if it == 2: a.e("s_mov_b64 exec, 0xf")
        ad, o0 = (hw2, 1024 * it) if it < 2 else (hw, 4096)
        a.e(f"ds_write_b128 v{ad}, {vr(c0,4)} offset:{o0}")
        a.e(f"ds_write_b128 v{ad}, {vr(c1,4)} offset:{HSTR+o0}")
        a.e(f"ds_write_b128 v{ad}, {vr(c2,4)} offset:{2*HSTR+o0}")
        a.e(f"ds_write_b128 v{ad}, {vr(D+2,4)} offset:{3*HSTR+o0}")
    a.e("s_mov_b64 exec, -1")
    if FL == 3: flag()
    a.e("s_waitcnt lgkmcnt(0)"); a.e("s_barrier")
    mstamp(a)
    w2(16)
def load_q(a):
    for j in range(4): a.e(f"buffer_load_dwordx2 {vr(RXA+2*j,2)}, v{RRO}, s[8:11], 0 offen offset:{128*(j>>1) + 32*(j&1)} {NTH}")
def chan_setup(a, wsg):
    a.e("s_and_b32 s38, s2, 7"); a.e("s_lshl_b32 s38, s38, 5"); a.e("s_lshr_b32 s39, s2, 3"); a.e("s_add_u32 s38, s38, s39")
    a.e("s_lshl_b32 s39, s38, 2"); a.e(f"s_add_u32 s39, s39, s{wsg}")
    a.e(f"s_mul_i32 s40, s{wsg}, {CHB}")

def touch(a, which, nbytes, r):
    n = nbytes // 1024 // 512
    a.e(f"s_mov_b64 s[48:49], s[{66+2*which}:{67+2*which}]")
    a.e("s_lshl_b32 s45, s2, 1"); a.e("s_and_b32 s50, s30, 1"); a.e("s_add_u32 s45, s45, s50"); a.e(f"s_mul_i32 s45, s45, {n*1024}")
    a.e(f"s_mov_b32 s50, {nbytes}"); a.e("s_mov_b32 s51, 0x20000")
    for i in range(n):
        if i and i % 4 == 0: a.e("s_add_u32 s45, s45, 4096")
        a.e(f"buffer_load_dwordx4 {vr(r,4)}, v2, s[48:51], s45 offen offset:{(i&3)*1024}")
    return n

def cs_sum(a):
    N = 3584; CSEL, CFR, CAD, CACC, CO = 20, 48, 104, 108, 112
    X = a.lab("cs")
    a.e("s_cmp_lg_u32 s60, 0"); a.e(f"s_cbranch_scc1 {X}")
    a.e("s_and_b32 s35, s30, 1")
    nr, pos = w_bases(a, 3, CAD, 35, 7, CO, CO + 1)
    a.e("s_cmp_eq_u32 s28, s29"); a.e(f"s_cselect_b32 s36, 0, {CFG[3]['STB']}")
    for i in range(nr): a.e(f"v_add_u32 v{CAD+i}, s36, v{CAD+i}")
    for T in range(7):
        for kk in range(2):
            for h in range(2):
                r, imm = pos(T, kk, h)
                a.e(f"ds_read_b64_tr_b16 {vr(CFR+8*T+4*kk+2*h,2)}, v{CAD + r} offset:{imm}")
    a.e(f"v_and_b32 v{CO}, 15, v1"); a.e(f"v_mov_b32 v{CO+1}, 0x3f803f80")
    for T in range(7):
        a.e(f"v_cmp_eq_u32 vcc, {T}, v{CO}")
        for e in range(4): a.e(f"v_cndmask_b32 v{CSEL+4*T+e}, 0, v{CO+1}, vcc")
    a.e(f"v_and_b32 v{CO+2}, 48, v1"); a.e(f"v_lshl_add_u32 v{CO+2}, v{CO}, 6, v{CO+2}")
    a.e(f"v_mov_b32 v{CO+1}, 0x7f000000")
    a.e(f"v_cmp_gt_u32 vcc, 7, v{CO}"); a.e(f"v_cndmask_b32 v{CO+2}, v{CO+1}, v{CO+2}, vcc")
    a.srd(20, 4, 16 * N * 4, off=CSP3)
    a.e(f"s_mul_i32 s36, s28, {N*4}"); a.e("s_lshl1_add_u32 s35, s29, s35"); a.e(f"s_mul_i32 s35, s35, {7*64}"); a.e("s_add_u32 s35, s35, s36")
    a.e("s_waitcnt lgkmcnt(0)")
    for i in range(14): a.e(f"v_mfma_f32_16x16x32_bf16 {vr(CACC,4)}, {vr(CFR+4*i,4)}, {vr(CSEL+4*(i//2),4)}, {vr(CACC,4) if i else 0}")
    a.e(f"buffer_store_dwordx4 {vr(CACC,4)}, v{CO+2}, s[20:23], s35 offen {SC}")
    a.e(f"{X}:")
def cs_flag(a, d):
    a.e(f"s_and_b32 s{d}, s30, 1"); a.e(f"s_lshl_b32 s{d}, s{d}, 13"); a.e("s_lshl_b32 s53, s29, 7"); a.e(f"s_add_u32 s{d}, s{d}, s53"); a.e(f"s_add_u32 s{d}, s{d}, {F_CS}")
def cs_signal(a):
    X = a.lab("cs")
    a.e("s_cmp_lg_u32 s60, 0"); a.e(f"s_cbranch_scc1 {X}")
    cs_flag(a, 36)
    publish(a, None, 14, off=36, wait=None)
    a.e(f"{X}:")

def wr_addr(a, ad, t):
    a.e(f"v_lshrrev_b32 v{t}, 2, v1"); a.e(f"v_lshlrev_b32 v{ad}, 7, v{t}"); a.e(f"v_bfe_u32 v{t}, v{t}, 1, 2")
    a.e("s_and_b32 s35, s30, 2"); a.e(f"v_and_b32 v{t+1}, 1, v1"); a.e(f"v_or_b32 v{t+1}, s35, v{t+1}"); a.e(f"v_xor_b32 v{t}, v{t}, v{t+1}")
    a.e(f"v_lshl_add_u32 v{ad}, v{t}, 5, v{ad}"); a.e(f"v_and_b32 v{t}, 2, v1"); a.e(f"v_lshl_add_u32 v{ad}, v{t}, 2, v{ad}")
    a.e("s_and_b32 s35, s30, 1"); a.e("s_lshl_b32 s35, s35, 4")
    a.e(f"v_add_u32 v{ad}, s35, v{ad}"); a.e(f"v_add_u32 v{ad+1}, {64*KB}, v{ad}"); a.e(f"v_add_u32 v{ad+2}, {128*KB}, v{ad}")
    assert WST == 3 * 8192
def wreg(j, kk): return WR0 + 16 * (j & 7) + 8 * kk + 4 * (j >> 3)
def wr_read(a, ad, js, slots=None):
    for j, x in zip(js, slots or js):
        for kk in range(2):
            for h in range(2): a.e(f"ds_read_b64_tr_b16 {vr(wreg(j,kk)+2*h,2)}, v{ad+((x+3)>>3)} offset:{((x+3)&7)*8192 + (32*kk+16*h)*128}")

def front_b(a):
    pt, vd = 6, 8
    wr_addr(a, WAD, 10)
    a.e("s_and_b32 s36, s30, 3"); a.e("s_lshl_b32 s36, s36, 14"); a.e("s_lshl_b32 s48, s29, 7"); a.e("s_add_u32 s48, s48, s36")
    for i in range(4): a.e(f"v_mov_b32 v{RYY+i}, 0")
    a.e("s_and_b32 s44, s30, 3"); a.e("s_lshl2_add_u32 s44, s2, s44"); a.e("s_lshl_b32 s44, s44, 12"); a.e(f"s_add_u32 s44, s44, {P1B}")
    a.e("s_cmp_lg_u32 s30, 5"); a.e("s_cbranch_scc1 FB_np")
    a.e("s_lshl_b32 s42, s2, 14"); a.e(f"s_add_u32 s42, s42, {P1B}"); a.e(f"s_waitcnt vmcnt({16 - NRAW})")
    for i in range(2):
        a.e("s_memtime s[34:35]"); a.e("s_waitcnt lgkmcnt(0)")
        a.e(f"s_load_dword s32, s[4:5], s42 offset:{i * 8192} glc"); a.e("s_waitcnt lgkmcnt(0)")
        a.e("s_memtime s[36:37]"); a.e("s_waitcnt lgkmcnt(0)")
        a.e(f"s_sub_u32 s{46+i}, s36, s34")
    a.e("s_cmp_lt_u32 s47, s46"); a.e("s_cselect_b32 s45, 1, 0")
    a.e("s_lshr_b32 s46, s28, 2"); a.e("s_xor_b32 s45, s45, s46"); a.e("s_lshr_b32 s46, s2, 7"); a.e("s_xor_b32 s45, s45, s46"); a.e("s_and_b32 s45, s45, 1"); a.e("s_lshl_b32 s45, s45, 8")
    a.e("FB_np:")
    group_off(a, 37, 28); a.e("s_andn2_b32 s37, s37, 0x2000"); a.e("s_lshl_b32 s43, s29, 7"); a.e("s_add_u32 s37, s37, s43"); a.e(f"s_add_u32 s37, s37, {oSM}")
    a.e(f"s_add_u32 s43, s43, {F_CS}"); a.e(f"v_mov_b32 v{RYF}, s52")
    a.e(f"v_and_b32 v{RYF+1}, 1, v1"); a.e(f"v_lshlrev_b32 v{RYF+1}, 13, v{RYF+1}"); a.e(f"v_bfe_u32 v{RYF+2}, v1, 1, 1"); a.e(f"v_lshl_add_u32 v{RYF+1}, v{RYF+2}, 26, v{RYF+1}")
    a.e(f"v_lshrrev_b32 v{RYF+2}, 2, v1"); a.e(f"v_lshl_add_u32 v{RYF+1}, v{RYF+2}, 11, v{RYF+1}")
    a.e("s_waitcnt vmcnt(0) lgkmcnt(0)")
    a.e("s_barrier")
    wr_read(a, WAD, range(NRAW, 16))
    a.e("s_waitcnt lgkmcnt(0)")
    a.e("s_barrier")
    mstamp(a)
    a.e("s_cmp_lg_u32 s30, 5"); a.e("s_cbranch_scc1 FB_na")
    front_arrive(a)
    a.e("FB_na:")
    if env('WT', 6) == 6:
        for k in range(2): a.e(f"buffer_load_dwordx4 {vr(12,4)}, v2, s[80:83], s50 offen"); a.e("s_sub_u32 s50, s50, 4096")
    load_q(a)
    def raw(srd, reg, js):
        for j in js:
            a.e(f"s_add_u32 s36, s67, {j & 7}"); a.e("s_and_b32 s36, s36, 7"); a.e("s_lshl_b32 s36, s36, 17"); a.e("s_add_u32 s36, s36, s48")
            if j >= 8: a.e(f"s_add_u32 s36, s36, {MB}")
            a.e(f"buffer_load_dwordx4 {vr(reg(j,0),4)}, v{WVB[1]}, s[{srd}:{srd+3}], s36 offen"); a.e("s_add_u32 s36, s36, 65536")
            a.e(f"buffer_load_dwordx4 {vr(reg(j,1),4)}, v{WVB[1]}, s[{srd}:{srd+3}], s36 offen")
    NW2 = env("NW2", 2)
    a.e("s_cmp_lg_u32 s30, 4"); a.e("s_cbranch_scc1 FB_ni")
    a.e("s_mov_b64 exec, 0xfff"); a.e(f"buffer_store_dword v{RYF}, v{RYF+1}, s[56:59], s37 offen {SC}")
    a.e("s_cmp_lg_u32 s28, 0"); a.e("s_cbranch_scc1 FB_n2")
    a.e("s_mov_b64 exec, 3"); a.e(f"buffer_store_dword v{RYF}, v{RYF+1}, s[56:59], s43 offen {SC}")
    a.e("FB_n2:"); a.e("s_mov_b64 exec, -1")
    a.e("FB_ni:")
    for i in range(4): a.e(f"buffer_store_dwordx4 {vr(RYY,4)}, v2, s[56:59], s44 offen offset:{1024*i} {SC}")
    raw(88, wreg, range(NW2))
    w1_dma(a, W1A[:5])
    a.e(f"s_waitcnt vmcnt({10 + 2 * NW2})"); lds_inc(a, LW + 8, pt)
    raw(80, w1raw, W1A[5:])
    a.e("s_xor_b32 s48, s48, 128")
    raw(88, wreg, range(NW2, NRAW))
    w_lanes(a, (3, 4), 10, 11)
    mstamp(a)
    a.e(f"s_cmp_lg_u32 s30, {env('FW', 4)}"); a.e("s_cbranch_scc1 R_fw")
    a.e("s_lshl_b32 s36, s28, 13"); a.e(f"s_add_u32 s36, s36, {F_FRONT}")
    a.e(f"v_lshlrev_b32 v{vd}, 7, v1"); a.e(f"v_add_u32 v{vd}, s36, v{vd}")
    a.e("s_mov_b32 s53, 0")
    a.e("R_fp:")
    a.e(f"buffer_load_dword v{pt}, v{vd}, s[56:59], 0 offen {SC}"); a.e("s_waitcnt vmcnt(0)")
    a.e(f"v_subrev_u32 v{pt}, s52, v{pt}"); a.e(f"v_and_b32 v{pt+1}, 0xfffff8ff, v{pt}"); a.e(f"v_cmp_eq_u32 vcc, 4, v{pt+1}")
    a.e("s_cmp_eq_u64 vcc, exec"); a.e("s_cbranch_scc1 R_fq")
    a.e(f"s_sleep {FSLEEP}")
    a.e("s_add_u32 s53, s53, 1"); a.e("s_cmp_lt_u32 s53, s61"); a.e("s_cbranch_scc1 R_fp")
    a.e("s_mov_b32 s61, 0")
    a.e("R_fq:")
    a.e(f"v_lshrrev_b32 v{pt}, 8, v{pt}"); a.e(f"v_mov_b32 v{pt+1}, {LW+28}"); a.e(f"ds_add_u32 v{pt+1}, v{pt}")
    a.e("R_fw:")
    a.e("s_waitcnt vmcnt(0)")
def w1_dma(a, js):
    a.e("s_and_b32 s49, s30, 3"); a.e("s_lshl_b32 s36, s49, 14"); a.e("s_lshl_b32 s48, s29, 7"); a.e("s_add_u32 s48, s48, s36"); a.e("s_lshl_b32 s49, s49, 10")
    a.e("s_xor_b32 s48, s48, 128")
    for j in js:
        a.e(f"s_add_u32 s36, s67, {j & 7}"); a.e("s_and_b32 s36, s36, 7"); a.e("s_lshl_b32 s36, s36, 17"); a.e("s_add_u32 s36, s36, s48")
        if j >= 8: a.e(f"s_add_u32 s36, s36, {MB}")
        for kk in range(2):
            a.e(f"s_add_u32 m0, s49, {WST + j * 8192 + 4096 * kk}")
            a.e(f"buffer_load_dwordx4 v{WVB[1]}, s[80:83], s36 offen lds")
            if kk == 0: a.e("s_add_u32 s36, s36, 65536")
def w1raw(j, kk):
    return (28, 36, 52, 60, RXB)[W1A[5:].index(j)] + 4 * kk
def w_dump(a, reg, t, js, slots=None):
    a.e("s_and_b32 s36, s30, 3"); a.e("s_lshl_b32 s36, s36, 10"); a.e(f"v_add_u32 v{t}, s36, v2"); a.e(f"v_add_u32 v{t+1}, {64*KB}, v{t}")
    for j, x in zip(js, slots or js):
        for kk in range(2): a.e(f"ds_write_b128 v{t+((x+3)>>3)}, {vr(reg(j,kk),4)} offset:{((x+3)&7)*8192 + 4096*kk}")

CV = {}
def conv_setup(a):
    v = VA(RXB); lane = 1
    t = v(); t2 = v(); t3 = v(); uo = v(); aa = v(); ba = v(); J = v(); G = v(); fl = v(); dop = v(4, 4)
    assert v.hi <= RB1
    CV.update(uo=uo, aa=aa, ba=ba, J=J, G=G, fl=fl, dop=dop, t=t)
    a.e("s_lshl_b32 s36, s38, 14"); a.e(f"s_add_u32 s36, s36, {UT}")
    a.e("s_add_u32 s20, s4, s36"); a.e("s_addc_u32 s21, s5, 0"); a.e("s_mov_b32 s22, 16384"); a.e("s_mov_b32 s23, 0x20000")
    a.e("s_lshl_b32 s36, s30, 6"); a.e(f"v_lshrrev_b32 v{t}, 2, v{lane}"); a.e(f"v_and_b32 v{uo}, 48, v2"); a.e(f"v_lshl_add_u32 v{uo}, v{t}, 8, v{uo}"); a.e(f"v_add_u32 v{uo}, s36, v{uo}")
    a.e("s_lshr_b32 s36, s39, 1"); a.e("s_lshl_b32 s36, s36, 2"); a.e("s_load_dword s41, s[76:77], s36")
    a.e(f"v_and_b32 v{J}, 15, v{lane}"); a.e(f"v_lshrrev_b32 v{G}, 4, v{lane}")
    a.e(f"v_and_b32 v{t}, 3, v{J}"); a.e(f"v_mul_u32_u24 v{aa}, {HSTR}, v{t}")
    a.e(f"v_lshl_add_u32 v{aa}, v{G}, 4, v{aa}"); a.e(f"v_lshrrev_b32 v{t}, 2, v{J}"); a.e(f"v_lshl_add_u32 v{aa}, v{t}, 3, v{aa}")
    a.e(f"v_add_u32 v{aa}, s40, v{aa}")
    a.e(f"v_sub_u32 v{t}, 15, v{J}"); a.e(f"v_lshlrev_b32 v{ba}, 5, v{t}"); a.e(f"v_add_u32 v{ba}, s40, v{ba}")
    a.e(f"v_lshl_add_u32 v{ba}, v{G}, 4, v{ba}")
    a.e("s_lshr_b32 s36, s38, 2"); a.e("s_lshl_b32 s36, s36, 12"); a.e(f"s_add_u32 s36, s36, {F_KVT}")
    a.e(f"v_lshlrev_b32 v{fl}, 7, v{lane}"); a.e(f"v_add_u32 v{fl}, s36, v{fl}")
def conv_diag(a):
    t, J, G, dop = CV["t"], CV["J"], CV["G"], CV["dop"]; t2, t3 = t + 1, t + 2
    a.e("s_bitcmp1_b32 s39, 0"); a.e("s_cselect_b32 s36, 0, 16"); a.e("s_lshl_b32 s41, s41, s36"); a.e("s_and_b32 s41, s41, 0xffff0000"); a.e("s_lshr_b32 s42, s41, 16")
    a.e(f"v_lshl_add_u32 v{t}, v{G}, 3, v{J}"); a.e(f"v_sub_u32 v{t}, 15, v{t}"); a.e(f"v_and_b32 v{t2}, 1, v{t}"); a.e(f"v_cmp_eq_u32 vcc, 1, v{t2}")
    a.e(f"v_mov_b32 v{t2}, s42"); a.e(f"v_mov_b32 v{t3}, s41"); a.e(f"v_cndmask_b32 v{t2}, v{t2}, v{t3}, vcc"); a.e(f"v_ashrrev_i32 v{t}, 1, v{t}")
    for i in range(4): a.e(f"v_cmp_eq_u32 vcc, {i}, v{t}"); a.e(f"v_cndmask_b32 v{dop+i}, 0, v{t2}, vcc")

def front_conv(a):
    v = VA(6, skip=True); lane = 1; l16 = 2
    t = v(); pt = v(4, 2)
    uo, aa, ba, J, G, fl, dop = [CV[k] for k in "uo aa ba J G fl dop".split()]
    ya = v(4, 1); ta = v()
    acc = v(32, 4)
    fa = v(64, 4); fb = v(64, 4)
    def rdA(p, o):
        return [f"ds_read_b64 {vr(fa+32*p+4*s_+2*h,2)}, v{aa} offset:{64*(o+8*s_) + 32 + 8*h}" for s_ in range(8) for h in range(2)]
    def rdB(p, o):
        return [f"ds_read_b128 {vr(fb+32*p+4*k,4)}, v{ba} offset:{UOFF + 3584 - 512*k + 64*o}" for k in range(8)]
    conv_diag(a); a.e("v_mov_b32 v119, 0")
    a.e(f"s_mul_i32 s36, s30, {CHB+64}")
    a.e(f"v_lshrrev_b32 v{t}, 1, v{J}"); a.e(f"v_mul_u32_u24 v{ya}, 72, v{t}"); a.e(f"v_and_b32 v{t}, 1, v{J}"); a.e(f"v_lshl_add_u32 v{ya}, v{t}, 4, v{ya}")
    a.e(f"v_lshl_add_u32 v{ya}, v{G}, 2, v{ya}"); a.e(f"v_add_u32 v{ya}, s36, v{ya}")
    for c_ in range(1, 4): a.e(f"v_add_u32 v{ya+c_}, {c_*16*72}, v{ya}")
    a.e(f"v_bfe_u32 v{t}, v{lane}, 2, 2"); a.e(f"v_mul_u32_u24 v{ta}, {CHB+64}, v{t}")
    a.e(f"v_mul_u32_u24 v{t}, 72, v{G}"); a.e(f"v_add_u32 v{ta}, v{ta}, v{t}")
    a.e(f"v_and_b32 v{t}, 3, v{lane}"); a.e(f"v_lshl_add_u32 v{ta}, v{t}, 3, v{ta}")
    a.e(f"s_mul_i32 s36, s30, {16*72}"); a.e(f"v_add_u32 v{ta}, s36, v{ta}")
    a.e("s_lshl_b32 s44, s30, 12"); a.e("s_mov_b32 s45, 0x07060302")
    a.e("s_cmp_lg_u32 s30, 0"); a.e("s_cbranch_scc1 CV_w")
    poll_core(a, pt, fl, 0xffffffff, nap=env("NAPK", 5))
    a.e("CV_w:")
    a.e(f"s_add_u32 m0, s40, {UOFF}"); a.e("s_mov_b32 s36, 0")
    a.e("s_waitcnt vmcnt(0)"); a.e("s_barrier")
    mstamp(a)
    for it in range(4):
        a.e(f"buffer_load_dwordx4 v{uo}, s[20:23], s36 offen offset:{1024*it} {SC} lds")
        if it < 3: a.e("s_add_u32 s36, s36, 3072")
    a.e("s_barrier")
    load_q(a)
    for x in rdA(0, 0): a.e(x)
    a.e("s_waitcnt vmcnt(4)")
    mstamp(a)
    for x in rdB(0, 0): a.e(x)
    a.e("s_waitcnt lgkmcnt(0)")
    for c_ in range(8): a.e(f"v_mfma_f32_16x16x32_bf16 {vr(acc+4*c_,4)}, {vr(dop,4)}, {vr(fb+4*c_,4)}, 0")
    def step(p, nxt, tail):
        a.e("s_waitcnt lgkmcnt(0)")
        for i, (c_, s_) in enumerate([(c_, s_) for s_ in range(8) for c_ in range(s_, 8)]):
            a.e(f"v_mfma_f32_16x16x32_bf16 {vr(acc+4*c_,4)}, {vr(fa+32*p+4*s_,4)}, {vr(fb+32*p+4*(c_-s_),4)}, {vr(acc+4*c_,4)}")
            if nxt: a.e(nxt.pop(0))
            elif tail: a.e(tail.pop(0))
        assert not nxt and not tail
    NU = env("NU", 2)
    adv = [f"v_add_u32 v{aa}, 128, v{aa}", f"v_add_u32 v{ba}, 128, v{ba}", "s_add_u32 s43, s43, 1"]
    a.e("s_mov_b32 s43, 0")
    if NU:
        a.e("CV_r:")
        for p in range(2):
            step(p, [], [])
            for x in rdB(1 - p, p + 1) + rdA(1 - p, p + 1): a.e(x)
        for x in adv + [f"s_cmp_lt_u32 s43, {NU}"]: a.e(x)
        a.e("s_cbranch_scc1 CV_r")
    a.e("CV_l:")
    step(0, rdB(1, 1) + rdA(1, 1), [])
    step(1, rdB(0, 2) + rdA(0, 2), adv + ["s_cmp_lt_u32 s43, 4"])
    a.e("s_cbranch_scc1 CV_l")
    mstamp(a)
    a.e("s_bitcmp1_b32 s30, 0"); a.e("s_waitcnt lgkmcnt(0)"); a.e("s_cbranch_scc1 CV_o")
    for odd in range(2):
        for c_ in range(8):
            A = acc + 4 * c_
            for e in range(2):
                if odd: a.e(f"v_cvt_pk_bf16_f32 v{A+e}, v{A+e}, v{A+2+e}")
                else: a.e(f"v_perm_b32 v{A+e}, v{A+2+e}, v{A+e}, s45")
            for e in range(0 if odd else 2): a.e(f"v_or_b32 v{A+e}, 0x10001, v{A+e}")
            a.e(f"ds_write2_b32 v{ya+c_//2}, v{A}, v{A+1} offset0:{144*(c_&1)} offset1:{144*(c_&1)+8}")
        if not odd: a.e("s_branch CV_e"); a.e("CV_o:")
    a.e("CV_e:")
    lbar(a, 2, pt)
    for i in range(8): a.e(f"ds_read_b64_tr_b16 {vr(fa+2*i,2)}, v{ta} offset:{288*(i//2) + 32*(i&1)}")
    for i in range(4):
        a.e(f"s_waitcnt lgkmcnt({6-2*i})")
        a.e(f"buffer_store_dwordx4 {vr(fa+4*i,4)}, v{l16}, s[20:23], s44 offen offset:{1024*i} {SC}")
    assert v.hi <= 250

def r_addr(a):
    t, t2, I, fo, ro, yo, xo = RT, RT + 1, RI, RFO, RRO, RYO, RXO
    a.e(f"v_and_b32 v{I}, 7, v0")
    a.e(f"v_lshrrev_b32 v{t}, 6, v0"); a.e(f"v_lshlrev_b32 v{t}, 4, v{t}"); a.e(f"v_bfe_u32 v{t2}, v0, 3, 3"); a.e(f"v_add_u32 v{t}, v{t}, v{t2}")
    a.e("s_lshr_b32 s78, s29, 1"); a.e("s_lshl_b32 s78, s78, 16"); a.e("s_and_b32 s79, s29, 1"); a.e("s_lshl_b32 s79, s79, 7"); a.e("s_add_u32 s78, s78, s79")
    a.e("s_lshr_b32 s79, s30, 1"); a.e("s_lshl_b32 s79, s79, 13"); a.e("s_add_u32 s78, s78, s79")
    a.e(f"v_lshlrev_b32 v{fo}, 8, v{t}"); a.e(f"v_lshl_add_u32 v{fo}, v{I}, 4, v{fo}"); a.e(f"v_add_u32 v{fo}, s78, v{fo}")
    a.e("s_lshl_b32 s78, s28, 7"); a.e("s_lshl_b32 s79, s29, 3"); a.e("s_add_u32 s78, s78, s79")
    a.e(f"v_add_u32 v{yo}, s78, v{I}"); a.e(f"v_lshlrev_b32 v{ro}, 11, v{yo}")
    rowaddr(a, xo, yo, t2); a.e(f"v_lshl_add_u32 v{xo}, v{t}, 4, v{xo}")
    a.e(f"v_lshrrev_b32 v{t2}, 2, v{t}"); a.e(f"v_lshlrev_b32 v{t2}, 3, v{t2}"); a.e(f"v_and_b32 v{t}, 3, v{t}"); a.e(f"v_add_u32 v{t}, v{t}, v{t2}")
    a.e(f"v_lshl_add_u32 v{ro}, v{t}, 3, v{ro}")
    a.e(f"v_lshlrev_b32 v{yo}, 3, v{yo}"); a.e(f"v_lshl_add_u32 v{yo}, v{t}, 14, v{yo}")
def y_loads(): return [f"s_mov_b32 s78, {(16*j + 4*hh)*16384}\nbuffer_load_dwordx2 {vr(RYY+4*j+2*hh,2)}, v{RYO}, s[80:83], s78 offen {SC}" for j in range(2) for hh in range(2)]
def load_y(a):
    a.srd(80, 4, 4 * MB, off=Y)
    for x in y_loads(): a.e(x)
def r_pre(a):
    r_addr(a)
    load_y(a)

def w3_sub(a, which):
    w_srd(a, 3, 8)
    a.e("s_add_u32 s36, s29, s88"); a.e("s_and_b32 s36, s36, 15")
    a.e("s_cmp_lg_u32 s28, s29"); a.e("s_cselect_b32 s89, s88, 0"); a.e("s_cmp_eq_u32 s89, 1"); a.e("s_cselect_b32 s36, s28, s36")
    a.e("s_and_b32 s89, s30, 3"); a.e("s_lshl2_add_u32 s36, s36, s89")
    a.e(f"s_mul_i32 s90, s36, {16*7168}"); a.e(f"s_mul_i32 s36, s29, 448"); a.e("s_add_u32 s90, s90, s36")
    a.e("s_lshl2_add_u32 s89, s88, s89"); a.e(f"s_mul_i32 s89, s89, 7168"); a.e(f"s_add_u32 m0, s89, {CFG[3]['WB']}")
    for i in range(7):
        if i: a.e("s_add_u32 m0, m0, 1024")
        a.e(f"buffer_load_dwordx4 v{WVB[3]+i}, s[8:11], s90 offen lds")
def w3_stage(a, k):
    a.e(f"s_mov_b32 s88, {k}"); call_issue(a, w3_sub, 3)
def r_stage(a, pre=False):
    v = VA(6)
    t = v(); t2 = v(); I = RI; fo = RFO; pt = v(4, 2)
    xa = RXA; xb = RXB; yy = RYY; yf = RYF; x = v(16, 2); w = v(16, 2); tmp = v()
    S = v(2, 2); pp = v(2, 2); qq = v(2, 2); st = v(16, 4); mean = v(2, 2); rs = mean + 1; var = v(); sw = v(); sr = v(); wad = v(3, 2)
    assert v.hi <= RB0 and wad == WAD, v.hi
    def part(src, n):
        a.e(f"v_pk_add_f32 {vr(pp,2)}, {vr(src,2)}, {vr(src+2,2)}"); a.e(f"v_pk_mul_f32 {vr(qq,2)}, {vr(src,2)}, {vr(src,2)}")
        for i in range(1, 8):
            if i > 1: a.e(f"v_pk_add_f32 {vr(pp,2)}, {vr(pp,2)}, {vr(src+2*i,2)}")
            a.e(f"v_pk_fma_f32 {vr(qq,2)}, {vr(src+2*i,2)}, {vr(src+2*i,2)}, {vr(qq,2)}")
        a.e(f"v_add_f32 v{S}, v{pp}, v{pp+1}"); a.e(f"v_add_f32 v{S+1}, v{qq}, v{qq+1}")
        for k in range(2): a.e(f"v_add_f32_dpp v{S+k}, v{S+k}, v{S+k} row_ror:8 row_mask:0xf bank_mask:0xf")
        for op in ("v_permlane16_swap_b32", "v_permlane32_swap_b32"):
            for k in range(2): a.e(f"v_mov_b32 v{pp+k}, v{S+k}")
            for k in range(2): a.e(f"{op} v{S+k}, v{pp+k}")
            a.e(f"v_pk_add_f32 {vr(S,2)}, {vr(S,2)}, {vr(pp,2)}")
        a.e(f"ds_write_b64 v{sw}, {vr(S,2)} offset:{n*1536}")
    def comb(n):
        for k in range(4): a.e(f"ds_read_b128 {vr(st+4*k,4)}, v{sr} offset:{n*1536+16*k}")
        a.e("s_waitcnt lgkmcnt(0)")
        for k in range(4): a.e(f"v_pk_add_f32 {vr(st+4*k,2)}, {vr(st+4*k,2)}, {vr(st+4*k+2,2)}")
        a.e(f"v_pk_add_f32 {vr(st,2)}, {vr(st,2)}, {vr(st+4,2)}"); a.e(f"v_pk_add_f32 {vr(st+8,2)}, {vr(st+8,2)}, {vr(st+12,2)}")
        a.e(f"v_pk_add_f32 {vr(st,2)}, {vr(st,2)}, {vr(st+8,2)}")
        a.e(f"v_mul_f32 v{mean}, {f32(1/1024)}, v{st}"); a.e(f"v_mul_f32 v{var}, {f32(1/1024)}, v{st+1}")
        a.e(f"v_fma_f32 v{var}, -v{mean}, v{mean}, v{var}"); a.e(f"v_max_f32 v{var}, 0, v{var}")
    def w1_in(cs):
        X = a.lab("w1in")
        a.e("s_cmp_ge_u32 s30, 4"); a.e(f"s_cbranch_scc1 {X}")
        wr_read(a, wad, W1A)
        a.e(f"{X}:")
    def norm():
        ln_finish(a, mean, var, rs)
        a.e(f"v_mul_f32 v{mean}, -v{mean}, v{rs}")
        for i in range(8): a.e(f"v_pk_fma_f32 {vr(w+2*i,2)}, {vr(x+2*i,2)}, {vr(mean,2)}, {vr(mean,2)} op_sel:[0,1,0] op_sel_hi:[1,1,0]")
    a.e(f"v_lshlrev_b32 v{sr}, 6, v{I}"); a.e(f"v_add_u32 v{sr}, {AUX+2048}, v{sr}")
    a.e(f"s_lshl_b32 s35, s30, 3"); a.e(f"v_add_u32 v{sw}, s35, v{sr}")
    if pre:
        for i in range(8): unpack(a, x + 2 * i, x + 2 * i + 1, xa + i)
        part(x, 0)
        return
    wr_addr(a, wad, t)
    a.e(f"s_cmp_eq_u32 s60, 0"); a.e(f"s_cbranch_scc1 R_l0")
    lsrd(a, 8, oH, XSZ, prev=True)
    p1_off(a, 36, 37); a.e("s_add_u32 s12, s4, s36"); a.e("s_addc_u32 s13, s5, 0"); a.e(f"s_mov_b32 s14, {XSZ}"); a.e("s_mov_b32 s15, 0x20000")
    for i in range(8):
        unpack(a, yf + 2 * i, yf + 2 * i + 1, yy + i)
    if env("W1F", 1): w1_in(False)
    if env("RDEL", 0): a.e(f"s_sleep {env('RDEL', 0)}")
    data_wait(a, [f"buffer_load_dwordx4 {vr((xa, xb)[k]+4*j,4)}, v{fo}, s[{8+4*k}:{11+4*k}], 0 offen offset:{2048*j} {SC}" for j in range(2) for k in range(2)],
              list(range(xa, xa + 16)), t, None if env("W1F", 1) else lambda: w1_in(False), nap=env("NAP4", 2))
    mstamp(a)
    for i in range(8):
        unpack(a, x + 2 * i, x + 2 * i + 1, xa + i); unpack(a, w + 2 * i, w + 2 * i + 1, xb + i)
        a.e(f"v_pk_add_f32 {vr(x+2*i,2)}, {vr(x+2*i,2)}, {vr(w+2*i,2)}")
    part(x, 0)
    x3_srd(a, 20)
    a.e("s_waitcnt lgkmcnt(0)"); a.e("s_barrier")
    comb(0)
    norm()
    a.e("s_branch R_s2")
    a.e("R_l0:")
    def shadow():
        a.e("s_cmp_lt_u32 s30, 4"); a.e("s_cbranch_scc1 R_f2")
        w_dump(a, w1raw, pt, W1A[5:])
        a.e("R_f2:")
        a.e(f"v_mov_b32 v{t}, {LW+28}"); a.e(f"ds_read_b32 v{t2}, v{t}")
        comb(0)
        norm()
        a.e(f"v_readfirstlane_b32 s94, v{t2}")
        if STAMP: a.e("s_mov_b32 s95, s94")
        a.e(f"s_cmp_gt_u32 s94, {NVOTE // 2}"); a.e("s_cselect_b32 s94, 1, 0")
        group_off(a, 55, 28)
        a.e("s_add_u32 s62, s4, s55"); a.e("s_addc_u32 s63, s5, 0")
        a.e("s_sub_u32 s36, s28, 1"); a.e("s_max_i32 s36, s36, 0"); group_off(a, 92, 36); a.e("s_sub_u32 s92, s92, s55")
        a.e("s_add_u32 s36, s28, 1"); a.e("s_min_u32 s36, s36, 15"); group_off(a, 93, 36); a.e("s_sub_u32 s93, s93, s55")
        a.e(f"s_add_u32 s55, s55, {oSM}")
        x3_srd(a, 20)
    shadow()
    def w2d():
        a.e("s_cmp_lt_u32 s30, 4"); a.e("s_cbranch_scc1 R_f3")
        w_dump(a, wreg, pt, range(NRAW), W2S)
        a.e("R_f3:")
    a.srd(80, 4, 4 * MB, off=Y)
    mstamp(a)
    data_wait(a, y_loads(), list(range(yy, yy + 8)), t, w2d, nap=env("NAPY", 4))
    mstamp(a)
    for i in range(8): unpack(a, yf + 2 * i, yf + 2 * i + 1, yy + i)
    a.e("R_s2:")
    for i in range(8):
        a.e(f"v_pk_fma_f32 {vr(x+2*i,2)}, {vr(w+2*i,2)}, {vr(yf+2*i,2)}, {vr(x+2*i,2)}")
        if i % 4 == 3:
            for k in range(i - 3, i + 1): a.e(f"v_cvt_pk_bf16_f32 v{xa+k}, v{x+2*k}, v{x+2*k+1}")
            a.e(f"buffer_store_dwordx4 {vr(xa+i-3,4)}, v{RXO}, s[20:23], 0 offen offset:{128*(i//4)} {SC}")
    part(x, 1)
    a.e("s_waitcnt lgkmcnt(0)"); a.e("s_barrier")
    a.e("s_cmp_ge_u32 s30, 4"); a.e("s_cbranch_scc1 LOADERS")
    a.e("s_cmp_lg_u32 s30, 3"); a.e("s_cbranch_scc1 R_nl")
    comb(1)
    outv = w; m4 = w + 4; v4_ = w + 5
    a.e(f"v_mov_b32 v{m4}, v{mean}"); a.e(f"v_mov_b32 v{v4_}, v{var}")
    ln_finish(a, mean, var, rs)
    a.e(f"v_sub_f32 v{m4}, v{m4}, v{mean}"); a.e(f"v_mul_f32 v{m4}, v{m4}, v{rs}")
    a.e(f"v_mul_f32 v{v4_}, v{v4_}, v{rs}"); a.e(f"v_mul_f32 v{v4_}, v{v4_}, v{rs}")
    ln_finish(a, m4, v4_, None)
    a.e(f"v_cvt_pk_bf16_f32 v{outv}, v{mean}, v{var}"); a.e(f"v_cvt_pk_bf16_f32 v{outv+2}, v{m4}, v{v4_}")
    a.e(f"v_mov_b32 v{outv+1}, s52"); a.e(f"v_mov_b32 v{outv+3}, s52")
    lns_srd(a, 24)
    a.e("s_lshl_b32 s36, s28, 4"); a.e("s_add_u32 s36, s36, s29"); a.e("s_lshl_b32 s36, s36, 7")
    a.e("s_mov_b64 exec, 0xff")
    a.e(f"buffer_store_dwordx4 {vr(outv,4)}, v2, s[24:27], s36 offen {SC}")
    a.e("s_mov_b64 exec, -1")
    a.e("R_nl:")
    a.e(f"v_mov_b32 v{t}, 1"); a.e(f"v_mov_b32 v{t2}, 0")
    a.e("s_cmp_eq_u32 s30, 3"); a.e("s_waitcnt vmcnt(1)"); a.e("s_cbranch_scc1 R_n2")
    a.e("s_waitcnt vmcnt(0)")
    a.e("R_n2:")
    a.e("s_barrier")
    a.e("s_cmp_lg_u32 s30, 0"); a.e("s_cbranch_scc1 R_n3")
    a.e("s_mov_b64 exec, 1"); a.e(f"buffer_atomic_add v{t}, v{t2}, s[56:59], s55 offen {SC}"); a.e("s_mov_b64 exec, -1")
    a.e("R_n3:")
    a.e("s_cmp_lg_u32 s60, 0"); a.e("s_cbranch_scc1 R_n5")
    wr_read(a, wad, W1A)
    a.e("R_n5:")
def rot_init(a, which):
    a.e("s_mov_b32 s44, s29" if which == 3 else "s_mov_b32 s44, 0")
def stage3(b, d):
    b.e("s_cmp_eq_u32 s44, s47"); b.e(f"s_cselect_b32 s{d}, s46, s44")
def stage3_init(a):
    a.e("s_add_u32 s46, s29, 1"); a.e("s_and_b32 s46, s46, 15"); a.e("s_cmp_eq_u32 s28, s29"); a.e("s_cselect_b32 s47, s46, s28")
def rot_next(a, which):
    a.e("s_add_u32 s44, s44, 1")
    if which != 4: a.e("s_and_b32 s44, s44, 15")
def kb4(a, d, lw):
    a.e("s_lshl_b32 s45, s44, 1"); a.e(f"s_add_u32 s45, s45, {lw}"); a.e("s_sub_u32 s45, s45, 32")
    a.e("s_mul_i32 s46, s45, 86"); a.e("s_lshr_b32 s46, s46, 8")
    a.e("s_mul_i32 s47, s46, 3"); a.e("s_sub_u32 s47, s45, s47"); a.e("s_lshl_b32 s47, s47, 2"); a.e("s_lshr_b32 s47, 0x362, s47"); a.e("s_and_b32 s47, s47, 7")
    a.e("s_cmp_ge_u32 s44, 10"); a.e("s_cselect_b32 s45, 9, 2"); a.e("s_cselect_b32 s51, 1, 0"); a.e("s_sub_u32 s45, s44, s45")
    a.e("s_cmp_lt_u32 s44, 3"); a.e("s_cselect_b32 s45, 0, s45"); a.e("s_cselect_b32 s51, s44, s51")
    a.e(f"s_lshl2_add_u32 s51, {lw}, s51")
    a.e("s_cmp_lt_u32 s44, 17"); a.e("s_cselect_b32 s47, s51, s47"); a.e("s_cselect_b32 s46, s45, s46")
    a.e("s_add_u32 s46, s46, s33"); a.e("s_and_b32 s46, s46, 7"); a.e("s_mul_i32 s46, s46, 7"); a.e(f"s_add_u32 s{d}, s46, s47")
assert all((q * 86) >> 8 == q // 3 for q in range(24))
def w_lanes(a, which, t, t2):
    if 1 in which:
        R = WVB[1]
        a.e(f"v_lshrrev_b32 v{t}, 3, v1"); a.e(f"v_lshlrev_b32 v{R}, 11, v{t}")
        a.e(f"v_and_b32 v{t}, 6, v{t}"); a.e(f"v_and_b32 v{t2}, 7, v1"); a.e(f"v_xor_b32 v{t}, v{t}, v{t2}"); a.e(f"v_lshl_add_u32 v{R}, v{t}, 4, v{R}")
        return
    R = WVB[4]
    for p in range(2):
        a.e(f"v_lshrrev_b32 v{t}, 4, v1"); a.e(f"v_lshlrev_b32 v{R+p}, 11, v{t}")
        a.e(f"v_add_u32 v{t}, {4*p}, v{t}"); a.e(f"v_lshlrev_b32 v{t}, 1, v{t}"); a.e(f"v_and_b32 v{t2}, 15, v1"); a.e(f"v_xor_b32 v{t}, v{t}, v{t2}")
        a.e(f"v_lshl_add_u32 v{R+p}, v{t}, 4, v{R+p}")
    R = WVB[3]
    assert all((p * 2341) >> 16 == p // 28 for p in range(448))
    for ii in range(7):
        a.e(f"v_add_u32 v{t2}, {64*ii}, v1"); a.e(f"v_mul_u32_u24 v{t}, 2341, v{t2}"); a.e(f"v_lshrrev_b32 v{t}, 16, v{t}")
        a.e(f"v_mul_u32_u24 v{R+ii}, 28, v{t}"); a.e(f"v_sub_u32 v{t2}, v{t2}, v{R+ii}")
        a.e(f"v_mul_u32_u24 v{R+ii}, 7168, v{t}")
        a.e(f"v_lshrrev_b32 v{t}, 1, v{t}"); a.e(f"v_and_b32 v{t}, 2, v{t}"); a.e(f"v_xor_b32 v{t2}, v{t2}, v{t}")
        a.e(f"v_lshl_add_u32 v{R+ii}, v{t2}, 4, v{R+ii}")
def w_srd(a, which, d=12):
    c = CFG[which]
    a.e(f"s_mov_b64 s[{d}:{d+1}], s[{66+2*which}:{67+2*which}]")
    a.e(f"s_mov_b32 s{d+2}, {c['KBT'] * 32 * c['LDW']}"); a.e(f"s_mov_b32 s{d+3}, 0x20000")
def w_setup(a, which, pre=True):
    c = CFG[which]; STB = c["STB"]; BW = STB // 2
    w_srd(a, which)
    a.e("s_and_b32 s35, s30, 1")
    a.e(f"s_mul_i32 s38, s{29 if which != 4 else 33}, {c['RB']}")
    if which == 1: a.e("s_xor_b32 s38, s38, 128")
    if which != 4: a.e(f"s_mul_i32 s41, s35, {32*c['LDW']}"); a.e("s_add_u32 s38, s38, s41")
    if which == 4: a.e(f"s_mul_i32 s41, s31, {1792*c['LDW']}"); a.e("s_add_u32 s38, s38, s41")
    a.e(f"s_mul_i32 s41, s35, {BW}")
    if c["WB"]: a.e(f"s_add_u32 s41, s41, {c['WB']}")
    a.e("s_mov_b32 s42, 0"); rot_init(a, which)
    if not pre: return
    NP = c["NPRE"]
    a.e("s_mov_b32 s49, s44"); a.e(f"s_and_b32 s43, s28, {3 * env('WROT', 0)}"); a.e(f"s_mul_i32 s43, s43, {NP}"); a.e("s_lshr_b32 s43, s43, 2"); a.e("s_mov_b32 s50, 0")
    L = a.lab("wpre"); a.e(f"{L}:")
    a.e(f"s_mul_i32 s42, s43, {STB}"); a.e("s_add_u32 s44, s49, s43")
    w_issue(a, which, pace=PACES.get(which, PACE))
    a.e("s_add_u32 s43, s43, 1"); a.e(f"s_cmp_eq_u32 s43, {NP}"); a.e("s_cselect_b32 s43, 0, s43")
    a.e("s_add_u32 s50, s50, 1"); a.e(f"s_cmp_lt_u32 s50, {NP}"); a.e(f"s_cbranch_scc1 {L}")
    mstamp(a)
    a.e(f"s_mov_b32 s42, {(NP % c['NW']) * STB}"); a.e(f"s_add_u32 s44, s49, {NP}")
def w_slots(a, items, pace=0):
    for kh, u, ad in items:
        a.e(f"s_mov_b32 s42, {ad}"); a.e(f"s_add_u32 s44, s67, {u}"); a.e("s_and_b32 s44, s44, 7")
        if kh: a.e("s_or_b32 s44, s44, 8")
        call_issue(a, w_issue, 1)
        if pace: a.e(f"s_waitcnt vmcnt({pace})")
def w1_slots(a, js, pace=0): w_slots(a, [(j >> 3, j & 7, WST + j * 8192) for j in js], pace)
def w_parts(which):
    c = CFG[which]; STB = c["STB"]; n = STB // 2048; LDW = c["LDW"]; b = Rec()
    b.e("s_add_u32 s19, s41, s42")
    arm = ["s_mov_b32 m0, s19", "s_mov_b32 s39, s16"]
    if which == 4:
        b.e("s_and_b32 s40, s30, 1"); kb4(b, 16, "s40")
        b.e(f"s_mul_i32 s16, s16, {32*LDW}"); b.e("s_add_u32 s16, s16, s38")
    elif which == 3:
        stage3(b, 16); b.e(f"s_mul_i32 s16, s16, {64*LDW}"); b.e("s_add_u32 s16, s16, s38")
    else:
        b.e(f"s_mul_i32 s16, s44, {64*LDW}"); b.e("s_add_u32 s16, s16, s38")
    if which > 2:
        rot_next(b, which)
        b.e(f"s_add_u32 s42, s42, {STB}"); b.e(f"s_cmp_eq_u32 s42, {c['NW']*STB}"); b.e("s_cselect_b32 s42, 0, s42")
    fire = []
    for i in range(n):
        g = []
        if i:
            g.append("s_add_u32 m0, m0, 1024")
            if which in (1, 2): g.append(f"s_add_u32 s39, s39, {8*LDW}")
            elif which == 4: g.append(f"s_add_u32 s39, s39, {4*LDW}")
            elif i == 7: g.append(f"s_add_u32 s39, s39, {16*LDW}")
        vo = WVB[which] + (0 if which in (1, 2) else (i & 1) if which == 4 else i % 7)
        fire.append(g + [f"buffer_load_dwordx4 v{vo}, s[12:15], s39 offen lds"])
    return b.l, arm, fire
def w_issue(a, which, pace=0):
    prep, arm, fire = w_parts(which)
    for x in prep + arm: a.e(x)
    for i, g in enumerate(fire):
        for x in g: a.e(x)
        if pace and (i % 4 == 3 or i == len(fire) - 1): a.e(f"s_waitcnt vmcnt({pace})")

def w_bases(a, which, dst, swn, ntl, t, t2):
    c = CFG[which]; RB = c["RB"]
    a.e(f"v_lshrrev_b32 v{t}, 2, v1")
    a.e(f"v_mul_u32_u24 v{dst}, {RB}, v{t}"); a.e(f"v_and_b32 v{t2}, 3, v1"); a.e(f"v_lshl_add_u32 v{dst}, v{t2}, 3, v{dst}")
    if c["WB"]: a.e(f"v_add_u32 v{dst}, {c['WB']}, v{dst}")
    if which == 3:
        a.e(f"v_mul_u32_u24 v{dst+2}, {RB}, v{t}"); a.e(f"v_and_b32 v{t2}, 2, v1"); a.e(f"v_lshl_add_u32 v{dst+2}, v{t2}, 2, v{dst+2}")
        a.e(f"v_bfe_u32 v{t}, v1, 4, 1"); a.e(f"v_and_b32 v{t2}, 1, v1"); a.e(f"v_xor_b32 v{t2}, v{t2}, v{t}"); a.e(f"v_lshl_add_u32 v{dst+2}, v{t2}, 5, v{dst+2}")
        a.e(f"s_lshl_b32 s36, s{swn}, 4"); a.e(f"s_add_u32 s36, s36, {c['WB'] + 192}"); a.e(f"v_add_u32 v{dst+2}, s36, v{dst+2}")
        a.e(f"s_lshl_b32 s36, s{swn}, 8"); a.e(f"v_add_u32 v{dst}, s36, v{dst}"); a.e(f"v_lshlrev_b32 v{t}, 5, v{t}")
        a.e(f"v_sub_u32 v{dst+1}, v{dst}, v{t}"); a.e(f"v_add_u32 v{dst}, v{dst}, v{t}")
        return 3, lambda nt, kk, h: (nt & 1, (32 * kk + 16 * h) * RB + 32 * nt) if nt < 6 else (2, (32 * kk + 16 * h) * RB)
    if which == 4: a.e(f"v_and_b32 v{t}, 7, v{t}")
    else: a.e(f"v_bfe_u32 v{t}, v{t}, 1, 2")
    for nt in range(ntl - 1, -1, -1):
        a.e(f"s_mul_i32 s36, s{swn}, {ntl}"); a.e(f"s_add_u32 s36, s36, {nt}")
        a.e(f"v_xor_b32 v{t2}, s36, v{t}"); a.e(f"v_lshl_add_u32 v{dst+nt}, v{t2}, 5, v{dst}")
    return ntl, lambda nt, kk, h: (nt, (32 * kk + 16 * h) * RB)

def a_parts(which):
    c = CFG[which]; b = Rec()
    b.e("s_add_u32 s19, s41, s42")
    arm = ["s_mov_b32 m0, s19", "s_mov_b32 s39, s16"]; fire = []
    if which == 4:
        for lw in range(2):
            kb4(b, 16 + lw, lw); spread(b, 16 + lw, 16 + lw); b.e(f"s_add_u32 s{16+lw}, s{16+lw}, s38")
        arm.append("s_mov_b32 s40, s17")
        for i in range(4):
            for lw in range(2):
                fire.append((["s_add_u32 m0, m0, 1024"] if i or lw else []) + ([f"s_add_u32 s{39+lw}, s{39+lw}, {'s37' if i == 2 else c['KBT']*2048}"] if i else []) +
                            [f"buffer_load_dwordx4 v2, s[12:15], s{39+lw} offen {SC} lds"])
    else:
        stage3(b, 16); b.e("s_cmp_eq_u32 s44, s46"); b.e("s_cselect_b32 s16, s47, s16")
        b.e("s_lshr_b32 s45, s16, 2"); b.e("s_lshl_b32 s45, s45, 14"); b.e("s_and_b32 s16, s16, 3"); b.e("s_lshl_b32 s16, s16, 11")
        b.e("s_add_u32 s16, s16, s45"); b.e("s_add_u32 s16, s16, s38"); step = c['KBT'] * 2048
        for i in range(4):
            fire.append((["s_add_u32 m0, m0, 2048", f"s_add_u32 s39, s39, {step}"] if i else []) + [f"buffer_load_dwordx4 v2, s[12:15], s39 offen {SC} lds"])
            fire.append([f"buffer_load_dwordx4 v2, s[12:15], s39 offen offset:1024 {SC} lds"])
    rot_next(b, which)
    b.e(f"s_add_u32 s42, s42, 16384"); b.e(f"s_cmp_eq_u32 s42, {c['NA']*16384}"); b.e("s_cselect_b32 s42, 0, s42")
    return b.l, arm, fire
def a_issue(a, which):
    prep, arm, fire = a_parts(which)
    for x in prep + arm + sum(fire, []): a.e(x)
SUBS = {}
def call_issue(a, issue, which):
    nm = f"SUB_{issue.__name__}_{which}"; SUBS[nm] = (issue, which)
    a.e(f"s_call_b64 s[76:77], {nm}")
def emit_subs(a):
    for nm, (issue, which) in SUBS.items():
        a.e(f"{nm}:"); issue(a, which); a.e("s_setpc_b64 s[76:77]")
def ld_steps(a, which, N, per, issue, npre, rate=2, plan={}, lo=0, hi=None, last=None, hold=(), start=None):
    NS = CFG[which]["NS"]
    prep, arm, fire = (w_parts if issue is w_issue else a_parts)(which); h = max(1, per * HSPLIT // 8)
    plan = {b: (x if isinstance(x, list) else [x]) for b, x in plan.items()}
    q = [s_ for s_ in range(npre) for _ in range(per)]
    def after(tag):
        if issue is w_issue and isinstance(tag, int) and tag < npre and (env('WROT', 0) or which == 3): tag = npre - 1
        return len(q) - 1 - max(i for i, x in enumerate(q) if x == tag)
    issued = npre; steps = []
    for b in range(NS):
        acts = plan.get(b, []); was = {}
        def do(pos):
            for n_, act in enumerate(acts):
                if act[0] != pos: continue
                if act[1] is not None: was[n_] = after(act[1])
                q.extend([act[4]] * act[3])
        do(True)
        k = 0
        if b > 0 and b not in hold: k = max(0, min(rate, min(NS, b - 1 + N) - issued))
        assert k or not any(x[0] == "mid" for x in acts)
        for j in range(k):
            q.extend([issued] * h)
            if j == 0: do("mid")
            q.extend([issued] * (per - h)); issued += 1
        do(False)
        w = after(b); assert w <= 63
        steps.append((k, w, b if acts else None, tuple(sorted(was.items())), issued < NS))
    def em(l):
        for x in l:
            a.e(x)
            if x == "s_barrier" and os.environ.get("JIT"): mstamp(a)
    F1, F2 = sum(fire[:h], []), sum(fire[h:], [])
    lprep = prep
    if len(prep) > 8:
        nm = f"PREP_{issue.__name__}_{which}"; SUBS[nm] = ((lambda a_, w_, l=prep: [a_.e(x) for x in l]), which)
        prep = [f"s_call_b64 s[76:77], {nm}"]
    if lo == 0 or start: em(prep + arm)
    i = lo; HI = NS if hi is None else hi
    while i < HI:
        j = i
        while j < HI and steps[j] == steps[i]: j += 1
        k, w, ab, was, more = steps[i]; n = j - i; was = dict(was)
        def run(pos):
            for n_, act in enumerate(plan.get(ab, [])):
                if act[0] != pos: continue
                if n_ in was: a.e(f"s_waitcnt vmcnt({was[n_]})")
                act[2]()
        tail = [f"s_waitcnt vmcnt({w})", "s_barrier"]
        if n > 2 and k == 1:
            em(F1); a.e("s_mov_b32 s43, 1"); L = a.lab("ld"); a.e(f"{L}:")
            em(lprep + F2 + arm + tail + F1)
            a.e("s_add_u32 s43, s43, 1"); a.e(f"s_cmp_lt_u32 s43, {n}"); a.e(f"s_cbranch_scc1 {L}")
            em(prep + F2 + arm + tail)
        else:
            for r in range(n):
                run(True)
                for jj in range(k):
                    nxt = more or jj < k - 1
                    em(F1)
                    if jj == 0: run("mid")
                    em((prep if nxt else []) + F2 + (arm if nxt else []))
                run(False)
                em(tail)
        i = j
    if hi is not None: return
    if which == 4:
        if issue is a_issue: a.e("s_cmp_eq_u32 s60, 1"); a.e("s_cbranch_scc1 K_fin")
        elif hold is HOLD: a.e("s_branch K_fin"); return
        r_pre(a); a.e("s_waitcnt vmcnt(0)")
    if last: last()
    if issue is a_issue and which == 3 and env("T4", 1):
        X = a.lab("tw4"); a.e("s_cmp_lg_u32 s60, 0"); a.e(f"s_cbranch_scc1 {X}"); touch(a, 4, 7 * MB, 60); a.e(f"{X}:")
    a.e("s_barrier")

HOLD = env("HOLD", [2, 3, 4])
def a_loader(a, which):
    c = CFG[which]
    a.e("s_and_b32 s35, s30, 1")
    lsrd(a, 12, c["A"], XSZ if which != 4 else H2SZ)
    a.e(f"s_mul_i32 s38, s35, {4*c['KBT']*2048}")
    if which == 4:
        a.e(f"s_mul_i32 s36, s31, {7*16384 + 2*c['KBT']*2048}"); a.e("s_add_u32 s38, s38, s36")
        a.e(f"s_mul_i32 s37, s31, {4*c['KBT']*2048}"); a.e(f"s_sub_u32 s37, {c['KBT']*2048}, s37")
    a.e("s_lshl_b32 s41, s35, 13"); a.e("s_mov_b32 s42, 0"); rot_init(a, which)
    assert c["NA"] == 3
    if which == 4:
        flag_in(a, 34, ST_G3B); flag_in(a, 35, ST_G3)
        P4 = env("P4", 2)
        a.e(f"s_sub_u32 s48, s34, {(ST_G3B - ST_G3A) * 128}")
        plan = {**({1: [(True, None, lambda: flag_try(a, 32, 48), 0, None), (False, None, lambda: (flag_check(a, 32, 48, 8), mstamp(a)), 0, None)]} if P4 == 1 else
                   {1: (True, None, lambda: flag_try(a, 32, 48), 0, None), 2: (True, None, lambda: (flag_check(a, 32, 48, 8), mstamp(a)), 0, None)} if P4 == 2 else {}),
                7: ("mid", None, lambda: flag_try(a, 32, 34), 0, None), 8: ("mid", None, lambda: flag_check(a, 32, 34, 8), 0, None),
                14: ("mid", None, lambda: flag_try(a, 32, 35), 0, None), 15: ("mid", None, lambda: flag_check(a, 32, 35, 8), 0, None)}
        a.e("s_mov_b32 s44, 3")
        ld_steps(a, which, 3, 8, a_issue, 3, plan=plan); return
    mask = flag_addr(a, 9, ST_G2)
    def wait2(): g2_signal(a, 0); mstamp(a); poll_core(a, 8, 9, mask, cnt=16, nap=env("NAP2", 5)); mstamp(a)
    rot_next(a, 3); stage3_init(a); a.e("s_mov_b32 s42, 16384")
    plan = side_jobs(a)
    plan[1] = (True, None, wait2, 0, None)
    ld_steps(a, which, 3, 8, a_issue, 1, plan=plan, lo=1, start=True)

def g2_signal(a, wait):
    publish(a, ST_G2, 14, wait=wait)
    G2S[0](); a.e("s_waitcnt lgkmcnt(0)")
G2S = []
def side_jobs(a):
    c = CFG[3]
    sv = 18; Q, tt, mean, rs, ad, fa, fr, co_, ct = 50, 51, 52, 53, 10, 11, 12, 13, 6
    cv = 54; N = 3584; HB = c["TN16"] * 32
    assert cv + 64 <= WVB[1]
    def cld(k0=0, k1=4):
        if k0 == 0:
            flag_check(a, 3, 40, 14)
            a.srd(24, 4, 16 * N * 4, off=CSP3)
            a.e("s_cmp_eq_u32 s60, 0"); a.e("s_cselect_b32 s26, s26, 0")
            a.e("s_and_b32 s36, s30, 1"); a.e(f"s_mul_i32 s36, s36, {HB}"); a.e(f"s_mul_i32 s37, s29, {2*HB}"); a.e("s_add_u32 s37, s36, s37")
            a.e(f"v_lshrrev_b32 v{co_}, 5, v1"); a.e(f"v_mul_u32_u24 v{co_}, {N*4}, v{co_}")
            a.e(f"v_and_b32 v{ct}, {16*31}, v2"); a.e(f"v_add_u32 v{co_}, v{co_}, v{ct}")
        for k in range(k0, k1):
            a.e(f"buffer_load_dwordx4 {vr(cv+4*k,4)}, v{co_}, s[24:27], s37 offen {SC}"); a.e(f"s_add_u32 s37, s37, {N*4*2}")
    def piece(lines, l0=False):
        def f():
            X = a.lab("pc")
            if l0: a.e("s_cmp_lg_u32 s60, 0"); a.e(f"s_cbranch_scc1 {X}")
            for x in lines: a.e(x)
            if l0: a.e(f"{X}:")
        return f
    def cadd(k0, k1): return [f"v_pk_add_f32 {vr(cv+2*h,2)}, {vr(cv+2*h,2)}, {vr(cv+4*k+2*h,2)}" for k in range(k0, k1) for h in range(2)]
    def sw(op): return [f"v_mov_b32 v{cv+4+e}, v{cv+e}" for e in range(4)] + [f"{op} v{cv+e}, v{cv+4+e}" for e in range(4)] + cadd(1, 2)
    cout = ["s_and_b32 s36, s30, 1", f"s_mul_i32 s36, s36, {HB}", f"s_add_u32 s36, s36, {CSO[3]}", f"v_add_u32 v{ct}, s36, v2",
            f"s_bfm_b64 exec, {HB//16}, 0", f"ds_write_b128 v{ct}, {vr(cv,4)}", "s_mov_b64 exec, -1", "s_waitcnt lgkmcnt(0)"]
    flag_in(a, 35, ST_G2S); cs_flag(a, 40)
    a.e(f"v_lshlrev_b32 v{ad}, 3, v1")
    lsrd(a, 20, oST2, 24576)
    a.e("s_and_b32 s34, s30, 1"); a.e("s_lshl_b32 s34, s34, 9")
    def sout():
        a.e(f"s_add_u32 s36, s34, {REC}"); a.e(f"v_add_u32 v{tt}, s36, v{ad}")
        for k in range(4): a.e(f"ds_read_b64 {vr(sv+2*k,2)}, v{tt} offset:{1024*k}")
        spread(a, 36, 29); a.e("s_add_u32 s36, s36, s34")
        a.e("s_waitcnt lgkmcnt(0)")
        for k in range(1, 4): a.e(f"v_pk_add_f32 {vr(sv,2)}, {vr(sv,2)}, {vr(sv+2*k,2)}")
        a.e(f"buffer_store_dwordx2 {vr(sv,2)}, v{ad}, s[20:23], s36 offen {SC}")
    def tries():
        flag_try(a, 32, 35); flag_try(a, 3, 40)
    def ld(k0):
        def f():
            if k0 == 0: flag_check(a, 32, 35, 14)
            a.e(f"s_add_u32 s36, s34, {k0*2048}")
            for k in range(k0, k0 + 8):
                if k % 8 == 4: a.e("s_add_u32 s36, s36, 4096")
                a.e(f"buffer_load_dwordx2 {vr(sv+2*k,2)}, v{ad}, s[20:23], s36 offen offset:{(k&3)*1024} {SC}")
        return f
    b = Rec()
    for st_ in (8, 4, 2, 1):
        for k in range(st_): b.e(f"v_pk_add_f32 {vr(sv+2*k,2)}, {vr(sv+2*k,2)}, {vr(sv+2*(k+st_),2)}")
    b.e(f"v_mul_f32 v{mean}, {f32(1/1024)}, v{sv}"); b.e(f"v_mul_f32 v{Q}, {f32(1/1024)}, v{sv+1}")
    b.e(f"v_fma_f32 v{Q}, -v{mean}, v{mean}, v{Q}"); b.e(f"v_max_f32 v{Q}, 0, v{Q}")
    ln_finish(b, mean, Q, rs)
    b.e(f"s_add_u32 s36, s34, {AUX+1024}"); b.e(f"v_add_u32 v{tt}, s36, v{ad}")
    b.e(f"ds_write_b64 v{tt}, {vr(mean,2)}"); b.e("s_waitcnt lgkmcnt(0)")
    def both(f, g):
        def h(): f(); g()
        return h
    return {2: (False, None, sout, 1, "s"),
            4: (False, "s", lambda: publish(a, ST_G2S, 14, wait=None), 1, "p"),
            8: (False, None, tries, 0, None),
            9: (False, None, ld(0), 8, "d"), 10: (False, None, ld(8), 8, "d"), 11: (False, None, lambda: cld(0, 8), 8, "c"),
            12: (False, "d", piece(b.l[:12]), 0, None), 13: (False, None, piece(b.l[12:23]), 0, None),
            14: (False, "c", both(piece(b.l[23:]), piece(cadd(1, 5), 1)), 0, None), 15: (False, None, piece(cadd(5, 8) + sw("v_permlane32_swap_b32") + cout, 1), 0, None)}

def w_loader(a, which):
    c = CFG[which]
    args = (a, which, c["NW"], c["STB"] // 2048, w_issue, c["NPRE"], c["WR"])
    if which == 3:
        w_setup(a, 3, pre=False); rot_next(a, 3); rot_next(a, 3); stage3_init(a); a.e(f"s_mov_b32 s42, {2*c['STB']}")
        ld_steps(*args, plan={1: [({"T": True, "M": "mid", "F": False}[env("PUBW", "T")], 1, lambda: g2_signal(a, None), 1, "p"), (False, None, lambda: cs_sum(a), 0, None)],
                                4: (False, 3, lambda: cs_signal(a), 0, None)}, lo=1, start=True)
        return
    assert c["NW"] == 6 and c["WB"] == WST + 3 * 8192
    a.e("s_cmp_eq_u32 s60, 1"); a.e("s_cbranch_scc1 WL_t1")
    ld_steps(*args, hi=24)
    def first(): w_setup(a, 1, pre=False); w1_slots(a, (11, 12, 15))
    plan = {24: (False, None, first, 12, "w"), 25: (False, None, lambda: w1_slots(a, (13, 14)), 8, "w"),
            26: (False, None, lambda: w1_slots(a, (3, 4)), 8, "w"), 27: (False, None, lambda: w1_slots(a, (5, 6, 0)), 12, "w")}
    ld_steps(*args, plan=plan, lo=24)
    mstamp(a)
    a.e("s_branch NEXT")
    a.e("WL_t1:")
    ld_steps(*args, hold=HOLD)
SLOTS = [16 * KB, 32 * KB, 104 * KB, 120 * KB, 136 * KB]; WINB = 104 * KB
W3AT = env("W3AT", [8, 12])
LAG = 2
DEP = env("DEP", 3); BURST0 = env("BURST0", 3)
SIG = env("SIG", [(8, 0), (12, 0), (15, 2)]); SIG3 = env("SIG3", 19)
TRY = env("TRY", [12, 16, 20, 24]); CHK = env("CHK", [13, 17, 21, 25])
OST = env("OST", 29); LPRIO = env("LPRIO", 1); RATE = env("RATE", 2); ISS = env("ISS", {})
def win_schedule():
    slot = {}; issue = {b: [] for b in ["F"] + list(range(32))}
    free = {x: -1 for x in SLOTS}
    nxt = 0
    for p in range(-1, 32):
        b = "F" if p < 0 else p
        while nxt < 32:
            if p < 0 and nxt >= BURST0: break
            if nxt >= 16 and p < CHK[(nxt - 16) // 4]: break
            if p in ISS:
                if len(issue[b]) >= ISS[p]: break
            elif p >= 0 and (nxt > p + DEP or len(issue[b]) >= RATE): break
            c_ = [x for x in SLOTS if free[x] <= p]
            if not c_: break
            x = min(c_, key=lambda x: free[x])
            slot[nxt] = x; issue[b].append(nxt); free[x] = nxt + 2
            assert nxt > p
            nxt += 1
    return slot, issue
WSLOT, WISSUE = win_schedule()
GSTW = os.environ.get("GST", "")

def win_compute(T, g, rd, acc, cinit, FR, pre, post, mid):
    s0 = 16 * (g - 1); steps = [(s, k) for s in range(s0, s0 + 17) for k in range(4)]; n = 64; nb = LAG + 1
    for i in range(n + LAG):
        s, k = steps[i]
        if k == 0 and s < 32:
            for f in pre.get(s, []): f()
            T.e("s_barrier")
            if GSTW == "w" or (GSTW == "y" and i == n) or os.environ.get("JIT"): mstamp(T.a, True)
            for f in post.get(s, []): f()
        for f in mid.get((s, k), []): f()
        r = [rd(FR + 16 * (i % nb) + 4 * q, s, k, q) for q in range(4)] if i < n else []
        j = i - LAG
        if j < 0:
            for x in r: T.ds(x, i)
            continue
        s, k = steps[j]; c = (s - s0) // 4; first = s % 4 == 0 and k == 0
        T.wl(j)
        for q in (0, 1, 3, 2):
            C = vr(acc(c) + 4 * (q & 1), 4)
            T.e(f"v_mfma_f32_16x16x32_bf16 {C}, {vr(WR0+8*(4*(s%4)+k)+4*(q>>1),4)}, {vr(FR+16*(j%nb)+4*q,4)}, {'0' if first and q < 2 and not cinit else C}")
            if r: T.ds(r.pop(0), i)
def add(d, k, f): d.setdefault(k, []).append(f)
def h_rot(a, d):
    a.e(f"s_and_b32 s{d+4}, s30, 3"); a.e(f"s_lshl_b32 s{d+4}, s{d+4}, 15")
    for i in range(4):
        a.e(f"s_add_u32 s53, s67, {2*i}"); a.e(f"s_and_b32 s{d+i}, s53, 4"); a.e(f"s_and_b32 s53, s53, 2"); a.e(f"s_lshl_b32 s{d+i}, s{d+i}, 12"); a.e("s_lshl_b32 s53, s53, 11")
        a.e(f"s_add_u32 s{d+i}, s{d+i}, s53"); a.e(f"s_add_u32 s{d+i}, s{d+i}, s{d+4}")
    a.e("s_and_b32 s53, s30, 2"); a.e("s_lshl_b32 s53, s53, 11")
    a.e(f"s_and_b32 s{d+4}, s30, 1"); a.e(f"s_lshl_b32 s{d+4}, s{d+4}, 13"); a.e(f"s_add_u32 s{d+4}, s{d+4}, s53")
def h_arm(T, s, d):
    T.e(f"s_add_u32 m0, s{d+4}, {WSLOT[s]}"); T.e(f"s_add_u32 s49, s{d+s%4}, {(s-16)//4*131072}"); T.armed = s
def h_issue(T, s, d, srd):
    if getattr(T, "armed", None) != s: h_arm(T, s, d)
    for q in range(4): T.vm(f"buffer_load_dwordx4 v2, s[{srd}:{srd+3}], s49 offen offset:{1024*q} {SC} lds", s)
def h_flag(a, d):
    a.e(f"s_and_b32 s{d}, s30, 1"); a.e(f"s_lshl_b32 s{d}, s{d}, 8"); a.e(f"s_add_u32 s{d}, s{d}, s55"); a.e(f"s_add_u32 s{d+1}, s52, 16")
def h_try(a, c, d):
    for k in range(2): a.e(f"s_load_dword s{(32, 3)[k]}, s[4:5], s{d} offset:{FH + 512*c + 128*k} {os.environ.get('GLC', '')}")
def h_check(a, c, d, t):
    D = a.lab("hok")
    a.e("s_waitcnt lgkmcnt(0)"); a.e(f"s_cmp_eq_u32 s32, s{d+1}"); a.e(f"s_cselect_b32 s32, s3, 0"); a.e(f"s_cmp_eq_u32 s32, s{d+1}"); a.e(f"s_cbranch_scc1 {D}")
    if STAMP: a.e(f"s_add_u32 s95, s95, {1 << (8 + 4 * c)}")
    a.e(f"s_add_u32 s53, s{d}, {FH + 512*c}"); a.e(f"v_lshlrev_b32 v{t+1}, 7, v1"); a.e(f"v_add_u32 v{t+1}, s53, v{t+1}")
    poll_core(a, t, t + 1, 3, cnt=16, nap=env('HSLEEP', 2))
    a.e(f"{D}:")
def out_addr(a, so, J, G, t, flip=False):
    a.e(f"v_and_b32 v{t}, 1, v{G}"); a.e(f"v_lshlrev_b32 v{so}, 16, v{t}"); a.e(f"v_lshrrev_b32 v{t}, 1, v{G}"); a.e(f"v_lshl_add_u32 v{so}, v{t}, 8, v{so}")
    a.e(f"v_lshl_add_u32 v{so}, v{J}, 4, v{so}")
    a.e("s_bfe_u32 s36, s30, 0x10001"); a.e("s_lshl1_add_u32 s36, s29, s36")
    if flip: a.e("s_xor_b32 s36, s36, 2")
    spread(a, 39, 36)
    a.e("s_and_b32 s36, s30, 1"); a.e("s_lshl_b32 s36, s36, 9"); a.e("s_add_u32 s39, s39, s36")

def window_x(a, g3_setup):
    T = Track(a); v = VA(6)
    t = v(); t2 = v(); J = v(); G = v(); ra = v(8, 2); rc = v()
    acc0 = v(16, 4); FR = v(48, 4); cs = v(4, 4); rec = v(16, 4); tp = v(8, 4); lead = v(); one = v(); so = v()
    assert v.hi <= WR0
    a.e(f"v_and_b32 v{J}, 15, v1"); a.e(f"v_lshrrev_b32 v{G}, 4, v1")
    a.e(f"v_xor_b32 v{t}, v{G}, v{J}"); a.e(f"v_lshlrev_b32 v{t2}, 8, v{J}")
    for k in range(4):
        a.e(f"v_xor_b32 v{ra+k}, {4*k}, v{t}"); a.e(f"v_lshl_add_u32 v{ra+k}, v{ra+k}, 4, v{t2}"); a.e(f"v_add_u32 v{ra+4+k}, {WINB}, v{ra+k}")
    a.e(f"v_lshlrev_b32 v{rc}, 4, v{J}"); a.e(f"v_add_u32 v{rc}, {REC}, v{rc}")
    lsrd(a, 16, oH, XSZ); out_addr(a, so, J, G, t, True)
    h_rot(a, 8); h_flag(a, 20)
    a.e(f"v_mov_b32 v{lead}, 0x7f000000"); a.e(f"v_writelane_b32 v{lead}, 0, 0"); a.e(f"v_mov_b32 v{one}, 1")
    a.e("s_and_b32 s40, s30, 1"); a.e("s_lshl1_add_u32 s40, s31, s40"); a.e("s_lshl_b32 s40, s40, 7"); a.e("s_add_u32 s40, s40, s55")
    a.e("s_barrier")
    wr_read(a, WAD, W1B)
    for i in range(4): a.e(f"v_mov_b32 v{rec+i}, 0x3f803f80")
    poll(a, ST_R, tp, wave=0, nap=env("NAPR", 3))
    for b in range(32): a.e(f"v_mfma_f32_16x16x32_bf16 {vr(cs,4)}, {vr(WR0+4*b,4)}, {vr(rec,4)}, {vr(cs,4) if b else 0}")
    def rd(d, s, k, q):
        x = WSLOT[s]; hi = x >= WINB
        return f"ds_read_b128 {vr(d,4)}, v{ra+4*hi+k} offset:{x - WINB*hi + 4096*q}"
    acc = lambda c: acc0 + 8 * (c & 1)
    def recs(c):
        for mt in range(2):
            for p in range(2): T.ds(f"ds_read_b128 {vr(rec+8*mt+4*p,4)}, v{rc} offset:{512*c + 256*mt + 2048*p}", "r")
    def epi(c, cut=None):
        T.wl("r")
        X = acc(c); P = [(X + i, tp + i, i & 2, [vr(rec + 2 * (i & 4) + 2 * e, 2) for e in range(4)]) for i in range(0, 8, 2)]
        for x, u, i, R in P: T.e(f"v_pk_fma_f32 {vr(x,2)}, {R[0]}, {vr(cs+i,2)}, {vr(x,2)}")
        for x, u, i, R in P: T.e(f"v_pk_mul_f32 {vr(u,2)}, {vr(x,2)}, {vr(x,2)}")
        for x, u, i, R in P: T.e(f"v_pk_fma_f32 {vr(u,2)}, {vr(u,2)}, {R[2]}, {R[1]}")
        for x, u, i, R in P: T.e(f"v_pk_mul_f32 {vr(u,2)}, {vr(u,2)}, {vr(x,2)}")
        if cut: cut()
        for i in range(8): T.e(f"v_exp_f32 v{tp+i}, v{tp+i}")
        for x, u, i, R in P: T.e(f"v_pk_fma_f32 {vr(u,2)}, {vr(u,2)}, {R[3]}, {R[3]}")
        for i in range(8): T.e(f"v_rcp_f32 v{tp+i}, v{tp+i}")
        for x, u, i, R in P: T.e(f"v_pk_mul_f32 {vr(x,2)}, {vr(x,2)}, {vr(u,2)}")
        for i in range(4): T.e(f"v_add_u32 v{X+2*i}, 0x10000, v{X+2*i}")
        for i in range(4): T.e(f"v_and_b32 v{X+2*i}, 0xfffe0000, v{X+2*i}")
        for i in range(4): T.e(f"v_cvt_pk_bf16_f32 v{tp+i}, v{X+2*i}, v{X+2*i+1}")
        T.e(f"s_add_u32 s36, s39, {c*131072}")
        for e in range(2): T.e(f"v_permlane16_swap_b32 v{tp+e}, v{tp+2+e}")
        T.vm(f"buffer_store_dwordx4 {vr(tp,4)}, v{so}, s[16:19], s36 offen {SC}", f"h{c}")
    def signal(c):
        T.wv(f"h{c}"); T.vm(f"buffer_atomic_add v{one}, v{lead}, s[56:59], s40 offen offset:{FH + 512*c} {SC}")
    pre, post, mid = {}, {}, {}
    add(post, 0, lambda: mstamp(a))
    for c in range(4):
        add(post, 4 * c + 4, lambda c=c: recs(c))
        if c: add(mid, SIG[c - 1], lambda c=c: signal(c - 1))
        if c < 3: add(mid, (4 * c + 4, 3), lambda c=c: epi(c))
    def duties(b):
        if b == SIG3: signal(3)
        for c in range(4):
            if TRY[c] >= 16 and CHK[c] == b: h_check(a, c, 20, cs)
        for c in range(4):
            if TRY[c] == b: h_try(a, c, 20)
        for s in WISSUE[b]: h_issue(T, s, 8, 16)
    def bar(b):
        if WISSUE[b]: h_arm(T, WISSUE[b][0], 8)
        T.wv(b); T.e("s_barrier")
        if GSTW in ("w", "y") or os.environ.get("JIT"): mstamp(a, True)
    win_compute(T, 1, rd, acc, False, FR, pre, post, mid)
    mstamp(a)
    T.e(f"s_setprio {LPRIO}")
    T.wl("r"); duties(16)
    b0 = 17
    if env("CUT", 0): epi(3, lambda: bar(17)); duties(17); b0 = 18
    else: epi(3)
    mstamp(a)
    G3AT = env("G3AT", 29); assert SIG3 < G3AT
    for b in range(b0, 32):
        bar(b); duties(b)
        if b == G3AT: T.e(g3_setup)
    T.e("s_setprio 0")

def window_y(a):
    T = Track(a); v = VA(6)
    t = v(); t2 = v(); J = v(); G = v(); va = v(); vb = v(); xo = v(); so = v(); rb = v(2, 2); ow = v(); xr = v()
    xn = v(32, 4); FR = v(48, 4); S = v(8, 2); tp = v(8, 2)
    assert v.hi <= WVB[1], v.hi
    lo = FR + 20; ln = FR; o = FR + 8
    NB = env("NB", 3)
    w_srd(a, 1, 80)
    a.e("s_cmp_lg_u32 s60, 0"); a.e("s_cbranch_scc1 WY_1")
    wr_read(a, WAD, range(NRAW), W2S)
    a.e("s_waitcnt vmcnt(0) lgkmcnt(0)"); a.e("s_barrier")
    w1_dma(a, W1B[:NB]); a.e("s_branch WY_2")
    a.e("WY_1:")
    w1_dma(a, W1B[:NB])
    a.e(f"s_waitcnt vmcnt({2 * NB})"); a.e("s_barrier")
    a.e("WY_2:")
    mstamp(a)
    w1_dma(a, W1B[NB:])
    a.e(f"v_and_b32 v{J}, 15, v1"); a.e(f"v_lshrrev_b32 v{G}, 4, v1")
    a.e("s_and_b32 s34, s30, 1"); a.e("s_and_b32 s37, s30, 3")
    a.e("s_lshr_b32 s38, s29, 3"); a.e("s_add_u32 s38, s38, 1"); a.e("s_sub_u32 s39, 0, s38"); a.e("s_bitcmp1_b32 s29, 2"); a.e("s_cselect_b32 s38, s38, s39")
    a.e("s_lshl_b32 s48, s28, 7")
    a.e("s_cmp_lt_u32 s37, 2"); a.e("s_cselect_b32 s36, s38, 0"); a.e("s_add_u32 s36, s36, s48"); a.e("s_lshl_b32 s45, s34, 6"); a.e("s_add_u32 s36, s36, s45")
    a.e(f"v_add_u32 v{lo}, s36, v1"); a.e("s_movk_i32 s45, 2048"); a.e(f"v_cmp_gt_u32 s[46:47], s45, v{lo}"); a.e(f"v_lshlrev_b32 v{lo}, 4, v{lo}")
    lns_srd(a, 20)
    a.e("s_lshl_b32 s36, s37, 2"); a.e(f"v_add_u32 v{t}, s36, v{G}"); a.e(f"v_xor_b32 v{va}, v{t}, v{J}")
    a.e("s_add_u32 s36, s48, s38"); a.e("s_add_u32 s36, s36, 16"); a.e(f"v_add_u32 v{t}, s36, v{t}")
    rowaddr(a, vb, t, t2); a.e(f"v_lshl_add_u32 v{vb}, v{va}, 4, v{vb}"); a.e(f"v_subrev_u32 v{va}, 65536, v{vb}")
    for i in range(4): a.e(f"s_add_u32 s{40+i}, s67, {2*i}"); a.e(f"s_and_b32 s{40+i}, s{40+i}, 6"); a.e(f"s_lshl_b32 s{40+i}, s{40+i}, 7")
    a.e("s_lshl_b32 s44, s37, 10")
    a.e(f"v_lshrrev_b32 v{t}, 3, v1"); a.e(f"v_and_b32 v{xr}, 7, v1"); a.e(f"v_xor_b32 v{xr}, v{xr}, v{t}")
    a.e("s_lshl_b32 s36, s37, 3"); a.e("s_add_u32 s36, s36, s48"); a.e(f"v_add_u32 v{t}, s36, v{t}"); rowaddr(a, xo, t, t2)
    a.e("s_lshl_b32 s36, s29, 7"); a.e(f"v_lshl_add_u32 v{xo}, v{xr}, 4, v{xo}"); a.e(f"v_add_u32 v{xo}, s36, v{xo}")
    a.e(f"v_lshrrev_b32 v{t}, 1, v{G}"); a.e("s_lshl_b32 s36, s37, 1"); a.e(f"v_add_u32 v{t}, s36, v{t}"); a.e(f"v_and_b32 v{t2}, 7, v{J}"); a.e(f"v_xor_b32 v{t}, v{t}, v{t2}")
    a.e(f"v_lshlrev_b32 v{xr}, 7, v{J}"); a.e(f"v_lshl_add_u32 v{xr}, v{t}, 4, v{xr}"); a.e(f"v_and_b32 v{t}, 1, v{G}"); a.e(f"v_lshl_add_u32 v{xr}, v{t}, 3, v{xr}")
    out_addr(a, so, J, G, t)
    a.e(f"v_mov_b32 v{rb}, v2"); a.e(f"v_add_u32 v{rb+1}, {WINB}, v2")
    a.e(f"v_lshrrev_b32 v{t}, 5, v{so}"); a.e(f"v_and_b32 v{t}, 2048, v{t}"); a.e(f"v_and_b32 v{ow}, 511, v{so}"); a.e(f"v_add_u32 v{ow}, v{ow}, v{t}")
    a.e("s_lshl_b32 s36, s37, 9"); a.e(f"v_add_u32 v{ow}, s36, v{ow}")
    x3_srd(a, 12); lsrd(a, 16, oH, XSZ); lsrd(a, 24, oX1P, XSZ)
    h_rot(a, 78); h_flag(a, 84)
    a0 = a; a = Rec(); a.lab = a0.lab
    L = a.lab("lns"); D = a.lab("lnk")
    ldl = f"buffer_load_dwordx4 {vr(ln,4)}, v{lo}, s[20:23], 0 offen {SC}"
    a.e("s_mov_b32 s53, 0")
    a.e(f"{L}:")
    a.e(f"v_cmp_eq_u32 vcc, s52, v{ln+1}"); a.e(f"v_cmp_eq_u32 s[50:51], s52, v{ln+3}"); a.e("s_and_b64 vcc, vcc, s[50:51]"); a.e("s_orn2_b64 vcc, vcc, s[46:47]")
    a.e("s_cmp_eq_u64 vcc, -1"); a.e(f"s_cbranch_scc1 {D}")
    a.e(ldl); a.e("s_waitcnt vmcnt(0)")
    a.e("s_add_u32 s53, s53, 1"); a.e("s_cmp_lt_u32 s53, s61"); a.e(f"s_cbranch_scc1 {L}")
    a.e("s_mov_b32 s61, 0")
    a.e(f"{D}:")
    unpack(a, ln + 4, ln + 5, ln); unpack(a, ln + 6, ln + 7, ln + 2)
    for r in (ln + 5, ln + 7): a.e(f"v_cndmask_b32 v{r}, 1.0, v{r}, s[46:47]")
    a.e("s_lshl_b32 s36, s34, 10"); a.e(f"s_add_u32 s36, s36, {REC}"); a.e(f"v_add_u32 v{t}, s36, v2")
    X = a.lab("lnx"); D = a.lab("lnd")
    a.e("s_cmp_ge_u32 s37, 2"); a.e(f"s_cbranch_scc1 {X}")
    a.e(f"v_mul_f32 v{o+6}, v{ln+5}, v{ln+7}"); a.e(f"v_fma_f32 v{o}, -v{ln+6}, v{ln+5}, -v{ln+4}"); a.e(f"v_rcp_f32 v{t2}, v{o+6}")
    a.e(f"v_mov_b32 v{o+7}, v{o+6}"); a.e(f"v_mov_b32 v{o+1}, v{o}")
    a.e(f"v_mul_f32 v{o+2}, {f32(GC1)}, v{t2}"); a.e(f"v_mul_f32 v{t2}, v{t2}, v{t2}"); a.e(f"v_mov_b32 v{o+3}, v{o+2}")
    a.e(f"v_mul_f32 v{t2}, {f32(0.044715)}, v{t2}"); a.e(f"v_mul_f32 v{o+4}, v{t2}, v{o+2}"); a.e(f"v_mov_b32 v{o+5}, v{o+4}")
    for p in range(2): a.e(f"ds_write_b128 v{t}, {vr(o+4*p,4)} offset:{2048*p}")
    a.e(f"s_branch {D}")
    a.e(f"{X}:")
    a.e(f"v_rcp_f32 v{o}, v{ln+5}"); a.e(f"v_mul_f32 v{o+2}, -v{ln+4}, v{o}"); a.e(f"v_mov_b32 v{o+1}, v{o}"); a.e(f"v_mov_b32 v{o+3}, v{o+2}")
    a.e(f"ds_write_b128 v{t}, {vr(o,4)} offset:{LNSL-REC}")
    a.e(f"{D}:")
    a.e(f"v_lshlrev_b32 v{t2}, 4, v{J}"); a.e(f"v_add_u32 v{t2}, {LNSL}, v{t2}")
    lns = a.l; a = a0
    def issue(s):
        if s >= 16: return h_issue(T, s, 78, 16)
        c, i = s // 4, s % 4
        if getattr(T, "armed", None) != s: arm(s)
        for mt in range(2):
            for kh in range(2):
                if mt or kh: T.e(f"s_add_u32 m0, s44, {WSLOT[s] + kh*8192 + mt*4096 - kh*1024}")
                T.vm(f"buffer_load_dwordx4 v{(va, vb)[mt]}, s[12:15], s49 offen offset:{1024*kh} {SC} lds", s)
                for x in T.fill[:5]: T.e(x)
                T.fill = T.fill[5:]
        if s == 3: T.e(f"v_mov_b32 v{va}, v{vb}"); T.e(f"v_add_u32 v{vb}, 65536, v{vb}")
    def arm(s):
        if s >= 16: return h_arm(T, s, 78)
        T.e(f"s_add_u32 m0, s44, {WSLOT[s]}"); T.e(f"s_add_u32 s49, s{40+s%4}, {max(0, s//4*2-1)*65536}"); T.armed = s
    def resld():
        for c in range(4):
            T.e(f"s_add_u32 m0, s44, {4096*c}"); T.e(f"s_mov_b32 s36, {c*131072}")
            T.vm(f"buffer_load_dwordx4 v{xo}, s[12:15], s36 offen {SC} lds", "x")
    def res1(c):
        for mt in range(2):
            a.e(f"ds_read_b64 {vr(xn+8*c+4*mt+2,2)}, v{xr} offset:{4096*c + 2048*mt}"); a.e(f"ds_read_b128 {vr(o+4*mt,4)}, v{t2} offset:{512*c + 256*mt}")
    def res2(c):
        b = Rec(); b.e("s_waitcnt lgkmcnt(0)")
        for mt in range(2):
            X = xn + 8 * c + 4 * mt
            for e in range(2): unpack(b, X + 2 * e, X + 2 * e + 1, X + 2 + e)
            for e in range(2): b.e(f"v_pk_fma_f32 {vr(X+2*e,2)}, {vr(X+2*e,2)}, {vr(o+4*mt,2)}, {vr(o+4*mt+2,2)}")
        T.fill = b.l
    RESAT = env("RESAT", 4); RESUSE = env("RESUSE", 7); T.fill = []
    a.e("s_waitcnt vmcnt(0) lgkmcnt(0)"); a.e("s_barrier")
    a.e(f"s_setprio {LPRIO}")
    mstamp(a)
    arm(0)
    a.e("s_barrier")
    mstamp(a)
    T.vm(ldl, "l")
    LAT = env("LAT", 2)
    for s in WISSUE["F"][:LAT]: issue(s)
    T.wv("l")
    for x in lns: a.e(x)
    for s in WISSUE["F"][LAT:]: issue(s)
    for b in range(16):
        if b == 4: a.e("s_waitcnt lgkmcnt(0)")
        if WISSUE[b]: arm(WISSUE[b][0])
        if b == RESUSE: T.wv("x")
        T.wv(b); T.e("s_barrier")
        if GSTW in ("w", "y") or os.environ.get("JIT"): mstamp(a, True)
        for c in range(4):
            if TRY[c] < 16 and CHK[c] == b: h_check(a, c, 84, tp)
            assert TRY[c] >= 16 or (CHK[c] < 16 and TRY[c] >= RESUSE + 5)
        if b == CHK[0]: mstamp(a)
        for c in range(4):
            if TRY[c] == b: h_try(a, c, 84)
        if 1 <= b - RESUSE < 5: res2(b - RESUSE - 1)
        for s in WISSUE[b]: issue(s)
        assert not T.fill
        if 0 <= b - RESUSE < 4: res1(b - RESUSE)
        if b == RESAT: resld()
        for k in range(2):
            if W3AT[k] == b: w3_stage(a, k); T.vq += ["w"] * 7
    a.e("s_setprio 0")
    def rd(d, s, k, q):
        x = WSLOT[s]; hi = x >= WINB
        return f"ds_read_b128 {vr(d,4)}, v{rb+hi} offset:{x - WINB*hi + 4096*q + 1024*k}"
    acc = lambda c: xn + 8 * c
    def epi(c):
        X = acc(c)
        for i in range(4): T.e(f"v_cvt_pk_bf16_f32 v{X+i}, v{X+2*i}, v{X+2*i+1}")
        T.e(f"s_add_u32 s36, s39, {c*131072}")
        for e in range(2): T.e(f"v_permlane16_swap_b32 v{X+e}, v{X+2+e}")
    def ost(c):
        T.e(f"s_add_u32 s36, s39, {c*131072}"); T.vm(f"buffer_store_dwordx4 {vr(acc(c),4)}, v{so}, s[24:27], s36 offen {SC}", "o")
    def own(c): T.ds(f"ds_write_b128 v{ow}, {vr(acc(c),4)} offset:{4096*c}", "ow")
    def stats(c):
        X = tp; pp, qq = acc(c) + 4, acc(c) + 6
        for i in range(4): unpack(T, X + 2 * i, X + 2 * i + 1, acc(c) + i)
        T.e(f"v_pk_add_f32 {vr(pp,2)}, {vr(X,2)}, {vr(X+2,2)}"); T.e(f"v_pk_mul_f32 {vr(qq,2)}, {vr(X,2)}, {vr(X,2)}")
        for i in range(1, 4):
            if i > 1: T.e(f"v_pk_add_f32 {vr(pp,2)}, {vr(pp,2)}, {vr(X+2*i,2)}")
            T.e(f"v_pk_fma_f32 {vr(qq,2)}, {vr(X+2*i,2)}, {vr(X+2*i,2)}, {vr(qq,2)}")
        T.e(f"v_add_f32 v{S+2*c}, v{pp}, v{pp+1}"); T.e(f"v_add_f32 v{S+2*c+1}, v{qq}, v{qq+1}")
    pre, post, mid = {}, {}, {}
    add(post, 16, lambda: mstamp(a))
    for s in range(16, 32): add(pre, s, lambda s=s: T.wv(s))
    SLATE = env("SLATE", 1)
    for c in range(3):
        add(mid, (20 + 4 * c, 3), lambda c=c: (epi(c), SLATE or stats(c)))
        add(mid, (OST, 1 + c), lambda c=c: ost(c))
    add(mid, (32, 0), lambda: [own(c) for c in range(3)])
    win_compute(T, 2, rd, acc, True, FR, pre, post, mid)
    mstamp(a)
    T.e(f"s_setprio {env('LPRIO3', 0)}")
    epi(3); ost(3); own(3); T.wl("ow")
    T.e("s_barrier")
    mstamp(a)
    def rest(a_, which):
        T.a = a_
        for c in range(0 if SLATE else 3, 4): stats(c)
        T.e("s_and_b32 s36, s30, 3"); T.e("s_lshl_b32 s36, s36, 10"); T.e(f"s_add_u32 s36, s36, {REC}"); T.e(f"v_lshlrev_b32 v{t}, 3, v1"); T.e(f"v_add_u32 v{t}, s36, v{t}")
        for k in range(2): T.e(f"v_permlane32_swap_b32 v{S+k}, v{S+2+k}"); T.e(f"v_permlane32_swap_b32 v{S+4+k}, v{S+6+k}")
        T.e(f"v_pk_add_f32 {vr(S,2)}, {vr(S,2)}, {vr(S+2,2)}"); T.e(f"v_pk_add_f32 {vr(S+4,2)}, {vr(S+4,2)}, {vr(S+6,2)}")
        for k in range(2): T.e(f"ds_write_b64 v{t}, {vr(S+4*k,2)} offset:{512*k}")
    assert xn >= 18 and t == 6
    G2S.append(lambda: call_issue(a, rest, 2))

C2R = 230; SO3 = 254
def g_compute(a, which):
    c = CFG[which]
    WM, WN, MT, NT, KBT, NS, NA, NW, TN16, STB, WB = [c[k] for k in "WM WN MT NT KBT NS NA NW TN16 STB WB".split()]
    v = VA(6, skip=which == 4); nm = f"G{which}"
    lane = 1; l16 = 2
    t = v(); t2 = v(); pt = v(4, 2)
    NTILE = 29 if which != 4 else 33
    a0 = v(); w0 = v(4, 1); aa = v(); wa = v(4, 1); J = v(); G = v(); NF = MT + NT
    if which == 3: acc = v(MT * NT * 4, 4); fX = v(NF * 4, 4); fY = v(NF * 4, 4); tmp = v()
    else: fX = v(NF * 4, 4); sel = v(8, 4); xf = v(); xo = v(); oa = v(2, 2); acc = v(MT * NT * 4, 4); fY = v(NF * 4, 4)
    assert v.hi <= C2R
    def A_(mt, nt): return acc + 4 * (mt * NT + nt)
    s = Rec()
    s.e("s_lshr_b32 s34, s30, 1"); s.e("s_and_b32 s35, s30, 1")
    s.e(f"v_and_b32 v{J}, 15, v{lane}"); s.e(f"v_lshrrev_b32 v{G}, 4, v{lane}")
    s.e(f"s_mul_i32 s37, s34, {MT}")
    s.e(f"s_mul_i32 s38, s{NTILE}, {TN16}"); s.e(f"s_mul_i32 s36, s35, {NT}"); s.e("s_add_u32 s38, s38, s36")
    if which == 4:
        s.e("s_lshr_b32 s36, s38, 1"); spread(s, 39, 36); s.e("s_lshl_b32 s36, s37, 16"); s.e("s_add_u32 s39, s39, s36")
    s.e(f"s_mul_i32 s36, s34, {MT*2048}"); s.e(f"v_add_u32 v{a0}, s36, v{l16}")
    nwr, wpos = w_bases(s, which, w0, 35, NT, t, t2)
    s.e("s_mov_b32 s42, 0"); s.e("s_mov_b32 s43, 0"); s.e("s_mov_b32 s48, 0")
    s.e(f"v_mov_b32 v{aa}, v{a0}")
    for i in range(nwr): s.e(f"v_mov_b32 v{wa+i}, v{w0+i}")
    if which == 3: window_x(a, "\n".join(s.l))
    else:
        for x in s.l: a.e(x)
    def reads(F, kk):
        o = []
        for mt in range(MT): o.append(f"ds_read_b128 {vr(F+4*mt,4)}, v{aa} offset:{mt*2048+kk*1024}")
        for nt in range(NT):
            for h in range(2):
                r, imm = wpos(nt, kk, h)
                o.append(f"ds_read_b64_tr_b16 {vr(F+4*(MT+nt)+2*h,2)}, v{wa+r} offset:{imm}")
        return o
    def mix(rd, ex):
        rd = list(rd)
        if len(ex) > 4: return rd + list(ex)
        for i, x in enumerate(ex): rd.insert(min(len(rd), (i + 1) * len(rd) // (len(ex) + 1)), x)
        return rd
    def mfmas(F, rd, tail=(), zero=False):
        n = MT * NT; k = 0; tot = len(rd); span = max(1, n * 3 // 4); done = 0; tail = list(tail); per = -(-len(tail) // max(1, n - span))
        for nt, mt in [(nt, mt if nt % 2 == 0 else MT - 1 - mt) for nt in range(NT) for mt in range(MT)]:
            cc = acc + 4 * (mt * NT + nt)
            a.e(f"v_mfma_f32_16x16x32_bf16 {vr(cc,4)}, {vr(F+4*(MT+nt),4)}, {vr(F+4*mt,4)}, {0 if zero else vr(cc,4)}")
            k += 1
            while rd and done < (tot * k + span - 1) // span: a.e(rd.pop(0)); done += 1
            if k >= span and k < n:
                for _ in range(min(per, len(tail))): a.e(tail.pop(0))
        assert not rd and not tail
    def stage(ex=(), ey=(), lim=NS-1, late=False, zero=False):
        if str(which) in os.environ.get("GST", "") or os.environ.get("JIT"): mstamp(a, True)
        a.e("s_waitcnt lgkmcnt(0)")
        book = ["s_add_u32 s42, s42, 16384", f"s_cmp_eq_u32 s42, {NA*16384}", "s_cselect_b32 s42, 0, s42",
                f"s_add_u32 s48, s48, {STB}", f"s_cmp_eq_u32 s48, {NW*STB}", "s_cselect_b32 s48, 0, s48", f"v_add_u32 v{aa}, s42, v{a0}"]
        book += [f"v_add_u32 v{wa+i}, s48, v{w0+i}" for i in range(nwr)]
        mfmas(fX, mix(reads(fY, 1), ex), book, zero)
        if late:
            a.e("s_waitcnt lgkmcnt(0)"); mfmas(fY, [], ["s_add_u32 s43, s43, 1"]); a.e("s_barrier")
            for x in reads(fX, 0): a.e(x)
            return
        a.e("s_waitcnt lgkmcnt(0)"); a.e("s_barrier")
        mfmas(fY, mix(reads(fX, 0), ey), ["s_add_u32 s43, s43, 1", f"s_cmp_lt_u32 s43, {lim}"])
    a.e("s_waitcnt lgkmcnt(0)"); a.e("s_barrier")
    mstamp(a)
    for x in reads(fX, 0): a.e(x)
    if which == 4:
        def st2(j): return [f"s_add_u32 s36, s46, {j*224*1024}\nbuffer_store_dwordx4 {vr(C2R+4*j,4)}, v{l16}, s[16:19], s36 offen {SC}",
                            f"s_add_u32 s36, s47, {j*224*1024}\nbuffer_store_dwordx2 {vr(C2R+16+2*j,2)}, v{SO3}, s[16:19], s36 offen {SC}"]
        stage(st2(0), st2(1), zero=True); stage(st2(2), st2(3)); publish(a, ST_G3B, pt, wait=8)
        RX = [RXA, RXA + 8, RYF, 216]
        b0 = Rec()
        x3_srd(b0, 84); lsrd(b0, 88, oX1P, XSZ)
        b0.e("s_lshl_b32 s40, s31, 17"); b0.e("s_add_u32 s40, s40, s39"); b0.e("s_xor_b32 s41, s40, 0x20000")
        rowaddr(b0, xo, J, oa); b0.e(f"v_lshl_add_u32 v{xo}, v{G}, 4, v{xo}")
        b0.e("s_lshl3_add_u32 s46, s28, s37"); b0.e("s_lshl1_add_u32 s46, s31, s46")
        b0.e("s_lshl_b32 s49, s46, 16"); b0.e("s_lshl_b32 s47, s38, 5"); b0.e("s_add_u32 s49, s49, s47"); b0.e("s_add_u32 s44, s40, 65536")
        for i in range(2):
            if i: b0.e("s_add_u32 s49, s49, 65536")
            for p in range(2):
                b0.e(f"buffer_load_dwordx4 {vr(RX[2*i+p],4)}, v{xo}, s[84:87], s49 offen offset:{p*64} {SC}")
                b0.e(f"buffer_load_dwordx4 {vr(RX[2*i+p]+4,4)}, v{l16}, s[88:91], s{(40, 44)[i]} offen offset:{p*1024} {SC}")
        b1 = Rec(); r_pre(b1)
        b2 = Rec()
        b2.e(f"s_load_dwordx2 s[6:7], s[0:1], {D_OUT}")
        b2.e(f"v_lshrrev_b32 v{t}, 2, v{J}"); b2.e(f"v_cmp_eq_u32 vcc, v{t}, v{G}"); b2.e(f"v_and_b32 v{t}, 1, v{J}"); b2.e(f"v_lshlrev_b32 v{t}, 4, v{t}")
        b2.e(f"v_mov_b32 v{t2}, 0x3f80"); b2.e(f"v_lshlrev_b32 v{t}, v{t}, v{t2}"); b2.e(f"v_cndmask_b32 v{t}, 0, v{t}, vcc")
        for i in (2, 3, 4, 5): b2.e(f"v_mov_b32 v{sel+i}, 0")
        b2.e(f"v_and_b32 v{t2}, 2, v{J}"); b2.e(f"v_cmp_eq_u32 vcc, 0, v{t2}")
        b2.e(f"v_cndmask_b32 v{sel}, 0, v{t}, vcc"); b2.e(f"v_cndmask_b32 v{sel+1}, v{t}, v{sel+2}, vcc")
        b2.e(f"v_mov_b32 v{sel+6}, v{sel}"); b2.e(f"v_mov_b32 v{sel+7}, v{sel+1}")
        b2.e("s_mov_b32 s45, 0xffff0000"); b2.e(f"v_mov_b32 v{xf}, 0x10000")
        b3 = Rec()
        p1_off(b3, 36, 49); b3.e(f"s_add_u32 s49, s55, {oH - oSM}"); b3.e("s_cmp_le_u32 s31, s60\ns_cselect_b32 s36, s49, s36")
        b3.e("s_add_u32 s24, s4, s36\ns_addc_u32 s25, s5, 0"); b3.e(f"s_mov_b32 s26, {XSZ}"); b3.e("s_mov_b32 s27, 0x20000")
        b3.srd(20, 6, 4 * MB)
        b3.e("s_lshl_b32 s46, s46, 15"); b3.e("s_add_u32 s46, s46, s47"); b3.e(f"s_add_u32 s47, s46, {16*2048}")
        b3.e(f"v_and_b32 v{oa+1}, 1, v{G}"); b3.e(f"v_lshlrev_b32 v{oa}, 11, v{J}"); b3.e(f"v_lshl_add_u32 v{oa}, v{oa+1}, 5, v{oa}")
        b3.e(f"v_lshrrev_b32 v{oa+1}, 1, v{G}"); b3.e(f"v_lshl_add_u32 v{oa}, v{oa+1}, 4, v{oa}")
        b3.e(f"v_cmp_gt_u32 s[50:51], 8, v{J}")
        b3.e(f"v_lshrrev_b32 v{oa+1}, 3, v{J}"); b3.e(f"v_mul_u32_u24 v{oa+1}, {8*2048 - 64}, v{oa+1}"); b3.e(f"v_sub_u32 v{oa}, v{oa}, v{oa+1}")
        b3.e(f"v_add_u32 v{oa+1}, {8*2048}, v{oa}")
        stage(b0.l, b1.l); stage(b2.l, b3.l)
        publish(a, ST_G3, pt)
        def addp(k, R):
            for e in range(2): a.e(f"v_mfma_f32_16x16x32_bf16 {vr(A_(k>>1, 2*(k&1)+e),4)}, {vr(sel+4*e,4)}, {vr(R,4)}, {vr(A_(k>>1, 2*(k&1)+e),4)}")
        for h in range(2):
            for k in range(4): addp(k, RX[k] + 4 * h)
    else: stage(late=True, zero=True); mstamp(a)
    L = a.lab("mm"); a.e(f"{L}:")
    stage()
    a.e(f"s_cbranch_scc1 {L}")
    a.e("s_waitcnt lgkmcnt(0)")
    if which == 4:
        def mm(F, mts, rd=(), n0=0, n1=8):
            rd = list(rd)
            for nt, mt in [(nt, mts[i ^ (nt & 1)]) for nt in range(NT) for i in range(2)][n0:n1]:
                a.e(f"v_mfma_f32_16x16x32_bf16 {vr(A_(mt,nt),4)}, {vr(F+4*(MT+nt),4)}, {vr(F+4*mt,4)}, {vr(A_(mt,nt),4)}")
                for x in rd[:2]: a.e(x)
                rd = rd[2:]
        def out(mt, so_):
            if mt & 1: a.e(f"s_add_u32 s36, s{so_}, 65536")
            for p in range(2):
                B = A_(mt, 2 * p)
                for e in range(4): a.e(f"v_and_or_b32 v{B+2*e}, v{B+2*e}, s45, v{xf}")
                for e in range(4): a.e(f"v_cvt_pk_bf16_f32 v{B+e}, v{B+2*e}, v{B+2*e+1}")
                a.e(f"buffer_store_dwordx4 {vr(B,4)}, v{l16}, s[24:27], s{36 if mt & 1 else so_} offen offset:{p*1024} {SC}")
        r = reads(fY, 1)
        mm(fX, (2, 3), r[2:] + r[:2]); mm(fX, (0, 1), n1=4); a.e("s_waitcnt lgkmcnt(0)")
        mm(fY, (2, 3)); mm(fX, (0, 1), n0=4)
        out(2, 41); out(3, 41)
        mm(fY, (0, 1))
        mstamp(a)
        a.e("s_cmp_eq_u32 s60, 1"); a.e("s_cbranch_scc1 G4_last")
        out(0, 40); out(1, 40)
        a.e("s_barrier")
        mstamp(a)
        a.e("s_branch NEXT")
        a.e("G4_last:")
        PX = fX
        data_wait(a, [f"buffer_load_dwordx4 {vr(PX+4*k,4)}, v{l16}, s[24:27], s{(40, 44)[k>>1]} offen offset:{(k&1)*1024} {SC}" for k in range(4)],
                  list(range(PX, PX + 16)), pt, nap=env("NAPF", 1))
        mstamp(a)
        for k in range(4): addp(k, PX + 4 * k)
        for k in range(4):
            B = A_(k >> 1, 2 * (k & 1))
            for e in range(4): a.e(f"v_cvt_pk_bf16_f32 v{B+e}, v{B+2*e}, v{B+2*e+1}")
            for e in range(2): a.e(f"v_permlane16_swap_b32 v{B+e}, v{B+2+e}")
            if k & 1:
                X, Y_, T = B - 8, B, B + 4
                for e in range(4): a.e(f"v_cndmask_b32 v{T+e}, v{X+e}, v{Y_+e}, s[50:51]")
                for e in range(4): a.e(f"v_mov_b32_dpp v{X+4+e}, v{T+e} row_ror:8 row_mask:0xf bank_mask:0xf")
                for e in range(4): a.e(f"v_cndmask_b32 v{X+e}, v{X+4+e}, v{X+e}, s[50:51]"); a.e(f"v_cndmask_b32 v{Y_+e}, v{Y_+e}, v{X+4+e}, s[50:51]")
                a.e(f"buffer_store_dwordx4 {vr(X,4)}, v{oa}, s[20:23], s{46+(k>>1)} offen {SC}")
                a.e(f"buffer_store_dwordx4 {vr(Y_,4)}, v{oa+1}, s[20:23], s{46+(k>>1)} offen {SC}")
        a.e("s_branch K_fin")
        return
    mfmas(fX, reads(fY, 1))
    a.e("s_waitcnt lgkmcnt(0)")
    a.e("s_barrier")
    b = Rec()
    if which == 3:
        so = SO3; cs = fX; lns = fX + 4 * NT
        b.e(f"s_mul_i32 s36, s35, {NT*64}"); b.e(f"s_add_u32 s36, s36, {CSO[which]}"); b.e(f"v_lshlrev_b32 v{t}, 4, v{G}"); b.e(f"v_add_u32 v{t}, s36, v{t}")
        for nt in range(NT): b.e(f"ds_read_b128 {vr(cs+4*nt,4)}, v{t} offset:{nt*64}")
        b.e(f"s_lshl_b32 s36, s34, 9"); b.e(f"s_add_u32 s36, s36, {AUX+1024}")
        b.e(f"v_lshlrev_b32 v{t2}, 3, v{J}"); b.e(f"v_add_u32 v{t2}, s36, v{t2}")
        for mt in range(MT): b.e(f"ds_read_b64 {vr(lns+2*mt,2)}, v{t2} offset:{mt*128}")
        lsrd(b, 16, oH2, H2SZ)
        b.e(f"s_mul_i32 s39, s37, {224*1024}")
        b.e("s_mul_i32 s40, s29, 7"); b.e("s_lshl2_add_u32 s41, s35, s40")
        for P in range(4):
            b.e(f"s_add_u32 s36, s{41 if P < 3 else 40}, {P}"); spread(b, 44 + P, 36); b.e(f"s_add_u32 s{44+P}, s{44+P}, s39")
        b.e("s_lshl_b32 s36, s35, 9"); b.e("s_add_u32 s47, s47, s36")
        b.e("s_lshl_b32 s36, s37, 1"); b.e("s_add_u32 s36, s36, s35"); b.e("s_lshl2_add_u32 s36, s31, s36"); b.e("s_lshl_b32 s36, s36, 10")
        b.e(f"v_add_u32 v{a0}, s36, v{l16}"); b.e(f"v_xor_b32 v{aa}, 4096, v{a0}")
        b.e(f"v_lshrrev_b32 v{so}, 1, v{G}"); b.e(f"v_lshlrev_b32 v{so}, 8, v{so}"); b.e(f"v_lshl_add_u32 v{so}, v{J}, 4, v{so}")
        b.e(f"v_and_b32 v{tmp}, 1, v{G}"); b.e(f"v_lshl_add_u32 v{so}, v{tmp}, 3, v{so}")
    mfmas(fY, b.l)
    mstamp(a)
    if which == 3:
        AB = fY + 4
        def consts():
            for mt in range(MT):
                r = lns + 2 * mt + 1
                a.e(f"v_mul_f32 v{AB+2*mt}, {f32(GC1)}, v{r}"); a.e(f"v_mul_f32 v{AB+2*mt+1}, v{r}, v{r}")
                a.e(f"v_mul_f32 v{AB+2*mt+1}, v{AB+2*mt+1}, v{AB+2*mt}"); a.e(f"v_mul_f32 v{AB+2*mt+1}, {f32(0.044715)}, v{AB+2*mt+1}")
                a.e(f"v_rcp_f32 v{r}, v{r}")
        tp = fY + 12
        def act(tiles):
            P_ = [(A_(mt, nt) + 2 * h, tp + 4 * i + 2 * h, vr(lns + 2 * mt, 2), vr(AB + 2 * mt, 2), cs + 4 * nt + 2 * h) for i, (mt, nt) in enumerate(tiles) for h in range(2)]
            for x, u, L_, K_, c_ in P_: a.e(f"v_pk_fma_f32 {vr(x,2)}, {L_}, {vr(c_,2)}, {vr(x,2)} op_sel_hi:[0,1,1] neg_lo:[1,0,0] neg_hi:[1,0,0]")
            for x, u, L_, K_, c_ in P_: a.e(f"v_pk_mul_f32 {vr(u,2)}, {vr(x,2)}, {vr(x,2)}")
            for x, u, L_, K_, c_ in P_: a.e(f"v_pk_fma_f32 {vr(u,2)}, {vr(u,2)}, {K_}, {K_} op_sel:[0,1,0] op_sel_hi:[1,1,0]")
            for x, u, L_, K_, c_ in P_: a.e(f"v_pk_mul_f32 {vr(u,2)}, {vr(u,2)}, {vr(x,2)}")
            for i in range(8): a.e(f"v_exp_f32 v{tp+i}, v{tp+i}")
            for x, u, L_, K_, c_ in P_: a.e(f"v_pk_fma_f32 {vr(u,2)}, {vr(u,2)}, {L_}, {L_} op_sel:[0,1,1] op_sel_hi:[1,1,1]")
            for i in range(8): a.e(f"v_rcp_f32 v{tp+i}, v{tp+i}")
            for x, u, L_, K_, c_ in P_: a.e(f"v_pk_mul_f32 {vr(x,2)}, {vr(x,2)}, {vr(u,2)}")
        def group(mt, nts, dst=None):
            if len(nts) == 2: act([(mt, nt) for nt in nts])
            elif mt % 2 == 0: act([(mt, nts[0]), (mt + 1, nts[0])])
            P = nts[0] >> 1; B = A_(mt, nts[0]); D = B if dst is None else dst
            for k in range(2 * len(nts)): a.e(f"v_cvt_pk_bf16_f32 v{D+k}, v{B+2*k}, v{B+2*k+1}")
            return [f"s_add_u32 s36, s{44+P}, {mt*224*1024}", f"buffer_store_dwordx4 {vr(B,4)}, v{l16}, s[16:19], s36 offen {SC}"]
        def body():
            gs = [(0, 1), (2, 3), (4, 5), (6,)]
            k = 0; pend = []; sent = 0
            for gi_, g_ in enumerate(gs):
                for mt in range(MT):
                    if k == C0PUB: publish(a, ST_G3A, pt, wait=sent - 4); mstamp(a)
                    st_ = group(mt, g_, None if gi_ < 2 else C2R + 4 * mt if gi_ == 2 else C2R + 16 + 2 * mt); k += 1
                    if gi_ < 3:
                        a.e(f"ds_write_b128 v{(a0, aa)[mt>>1]}, {vr(A_(mt, g_[0]) if gi_ < 2 else C2R + 4 * mt, 4)} offset:{gi_*16384 + (mt&1)*2048}")
                    if gi_ < 2: pend.append(st_)
                    n = len(pend) if (k <= 4 or k == 16) else 0 if k <= STQ else min(1, len(pend))
                    for _ in range(n):
                        for x in pend.pop(0): a.e(x)
                        sent += 1
            a.e("s_waitcnt lgkmcnt(0)")
        a.e("s_waitcnt lgkmcnt(0)")
        consts()
        body()
        mstamp(a)

def k_mega(a):
    nm = KNAME; a.begin_kernel(nm)
    a.e("s_cmp_ge_u32 s2, 256"); a.e("s_cbranch_scc1 K_end")
    a.e(f"s_load_dwordx8 s[8:15], s[0:1], {A_K}"); a.e(f"s_load_dwordx2 s[6:7], s[0:1], {A_Q}"); a.e(f"s_load_dwordx8 s[68:75], s[0:1], {B_W1}")
    a.e(f"s_load_dwordx2 s[4:5], s[0:1], {D_WS}"); a.e(f"s_load_dwordx2 s[84:85], s[0:1], {D_DBG}"); a.e("s_memrealtime s[46:47]")
    a.e(f"s_load_dwordx2 s[76:77], s[0:1], {A_SSMD}")
    a.e("v_lshrrev_b32 v1, 6, v0"); a.e("v_readfirstlane_b32 s30, v1")
    a.e("s_getpc_b64 s[48:49]"); a.e("K_pc:")
    a.e("s_lshr_b32 s36, s2, 3"); a.e("s_lshl_b32 s36, s36, 12")
    a.e("v_lshlrev_b32 v252, 3, v0"); a.e("v_add_u32 v252, s36, v252")
    a.e("v_cmp_gt_u32 vcc, K_end-K_pc-8, v252"); a.e("s_and_saveexec_b64 s[36:37], vcc"); a.e("s_cbranch_execz K_3")
    a.e("v_mov_b32 v253, s49"); a.e("v_add_co_u32 v252, vcc, s48, v252"); a.e("v_addc_co_u32 v253, vcc, 0, v253, vcc")
    a.e("global_load_dword v250, v[252:253], off")
    a.e("K_3:"); a.e("s_mov_b64 exec, -1")
    front_loads(a)
    a.e("v_and_b32 v1, 63, v0"); a.e("v_lshlrev_b32 v2, 4, v1"); a.e("v_lshlrev_b32 v3, 2, v1")
    a.e("s_and_b32 s32, s2, 7"); a.e("s_lshr_b32 s33, s2, 3")
    a.e("s_and_b32 s28, s32, 2"); a.e("s_lshr_b32 s34, s32, 2"); a.e("s_or_b32 s28, s28, s34")
    a.e("s_lshl_b32 s28, s28, 2"); a.e("s_and_b32 s34, s33, 3"); a.e("s_add_u32 s28, s28, s34")
    a.e("s_and_b32 s31, s32, 1"); a.e("s_lshr_b32 s33, s33, 2")
    a.e("s_lshl_b32 s29, s31, 3"); a.e("s_add_u32 s29, s29, s33")
    a.e(f"s_and_b32 s67, s33, {env('RMASK', 4)}")
    a.e("s_mov_b32 s60, 0"); a.e("s_mov_b32 s61, 40000"); a.e("s_mov_b32 s52, 0")
    a.e("s_mov_b32 s55, 0"); a.e("s_mov_b32 s92, 0"); a.e("s_mov_b32 s93, 0"); a.e("s_mov_b32 s94, 0")
    a.srd(56, 4, X3G)
    a.e(f"s_add_u32 s62, s4, {LB0}"); a.e("s_addc_u32 s63, s5, 0")
    if STAMP:
        a.e("s_mov_b32 s66, 1"); a.e("v_mov_b32 v4, -1"); a.e("v_mov_b32 v5, 0"); a.e("s_mov_b32 s95, 0"); a.e("v_writelane_b32 v4, s46, 0")
    mstamp(a)
    front_a(a); mstamp(a)
    a.e("s_cmp_ge_u32 s30, 4"); a.e("s_cbranch_scc1 FR_b")
    front_conv(a)
    mstamp(a)
    a.e("s_waitcnt vmcnt(4)")
    a.e("s_branch FR_end")
    a.e("FR_b:")
    front_b(a)
    mstamp(a)
    a.e("FR_end:")
    r_stage(a, True)
    a.e("s_waitcnt lgkmcnt(0)"); a.e("s_barrier")
    mstamp(a)
    a.e("LAYER:")
    r_stage(a)
    mstamp(a)
    for w in (3, 4): g_compute(a, w)
    a.e("LOADERS:")
    window_y(a)
    a.e("s_cmp_ge_u32 s30, 6"); a.e("s_cbranch_scc1 WLOAD")
    for w in (3, 4): a_loader(a, w)
    a.e("s_branch NEXT")
    a.e("WLOAD:")
    w_loader(a, 3); w_setup(a, 4); w_loader(a, 4)
    a.e("NEXT:")
    a.e("s_setprio 0")
    a.e("s_add_u32 s60, s60, 1"); a.e(f"s_add_u32 s55, s55, {LSTR}")
    a.e(f"s_add_u32 s62, s62, {LSTR}"); a.e("s_addc_u32 s63, s63, 0")
    a.e("s_branch LAYER")
    a.e("K_fin:")
    if STAMP:
        a.e("s_waitcnt vmcnt(0)")
        mstamp(a)
        a.srd(96, 4, 16 * MB, off=200 * MB)
        a.e("s_lshl_b32 s66, s2, 3"); a.e("s_add_u32 s66, s66, s30"); a.e("s_lshl_b32 s66, s66, 8")
        a.e("v_writelane_b32 v4, s95, 63")
        a.e("buffer_store_dword v4, v3, s[96:99], s66 offen")
        a.e("s_add_u32 s66, s66, 0x100000"); a.e("buffer_store_dword v5, v3, s[96:99], s66 offen")
    a.e("s_endpgm")
    emit_subs(a)
    a.e("K_end:")
    a.end_kernel(nm, 256)
    a.launches.append(f"; @launch grid=(256,1,1) block=(512,1,1) lds={LDS_TOTAL}")

HEADER = open("interleave_layers__ssm_conv_h3__mixer_s_mlp__prompt.s.ref").read().split("; Override launch")[0]
DOC = """; One persistent kernel, 256 workgroups x 8 waves (one per CU), generated by dev/gen26.py.
"""
def main(out):
    a = Asm()
    k_mega(a)
    notes = {
        "K_pc:": "each workgroup reads 4 KB of this kernel's code so that later instruction fetches are served on chip",
        "KV_t0:": "k / v / tap loads of the u^T tile (64 times x 128 channels); workgroup 0 has posted the launch tag (a clock value) in d_debug",
        "HB_1:": "u^T tile out, arrival counters initialised to the tag, W2 slice into registers, shifted filter copies into LDS",
        "CV_w:": "long causal convolution as Toeplitz MFMAs, one channel per wave",
        "FR_b:": "waves 4-7 beside the convolution: memory-locality vote (timed loads, layout choice only), weight column sums, weight loads",
        "LAYER:": "row stage: residual sums, LayerNorm chain, x + LN(x)*y for 8 rows per workgroup",
        "LOADERS:": "waves 4-7: loads of G1, MFMAs of G2; then waves 4,5: activation tiles by LDS-DMA (after the producers' counters are complete)",
        "WLOAD:": "waves 6,7: weight tiles by LDS-DMA in their original layout (read back with transposing LDS loads)",
        "G4_last:": "last layer: the two K halves exchange half tiles, add the residuals and write the output",
    }
    o = []
    for l in a.lines:
        if l.strip() in notes: o.append("; ---- " + notes[l.strip()])
        if l.strip().startswith("s_sleep"): l += "    ; back-off inside a wait loop"
        o.append(l)
    a.lines = o
    open(out, "w").write(a.text(HEADER + DOC))
    print("nops added:", a.nops_added, "| slots", [WSLOT[s] // KB for s in range(32)], "| issue", {k: x for k, x in WISSUE.items() if x})

if __name__ == "__main__":
    main(sys.argv[1] if len(sys.argv) > 1 else "interleave_layers__ssm_conv_h3__mixer_s_mlp__prompt.s")
```

```python
import sys, os, math, struct
sys.path.insert(0, "dev")
from asmgen import Asm

KNAME = "interleave_layers__ssm_conv_h3__mixer_s_mlp__prompt_kernel"
MB = 1 << 20; KB = 1024
UT, P1B = 24 * MB, 28 * MB; Y = UT
CSP3 = 20 * MB + 128 * 1024
A_Q, A_K, A_V, A_SH, A_SSMK, A_SSMD, B_X, B_W1, B_W2, B_W3, B_W4, D_OUT, D_DBG, D_WS = [8 * i for i in range(14)]
def env(k, d): return type(d)(os.environ.get(k, d)) if not isinstance(d, (list, dict, tuple)) else eval(os.environ.get(k, repr(d)))
STAMP = env("STAMP", 0)
def f32(x): return "0x%08x" % struct.unpack("<I", struct.pack("<f", x))[0]
GC1 = -2.0 * math.sqrt(2.0 / math.pi) * math.log2(math.e)

WAD = 74
RB0, RB1 = 78, 118
WR0 = 128
class VA:
    def __init__(self, start=1, skip=False): self.n = start; self.hi = start; self.skip = skip
    def __call__(self, cnt=1, al=None):
        if al is None: al = 2 if cnt > 1 else 1
        self.n = (self.n + al - 1) // al * al
        if self.skip and self.n < RB1 and self.n + cnt > RB0: self.n = (RB1 + al - 1) // al * al
        r = self.n; self.n += cnt; self.hi = max(self.hi, self.n); return r
def vr(b, n): return f"v[{b}:{b+n-1}]" if n > 1 else f"v{b}"

def unpack(a, lo, hi, src):
    a.e(f"v_lshlrev_b32 v{lo}, 16, v{src}")
    a.e(f"v_and_b32 v{hi}, 0xffff0000, v{src}")
def round2(a, x, y, tmp):
    a.e(f"v_cvt_pk_bf16_f32 v{tmp}, v{x}, v{y}")
    unpack(a, x, y, tmp)
def round1(a, x):
    a.e(f"v_cvt_pk_bf16_f32 v{x}, v{x}, v{x}")
    a.e(f"v_lshlrev_b32 v{x}, 16, v{x}")
def ln_finish(a, mean, var, rs):
    round1(a, mean); round1(a, var)
    a.e(f"v_add_f32 v{var}, {f32(1e-5)}, v{var}"); round1(a, var)
    a.e(f"v_sqrt_f32 v{var}, v{var}"); round1(a, var)
    if rs is not None: a.e(f"v_rcp_f32 v{rs}, v{var}")

FLG = 22 * MB
LB0, LSTR, GSTR = 32 * MB, 64 * MB, 8 * MB
oH2 = 0; oSM = 1792 * 1024; oST2 = oSM + 32768
oH, oX1P = [4 * MB + i * 512 * 1024 for i in range(2)]
XSZ = 512 * 1024 - 8192; H2SZ = 1792 * 1024 - 8192
X3G = 160 * MB
LNSG = FLG + 128 * KB
def spread(a, d, src):
    a.e(f"s_lshr_b32 s53, s{src}, 3"); a.e("s_lshl_b32 s53, s53, 14"); a.e(f"s_and_b32 s{d}, s{src}, 7"); a.e(f"s_lshl_b32 s{d}, s{d}, 10"); a.e(f"s_add_u32 s{d}, s{d}, s53")
ST_R, ST_G2, ST_G4, ST_G3A, ST_G3B, ST_G3, ST_G2S = 0, 8, 12, 32, 36, 40, 44
FH = 2048
F_KVT, F_FRONT, F_CS = FLG + 256 * KB, FLG + 512 * KB, FLG
LDS_TOTAL = 163840
AUX = LDS_TOTAL - 4096
SC = "sc1"
PSLEEP = env("PSLEEP", 5); PACE = env("PACE", 8); STQ = env("STQ", 12); FSLEEP = env("FSLEEP", 3)
NT = os.environ.get("NT", "nt"); NTK = NT; NTH = NT
PUB2 = env("PUB2", 4); MAP = env("MAP", 4); HSPLIT = env("HSPLIT", 2); PWAIT = env("PWAIT", 8)
PACES = env("PACES", {4: 8}); C0PUB = env("C0PUB", 7)
REC, LNSL = 152 * KB, AUX + 1024
WST = 24 * KB

CFG = {1: dict(KBT=32, NW=16, LDW=2048, TN16=4, WB=0),
       3: dict(WM=2, WN=2, MT=4, NT=7, KBT=32, NS=16, NA=3, NW=3, A=oX1P, LDW=7168, NPRE=2, WR=2),
       4: dict(WM=2, WN=2, MT=4, NT=4, KBT=112, NS=28, NA=3, NW=6, A=oH2, LDW=2048)}
for w, c in CFG.items():
    c.setdefault("NPRE", c["NW"]); c.setdefault("WR", 1)
    if w > 1: c["TN16"] = c["WN"] * c["NT"]; c["WB"] = c["NA"] * 16384
    c["STB"] = c["TN16"] * 2048; c["RB"] = c["TN16"] * 32
CFG[2] = CFG[1]
CSO = {3: AUX}

LW = AUX + 3072
def mstamp(a, force=False):
    if os.environ.get("JIT"):
        X = a.lab("jit")
        a.e("s_cselect_b32 s101, 1, 0"); a.e("s_memtime s[64:65]"); a.e("s_waitcnt lgkmcnt(0)"); a.e(f"s_and_b32 s64, s64, {os.environ['JIT']}"); a.e("s_cmp_lg_u32 s64, 0")
        a.e(f"s_cbranch_scc1 {X}"); a.e("s_sleep 50"); a.e(f"{X}:"); a.e("s_cmp_eq_u32 s101, 1")
        return
    if not STAMP or (os.environ.get("GST") and not force): return
    if STAMP == 1:
        fn = sys._getframe(1)
        while fn.f_code.co_name in ("<lambda>", "flag"): fn = fn.f_back
        if fn.f_code.co_name in ("front_b", "window_y", "w_setup", "w_loader", "a_loader", "wait2", "run", "front_a"): return
        if fn.f_code.co_name == "win_compute" and fn.f_locals["g"] == 2: return
        a.e("s_memrealtime s[64:65]"); a.e("s_mov_b32 s100, m0"); a.e("s_mov_b32 m0, s66"); a.e("s_waitcnt lgkmcnt(0)")
        a.e("v_writelane_b32 v4, s64, m0"); a.e("s_mov_b32 m0, s100"); a.e("s_add_u32 s66, s66, 1")
        return
    a.e("s_memrealtime s[64:65]"); a.e("s_memtime s[96:97]")
    a.e("s_mov_b32 s100, m0"); a.e("s_mov_b32 m0, s66"); a.e("s_waitcnt lgkmcnt(0)")
    a.e("v_writelane_b32 v4, s64, m0"); a.e("v_writelane_b32 v5, s96, m0")
    a.e("s_mov_b32 m0, s100"); a.e("s_add_u32 s66, s66, 1")

def lsrd(a, d, off, nbytes, prev=False):
    if prev:
        a.e(f"s_sub_u32 s{d}, s62, {LSTR - off:#x}"); a.e(f"s_subb_u32 s{d+1}, s63, 0")
        a.e(f"s_mov_b32 s{d+2}, {nbytes:#x}"); a.e(f"s_mov_b32 s{d+3}, 0x20000")
    else: a.srd(d, 62, nbytes, off=off)
def x3_srd(a, d):
    a.e(f"s_lshl_b32 s{d+2}, s60, 24"); a.e(f"s_lshl_b32 s{d+3}, s94, 13"); a.e(f"s_add_u32 s{d+2}, s{d+2}, s{d+3}"); a.e(f"s_add_u32 s{d+2}, s{d+2}, {X3G}")
    a.e(f"s_add_u32 s{d}, s4, s{d+2}"); a.e(f"s_addc_u32 s{d+1}, s5, 0"); a.e(f"s_mov_b32 s{d+2}, {8*MB - 8192}"); a.e(f"s_mov_b32 s{d+3}, 0x20000")
def lns_srd(a, d):
    a.e(f"s_lshl_b32 s{d+2}, s60, 15"); a.e(f"s_add_u32 s{d+2}, s{d+2}, {LNSG}")
    a.e(f"s_add_u32 s{d}, s4, s{d+2}"); a.e(f"s_addc_u32 s{d+1}, s5, 0"); a.e(f"s_mov_b32 s{d+2}, 32768"); a.e(f"s_mov_b32 s{d+3}, 0x20000")
def rowaddr(a, d, r, t):
    a.e(f"v_and_b32 v{t}, 3, v{r}"); a.e(f"v_lshrrev_b32 v{d}, 2, v{r}"); a.e(f"v_lshlrev_b32 v{d}, 14, v{d}"); a.e(f"v_lshl_add_u32 v{d}, v{t}, 11, v{d}")

def group_off(a, d, m):
    a.e(f"s_lshr_b32 s53, s{m}, 3"); a.e("s_lshl_b32 s53, s53, 2"); a.e(f"s_and_b32 s54, s{m}, 3"); a.e("s_add_u32 s53, s53, s54"); a.e("s_lshl_b32 s53, s53, 23")
    a.e(f"s_lshr_b32 s54, s{m}, 2"); a.e("s_xor_b32 s54, s54, s94"); a.e("s_and_b32 s54, s54, 1"); a.e("s_lshl_b32 s54, s54, 13")
    a.e(f"s_add_u32 s{d}, s53, s54"); a.e(f"s_add_u32 s{d}, s{d}, {LB0}")

def poll_core(a, t, ad, mask, cnt=0, nap=None):
    L = a.lab("poll"); D = a.lab("pok")
    a.e("s_mov_b32 s53, 0"); a.e(f"s_add_u32 s54, s52, {cnt}")
    a.e(f"s_bfm_b64 exec, {mask.bit_length()}, 0")
    a.e(f"{L}:")
    a.e(f"buffer_load_dword v{t}, v{ad}, s[56:59], 0 offen {SC}")
    a.e("s_waitcnt vmcnt(0)")
    a.e(f"v_cmp_eq_u32 vcc, s54, v{t}")
    a.e("s_cmp_eq_u64 vcc, exec"); a.e(f"s_cbranch_scc1 {D}")
    a.e(f"s_sleep {PSLEEP if nap is None else nap}")
    a.e("s_add_u32 s53, s53, 1"); a.e("s_cmp_lt_u32 s53, s61"); a.e(f"s_cbranch_scc1 {L}")
    a.e("s_mov_b32 s61, 0")
    a.e(f"{D}:")
    a.e("s_mov_b64 exec, -1")

def flag_off(a, d, stage, sub, prev=False):
    a.e(f"s_lshl_b32 s{d}, s{sub}, 7"); a.e(f"s_add_u32 s{d}, s{d}, s55")
    so = stage * 128 - (LSTR if prev else 0)
    if so: a.e(f"s_add_u32 s{d}, s{d}, {so & 0xffffffff:#x}")
def flag_in(a, d, stage, prev=False):
    if stage in (ST_R, ST_G2): a.e(f"s_add_u32 s{d}, s55, {stage*128}"); return 1 if stage == ST_R else 4
    if stage == ST_G4: a.e(f"s_lshl_b32 s{d}, s31, 1")
    else:
        a.e(f"s_and_b32 s{d}, s30, 1")
        if stage != ST_G2S: a.e(f"s_lshl1_add_u32 s{d}, s31, s{d}")
    flag_off(a, d, stage, d, prev)
    return 2 if stage == ST_G4 else 1
def flag_addr(a, r, stage, prev=False):
    n = flag_in(a, 54, stage, prev)
    if stage == ST_R:
        a.e("s_bitcmp1_b32 s29, 2"); a.e("s_cselect_b32 s53, s93, s92"); a.e("s_add_u32 s53, s53, s54")
        a.e(f"v_mov_b32 v{r}, s54"); a.e(f"v_writelane_b32 v{r}, s53, 1")
        return 3
    a.e(f"v_mov_b32 v{r}, s54")
    a.e(f"v_lshl_add_u32 v{r}, v1, 7, v{r}")
    return (1 << n) - 1
def flag_try(a, d, off): a.e(f"s_load_dword s{d}, s[4:5], s{off}")
def flag_check(a, d, off, t):
    D = a.lab("fok")
    a.e("s_add_u32 s54, s52, 16"); a.e("s_waitcnt lgkmcnt(0)"); a.e(f"s_cmp_eq_u32 s{d}, s54"); a.e(f"s_cbranch_scc1 {D}")
    a.e(f"v_mov_b32 v{t+1}, s{off}"); poll_core(a, t, t + 1, 1, cnt=16)
    a.e(f"{D}:")

def poll(a, stage, t, prev=False, wave=4, nap=None):
    D = a.lab("pdone")
    a.e(f"s_cmp_lg_u32 s30, {wave}"); a.e(f"s_cbranch_scc1 {D}")
    poll_core(a, t, t + 1, flag_addr(a, t + 1, stage, prev), cnt=16, nap=nap)
    a.e(f"{D}:")
    a.e("s_waitcnt lgkmcnt(0)"); a.e("s_barrier")

def publish(a, stage, t, off=None, wait=0):
    if off is None:
        off = 53
        if stage == ST_G4: flag_off(a, 53, stage, 30)
        else:
            a.e({ST_G2: "s_and_b32 s53, s30, 3", ST_G2S: "s_and_b32 s53, s30, 1"}.get(stage, "s_lshr_b32 s53, s30, 1"))
            if stage not in (ST_G2, ST_G2S): a.e("s_lshl1_add_u32 s53, s31, s53")
            flag_off(a, 53, stage, 53)
    a.e(f"v_mov_b32 v{t}, 1"); a.e(f"v_mov_b32 v{t+1}, 0")
    a.e("s_mov_b64 exec, 1")
    if wait is not None: a.e(f"s_waitcnt vmcnt({wait})")
    a.e(f"buffer_atomic_add v{t}, v{t+1}, s[56:59], s{off} offen {SC}")
    a.e("s_mov_b64 exec, -1")

def data_wait(a, loads, regs, t, between=None, nap=2, first=True):
    L = a.lab("dw"); D = a.lab("dok")
    for x in loads if first else []: a.e(x)
    if between: between()
    a.e("s_mov_b32 s53, 0")
    a.e(f"{L}:")
    a.e("s_waitcnt vmcnt(0)")
    h = len(regs) // 2
    for k, part in enumerate((regs[:h], regs[h:])): a.e(f"v_and_b32 v{t+k}, v{part[0]}, v{part[1]}")
    for i in range(2, h, 2):
        for k, part in enumerate((regs[:h], regs[h:])): a.e(f"v_bitop3_b32 v{t+k}, v{part[i]}, v{part[i+1]}, v{t+k} bitop3:0x80")
    a.e(f"v_bitop3_b32 v{t}, v{t}, v{t+1}, 1 bitop3:0x80"); a.e(f"v_cmp_eq_u32 vcc, 0, v{t}")
    a.e("s_cmp_eq_u64 vcc, 0"); a.e(f"s_cbranch_scc1 {D}")
    a.e("s_mov_b64 exec, vcc")
    a.e(f"s_sleep {nap}")
    for x in loads: a.e(x)
    a.e("s_add_u32 s53, s53, 1"); a.e("s_cmp_lt_u32 s53, s61"); a.e(f"s_cbranch_scc1 {L}")
    a.e("s_mov_b32 s61, 0"); a.e("s_waitcnt vmcnt(0)")
    a.e(f"{D}:")
    a.e("s_mov_b64 exec, -1")
    if STAMP: a.e("s_lshl_b32 s53, s53, 24"); a.e("s_add_u32 s95, s95, s53")
def p1_off(a, d, t):
    a.e(f"s_lshr_b32 s{t}, s28, 3"); a.e(f"s_and_b32 s{d}, s28, 3"); a.e(f"s_lshl2_add_u32 s{d}, s{t}, s{d}"); a.e(f"s_lshl_b32 s{d}, s{d}, 19")
    a.e(f"s_xor_b32 s{t}, s{t}, s94"); a.e(f"s_lshl_b32 s{t}, s{t}, 2"); a.e(f"s_xor_b32 s{t}, s{t}, s28"); a.e(f"s_and_b32 s{t}, s{t}, 4"); a.e(f"s_lshl_b32 s{t}, s{t}, 11")
    a.e(f"s_add_u32 s{d}, s{d}, s{t}"); a.e(f"s_add_u32 s{d}, s{d}, {P1B}")
def lsb0(a, r):
    a.e(f"v_add_u32 v{r}, 0x10000, v{r}"); a.e(f"v_and_b32 v{r}, 0xfffe0000, v{r}")
W1A, W1B = (11, 12, 15, 13, 14, 3, 4, 5, 6, 0), (7, 8, 1, 2, 9, 10)
W2S = (-3, -2, -1) + W1B
def lds_spin(a, addr, target, t, dst=53, nap=False):
    L = a.lab("spin")
    a.e(f"v_mov_b32 v{t}, {addr}")
    a.e(f"{L}:")
    if nap: a.e(f"s_sleep {int(nap)}")
    a.e(f"ds_read_b32 v{t+1}, v{t}"); a.e("s_waitcnt lgkmcnt(0)"); a.e(f"v_readfirstlane_b32 s{dst}, v{t+1}")
    a.e(f"s_cmp_ge_u32 s{dst}, {target}"); a.e(f"s_cbranch_scc0 {L}")
def lds_set(a, addr, val, t):
    a.e(f"v_mov_b32 v{t}, {addr}"); a.e(f"v_mov_b32 v{t+1}, {val}")
    a.e("s_waitcnt lgkmcnt(0)"); a.e(f"ds_write_b32 v{t}, v{t+1}")
def lds_inc(a, addr, t):
    a.e(f"v_mov_b32 v{t}, {addr}"); a.e(f"v_mov_b32 v{t+1}, 1")
    a.e("s_waitcnt lgkmcnt(0)")
    a.e("s_mov_b64 exec, 1"); a.e(f"ds_add_u32 v{t}, v{t+1}"); a.e("s_mov_b64 exec, -1")
def lbar(a, k, t, addr=LW + 8, nap=False):
    lds_inc(a, addr, t); lds_spin(a, addr, 4 * k, t, nap=nap)

class Rec:
    def __init__(s_): s_.l = []
    def e(s_, x): s_.l.append(x)
    srd = Asm.srd
class Track:
    def __init__(s, a): s.a = a; s.vq = []; s.lq = []
    def e(s, x): s.a.e(x)
    def vm(s, x, tag=None): s.a.e(x); s.vq.append(tag)
    def ds(s, x, tag=None): s.a.e(x); s.lq.append(tag)
    def _w(s, q, tag, nm, mx):
        if tag not in q: return
        i = max(k for k, x in enumerate(q) if x == tag); n = len(q) - 1 - i
        assert n <= mx
        s.a.e(f"s_waitcnt {nm}({n})"); del q[:i + 1]
    def wv(s, tag): s._w(s.vq, tag, "vmcnt", 63)
    def wl(s, tag): s._w(s.lq, tag, "lgkmcnt", 15)
    def nv(s, tag):
        return len(s.vq) - 1 - max(k for k, x in enumerate(s.vq) if x == tag)
NVOTE = 255
HSTR = 4160; CHB = 21504; UOFF = 4 * HSTR
RFO, RYO, RRO, RI, RXO, RT, RXA, RXB, RYF, RYY = 78, 79, 80, 81, 82, 84, 86, 94, 102, 110
WVB = {1: 118, 2: 118, 4: 119, 3: 121}

NRAW = env("NRAW", 8)
KL, VL = 96 * KB, 113 * KB
def front_loads(a):
    vA, vB, t, t2 = 6, 7, 8, 9
    a.e(f"v_bfe_u32 v{t}, v0, 4, 2"); a.e(f"v_and_b32 v{t2}, 15, v0"); a.e(f"v_lshlrev_b32 v{vA}, 11, v{t}"); a.e(f"v_lshlrev_b32 v{t}, 1, v{t}")
    a.e(f"v_xor_b32 v{t}, v{t}, v{t2}"); a.e(f"v_lshl_add_u32 v{t}, v{t}, 4, v{vA}")
    a.e("s_and_b32 s34, s2, 7"); a.e("s_lshr_b32 s35, s2, 3")
    a.e("s_lshl_b32 s36, s35, 17"); a.e("s_lshl_b32 s37, s34, 8"); a.e("s_add_u32 s36, s36, s37")
    a.e("s_lshl_b32 s37, s30, 6"); a.e("s_and_b32 s38, s37, 128"); a.e("s_add_u32 s37, s37, 64"); a.e("s_and_b32 s37, s37, 128")
    a.e(f"v_xor_b32 v{vA}, s38, v{t}"); a.e(f"v_xor_b32 v{vB}, s37, v{t}")
    a.e("s_lshl_b32 s37, s30, 14"); a.e("s_add_u32 s37, s37, s36"); a.e("s_add_u32 s38, s37, 8192"); a.e("s_lshl_b32 s39, s30, 11")
    a.e(f"s_mov_b32 s18, {4*MB}"); a.e("s_mov_b32 s19, 0x20000"); a.e("s_mov_b32 s22, s18"); a.e("s_mov_b32 s23, s19")
    a.e(f"s_add_u32 m0, s39, {KL + 1024}")
    a.e("s_waitcnt lgkmcnt(0)")
    a.e("s_mov_b64 s[16:17], s[8:9]"); a.e("s_mov_b64 s[20:21], s[10:11]")
    a.e(f"buffer_load_dwordx4 v{vA}, s[16:19], s37 offen {NT} lds"); a.e("s_add_u32 m0, m0, 1024")
    a.e(f"buffer_load_dwordx4 v{vB}, s[16:19], s38 offen {NT} lds"); a.e(f"s_add_u32 m0, s39, {VL}")
    a.e(f"buffer_load_dwordx4 v{vA}, s[20:23], s37 offen {NT} lds"); a.e("s_add_u32 m0, m0, 1024")
    a.e(f"buffer_load_dwordx4 v{vA}, s[20:23], s38 offen {NT} lds")
    a.e("s_mov_b32 s86, 256"); a.e("s_mov_b32 s87, 0x20000"); a.e(f"v_mov_b32 v{ZZ}, 0")
    a.e("s_cmp_lg_u32 s30, 0"); a.e("s_cbranch_scc1 KV_t0")
    a.e("s_sub_u32 s36, s36, 8192"); a.e(f"v_add_u32 v{t}, s36, v{t}"); a.e(f"s_mov_b32 m0, {KL}")
    a.e(f"buffer_load_dwordx4 v{t}, s[16:19], 0 offen {NT} lds")
    a.e("s_cmp_lg_u32 s2, 0"); a.e("s_cbranch_scc1 KV_t0")
    a.e("s_lshl_b32 s44, s46, 6"); a.e("s_or_b32 s44, s44, 1"); a.e(f"v_mov_b32 v{t2}, s44")
    a.e("s_mov_b64 exec, 1"); a.e(f"buffer_store_dword v{t2}, v{ZZ}, s[84:87], 0 offen {SC}"); a.e("s_mov_b64 exec, -1")
    a.e("KV_t0:")
    a.e("s_lshl_b32 s37, s34, 10"); a.e("s_lshl_b32 s38, s30, 7"); a.e("s_add_u32 s37, s37, s38"); a.e(f"v_and_b32 v{t2}, 15, v0"); a.e(f"v_lshlrev_b32 v{t2}, 3, v{t2}")
    a.srd(24, 12, 8192)
    a.e(f"buffer_load_dwordx2 {vr(TAP,2)}, v{t2}, s[24:27], s37 offen")
ZZ, TAP = 10, 12

def front_arrive(a):
    t = 6
    a.e("s_lshl_b32 s36, s2, 7"); a.e(f"s_add_u32 s36, s36, {F_FRONT}"); a.e("s_add_u32 s45, s45, s52"); a.e(f"v_mov_b32 v{t+2}, s45")
    a.e("s_mov_b64 exec, 1"); a.e(f"buffer_store_dword v{t+2}, v2, s[56:59], s36 offen {SC}"); a.e("s_mov_b64 exec, -1")
def front_a(a):
    T = Track(a); v = VA(14)
    t = v(); t2 = v(); ra = v(2, 2); go = v(); hw = v(); hw2 = v(); hoff = v(6, 2); d = v(18, 2); tf = v(4, 2); o = v(8, 4); z = v(4, 4)
    assert v.hi <= WAD
    v = VA(128); kr = v(10, 2); vv = v(8, 2); kf = v(20, 2); ks = v(16, 2); dm = 240
    a.e("s_cmp_lg_u32 s30, 4"); a.e("s_cbranch_scc1 HB_1")
    a.e(f"v_add_u32 v{t}, {LW}, v3"); a.e(f"ds_write_b32 v{t}, v{ZZ}")
    a.e("HB_1:")
    w_srd(a, 2, 88)
    a.e("s_lshl3_add_u32 s36, s2, s30"); a.e("s_lshl_b32 s36, s36, 10")
    w_srd(a, 1, 80); a.e("s_mov_b32 s50, s36")
    def wtouch(l=(88, 80)):
        for d_ in l: T.vm(f"buffer_load_dwordx4 {vr(dm,4)}, v2, s[{d_}:{d_+3}], s50 offen")
    WT = env("WT", 6)
    if WT == 0: wtouch()
    w_lanes(a, (1,), t, t2)
    for r in range(119, 128): a.e(f"v_mov_b32 v{r}, 0")
    a.e("s_lshl_b32 s48, s29, 7"); a.e("s_lshl_b32 s36, s30, 14"); a.e("s_add_u32 s48, s48, s36"); a.e("s_lshl_b32 s49, s30, 10")
    a.e(f"s_add_u32 s48, s48, {MB}")
    w2q = list(range(NRAW, 16))
    def w2(n):
        for _ in range(min(n, len(w2q))):
            j = w2q.pop(0)
            a.e(f"s_add_u32 s36, s67, {j & 7}"); a.e("s_and_b32 s36, s36, 7"); a.e("s_lshl_b32 s36, s36, 17"); a.e("s_add_u32 s36, s36, s48")
            a.e(f"s_add_u32 m0, s49, {WST + j * 8192}")
            T.vm(f"buffer_load_dwordx4 v{WVB[1]}, s[88:91], s36 offen lds")
    a.e("s_and_b32 s41, s30, 3"); chan_setup(a, 41)
    a.e("s_lshl_b32 s36, s39, 12")
    a.e("s_add_u32 s12, s14, s36"); a.e("s_addc_u32 s13, s15, 0"); a.e("s_mov_b32 s14, 4096"); a.e("s_mov_b32 s15, 0x20000")
    a.e("s_lshr_b32 s45, s30, 2"); a.e("s_lshl_b32 s45, s45, 11")
    for it in range(3):
        if it < 2: a.e(f"s_add_u32 s36, s45, {(1024*it - 64) & 0xffffffff:#x}")
        else: a.e(f"s_mov_b32 s36, {4096 - 64}")
        a.e(f"v_add_u32 v{hoff+2*it}, s36, v2"); a.e(f"v_add_u32 v{hoff+2*it+1}, 16, v{hoff+2*it}")
    def hld():
        for it in range(3):
            T.vm(f"buffer_load_dwordx4 {vr(d+6*it,4)}, v{hoff+2*it}, s[12:15], 0 offen {NTH}", "h")
            T.vm(f"buffer_load_dwordx2 {vr(d+6*it+4,2)}, v{hoff+2*it+1}, s[12:15], 0 offen {NTH}", "h")
    a.e(f"v_add_u32 v{hw}, s40, v2"); a.e(f"v_add_u32 v{hw2}, s45, v{hw}")
    conv_setup(a); r_addr(a)
    a.srd(8, 6, 4 * MB)
    for i in range(4): a.e(f"v_mov_b32 v{z+i}, 0")
    a.e("s_bfm_b64 exec, 40, 0"); a.e(f"ds_write_b128 v{hw}, {vr(z,4)} offset:{UOFF+4096}"); a.e("s_mov_b64 exec, -1")
    assert UOFF + 4096 + 640 <= CHB and 4 * CHB <= WST + NRAW * 8192
    a.e("s_and_b32 s34, s2, 7"); a.e("s_lshr_b32 s35, s2, 3")
    a.e(f"v_bfe_u32 v{t}, v1, 2, 3"); a.e(f"v_xor_b32 v{t}, s30, v{t}"); a.e(f"v_lshlrev_b32 v{ra}, 5, v{t}")
    a.e(f"v_and_b32 v{t}, 3, v1"); a.e(f"v_lshl_add_u32 v{ra}, v{t}, 3, v{ra}")
    a.e(f"v_bfe_u32 v{t}, v1, 2, 2"); a.e(f"v_lshl_add_u32 v{ra}, v{t}, 8, v{ra}"); a.e(f"v_lshrrev_b32 v{t}, 4, v1"); a.e(f"v_lshl_add_u32 v{ra}, v{t}, 12, v{ra}")
    a.e(f"v_add_u32 v{ra}, {KL}, v{ra}"); a.e(f"v_xor_b32 v{ra+1}, 128, v{ra}")
    a.srd(16, 4, 4 * MB, off=UT)
    a.e(f"v_bfe_u32 v{go}, v1, 2, 2"); a.e(f"v_lshlrev_b32 v{go}, 14, v{go}"); a.e(f"v_and_b32 v{t}, 3, v1"); a.e(f"v_lshl_add_u32 v{go}, v{t}, 6, v{go}")
    a.e(f"v_bfe_u32 v{t}, v1, 4, 1"); a.e(f"v_lshrrev_b32 v{t2}, 5, v1"); a.e(f"v_lshl_add_u32 v{t}, v{t}, 1, v{t2}"); a.e(f"v_xor_b32 v{t}, 3, v{t}"); a.e(f"v_lshl_add_u32 v{go}, v{t}, 4, v{go}")
    a.e("s_lshl3_add_u32 s42, s34, s30"); a.e("s_lshl_b32 s43, s42, 16"); a.e("s_sub_u32 s37, 31, s35"); a.e("s_lshl_b32 s37, s37, 9"); a.e("s_add_u32 s43, s43, s37")
    a.e("s_lshl_b32 s44, s42, 5"); a.e("s_add_u32 s44, s44, s35"); a.e("s_lshl_b32 s44, s44, 7"); a.e(f"s_add_u32 s44, s44, {F_KVT}")
    a.e("s_cmp_lt_u32 s30, 4"); a.e("s_cbranch_scc1 HB_4")
    w_lanes(a, (3, 4), t, t2)
    a.e("HB_4:")
    hld()
    if WT == 1: wtouch()
    if WT >= 4: wtouch((88,))
    a.e("s_cmp_ge_u32 s30, 4"); a.e("s_cbranch_scc1 HB_3")
    conv_setup2(a); a.e("s_waitcnt lgkmcnt(0)"); conv_diag(a)
    a.e("HB_3:")
    mstamp(a)
    a.e(f"s_waitcnt vmcnt({len(T.vq)}) lgkmcnt(0)"); a.e("s_barrier")
    mstamp(a)
    for i in range(5): a.e(f"ds_read_b64_tr_b16 {vr(kr+2*i,2)}, v{ra+i//4} offset:{1024*i}")
    for i in range(4): a.e(f"ds_read_b64_tr_b16 {vr(vv+2*i,2)}, v{ra} offset:{VL - KL + 1024*i}")
    a.e("s_load_dword s52, s[84:85], 0")
    unpack(a, tf, tf + 1, TAP); unpack(a, tf + 2, tf + 3, TAP + 1)
    a.e("s_waitcnt lgkmcnt(0)")
    b = Rec()
    for i in range(10): unpack(b, kf + 2 * i, kf + 2 * i + 1, kr + i)
    for i in range(16): b.e(f"v_mul_f32 v{ks+i}, v{kf+i+1}, v{tf+3}")
    for j in (2, 1, 0):
        for i in range(16): b.e(f"v_fmac_f32 v{ks+i}, v{kf+i+4-j}, v{tf+j}")
    for i in range(8): unpack(b, kf + 2 * i, kf + 2 * i + 1, vv + i)
    for i in range(16): b.e(f"v_mul_f32 v{ks+i}, v{ks+i}, v{kf+i}")
    for i in range(1, 16, 2): lsb0(b, ks + i)
    for i in range(8): b.e(f"v_cvt_pk_bf16_f32 v{o+i}, v{ks+8*(i//4)+7-2*(i%4)}, v{ks+8*(i//4)+6-2*(i%4)}")
    for x in b.l: a.e(x)
    a.e("s_cmp_lg_u32 s52, 0"); a.e("s_cbranch_scc1 HB_q")
    a.e("s_mov_b32 s53, 0")
    a.e("HB_p:")
    a.e(f"buffer_load_dword v{t}, v{ZZ}, s[84:87], 0 offen {SC}"); a.e("s_waitcnt vmcnt(0)")
    a.e(f"v_readfirstlane_b32 s52, v{t}"); a.e("s_cmp_lg_u32 s52, 0"); a.e("s_cbranch_scc1 HB_q")
    a.e("s_add_u32 s53, s53, 1"); a.e("s_cmp_lt_u32 s53, s61"); a.e("s_cbranch_scc1 HB_p")
    a.e("s_mov_b32 s52, 1"); a.e("s_mov_b32 s61, 0")
    a.e("HB_q:")
    for e in range(4): a.e(f"v_permlane32_swap_b32 v{o+e}, v{o+4+e}")
    a.e(f"v_mov_b32 v{t}, s52")
    for i in range(2): T.vm(f"buffer_store_dwordx4 {vr(o+4*i,4)}, v{go}, s[16:19], s43 offen offset:{256*(1-i)} {SC}", "u")
    mstamp(a)
    cc = kr
    T.wv("h")
    FL = env("FL", 2)
    def flag():
        T.wv("u")
        a.e("s_mov_b64 exec, 1"); T.vm(f"buffer_store_dword v{t}, v{ZZ}, s[56:59], s44 offen {SC}"); a.e("s_mov_b64 exec, -1")
        a.e("s_cmp_lg_u32 s30, 5"); a.e("s_cbranch_scc1 KV_n3")
        a.e("s_lshl_b32 s36, s2, 14"); a.e(f"s_add_u32 s36, s36, {P1B}"); a.e(f"v_lshrrev_b32 v{t2}, 3, v1"); a.e(f"v_mul_u32_u24 v{t2}, {8192 - 128}, v{t2}"); a.e(f"v_add_u32 v{t2}, v{t2}, v2")
        a.e("s_mov_b64 exec, 0xffff"); a.e(f"buffer_store_dwordx4 {vr(z,4)}, v{t2}, s[56:59], s36 offen {SC}"); a.e("s_mov_b64 exec, -1")
        a.e("KV_n3:")
        mstamp(a)
    for it in range(3):
        if it == FL: flag()
        D = d + 6 * it; c0 = cc + 12 * it; c1 = c0 + 4; c2 = c0 + 8
        for k in range(4):
            a.e(f"v_alignbit_b32 v{c0+k}, v{D+k+1}, v{D+k}, 16")
            a.e(f"v_mov_b32 v{c1+k}, v{D+k+1}")
            a.e(f"v_alignbit_b32 v{c2+k}, v{D+k+2}, v{D+k+1}, 16")
        if it == 2: a.e("s_mov_b64 exec, 0xf")
        ad, o0 = (hw2, 1024 * it) if it < 2 else (hw, 4096)
        a.e(f"ds_write_b128 v{ad}, {vr(c0,4)} offset:{o0}")
        a.e(f"ds_write_b128 v{ad}, {vr(c1,4)} offset:{HSTR+o0}")
        a.e(f"ds_write_b128 v{ad}, {vr(c2,4)} offset:{2*HSTR+o0}")
        a.e(f"ds_write_b128 v{ad}, {vr(D+2,4)} offset:{3*HSTR+o0}")
    a.e("s_mov_b64 exec, -1")
    if FL == 3: flag()
    a.e("s_waitcnt lgkmcnt(0)"); a.e("s_barrier")
    mstamp(a)
    w2(16)
def load_q(a):
    for j in range(4): a.e(f"buffer_load_dwordx2 {vr(RXA+2*j,2)}, v{RRO}, s[8:11], 0 offen offset:{128*(j>>1) + 32*(j&1)} {NTH}")
def chan_setup(a, wsg):
    a.e("s_and_b32 s38, s2, 7"); a.e("s_lshl_b32 s38, s38, 5"); a.e("s_lshr_b32 s39, s2, 3"); a.e("s_add_u32 s38, s38, s39")
    a.e("s_lshl_b32 s39, s38, 2"); a.e(f"s_add_u32 s39, s39, s{wsg}")
    a.e(f"s_mul_i32 s40, s{wsg}, {CHB}")

def touch(a, which, nbytes, r):
    n = nbytes // 1024 // 512
    a.e(f"s_mov_b64 s[48:49], s[{66+2*which}:{67+2*which}]")
    a.e("s_lshl_b32 s45, s2, 1"); a.e("s_and_b32 s50, s30, 1"); a.e("s_add_u32 s45, s45, s50"); a.e(f"s_mul_i32 s45, s45, {n*1024}")
    a.e(f"s_mov_b32 s50, {nbytes}"); a.e("s_mov_b32 s51, 0x20000")
    for i in range(n):
        if i and i % 4 == 0: a.e("s_add_u32 s45, s45, 4096")
        a.e(f"buffer_load_dwordx4 {vr(r,4)}, v2, s[48:51], s45 offen offset:{(i&3)*1024}")
    return n

def cs_sum(a):
    N = 3584; CSEL, CFR, CAD, CACC, CO = 20, 48, 104, 108, 112
    X = a.lab("cs")
    a.e("s_cmp_lg_u32 s60, 0"); a.e(f"s_cbranch_scc1 {X}")
    a.e("s_and_b32 s35, s30, 1")
    nr, pos = w_bases(a, 3, CAD, 35, 7, CO, CO + 1)
    a.e("s_cmp_eq_u32 s28, s29"); a.e(f"s_cselect_b32 s36, 0, {CFG[3]['STB']}")
    for i in range(nr): a.e(f"v_add_u32 v{CAD+i}, s36, v{CAD+i}")
    for T in range(7):
        for kk in range(2):
            for h in range(2):
                r, imm = pos(T, kk, h)
                a.e(f"ds_read_b64_tr_b16 {vr(CFR+8*T+4*kk+2*h,2)}, v{CAD + r} offset:{imm}")
    a.e(f"v_and_b32 v{CO}, 15, v1"); a.e(f"v_mov_b32 v{CO+1}, 0x3f803f80")
    for T in range(7):
        a.e(f"v_cmp_eq_u32 vcc, {T}, v{CO}")
        for e in range(4): a.e(f"v_cndmask_b32 v{CSEL+4*T+e}, 0, v{CO+1}, vcc")
    a.e(f"v_and_b32 v{CO+2}, 48, v1"); a.e(f"v_lshl_add_u32 v{CO+2}, v{CO}, 6, v{CO+2}")
    a.e(f"v_mov_b32 v{CO+1}, 0x7f000000")
    a.e(f"v_cmp_gt_u32 vcc, 7, v{CO}"); a.e(f"v_cndmask_b32 v{CO+2}, v{CO+1}, v{CO+2}, vcc")
    a.srd(20, 4, 16 * N * 4, off=CSP3)
    a.e(f"s_mul_i32 s36, s28, {N*4}"); a.e("s_lshl1_add_u32 s35, s29, s35"); a.e(f"s_mul_i32 s35, s35, {7*64}"); a.e("s_add_u32 s35, s35, s36")
    a.e("s_waitcnt lgkmcnt(0)")
    for i in range(14): a.e(f"v_mfma_f32_16x16x32_bf16 {vr(CACC,4)}, {vr(CFR+4*i,4)}, {vr(CSEL+4*(i//2),4)}, {vr(CACC,4) if i else 0}")
    a.e(f"buffer_store_dwordx4 {vr(CACC,4)}, v{CO+2}, s[20:23], s35 offen {SC}")
    a.e(f"{X}:")
def cs_flag(a, d):
    a.e(f"s_and_b32 s{d}, s30, 1"); a.e(f"s_lshl_b32 s{d}, s{d}, 13"); a.e("s_lshl_b32 s53, s29, 7"); a.e(f"s_add_u32 s{d}, s{d}, s53"); a.e(f"s_add_u32 s{d}, s{d}, {F_CS}")
def cs_signal(a):
    X = a.lab("cs")
    a.e("s_cmp_lg_u32 s60, 0"); a.e(f"s_cbranch_scc1 {X}")
    cs_flag(a, 36)
    publish(a, None, 14, off=36, wait=None)
    a.e(f"{X}:")

def wr_addr(a, ad, t):
    a.e(f"v_lshrrev_b32 v{t}, 2, v1"); a.e(f"v_lshlrev_b32 v{ad}, 7, v{t}"); a.e(f"v_bfe_u32 v{t}, v{t}, 1, 2")
    a.e("s_and_b32 s35, s30, 2"); a.e(f"v_and_b32 v{t+1}, 1, v1"); a.e(f"v_or_b32 v{t+1}, s35, v{t+1}"); a.e(f"v_xor_b32 v{t}, v{t}, v{t+1}")
    a.e(f"v_lshl_add_u32 v{ad}, v{t}, 5, v{ad}"); a.e(f"v_and_b32 v{t}, 2, v1"); a.e(f"v_lshl_add_u32 v{ad}, v{t}, 2, v{ad}")
    a.e("s_and_b32 s35, s30, 1"); a.e("s_lshl_b32 s35, s35, 4")
    a.e(f"v_add_u32 v{ad}, s35, v{ad}"); a.e(f"v_add_u32 v{ad+1}, {64*KB}, v{ad}"); a.e(f"v_add_u32 v{ad+2}, {128*KB}, v{ad}")
    assert WST == 3 * 8192
def wreg(j, kk): return WR0 + 16 * (j & 7) + 8 * kk + 4 * (j >> 3)
def wr_read(a, ad, js, slots=None):
    for j, x in zip(js, slots or js):
        for kk in range(2):
            for h in range(2): a.e(f"ds_read_b64_tr_b16 {vr(wreg(j,kk)+2*h,2)}, v{ad+((x+3)>>3)} offset:{((x+3)&7)*8192 + (32*kk+16*h)*128}")

def front_b(a):
    pt, vd = 6, 8
    wr_addr(a, WAD, 10)
    a.e("s_and_b32 s36, s30, 3"); a.e("s_lshl_b32 s36, s36, 14"); a.e("s_lshl_b32 s48, s29, 7"); a.e("s_add_u32 s48, s48, s36")
    for i in range(4): a.e(f"v_mov_b32 v{RYY+i}, 0")
    a.e("s_and_b32 s44, s30, 3"); a.e("s_lshl2_add_u32 s44, s2, s44"); a.e("s_lshl_b32 s44, s44, 12"); a.e(f"s_add_u32 s44, s44, {P1B}")
    a.e("s_cmp_lg_u32 s30, 5"); a.e("s_cbranch_scc1 FB_np"); a.e(f"s_waitcnt vmcnt({16 - NRAW})")
    a.e("s_lshl_b32 s42, s2, 14"); a.e(f"s_add_u32 s42, s42, {P1B}")
    for i in range(2):
        a.e("s_memtime s[34:35]"); a.e("s_waitcnt lgkmcnt(0)")
        a.e(f"s_load_dword s32, s[4:5], s42 offset:{i * 8192} glc"); a.e("s_waitcnt lgkmcnt(0)")
        a.e("s_memtime s[40:41]"); a.e("s_waitcnt lgkmcnt(0)")
        a.e(f"s_sub_u32 s{46+i}, s40, s34")
    a.e("s_cmp_lt_u32 s47, s46"); a.e("s_cselect_b32 s45, 1, 0")
    a.e("s_lshr_b32 s46, s28, 2"); a.e("s_xor_b32 s45, s45, s46"); a.e("s_lshr_b32 s46, s2, 7"); a.e("s_xor_b32 s45, s45, s46"); a.e("s_and_b32 s45, s45, 1"); a.e("s_lshl_b32 s45, s45, 1")
    a.e("FB_np:")
    group_off(a, 37, 28); a.e("s_andn2_b32 s37, s37, 0x2000"); a.e("s_lshl_b32 s43, s29, 7"); a.e("s_add_u32 s37, s37, s43"); a.e(f"s_add_u32 s37, s37, {oSM}")
    a.e(f"s_add_u32 s43, s43, {F_CS}"); a.e(f"v_mov_b32 v{RYF}, s52")
    a.e(f"v_and_b32 v{RYF+1}, 1, v1"); a.e(f"v_lshlrev_b32 v{RYF+1}, 13, v{RYF+1}"); a.e(f"v_bfe_u32 v{RYF+2}, v1, 1, 1"); a.e(f"v_lshl_add_u32 v{RYF+1}, v{RYF+2}, 26, v{RYF+1}")
    a.e(f"v_lshrrev_b32 v{RYF+2}, 2, v1"); a.e(f"v_lshl_add_u32 v{RYF+1}, v{RYF+2}, 11, v{RYF+1}")
    a.e("s_waitcnt vmcnt(0) lgkmcnt(0)")
    a.e("s_barrier")
    wr_read(a, WAD, range(NRAW, 16))
    a.e("s_waitcnt lgkmcnt(0)")
    a.e("s_barrier")
    mstamp(a)
    a.e("s_cmp_lg_u32 s30, 5"); a.e("s_cbranch_scc1 FB_na")
    front_arrive(a)
    a.e("FB_na:")
    if env('WT', 6) == 6:
        for k in range(2): a.e(f"buffer_load_dwordx4 {vr(12,4)}, v2, s[80:83], s50 offen"); a.e("s_sub_u32 s50, s50, 4096")
    load_q(a)
    a.e(f"s_setprio {env('FPRIO', 0)}")
    def raw(srd, reg, js):
        for j in js:
            a.e(f"s_add_u32 s36, s67, {j & 7}"); a.e("s_and_b32 s36, s36, 7"); a.e("s_lshl_b32 s36, s36, 17"); a.e("s_add_u32 s36, s36, s48")
            if j >= 8: a.e(f"s_add_u32 s36, s36, {MB}")
            a.e(f"buffer_load_dwordx4 {vr(reg(j,0),4)}, v{WVB[1]}, s[{srd}:{srd+3}], s36 offen"); a.e("s_add_u32 s36, s36, 65536")
            a.e(f"buffer_load_dwordx4 {vr(reg(j,1),4)}, v{WVB[1]}, s[{srd}:{srd+3}], s36 offen")
    NW2 = env("NW2", 2)
    a.e("s_cmp_lg_u32 s30, 4"); a.e("s_cbranch_scc1 FB_ni")
    a.e("s_mov_b64 exec, 0xfff"); a.e(f"buffer_store_dword v{RYF}, v{RYF+1}, s[56:59], s37 offen {SC}")
    a.e("s_cmp_lg_u32 s28, 0"); a.e("s_cbranch_scc1 FB_n2")
    a.e("s_mov_b64 exec, 3"); a.e(f"buffer_store_dword v{RYF}, v{RYF+1}, s[56:59], s43 offen {SC}")
    a.e("FB_n2:"); a.e("s_mov_b64 exec, -1")
    a.e("FB_ni:")
    for i in range(4): a.e(f"buffer_store_dwordx4 {vr(RYY,4)}, v2, s[56:59], s44 offen offset:{1024*i} {SC}")
    raw(88, wreg, range(NW2))
    w1_dma(a, W1A[:5])
    a.e(f"s_waitcnt vmcnt({10 + 2 * NW2})"); lds_inc(a, LW + 8, pt)
    raw(80, w1raw, W1A[5:])
    a.e("s_xor_b32 s48, s48, 128")
    FE = env("FE", 3)
    raw(88, wreg, range(NW2, NRAW - FE))
    a.e("s_and_b32 s42, s30, 3"); a.e("s_lshl_b32 s42, s42, 13"); a.e(f"s_add_u32 s42, s42, {F_FRONT}")
    a.e(f"v_lshlrev_b32 v{vd}, 7, v1")
    a.e(f"buffer_load_dword v{vd+2}, v{vd}, s[56:59], s42 offen {SC}")
    raw(88, wreg, range(NRAW - FE, NRAW))
    a.e("s_setprio 0")
    mstamp(a)
    pt = vd + 2
    a.e("s_mov_b32 s53, 0"); a.e(f"s_waitcnt vmcnt({2 * FE})")
    a.e("R_fp:")
    a.e(f"v_and_b32 v{pt+1}, -3, v{pt}"); a.e(f"v_cmp_eq_u32 vcc, s52, v{pt+1}")
    a.e("s_cmp_eq_u64 vcc, exec"); a.e("s_cbranch_scc1 R_fq")
    a.e(f"s_sleep {FSLEEP}")
    a.e(f"buffer_load_dword v{pt}, v{vd}, s[56:59], s42 offen {SC}"); a.e("s_waitcnt vmcnt(0)")
    a.e("s_add_u32 s53, s53, 1"); a.e("s_cmp_lt_u32 s53, s61"); a.e("s_cbranch_scc1 R_fp")
    a.e("s_mov_b32 s61, 0")
    a.e("R_fq:")
    a.e(f"v_cmp_ne_u32 vcc, s52, v{pt}"); a.e("s_bcnt1_i32_b64 s36, vcc"); a.e(f"v_mov_b32 v{pt}, s36"); a.e(f"v_mov_b32 v{pt+1}, {LW+28}")
    a.e("s_mov_b64 exec, 1"); a.e(f"ds_add_u32 v{pt+1}, v{pt}"); a.e("s_mov_b64 exec, -1")
def w1_dma(a, js):
    a.e("s_and_b32 s49, s30, 3"); a.e("s_lshl_b32 s36, s49, 14"); a.e("s_lshl_b32 s48, s29, 7"); a.e("s_add_u32 s48, s48, s36"); a.e("s_lshl_b32 s49, s49, 10")
    a.e("s_xor_b32 s48, s48, 128")
    for j in js:
        a.e(f"s_add_u32 s36, s67, {j & 7}"); a.e("s_and_b32 s36, s36, 7"); a.e("s_lshl_b32 s36, s36, 17"); a.e("s_add_u32 s36, s36, s48")
        if j >= 8: a.e(f"s_add_u32 s36, s36, {MB}")
        for kk in range(2):
            a.e(f"s_add_u32 m0, s49, {WST + j * 8192 + 4096 * kk}")
            a.e(f"buffer_load_dwordx4 v{WVB[1]}, s[80:83], s36 offen lds")
            if kk == 0: a.e("s_add_u32 s36, s36, 65536")
def w1raw(j, kk):
    return (28, 36, 52, 60, RXB)[W1A[5:].index(j)] + 4 * kk
def w_dump(a, reg, t, js, slots=None):
    a.e("s_and_b32 s36, s30, 3"); a.e("s_lshl_b32 s36, s36, 10"); a.e(f"v_add_u32 v{t}, s36, v2"); a.e(f"v_add_u32 v{t+1}, {64*KB}, v{t}")
    if max(slots or js) > 12: a.e(f"v_add_u32 v{t+2}, {128*KB}, v{t}")
    for j, x in zip(js, slots or js):
        for kk in range(2): a.e(f"ds_write_b128 v{t+((x+3)>>3)}, {vr(reg(j,kk),4)} offset:{((x+3)&7)*8192 + 4096*kk}")

CV = {}
def conv_setup(a):
    v = VA(RXB); lane = 1
    t = v(); t2 = v(); t3 = v(); uo = v(); aa = v(); ba = v(); J = v(); G = v(); fl = v(); ta = v(); dop = v(4, 4); ya = v(4, 1)
    assert v.hi <= RB1
    CV.update(ta=ta, ya=ya, uo=uo, aa=aa, ba=ba, J=J, G=G, fl=fl, dop=dop, t=t)
    a.e("s_lshl_b32 s36, s38, 14"); a.e(f"s_add_u32 s36, s36, {UT}")
    a.e("s_add_u32 s20, s4, s36"); a.e("s_addc_u32 s21, s5, 0"); a.e("s_mov_b32 s22, 16384"); a.e("s_mov_b32 s23, 0x20000")
    a.e("s_lshl_b32 s36, s30, 6"); a.e(f"v_lshrrev_b32 v{t}, 2, v{lane}"); a.e(f"v_and_b32 v{uo}, 48, v2"); a.e(f"v_lshl_add_u32 v{uo}, v{t}, 8, v{uo}"); a.e(f"v_add_u32 v{uo}, s36, v{uo}")
    a.e("s_lshr_b32 s36, s39, 1"); a.e("s_lshl_b32 s36, s36, 2"); a.e("s_load_dword s41, s[76:77], s36")
    a.e(f"v_and_b32 v{J}, 15, v{lane}"); a.e(f"v_lshrrev_b32 v{G}, 4, v{lane}")
    a.e(f"v_and_b32 v{t}, 3, v{J}"); a.e(f"v_mul_u32_u24 v{aa}, {HSTR}, v{t}")
    a.e(f"v_lshl_add_u32 v{aa}, v{G}, 4, v{aa}"); a.e(f"v_lshrrev_b32 v{t}, 2, v{J}"); a.e(f"v_lshl_add_u32 v{aa}, v{t}, 3, v{aa}")
    a.e(f"v_add_u32 v{aa}, s40, v{aa}")
    a.e(f"v_sub_u32 v{t}, 15, v{J}"); a.e(f"v_lshlrev_b32 v{ba}, 5, v{t}"); a.e(f"v_add_u32 v{ba}, s40, v{ba}")
    a.e(f"v_lshl_add_u32 v{ba}, v{G}, 4, v{ba}")
    a.e("s_lshr_b32 s36, s38, 2"); a.e("s_lshl_b32 s36, s36, 12"); a.e(f"s_add_u32 s36, s36, {F_KVT}")
    a.e(f"v_lshlrev_b32 v{fl}, 7, v{lane}"); a.e(f"v_add_u32 v{fl}, s36, v{fl}")
def conv_setup2(a):
    t, J, G, ta, ya = [CV[k] for k in "t J G ta ya".split()]; lane = 1
    a.e(f"s_mul_i32 s36, s30, {CHB+64}")
    a.e(f"v_lshrrev_b32 v{t}, 1, v{J}"); a.e(f"v_mul_u32_u24 v{ya}, 72, v{t}"); a.e(f"v_and_b32 v{t}, 1, v{J}"); a.e(f"v_lshl_add_u32 v{ya}, v{t}, 4, v{ya}")
    a.e(f"v_lshl_add_u32 v{ya}, v{G}, 2, v{ya}"); a.e(f"v_add_u32 v{ya}, s36, v{ya}")
    for c_ in range(1, 4): a.e(f"v_add_u32 v{ya+c_}, {c_*16*72}, v{ya}")
    a.e(f"v_bfe_u32 v{t}, v{lane}, 2, 2"); a.e(f"v_mul_u32_u24 v{ta}, {CHB+64}, v{t}")
    a.e(f"v_mul_u32_u24 v{t}, 72, v{G}"); a.e(f"v_add_u32 v{ta}, v{ta}, v{t}")
    a.e(f"v_and_b32 v{t}, 3, v{lane}"); a.e(f"v_lshl_add_u32 v{ta}, v{t}, 3, v{ta}")
    a.e(f"s_mul_i32 s36, s30, {16*72}"); a.e(f"v_add_u32 v{ta}, s36, v{ta}")
def conv_diag(a):
    t, J, G, dop = CV["t"], CV["J"], CV["G"], CV["dop"]; t2, t3 = t + 1, t + 2
    a.e("s_bitcmp1_b32 s39, 0"); a.e("s_cselect_b32 s36, 0, 16"); a.e("s_lshl_b32 s41, s41, s36"); a.e("s_and_b32 s41, s41, 0xffff0000"); a.e("s_lshr_b32 s36, s41, 16")
    a.e(f"v_lshl_add_u32 v{t}, v{G}, 3, v{J}"); a.e(f"v_sub_u32 v{t}, 15, v{t}"); a.e(f"v_and_b32 v{t2}, 1, v{t}"); a.e(f"v_cmp_eq_u32 vcc, 1, v{t2}")
    a.e(f"v_mov_b32 v{t2}, s36"); a.e(f"v_mov_b32 v{t3}, s41"); a.e(f"v_cndmask_b32 v{t2}, v{t2}, v{t3}, vcc"); a.e(f"v_ashrrev_i32 v{t}, 1, v{t}")
    for i in range(4): a.e(f"v_cmp_eq_u32 vcc, {i}, v{t}"); a.e(f"v_cndmask_b32 v{dop+i}, 0, v{t2}, vcc")

def front_conv(a):
    v = VA(6, skip=True); lane = 1; l16 = 2
    t = v(); pt = v(4, 2)
    uo, aa, ba, J, G, fl, dop = [CV[k] for k in "uo aa ba J G fl dop".split()]
    ya, ta = CV["ya"], CV["ta"]
    acc = v(32, 4)
    fa = v(64, 4); fb = v(64, 4)
    def rdA(p, o):
        return [f"ds_read_b64 {vr(fa+32*p+4*s_+2*h,2)}, v{aa} offset:{64*(o+8*s_) + 32 + 8*h}" for s_ in range(8) for h in range(2)]
    def rdB(p, o):
        return [f"ds_read_b128 {vr(fb+32*p+4*k,4)}, v{ba} offset:{UOFF + 3584 - 512*k + 64*o}" for k in range(8)]
    a.e("s_lshl_b32 s44, s30, 12"); a.e("s_mov_b32 s45, 0x07060302")
    a.e("s_cmp_lg_u32 s30, 0"); a.e("s_cbranch_scc1 CV_w")
    poll_core(a, pt, fl, 0xffffffff, nap=env("NAPK", 5))
    a.e("CV_w:")
    a.e(f"s_add_u32 m0, s40, {UOFF}"); a.e("s_mov_b32 s36, 0")
    a.e("s_waitcnt vmcnt(0)"); a.e("s_barrier")
    mstamp(a)
    for it in range(4):
        a.e(f"buffer_load_dwordx4 v{uo}, s[20:23], s36 offen offset:{1024*it} {SC} lds")
        if it < 3: a.e("s_add_u32 s36, s36, 3072")
    a.e("s_barrier")
    load_q(a)
    for x in rdA(0, 0): a.e(x)
    a.e("s_waitcnt vmcnt(4)")
    mstamp(a)
    for x in rdB(0, 0): a.e(x)
    a.e("s_waitcnt lgkmcnt(0)")
    for c_ in range(8): a.e(f"v_mfma_f32_16x16x32_bf16 {vr(acc+4*c_,4)}, {vr(dop,4)}, {vr(fb+4*c_,4)}, 0")
    def step(p, nxt, tail):
        a.e("s_waitcnt lgkmcnt(0)")
        for i, (c_, s_) in enumerate([(c_, s_) for s_ in range(8) for c_ in range(s_, 8)]):
            a.e(f"v_mfma_f32_16x16x32_bf16 {vr(acc+4*c_,4)}, {vr(fa+32*p+4*s_,4)}, {vr(fb+32*p+4*(c_-s_),4)}, {vr(acc+4*c_,4)}")
            if nxt: a.e(nxt.pop(0))
            elif tail: a.e(tail.pop(0))
        assert not nxt and not tail
    NU = env("NU", 2)
    adv = [f"v_add_u32 v{aa}, 128, v{aa}", f"v_add_u32 v{ba}, 128, v{ba}", "s_add_u32 s43, s43, 1"]
    a.e("s_mov_b32 s43, 0")
    if NU:
        a.e("CV_r:")
        for p in range(2):
            step(p, [], [])
            for x in rdB(1 - p, p + 1) + rdA(1 - p, p + 1): a.e(x)
        for x in adv + [f"s_cmp_lt_u32 s43, {NU}"]: a.e(x)
        a.e("s_cbranch_scc1 CV_r")
    a.e("CV_l:")
    step(0, rdB(1, 1) + rdA(1, 1), [])
    step(1, rdB(0, 2) + rdA(0, 2), adv + ["s_cmp_lt_u32 s43, 4"])
    a.e("s_cbranch_scc1 CV_l")
    mstamp(a)
    a.e("s_bitcmp1_b32 s30, 0"); a.e("s_waitcnt lgkmcnt(0)"); a.e("s_cbranch_scc1 CV_o")
    for odd in range(2):
        for c_ in range(8):
            A = acc + 4 * c_
            for e in range(2):
                if odd: a.e(f"v_cvt_pk_bf16_f32 v{A+e}, v{A+e}, v{A+2+e}")
                else: a.e(f"v_perm_b32 v{A+e}, v{A+2+e}, v{A+e}, s45")
            for e in range(0 if odd else 2): a.e(f"v_or_b32 v{A+e}, 0x10001, v{A+e}")
            a.e(f"ds_write2_b32 v{ya+c_//2}, v{A}, v{A+1} offset0:{144*(c_&1)} offset1:{144*(c_&1)+8}")
        if not odd: a.e("s_branch CV_e"); a.e("CV_o:")
    a.e("CV_e:")
    lbar(a, 2, pt)
    for i in range(8): a.e(f"ds_read_b64_tr_b16 {vr(fa+2*i,2)}, v{ta} offset:{288*(i//2) + 32*(i&1)}")
    for i in range(4):
        a.e(f"s_waitcnt lgkmcnt({6-2*i})")
        a.e(f"buffer_store_dwordx4 {vr(fa+4*i,4)}, v{l16}, s[20:23], s44 offen offset:{1024*i} {SC}")
    assert v.hi <= 250

def r_addr(a):
    t, t2, I, fo, ro, yo, xo = RT, RT + 1, RI, RFO, RRO, RYO, RXO
    a.e(f"v_and_b32 v{I}, 7, v0")
    a.e(f"v_lshrrev_b32 v{t}, 6, v0"); a.e(f"v_lshlrev_b32 v{t}, 4, v{t}"); a.e(f"v_bfe_u32 v{t2}, v0, 3, 3"); a.e(f"v_add_u32 v{t}, v{t}, v{t2}")
    a.e("s_lshr_b32 s78, s29, 1"); a.e("s_lshl_b32 s78, s78, 16"); a.e("s_and_b32 s79, s29, 1"); a.e("s_lshl_b32 s79, s79, 7"); a.e("s_add_u32 s78, s78, s79")
    a.e("s_lshr_b32 s79, s30, 1"); a.e("s_lshl_b32 s79, s79, 13"); a.e("s_add_u32 s78, s78, s79")
    a.e(f"v_lshlrev_b32 v{fo}, 8, v{t}"); a.e(f"v_lshl_add_u32 v{fo}, v{I}, 4, v{fo}"); a.e(f"v_add_u32 v{fo}, s78, v{fo}")
    a.e("s_lshl_b32 s78, s28, 7"); a.e("s_lshl_b32 s79, s29, 3"); a.e("s_add_u32 s78, s78, s79")
    a.e(f"v_add_u32 v{yo}, s78, v{I}"); a.e(f"v_lshlrev_b32 v{ro}, 11, v{yo}")
    rowaddr(a, xo, yo, t2); a.e(f"v_lshl_add_u32 v{xo}, v{t}, 4, v{xo}")
    a.e(f"v_lshrrev_b32 v{t2}, 2, v{t}"); a.e(f"v_lshlrev_b32 v{t2}, 3, v{t2}"); a.e(f"v_and_b32 v{t}, 3, v{t}"); a.e(f"v_add_u32 v{t}, v{t}, v{t2}")
    a.e(f"v_lshl_add_u32 v{ro}, v{t}, 3, v{ro}")
    a.e(f"v_lshlrev_b32 v{yo}, 3, v{yo}"); a.e(f"v_lshl_add_u32 v{yo}, v{t}, 14, v{yo}")
def y_loads(): return [f"s_mov_b32 s78, {(16*j + 4*hh)*16384}\nbuffer_load_dwordx2 {vr(RYY+4*j+2*hh,2)}, v{RYO}, s[80:83], s78 offen {SC}" for j in range(2) for hh in range(2)]
def load_y(a):
    a.srd(80, 4, 4 * MB, off=Y)
    for x in y_loads(): a.e(x)
def r_pre(a):
    r_addr(a)
    load_y(a)

def w3_setup(a):
    w_srd(a, 3, 8)
    a.e("s_add_u32 s89, s29, 1"); a.e("s_and_b32 s89, s89, 15"); a.e("s_cmp_lg_u32 s28, s29"); a.e("s_cselect_b32 s89, s28, s89")
    a.e("s_and_b32 s90, s30, 3"); a.e("s_mul_i32 s36, s29, 448")
    for d, r in ((88, 29), (89, 89)): a.e(f"s_lshl2_add_u32 s{d}, s{r}, s90"); a.e(f"s_mul_i32 s{d}, s{d}, {16*7168}"); a.e(f"s_add_u32 s{d}, s{d}, s36")
    a.e("s_mul_i32 s90, s90, 7168")
def w3_piece(T, k, i0, i1):
    for i in range(i0, i1):
        T.e(f"s_add_u32 m0, s90, {CFG[3]['WB'] + k*CFG[3]['STB'] + 1024*i}"); T.vm(f"buffer_load_dwordx4 v{WVB[3]+i}, s[8:11], s{88+k} offen lds", "w")
def r_stage(a, pre=False):
    v = VA(6)
    t = v(); t2 = v(); I = RI; fo = RFO; pt = v(4, 2)
    xa = RXA; xb = RXB; yy = RYY; yf = RYF; x = v(16, 2); w = v(16, 2); tmp = v()
    S = v(2, 2); pp = v(2, 2); qq = v(2, 2); st = v(16, 4); mean = v(2, 2); rs = mean + 1; var = v(); sw = v(); sr = v(); wad = v(3, 2)
    assert v.hi <= RB0 and wad == WAD, v.hi
    def part(src, n):
        a.e(f"v_pk_add_f32 {vr(pp,2)}, {vr(src,2)}, {vr(src+2,2)}"); a.e(f"v_pk_mul_f32 {vr(qq,2)}, {vr(src,2)}, {vr(src,2)}")
        for i in range(1, 8):
            if i > 1: a.e(f"v_pk_add_f32 {vr(pp,2)}, {vr(pp,2)}, {vr(src+2*i,2)}")
            a.e(f"v_pk_fma_f32 {vr(qq,2)}, {vr(src+2*i,2)}, {vr(src+2*i,2)}, {vr(qq,2)}")
        a.e(f"v_add_f32 v{S}, v{pp}, v{pp+1}"); a.e(f"v_add_f32 v{S+1}, v{qq}, v{qq+1}")
        for k in range(2): a.e(f"v_add_f32_dpp v{S+k}, v{S+k}, v{S+k} row_ror:8 row_mask:0xf bank_mask:0xf")
        for op in ("v_permlane16_swap_b32", "v_permlane32_swap_b32"):
            for k in range(2): a.e(f"v_mov_b32 v{pp+k}, v{S+k}")
            for k in range(2): a.e(f"{op} v{S+k}, v{pp+k}")
            a.e(f"v_pk_add_f32 {vr(S,2)}, {vr(S,2)}, {vr(pp,2)}")
        a.e(f"ds_write_b64 v{sw}, {vr(S,2)} offset:{n*1536}")
    def comb(n):
        for k in range(4): a.e(f"ds_read_b128 {vr(st+4*k,4)}, v{sr} offset:{n*1536+16*k}")
        a.e("s_waitcnt lgkmcnt(0)")
        for k in range(4): a.e(f"v_pk_add_f32 {vr(st+4*k,2)}, {vr(st+4*k,2)}, {vr(st+4*k+2,2)}")
        a.e(f"v_pk_add_f32 {vr(st,2)}, {vr(st,2)}, {vr(st+4,2)}"); a.e(f"v_pk_add_f32 {vr(st+8,2)}, {vr(st+8,2)}, {vr(st+12,2)}")
        a.e(f"v_pk_add_f32 {vr(st,2)}, {vr(st,2)}, {vr(st+8,2)}")
        a.e(f"v_mul_f32 v{mean}, {f32(1/1024)}, v{st}"); a.e(f"v_mul_f32 v{var}, {f32(1/1024)}, v{st+1}")
        a.e(f"v_fma_f32 v{var}, -v{mean}, v{mean}, v{var}"); a.e(f"v_max_f32 v{var}, 0, v{var}")
    def norm():
        ln_finish(a, mean, var, rs)
        a.e(f"v_mul_f32 v{mean}, -v{mean}, v{rs}")
        for i in range(8): a.e(f"v_pk_fma_f32 {vr(w+2*i,2)}, {vr(x+2*i,2)}, {vr(mean,2)}, {vr(mean,2)} op_sel:[0,1,0] op_sel_hi:[1,1,0]")
    a.e(f"v_and_b32 v{I}, 7, v0"); a.e(f"v_lshlrev_b32 v{sr}, 6, v{I}"); a.e(f"v_add_u32 v{sr}, {AUX+2048}, v{sr}")
    a.e(f"s_lshl_b32 s35, s30, 3"); a.e(f"v_add_u32 v{sw}, s35, v{sr}")
    if pre:
        for i in range(8): unpack(a, x + 2 * i, x + 2 * i + 1, xa + i)
        part(x, 0)
        return
    wr_addr(a, wad, t)
    a.e(f"s_cmp_eq_u32 s60, 0"); a.e(f"s_cbranch_scc1 R_l0")
    p1_off(a, 36, 37); a.e("s_add_u32 s12, s4, s36"); a.e("s_addc_u32 s13, s5, 0"); a.e(f"s_mov_b32 s14, {XSZ}"); a.e("s_mov_b32 s15, 0x20000")
    data_wait(a, [f"buffer_load_dwordx4 {vr(xa+4*j,4)}, v{fo}, s[12:15], 0 offen offset:{2048*j} {SC}" for j in range(2)], list(range(xa, xa + 8)), t,
              lambda: (a.e("s_waitcnt vmcnt(2)"), [unpack(a, yf + 2 * i, yf + 2 * i + 1, yy + i) for i in range(8)]), nap=env("NAP4", 2))
    mstamp(a)
    for i in range(8): unpack(a, x + 2 * i, x + 2 * i + 1, xa + i)
    part(x, 0)
    x3_srd(a, 20)
    a.e("s_waitcnt lgkmcnt(0)"); a.e("s_barrier")
    comb(0)
    norm()
    a.e("s_branch R_s2")
    a.e("R_l0:")
    def shadow():
        a.e("s_cmp_lt_u32 s30, 4"); a.e("s_cbranch_scc1 R_f2")
        w_dump(a, w1raw, pt, W1A[5:])
        a.e("R_f2:")
        a.e(f"v_mov_b32 v{t}, {LW+28}"); a.e(f"ds_read_b32 v{t2}, v{t}")
        comb(0)
        norm()
        a.e(f"v_readfirstlane_b32 s94, v{t2}")
        if STAMP: a.e("s_mov_b32 s95, s94")
        a.e(f"s_cmp_gt_u32 s94, {NVOTE // 2}"); a.e("s_cselect_b32 s94, 1, 0")
        group_off(a, 55, 28)
        a.e("s_add_u32 s62, s4, s55"); a.e("s_addc_u32 s63, s5, 0")
        a.e("s_sub_u32 s36, s28, 1"); a.e("s_max_i32 s36, s36, 0"); group_off(a, 92, 36); a.e("s_sub_u32 s92, s92, s55")
        a.e("s_add_u32 s36, s28, 1"); a.e("s_min_u32 s36, s36, 15"); group_off(a, 93, 36); a.e("s_sub_u32 s93, s93, s55")
        a.e(f"s_add_u32 s55, s55, {oSM}")
        x3_srd(a, 20)
    shadow()
    def w2d():
        a.e("s_cmp_lt_u32 s30, 4"); a.e("s_cbranch_scc1 R_f3")
        a.e("s_waitcnt vmcnt(4)")
        w_dump(a, wreg, pt, range(NRAW), W2S)
        a.e("R_f3:")
    a.srd(80, 4, 4 * MB, off=Y)
    mstamp(a)
    data_wait(a, y_loads(), list(range(yy, yy + 8)), t, w2d, nap=env("NAPY", 4))
    mstamp(a)
    for i in range(8): unpack(a, yf + 2 * i, yf + 2 * i + 1, yy + i)
    a.e("R_s2:")
    for i in range(8):
        a.e(f"v_pk_fma_f32 {vr(x+2*i,2)}, {vr(w+2*i,2)}, {vr(yf+2*i,2)}, {vr(x+2*i,2)}")
        if i % 4 == 3:
            for k in range(i - 3, i + 1): a.e(f"v_cvt_pk_bf16_f32 v{xa+k}, v{x+2*k}, v{x+2*k+1}")
            a.e(f"buffer_store_dwordx4 {vr(xa+i-3,4)}, v{RXO}, s[20:23], 0 offen offset:{128*(i//4)} {SC}")
    part(x, 1)
    a.e("s_waitcnt lgkmcnt(0)"); a.e("s_barrier")
    a.e("s_cmp_ge_u32 s30, 4"); a.e("s_cbranch_scc1 LOADERS")
    a.e("s_cmp_lg_u32 s30, 3"); a.e("s_cbranch_scc1 R_nl")
    comb(1)
    outv = w; m4 = w + 4; v4_ = w + 5
    a.e(f"v_mov_b32 v{m4}, v{mean}"); a.e(f"v_mov_b32 v{v4_}, v{var}")
    ln_finish(a, mean, var, rs)
    a.e(f"v_sub_f32 v{m4}, v{m4}, v{mean}"); a.e(f"v_mul_f32 v{m4}, v{m4}, v{rs}")
    a.e(f"v_mul_f32 v{v4_}, v{v4_}, v{rs}"); a.e(f"v_mul_f32 v{v4_}, v{v4_}, v{rs}")
    ln_finish(a, m4, v4_, None)
    a.e(f"v_cvt_pk_bf16_f32 v{outv}, v{mean}, v{var}"); a.e(f"v_cvt_pk_bf16_f32 v{outv+2}, v{m4}, v{v4_}")
    a.e(f"v_mov_b32 v{outv+1}, s52"); a.e(f"v_mov_b32 v{outv+3}, s52")
    lns_srd(a, 24)
    a.e("s_lshl_b32 s36, s28, 4"); a.e("s_add_u32 s36, s36, s29"); a.e("s_lshl_b32 s36, s36, 7")
    a.e("s_mov_b64 exec, 0xff")
    a.e(f"buffer_store_dwordx4 {vr(outv,4)}, v2, s[24:27], s36 offen {SC}")
    a.e("s_mov_b64 exec, -1")
    a.e("R_nl:")
    a.e(f"v_mov_b32 v{t}, 1"); a.e(f"v_mov_b32 v{t2}, 0")
    a.e("s_cmp_eq_u32 s30, 3"); a.e("s_waitcnt vmcnt(1)"); a.e("s_cbranch_scc1 R_n2")
    a.e("s_waitcnt vmcnt(0)")
    a.e("R_n2:")
    a.e("s_barrier")
    a.e("s_cmp_lg_u32 s30, 0"); a.e("s_cbranch_scc1 R_n3")
    a.e("s_mov_b64 exec, 1"); a.e(f"buffer_atomic_add v{t}, v{t2}, s[56:59], s55 offen {SC}"); a.e("s_mov_b64 exec, -1")
    a.e("R_n3:")
    wr_read(a, wad, W1A)
def rot_init(a, which):
    a.e("s_mov_b32 s44, s29" if which == 3 else "s_mov_b32 s44, 0")
def stage3(b, d):
    b.e("s_cmp_eq_u32 s44, s47"); b.e(f"s_cselect_b32 s{d}, s46, s44")
def stage3_init(a):
    a.e("s_add_u32 s46, s29, 1"); a.e("s_and_b32 s46, s46, 15"); a.e("s_cmp_eq_u32 s28, s29"); a.e("s_cselect_b32 s47, s46, s28")
def rot_next(a, which):
    a.e("s_add_u32 s44, s44, 1")
    if which != 4: a.e("s_and_b32 s44, s44, 15")
def kb4(a, d, lw):
    a.e("s_lshl_b32 s45, s44, 1"); a.e(f"s_add_u32 s45, s45, {lw}"); a.e("s_sub_u32 s45, s45, 32")
    a.e("s_mul_i32 s46, s45, 86"); a.e("s_lshr_b32 s46, s46, 8")
    a.e("s_mul_i32 s47, s46, 3"); a.e("s_sub_u32 s47, s45, s47"); a.e("s_lshl_b32 s47, s47, 2"); a.e("s_lshr_b32 s47, 0x362, s47"); a.e("s_and_b32 s47, s47, 7")
    a.e("s_cmp_ge_u32 s44, 10"); a.e("s_cselect_b32 s45, 9, 2"); a.e("s_cselect_b32 s51, 1, 0"); a.e("s_sub_u32 s45, s44, s45")
    a.e("s_cmp_lt_u32 s44, 3"); a.e("s_cselect_b32 s45, 0, s45"); a.e("s_cselect_b32 s51, s44, s51")
    a.e(f"s_lshl2_add_u32 s51, {lw}, s51")
    a.e("s_cmp_lt_u32 s44, 17"); a.e("s_cselect_b32 s47, s51, s47"); a.e("s_cselect_b32 s46, s45, s46")
    a.e("s_add_u32 s46, s46, s33"); a.e("s_and_b32 s46, s46, 7"); a.e("s_mul_i32 s46, s46, 7"); a.e(f"s_add_u32 s{d}, s46, s47")
assert all((q * 86) >> 8 == q // 3 for q in range(24))
def w_lanes(a, which, t, t2):
    if 1 in which:
        R = WVB[1]
        a.e(f"v_lshrrev_b32 v{t}, 3, v1"); a.e(f"v_lshlrev_b32 v{R}, 11, v{t}")
        a.e(f"v_and_b32 v{t}, 6, v{t}"); a.e(f"v_and_b32 v{t2}, 7, v1"); a.e(f"v_xor_b32 v{t}, v{t}, v{t2}"); a.e(f"v_lshl_add_u32 v{R}, v{t}, 4, v{R}")
        return
    R = WVB[4]
    for p in range(2):
        a.e(f"v_lshrrev_b32 v{t}, 4, v1"); a.e(f"v_lshlrev_b32 v{R+p}, 11, v{t}")
        a.e(f"v_add_u32 v{t}, {4*p}, v{t}"); a.e(f"v_lshlrev_b32 v{t}, 1, v{t}"); a.e(f"v_and_b32 v{t2}, 15, v1"); a.e(f"v_xor_b32 v{t}, v{t}, v{t2}")
        a.e(f"v_lshl_add_u32 v{R+p}, v{t}, 4, v{R+p}")
    R = WVB[3]
    assert all((p * 2341) >> 16 == p // 28 for p in range(448))
    for ii in range(7):
        a.e(f"v_add_u32 v{t2}, {64*ii}, v1"); a.e(f"v_mul_u32_u24 v{t}, 2341, v{t2}"); a.e(f"v_lshrrev_b32 v{t}, 16, v{t}")
        a.e(f"v_mul_u32_u24 v{R+ii}, 28, v{t}"); a.e(f"v_sub_u32 v{t2}, v{t2}, v{R+ii}")
        a.e(f"v_mul_u32_u24 v{R+ii}, 7168, v{t}")
        a.e(f"v_lshrrev_b32 v{t}, 1, v{t}"); a.e(f"v_and_b32 v{t}, 2, v{t}"); a.e(f"v_xor_b32 v{t2}, v{t2}, v{t}")
        a.e(f"v_lshl_add_u32 v{R+ii}, v{t2}, 4, v{R+ii}")
def w_srd(a, which, d=12):
    c = CFG[which]
    a.e(f"s_mov_b64 s[{d}:{d+1}], s[{66+2*which}:{67+2*which}]")
    a.e(f"s_mov_b32 s{d+2}, {c['KBT'] * 32 * c['LDW']}"); a.e(f"s_mov_b32 s{d+3}, 0x20000")
def w_setup(a, which, pre=True):
    c = CFG[which]; STB = c["STB"]; BW = STB // 2
    w_srd(a, which)
    a.e("s_and_b32 s35, s30, 1")
    a.e(f"s_mul_i32 s38, s{29 if which != 4 else 33}, {c['RB']}")
    if which == 1: a.e("s_xor_b32 s38, s38, 128")
    if which != 4: a.e(f"s_mul_i32 s41, s35, {32*c['LDW']}"); a.e("s_add_u32 s38, s38, s41")
    if which == 4: a.e(f"s_mul_i32 s41, s31, {1792*c['LDW']}"); a.e("s_add_u32 s38, s38, s41")
    a.e(f"s_mul_i32 s41, s35, {BW}")
    if c["WB"]: a.e(f"s_add_u32 s41, s41, {c['WB']}")
    a.e("s_mov_b32 s42, 0"); rot_init(a, which)
    if not pre: return
    NP = c["NPRE"]
    a.e("s_mov_b32 s49, s44"); a.e(f"s_and_b32 s43, s28, {3 * env('WROT', 0)}"); a.e(f"s_mul_i32 s43, s43, {NP}"); a.e("s_lshr_b32 s43, s43, 2"); a.e("s_mov_b32 s50, 0")
    L = a.lab("wpre"); a.e(f"{L}:")
    a.e(f"s_mul_i32 s42, s43, {STB}"); a.e("s_add_u32 s44, s49, s43")
    w_issue(a, which, pace=PACES.get(which, PACE))
    a.e("s_add_u32 s43, s43, 1"); a.e(f"s_cmp_eq_u32 s43, {NP}"); a.e("s_cselect_b32 s43, 0, s43")
    a.e("s_add_u32 s50, s50, 1"); a.e(f"s_cmp_lt_u32 s50, {NP}"); a.e(f"s_cbranch_scc1 {L}")
    mstamp(a)
    a.e(f"s_mov_b32 s42, {(NP % c['NW']) * STB}"); a.e(f"s_add_u32 s44, s49, {NP}")
def w_slots(a, items, pace=0):
    for kh, u, ad in items:
        a.e(f"s_mov_b32 s42, {ad}"); a.e(f"s_add_u32 s44, s67, {u}"); a.e("s_and_b32 s44, s44, 7")
        if kh: a.e("s_or_b32 s44, s44, 8")
        call_issue(a, w_issue, 1)
        if pace: a.e(f"s_waitcnt vmcnt({pace})")
def w1_slots(a, js, pace=0): w_slots(a, [(j >> 3, j & 7, WST + j * 8192) for j in js], pace)
def w_parts(which):
    c = CFG[which]; STB = c["STB"]; n = STB // 2048; LDW = c["LDW"]; b = Rec()
    b.e("s_add_u32 s19, s41, s42")
    arm = ["s_mov_b32 m0, s19", "s_mov_b32 s39, s16"]
    if which == 4:
        b.e("s_and_b32 s40, s30, 1"); kb4(b, 16, "s40")
        b.e(f"s_mul_i32 s16, s16, {32*LDW}"); b.e("s_add_u32 s16, s16, s38")
    elif which == 3:
        stage3(b, 16); b.e(f"s_mul_i32 s16, s16, {64*LDW}"); b.e("s_add_u32 s16, s16, s38")
    else:
        b.e(f"s_mul_i32 s16, s44, {64*LDW}"); b.e("s_add_u32 s16, s16, s38")
    if which > 2:
        rot_next(b, which)
        b.e(f"s_add_u32 s42, s42, {STB}"); b.e(f"s_cmp_eq_u32 s42, {c['NW']*STB}"); b.e("s_cselect_b32 s42, 0, s42")
    fire = []
    for i in range(n):
        g = []
        if i:
            g.append("s_add_u32 m0, m0, 1024")
            if which in (1, 2): g.append(f"s_add_u32 s39, s39, {8*LDW}")
            elif which == 4: g.append(f"s_add_u32 s39, s39, {4*LDW}")
            elif i == 7: g.append(f"s_add_u32 s39, s39, {16*LDW}")
        vo = WVB[which] + (0 if which in (1, 2) else (i & 1) if which == 4 else i % 7)
        fire.append(g + [f"buffer_load_dwordx4 v{vo}, s[12:15], s39 offen {os.environ.get('WF', '').replace('_', ' ')} lds"])
    return b.l, arm, fire
def w_issue(a, which, pace=0):
    prep, arm, fire = w_parts(which)
    for x in prep + arm: a.e(x)
    for i, g in enumerate(fire):
        for x in g: a.e(x)
        if pace and (i % 4 == 3 or i == len(fire) - 1): a.e(f"s_waitcnt vmcnt({pace})")

def w_bases(a, which, dst, swn, ntl, t, t2):
    c = CFG[which]; RB = c["RB"]
    a.e(f"v_lshrrev_b32 v{t}, 2, v1")
    a.e(f"v_mul_u32_u24 v{dst}, {RB}, v{t}"); a.e(f"v_and_b32 v{t2}, 3, v1"); a.e(f"v_lshl_add_u32 v{dst}, v{t2}, 3, v{dst}")
    if c["WB"]: a.e(f"v_add_u32 v{dst}, {c['WB']}, v{dst}")
    if which == 3:
        a.e(f"v_mul_u32_u24 v{dst+2}, {RB}, v{t}"); a.e(f"v_and_b32 v{t2}, 2, v1"); a.e(f"v_lshl_add_u32 v{dst+2}, v{t2}, 2, v{dst+2}")
        a.e(f"v_bfe_u32 v{t}, v1, 4, 1"); a.e(f"v_and_b32 v{t2}, 1, v1"); a.e(f"v_xor_b32 v{t2}, v{t2}, v{t}"); a.e(f"v_lshl_add_u32 v{dst+2}, v{t2}, 5, v{dst+2}")
        a.e(f"s_lshl_b32 s36, s{swn}, 4"); a.e(f"s_add_u32 s36, s36, {c['WB'] + 192}"); a.e(f"v_add_u32 v{dst+2}, s36, v{dst+2}")
        a.e(f"s_lshl_b32 s36, s{swn}, 8"); a.e(f"v_add_u32 v{dst}, s36, v{dst}"); a.e(f"v_lshlrev_b32 v{t}, 5, v{t}")
        a.e(f"v_sub_u32 v{dst+1}, v{dst}, v{t}"); a.e(f"v_add_u32 v{dst}, v{dst}, v{t}")
        return 3, lambda nt, kk, h: (nt & 1, (32 * kk + 16 * h) * RB + 32 * nt) if nt < 6 else (2, (32 * kk + 16 * h) * RB)
    if which == 4: a.e(f"v_and_b32 v{t}, 7, v{t}")
    else: a.e(f"v_bfe_u32 v{t}, v{t}, 1, 2")
    for nt in range(ntl - 1, -1, -1):
        a.e(f"s_mul_i32 s36, s{swn}, {ntl}"); a.e(f"s_add_u32 s36, s36, {nt}")
        a.e(f"v_xor_b32 v{t2}, s36, v{t}"); a.e(f"v_lshl_add_u32 v{dst+nt}, v{t2}, 5, v{dst}")
    return ntl, lambda nt, kk, h: (nt, (32 * kk + 16 * h) * RB)

def a_parts(which):
    c = CFG[which]; b = Rec()
    b.e("s_add_u32 s19, s41, s42")
    arm = ["s_mov_b32 m0, s19", "s_mov_b32 s39, s16"]; fire = []
    if which == 4:
        for lw in range(2):
            kb4(b, 16 + lw, lw); spread(b, 16 + lw, 16 + lw); b.e(f"s_add_u32 s{16+lw}, s{16+lw}, s38")
        arm.append("s_mov_b32 s40, s17")
        for i in range(4):
            for lw in range(2):
                fire.append((["s_add_u32 m0, m0, 1024"] if i or lw else []) + ([f"s_add_u32 s{39+lw}, s{39+lw}, {'s37' if i == 2 else c['KBT']*2048}"] if i else []) +
                            [f"buffer_load_dwordx4 v2, s[12:15], s{39+lw} offen {SC} lds"])
    else:
        stage3(b, 16); b.e("s_cmp_eq_u32 s44, s46"); b.e("s_cselect_b32 s16, s47, s16")
        b.e("s_lshr_b32 s45, s16, 2"); b.e("s_lshl_b32 s45, s45, 14"); b.e("s_and_b32 s16, s16, 3"); b.e("s_lshl_b32 s16, s16, 11")
        b.e("s_add_u32 s16, s16, s45"); b.e("s_add_u32 s16, s16, s38"); step = c['KBT'] * 2048
        for i in range(4):
            fire.append((["s_add_u32 m0, m0, 2048", f"s_add_u32 s39, s39, {step}"] if i else []) + [f"buffer_load_dwordx4 v2, s[12:15], s39 offen {SC} lds"])
            fire.append([f"buffer_load_dwordx4 v2, s[12:15], s39 offen offset:1024 {SC} lds"])
    rot_next(b, which)
    b.e(f"s_add_u32 s42, s42, 16384"); b.e(f"s_cmp_eq_u32 s42, {c['NA']*16384}"); b.e("s_cselect_b32 s42, 0, s42")
    return b.l, arm, fire
def a_issue(a, which):
    prep, arm, fire = a_parts(which)
    for x in prep + arm + sum(fire, []): a.e(x)
SUBS = {}
def call_issue(a, issue, which):
    nm = f"SUB_{issue.__name__}_{which}"; SUBS[nm] = (issue, which)
    a.e(f"s_call_b64 s[76:77], {nm}")
def emit_subs(a):
    for nm, (issue, which) in SUBS.items():
        a.e(f"{nm}:"); issue(a, which); a.e("s_setpc_b64 s[76:77]")
def ld_steps(a, which, N, per, issue, npre, rate=2, plan={}, lo=0, hi=None, last=None, hold=(), start=None):
    NS = CFG[which]["NS"]
    prep, arm, fire = (w_parts if issue is w_issue else a_parts)(which); h = max(1, per * HSPLIT // 8)
    plan = {b: (x if isinstance(x, list) else [x]) for b, x in plan.items()}
    q = [s_ for s_ in range(npre) for _ in range(per)]
    def after(tag):
        if issue is w_issue and isinstance(tag, int) and tag < npre and (env('WROT', 0) or which == 3): tag = npre - 1
        return len(q) - 1 - max(i for i, x in enumerate(q) if x == tag)
    issued = npre; steps = []
    for b in range(NS):
        acts = plan.get(b, []); was = {}
        def do(pos):
            for n_, act in enumerate(acts):
                if act[0] != pos: continue
                if act[1] is not None: was[n_] = after(act[1])
                q.extend([act[4]] * act[3])
        do(True)
        k = 0
        if b > 0 and b not in hold: k = max(0, min(rate, min(NS, b - 1 + N) - issued))
        assert k or not any(x[0] == "mid" for x in acts)
        for j in range(k):
            q.extend([issued] * h)
            if j == 0: do("mid")
            q.extend([issued] * (per - h)); issued += 1
        do(False)
        w = after(b); assert w <= 63
        steps.append((k, w, b if acts else None, tuple(sorted(was.items())), issued < NS))
    def em(l):
        for x in l:
            a.e(x)
            if x == "s_barrier" and os.environ.get("JIT"): mstamp(a)
    F1, F2 = sum(fire[:h], []), sum(fire[h:], [])
    lprep = prep
    if len(prep) > 8:
        nm = f"PREP_{issue.__name__}_{which}"; SUBS[nm] = ((lambda a_, w_, l=prep: [a_.e(x) for x in l]), which)
        prep = [f"s_call_b64 s[76:77], {nm}"]
    if lo == 0 or start: em(prep + arm)
    i = lo; HI = NS if hi is None else hi
    while i < HI:
        j = i
        while j < HI and steps[j] == steps[i]: j += 1
        k, w, ab, was, more = steps[i]; n = j - i; was = dict(was)
        def run(pos):
            for n_, act in enumerate(plan.get(ab, [])):
                if act[0] != pos: continue
                if n_ in was: a.e(f"s_waitcnt vmcnt({was[n_]})")
                act[2]()
        tail = [f"s_waitcnt vmcnt({w})", "s_barrier"]
        if n > 2 and k == 1:
            em(F1); a.e("s_mov_b32 s43, 1"); L = a.lab("ld"); a.e(f"{L}:")
            em(lprep + F2 + arm + tail + F1)
            a.e("s_add_u32 s43, s43, 1"); a.e(f"s_cmp_lt_u32 s43, {n}"); a.e(f"s_cbranch_scc1 {L}")
            em(prep + F2 + arm + tail)
        else:
            for r in range(n):
                run(True)
                for jj in range(k):
                    nxt = more or jj < k - 1
                    em(F1)
                    if jj == 0: run("mid")
                    em((prep if nxt else []) + F2 + (arm if nxt else []))
                run(False)
                em(tail)
        i = j
    if hi is not None: return
    if last: last()
    if issue is a_issue and which == 3 and env("T4", 1):
        X = a.lab("tw4"); a.e("s_cmp_lg_u32 s60, 0"); a.e(f"s_cbranch_scc1 {X}"); touch(a, 4, 7 * MB, 60); a.e(f"{X}:")
    a.e("s_barrier")

SP0 = 22
W1T = env("W1T", {23: (3,), 24: (4, 5), 25: (6, 13), 26: (14, 0, 15), 27: (11, 12)})
W1D = env("W1D", (15, 11, 12)); W1R = tuple(j for l in W1T.values() for j in l if j not in W1D); W1L = tuple(j for j in W1B if j not in W1R)
def w1raw2(j, kk):
    i = 2 * W1R.index(j) + kk
    return 12 + 4 * i if i < 16 else RXB + 4 * (i - 16)
def w1_tail_setup(a):
    w_srd(a, 1, 8)
    a.e("s_and_b32 s3, s30, 3"); a.e("s_lshl_b32 s36, s3, 14"); a.e("s_lshl_b32 s90, s29, 7"); a.e("s_add_u32 s90, s90, s36"); a.e("s_xor_b32 s90, s90, 128"); a.e("s_lshl_b32 s3, s3, 10")
def w1_piece(a, b):
    for j in W1T[b]:
        a.e(f"s_add_u32 s36, s67, {j & 7}"); a.e("s_and_b32 s36, s36, 7"); a.e("s_lshl_b32 s36, s36, 17"); a.e("s_add_u32 s36, s36, s90")
        if j >= 8: a.e(f"s_add_u32 s36, s36, {MB}")
        for kk in range(2):
            if j in W1R: a.e(f"buffer_load_dwordx4 {vr(w1raw2(j,kk),4)}, v{WVB[1]}, s[8:11], s36 offen")
            else: a.e(f"s_add_u32 m0, s3, {WST + j * 8192 + 4096 * kk}"); a.e(f"buffer_load_dwordx4 v{WVB[1]}, s[8:11], s36 offen lds")
            if kk == 0: a.e("s_add_u32 s36, s36, 65536")
def tail_steps(a, b0, q0, issue, need):
    q = [list(q0), list(q0)]
    def cnt(l, tag): return len(l) - 1 - max(i for i, x in enumerate(l) if x == tag) if tag in l else None
    for b in range(b0, 28):
        n = issue(b)
        for l in q: l += n
        if b in W1T:
            X = a.lab("tl"); Z = a.lab("tz")
            q[0] += ["w"] * (2 * len(W1T[b]))
            a.e("s_cmp_lg_u32 s60, 0"); a.e(f"s_cbranch_scc1 {X}")
            call_issue(a, w1_piece, b)
            if cnt(q[0], need(b)) is not None: a.e(f"s_waitcnt vmcnt({cnt(q[0], need(b))})"); a.e(f"s_branch {Z}")
            a.e(f"{X}:")
        if cnt(q[1], need(b)) is not None: a.e(f"s_waitcnt vmcnt({cnt(q[1], need(b))})")
        if b in W1T: a.e(f"{Z}:")
        for l in q:
            if need(b) in l: del l[:len(l) - cnt(l, need(b))]
        a.e("s_barrier")
        if os.environ.get("JIT"): mstamp(a)
    g4_end(a)
def g4_end(a):
    a.e("s_cmp_eq_u32 s60, 1"); a.e("s_cbranch_scc1 K_fin")
    a.e("s_branch Y_END")
def y_end(a):
    a.e("Y_END:")
    if 28 in W1T: w1_piece(a, 28)
    r_pre(a)
    o = [j for l in W1T.values() for j in l]
    a.e(f"s_waitcnt vmcnt({4 + 2 * (len(o) - 1 - o.index(W1R[-1]))})")
    a.e("s_barrier")
    w_dump(a, w1raw2, 8, W1R); a.e("s_waitcnt lgkmcnt(0)")
def a_loader(a, which):
    c = CFG[which]
    a.e("s_and_b32 s35, s30, 1")
    lsrd(a, 12, c["A"], XSZ if which != 4 else H2SZ)
    a.e(f"s_mul_i32 s38, s35, {4*c['KBT']*2048}")
    if which == 4:
        a.e(f"s_mul_i32 s36, s31, {7*16384 + 2*c['KBT']*2048}"); a.e("s_add_u32 s38, s38, s36")
        a.e(f"s_mul_i32 s37, s31, {4*c['KBT']*2048}"); a.e(f"s_sub_u32 s37, {c['KBT']*2048}, s37")
    a.e("s_lshl_b32 s41, s35, 13"); a.e("s_mov_b32 s42, 0"); rot_init(a, which)
    assert c["NA"] == 3
    if which == 4:
        flag_in(a, 34, ST_G3B); flag_in(a, 35, ST_G3)
        P4 = env("P4", 2)
        a.e(f"s_sub_u32 s48, s34, {(ST_G3B - ST_G3A) * 128}")
        plan = {**({1: [(True, None, lambda: flag_try(a, 32, 48), 0, None), (False, None, lambda: (flag_check(a, 32, 48, 8), mstamp(a)), 0, None)]} if P4 == 1 else
                   {1: (True, None, lambda: flag_try(a, 32, 48), 0, None), 2: (True, None, lambda: (flag_check(a, 32, 48, 8), mstamp(a)), 0, None)} if P4 == 2 else {}),
                7: ("mid", None, lambda: flag_try(a, 32, 34), 0, None), 8: ("mid", None, lambda: flag_check(a, 32, 34, 8), 0, None),
                14: ("mid", None, lambda: flag_try(a, 32, 35), 0, None), 15: ("mid", None, lambda: flag_check(a, 32, 35, 8), 0, None)}
        a.e("s_mov_b32 s44, 3")
        def offs():
            for i in range(12):
                q = 2 * SP0 + i - 32
                a.e(f"s_add_u32 s36, s33, {q // 3}"); a.e("s_and_b32 s36, s36, 7"); a.e("s_mul_i32 s36, s36, 7"); a.e(f"s_add_u32 s36, s36, {(2, 6, 3)[q % 3]}"); spread(a, 78 + i, 36)
        offs(); w1_tail_setup(a)
        ld_steps(a, which, 3, 8, a_issue, 3, plan=plan, hi=SP0 - 1)
        TS = c['KBT'] * 2048
        a.e(f"s_add_u32 s39, s38, s37"); a.e(f"s_add_u32 s39, s39, {TS}")
        def issue(b):
            t = b + 1 - SP0
            if t > 5: return []
            if t == 3: a.e("s_mov_b32 s39, s38")
            a.e(f"s_add_u32 m0, s41, {(b + 1) % 3 * 16384}")
            for j in range(2):
                for kk in range(2): a.e(f"s_add_u32 s{16+kk}, s39, s{78 + 4*(t%3) + 2*j + kk}")
                for i in range(2):
                    for kk in range(2):
                        if i: a.e(f"s_add_u32 s{16+kk}, s{16+kk}, {TS}")
                        a.e(f"buffer_load_dwordx4 v2, s[12:15], s{16+kk} offen {SC} lds")
                        if j + i + kk < 3: a.e("s_add_u32 m0, m0, 1024")
            return [b + 1] * 8
        return tail_steps(a, SP0 - 1, [SP0 - 1] * 8, issue, lambda b: b)
    mask = flag_addr(a, 9, ST_G2)
    def wait2(): g2_signal(a, 0); mstamp(a); poll_core(a, 8, 9, mask, cnt=16, nap=env("NAP2", 5)); mstamp(a)
    rot_next(a, 3); stage3_init(a); a.e("s_mov_b32 s42, 16384")
    plan = side_jobs(a)
    plan[1] = (True, None, wait2, 0, None)
    ld_steps(a, which, 3, 8, a_issue, 1, plan=plan, lo=1, start=True)

def g2_signal(a, wait):
    publish(a, ST_G2, 14, wait=wait)
    G2S[0](); a.e("s_waitcnt lgkmcnt(0)")
G2S = []
def side_jobs(a):
    c = CFG[3]
    sv = 18; Q, tt, mean, rs, ad, fa, fr, co_, ct = 50, 51, 52, 53, 10, 11, 12, 13, 6
    cv = 54; N = 3584; HB = c["TN16"] * 32
    assert cv + 64 <= WVB[1]
    def cld(k0=0, k1=4):
        if k0 == 0:
            flag_check(a, 3, 40, 14)
            a.srd(24, 4, 16 * N * 4, off=CSP3)
            a.e("s_cmp_eq_u32 s60, 0"); a.e("s_cselect_b32 s26, s26, 0")
            a.e("s_and_b32 s36, s30, 1"); a.e(f"s_mul_i32 s36, s36, {HB}"); a.e(f"s_mul_i32 s37, s29, {2*HB}"); a.e("s_add_u32 s37, s36, s37")
            a.e(f"v_lshrrev_b32 v{co_}, 5, v1"); a.e(f"v_mul_u32_u24 v{co_}, {N*4}, v{co_}")
            a.e(f"v_and_b32 v{ct}, {16*31}, v2"); a.e(f"v_add_u32 v{co_}, v{co_}, v{ct}")
        for k in range(k0, k1):
            a.e(f"buffer_load_dwordx4 {vr(cv+4*k,4)}, v{co_}, s[24:27], s37 offen {SC}"); a.e(f"s_add_u32 s37, s37, {N*4*2}")
    def piece(lines, l0=False):
        def f():
            X = a.lab("pc")
            if l0: a.e("s_cmp_lg_u32 s60, 0"); a.e(f"s_cbranch_scc1 {X}")
            for x in lines: a.e(x)
            if l0: a.e(f"{X}:")
        return f
    def cadd(k0, k1): return [f"v_pk_add_f32 {vr(cv+2*h,2)}, {vr(cv+2*h,2)}, {vr(cv+4*k+2*h,2)}" for k in range(k0, k1) for h in range(2)]
    def sw(op): return [f"v_mov_b32 v{cv+4+e}, v{cv+e}" for e in range(4)] + [f"{op} v{cv+e}, v{cv+4+e}" for e in range(4)] + cadd(1, 2)
    cout = ["s_and_b32 s36, s30, 1", f"s_mul_i32 s36, s36, {HB}", f"s_add_u32 s36, s36, {CSO[3]}", f"v_add_u32 v{ct}, s36, v2",
            f"s_bfm_b64 exec, {HB//16}, 0", f"ds_write_b128 v{ct}, {vr(cv,4)}", "s_mov_b64 exec, -1", "s_waitcnt lgkmcnt(0)"]
    flag_in(a, 35, ST_G2S); cs_flag(a, 40)
    a.e(f"v_lshlrev_b32 v{ad}, 3, v1")
    lsrd(a, 20, oST2, 24576)
    a.e("s_and_b32 s34, s30, 1"); a.e("s_lshl_b32 s34, s34, 9")
    def sout():
        a.e(f"s_add_u32 s36, s34, {REC}"); a.e(f"v_add_u32 v{tt}, s36, v{ad}")
        for k in range(4): a.e(f"ds_read_b64 {vr(sv+2*k,2)}, v{tt} offset:{1024*k}")
        spread(a, 36, 29); a.e("s_add_u32 s36, s36, s34")
        a.e("s_waitcnt lgkmcnt(0)")
        for k in range(1, 4): a.e(f"v_pk_add_f32 {vr(sv,2)}, {vr(sv,2)}, {vr(sv+2*k,2)}")
        a.e(f"buffer_store_dwordx2 {vr(sv,2)}, v{ad}, s[20:23], s36 offen {SC}")
    def tries():
        flag_try(a, 32, 35); flag_try(a, 3, 40)
    def ld(k0):
        def f():
            if k0 == 0: flag_check(a, 32, 35, 14)
            a.e(f"s_add_u32 s36, s34, {k0*2048}")
            for k in range(k0, k0 + 8):
                if k % 8 == 4: a.e("s_add_u32 s36, s36, 4096")
                a.e(f"buffer_load_dwordx2 {vr(sv+2*k,2)}, v{ad}, s[20:23], s36 offen offset:{(k&3)*1024} {SC}")
        return f
    b = Rec()
    for st_ in (8, 4, 2, 1):
        for k in range(st_): b.e(f"v_pk_add_f32 {vr(sv+2*k,2)}, {vr(sv+2*k,2)}, {vr(sv+2*(k+st_),2)}")
    b.e(f"v_mul_f32 v{mean}, {f32(1/1024)}, v{sv}"); b.e(f"v_mul_f32 v{Q}, {f32(1/1024)}, v{sv+1}")
    b.e(f"v_fma_f32 v{Q}, -v{mean}, v{mean}, v{Q}"); b.e(f"v_max_f32 v{Q}, 0, v{Q}")
    ln_finish(b, mean, Q, rs)
    b.e(f"v_mov_b32 v{sv}, v{mean}"); b.e(f"v_mov_b32 v{sv+1}, v{Q}"); b.e(f"v_mul_f32 v{sv+2}, {f32(GC1)}, v{rs}"); b.e(f"v_mul_f32 v{rs}, v{rs}, v{rs}")
    b.e(f"v_mul_f32 v{rs}, {f32(0.044715)}, v{rs}"); b.e(f"v_mul_f32 v{sv+3}, v{rs}, v{sv+2}")
    b.e(f"s_lshl1_add_u32 s36, s34, {AUX+1024}"); b.e(f"v_add_u32 v{tt}, s36, v2")
    b.e(f"ds_write_b128 v{tt}, {vr(sv,4)}")
    def both(f, g):
        def h(): f(); g()
        return h
    return {2: (False, None, sout, 1, "s"),
            4: (False, "s", lambda: publish(a, ST_G2S, 14, wait=None), 1, "p"),
            8: (False, None, tries, 0, None),
            9: (False, None, ld(0), 8, "d"), 10: (False, None, ld(8), 8, "d"), 11: (False, None, lambda: cld(0, 8), 8, "c"),
            12: (False, "d", piece(b.l[:14]), 0, None), 13: (False, None, piece(b.l[14:28]), 0, None),
            14: (False, "c", both(piece(b.l[28:]), piece(cadd(1, 5), 1)), 0, None), 15: (False, None, both(piece(cadd(5, 8) + sw("v_permlane32_swap_b32") + cout, 1), piece(["s_waitcnt lgkmcnt(0)"])), 0, None)}

def w_loader(a, which):
    c = CFG[which]
    args = (a, which, c["NW"], c["STB"] // 2048, w_issue, c["NPRE"], c["WR"])
    if which == 3:
        w_setup(a, 3, pre=False); rot_next(a, 3); rot_next(a, 3); stage3_init(a); a.e(f"s_mov_b32 s42, {2*c['STB']}")
        ld_steps(*args, plan={1: [({"T": True, "M": "mid", "F": False}[env("PUBW", "T")], 1, lambda: g2_signal(a, None), 1, "p"), (False, None, lambda: cs_sum(a), 0, None)],
                                4: (False, 3, lambda: cs_signal(a), 0, None)}, lo=1, start=True)
        return
    assert c["NW"] == 6 and c["WB"] == WST + 3 * 8192
    w1_tail_setup(a)
    ld_steps(*args, hi=SP0)
    prep, arm, fire = w_parts(4)
    def issue(b):
        if b > SP0 + 1: return []
        for x in sum(fire, []) + (["s_call_b64 s[76:77], PREP_w_issue_4"] + arm if b == SP0 else []): a.e(x)
        return [b + 4] * 8
    tail_steps(a, SP0, [s_ for s_ in range(SP0, SP0 + 4) for _ in range(8)], issue, lambda b: min(27, 2 * b - SP0 + 1))
SLOTS = [16 * KB, 32 * KB, 104 * KB, 120 * KB, 136 * KB]; WINB = 104 * KB
W3P = env("W3P", {4: [(1, 0, 2)], 8: [(1, 2, 7), (0, 0, 1)], 12: [(0, 1, 7)]})
LAG = 2
DEP = env("DEP", 3); BURST0 = env("BURST0", 3)
SIG = env("SIG", [(8, 0), (12, 0), (15, 2)]); SIG3 = env("SIG3", 19)
TRY = env("TRY", [12, 16, 20, 24]); CHK = env("CHK", [13, 17, 21, 25])
OST = env("OST", 29); LPRIO = env("LPRIO", 1); RATE = env("RATE", 2); ISS = env("ISS", {})
def win_schedule():
    slot = {}; issue = {b: [] for b in ["F"] + list(range(32))}
    free = {x: -1 for x in SLOTS}
    nxt = 0
    for p in range(-1, 32):
        b = "F" if p < 0 else p
        while nxt < 32:
            if p < 0 and nxt >= BURST0: break
            if nxt >= 16 and p < CHK[(nxt - 16) // 4]: break
            if p in ISS:
                if len(issue[b]) >= ISS[p]: break
            elif p >= 0 and (nxt > p + DEP or len(issue[b]) >= RATE): break
            c_ = [x for x in SLOTS if free[x] <= p]
            if not c_: break
            x = min(c_, key=lambda x: free[x])
            slot[nxt] = x; issue[b].append(nxt); free[x] = nxt + 2
            assert nxt > p
            nxt += 1
    return slot, issue
WSLOT, WISSUE = win_schedule()
GSTW = os.environ.get("GST", "")

def win_compute(T, g, rd, acc, cinit, FR, pre, post, mid):
    s0 = 16 * (g - 1); steps = [(s, k) for s in range(s0, s0 + 17) for k in range(4)]; n = 64; nb = LAG + 1
    for i in range(n + LAG):
        s, k = steps[i]
        if k == 0 and s < 32:
            for f in pre.get(s, []): f()
            T.e("s_barrier")
            if GSTW == "w" or (GSTW == "y" and i == n) or os.environ.get("JIT"): mstamp(T.a, True)
            for f in post.get(s, []): f()
        for f in mid.get((s, k), []): f()
        r = [rd(FR + 16 * (i % nb) + 4 * q, s, k, q) for q in range(4)] if i < n else []
        j = i - LAG
        if j < 0:
            for x in r: T.ds(x, i)
            continue
        s, k = steps[j]; c = (s - s0) // 4; first = s % 4 == 0 and k == 0
        T.wl(j)
        for q in (0, 1, 3, 2):
            C = vr(acc(c) + 4 * (q & 1), 4)
            T.e(f"v_mfma_f32_16x16x32_bf16 {C}, {vr(WR0+8*(4*(s%4)+k)+4*(q>>1),4)}, {vr(FR+16*(j%nb)+4*q,4)}, {'0' if first and q < 2 and not cinit else C}")
            if r: T.ds(r.pop(0), i)
def add(d, k, f): d.setdefault(k, []).append(f)
def h_rot(a, d):
    a.e(f"s_and_b32 s{d+4}, s30, 3"); a.e(f"s_lshl_b32 s{d+4}, s{d+4}, 15")
    for i in range(4):
        a.e(f"s_add_u32 s53, s67, {2*i}"); a.e(f"s_and_b32 s{d+i}, s53, 4"); a.e(f"s_and_b32 s53, s53, 2"); a.e(f"s_lshl_b32 s{d+i}, s{d+i}, 12"); a.e("s_lshl_b32 s53, s53, 11")
        a.e(f"s_add_u32 s{d+i}, s{d+i}, s53"); a.e(f"s_add_u32 s{d+i}, s{d+i}, s{d+4}")
    a.e("s_and_b32 s53, s30, 2"); a.e("s_lshl_b32 s53, s53, 11")
    a.e(f"s_and_b32 s{d+4}, s30, 1"); a.e(f"s_lshl_b32 s{d+4}, s{d+4}, 13"); a.e(f"s_add_u32 s{d+4}, s{d+4}, s53")
def h_arm(T, s, d):
    T.e(f"s_add_u32 m0, s{d+4}, {WSLOT[s]}"); T.e(f"s_add_u32 s49, s{d+s%4}, {(s-16)//4*131072}"); T.armed = s
def h_issue(T, s, d, srd):
    if getattr(T, "armed", None) != s: h_arm(T, s, d)
    for q in range(4): T.vm(f"buffer_load_dwordx4 v2, s[{srd}:{srd+3}], s49 offen offset:{1024*q} {SC} lds", s)
def h_flag(a, d):
    a.e(f"s_and_b32 s{d}, s30, 1"); a.e(f"s_lshl_b32 s{d}, s{d}, 8"); a.e(f"s_add_u32 s{d}, s{d}, s55"); a.e(f"s_add_u32 s{d+1}, s52, 16")
def h_try(a, c, d):
    for k in range(2): a.e(f"s_load_dword s{(32, 3)[k]}, s[4:5], s{d} offset:{FH + 512*c + 128*k} {os.environ.get('GLC', '')}")
def h_check(a, c, d, t):
    D = a.lab("hok")
    a.e("s_waitcnt lgkmcnt(0)"); a.e(f"s_cmp_eq_u32 s32, s{d+1}"); a.e(f"s_cselect_b32 s32, s3, 0"); a.e(f"s_cmp_eq_u32 s32, s{d+1}"); a.e(f"s_cbranch_scc1 {D}")
    if STAMP: a.e(f"s_add_u32 s95, s95, {1 << (8 + 4 * c)}")
    for _ in range(env("G2ND", 0)):
        for k in range(2): a.e(f"s_load_dword s{(32, 3)[k]}, s[4:5], s{d} offset:{FH + 512*c + 128*k} glc")
        a.e("s_waitcnt lgkmcnt(0)"); a.e(f"s_cmp_eq_u32 s32, s{d+1}"); a.e(f"s_cselect_b32 s32, s3, 0"); a.e(f"s_cmp_eq_u32 s32, s{d+1}"); a.e(f"s_cbranch_scc1 {D}")
    a.e(f"s_add_u32 s53, s{d}, {FH + 512*c}"); a.e(f"v_lshlrev_b32 v{t+1}, 7, v1"); a.e(f"v_add_u32 v{t+1}, s53, v{t+1}")
    poll_core(a, t, t + 1, 3, cnt=16, nap=env('HSLEEP', 2))
    a.e(f"{D}:")
def out_addr(a, so, J, G, t, flip=False):
    a.e(f"v_and_b32 v{t}, 1, v{G}"); a.e(f"v_lshlrev_b32 v{so}, 16, v{t}"); a.e(f"v_lshrrev_b32 v{t}, 1, v{G}"); a.e(f"v_lshl_add_u32 v{so}, v{t}, 8, v{so}")
    a.e(f"v_lshl_add_u32 v{so}, v{J}, 4, v{so}")
    a.e("s_bfe_u32 s36, s30, 0x10001"); a.e("s_lshl1_add_u32 s36, s29, s36")
    if flip: a.e("s_xor_b32 s36, s36, 2")
    spread(a, 39, 36)
    a.e("s_and_b32 s36, s30, 1"); a.e("s_lshl_b32 s36, s36, 9"); a.e("s_add_u32 s39, s39, s36")

def window_x(a, g3_setup):
    T = Track(a); v = VA(6)
    t = v(); t2 = v(); J = v(); G = v(); ra = v(8, 2); rc = v()
    acc0 = v(16, 4); FR = v(48, 4); cs = v(4, 4); rec = v(16, 4); tp = v(8, 4); lead = v(); one = v(); so = v()
    assert v.hi <= WR0
    a.e(f"v_and_b32 v{J}, 15, v1"); a.e(f"v_lshrrev_b32 v{G}, 4, v1")
    a.e(f"v_xor_b32 v{t}, v{G}, v{J}"); a.e(f"v_lshlrev_b32 v{t2}, 8, v{J}")
    for k in range(4):
        a.e(f"v_xor_b32 v{ra+k}, {4*k}, v{t}"); a.e(f"v_lshl_add_u32 v{ra+k}, v{ra+k}, 4, v{t2}"); a.e(f"v_add_u32 v{ra+4+k}, {WINB}, v{ra+k}")
    a.e(f"v_lshlrev_b32 v{rc}, 4, v{J}"); a.e(f"v_add_u32 v{rc}, {REC}, v{rc}")
    lsrd(a, 16, oH, XSZ); out_addr(a, so, J, G, t, True)
    h_rot(a, 8); h_flag(a, 20)
    a.e(f"v_mov_b32 v{lead}, 0x7f000000"); a.e(f"v_writelane_b32 v{lead}, 0, 0"); a.e(f"v_mov_b32 v{one}, 1")
    a.e("s_and_b32 s40, s30, 1"); a.e("s_lshl1_add_u32 s40, s31, s40"); a.e("s_lshl_b32 s40, s40, 7"); a.e("s_add_u32 s40, s40, s55")
    a.e("s_barrier")
    wr_read(a, WAD, W1B)
    for i in range(4): a.e(f"v_mov_b32 v{rec+i}, 0x3f803f80")
    poll(a, ST_R, tp, wave=0, nap=env("NAPR", 3))
    for b in range(32): a.e(f"v_mfma_f32_16x16x32_bf16 {vr(cs,4)}, {vr(WR0+4*b,4)}, {vr(rec,4)}, {vr(cs,4) if b else 0}")
    def rd(d, s, k, q):
        x = WSLOT[s]; hi = x >= WINB
        return f"ds_read_b128 {vr(d,4)}, v{ra+4*hi+k} offset:{x - WINB*hi + 4096*q}"
    acc = lambda c: acc0 + 8 * (c & 1)
    def recs(c):
        for mt in range(2):
            for p in range(2): T.ds(f"ds_read_b128 {vr(rec+8*mt+4*p,4)}, v{rc} offset:{512*c + 256*mt + 2048*p}", "r")
    def epi(c, cut=None):
        T.wl("r")
        X = acc(c); P = [(X + i, tp + i, i & 2, [vr(rec + 2 * (i & 4) + 2 * e, 2) for e in range(4)]) for i in range(0, 8, 2)]
        for x, u, i, R in P: T.e(f"v_pk_fma_f32 {vr(x,2)}, {R[0]}, {vr(cs+i,2)}, {vr(x,2)}")
        for x, u, i, R in P: T.e(f"v_pk_mul_f32 {vr(u,2)}, {vr(x,2)}, {vr(x,2)}")
        for x, u, i, R in P: T.e(f"v_pk_fma_f32 {vr(u,2)}, {vr(u,2)}, {R[2]}, {R[1]}")
        for x, u, i, R in P: T.e(f"v_pk_mul_f32 {vr(u,2)}, {vr(u,2)}, {vr(x,2)}")
        if cut: cut()
        for i in range(8): T.e(f"v_exp_f32 v{tp+i}, v{tp+i}")
        for x, u, i, R in P: T.e(f"v_pk_fma_f32 {vr(u,2)}, {vr(u,2)}, {R[3]}, {R[3]}")
        for i in range(8): T.e(f"v_rcp_f32 v{tp+i}, v{tp+i}")
        for x, u, i, R in P: T.e(f"v_pk_mul_f32 {vr(x,2)}, {vr(x,2)}, {vr(u,2)}")
        for i in range(4): T.e(f"v_add_u32 v{X+2*i}, 0x10000, v{X+2*i}")
        for i in range(4): T.e(f"v_and_b32 v{X+2*i}, 0xfffe0000, v{X+2*i}")
        for i in range(4): T.e(f"v_cvt_pk_bf16_f32 v{tp+i}, v{X+2*i}, v{X+2*i+1}")
        T.e(f"s_add_u32 s36, s39, {c*131072}")
        for e in range(2): T.e(f"v_permlane16_swap_b32 v{tp+e}, v{tp+2+e}")
        T.vm(f"buffer_store_dwordx4 {vr(tp,4)}, v{so}, s[16:19], s36 offen {SC}", f"h{c}")
    def signal(c):
        T.wv(f"h{c}"); T.vm(f"buffer_atomic_add v{one}, v{lead}, s[56:59], s40 offen offset:{FH + 512*c} {SC}")
    pre, post, mid = {}, {}, {}
    add(post, 0, lambda: mstamp(a))
    for c in range(4):
        add(post, 4 * c + 4, lambda c=c: recs(c))
        if c: add(mid, SIG[c - 1], lambda c=c: signal(c - 1))
        if c < 3: add(mid, (4 * c + 4, 3), lambda c=c: epi(c))
    def duties(b):
        if b == SIG3: signal(3)
        for c in range(4):
            if TRY[c] >= 16 and CHK[c] == b: h_check(a, c, 20, cs)
        for c in range(4):
            if TRY[c] == b: h_try(a, c, 20)
        for s in WISSUE[b]: h_issue(T, s, 8, 16)
        for c in range(4):
            if TRY[c] == b + 0.5 and b != 16: h_try(a, c, 20)
    def bar(b):
        if WISSUE[b]: h_arm(T, WISSUE[b][0], 8)
        T.wv(b); T.e("s_barrier")
        if GSTW in ("w", "y") or os.environ.get("JIT"): mstamp(a, True)
    win_compute(T, 1, rd, acc, False, FR, pre, post, mid)
    mstamp(a)
    T.e(f"s_setprio {LPRIO}")
    T.wl("r"); duties(16)
    b0 = 17
    if env("CUT", 0): epi(3, lambda: bar(17)); duties(17); b0 = 18
    else: epi(3, (lambda: h_try(a, 1, 20)) if TRY[1] == 16.5 else None)
    mstamp(a)
    assert SIG3 < 28 and max(CHK) < 28 and not any(WISSUE[b] for b in (29, 30, 31))
    for b in range(b0, 32):
        bar(b); duties(b)
        for x in g3_setup.get(b, []): T.e(x)
    T.e("s_setprio 0")

def window_y(a):
    T = Track(a); v = VA(6)
    t = v(); t2 = v(); J = v(); G = v(); va = v(); vb = v(); xo = v(); so = v(); rb = v(2, 2); ow = v(); xr = v()
    xn = v(32, 4); FR = v(48, 4); S = v(8, 2); tp = v(8, 2)
    assert v.hi <= WVB[1], v.hi
    lo = FR + 20; ln = FR; o = FR + 8
    a.e("s_cmp_lg_u32 s60, 0"); a.e("s_cbranch_scc1 WY_1")
    wr_read(a, WAD, range(NRAW), W2S)
    w_srd(a, 1, 80)
    a.e("s_waitcnt vmcnt(0) lgkmcnt(0)"); a.e("s_barrier")
    w1_dma(a, W1B); a.e("s_branch WY_2")
    a.e("WY_1:")
    NB = min(env("NB", 3), len(W1L))
    if W1L: w_srd(a, 1, 80); w1_dma(a, W1L[:NB])
    a.e(f"s_waitcnt vmcnt({2 * NB})"); a.e("s_barrier")
    if W1L[NB:]: w1_dma(a, W1L[NB:])
    a.e("WY_2:")
    mstamp(a)
    a.e(f"v_and_b32 v{J}, 15, v1"); a.e(f"v_lshrrev_b32 v{G}, 4, v1")
    a.e("s_and_b32 s34, s30, 1"); a.e("s_and_b32 s37, s30, 3")
    a.e("s_lshr_b32 s38, s29, 3"); a.e("s_add_u32 s38, s38, 1"); a.e("s_sub_u32 s39, 0, s38"); a.e("s_bitcmp1_b32 s29, 2"); a.e("s_cselect_b32 s38, s38, s39")
    a.e("s_lshl_b32 s48, s28, 7")
    a.e("s_cmp_lt_u32 s37, 2"); a.e("s_cselect_b32 s36, s38, 0"); a.e("s_add_u32 s36, s36, s48"); a.e("s_lshl_b32 s45, s34, 6"); a.e("s_add_u32 s36, s36, s45")
    a.e(f"v_add_u32 v{lo}, s36, v1"); a.e("s_movk_i32 s45, 2048"); a.e(f"v_cmp_gt_u32 s[46:47], s45, v{lo}"); a.e(f"v_lshlrev_b32 v{lo}, 4, v{lo}")
    lns_srd(a, 20)
    a.e("s_lshl_b32 s36, s37, 2"); a.e(f"v_add_u32 v{t}, s36, v{G}"); a.e(f"v_xor_b32 v{va}, v{t}, v{J}")
    a.e("s_add_u32 s36, s48, s38"); a.e("s_add_u32 s36, s36, 16"); a.e(f"v_add_u32 v{t}, s36, v{t}")
    rowaddr(a, vb, t, t2); a.e(f"v_lshl_add_u32 v{vb}, v{va}, 4, v{vb}"); a.e(f"v_subrev_u32 v{va}, 65536, v{vb}")
    for i in range(4): a.e(f"s_add_u32 s{40+i}, s67, {2*i}"); a.e(f"s_and_b32 s{40+i}, s{40+i}, 6"); a.e(f"s_lshl_b32 s{40+i}, s{40+i}, 7")
    a.e("s_lshl_b32 s44, s37, 10")
    a.e(f"v_lshrrev_b32 v{t}, 3, v1"); a.e(f"v_and_b32 v{xr}, 7, v1"); a.e(f"v_xor_b32 v{xr}, v{xr}, v{t}")
    a.e("s_lshl_b32 s36, s37, 3"); a.e("s_add_u32 s36, s36, s48"); a.e(f"v_add_u32 v{t}, s36, v{t}"); rowaddr(a, xo, t, t2)
    a.e("s_lshl_b32 s36, s29, 7"); a.e(f"v_lshl_add_u32 v{xo}, v{xr}, 4, v{xo}"); a.e(f"v_add_u32 v{xo}, s36, v{xo}")
    a.e(f"v_lshrrev_b32 v{t}, 1, v{G}"); a.e("s_lshl_b32 s36, s37, 1"); a.e(f"v_add_u32 v{t}, s36, v{t}"); a.e(f"v_and_b32 v{t2}, 7, v{J}"); a.e(f"v_xor_b32 v{t}, v{t}, v{t2}")
    a.e(f"v_lshlrev_b32 v{xr}, 7, v{J}"); a.e(f"v_lshl_add_u32 v{xr}, v{t}, 4, v{xr}"); a.e(f"v_and_b32 v{t}, 1, v{G}"); a.e(f"v_lshl_add_u32 v{xr}, v{t}, 3, v{xr}")
    out_addr(a, so, J, G, t)
    a.e(f"v_mov_b32 v{rb}, v2"); a.e(f"v_add_u32 v{rb+1}, {WINB}, v2")
    a.e(f"v_lshrrev_b32 v{t}, 5, v{so}"); a.e(f"v_and_b32 v{t}, 2048, v{t}"); a.e(f"v_and_b32 v{ow}, 511, v{so}"); a.e(f"v_add_u32 v{ow}, v{ow}, v{t}")
    a.e("s_lshl_b32 s36, s37, 9"); a.e(f"v_add_u32 v{ow}, s36, v{ow}")
    x3_srd(a, 12); lsrd(a, 16, oH, XSZ); lsrd(a, 24, oX1P, XSZ)
    h_rot(a, 78); h_flag(a, 84); w3_setup(a)
    a0 = a; a = Rec(); a.lab = a0.lab
    L = a.lab("lns"); D = a.lab("lnk")
    ldl = f"buffer_load_dwordx4 {vr(ln,4)}, v{lo}, s[20:23], 0 offen {SC}"
    a.e("s_mov_b32 s53, 0")
    a.e(f"{L}:")
    a.e(f"v_cmp_eq_u32 vcc, s52, v{ln+1}"); a.e(f"v_cmp_eq_u32 s[50:51], s52, v{ln+3}"); a.e("s_and_b64 vcc, vcc, s[50:51]"); a.e("s_orn2_b64 vcc, vcc, s[46:47]")
    a.e("s_cmp_eq_u64 vcc, -1"); a.e(f"s_cbranch_scc1 {D}")
    a.e(ldl); a.e("s_waitcnt vmcnt(0)")
    a.e("s_add_u32 s53, s53, 1"); a.e("s_cmp_lt_u32 s53, s61"); a.e(f"s_cbranch_scc1 {L}")
    a.e("s_mov_b32 s61, 0")
    a.e(f"{D}:")
    unpack(a, ln + 4, ln + 5, ln); unpack(a, ln + 6, ln + 7, ln + 2)
    for r in (ln + 5, ln + 7): a.e(f"v_cndmask_b32 v{r}, 1.0, v{r}, s[46:47]")
    a.e("s_lshl_b32 s36, s34, 10"); a.e(f"s_add_u32 s36, s36, {REC}"); a.e(f"v_add_u32 v{t}, s36, v2")
    X = a.lab("lnx"); D = a.lab("lnd")
    a.e("s_cmp_ge_u32 s37, 2"); a.e(f"s_cbranch_scc1 {X}")
    a.e(f"v_mul_f32 v{o+6}, v{ln+5}, v{ln+7}"); a.e(f"v_fma_f32 v{o}, -v{ln+6}, v{ln+5}, -v{ln+4}"); a.e(f"v_rcp_f32 v{t2}, v{o+6}")
    a.e(f"v_mov_b32 v{o+7}, v{o+6}"); a.e(f"v_mov_b32 v{o+1}, v{o}")
    a.e(f"v_mul_f32 v{o+2}, {f32(GC1)}, v{t2}"); a.e(f"v_mul_f32 v{t2}, v{t2}, v{t2}"); a.e(f"v_mov_b32 v{o+3}, v{o+2}")
    a.e(f"v_mul_f32 v{t2}, {f32(0.044715)}, v{t2}"); a.e(f"v_mul_f32 v{o+4}, v{t2}, v{o+2}"); a.e(f"v_mov_b32 v{o+5}, v{o+4}")
    for p in range(2): a.e(f"ds_write_b128 v{t}, {vr(o+4*p,4)} offset:{2048*p}")
    a.e(f"s_branch {D}")
    a.e(f"{X}:")
    a.e(f"v_rcp_f32 v{o}, v{ln+5}"); a.e(f"v_mul_f32 v{o+2}, -v{ln+4}, v{o}"); a.e(f"v_mov_b32 v{o+1}, v{o}"); a.e(f"v_mov_b32 v{o+3}, v{o+2}")
    a.e(f"ds_write_b128 v{t}, {vr(o,4)} offset:{LNSL-REC}")
    a.e(f"{D}:")
    a.e(f"v_lshlrev_b32 v{t2}, 4, v{J}"); a.e(f"v_add_u32 v{t2}, {LNSL}, v{t2}")
    lns = a.l; a = a0
    def issue(s):
        if s >= 16: return h_issue(T, s, 78, 16)
        c, i = s // 4, s % 4
        if getattr(T, "armed", None) != s: arm(s)
        for mt in range(2):
            for kh in range(2):
                if mt or kh: T.e(f"s_add_u32 m0, s44, {WSLOT[s] + kh*8192 + mt*4096 - kh*1024}")
                T.vm(f"buffer_load_dwordx4 v{(va, vb)[mt]}, s[12:15], s49 offen offset:{1024*kh} {SC} lds", s)
                for x in T.fill[:5]: T.e(x)
                T.fill = T.fill[5:]
        if s == 3: T.e(f"v_mov_b32 v{va}, v{vb}"); T.e(f"v_add_u32 v{vb}, 65536, v{vb}")
    def arm(s):
        if s >= 16: return h_arm(T, s, 78)
        T.e(f"s_add_u32 m0, s44, {WSLOT[s]}"); T.e(f"s_add_u32 s49, s{40+s%4}, {max(0, s//4*2-1)*65536}"); T.armed = s
    def resld():
        for c in range(4):
            T.e(f"s_add_u32 m0, s44, {4096*c}"); T.e(f"s_mov_b32 s36, {c*131072}")
            T.vm(f"buffer_load_dwordx4 v{xo}, s[12:15], s36 offen {SC} lds", "x")
    def res1(c):
        for mt in range(2):
            a.e(f"ds_read_b64 {vr(xn+8*c+4*mt+2,2)}, v{xr} offset:{4096*c + 2048*mt}"); a.e(f"ds_read_b128 {vr(o+4*mt,4)}, v{t2} offset:{512*c + 256*mt}")
    def res2(c):
        b = Rec(); b.e("s_waitcnt lgkmcnt(0)")
        for mt in range(2):
            X = xn + 8 * c + 4 * mt
            for e in range(2): unpack(b, X + 2 * e, X + 2 * e + 1, X + 2 + e)
            for e in range(2): b.e(f"v_pk_fma_f32 {vr(X+2*e,2)}, {vr(X+2*e,2)}, {vr(o+4*mt,2)}, {vr(o+4*mt+2,2)}")
        T.fill = b.l
    RESAT = env("RESAT", 4); RESUSE = env("RESUSE", 7); T.fill = []
    a.e("s_waitcnt vmcnt(0) lgkmcnt(0)"); a.e("s_barrier")
    a.e(f"s_setprio {LPRIO}")
    mstamp(a)
    arm(0)
    a.e("s_barrier")
    mstamp(a)
    T.vm(ldl, "l")
    LAT = env("LAT", 2)
    for s in WISSUE["F"][:LAT]: issue(s)
    T.wv("l")
    for x in lns: a.e(x)
    for s in WISSUE["F"][LAT:]: issue(s)
    for b in range(16):
        if b == 4: a.e("s_waitcnt lgkmcnt(0)")
        if WISSUE[b]: arm(WISSUE[b][0])
        if b == RESUSE: T.wv("x")
        T.wv(b); T.e("s_barrier")
        if GSTW in ("w", "y") or os.environ.get("JIT"): mstamp(a, True)
        for c in range(4):
            if TRY[c] < 16 and CHK[c] == b: h_check(a, c, 84, tp)
            assert TRY[c] >= 16 or (CHK[c] < 16 and TRY[c] >= RESUSE + 5)
        if b == CHK[0]: mstamp(a)
        for c in range(4):
            if TRY[c] == b: h_try(a, c, 84)
        if 1 <= b - RESUSE < 5: res2(b - RESUSE - 1)
        for s in WISSUE[b]: issue(s)
        assert not T.fill
        if 0 <= b - RESUSE < 4: res1(b - RESUSE)
        if b == RESAT: resld()
        for x in W3P.get(b, []): w3_piece(T, *x)
    a.e("s_setprio 0")
    def rd(d, s, k, q):
        x = WSLOT[s]; hi = x >= WINB
        return f"ds_read_b128 {vr(d,4)}, v{rb+hi} offset:{x - WINB*hi + 4096*q + 1024*k}"
    acc = lambda c: xn + 8 * c
    def epi(c):
        X = acc(c)
        for i in range(4): T.e(f"v_cvt_pk_bf16_f32 v{X+i}, v{X+2*i}, v{X+2*i+1}")
        T.e(f"s_add_u32 s36, s39, {c*131072}")
        for e in range(2): T.e(f"v_permlane16_swap_b32 v{X+e}, v{X+2+e}")
    def ost(c):
        T.e(f"s_add_u32 s36, s39, {c*131072}"); T.vm(f"buffer_store_dwordx4 {vr(acc(c),4)}, v{so}, s[24:27], s36 offen {SC}", "o")
    def own(c): T.ds(f"ds_write_b128 v{ow}, {vr(acc(c),4)} offset:{4096*c}", "ow")
    def stats(c):
        X = tp; pp, qq = acc(c) + 4, acc(c) + 6
        for i in range(4): unpack(T, X + 2 * i, X + 2 * i + 1, acc(c) + i)
        T.e(f"v_pk_add_f32 {vr(pp,2)}, {vr(X,2)}, {vr(X+2,2)}"); T.e(f"v_pk_mul_f32 {vr(qq,2)}, {vr(X,2)}, {vr(X,2)}")
        for i in range(1, 4):
            if i > 1: T.e(f"v_pk_add_f32 {vr(pp,2)}, {vr(pp,2)}, {vr(X+2*i,2)}")
            T.e(f"v_pk_fma_f32 {vr(qq,2)}, {vr(X+2*i,2)}, {vr(X+2*i,2)}, {vr(qq,2)}")
        T.e(f"v_add_f32 v{S+2*c}, v{pp}, v{pp+1}"); T.e(f"v_add_f32 v{S+2*c+1}, v{qq}, v{qq+1}")
    pre, post, mid = {}, {}, {}
    add(post, 16, lambda: mstamp(a))
    for s in range(16, 32): add(pre, s, lambda s=s: T.wv(s))
    SLATE = env("SLATE", 1)
    for c in range(3):
        add(mid, (20 + 4 * c, 3), lambda c=c: (epi(c), SLATE or stats(c)))
        add(mid, (OST, 1 + c), lambda c=c: ost(c))
    for k_, l_ in W3P.items():
        if isinstance(k_, tuple): add(mid, k_, lambda l_=l_: [w3_piece(T, *x) for x in l_])
    add(mid, (32, 0), lambda: [own(c) for c in range(3)])
    win_compute(T, 2, rd, acc, True, FR, pre, post, mid)
    mstamp(a)
    T.e(f"s_setprio {env('LPRIO3', 0)}")
    epi(3); ost(3); own(3); T.wl("ow"); T.wv("w")
    T.e("s_barrier")
    mstamp(a)
    def rest(a_, which):
        T.a = a_
        for c in range(0 if SLATE else 3, 4): stats(c)
        T.e("s_and_b32 s36, s30, 3"); T.e("s_lshl_b32 s36, s36, 10"); T.e(f"s_add_u32 s36, s36, {REC}"); T.e(f"v_lshlrev_b32 v{t}, 3, v1"); T.e(f"v_add_u32 v{t}, s36, v{t}")
        for k in range(2): T.e(f"v_permlane32_swap_b32 v{S+k}, v{S+2+k}"); T.e(f"v_permlane32_swap_b32 v{S+4+k}, v{S+6+k}")
        T.e(f"v_pk_add_f32 {vr(S,2)}, {vr(S,2)}, {vr(S+2,2)}"); T.e(f"v_pk_add_f32 {vr(S+4,2)}, {vr(S+4,2)}, {vr(S+6,2)}")
        for k in range(2): T.e(f"ds_write_b64 v{t}, {vr(S+4*k,2)} offset:{512*k}")
    assert xn >= 18 and t == 6
    G2S.append(lambda: call_issue(a, rest, 2))

C2R = 230; SO3 = 254; SEL = 224; RX = [180, 200, 208, 216]
def g_compute(a, which):
    c = CFG[which]
    WM, WN, MT, NT, KBT, NS, NA, NW, TN16, STB, WB = [c[k] for k in "WM WN MT NT KBT NS NA NW TN16 STB WB".split()]
    v = VA(6, skip=which == 4); nm = f"G{which}"
    lane = 1; l16 = 2
    t = v(); t2 = v(); pt = v(4, 2)
    NTILE = 29 if which != 4 else 33
    a0 = v(); w0 = v(4, 1); aa = v(); wa = v(4, 1); J = v(); G = v(); NF = MT + NT
    if which == 3: acc = v(MT * NT * 4, 4); fX = v(NF * 4, 4); fY = v(NF * 4, 4); tmp = 255
    else: fX = v(NF * 4, 4); xf = v(); acc = v(MT * NT * 4, 4); fY = v(NF * 4, 4)
    assert v.hi <= SEL
    def A_(mt, nt): return acc + 4 * (mt * NT + nt)
    one, lead, oa, xo, so = pt, pt + 1, pt + 2, 255, SO3
    def signal(stage, wait):
        a.e(f"s_waitcnt vmcnt({wait})"); a.e(f"buffer_atomic_add v{one}, v{lead}, s[56:59], s49 offen offset:{(stage - ST_G3A) * 128} {SC}")
    s = Rec()
    if which == 3:
        s.e("s_lshr_b32 s34, s30, 1"); s.e("s_and_b32 s35, s30, 1")
        s.e(f"v_and_b32 v{J}, 15, v{lane}"); s.e(f"v_lshrrev_b32 v{G}, 4, v{lane}")
        s.e(f"s_mul_i32 s37, s34, {MT}")
        s.e(f"s_mul_i32 s36, s34, {MT*2048}"); s.e(f"v_add_u32 v{a0}, s36, v{l16}")
    nwr, wpos = w_bases(s, which, w0, 35, NT, wa, wa + 1)
    s.e("s_mov_b32 s42, 0"); s.e("s_mov_b32 s43, 0"); s.e("s_mov_b32 s48, 0")
    s.e(f"v_mov_b32 v{aa}, v{a0}")
    for i in range(nwr): s.e(f"v_mov_b32 v{wa+i}, v{w0+i}")
    if which == 3:
        b = Rec()
        b.e(f"s_load_dwordx2 s[6:7], s[0:1], {D_OUT}")
        lsrd(b, 16, oH2, H2SZ)
        b.e(f"s_mul_i32 s39, s37, {224*1024}"); b.e("s_mul_i32 s40, s29, 7"); b.e("s_lshl2_add_u32 s41, s35, s40")
        for P in range(4):
            b.e(f"s_add_u32 s36, s{41 if P < 3 else 40}, {P}"); spread(b, 44 + P, 36); b.e(f"s_add_u32 s{44+P}, s{44+P}, s39")
        b.e("s_lshl_b32 s36, s35, 9"); b.e("s_add_u32 s47, s47, s36")
        b.e("s_lshl1_add_u32 s49, s31, s34"); flag_off(b, 49, ST_G3A, 49)
        x3_srd(b, 84); lsrd(b, 88, oX1P, XSZ); lsrd(b, 24, oH, XSZ)
        b.e("s_lshl1_add_u32 s39, s33, s35"); b.e("s_lshl_b32 s36, s39, 1"); spread(b, 40, 36); b.e("s_lshl1_add_u32 s38, s31, s37"); b.e("s_lshl_b32 s36, s38, 16")
        b.e("s_add_u32 s40, s40, s36"); b.e("s_add_u32 s12, s40, 65536"); b.e("s_xor_b32 s41, s40, 0x20000"); b.e("s_lshl3_add_u32 s38, s28, s38"); b.e("s_lshl_b32 s39, s39, 7")
        b.e("s_lshl_b32 s13, s38, 16"); b.e("s_add_u32 s13, s13, s39"); b.e("s_add_u32 s14, s13, 65536")
        b.e("s_lshl_b32 s38, s38, 15"); b.e("s_add_u32 s38, s38, s39"); b.e(f"s_add_u32 s39, s38, {16*2048}"); b.e("s_mov_b32 s15, 0xffff0000")
        p1_off(b, 36, 53); b.e("s_add_u32 s8, s4, s36"); b.e("s_addc_u32 s9, s5, 0"); b.e(f"s_mov_b32 s10, {XSZ}"); b.e("s_mov_b32 s11, 0x20000")
        b.e("s_waitcnt lgkmcnt(0)"); b.srd(20, 6, 4 * MB)
        d = Rec()
        d.e(f"v_lshrrev_b32 v{so}, 1, v{G}"); d.e(f"v_lshlrev_b32 v{so}, 8, v{so}"); d.e(f"v_lshl_add_u32 v{so}, v{J}, 4, v{so}")
        d.e(f"v_and_b32 v{t}, 1, v{G}"); d.e(f"v_lshl_add_u32 v{so}, v{t}, 3, v{so}")
        d.e(f"v_lshrrev_b32 v{t}, 2, v{J}"); d.e(f"v_cmp_eq_u32 vcc, v{t}, v{G}"); d.e(f"v_and_b32 v{t}, 1, v{J}"); d.e(f"v_lshlrev_b32 v{t}, 4, v{t}")
        d.e(f"v_mov_b32 v{SEL}, 0x3f80"); d.e(f"v_lshlrev_b32 v{t}, v{t}, v{SEL}"); d.e(f"v_cndmask_b32 v{t}, 0, v{t}, vcc")
        d.e(f"v_and_b32 v{SEL}, 2, v{J}"); d.e(f"v_cmp_eq_u32 vcc, 0, v{SEL}")
        for i in (0, 1, 4, 5): d.e(f"v_mov_b32 v{SEL+i}, 0")
        d.e(f"v_cndmask_b32 v{SEL+2}, 0, v{t}, vcc"); d.e(f"v_cndmask_b32 v{SEL+3}, v{t}, v{SEL}, vcc")
        rowaddr(d, xo, J, t); d.e(f"v_lshl_add_u32 v{xo}, v{G}, 4, v{xo}")
        d.e(f"v_mov_b32 v{one}, 1"); d.e(f"v_mov_b32 v{lead}, 0x7f000000"); d.e(f"v_writelane_b32 v{lead}, 0, 0")
        e_ = Rec()
        e_.e(f"v_and_b32 v{oa+1}, 1, v{G}"); e_.e(f"v_lshlrev_b32 v{oa}, 11, v{J}"); e_.e(f"v_lshl_add_u32 v{oa}, v{oa+1}, 5, v{oa}")
        e_.e(f"v_lshrrev_b32 v{oa+1}, 1, v{G}"); e_.e(f"v_lshl_add_u32 v{oa}, v{oa+1}, 4, v{oa}")
        e_.e(f"v_cmp_gt_u32 s[50:51], 8, v{J}")
        e_.e(f"v_lshrrev_b32 v{oa+1}, 3, v{J}"); e_.e(f"v_mul_u32_u24 v{oa+1}, {8*2048 - 64}, v{oa+1}"); e_.e(f"v_sub_u32 v{oa}, v{oa}, v{oa+1}")
        e_.e(f"v_add_u32 v{oa+1}, {8*2048}, v{oa}")
        e_.e(f"s_mul_i32 s36, s35, {NT*64}"); e_.e(f"s_add_u32 s36, s36, {CSO[which]}"); e_.e(f"v_lshlrev_b32 v{t}, 4, v{G}"); e_.e(f"v_add_u32 v{t}, s36, v{t}")
        e_.e(f"s_lshl_b32 s36, s34, 10"); e_.e(f"s_add_u32 s36, s36, {AUX+1024}"); e_.e(f"v_lshlrev_b32 v{t2}, 4, v{J}"); e_.e(f"v_add_u32 v{t2}, s36, v{t2}")
        e_.e("s_lshl1_add_u32 s36, s37, s35"); e_.e("s_lshl2_add_u32 s36, s31, s36"); e_.e("s_lshl_b32 s36, s36, 10")
        e_.e(f"v_add_u32 v{J}, s36, v{l16}"); e_.e(f"v_xor_b32 v{G}, 4096, v{J}")
        window_x(a, {29: s.l}); idle = b.l + d.l + e_.l
    else:
        for x in s.l + [f"v_mov_b32 v{xf}, 0x10000"]: a.e(x)
    def reads(F, kk):
        o = []
        for mt in range(MT): o.append(f"ds_read_b128 {vr(F+4*mt,4)}, v{aa} offset:{mt*2048+kk*1024}")
        for nt in range(NT):
            for h in range(2):
                r, imm = wpos(nt, kk, h)
                o.append(f"ds_read_b64_tr_b16 {vr(F+4*(MT+nt)+2*h,2)}, v{wa+r} offset:{imm}")
        return o
    def mix(rd, ex):
        rd = list(rd)
        if len(ex) > 4: return rd + list(ex)
        for i, x in enumerate(ex): rd.insert(min(len(rd), (i + 1) * len(rd) // (len(ex) + 1)), x)
        return rd
    def mfmas(F, rd, tail=(), zero=False):
        n = MT * NT; k = 0; tot = len(rd); span = max(1, n * 3 // 4); done = 0; tail = list(tail); per = -(-len(tail) // max(1, n - span))
        for nt, mt in [(nt, mt if nt % 2 == 0 else MT - 1 - mt) for nt in range(NT) for mt in range(MT)]:
            cc = acc + 4 * (mt * NT + nt)
            a.e(f"v_mfma_f32_16x16x32_bf16 {vr(cc,4)}, {vr(F+4*(MT+nt),4)}, {vr(F+4*mt,4)}, {0 if zero and (which == 3 or mt >= 2) else vr(cc,4)}")
            k += 1
            while rd and done < (tot * k + span - 1) // span: a.e(rd.pop(0)); done += 1
            if k >= span and k < n:
                for _ in range(min(per, len(tail))): a.e(tail.pop(0))
        assert not rd and not tail
    def stage(ex=(), ey=(), lim=NS-1, late=False, zero=False):
        if str(which) in os.environ.get("GST", "") or os.environ.get("JIT"): mstamp(a, True)
        a.e("s_waitcnt lgkmcnt(0)")
        book = ["s_add_u32 s42, s42, 16384", f"s_cmp_eq_u32 s42, {NA*16384}", "s_cselect_b32 s42, 0, s42",
                f"s_add_u32 s48, s48, {STB}", f"s_cmp_eq_u32 s48, {NW*STB}", "s_cselect_b32 s48, 0, s48", f"v_add_u32 v{aa}, s42, v{a0}"]
        book += [f"v_add_u32 v{wa+i}, s48, v{w0+i}" for i in range(nwr)]
        mfmas(fX, mix(reads(fY, 1), ex), book, zero)
        if late:
            a.e("s_waitcnt lgkmcnt(0)"); mfmas(fY, [], ["s_add_u32 s43, s43, 1"])
            for x in idle: a.e(x)
            a.e("s_barrier")
            for x in reads(fX, 0): a.e(x)
            return
        a.e("s_waitcnt lgkmcnt(0)"); a.e("s_barrier")
        mfmas(fY, mix(reads(fX, 0), ey), ["s_add_u32 s43, s43, 1", f"s_cmp_lt_u32 s43, {lim}"])
    def addp(k, R, zero=False):
        for e in range(2): a.e(f"v_mfma_f32_16x16x32_bf16 {vr(A_(k>>1, 2*(k&1)+e),4)}, {vr(SEL+2-2*e,4)}, {vr(R,4)}, {0 if zero else vr(A_(k>>1, 2*(k&1)+e),4)}")
    a.e("s_waitcnt lgkmcnt(0)"); a.e("s_barrier")
    mstamp(a)
    for x in reads(fX, 0): a.e(x)
    if which == 4:
        for h in range(2):
            for k in range(4): addp(k, RX[k] + 4 * h, h == 0)
    if which == 4:
        def st2(j): return [f"s_add_u32 s36, s46, {j*224*1024}\nbuffer_store_dwordx4 {vr(C2R+4*j,4)}, v{l16}, s[16:19], s36 offen {SC}",
                            f"s_add_u32 s36, s47, {j*224*1024}\nbuffer_store_dwordx2 {vr(C2R+16+2*j,2)}, v{SO3}, s[16:19], s36 offen {SC}"]
        stage(st2(0), st2(1), zero=True); stage(st2(2), st2(3)); signal(ST_G3B, 8)
        L0 = a.lab("mm"); a.e(f"{L0}:"); stage(lim=PUB2); a.e(f"s_cbranch_scc1 {L0}")
        signal(ST_G3, 0)
    else: stage(late=True, zero=True); mstamp(a)
    L = a.lab("mm"); a.e(f"{L}:")
    stage(lim=NS - 1 if which == 3 else SP0 - 1)
    a.e(f"s_cbranch_scc1 {L}")
    a.e("s_waitcnt lgkmcnt(0)")
    if which == 4:
        def out(mt, so_, srd):
            if mt & 1: a.e(f"s_add_u32 s36, s{so_}, 65536")
            for p in range(2):
                B = A_(mt, 2 * p)
                for e in range(4): a.e(f"v_and_or_b32 v{B+2*e}, v{B+2*e}, s15, v{xf}")
                for e in range(4): a.e(f"v_cvt_pk_bf16_f32 v{B+e}, v{B+2*e}, v{B+2*e+1}")
                a.e(f"buffer_store_dwordx4 {vr(B,4)}, v{l16}, s[{srd}:{srd+3}], s{36 if mt & 1 else so_} offen offset:{p*1024} {SC}")
        FS = [[fX + 4 * i for i in range(8)] + [232 + 4 * i for i in range(4)], [fY + 4 * i for i in range(8)] + [RXA + 2 + 4 * i for i in range(4)]]
        def rds(n):
            t, j = n >> 1, n & 1; F = FS[j]; ws = (SP0 + 2 * (t % 3) + j) % 6; o = []
            for kk in range(2):
                for i in range(2): o.append(f"ds_read_b128 {vr(F[8+2*kk+i],4)}, v{a0} offset:{(SP0+t)%3*16384 + (2*j+i)*2048 + kk*1024}")
            for kk in range(2):
                for nt in range(4):
                    for h in range(2):
                        r, imm = wpos(nt, kk, h)
                        o.append(f"ds_read_b64_tr_b16 {vr(F[4*kk+nt]+2*h,2)}, v{(w0, wa)[ws//3]+r} offset:{imm + ws%3*16384}")
            return o
        def half(n, rd, hook=None):
            F = FS[n & 1]; m0_ = 2 if n < 6 else 0; rd = list(rd); tot = len(rd); done = 0
            for k, (kk, nt, i) in enumerate([(kk, nt, i ^ (nt & 1)) for kk in range(2) for nt in range(4) for i in range(2)]):
                if k == 8:
                    a.e(f"s_waitcnt lgkmcnt({done})")
                    if n == 11: a.e("s_barrier")
                a.e(f"v_mfma_f32_16x16x32_bf16 {vr(A_(m0_+i,nt),4)}, {vr(F[4*kk+nt],4)}, {vr(F[8+2*kk+i],4)}, {vr(A_(m0_+i,nt),4)}")
                while rd and done < (tot * (k + 1) + 15) // 16: a.e(rd.pop(0)); done += 1
                if hook and k == 3: hook()
        PX = A_(2, 0)
        pl = [f"buffer_load_dwordx4 {vr(PX+4*k,4)}, v{l16}, s[24:27], s{(40, 12)[k>>1]} offen offset:{(k&1)*1024} {SC}" for k in range(4)]
        mfmas(fX, reads(fY, 1), [f"v_add_u32 v{wa+i}, {3*16384}, v{w0+i}" for i in range(nwr)])
        a.e("s_waitcnt lgkmcnt(0)"); a.e("s_barrier")
        mfmas(fY, rds(0))
        PLN = env("PLN", 10)
        for n in range(12):
            a.e("s_waitcnt lgkmcnt(8)")
            if n & 1 and n < 11: a.e("s_barrier")
            if os.environ.get("JIT") or ("4" in GSTW and not n & 1): mstamp(a, True)
            half(n, rds(n + 1) if n < 11 else [], (lambda: (out(2, 41, 24), out(3, 41, 24))) if n == 6 else (lambda: [a.e(x) for x in pl]) if n == PLN else None)
        mstamp(a, "4" in GSTW)
        data_wait(a, pl, list(range(PX, PX + 16)), t, nap=env("NAPF", 1), first=False)
        mstamp(a)
        for k in range(4): addp(k, PX + 4 * k)
        a.e("s_cmp_eq_u32 s60, 1"); a.e("s_cbranch_scc1 G4_last")
        out(0, 40, 8); out(1, 40, 8)
        r_pre(a)
        mstamp(a)
        a.e("s_branch NEXT")
        a.e("G4_last:")
        for k in range(4):
            B = A_(k >> 1, 2 * (k & 1))
            for e in range(4): a.e(f"v_cvt_pk_bf16_f32 v{B+e}, v{B+2*e}, v{B+2*e+1}")
            for e in range(2): a.e(f"v_permlane16_swap_b32 v{B+e}, v{B+2+e}")
            if k & 1:
                X, Y_, T = B - 8, B, B + 4
                for e in range(4): a.e(f"v_cndmask_b32 v{T+e}, v{X+e}, v{Y_+e}, s[50:51]")
                for e in range(4): a.e(f"v_mov_b32_dpp v{X+4+e}, v{T+e} row_ror:8 row_mask:0xf bank_mask:0xf")
                for e in range(4): a.e(f"v_cndmask_b32 v{X+e}, v{X+4+e}, v{X+e}, s[50:51]"); a.e(f"v_cndmask_b32 v{Y_+e}, v{Y_+e}, v{X+4+e}, s[50:51]")
                a.e(f"buffer_store_dwordx4 {vr(X,4)}, v{oa}, s[20:23], s{38+(k>>1)} offen {os.environ.get('OS', SC).replace('_', ' ')}")
                a.e(f"buffer_store_dwordx4 {vr(Y_,4)}, v{oa+1}, s[20:23], s{38+(k>>1)} offen {os.environ.get('OS', SC).replace('_', ' ')}")
        a.e("s_branch K_fin")
        return
    mfmas(fX, reads(fY, 1))
    a.e("s_waitcnt lgkmcnt(0)")
    a.e("s_barrier")
    cs = fX; lns = fX + 4 * NT
    mfmas(fY, [f"ds_read_b128 {vr(cs+4*nt,4)}, v{t} offset:{nt*64}" for nt in range(NT)] + [f"ds_read_b128 {vr(lns+4*mt,4)}, v{t2} offset:{mt*256}" for mt in range(MT)])
    mstamp(a)
    if which == 3:
        tp = fY + 12
        def act(tiles):
            P_ = [(A_(mt, nt) + 2 * h, tp + 4 * i + 2 * h, vr(lns + 4 * mt, 2), vr(lns + 4 * mt + 2, 2), cs + 4 * nt + 2 * h) for i, (mt, nt) in enumerate(tiles) for h in range(2)]
            for x, u, L_, K_, c_ in P_: a.e(f"v_pk_fma_f32 {vr(x,2)}, {L_}, {vr(c_,2)}, {vr(x,2)} op_sel_hi:[0,1,1] neg_lo:[1,0,0] neg_hi:[1,0,0]")
            for x, u, L_, K_, c_ in P_: a.e(f"v_pk_mul_f32 {vr(u,2)}, {vr(x,2)}, {vr(x,2)}")
            for x, u, L_, K_, c_ in P_: a.e(f"v_pk_fma_f32 {vr(u,2)}, {vr(u,2)}, {K_}, {K_} op_sel:[0,1,0] op_sel_hi:[1,1,0]")
            for x, u, L_, K_, c_ in P_: a.e(f"v_pk_mul_f32 {vr(u,2)}, {vr(u,2)}, {vr(x,2)}")
            for i in range(8): a.e(f"v_exp_f32 v{tp+i}, v{tp+i}")
            for x, u, L_, K_, c_ in P_: a.e(f"v_pk_fma_f32 {vr(u,2)}, {vr(u,2)}, {L_}, {L_} op_sel:[0,1,1] op_sel_hi:[1,1,1]")
            for i in range(8): a.e(f"v_rcp_f32 v{tp+i}, v{tp+i}")
            for x, u, L_, K_, c_ in P_: a.e(f"v_pk_mul_f32 {vr(x,2)}, {vr(x,2)}, {vr(u,2)}")
        def group(mt, nts, dst=None):
            if len(nts) == 2: act([(mt, nt) for nt in nts])
            elif mt % 2 == 0: act([(mt, nts[0]), (mt + 1, nts[0])])
            P = nts[0] >> 1; B = A_(mt, nts[0]); D = B if dst is None else dst
            for k in range(2 * len(nts)): a.e(f"v_cvt_pk_bf16_f32 v{D+k}, v{B+2*k}, v{B+2*k+1}")
            return [f"s_add_u32 s36, s{44+P}, {mt*224*1024}", f"buffer_store_dwordx4 {vr(B,4)}, v{l16}, s[16:19], s36 offen {SC}"]
        def body():
            gs = [(0, 1), (2, 3), (4, 5), (6,)]
            k = 0; pend = []; sent = 0; RXK = env("RXK", 7); assert RXK >= C0PUB and RXK + 4 <= STQ + 1
            for gi_, g_ in enumerate(gs):
                for mt in range(MT):
                    if k == C0PUB: signal(ST_G3A, sent - 4); mstamp(a)
                    if RXK <= k < RXK + 4:
                        i, p = (k - RXK) >> 1, (k - RXK) & 1
                        a.e(f"buffer_load_dwordx4 {vr(RX[2*i+p],4)}, v{xo}, s[84:87], s{13+i} offen offset:{p*64} {SC}")
                        a.e(f"buffer_load_dwordx4 {vr(RX[2*i+p]+4,4)}, v{l16}, s[88:91], s{(40, 12)[i]} offen offset:{p*1024} {SC}")
                    st_ = group(mt, g_, None if gi_ < 2 else C2R + 4 * mt if gi_ == 2 else C2R + 16 + 2 * mt); k += 1
                    if gi_ < 3:
                        a.e(f"ds_write_b128 v{(J, G)[mt>>1]}, {vr(A_(mt, g_[0]) if gi_ < 2 else C2R + 4 * mt, 4)} offset:{gi_*16384 + (mt&1)*2048}")
                    if gi_ < 2: pend.append(st_)
                    n = len(pend) if (k <= 4 or k == 16) else 0 if k <= STQ else min(1, len(pend))
                    for _ in range(n):
                        for x in pend.pop(0): a.e(x)
                        sent += 1
            a.e("s_waitcnt vmcnt(4) lgkmcnt(0)")
        a.e("s_waitcnt lgkmcnt(0)"); a.e("s_nop 7")
        body()
        mstamp(a)

def k_mega(a):
    nm = KNAME; a.begin_kernel(nm)
    a.e("s_cmp_ge_u32 s2, 256"); a.e("s_cbranch_scc1 K_end")
    a.e(f"s_load_dwordx8 s[8:15], s[0:1], {A_K}"); a.e(f"s_load_dwordx2 s[6:7], s[0:1], {A_Q}"); a.e(f"s_load_dwordx8 s[68:75], s[0:1], {B_W1}")
    a.e(f"s_load_dwordx2 s[4:5], s[0:1], {D_WS}"); a.e(f"s_load_dwordx2 s[84:85], s[0:1], {D_DBG}"); a.e("s_memrealtime s[46:47]")
    a.e(f"s_load_dwordx2 s[76:77], s[0:1], {A_SSMD}")
    a.e("v_lshrrev_b32 v1, 6, v0"); a.e("v_readfirstlane_b32 s30, v1")
    a.e("s_getpc_b64 s[48:49]"); a.e("K_pc:")
    a.e("s_lshr_b32 s36, s2, 3"); a.e("s_lshl_b32 s36, s36, 12")
    a.e("v_lshlrev_b32 v252, 3, v0"); a.e("v_add_u32 v252, s36, v252")
    a.e("v_cmp_gt_u32 vcc, K_end-K_pc-8, v252"); a.e("s_and_saveexec_b64 s[36:37], vcc"); a.e("s_cbranch_execz K_3")
    a.e("v_mov_b32 v253, s49"); a.e("v_add_co_u32 v252, vcc, s48, v252"); a.e("v_addc_co_u32 v253, vcc, 0, v253, vcc")
    a.e("global_load_dword v250, v[252:253], off")
    a.e("K_3:"); a.e("s_mov_b64 exec, -1")
    front_loads(a)
    a.e("v_and_b32 v1, 63, v0"); a.e("v_lshlrev_b32 v2, 4, v1"); a.e("v_lshlrev_b32 v3, 2, v1")
    a.e("s_and_b32 s32, s2, 7"); a.e("s_lshr_b32 s33, s2, 3")
    a.e("s_and_b32 s28, s32, 2"); a.e("s_lshr_b32 s34, s32, 2"); a.e("s_or_b32 s28, s28, s34")
    a.e("s_lshl_b32 s28, s28, 2"); a.e("s_and_b32 s34, s33, 3"); a.e("s_add_u32 s28, s28, s34")
    a.e("s_and_b32 s31, s32, 1"); a.e("s_lshr_b32 s33, s33, 2")
    a.e("s_lshl_b32 s29, s31, 3"); a.e("s_add_u32 s29, s29, s33")
    a.e(f"s_and_b32 s67, s33, {env('RMASK', 4)}")
    a.e("s_mov_b32 s60, 0"); a.e("s_mov_b32 s61, 40000"); a.e("s_mov_b32 s52, 0")
    a.e("s_mov_b32 s55, 0"); a.e("s_mov_b32 s92, 0"); a.e("s_mov_b32 s93, 0"); a.e("s_mov_b32 s94, 0")
    a.srd(56, 4, X3G)
    a.e(f"s_add_u32 s62, s4, {LB0}"); a.e("s_addc_u32 s63, s5, 0")
    if STAMP:
        a.e("s_mov_b32 s66, 1"); a.e("v_mov_b32 v4, -1"); a.e("v_mov_b32 v5, 0"); a.e("s_mov_b32 s95, 0"); a.e("v_writelane_b32 v4, s46, 0")
    mstamp(a)
    front_a(a); mstamp(a)
    a.e("s_cmp_ge_u32 s30, 4"); a.e("s_cbranch_scc1 FR_b")
    front_conv(a)
    mstamp(a)
    a.e("s_waitcnt vmcnt(4)")
    a.e("s_branch FR_end")
    a.e("FR_b:")
    front_b(a)
    mstamp(a)
    a.e("FR_end:")
    r_stage(a, True)
    a.e("s_waitcnt lgkmcnt(0)"); a.e("s_barrier")
    mstamp(a)
    a.e("LAYER:")
    r_stage(a)
    mstamp(a)
    for w in (3, 4): g_compute(a, w)
    a.e("LOADERS:")
    window_y(a)
    a.e("s_cmp_ge_u32 s30, 6"); a.e("s_cbranch_scc1 WLOAD")
    for w in (3, 4): a_loader(a, w)
    a.e("WLOAD:")
    w_loader(a, 3); w_setup(a, 4); w_loader(a, 4)
    y_end(a)
    a.e("NEXT:")
    a.e("s_setprio 0")
    a.e("s_add_u32 s60, s60, 1"); a.e(f"s_add_u32 s55, s55, {LSTR}")
    a.e(f"s_add_u32 s62, s62, {LSTR}"); a.e("s_addc_u32 s63, s63, 0")
    a.e("s_branch LAYER")
    a.e("K_fin:")
    if STAMP:
        a.e("s_waitcnt vmcnt(0)")
        mstamp(a)
        a.srd(96, 4, 16 * MB, off=200 * MB)
        a.e("s_lshl_b32 s66, s2, 3"); a.e("s_add_u32 s66, s66, s30"); a.e("s_lshl_b32 s66, s66, 8")
        a.e("v_writelane_b32 v4, s95, 63")
        a.e("buffer_store_dword v4, v3, s[96:99], s66 offen")
        a.e("s_add_u32 s66, s66, 0x100000"); a.e("buffer_store_dword v5, v3, s[96:99], s66 offen")
    a.e("s_endpgm")
    emit_subs(a)
    a.e("K_end:")
    a.end_kernel(nm, 256)
    a.launches.append(f"; @launch grid=(256,1,1) block=(512,1,1) lds={LDS_TOTAL}")

HEADER = open("interleave_layers__ssm_conv_h3__mixer_s_mlp__prompt.s.ref").read().split("; Override launch")[0]
DOC = """; One persistent kernel, 256 workgroups x 8 waves (one per CU), generated by dev/gen29.py.
"""
def main(out):
    a = Asm()
    k_mega(a)
    notes = {
        "K_pc:": "each workgroup reads 4 KB of this kernel's code so that later instruction fetches are served on chip",
        "KV_t0:": "k / v / tap loads of the u^T tile (64 times x 128 channels); workgroup 0 has posted the launch tag (a clock value) in d_debug",
        "HB_1:": "u^T tile out, arrival counters initialised to the tag, W2 slice into registers, shifted filter copies into LDS",
        "CV_w:": "long causal convolution as Toeplitz MFMAs, one channel per wave",
        "FR_b:": "waves 4-7 beside the convolution: memory-locality vote (timed loads, layout choice only), weight column sums, weight loads",
        "LAYER:": "row stage: residual sums, LayerNorm chain, x + LN(x)*y for 8 rows per workgroup",
        "LOADERS:": "waves 4-7: loads of G1, MFMAs of G2; then waves 4,5: activation tiles by LDS-DMA (after the producers' counters are complete)",
        "WLOAD:": "waves 6,7: weight tiles by LDS-DMA in their original layout (read back with transposing LDS loads)",
        "G4_last:": "last layer: the two K halves exchange half tiles, add the residuals and write the output",
    }
    o = []
    for l in a.lines:
        if l.strip() in notes: o.append("; ---- " + notes[l.strip()])
        if l.strip().startswith("s_sleep"): l += "    ; back-off inside a wait loop"
        o.append(l)
    a.lines = o
    open(out, "w").write(a.text(HEADER + DOC))
    print("nops added:", a.nops_added, "| slots", [WSLOT[s] // KB for s in range(32)], "| issue", {k: x for k, x in WISSUE.items() if x})

if __name__ == "__main__":
    main(sys.argv[1] if len(sys.argv) > 1 else "interleave_layers__ssm_conv_h3__mixer_s_mlp__prompt.s")
```

```python
import sys, os, math, struct
sys.path.insert(0, "dev")
from asmgen import Asm

KNAME = "interleave_layers__ssm_conv_h3__mixer_s_mlp__prompt_kernel"
MB = 1 << 20; KB = 1024
UT, PRB = 24 * MB, 28 * MB; Y = UT
CSP3 = 20 * MB + 128 * 1024
A_Q, A_K, A_V, A_SH, A_SSMK, A_SSMD, B_X, B_W1, B_W2, B_W3, B_W4, D_OUT, D_DBG, D_WS = [8 * i for i in range(14)]
def env(k, d): return type(d)(os.environ.get(k, d)) if not isinstance(d, (list, dict, tuple)) else eval(os.environ.get(k, repr(d)))
STAMP = env("STAMP", 0)
def f32(x): return "0x%08x" % struct.unpack("<I", struct.pack("<f", x))[0]
GC1 = -2.0 * math.sqrt(2.0 / math.pi) * math.log2(math.e)

WAD = 74
RB0, RB1 = 78, 118
WR0 = 128
class VA:
    def __init__(self, start=1, skip=False): self.n = start; self.hi = start; self.skip = skip
    def __call__(self, cnt=1, al=None):
        if al is None: al = 2 if cnt > 1 else 1
        self.n = (self.n + al - 1) // al * al
        if self.skip and self.n < RB1 and self.n + cnt > RB0: self.n = (RB1 + al - 1) // al * al
        r = self.n; self.n += cnt; self.hi = max(self.hi, self.n); return r
def vr(b, n): return f"v[{b}:{b+n-1}]" if n > 1 else f"v{b}"

def unpack(a, lo, hi, src):
    a.e(f"v_lshlrev_b32 v{lo}, 16, v{src}")
    a.e(f"v_and_b32 v{hi}, 0xffff0000, v{src}")
def round2(a, x, y, tmp):
    a.e(f"v_cvt_pk_bf16_f32 v{tmp}, v{x}, v{y}")
    unpack(a, x, y, tmp)
def round1(a, x):
    a.e(f"v_cvt_pk_bf16_f32 v{x}, v{x}, v{x}")
    a.e(f"v_lshlrev_b32 v{x}, 16, v{x}")
def ln_finish(a, mean, var, rs):
    round1(a, mean); round1(a, var)
    a.e(f"v_add_f32 v{var}, {f32(1e-5)}, v{var}"); round1(a, var)
    a.e(f"v_sqrt_f32 v{var}, v{var}"); round1(a, var)
    if rs is not None: a.e(f"v_rcp_f32 v{rs}, v{var}")

FLG = 22 * MB
LB0, LSTR, GSTR = 32 * MB, 64 * MB, 8 * MB
oH2 = 0; oSM = 1792 * 1024; oST2 = oSM + 32768
oH, oX1P = [4 * MB + i * 512 * 1024 for i in range(2)]
XSZ = 512 * 1024 - 8192; H2SZ = 1792 * 1024 - 8192
X3G = 160 * MB
LNSG = FLG + 128 * KB
def spread(a, d, src):
    a.e(f"s_lshr_b32 s53, s{src}, 3"); a.e("s_lshl_b32 s53, s53, 14"); a.e(f"s_and_b32 s{d}, s{src}, 7"); a.e(f"s_lshl_b32 s{d}, s{d}, 10"); a.e(f"s_add_u32 s{d}, s{d}, s53")
ST_R, ST_G2, ST_G4, ST_G3A, ST_G3B, ST_G3, ST_G2S = 0, 8, 12, 32, 36, 40, 44
FH = 2048
F_KVT, F_FRONT, F_CS = FLG + 256 * KB, FLG + 512 * KB, FLG
LDS_TOTAL = 163840
AUX = LDS_TOTAL - 4096
SC = "sc1"
PSLEEP = env("PSLEEP", 5); PACE = env("PACE", 8); STQ = env("STQ", 12); FSLEEP = env("FSLEEP", 3)
NT = os.environ.get("NT", "nt"); NTK = NT; NTH = NT
PUB2 = env("PUB2", 4); MAP = env("MAP", 4); HSPLIT = env("HSPLIT", 2); PWAIT = env("PWAIT", 8)
PACES = env("PACES", {4: 8}); C0PUB = env("C0PUB", 7)
REC, LNSL = 152 * KB, AUX + 1024
WST = 24 * KB

CFG = {1: dict(KBT=32, NW=16, LDW=2048, TN16=4, WB=0),
       3: dict(WM=2, WN=2, MT=4, NT=7, KBT=32, NS=16, NA=3, NW=3, A=oX1P, LDW=7168, NPRE=2, WR=2),
       4: dict(WM=2, WN=2, MT=4, NT=4, KBT=112, NS=28, NA=3, NW=6, A=oH2, LDW=2048)}
for w, c in CFG.items():
    c.setdefault("NPRE", c["NW"]); c.setdefault("WR", 1)
    if w > 1: c["TN16"] = c["WN"] * c["NT"]; c["WB"] = c["NA"] * 16384
    c["STB"] = c["TN16"] * 2048; c["RB"] = c["TN16"] * 32
CFG[2] = CFG[1]
CSO = {3: AUX}

LW = AUX + 3072
def mstamp(a, force=False):
    if os.environ.get("JIT"):
        X = a.lab("jit")
        a.e("s_cselect_b32 s101, 1, 0"); a.e("s_memtime s[64:65]"); a.e("s_waitcnt lgkmcnt(0)"); a.e(f"s_and_b32 s64, s64, {os.environ['JIT']}"); a.e("s_cmp_lg_u32 s64, 0")
        a.e(f"s_cbranch_scc1 {X}"); a.e("s_sleep 50"); a.e(f"{X}:"); a.e("s_cmp_eq_u32 s101, 1")
        return
    if not STAMP or (os.environ.get("GST") and not force): return
    if STAMP == 1:
        fn = sys._getframe(1)
        while fn.f_code.co_name in ("<lambda>", "flag"): fn = fn.f_back
        if fn.f_code.co_name in ("front_b", "window_y", "w_setup", "w_loader", "a_loader", "wait2", "run", "front_a"): return
        if fn.f_code.co_name == "win_compute" and fn.f_locals["g"] == 2: return
        a.e("s_memrealtime s[64:65]"); a.e("s_mov_b32 s100, m0"); a.e("s_mov_b32 m0, s66"); a.e("s_waitcnt lgkmcnt(0)")
        a.e("v_writelane_b32 v4, s64, m0"); a.e("s_mov_b32 m0, s100"); a.e("s_add_u32 s66, s66, 1")
        return
    a.e("s_memrealtime s[64:65]"); a.e("s_memtime s[96:97]")
    a.e("s_mov_b32 s100, m0"); a.e("s_mov_b32 m0, s66"); a.e("s_waitcnt lgkmcnt(0)")
    a.e("v_writelane_b32 v4, s64, m0"); a.e("v_writelane_b32 v5, s96, m0")
    a.e("s_mov_b32 m0, s100"); a.e("s_add_u32 s66, s66, 1")

def lsrd(a, d, off, nbytes, prev=False):
    if prev:
        a.e(f"s_sub_u32 s{d}, s62, {LSTR - off:#x}"); a.e(f"s_subb_u32 s{d+1}, s63, 0")
        a.e(f"s_mov_b32 s{d+2}, {nbytes:#x}"); a.e(f"s_mov_b32 s{d+3}, 0x20000")
    else: a.srd(d, 62, nbytes, off=off)
def x3_srd(a, d):
    a.e(f"s_lshl_b32 s{d+2}, s60, 24"); a.e(f"s_lshl_b32 s{d+3}, s94, 13"); a.e(f"s_add_u32 s{d+2}, s{d+2}, s{d+3}"); a.e(f"s_add_u32 s{d+2}, s{d+2}, {X3G}")
    a.e(f"s_add_u32 s{d}, s4, s{d+2}"); a.e(f"s_addc_u32 s{d+1}, s5, 0"); a.e(f"s_mov_b32 s{d+2}, {8*MB - 8192}"); a.e(f"s_mov_b32 s{d+3}, 0x20000")
def lns_srd(a, d):
    a.e(f"s_lshl_b32 s{d+2}, s60, 15"); a.e(f"s_add_u32 s{d+2}, s{d+2}, {LNSG}")
    a.e(f"s_add_u32 s{d}, s4, s{d+2}"); a.e(f"s_addc_u32 s{d+1}, s5, 0"); a.e(f"s_mov_b32 s{d+2}, 32768"); a.e(f"s_mov_b32 s{d+3}, 0x20000")
def rowaddr(a, d, r, t):
    a.e(f"v_and_b32 v{t}, 3, v{r}"); a.e(f"v_lshrrev_b32 v{d}, 2, v{r}"); a.e(f"v_lshlrev_b32 v{d}, 14, v{d}"); a.e(f"v_lshl_add_u32 v{d}, v{t}, 11, v{d}")

def group_off(a, d, m):
    a.e(f"s_lshr_b32 s53, s{m}, 3"); a.e("s_lshl_b32 s53, s53, 2"); a.e(f"s_and_b32 s54, s{m}, 3"); a.e("s_add_u32 s53, s53, s54"); a.e("s_lshl_b32 s53, s53, 23")
    a.e(f"s_lshr_b32 s54, s{m}, 2"); a.e("s_xor_b32 s54, s54, s94"); a.e("s_and_b32 s54, s54, 1"); a.e("s_lshl_b32 s54, s54, 13")
    a.e(f"s_add_u32 s{d}, s53, s54"); a.e(f"s_add_u32 s{d}, s{d}, {LB0}")

def poll_core(a, t, ad, mask, cnt=0, nap=None):
    L = a.lab("poll"); D = a.lab("pok")
    a.e("s_mov_b32 s53, 0"); a.e(f"s_add_u32 s54, s52, {cnt}")
    a.e(f"s_bfm_b64 exec, {mask.bit_length()}, 0")
    a.e(f"{L}:")
    a.e(f"buffer_load_dword v{t}, v{ad}, s[56:59], 0 offen {SC}")
    a.e("s_waitcnt vmcnt(0)")
    a.e(f"v_cmp_eq_u32 vcc, s54, v{t}")
    a.e("s_cmp_eq_u64 vcc, exec"); a.e(f"s_cbranch_scc1 {D}")
    a.e(f"s_sleep {PSLEEP if nap is None else nap}")
    a.e("s_add_u32 s53, s53, 1"); a.e("s_cmp_lt_u32 s53, s61"); a.e(f"s_cbranch_scc1 {L}")
    a.e("s_mov_b32 s61, 0")
    a.e(f"{D}:")
    a.e("s_mov_b64 exec, -1")

def flag_off(a, d, stage, sub, prev=False):
    a.e(f"s_lshl_b32 s{d}, s{sub}, 7"); a.e(f"s_add_u32 s{d}, s{d}, s55")
    so = stage * 128 - (LSTR if prev else 0)
    if so: a.e(f"s_add_u32 s{d}, s{d}, {so & 0xffffffff:#x}")
def flag_in(a, d, stage, prev=False):
    if stage in (ST_R, ST_G2): a.e(f"s_add_u32 s{d}, s55, {stage*128}"); return 1 if stage == ST_R else 4
    if stage == ST_G4: a.e(f"s_lshl_b32 s{d}, s31, 1")
    else:
        a.e(f"s_and_b32 s{d}, s30, 1")
        if stage != ST_G2S: a.e(f"s_lshl1_add_u32 s{d}, s31, s{d}")
    flag_off(a, d, stage, d, prev)
    return 2 if stage == ST_G4 else 1
def flag_addr(a, r, stage, prev=False):
    n = flag_in(a, 54, stage, prev)
    if stage == ST_R:
        a.e("s_bitcmp1_b32 s29, 2"); a.e("s_cselect_b32 s53, s93, s92"); a.e("s_add_u32 s53, s53, s54")
        a.e(f"v_mov_b32 v{r}, s54"); a.e(f"v_writelane_b32 v{r}, s53, 1")
        return 3
    a.e(f"v_mov_b32 v{r}, s54")
    a.e(f"v_lshl_add_u32 v{r}, v1, 7, v{r}")
    return (1 << n) - 1
def flag_try(a, d, off): a.e(f"s_load_dword s{d}, s[4:5], s{off}")
def flag_check(a, d, off, t):
    D = a.lab("fok")
    a.e("s_add_u32 s54, s52, 16"); a.e("s_waitcnt lgkmcnt(0)"); a.e(f"s_cmp_eq_u32 s{d}, s54"); a.e(f"s_cbranch_scc1 {D}")
    a.e(f"v_mov_b32 v{t+1}, s{off}"); poll_core(a, t, t + 1, 1, cnt=16)
    a.e(f"{D}:")

def poll(a, stage, t, prev=False, wave=4, nap=None):
    D = a.lab("pdone")
    a.e(f"s_cmp_lg_u32 s30, {wave}"); a.e(f"s_cbranch_scc1 {D}")
    poll_core(a, t, t + 1, flag_addr(a, t + 1, stage, prev), cnt=16, nap=nap)
    a.e(f"{D}:")
    a.e("s_waitcnt lgkmcnt(0)"); a.e("s_barrier")

def publish(a, stage, t, off=None, wait=0):
    if off is None:
        off = 53
        if stage == ST_G4: flag_off(a, 53, stage, 30)
        else:
            a.e({ST_G2: "s_and_b32 s53, s30, 3", ST_G2S: "s_and_b32 s53, s30, 1"}.get(stage, "s_lshr_b32 s53, s30, 1"))
            if stage not in (ST_G2, ST_G2S): a.e("s_lshl1_add_u32 s53, s31, s53")
            flag_off(a, 53, stage, 53)
    a.e(f"v_mov_b32 v{t}, 1"); a.e(f"v_mov_b32 v{t+1}, 0")
    a.e("s_mov_b64 exec, 1")
    if wait is not None: a.e(f"s_waitcnt vmcnt({wait})")
    a.e(f"buffer_atomic_add v{t}, v{t+1}, s[56:59], s{off} offen {SC}")
    a.e("s_mov_b64 exec, -1")

def data_wait(a, loads, regs, t, between=None, nap=2, first=True):
    L = a.lab("dw"); D = a.lab("dok")
    for x in loads if first else []: a.e(x)
    if between: between()
    a.e("s_mov_b32 s53, 0")
    a.e(f"{L}:")
    a.e("s_waitcnt vmcnt(0)")
    h = len(regs) // 2
    for k, part in enumerate((regs[:h], regs[h:])): a.e(f"v_and_b32 v{t+k}, v{part[0]}, v{part[1]}")
    for i in range(2, h, 2):
        for k, part in enumerate((regs[:h], regs[h:])): a.e(f"v_bitop3_b32 v{t+k}, v{part[i]}, v{part[i+1]}, v{t+k} bitop3:0x80")
    a.e(f"v_bitop3_b32 v{t}, v{t}, v{t+1}, 1 bitop3:0x80"); a.e(f"v_cmp_eq_u32 vcc, 0, v{t}")
    a.e("s_cmp_eq_u64 vcc, 0"); a.e(f"s_cbranch_scc1 {D}")
    a.e("s_mov_b64 exec, vcc")
    a.e(f"s_sleep {nap}")
    for x in loads: a.e(x)
    a.e("s_add_u32 s53, s53, 1"); a.e("s_cmp_lt_u32 s53, s61"); a.e(f"s_cbranch_scc1 {L}")
    a.e("s_mov_b32 s61, 0"); a.e("s_waitcnt vmcnt(0)")
    a.e(f"{D}:")
    a.e("s_mov_b64 exec, -1")
    if STAMP: a.e("s_lshl_b32 s53, s53, 24"); a.e("s_add_u32 s95, s95, s53")
def lsb0(a, r):
    a.e(f"v_add_u32 v{r}, 0x10000, v{r}"); a.e(f"v_and_b32 v{r}, 0xfffe0000, v{r}")
W1A, W1B = (11, 12, 15, 13, 14, 3, 4, 5, 6, 0), (7, 8, 1, 2, 9, 10)
W2S = (-3, -2, -1) + W1B
def lds_spin(a, addr, target, t, dst=53, nap=False):
    L = a.lab("spin")
    a.e(f"v_mov_b32 v{t}, {addr}")
    a.e(f"{L}:")
    if nap: a.e(f"s_sleep {int(nap)}")
    a.e(f"ds_read_b32 v{t+1}, v{t}"); a.e("s_waitcnt lgkmcnt(0)"); a.e(f"v_readfirstlane_b32 s{dst}, v{t+1}")
    a.e(f"s_cmp_ge_u32 s{dst}, {target}"); a.e(f"s_cbranch_scc0 {L}")
def lds_set(a, addr, val, t):
    a.e(f"v_mov_b32 v{t}, {addr}"); a.e(f"v_mov_b32 v{t+1}, {val}")
    a.e("s_waitcnt lgkmcnt(0)"); a.e(f"ds_write_b32 v{t}, v{t+1}")
def lds_inc(a, addr, t):
    a.e(f"v_mov_b32 v{t}, {addr}"); a.e(f"v_mov_b32 v{t+1}, 1")
    a.e("s_waitcnt lgkmcnt(0)")
    a.e("s_mov_b64 exec, 1"); a.e(f"ds_add_u32 v{t}, v{t+1}"); a.e("s_mov_b64 exec, -1")
def lbar(a, k, t, addr=LW + 8, nap=False):
    lds_inc(a, addr, t); lds_spin(a, addr, 4 * k, t, nap=nap)

class Rec:
    def __init__(s_): s_.l = []
    def e(s_, x): s_.l.append(x)
    srd = Asm.srd
class Track:
    def __init__(s, a): s.a = a; s.vq = []; s.lq = []
    def e(s, x): s.a.e(x)
    def vm(s, x, tag=None): s.a.e(x); s.vq.append(tag)
    def ds(s, x, tag=None): s.a.e(x); s.lq.append(tag)
    def _w(s, q, tag, nm, mx):
        if tag not in q: return
        i = max(k for k, x in enumerate(q) if x == tag); n = len(q) - 1 - i
        assert n <= mx
        s.a.e(f"s_waitcnt {nm}({n})"); del q[:i + 1]
    def wv(s, tag): s._w(s.vq, tag, "vmcnt", 63)
    def wl(s, tag): s._w(s.lq, tag, "lgkmcnt", 15)
    def nv(s, tag):
        return len(s.vq) - 1 - max(k for k, x in enumerate(s.vq) if x == tag)
NVOTE = 255
HSTR = 4160; CHB = 21504; UOFF = 4 * HSTR
RFO, RYO, RRO, RI, RXO, RT, RXA, RXB, RYF, RYY = 78, 79, 80, 81, 82, 84, 86, 94, 102, 110
WVB = {1: 118, 2: 118, 4: 119, 3: 121}

NRAW = env("NRAW", 8)
KL, VL = 96 * KB, 113 * KB
def front_loads(a):
    vA, vB, t, t2 = 6, 7, 8, 9
    a.e(f"v_bfe_u32 v{t}, v0, 4, 2"); a.e(f"v_and_b32 v{t2}, 15, v0"); a.e(f"v_lshlrev_b32 v{vA}, 11, v{t}"); a.e(f"v_lshlrev_b32 v{t}, 1, v{t}")
    a.e(f"v_xor_b32 v{t}, v{t}, v{t2}"); a.e(f"v_lshl_add_u32 v{t}, v{t}, 4, v{vA}")
    a.e("s_and_b32 s34, s2, 7"); a.e("s_lshr_b32 s35, s2, 3")
    a.e("s_lshl_b32 s36, s35, 17"); a.e("s_lshl_b32 s37, s34, 8"); a.e("s_add_u32 s36, s36, s37")
    a.e("s_lshl_b32 s37, s30, 6"); a.e("s_and_b32 s38, s37, 128"); a.e("s_add_u32 s37, s37, 64"); a.e("s_and_b32 s37, s37, 128")
    a.e(f"v_xor_b32 v{vA}, s38, v{t}"); a.e(f"v_xor_b32 v{vB}, s37, v{t}")
    a.e("s_lshl_b32 s37, s30, 14"); a.e("s_add_u32 s37, s37, s36"); a.e("s_add_u32 s38, s37, 8192"); a.e("s_lshl_b32 s39, s30, 11")
    a.e(f"s_mov_b32 s18, {4*MB}"); a.e("s_mov_b32 s19, 0x20000"); a.e("s_mov_b32 s22, s18"); a.e("s_mov_b32 s23, s19")
    a.e(f"s_add_u32 m0, s39, {KL + 1024}")
    a.e("s_waitcnt lgkmcnt(0)")
    a.e("s_mov_b64 s[16:17], s[8:9]"); a.e("s_mov_b64 s[20:21], s[10:11]")
    a.e(f"buffer_load_dwordx4 v{vA}, s[16:19], s37 offen {NT} lds"); a.e("s_add_u32 m0, m0, 1024")
    a.e(f"buffer_load_dwordx4 v{vB}, s[16:19], s38 offen {NT} lds"); a.e(f"s_add_u32 m0, s39, {VL}")
    a.e(f"buffer_load_dwordx4 v{vA}, s[20:23], s37 offen {NT} lds"); a.e("s_add_u32 m0, m0, 1024")
    a.e(f"buffer_load_dwordx4 v{vA}, s[20:23], s38 offen {NT} lds")
    a.e("s_mov_b32 s86, 256"); a.e("s_mov_b32 s87, 0x20000"); a.e(f"v_mov_b32 v{ZZ}, 0")
    a.e("s_cmp_lg_u32 s30, 0"); a.e("s_cbranch_scc1 KV_t0")
    a.e("s_sub_u32 s36, s36, 8192"); a.e(f"v_add_u32 v{t}, s36, v{t}"); a.e(f"s_mov_b32 m0, {KL}")
    a.e(f"buffer_load_dwordx4 v{t}, s[16:19], 0 offen {NT} lds")
    a.e("s_cmp_lg_u32 s2, 0"); a.e("s_cbranch_scc1 KV_t0")
    a.e("s_lshl_b32 s44, s46, 6"); a.e("s_or_b32 s44, s44, 1"); a.e(f"v_mov_b32 v{t2}, s44")
    a.e("s_mov_b64 exec, 1"); a.e(f"buffer_store_dword v{t2}, v{ZZ}, s[84:87], 0 offen {SC}"); a.e("s_mov_b64 exec, -1")
    a.e("KV_t0:")
    a.e("s_lshl_b32 s37, s34, 10"); a.e("s_lshl_b32 s38, s30, 7"); a.e("s_add_u32 s37, s37, s38"); a.e(f"v_and_b32 v{t2}, 15, v0"); a.e(f"v_lshlrev_b32 v{t2}, 3, v{t2}")
    a.srd(24, 12, 8192)
    a.e(f"buffer_load_dwordx2 {vr(TAP,2)}, v{t2}, s[24:27], s37 offen")
ZZ, TAP = 10, 12

def front_arrive(a):
    t = 6
    a.e("s_lshl_b32 s36, s2, 7"); a.e(f"s_add_u32 s36, s36, {F_FRONT}"); a.e("s_add_u32 s45, s45, s52"); a.e(f"v_mov_b32 v{t+2}, s45")
    a.e("s_mov_b64 exec, 1"); a.e(f"buffer_store_dword v{t+2}, v2, s[56:59], s36 offen {SC}"); a.e("s_mov_b64 exec, -1")
def front_a(a):
    T = Track(a); v = VA(14)
    t = v(); t2 = v(); ra = v(2, 2); go = v(); hw = v(); hw2 = v(); hoff = v(6, 2); d = v(18, 2); tf = v(4, 2); o = v(8, 4); z = v(4, 4)
    assert v.hi <= WAD
    v = VA(128); kr = v(10, 2); vv = v(8, 2); kf = v(20, 2); ks = v(16, 2); dm = 240
    a.e("s_cmp_lg_u32 s30, 4"); a.e("s_cbranch_scc1 HB_1")
    a.e(f"v_add_u32 v{t}, {LW}, v3"); a.e(f"ds_write_b32 v{t}, v{ZZ}")
    a.e("HB_1:")
    w_srd(a, 2, 88)
    a.e("s_lshl3_add_u32 s36, s2, s30"); a.e("s_lshl_b32 s36, s36, 10")
    w_srd(a, 1, 80); a.e("s_mov_b32 s50, s36")
    def wtouch(l=(88, 80)):
        for d_ in l: T.vm(f"buffer_load_dwordx4 {vr(dm,4)}, v2, s[{d_}:{d_+3}], s50 offen")
    WT = env("WT", 6)
    if WT == 0: wtouch()
    w_lanes(a, (1,), t, t2)
    for r in range(119, 128): a.e(f"v_mov_b32 v{r}, 0")
    a.e("s_lshl_b32 s48, s29, 7"); a.e("s_lshl_b32 s36, s30, 14"); a.e("s_add_u32 s48, s48, s36"); a.e("s_lshl_b32 s49, s30, 10")
    a.e(f"s_add_u32 s48, s48, {MB}")
    w2q = list(range(NRAW, 16))
    def w2(n):
        for _ in range(min(n, len(w2q))):
            j = w2q.pop(0)
            a.e(f"s_add_u32 s36, s48, {(j & 7) << 17}")
            a.e(f"s_add_u32 m0, s49, {WST + j * 8192}")
            T.vm(f"buffer_load_dwordx4 v{WVB[1]}, s[88:91], s36 offen lds")
    a.e("s_and_b32 s41, s30, 3"); chan_setup(a, 41)
    a.e("s_lshl_b32 s36, s39, 12")
    a.e("s_add_u32 s12, s14, s36"); a.e("s_addc_u32 s13, s15, 0"); a.e("s_mov_b32 s14, 4096"); a.e("s_mov_b32 s15, 0x20000")
    a.e("s_lshr_b32 s45, s30, 2"); a.e("s_lshl_b32 s45, s45, 11")
    for it in range(3):
        if it < 2: a.e(f"s_add_u32 s36, s45, {(1024*it - 64) & 0xffffffff:#x}")
        else: a.e(f"s_mov_b32 s36, {4096 - 64}")
        a.e(f"v_add_u32 v{hoff+2*it}, s36, v2"); a.e(f"v_add_u32 v{hoff+2*it+1}, 16, v{hoff+2*it}")
    def hld():
        for it in range(3):
            T.vm(f"buffer_load_dwordx4 {vr(d+6*it,4)}, v{hoff+2*it}, s[12:15], 0 offen {NTH}", "h")
            T.vm(f"buffer_load_dwordx2 {vr(d+6*it+4,2)}, v{hoff+2*it+1}, s[12:15], 0 offen {NTH}", "h")
    a.e(f"v_add_u32 v{hw}, s40, v2"); a.e(f"v_add_u32 v{hw2}, s45, v{hw}")
    conv_setup(a); r_addr(a)
    a.srd(8, 6, 4 * MB)
    for i in range(4): a.e(f"v_mov_b32 v{z+i}, 0")
    a.e("s_bfm_b64 exec, 40, 0"); a.e(f"ds_write_b128 v{hw}, {vr(z,4)} offset:{UOFF+4096}"); a.e("s_mov_b64 exec, -1")
    assert UOFF + 4096 + 640 <= CHB and 4 * CHB <= WST + NRAW * 8192
    a.e("s_and_b32 s34, s2, 7"); a.e("s_lshr_b32 s35, s2, 3")
    a.e(f"v_bfe_u32 v{t}, v1, 2, 3"); a.e(f"v_xor_b32 v{t}, s30, v{t}"); a.e(f"v_lshlrev_b32 v{ra}, 5, v{t}")
    a.e(f"v_and_b32 v{t}, 3, v1"); a.e(f"v_lshl_add_u32 v{ra}, v{t}, 3, v{ra}")
    a.e(f"v_bfe_u32 v{t}, v1, 2, 2"); a.e(f"v_lshl_add_u32 v{ra}, v{t}, 8, v{ra}"); a.e(f"v_lshrrev_b32 v{t}, 4, v1"); a.e(f"v_lshl_add_u32 v{ra}, v{t}, 12, v{ra}")
    a.e(f"v_add_u32 v{ra}, {KL}, v{ra}"); a.e(f"v_xor_b32 v{ra+1}, 128, v{ra}")
    a.srd(16, 4, 4 * MB, off=UT)
    a.e(f"v_bfe_u32 v{go}, v1, 2, 2"); a.e(f"v_lshlrev_b32 v{go}, 14, v{go}"); a.e(f"v_and_b32 v{t}, 3, v1"); a.e(f"v_lshl_add_u32 v{go}, v{t}, 6, v{go}")
    a.e(f"v_bfe_u32 v{t}, v1, 4, 1"); a.e(f"v_lshrrev_b32 v{t2}, 5, v1"); a.e(f"v_lshl_add_u32 v{t}, v{t}, 1, v{t2}"); a.e(f"v_xor_b32 v{t}, 3, v{t}"); a.e(f"v_lshl_add_u32 v{go}, v{t}, 4, v{go}")
    a.e("s_lshl3_add_u32 s42, s34, s30"); a.e("s_lshl_b32 s43, s42, 16"); a.e("s_sub_u32 s37, 31, s35"); a.e("s_lshl_b32 s37, s37, 9"); a.e("s_add_u32 s43, s43, s37")
    a.e("s_lshl_b32 s44, s42, 5"); a.e("s_add_u32 s44, s44, s35"); a.e("s_lshl_b32 s44, s44, 7"); a.e(f"s_add_u32 s44, s44, {F_KVT}")
    a.e("s_cmp_lt_u32 s30, 4"); a.e("s_cbranch_scc1 HB_4")
    w_lanes(a, (3, 4), t, t2)
    a.e("HB_4:")
    hld()
    if WT == 1: wtouch()
    if WT >= 4: wtouch((88,))
    a.e("s_cmp_ge_u32 s30, 4"); a.e("s_cbranch_scc1 HB_3")
    conv_setup2(a); a.e("s_waitcnt lgkmcnt(0)"); conv_diag(a)
    a.e("HB_3:")
    mstamp(a)
    a.e(f"s_waitcnt vmcnt({len(T.vq)}) lgkmcnt(0)"); a.e("s_barrier")
    mstamp(a)
    for i in range(5): a.e(f"ds_read_b64_tr_b16 {vr(kr+2*i,2)}, v{ra+i//4} offset:{1024*i}")
    for i in range(4): a.e(f"ds_read_b64_tr_b16 {vr(vv+2*i,2)}, v{ra} offset:{VL - KL + 1024*i}")
    a.e("s_load_dword s52, s[84:85], 0")
    unpack(a, tf, tf + 1, TAP); unpack(a, tf + 2, tf + 3, TAP + 1)
    a.e("s_waitcnt lgkmcnt(0)")
    b = Rec()
    for i in range(10): unpack(b, kf + 2 * i, kf + 2 * i + 1, kr + i)
    for i in range(16): b.e(f"v_mul_f32 v{ks+i}, v{kf+i+1}, v{tf+3}")
    for j in (2, 1, 0):
        for i in range(16): b.e(f"v_fmac_f32 v{ks+i}, v{kf+i+4-j}, v{tf+j}")
    for i in range(8): unpack(b, kf + 2 * i, kf + 2 * i + 1, vv + i)
    for i in range(16): b.e(f"v_mul_f32 v{ks+i}, v{ks+i}, v{kf+i}")
    for i in range(1, 16, 2): lsb0(b, ks + i)
    for i in range(8): b.e(f"v_cvt_pk_bf16_f32 v{o+i}, v{ks+8*(i//4)+7-2*(i%4)}, v{ks+8*(i//4)+6-2*(i%4)}")
    for x in b.l: a.e(x)
    a.e("s_cmp_lg_u32 s52, 0"); a.e("s_cbranch_scc1 HB_q")
    a.e("s_mov_b32 s53, 0")
    a.e("HB_p:")
    a.e(f"buffer_load_dword v{t}, v{ZZ}, s[84:87], 0 offen {SC}"); a.e("s_waitcnt vmcnt(0)")
    a.e(f"v_readfirstlane_b32 s52, v{t}"); a.e("s_cmp_lg_u32 s52, 0"); a.e("s_cbranch_scc1 HB_q")
    a.e("s_add_u32 s53, s53, 1"); a.e("s_cmp_lt_u32 s53, s61"); a.e("s_cbranch_scc1 HB_p")
    a.e("s_mov_b32 s52, 1"); a.e("s_mov_b32 s61, 0")
    a.e("HB_q:")
    for e in range(4): a.e(f"v_permlane32_swap_b32 v{o+e}, v{o+4+e}")
    a.e(f"v_mov_b32 v{t}, s52")
    for i in range(2): T.vm(f"buffer_store_dwordx4 {vr(o+4*i,4)}, v{go}, s[16:19], s43 offen offset:{256*(1-i)} {SC}", "u")
    mstamp(a)
    cc = kr
    T.wv("h")
    FL = env("FL", 2)
    def flag():
        T.wv("u")
        a.e("s_mov_b64 exec, 1"); T.vm(f"buffer_store_dword v{t}, v{ZZ}, s[56:59], s44 offen {SC}"); a.e("s_mov_b64 exec, -1")
        a.e("s_cmp_lg_u32 s30, 5"); a.e("s_cbranch_scc1 KV_n3")
        a.e("s_lshl_b32 s36, s2, 14"); a.e(f"s_add_u32 s36, s36, {PRB}"); a.e(f"v_lshrrev_b32 v{t2}, 3, v1"); a.e(f"v_mul_u32_u24 v{t2}, {8192 - 128}, v{t2}"); a.e(f"v_add_u32 v{t2}, v{t2}, v2")
        a.e("s_mov_b64 exec, 0xffff"); a.e(f"buffer_store_dwordx4 {vr(z,4)}, v{t2}, s[56:59], s36 offen {SC}"); a.e("s_mov_b64 exec, -1")
        a.e("KV_n3:")
        mstamp(a)
    for it in range(3):
        if it == FL: flag()
        D = d + 6 * it; c0 = cc + 12 * it; c1 = c0 + 4; c2 = c0 + 8
        for k in range(4):
            a.e(f"v_alignbit_b32 v{c0+k}, v{D+k+1}, v{D+k}, 16")
            a.e(f"v_mov_b32 v{c1+k}, v{D+k+1}")
            a.e(f"v_alignbit_b32 v{c2+k}, v{D+k+2}, v{D+k+1}, 16")
        if it == 2: a.e("s_mov_b64 exec, 0xf")
        ad, o0 = (hw2, 1024 * it) if it < 2 else (hw, 4096)
        a.e(f"ds_write_b128 v{ad}, {vr(c0,4)} offset:{o0}")
        a.e(f"ds_write_b128 v{ad}, {vr(c1,4)} offset:{HSTR+o0}")
        a.e(f"ds_write_b128 v{ad}, {vr(c2,4)} offset:{2*HSTR+o0}")
        a.e(f"ds_write_b128 v{ad}, {vr(D+2,4)} offset:{3*HSTR+o0}")
    a.e("s_mov_b64 exec, -1")
    if FL == 3: flag()
    a.e("s_waitcnt lgkmcnt(0)"); a.e("s_barrier")
    mstamp(a)
    w2(16)
def load_q(a):
    for j in range(4): a.e(f"buffer_load_dwordx2 {vr(RXA+2*j,2)}, v{RRO}, s[8:11], 0 offen offset:{128*(j>>1) + 32*(j&1)} {NTH}")
def chan_setup(a, wsg):
    a.e("s_and_b32 s38, s2, 7"); a.e("s_lshl_b32 s38, s38, 5"); a.e("s_lshr_b32 s39, s2, 3"); a.e("s_add_u32 s38, s38, s39")
    a.e("s_lshl_b32 s39, s38, 2"); a.e(f"s_add_u32 s39, s39, s{wsg}")
    a.e(f"s_mul_i32 s40, s{wsg}, {CHB}")

def touch(a, which, nbytes, r, i0=0, i1=99):
    n = nbytes // 1024 // 512
    a.e(f"s_mov_b64 s[48:49], s[{66+2*which}:{67+2*which}]")
    a.e("s_lshl_b32 s45, s2, 1"); a.e("s_and_b32 s50, s30, 1"); a.e("s_add_u32 s45, s45, s50"); a.e(f"s_mul_i32 s45, s45, {n*1024}")
    a.e(f"s_mov_b32 s50, {nbytes}"); a.e("s_mov_b32 s51, 0x20000")
    for i in range(n):
        if i and i % 4 == 0: a.e("s_add_u32 s45, s45, 4096")
        if i0 <= i < i1: a.e(f"buffer_load_dwordx4 {vr(r,4)}, v2, s[48:51], s45 offen offset:{(i&3)*1024}")
    return n

def cs_sum(a):
    N = 3584; CSEL, CFR, CAD, CACC, CO = 20, 48, 104, 108, 112
    X = a.lab("cs")
    a.e("s_cmp_lg_u32 s60, 0"); a.e(f"s_cbranch_scc1 {X}")
    a.e("s_and_b32 s35, s30, 1")
    nr, pos = w_bases(a, 3, CAD, 35, 7, CO, CO + 1)
    a.e("s_cmp_eq_u32 s28, s29"); a.e(f"s_cselect_b32 s36, 0, {CFG[3]['STB']}")
    for i in range(nr): a.e(f"v_add_u32 v{CAD+i}, s36, v{CAD+i}")
    for T in range(7):
        for kk in range(2):
            for h in range(2):
                r, imm = pos(T, kk, h)
                a.e(f"ds_read_b64_tr_b16 {vr(CFR+8*T+4*kk+2*h,2)}, v{CAD + r} offset:{imm}")
    a.e(f"v_and_b32 v{CO}, 15, v1"); a.e(f"v_mov_b32 v{CO+1}, 0x3f803f80")
    for T in range(7):
        a.e(f"v_cmp_eq_u32 vcc, {T}, v{CO}")
        for e in range(4): a.e(f"v_cndmask_b32 v{CSEL+4*T+e}, 0, v{CO+1}, vcc")
    a.e(f"v_and_b32 v{CO+2}, 48, v1"); a.e(f"v_lshl_add_u32 v{CO+2}, v{CO}, 6, v{CO+2}")
    a.e(f"v_mov_b32 v{CO+1}, 0x7f000000")
    a.e(f"v_cmp_gt_u32 vcc, 7, v{CO}"); a.e(f"v_cndmask_b32 v{CO+2}, v{CO+1}, v{CO+2}, vcc")
    a.srd(20, 4, 16 * N * 4, off=CSP3)
    a.e(f"s_mul_i32 s36, s28, {N*4}"); a.e("s_lshl1_add_u32 s35, s29, s35"); a.e(f"s_mul_i32 s35, s35, {7*64}"); a.e("s_add_u32 s35, s35, s36")
    a.e("s_waitcnt lgkmcnt(0)")
    for i in range(14): a.e(f"v_mfma_f32_16x16x32_bf16 {vr(CACC,4)}, {vr(CFR+4*i,4)}, {vr(CSEL+4*(i//2),4)}, {vr(CACC,4) if i else 0}")
    a.e(f"buffer_store_dwordx4 {vr(CACC,4)}, v{CO+2}, s[20:23], s35 offen {SC}")
    a.e(f"{X}:")
def cs_flag(a, d):
    a.e(f"s_and_b32 s{d}, s30, 1"); a.e(f"s_lshl_b32 s{d}, s{d}, 13"); a.e("s_lshl_b32 s53, s29, 7"); a.e(f"s_add_u32 s{d}, s{d}, s53"); a.e(f"s_add_u32 s{d}, s{d}, {F_CS}")
def cs_signal(a):
    X = a.lab("cs")
    a.e("s_cmp_lg_u32 s60, 0"); a.e(f"s_cbranch_scc1 {X}")
    cs_flag(a, 36)
    publish(a, None, 14, off=36, wait=None)
    a.e(f"{X}:")

def wr_addr(a, ad, t):
    a.e(f"v_lshrrev_b32 v{t}, 2, v1"); a.e(f"v_lshlrev_b32 v{ad}, 7, v{t}"); a.e(f"v_bfe_u32 v{t}, v{t}, 1, 2")
    a.e("s_and_b32 s35, s30, 2"); a.e(f"v_and_b32 v{t+1}, 1, v1"); a.e(f"v_or_b32 v{t+1}, s35, v{t+1}"); a.e(f"v_xor_b32 v{t}, v{t}, v{t+1}")
    a.e(f"v_lshl_add_u32 v{ad}, v{t}, 5, v{ad}"); a.e(f"v_and_b32 v{t}, 2, v1"); a.e(f"v_lshl_add_u32 v{ad}, v{t}, 2, v{ad}")
    a.e("s_and_b32 s35, s30, 1"); a.e("s_lshl_b32 s35, s35, 4")
    a.e(f"v_add_u32 v{ad}, s35, v{ad}"); a.e(f"v_add_u32 v{ad+1}, {64*KB}, v{ad}"); a.e(f"v_add_u32 v{ad+2}, {128*KB}, v{ad}")
    assert WST == 3 * 8192
def wreg(j, kk): return WR0 + 16 * (j & 7) + 8 * kk + 4 * (j >> 3)
def wr_read(a, ad, js, slots=None):
    for j, x in zip(js, slots or js):
        for kk in range(2):
            for h in range(2): a.e(f"ds_read_b64_tr_b16 {vr(wreg(j,kk)+2*h,2)}, v{ad+((x+3)>>3)} offset:{((x+3)&7)*8192 + (32*kk+16*h)*128}")

def front_b(a):
    pt, vd = 6, 8
    wr_addr(a, WAD, 10)
    a.e("s_and_b32 s36, s30, 3"); a.e("s_lshl_b32 s36, s36, 14"); a.e("s_lshl_b32 s48, s29, 7"); a.e("s_add_u32 s48, s48, s36")
    a.e("s_cmp_lg_u32 s30, 5"); a.e("s_cbranch_scc1 FB_np"); a.e(f"s_waitcnt vmcnt({16 - NRAW})")
    a.e("s_lshl_b32 s42, s2, 14"); a.e(f"s_add_u32 s42, s42, {PRB}")
    for i in range(2):
        a.e("s_memtime s[34:35]"); a.e("s_waitcnt lgkmcnt(0)")
        a.e(f"s_load_dword s32, s[4:5], s42 offset:{i * 8192} glc"); a.e("s_waitcnt lgkmcnt(0)")
        a.e("s_memtime s[40:41]"); a.e("s_waitcnt lgkmcnt(0)")
        a.e(f"s_sub_u32 s{46+i}, s40, s34")
    a.e("s_cmp_lt_u32 s47, s46"); a.e("s_cselect_b32 s45, 1, 0")
    a.e("s_lshr_b32 s46, s28, 2"); a.e("s_xor_b32 s45, s45, s46"); a.e("s_lshr_b32 s46, s2, 7"); a.e("s_xor_b32 s45, s45, s46"); a.e("s_and_b32 s45, s45, 1"); a.e("s_lshl_b32 s45, s45, 1")
    a.e("FB_np:")
    group_off(a, 37, 28); a.e("s_andn2_b32 s37, s37, 0x2000"); a.e("s_lshl_b32 s43, s29, 7"); a.e("s_add_u32 s37, s37, s43"); a.e(f"s_add_u32 s37, s37, {oSM}")
    a.e(f"s_add_u32 s43, s43, {F_CS}"); a.e(f"v_mov_b32 v{RYF}, s52")
    a.e(f"v_and_b32 v{RYF+1}, 1, v1"); a.e(f"v_lshlrev_b32 v{RYF+1}, 13, v{RYF+1}"); a.e(f"v_bfe_u32 v{RYF+2}, v1, 1, 1"); a.e(f"v_lshl_add_u32 v{RYF+1}, v{RYF+2}, 26, v{RYF+1}")
    a.e(f"v_lshrrev_b32 v{RYF+2}, 2, v1"); a.e(f"v_lshl_add_u32 v{RYF+1}, v{RYF+2}, 11, v{RYF+1}")
    a.e("s_waitcnt vmcnt(0) lgkmcnt(0)")
    a.e("s_barrier")
    wr_read(a, WAD, range(NRAW, 16))
    a.e("s_waitcnt lgkmcnt(0)")
    a.e("s_barrier")
    mstamp(a)
    a.e("s_cmp_lg_u32 s30, 5"); a.e("s_cbranch_scc1 FB_na")
    front_arrive(a)
    a.e("FB_na:")
    if env('WT', 6) == 6:
        for k in range(2): a.e(f"buffer_load_dwordx4 {vr(12,4)}, v2, s[80:83], s50 offen"); a.e("s_sub_u32 s50, s50, 4096")
    load_q(a)
    a.e(f"s_setprio {env('FPRIO', 0)}")
    def raw(srd, reg, js):
        for j in js:
            a.e(f"s_add_u32 s36, s48, {j << 17}")
            a.e(f"buffer_load_dwordx4 {vr(reg(j,0),4)}, v{WVB[1]}, s[{srd}:{srd+3}], s36 offen"); a.e("s_add_u32 s36, s36, 65536")
            a.e(f"buffer_load_dwordx4 {vr(reg(j,1),4)}, v{WVB[1]}, s[{srd}:{srd+3}], s36 offen")
    NW2 = env("NW2", 2)
    a.e("s_cmp_lg_u32 s30, 4"); a.e("s_cbranch_scc1 FB_ni")
    a.e("s_mov_b64 exec, 0xfff"); a.e(f"buffer_store_dword v{RYF}, v{RYF+1}, s[56:59], s37 offen {SC}")
    a.e("s_cmp_lg_u32 s28, 0"); a.e("s_cbranch_scc1 FB_n2")
    a.e("s_mov_b64 exec, 3"); a.e(f"buffer_store_dword v{RYF}, v{RYF+1}, s[56:59], s43 offen {SC}")
    a.e("FB_n2:"); a.e("s_mov_b64 exec, -1")
    a.e("FB_ni:")
    raw(88, wreg, range(NW2))
    w1_dma(a, W1A[:5])
    a.e(f"s_waitcnt vmcnt({10 + 2 * NW2})"); lds_inc(a, LW + 8, pt)
    raw(80, w1raw, W1A[5:])
    a.e("s_xor_b32 s48, s48, 128")
    FE = env("FE", 3)
    raw(88, wreg, range(NW2, NRAW - FE))
    a.e("s_and_b32 s42, s30, 3"); a.e("s_lshl_b32 s42, s42, 13"); a.e(f"s_add_u32 s42, s42, {F_FRONT}")
    a.e(f"v_lshlrev_b32 v{vd}, 7, v1")
    a.e(f"buffer_load_dword v{vd+2}, v{vd}, s[56:59], s42 offen {SC}")
    raw(88, wreg, range(NRAW - FE, NRAW))
    a.e("s_setprio 0")
    mstamp(a)
    pt = vd + 2
    a.e("s_mov_b32 s53, 0"); a.e(f"s_waitcnt vmcnt({2 * FE})")
    a.e("R_fp:")
    a.e(f"v_and_b32 v{pt+1}, -3, v{pt}"); a.e(f"v_cmp_eq_u32 vcc, s52, v{pt+1}")
    a.e("s_cmp_eq_u64 vcc, exec"); a.e("s_cbranch_scc1 R_fq")
    a.e(f"s_sleep {FSLEEP}")
    a.e(f"buffer_load_dword v{pt}, v{vd}, s[56:59], s42 offen {SC}"); a.e("s_waitcnt vmcnt(0)")
    a.e("s_add_u32 s53, s53, 1"); a.e("s_cmp_lt_u32 s53, s61"); a.e("s_cbranch_scc1 R_fp")
    a.e("s_mov_b32 s61, 0")
    a.e("R_fq:")
    a.e(f"v_cmp_ne_u32 vcc, s52, v{pt}"); a.e("s_bcnt1_i32_b64 s36, vcc"); a.e(f"v_mov_b32 v{pt}, s36"); a.e(f"v_mov_b32 v{pt+1}, {LW+28}")
    a.e("s_mov_b64 exec, 1"); a.e(f"ds_add_u32 v{pt+1}, v{pt}"); a.e("s_mov_b64 exec, -1")
def w1_dma(a, js, setup=True):
    if setup:
        a.e("s_and_b32 s49, s30, 3"); a.e("s_lshl_b32 s36, s49, 14"); a.e("s_lshl_b32 s48, s29, 7"); a.e("s_add_u32 s48, s48, s36"); a.e("s_lshl_b32 s49, s49, 10")
        a.e("s_xor_b32 s48, s48, 128")
    for j in js:
        a.e(f"s_add_u32 s36, s48, {j << 17}")
        for kk in range(2):
            a.e(f"s_add_u32 m0, s49, {WST + j * 8192 + 4096 * kk}")
            a.e(f"buffer_load_dwordx4 v{WVB[1]}, s[80:83], s36 offen lds")
            if kk == 0: a.e("s_add_u32 s36, s36, 65536")
def w1raw(j, kk):
    return (28, 36, 52, 60, RXB)[W1A[5:].index(j)] + 4 * kk
def w_dump(a, reg, t, js, slots=None):
    a.e("s_and_b32 s36, s30, 3"); a.e("s_lshl_b32 s36, s36, 10"); a.e(f"v_add_u32 v{t}, s36, v2"); a.e(f"v_add_u32 v{t+1}, {64*KB}, v{t}")
    if max(slots or js) > 12: a.e(f"v_add_u32 v{t+2}, {128*KB}, v{t}")
    for j, x in zip(js, slots or js):
        for kk in range(2): a.e(f"ds_write_b128 v{t+((x+3)>>3)}, {vr(reg(j,kk),4)} offset:{((x+3)&7)*8192 + 4096*kk}")

CV = {}
def conv_setup(a):
    v = VA(RXB); lane = 1
    t = v(); t2 = v(); t3 = v(); uo = v(); aa = v(); ba = v(); J = v(); G = v(); fl = v(); ta = v(); dop = v(4, 4); ya = v(4, 1)
    assert v.hi <= RB1
    CV.update(ta=ta, ya=ya, uo=uo, aa=aa, ba=ba, J=J, G=G, fl=fl, dop=dop, t=t)
    a.e("s_lshl_b32 s36, s38, 14"); a.e(f"s_add_u32 s36, s36, {UT}")
    a.e("s_add_u32 s20, s4, s36"); a.e("s_addc_u32 s21, s5, 0"); a.e("s_mov_b32 s22, 16384"); a.e("s_mov_b32 s23, 0x20000")
    a.e("s_lshl_b32 s36, s30, 6"); a.e(f"v_lshrrev_b32 v{t}, 2, v{lane}"); a.e(f"v_and_b32 v{uo}, 48, v2"); a.e(f"v_lshl_add_u32 v{uo}, v{t}, 8, v{uo}"); a.e(f"v_add_u32 v{uo}, s36, v{uo}")
    a.e("s_lshr_b32 s36, s39, 1"); a.e("s_lshl_b32 s36, s36, 2"); a.e("s_load_dword s41, s[76:77], s36")
    a.e(f"v_and_b32 v{J}, 15, v{lane}"); a.e(f"v_lshrrev_b32 v{G}, 4, v{lane}")
    a.e(f"v_and_b32 v{t}, 3, v{J}"); a.e(f"v_mul_u32_u24 v{aa}, {HSTR}, v{t}")
    a.e(f"v_lshl_add_u32 v{aa}, v{G}, 4, v{aa}"); a.e(f"v_lshrrev_b32 v{t}, 2, v{J}"); a.e(f"v_lshl_add_u32 v{aa}, v{t}, 3, v{aa}")
    a.e(f"v_add_u32 v{aa}, s40, v{aa}")
    a.e(f"v_sub_u32 v{t}, 15, v{J}"); a.e(f"v_lshlrev_b32 v{ba}, 5, v{t}"); a.e(f"v_add_u32 v{ba}, s40, v{ba}")
    a.e(f"v_lshl_add_u32 v{ba}, v{G}, 4, v{ba}")
    a.e("s_lshr_b32 s36, s38, 2"); a.e("s_lshl_b32 s36, s36, 12"); a.e(f"s_add_u32 s36, s36, {F_KVT}")
    a.e(f"v_lshlrev_b32 v{fl}, 7, v{lane}"); a.e(f"v_add_u32 v{fl}, s36, v{fl}")
def conv_setup2(a):
    t, J, G, ta, ya = [CV[k] for k in "t J G ta ya".split()]; lane = 1
    a.e(f"s_mul_i32 s36, s30, {CHB+64}")
    a.e(f"v_lshrrev_b32 v{t}, 1, v{J}"); a.e(f"v_mul_u32_u24 v{ya}, 72, v{t}"); a.e(f"v_and_b32 v{t}, 1, v{J}"); a.e(f"v_lshl_add_u32 v{ya}, v{t}, 4, v{ya}")
    a.e(f"v_lshl_add_u32 v{ya}, v{G}, 2, v{ya}"); a.e(f"v_add_u32 v{ya}, s36, v{ya}")
    for c_ in range(1, 4): a.e(f"v_add_u32 v{ya+c_}, {c_*16*72}, v{ya}")
    a.e(f"v_bfe_u32 v{t}, v{lane}, 2, 2"); a.e(f"v_mul_u32_u24 v{ta}, {CHB+64}, v{t}")
    a.e(f"v_mul_u32_u24 v{t}, 72, v{G}"); a.e(f"v_add_u32 v{ta}, v{ta}, v{t}")
    a.e(f"v_and_b32 v{t}, 3, v{lane}"); a.e(f"v_lshl_add_u32 v{ta}, v{t}, 3, v{ta}")
    a.e(f"s_mul_i32 s36, s30, {16*72}"); a.e(f"v_add_u32 v{ta}, s36, v{ta}")
def conv_diag(a):
    t, J, G, dop = CV["t"], CV["J"], CV["G"], CV["dop"]; t2, t3 = t + 1, t + 2
    a.e("s_bitcmp1_b32 s39, 0"); a.e("s_cselect_b32 s36, 0, 16"); a.e("s_lshl_b32 s41, s41, s36"); a.e("s_and_b32 s41, s41, 0xffff0000"); a.e("s_lshr_b32 s36, s41, 16")
    a.e(f"v_lshl_add_u32 v{t}, v{G}, 3, v{J}"); a.e(f"v_sub_u32 v{t}, 15, v{t}"); a.e(f"v_and_b32 v{t2}, 1, v{t}"); a.e(f"v_cmp_eq_u32 vcc, 1, v{t2}")
    a.e(f"v_mov_b32 v{t2}, s36"); a.e(f"v_mov_b32 v{t3}, s41"); a.e(f"v_cndmask_b32 v{t2}, v{t2}, v{t3}, vcc"); a.e(f"v_ashrrev_i32 v{t}, 1, v{t}")
    for i in range(4): a.e(f"v_cmp_eq_u32 vcc, {i}, v{t}"); a.e(f"v_cndmask_b32 v{dop+i}, 0, v{t2}, vcc")

def front_conv(a):
    v = VA(6, skip=True); lane = 1; l16 = 2
    t = v(); pt = v(4, 2)
    uo, aa, ba, J, G, fl, dop = [CV[k] for k in "uo aa ba J G fl dop".split()]
    ya, ta = CV["ya"], CV["ta"]
    acc = v(32, 4)
    fa = v(64, 4); fb = v(64, 4)
    def rdA(p, o):
        return [f"ds_read_b64 {vr(fa+32*p+4*s_+2*h,2)}, v{aa} offset:{64*(o+8*s_) + 32 + 8*h}" for s_ in range(8) for h in range(2)]
    def rdB(p, o):
        return [f"ds_read_b128 {vr(fb+32*p+4*k,4)}, v{ba} offset:{UOFF + 3584 - 512*k + 64*o}" for k in range(8)]
    a.e("s_lshl_b32 s44, s30, 12"); a.e("s_mov_b32 s45, 0x07060302")
    a.e("s_cmp_lg_u32 s30, 0"); a.e("s_cbranch_scc1 CV_w")
    poll_core(a, pt, fl, 0xffffffff, nap=env("NAPK", 5))
    a.e("CV_w:")
    a.e(f"s_add_u32 m0, s40, {UOFF}"); a.e("s_mov_b32 s36, 0")
    a.e("s_waitcnt vmcnt(0)"); a.e("s_barrier")
    mstamp(a)
    for it in range(4):
        a.e(f"buffer_load_dwordx4 v{uo}, s[20:23], s36 offen offset:{1024*it} {SC} lds")
        if it < 3: a.e("s_add_u32 s36, s36, 3072")
    a.e("s_barrier")
    load_q(a)
    for x in rdA(0, 0): a.e(x)
    a.e("s_waitcnt vmcnt(4)")
    mstamp(a)
    for x in rdB(0, 0): a.e(x)
    a.e("s_waitcnt lgkmcnt(0)")
    for c_ in range(8): a.e(f"v_mfma_f32_16x16x32_bf16 {vr(acc+4*c_,4)}, {vr(dop,4)}, {vr(fb+4*c_,4)}, 0")
    def step(p, nxt, tail):
        a.e("s_waitcnt lgkmcnt(0)")
        for i, (c_, s_) in enumerate([(c_, s_) for s_ in range(8) for c_ in range(s_, 8)]):
            a.e(f"v_mfma_f32_16x16x32_bf16 {vr(acc+4*c_,4)}, {vr(fa+32*p+4*s_,4)}, {vr(fb+32*p+4*(c_-s_),4)}, {vr(acc+4*c_,4)}")
            if nxt: a.e(nxt.pop(0))
            elif tail: a.e(tail.pop(0))
        assert not nxt and not tail
    NU = env("NU", 2)
    adv = [f"v_add_u32 v{aa}, 128, v{aa}", f"v_add_u32 v{ba}, 128, v{ba}", "s_add_u32 s43, s43, 1"]
    a.e("s_mov_b32 s43, 0")
    if NU:
        a.e("CV_r:")
        for p in range(2):
            step(p, [], [])
            for x in rdB(1 - p, p + 1) + rdA(1 - p, p + 1): a.e(x)
        for x in adv + [f"s_cmp_lt_u32 s43, {NU}"]: a.e(x)
        a.e("s_cbranch_scc1 CV_r")
    a.e("CV_l:")
    step(0, rdB(1, 1) + rdA(1, 1), [])
    step(1, rdB(0, 2) + rdA(0, 2), adv + ["s_cmp_lt_u32 s43, 4"])
    a.e("s_cbranch_scc1 CV_l")
    mstamp(a)
    a.e("s_bitcmp1_b32 s30, 0"); a.e("s_waitcnt lgkmcnt(0)"); a.e("s_cbranch_scc1 CV_o")
    for odd in range(2):
        for c_ in range(8):
            A = acc + 4 * c_
            for e in range(2):
                if odd: a.e(f"v_cvt_pk_bf16_f32 v{A+e}, v{A+e}, v{A+2+e}")
                else: a.e(f"v_perm_b32 v{A+e}, v{A+2+e}, v{A+e}, s45")
            for e in range(0 if odd else 2): a.e(f"v_or_b32 v{A+e}, 0x10001, v{A+e}")
            a.e(f"ds_write2_b32 v{ya+c_//2}, v{A}, v{A+1} offset0:{144*(c_&1)} offset1:{144*(c_&1)+8}")
        if not odd: a.e("s_branch CV_e"); a.e("CV_o:")
    a.e("CV_e:")
    lbar(a, 2, pt)
    for i in range(8): a.e(f"ds_read_b64_tr_b16 {vr(fa+2*i,2)}, v{ta} offset:{288*(i//2) + 32*(i&1)}")
    for i in range(4):
        a.e(f"s_waitcnt lgkmcnt({6-2*i})")
        a.e(f"buffer_store_dwordx4 {vr(fa+4*i,4)}, v{l16}, s[20:23], s44 offen offset:{1024*i} {SC}")
    assert v.hi <= 250

def r_addr(a):
    t, t2, I, fo, ro, yo, xo = RT, RT + 1, RI, RFO, RRO, RYO, RXO
    a.e(f"v_and_b32 v{I}, 7, v0")
    a.e(f"v_lshrrev_b32 v{t}, 6, v0"); a.e(f"v_lshlrev_b32 v{t}, 4, v{t}"); a.e(f"v_bfe_u32 v{t2}, v0, 3, 3"); a.e(f"v_add_u32 v{t}, v{t}, v{t2}")
    a.e("s_lshr_b32 s78, s29, 1"); a.e("s_lshl_b32 s78, s78, 16"); a.e("s_and_b32 s79, s29, 1"); a.e("s_lshl_b32 s79, s79, 7"); a.e("s_add_u32 s78, s78, s79")
    a.e("s_lshr_b32 s79, s30, 1"); a.e("s_lshl_b32 s79, s79, 13"); a.e("s_add_u32 s78, s78, s79")
    a.e(f"v_lshlrev_b32 v{fo}, 8, v{t}"); a.e(f"v_lshl_add_u32 v{fo}, v{I}, 4, v{fo}"); a.e(f"v_add_u32 v{fo}, s78, v{fo}")
    a.e("s_lshl_b32 s78, s28, 7"); a.e("s_lshl_b32 s79, s29, 3"); a.e("s_add_u32 s78, s78, s79")
    a.e(f"v_add_u32 v{yo}, s78, v{I}"); a.e(f"v_lshlrev_b32 v{ro}, 11, v{yo}")
    rowaddr(a, xo, yo, t2); a.e(f"v_lshl_add_u32 v{xo}, v{t}, 4, v{xo}")
    a.e(f"v_lshrrev_b32 v{t2}, 2, v{t}"); a.e(f"v_lshlrev_b32 v{t2}, 3, v{t2}"); a.e(f"v_and_b32 v{t}, 3, v{t}"); a.e(f"v_add_u32 v{t}, v{t}, v{t2}")
    a.e(f"v_lshl_add_u32 v{ro}, v{t}, 3, v{ro}")
    a.e(f"v_lshlrev_b32 v{yo}, 3, v{yo}"); a.e(f"v_lshl_add_u32 v{yo}, v{t}, 14, v{yo}")
def y_loads(): return [f"s_mov_b32 s78, {(16*j + 4*hh)*16384}\nbuffer_load_dwordx2 {vr(RYY+4*j+2*hh,2)}, v{RYO}, s[80:83], s78 offen {SC}" for j in range(2) for hh in range(2)]
def load_y(a):
    a.srd(80, 4, 4 * MB, off=Y)
    for x in y_loads(): a.e(x)
def r_pre(a):
    r_addr(a)
    load_y(a)

def w3_setup(a):
    w_srd(a, 3, 8)
    a.e("s_add_u32 s89, s29, 1"); a.e("s_and_b32 s89, s89, 15"); a.e("s_cmp_lg_u32 s28, s29"); a.e("s_cselect_b32 s89, s28, s89")
    a.e("s_and_b32 s90, s30, 3"); a.e("s_mul_i32 s36, s29, 448")
    for d, r in ((88, 29), (89, 89)): a.e(f"s_lshl2_add_u32 s{d}, s{r}, s90"); a.e(f"s_mul_i32 s{d}, s{d}, {16*7168}"); a.e(f"s_add_u32 s{d}, s{d}, s36")
    a.e("s_mul_i32 s90, s90, 7168")
def w3_piece(T, k, i0, i1):
    for i in range(i0, i1):
        T.e(f"s_add_u32 m0, s90, {CFG[3]['WB'] + k*CFG[3]['STB'] + 1024*i}"); T.vm(f"buffer_load_dwordx4 v{WVB[3]+i}, s[8:11], s{88+k} offen lds", "w")
def r_stage(a, pre=False):
    v = VA(6)
    t = v(); t2 = v(); I = RI; fo = RFO; pt = v(4, 2)
    xa = RXA; xb = RXB; yy = RYY; yf = RYF; x = v(16, 2); w = v(16, 2); tmp = v()
    S = v(2, 2); pp = v(2, 2); qq = v(2, 2); st = v(16, 4); mean = v(2, 2); rs = mean + 1; var = v(); sw = v(); sr = v(); wad = v(3, 2)
    assert v.hi <= RB0 and wad == WAD, v.hi
    def part(src, n):
        a.e(f"v_pk_add_f32 {vr(pp,2)}, {vr(src,2)}, {vr(src+2,2)}"); a.e(f"v_pk_mul_f32 {vr(qq,2)}, {vr(src,2)}, {vr(src,2)}")
        for i in range(1, 8):
            if i > 1: a.e(f"v_pk_add_f32 {vr(pp,2)}, {vr(pp,2)}, {vr(src+2*i,2)}")
            a.e(f"v_pk_fma_f32 {vr(qq,2)}, {vr(src+2*i,2)}, {vr(src+2*i,2)}, {vr(qq,2)}")
        a.e(f"v_add_f32 v{S}, v{pp}, v{pp+1}"); a.e(f"v_add_f32 v{S+1}, v{qq}, v{qq+1}")
        for k in range(2): a.e(f"v_add_f32_dpp v{S+k}, v{S+k}, v{S+k} row_ror:8 row_mask:0xf bank_mask:0xf")
        for op in ("v_permlane16_swap_b32", "v_permlane32_swap_b32"):
            for k in range(2): a.e(f"v_mov_b32 v{pp+k}, v{S+k}")
            for k in range(2): a.e(f"{op} v{S+k}, v{pp+k}")
            a.e(f"v_pk_add_f32 {vr(S,2)}, {vr(S,2)}, {vr(pp,2)}")
        a.e(f"ds_write_b64 v{sw}, {vr(S,2)} offset:{n*1536}")
    def comb(n):
        for k in range(4): a.e(f"ds_read_b128 {vr(st+4*k,4)}, v{sr} offset:{n*1536+16*k}")
        a.e("s_waitcnt lgkmcnt(0)")
        for k in range(4): a.e(f"v_pk_add_f32 {vr(st+4*k,2)}, {vr(st+4*k,2)}, {vr(st+4*k+2,2)}")
        a.e(f"v_pk_add_f32 {vr(st,2)}, {vr(st,2)}, {vr(st+4,2)}"); a.e(f"v_pk_add_f32 {vr(st+8,2)}, {vr(st+8,2)}, {vr(st+12,2)}")
        a.e(f"v_pk_add_f32 {vr(st,2)}, {vr(st,2)}, {vr(st+8,2)}")
        a.e(f"v_mul_f32 v{mean}, {f32(1/1024)}, v{st}"); a.e(f"v_mul_f32 v{var}, {f32(1/1024)}, v{st+1}")
        a.e(f"v_fma_f32 v{var}, -v{mean}, v{mean}, v{var}"); a.e(f"v_max_f32 v{var}, 0, v{var}")
    def norm():
        ln_finish(a, mean, var, rs)
        a.e(f"v_mul_f32 v{mean}, -v{mean}, v{rs}")
        for i in range(8): a.e(f"v_pk_fma_f32 {vr(w+2*i,2)}, {vr(x+2*i,2)}, {vr(mean,2)}, {vr(mean,2)} op_sel:[0,1,0] op_sel_hi:[1,1,0]")
    a.e(f"v_and_b32 v{I}, 7, v0"); a.e(f"v_lshlrev_b32 v{sr}, 6, v{I}"); a.e(f"v_add_u32 v{sr}, {AUX+2048}, v{sr}")
    a.e(f"s_lshl_b32 s35, s30, 3"); a.e(f"v_add_u32 v{sw}, s35, v{sr}")
    if pre:
        for i in range(8): unpack(a, x + 2 * i, x + 2 * i + 1, xa + i)
        part(x, 0)
        return
    wr_addr(a, wad, t)
    a.e(f"s_cmp_eq_u32 s60, 0"); a.e(f"s_cbranch_scc1 R_l0")
    lsrd(a, 12, oX1P, XSZ, prev=True)
    data_wait(a, [f"buffer_load_dwordx4 {vr(xa+4*j,4)}, v{fo}, s[12:15], 0 offen offset:{2048*j} {SC}" for j in range(2)], list(range(xa, xa + 8)), t,
              lambda: (a.e("s_waitcnt vmcnt(2)"), [unpack(a, yf + 2 * i, yf + 2 * i + 1, yy + i) for i in range(8)]), nap=env("NAP4", 2))
    mstamp(a)
    for i in range(8): unpack(a, x + 2 * i, x + 2 * i + 1, xa + i)
    part(x, 0)
    x3_srd(a, 20)
    a.e("s_waitcnt lgkmcnt(0)"); a.e("s_barrier")
    comb(0)
    norm()
    a.e("s_branch R_s2")
    a.e("R_l0:")
    def shadow():
        a.e("s_cmp_lt_u32 s30, 4"); a.e("s_cbranch_scc1 R_f2")
        w_dump(a, w1raw, pt, W1A[5:])
        a.e("R_f2:")
        a.e(f"v_mov_b32 v{t}, {LW+28}"); a.e(f"ds_read_b32 v{t2}, v{t}")
        comb(0)
        norm()
        a.e(f"v_readfirstlane_b32 s94, v{t2}")
        if STAMP: a.e("s_mov_b32 s95, s94")
        a.e(f"s_cmp_gt_u32 s94, {NVOTE // 2}"); a.e("s_cselect_b32 s94, 1, 0")
        group_off(a, 55, 28)
        a.e("s_add_u32 s62, s4, s55"); a.e("s_addc_u32 s63, s5, 0")
        a.e("s_sub_u32 s36, s28, 1"); a.e("s_max_i32 s36, s36, 0"); group_off(a, 92, 36); a.e("s_sub_u32 s92, s92, s55")
        a.e("s_add_u32 s36, s28, 1"); a.e("s_min_u32 s36, s36, 15"); group_off(a, 93, 36); a.e("s_sub_u32 s93, s93, s55")
        a.e(f"s_add_u32 s55, s55, {oSM}")
        x3_srd(a, 20)
    shadow()
    def w2d():
        a.e("s_cmp_lt_u32 s30, 4"); a.e("s_cbranch_scc1 R_f3")
        a.e("s_waitcnt vmcnt(4)")
        w_dump(a, wreg, pt, range(NRAW), W2S)
        a.e("R_f3:")
    a.srd(80, 4, 4 * MB, off=Y)
    mstamp(a)
    data_wait(a, y_loads(), list(range(yy, yy + 8)), t, w2d, nap=env("NAPY", 4))
    mstamp(a)
    for i in range(8): unpack(a, yf + 2 * i, yf + 2 * i + 1, yy + i)
    a.e("R_s2:")
    for i in range(8):
        a.e(f"v_pk_fma_f32 {vr(x+2*i,2)}, {vr(w+2*i,2)}, {vr(yf+2*i,2)}, {vr(x+2*i,2)}")
        if i % 4 == 3:
            for k in range(i - 3, i + 1): a.e(f"v_cvt_pk_bf16_f32 v{xa+k}, v{x+2*k}, v{x+2*k+1}")
            a.e(f"buffer_store_dwordx4 {vr(xa+i-3,4)}, v{RXO}, s[20:23], 0 offen offset:{128*(i//4)} {SC}")
    part(x, 1)
    a.e("s_waitcnt lgkmcnt(0)"); a.e("s_barrier")
    a.e("s_cmp_ge_u32 s30, 4"); a.e("s_cbranch_scc1 LOADERS")
    a.e("s_cmp_lg_u32 s30, 3"); a.e("s_cbranch_scc1 R_nl")
    comb(1)
    outv = w; m4 = w + 4; v4_ = w + 5
    a.e(f"v_mov_b32 v{m4}, v{mean}"); a.e(f"v_mov_b32 v{v4_}, v{var}")
    ln_finish(a, mean, var, rs)
    a.e(f"v_sub_f32 v{m4}, v{m4}, v{mean}"); a.e(f"v_mul_f32 v{m4}, v{m4}, v{rs}")
    a.e(f"v_mul_f32 v{v4_}, v{v4_}, v{rs}"); a.e(f"v_mul_f32 v{v4_}, v{v4_}, v{rs}")
    ln_finish(a, m4, v4_, None)
    a.e(f"v_cvt_pk_bf16_f32 v{outv}, v{mean}, v{var}"); a.e(f"v_cvt_pk_bf16_f32 v{outv+2}, v{m4}, v{v4_}")
    a.e(f"v_mov_b32 v{outv+1}, s52"); a.e(f"v_mov_b32 v{outv+3}, s52")
    lns_srd(a, 24)
    a.e("s_lshl_b32 s36, s28, 4"); a.e("s_add_u32 s36, s36, s29"); a.e("s_lshl_b32 s36, s36, 7")
    a.e("s_mov_b64 exec, 0xff")
    a.e(f"buffer_store_dwordx4 {vr(outv,4)}, v2, s[24:27], s36 offen {SC}")
    a.e("s_mov_b64 exec, -1")
    a.e("R_nl:")
    a.e(f"v_mov_b32 v{t}, 1"); a.e(f"v_mov_b32 v{t2}, 0")
    a.e("s_cmp_eq_u32 s30, 3"); a.e("s_waitcnt vmcnt(1)"); a.e("s_cbranch_scc1 R_n2")
    a.e("s_waitcnt vmcnt(0)")
    a.e("R_n2:")
    a.e("s_barrier")
    a.e("s_cmp_lg_u32 s30, 0"); a.e("s_cbranch_scc1 R_n3")
    a.e("s_mov_b64 exec, 1"); a.e(f"buffer_atomic_add v{t}, v{t2}, s[56:59], s55 offen {SC}"); a.e("s_mov_b64 exec, -1")
    a.e("R_n3:")
    wr_read(a, wad, W1A)
def rot_init(a, which):
    a.e("s_mov_b32 s44, s29" if which == 3 else "s_mov_b32 s44, 0")
def stage3(b, d):
    b.e("s_cmp_eq_u32 s44, s47"); b.e(f"s_cselect_b32 s{d}, s46, s44")
def stage3_init(a):
    a.e("s_add_u32 s46, s29, 1"); a.e("s_and_b32 s46, s46, 15"); a.e("s_cmp_eq_u32 s28, s29"); a.e("s_cselect_b32 s47, s46, s28")
def rot_next(a, which):
    a.e("s_add_u32 s44, s44, 1")
    if which != 4: a.e("s_and_b32 s44, s44, 15")
def kb4(a, d, lw):
    a.e("s_lshl_b32 s45, s44, 1"); a.e(f"s_add_u32 s45, s45, {lw}"); a.e("s_sub_u32 s45, s45, 32")
    a.e("s_mul_i32 s46, s45, 86"); a.e("s_lshr_b32 s46, s46, 8")
    a.e("s_mul_i32 s47, s46, 3"); a.e("s_sub_u32 s47, s45, s47"); a.e("s_lshl_b32 s47, s47, 2"); a.e("s_lshr_b32 s47, 0x362, s47"); a.e("s_and_b32 s47, s47, 7")
    a.e("s_cmp_ge_u32 s44, 10"); a.e("s_cselect_b32 s45, 9, 2"); a.e("s_cselect_b32 s51, 1, 0"); a.e("s_sub_u32 s45, s44, s45")
    a.e("s_cmp_lt_u32 s44, 3"); a.e("s_cselect_b32 s45, 0, s45"); a.e("s_cselect_b32 s51, s44, s51")
    a.e(f"s_lshl2_add_u32 s51, {lw}, s51")
    a.e("s_cmp_lt_u32 s44, 17"); a.e("s_cselect_b32 s47, s51, s47"); a.e("s_cselect_b32 s46, s45, s46")
    a.e("s_add_u32 s46, s46, s33"); a.e("s_and_b32 s46, s46, 7"); a.e("s_mul_i32 s46, s46, 7"); a.e(f"s_add_u32 s{d}, s46, s47")
assert all((q * 86) >> 8 == q // 3 for q in range(24))
def w_lanes(a, which, t, t2):
    if 1 in which:
        R = WVB[1]
        a.e(f"v_lshrrev_b32 v{t}, 3, v1"); a.e(f"v_lshlrev_b32 v{R}, 11, v{t}")
        a.e(f"v_and_b32 v{t}, 6, v{t}"); a.e(f"v_and_b32 v{t2}, 7, v1"); a.e(f"v_xor_b32 v{t}, v{t}, v{t2}"); a.e(f"v_lshl_add_u32 v{R}, v{t}, 4, v{R}")
        return
    R = WVB[4]
    for p in range(2):
        a.e(f"v_lshrrev_b32 v{t}, 4, v1"); a.e(f"v_lshlrev_b32 v{R+p}, 11, v{t}")
        a.e(f"v_add_u32 v{t}, {4*p}, v{t}"); a.e(f"v_lshlrev_b32 v{t}, 1, v{t}"); a.e(f"v_and_b32 v{t2}, 15, v1"); a.e(f"v_xor_b32 v{t}, v{t}, v{t2}")
        a.e(f"v_lshl_add_u32 v{R+p}, v{t}, 4, v{R+p}")
    R = WVB[3]
    assert all((p * 2341) >> 16 == p // 28 for p in range(448))
    for ii in range(7):
        a.e(f"v_add_u32 v{t2}, {64*ii}, v1"); a.e(f"v_mul_u32_u24 v{t}, 2341, v{t2}"); a.e(f"v_lshrrev_b32 v{t}, 16, v{t}")
        a.e(f"v_mul_u32_u24 v{R+ii}, 28, v{t}"); a.e(f"v_sub_u32 v{t2}, v{t2}, v{R+ii}")
        a.e(f"v_mul_u32_u24 v{R+ii}, 7168, v{t}")
        a.e(f"v_lshrrev_b32 v{t}, 1, v{t}"); a.e(f"v_and_b32 v{t}, 2, v{t}"); a.e(f"v_xor_b32 v{t2}, v{t2}, v{t}")
        a.e(f"v_lshl_add_u32 v{R+ii}, v{t2}, 4, v{R+ii}")
def w_srd(a, which, d=12):
    c = CFG[which]
    a.e(f"s_mov_b64 s[{d}:{d+1}], s[{66+2*which}:{67+2*which}]")
    a.e(f"s_mov_b32 s{d+2}, {c['KBT'] * 32 * c['LDW']}"); a.e(f"s_mov_b32 s{d+3}, 0x20000")
def w_setup(a, which, pre=True):
    c = CFG[which]; STB = c["STB"]; BW = STB // 2
    w_srd(a, which)
    a.e("s_and_b32 s35, s30, 1")
    a.e(f"s_mul_i32 s38, s{29 if which != 4 else 33}, {c['RB']}")
    if which == 1: a.e("s_xor_b32 s38, s38, 128")
    if which != 4: a.e(f"s_mul_i32 s41, s35, {32*c['LDW']}"); a.e("s_add_u32 s38, s38, s41")
    if which == 4: a.e(f"s_mul_i32 s41, s31, {1792*c['LDW']}"); a.e("s_add_u32 s38, s38, s41")
    a.e(f"s_mul_i32 s41, s35, {BW}")
    if c["WB"]: a.e(f"s_add_u32 s41, s41, {c['WB']}")
    a.e("s_mov_b32 s42, 0"); rot_init(a, which)
    if not pre: return
    NP = c["NPRE"]
    a.e("s_mov_b32 s49, s44"); a.e(f"s_and_b32 s43, s28, {3 * env('WROT', 0)}"); a.e(f"s_mul_i32 s43, s43, {NP}"); a.e("s_lshr_b32 s43, s43, 2"); a.e("s_mov_b32 s50, 0")
    L = a.lab("wpre"); a.e(f"{L}:")
    a.e(f"s_mul_i32 s42, s43, {STB}"); a.e("s_add_u32 s44, s49, s43")
    w_issue(a, which, pace=PACES.get(which, PACE))
    a.e("s_add_u32 s43, s43, 1"); a.e(f"s_cmp_eq_u32 s43, {NP}"); a.e("s_cselect_b32 s43, 0, s43")
    a.e("s_add_u32 s50, s50, 1"); a.e(f"s_cmp_lt_u32 s50, {NP}"); a.e(f"s_cbranch_scc1 {L}")
    mstamp(a)
    a.e(f"s_mov_b32 s42, {(NP % c['NW']) * STB}"); a.e(f"s_add_u32 s44, s49, {NP}")
def w_parts(which):
    c = CFG[which]; STB = c["STB"]; n = STB // 2048; LDW = c["LDW"]; b = Rec()
    b.e("s_add_u32 s19, s41, s42")
    arm = ["s_mov_b32 m0, s19", "s_mov_b32 s39, s16"]
    if which == 4:
        b.e("s_and_b32 s40, s30, 1"); kb4(b, 16, "s40")
        b.e(f"s_mul_i32 s16, s16, {32*LDW}"); b.e("s_add_u32 s16, s16, s38")
    elif which == 3:
        stage3(b, 16); b.e(f"s_mul_i32 s16, s16, {64*LDW}"); b.e("s_add_u32 s16, s16, s38")
    else:
        b.e(f"s_mul_i32 s16, s44, {64*LDW}"); b.e("s_add_u32 s16, s16, s38")
    if which > 2:
        rot_next(b, which)
        b.e(f"s_add_u32 s42, s42, {STB}"); b.e(f"s_cmp_eq_u32 s42, {c['NW']*STB}"); b.e("s_cselect_b32 s42, 0, s42")
    fire = []
    for i in range(n):
        g = []
        if i:
            g.append("s_add_u32 m0, m0, 1024")
            if which in (1, 2): g.append(f"s_add_u32 s39, s39, {8*LDW}")
            elif which == 4: g.append(f"s_add_u32 s39, s39, {4*LDW}")
            elif i == 7: g.append(f"s_add_u32 s39, s39, {16*LDW}")
        vo = WVB[which] + (0 if which in (1, 2) else (i & 1) if which == 4 else i % 7)
        fire.append(g + [f"buffer_load_dwordx4 v{vo}, s[12:15], s39 offen {os.environ.get('WF', '').replace('_', ' ')} lds"])
    return b.l, arm, fire
def w_issue(a, which, pace=0):
    prep, arm, fire = w_parts(which)
    for x in prep + arm: a.e(x)
    for i, g in enumerate(fire):
        for x in g: a.e(x)
        if pace and (i % 4 == 3 or i == len(fire) - 1): a.e(f"s_waitcnt vmcnt({pace})")

def w_bases(a, which, dst, swn, ntl, t, t2):
    c = CFG[which]; RB = c["RB"]
    a.e(f"v_lshrrev_b32 v{t}, 2, v1")
    a.e(f"v_mul_u32_u24 v{dst}, {RB}, v{t}"); a.e(f"v_and_b32 v{t2}, 3, v1"); a.e(f"v_lshl_add_u32 v{dst}, v{t2}, 3, v{dst}")
    if c["WB"]: a.e(f"v_add_u32 v{dst}, {c['WB']}, v{dst}")
    if which == 3:
        a.e(f"v_mul_u32_u24 v{dst+2}, {RB}, v{t}"); a.e(f"v_and_b32 v{t2}, 2, v1"); a.e(f"v_lshl_add_u32 v{dst+2}, v{t2}, 2, v{dst+2}")
        a.e(f"v_bfe_u32 v{t}, v1, 4, 1"); a.e(f"v_and_b32 v{t2}, 1, v1"); a.e(f"v_xor_b32 v{t2}, v{t2}, v{t}"); a.e(f"v_lshl_add_u32 v{dst+2}, v{t2}, 5, v{dst+2}")
        a.e(f"s_lshl_b32 s36, s{swn}, 4"); a.e(f"s_add_u32 s36, s36, {c['WB'] + 192}"); a.e(f"v_add_u32 v{dst+2}, s36, v{dst+2}")
        a.e(f"s_lshl_b32 s36, s{swn}, 8"); a.e(f"v_add_u32 v{dst}, s36, v{dst}"); a.e(f"v_lshlrev_b32 v{t}, 5, v{t}")
        a.e(f"v_sub_u32 v{dst+1}, v{dst}, v{t}"); a.e(f"v_add_u32 v{dst}, v{dst}, v{t}")
        return 3, lambda nt, kk, h: (nt & 1, (32 * kk + 16 * h) * RB + 32 * nt) if nt < 6 else (2, (32 * kk + 16 * h) * RB)
    if which == 4: a.e(f"v_and_b32 v{t}, 7, v{t}")
    else: a.e(f"v_bfe_u32 v{t}, v{t}, 1, 2")
    for nt in range(ntl - 1, -1, -1):
        a.e(f"s_mul_i32 s36, s{swn}, {ntl}"); a.e(f"s_add_u32 s36, s36, {nt}")
        a.e(f"v_xor_b32 v{t2}, s36, v{t}"); a.e(f"v_lshl_add_u32 v{dst+nt}, v{t2}, 5, v{dst}")
    return ntl, lambda nt, kk, h: (nt, (32 * kk + 16 * h) * RB)

def a_parts(which):
    c = CFG[which]; b = Rec()
    b.e("s_add_u32 s19, s41, s42")
    arm = ["s_mov_b32 m0, s19", "s_mov_b32 s39, s16"]; fire = []
    if which == 4:
        for lw in range(2):
            kb4(b, 16 + lw, lw); spread(b, 16 + lw, 16 + lw); b.e(f"s_add_u32 s{16+lw}, s{16+lw}, s38")
        arm.append("s_mov_b32 s40, s17")
        for i in range(4):
            for lw in range(2):
                fire.append((["s_add_u32 m0, m0, 1024"] if i or lw else []) + ([f"s_add_u32 s{39+lw}, s{39+lw}, {'s37' if i == 2 else c['KBT']*2048}"] if i else []) +
                            [f"buffer_load_dwordx4 v2, s[12:15], s{39+lw} offen {SC} lds"])
    else:
        stage3(b, 16); b.e("s_cmp_eq_u32 s44, s46"); b.e("s_cselect_b32 s16, s47, s16")
        b.e("s_lshr_b32 s45, s16, 2"); b.e("s_lshl_b32 s45, s45, 14"); b.e("s_and_b32 s16, s16, 3"); b.e("s_lshl_b32 s16, s16, 11")
        b.e("s_add_u32 s16, s16, s45"); b.e("s_add_u32 s16, s16, s38"); step = c['KBT'] * 2048
        for i in range(4):
            fire.append((["s_add_u32 m0, m0, 2048", f"s_add_u32 s39, s39, {step}"] if i else []) + [f"buffer_load_dwordx4 v2, s[12:15], s39 offen {SC} lds"])
            fire.append([f"buffer_load_dwordx4 v2, s[12:15], s39 offen offset:1024 {SC} lds"])
    rot_next(b, which)
    b.e(f"s_add_u32 s42, s42, 16384"); b.e(f"s_cmp_eq_u32 s42, {c['NA']*16384}"); b.e("s_cselect_b32 s42, 0, s42")
    return b.l, arm, fire
def a_issue(a, which):
    prep, arm, fire = a_parts(which)
    for x in prep + arm + sum(fire, []): a.e(x)
SUBS = {}
def call_issue(a, issue, which):
    nm = f"SUB_{issue.__name__}_{which}"; SUBS[nm] = (issue, which)
    a.e(f"s_call_b64 s[76:77], {nm}")
def emit_subs(a):
    for nm, (issue, which) in SUBS.items():
        a.e(f"{nm}:"); issue(a, which); a.e("s_setpc_b64 s[76:77]")
def ld_steps(a, which, N, per, issue, npre, rate=2, plan={}, lo=0, hi=None, last=None, hold=(), start=None, catch=()):
    NS = CFG[which]["NS"]
    prep, arm, fire = (w_parts if issue is w_issue else a_parts)(which); h = max(1, per * HSPLIT // 8)
    plan = {b: (x if isinstance(x, list) else [x]) for b, x in plan.items()}
    q = [s_ for s_ in range(npre) for _ in range(per)]
    def after(tag):
        if issue is w_issue and isinstance(tag, int) and tag < npre and (env('WROT', 0) or which == 3): tag = npre - 1
        return len(q) - 1 - max(i for i, x in enumerate(q) if x == tag)
    issued = npre; steps = []
    for b in range(NS):
        acts = plan.get(b, []); was = {}
        def do(pos):
            for n_, act in enumerate(acts):
                if act[0] != pos: continue
                if act[1] is not None: was[n_] = after(act[1])
                q.extend([act[4]] * act[3])
        do(True)
        k = 0
        if b > 0 and b not in hold: k = max(0, min(rate + (b in catch), min(NS, b - 1 + N) - issued))
        assert k or not any(x[0] == "mid" for x in acts)
        for j in range(k):
            q.extend([issued] * h)
            if j == 0: do("mid")
            q.extend([issued] * (per - h)); issued += 1
        do(False)
        w = after(b); assert w <= 63
        steps.append((k, w, b if acts else None, tuple(sorted(was.items())), issued < NS))
    def em(l):
        for x in l:
            a.e(x)
            if x == "s_barrier" and os.environ.get("JIT"): mstamp(a)
    F1, F2 = sum(fire[:h], []), sum(fire[h:], [])
    lprep = prep
    if len(prep) > 8:
        nm = f"PREP_{issue.__name__}_{which}"; SUBS[nm] = ((lambda a_, w_, l=prep: [a_.e(x) for x in l]), which)
        prep = [f"s_call_b64 s[76:77], {nm}"]
    if lo == 0 or start: em(prep + arm)
    i = lo; HI = NS if hi is None else hi
    while i < HI:
        j = i
        while j < HI and steps[j] == steps[i]: j += 1
        k, w, ab, was, more = steps[i]; n = j - i; was = dict(was)
        def run(pos):
            for n_, act in enumerate(plan.get(ab, [])):
                if act[0] != pos: continue
                if n_ in was: a.e(f"s_waitcnt vmcnt({was[n_]})")
                act[2]()
        tail = [f"s_waitcnt vmcnt({w})", "s_barrier"]
        if n > 2 and k == 1:
            em(F1); a.e("s_mov_b32 s43, 1"); L = a.lab("ld"); a.e(f"{L}:")
            em(lprep + F2 + arm + tail + F1)
            a.e("s_add_u32 s43, s43, 1"); a.e(f"s_cmp_lt_u32 s43, {n}"); a.e(f"s_cbranch_scc1 {L}")
            em(prep + F2 + arm + tail)
        else:
            for r in range(n):
                run(True)
                for jj in range(k):
                    nxt = more or jj < k - 1
                    em(F1)
                    if jj == 0: run("mid")
                    em((prep if nxt else []) + F2 + (arm if nxt else []))
                run(False)
                em(tail)
        i = j
    if hi is not None: return
    if last: last()
    if issue is a_issue and which == 3 and env("T4", 1):
        X = a.lab("tw4"); a.e("s_cmp_lg_u32 s60, 0"); a.e(f"s_cbranch_scc1 {X}"); touch(a, 4, 7 * MB, 90, env("T4A", 0)); a.e(f"{X}:")
    a.e("s_barrier")

SP0 = 22
W1T = env("W1T", {23: (3,), 24: (4, 5), 25: (6, 13), 26: (14, 0, 15), 27: (11, 12)})
W1D = env("W1D", (15, 11, 12)); W1R = tuple(j for l in W1T.values() for j in l if j not in W1D); W1L = tuple(j for j in W1B if j not in W1R)
def w1raw2(j, kk):
    i = 2 * W1R.index(j) + kk
    return 12 + 4 * i if i < 16 else RXB + 4 * (i - 16)
def w1_tail_setup(a):
    w_srd(a, 1, 8)
    a.e("s_and_b32 s3, s30, 3"); a.e("s_lshl_b32 s36, s3, 14"); a.e("s_lshl_b32 s90, s29, 7"); a.e("s_add_u32 s90, s90, s36"); a.e("s_xor_b32 s90, s90, 128"); a.e("s_lshl_b32 s3, s3, 10")
def w1_piece(a, b):
    for j in W1T[b]:
        a.e(f"s_add_u32 s36, s90, {j << 17}")
        for kk in range(2):
            if j in W1R: a.e(f"buffer_load_dwordx4 {vr(w1raw2(j,kk),4)}, v{WVB[1]}, s[8:11], s36 offen")
            else: a.e(f"s_add_u32 m0, s3, {WST + j * 8192 + 4096 * kk}"); a.e(f"buffer_load_dwordx4 v{WVB[1]}, s[8:11], s36 offen lds")
            if kk == 0: a.e("s_add_u32 s36, s36, 65536")
def tail_steps(a, b0, q0, issue, need):
    q = [list(q0), list(q0)]
    def cnt(l, tag): return len(l) - 1 - max(i for i, x in enumerate(l) if x == tag) if tag in l else None
    for b in range(b0, 28):
        n = issue(b)
        for l in q: l += n
        if b in W1T:
            X = a.lab("tl"); Z = a.lab("tz")
            q[0] += ["w"] * (2 * len(W1T[b]))
            a.e("s_cmp_lg_u32 s60, 0"); a.e(f"s_cbranch_scc1 {X}")
            call_issue(a, w1_piece, b)
            if cnt(q[0], need(b)) is not None: a.e(f"s_waitcnt vmcnt({cnt(q[0], need(b))})"); a.e(f"s_branch {Z}")
            a.e(f"{X}:")
        if cnt(q[1], need(b)) is not None: a.e(f"s_waitcnt vmcnt({cnt(q[1], need(b))})")
        if b in W1T: a.e(f"{Z}:")
        for l in q:
            if need(b) in l: del l[:len(l) - cnt(l, need(b))]
        a.e("s_barrier")
        if os.environ.get("JIT"): mstamp(a)
    g4_end(a)
def g4_end(a):
    a.e("s_cmp_eq_u32 s60, 1"); a.e("s_cbranch_scc1 K_fin")
    a.e("s_branch Y_END")
def y_end(a):
    a.e("Y_END:")
    if 28 in W1T: w1_piece(a, 28)
    r_pre(a)
    o = [j for l in W1T.values() for j in l]
    a.e(f"s_waitcnt vmcnt({4 + 2 * (len(o) - 1 - o.index(W1R[-1]))})")
    a.e("s_barrier")
    w_dump(a, w1raw2, 8, W1R); a.e("s_waitcnt lgkmcnt(0)")
def a_loader(a, which):
    c = CFG[which]
    a.e("s_and_b32 s35, s30, 1")
    lsrd(a, 12, c["A"], XSZ if which != 4 else H2SZ)
    a.e(f"s_mul_i32 s38, s35, {4*c['KBT']*2048}")
    if which == 4:
        a.e(f"s_mul_i32 s36, s31, {7*16384 + 2*c['KBT']*2048}"); a.e("s_add_u32 s38, s38, s36")
        a.e(f"s_mul_i32 s37, s31, {4*c['KBT']*2048}"); a.e(f"s_sub_u32 s37, {c['KBT']*2048}, s37")
    a.e("s_lshl_b32 s41, s35, 13"); a.e("s_mov_b32 s42, 0"); rot_init(a, which)
    assert c["NA"] == 3
    if which == 4:
        flag_in(a, 34, ST_G3B); flag_in(a, 35, ST_G3)
        P4 = env("P4", 2)
        a.e(f"s_sub_u32 s48, s34, {(ST_G3B - ST_G3A) * 128}")
        plan = {**({1: [(True, None, lambda: flag_try(a, 32, 48), 0, None), (False, None, lambda: (flag_check(a, 32, 48, 8), mstamp(a)), 0, None)]} if P4 == 1 else
                   {1: (True, None, lambda: flag_try(a, 32, 48), 0, None), 2: (True, None, lambda: (flag_check(a, 32, 48, 8), mstamp(a)), 0, None)} if P4 == 2 else {}),
                7: ("mid", None, lambda: flag_try(a, 32, 34), 0, None), 8: ("mid", None, lambda: flag_check(a, 32, 34, 8), 0, None),
                14: ("mid", None, lambda: flag_try(a, 32, 35), 0, None), 15: ("mid", None, lambda: flag_check(a, 32, 35, 8), 0, None)}
        a.e("s_mov_b32 s44, 3")
        def offs():
            for i in range(12):
                q = 2 * SP0 + i - 32
                a.e(f"s_add_u32 s36, s33, {q // 3}"); a.e("s_and_b32 s36, s36, 7"); a.e("s_mul_i32 s36, s36, 7"); a.e(f"s_add_u32 s36, s36, {(2, 6, 3)[q % 3]}"); spread(a, 78 + i, 36)
        offs(); w1_tail_setup(a)
        ld_steps(a, which, 3, 8, a_issue, 3, plan=plan, hi=SP0 - 1)
        TS = c['KBT'] * 2048
        a.e(f"s_add_u32 s39, s38, s37"); a.e(f"s_add_u32 s39, s39, {TS}")
        def issue(b):
            t = b + 1 - SP0
            if t > 5: return []
            if t == 3: a.e("s_mov_b32 s39, s38")
            a.e(f"s_add_u32 m0, s41, {(b + 1) % 3 * 16384}")
            for j in range(2):
                for kk in range(2): a.e(f"s_add_u32 s{16+kk}, s39, s{78 + 4*(t%3) + 2*j + kk}")
                for i in range(2):
                    for kk in range(2):
                        if i: a.e(f"s_add_u32 s{16+kk}, s{16+kk}, {TS}")
                        a.e(f"buffer_load_dwordx4 v2, s[12:15], s{16+kk} offen {SC} lds")
                        if j + i + kk < 3: a.e("s_add_u32 m0, m0, 1024")
            return [b + 1] * 8
        return tail_steps(a, SP0 - 1, [SP0 - 1] * 8, issue, lambda b: b)
    mask = flag_addr(a, 9, ST_G2)
    def wait2(): g2_signal(a, 0); mstamp(a); poll_core(a, 8, 9, mask, cnt=16, nap=env("NAP2", 5)); mstamp(a)
    rot_next(a, 3); stage3_init(a); a.e("s_mov_b32 s42, 16384")
    plan = side_jobs(a)
    plan[1] = (True, None, wait2, 0, None)
    if env("T4A", 0):
        def early():
            X = a.lab("tw4"); a.e("s_cmp_lg_u32 s60, 0"); a.e(f"s_cbranch_scc1 {X}"); touch(a, 4, 7 * MB, 90, 0, env("T4A", 0)); a.e(f"{X}:")
        st_ = env("T4S", 15); o_ = plan.get(st_, []); plan[st_] = (o_ if isinstance(o_, list) else [o_]) + [(False, st_, early, 0, None)]
    ld_steps(a, which, 3, 8, a_issue, 1, plan=plan, lo=1, start=True)

def g2_signal(a, wait):
    publish(a, ST_G2, 14, wait=wait)
    G2S[0](); a.e("s_waitcnt lgkmcnt(0)")
G2S = []
def side_jobs(a):
    c = CFG[3]
    sv = 18; Q, tt, mean, rs, ad, fa, fr, co_, ct = 50, 51, 52, 53, 10, 11, 12, 13, 6
    cv = 54; N = 3584; HB = c["TN16"] * 32
    assert cv + 64 <= WVB[1]
    def cld(k0=0, k1=4):
        if k0 == 0:
            flag_check(a, 3, 40, 14)
            a.srd(24, 4, 16 * N * 4, off=CSP3)
            a.e("s_cmp_eq_u32 s60, 0"); a.e("s_cselect_b32 s26, s26, 0")
            a.e("s_and_b32 s36, s30, 1"); a.e(f"s_mul_i32 s36, s36, {HB}"); a.e(f"s_mul_i32 s37, s29, {2*HB}"); a.e("s_add_u32 s37, s36, s37")
            a.e(f"v_lshrrev_b32 v{co_}, 5, v1"); a.e(f"v_mul_u32_u24 v{co_}, {N*4}, v{co_}")
            a.e(f"v_and_b32 v{ct}, {16*31}, v2"); a.e(f"v_add_u32 v{co_}, v{co_}, v{ct}")
        for k in range(k0, k1):
            a.e(f"buffer_load_dwordx4 {vr(cv+4*k,4)}, v{co_}, s[24:27], s37 offen {SC}"); a.e(f"s_add_u32 s37, s37, {N*4*2}")
    def piece(lines, l0=False):
        def f():
            X = a.lab("pc")
            if l0: a.e("s_cmp_lg_u32 s60, 0"); a.e(f"s_cbranch_scc1 {X}")
            for x in lines: a.e(x)
            if l0: a.e(f"{X}:")
        return f
    def cadd(k0, k1): return [f"v_pk_add_f32 {vr(cv+2*h,2)}, {vr(cv+2*h,2)}, {vr(cv+4*k+2*h,2)}" for k in range(k0, k1) for h in range(2)]
    def sw(op): return [f"v_mov_b32 v{cv+4+e}, v{cv+e}" for e in range(4)] + [f"{op} v{cv+e}, v{cv+4+e}" for e in range(4)] + cadd(1, 2)
    cout = ["s_and_b32 s36, s30, 1", f"s_mul_i32 s36, s36, {HB}", f"s_add_u32 s36, s36, {CSO[3]}", f"v_add_u32 v{ct}, s36, v2",
            f"s_bfm_b64 exec, {HB//16}, 0", f"ds_write_b128 v{ct}, {vr(cv,4)}", "s_mov_b64 exec, -1", "s_waitcnt lgkmcnt(0)"]
    flag_in(a, 35, ST_G2S); cs_flag(a, 40)
    a.e(f"v_lshlrev_b32 v{ad}, 3, v1")
    lsrd(a, 20, oST2, 24576)
    a.e("s_and_b32 s34, s30, 1"); a.e("s_lshl_b32 s34, s34, 9")
    def sout():
        a.e(f"s_add_u32 s36, s34, {REC}"); a.e(f"v_add_u32 v{tt}, s36, v{ad}")
        for k in range(4): a.e(f"ds_read_b64 {vr(sv+2*k,2)}, v{tt} offset:{1024*k}")
        spread(a, 36, 29); a.e("s_add_u32 s36, s36, s34")
        a.e("s_waitcnt lgkmcnt(0)")
        for k in range(1, 4): a.e(f"v_pk_add_f32 {vr(sv,2)}, {vr(sv,2)}, {vr(sv+2*k,2)}")
        a.e(f"buffer_store_dwordx2 {vr(sv,2)}, v{ad}, s[20:23], s36 offen {SC}")
    def tries():
        flag_try(a, 32, 35); flag_try(a, 3, 40)
    def ld(k0):
        def f():
            if k0 == 0: flag_check(a, 32, 35, 14)
            a.e(f"s_add_u32 s36, s34, {k0*2048}")
            for k in range(k0, k0 + 8):
                if k % 8 == 4: a.e("s_add_u32 s36, s36, 4096")
                a.e(f"buffer_load_dwordx2 {vr(sv+2*k,2)}, v{ad}, s[20:23], s36 offen offset:{(k&3)*1024} {SC}")
        return f
    b = Rec()
    for st_ in (8, 4, 2, 1):
        for k in range(st_): b.e(f"v_pk_add_f32 {vr(sv+2*k,2)}, {vr(sv+2*k,2)}, {vr(sv+2*(k+st_),2)}")
    b.e(f"v_mul_f32 v{mean}, {f32(1/1024)}, v{sv}"); b.e(f"v_mul_f32 v{Q}, {f32(1/1024)}, v{sv+1}")
    b.e(f"v_fma_f32 v{Q}, -v{mean}, v{mean}, v{Q}"); b.e(f"v_max_f32 v{Q}, 0, v{Q}")
    ln_finish(b, mean, Q, rs)
    b.e(f"v_mov_b32 v{sv}, v{mean}"); b.e(f"v_mov_b32 v{sv+1}, v{Q}"); b.e(f"v_mul_f32 v{sv+2}, {f32(GC1)}, v{rs}"); b.e(f"v_mul_f32 v{rs}, v{rs}, v{rs}")
    b.e(f"v_mul_f32 v{rs}, {f32(0.044715)}, v{rs}"); b.e(f"v_mul_f32 v{sv+3}, v{rs}, v{sv+2}")
    b.e(f"s_lshl1_add_u32 s36, s34, {AUX+1024}"); b.e(f"v_add_u32 v{tt}, s36, v2")
    b.e(f"ds_write_b128 v{tt}, {vr(sv,4)}")
    def both(f, g):
        def h(): f(); g()
        return h
    return {2: (False, None, sout, 1, "s"),
            4: (False, "s", lambda: publish(a, ST_G2S, 14, wait=None), 1, "p"),
            8: (False, None, tries, 0, None),
            9: (False, None, ld(0), 8, "d"), 10: (False, None, ld(8), 8, "d"), 11: (False, None, lambda: cld(0, 8), 8, "c"),
            12: (False, "d", piece(b.l[:14]), 0, None), 13: (False, None, piece(b.l[14:28]), 0, None),
            14: (False, "c", both(piece(b.l[28:]), piece(cadd(1, 5), 1)), 0, None), 15: (False, None, both(piece(cadd(5, 8) + sw("v_permlane32_swap_b32") + cout, 1), piece(["s_waitcnt lgkmcnt(0)"])), 0, None)}

def w_loader(a, which):
    c = CFG[which]
    args = (a, which, c["NW"], c["STB"] // 2048, w_issue, c["NPRE"], c["WR"])
    if which == 3:
        w_setup(a, 3, pre=False); rot_next(a, 3); rot_next(a, 3); stage3_init(a); a.e(f"s_mov_b32 s42, {2*c['STB']}")
        ld_steps(*args, plan={1: [({"T": True, "M": "mid", "F": False}[env("PUBW", "T")], 1, lambda: g2_signal(a, None), 1, "p"), (False, None, lambda: cs_sum(a), 0, None)],
                                4: (False, 3, lambda: cs_signal(a), 0, None)}, lo=1, start=True)
        return
    assert c["NW"] == 6 and c["WB"] == WST + 3 * 8192
    w1_tail_setup(a)
    ld_steps(*args, hi=SP0, hold=env("HOLD", ()), catch=env("CATCH", ()))
    prep, arm, fire = w_parts(4)
    def issue(b):
        if b > SP0 + 1: return []
        for x in sum(fire, []) + (["s_call_b64 s[76:77], PREP_w_issue_4"] + arm if b == SP0 else []): a.e(x)
        return [b + 4] * 8
    tail_steps(a, SP0, [s_ for s_ in range(SP0, SP0 + 4) for _ in range(8)], issue, lambda b: min(27, 2 * b - SP0 + 1))
SLOTS = [120 * KB, 136 * KB, 16 * KB, 32 * KB, 104 * KB]; WINB = 104 * KB
W3P = env("W3P", {4: [(1, 0, 2)], 8: [(1, 2, 7), (0, 0, 1)], 12: [(0, 1, 7)]})
LAG = 2
DEP = env("DEP", 3); BURST0 = env("BURST0", 3)
SIG = env("SIG", [(8, 0), (12, 0), (15, 2)]); SIG3 = env("SIG3", 19)
TRY = env("TRY", [12, 16, 20, 24]); CHK = env("CHK", [13, 17, 21, 25])
OST = env("OST", 29); LPRIO = env("LPRIO", 1); RATE = env("RATE", 2); ISS = env("ISS", {})
def win_schedule():
    slot = {}; issue = {b: [] for b in ["F"] + list(range(32))}
    free = {x: -1 for x in SLOTS}
    nxt = 0
    for p in range(-1, 32):
        b = "F" if p < 0 else p
        while nxt < 32:
            if p < 0 and nxt >= BURST0: break
            if nxt >= 16 and p < CHK[(nxt - 16) // 4]: break
            if p in ISS:
                if len(issue[b]) >= ISS[p]: break
            elif p >= 0 and (nxt > p + DEP or len(issue[b]) >= RATE): break
            c_ = [x for x in SLOTS if free[x] <= p]
            if not c_: break
            x = min(c_, key=lambda x: free[x])
            slot[nxt] = x; issue[b].append(nxt); free[x] = nxt + 2
            assert nxt > p
            nxt += 1
    return slot, issue
WSLOT, WISSUE = win_schedule()
GSTW = os.environ.get("GST", "")

def win_compute(T, g, rd, acc, cinit, FR, pre, post, mid):
    s0 = 16 * (g - 1); steps = [(s, k) for s in range(s0, s0 + 17) for k in range(4)]; n = 64; nb = LAG + 1
    for i in range(n + LAG):
        s, k = steps[i]
        if k == 0 and s < 32:
            for f in pre.get(s, []): f()
            T.e("s_barrier")
            if GSTW == "w" or (GSTW == "y" and i == n) or os.environ.get("JIT"): mstamp(T.a, True)
            for f in post.get(s, []): f()
        for f in mid.get((s, k), []): f()
        r = [rd(FR + 16 * (i % nb) + 4 * q, s, k, q) for q in range(4)] if i < n else []
        j = i - LAG
        if j < 0:
            for x in r: T.ds(x, i)
            continue
        s, k = steps[j]; c = (s - s0) // 4; first = s % 4 == 0 and k == 0
        T.wl(j)
        for q in (0, 1, 3, 2):
            C = vr(acc(c) + 4 * (q & 1), 4)
            T.e(f"v_mfma_f32_16x16x32_bf16 {C}, {vr(WR0+8*(4*(s%4)+k)+4*(q>>1),4)}, {vr(FR+16*(j%nb)+4*q,4)}, {'0' if first and q < 2 and not cinit else C}")
            if r: T.ds(r.pop(0), i)
def add(d, k, f): d.setdefault(k, []).append(f)
def h_rot(a, d):
    a.e(f"s_and_b32 s{d}, s30, 3"); a.e(f"s_lshl_b32 s{d}, s{d}, 15")
    a.e("s_and_b32 s53, s30, 2"); a.e("s_lshl_b32 s53, s53, 11")
    a.e(f"s_and_b32 s{d+4}, s30, 1"); a.e(f"s_lshl_b32 s{d+4}, s{d+4}, 13"); a.e(f"s_add_u32 s{d+4}, s{d+4}, s53")
def h_arm(T, s, d):
    T.e(f"s_add_u32 m0, s{d+4}, {WSLOT[s]}"); T.e(f"s_add_u32 s49, s{d}, {(s-16)//4*131072 + (s&2)*8192 + (s&1)*4096}"); T.armed = s
def h_issue(T, s, d, srd):
    if getattr(T, "armed", None) != s: h_arm(T, s, d)
    for q in range(4): T.vm(f"buffer_load_dwordx4 v2, s[{srd}:{srd+3}], s49 offen offset:{1024*q} {SC} lds", s)
def h_flag(a, d):
    a.e(f"s_and_b32 s{d}, s30, 1"); a.e(f"s_lshl_b32 s{d}, s{d}, 8"); a.e(f"s_add_u32 s{d}, s{d}, s55"); a.e(f"s_add_u32 s{d+1}, s52, 16")
def h_try(a, c, d):
    for k in range(2): a.e(f"s_load_dword s{(32, 3)[k]}, s[4:5], s{d} offset:{FH + 512*c + 128*k} {os.environ.get('GLC', '')}")
def h_check(a, c, d, t):
    D = a.lab("hok")
    a.e("s_waitcnt lgkmcnt(0)"); a.e(f"s_cmp_eq_u32 s32, s{d+1}"); a.e(f"s_cselect_b32 s32, s3, 0"); a.e(f"s_cmp_eq_u32 s32, s{d+1}"); a.e(f"s_cbranch_scc1 {D}")
    if STAMP: a.e(f"s_add_u32 s95, s95, {1 << (8 + 4 * c)}")
    for _ in range(env("G2ND", 0)):
        for k in range(2): a.e(f"s_load_dword s{(32, 3)[k]}, s[4:5], s{d} offset:{FH + 512*c + 128*k} glc")
        a.e("s_waitcnt lgkmcnt(0)"); a.e(f"s_cmp_eq_u32 s32, s{d+1}"); a.e(f"s_cselect_b32 s32, s3, 0"); a.e(f"s_cmp_eq_u32 s32, s{d+1}"); a.e(f"s_cbranch_scc1 {D}")
    a.e(f"s_add_u32 s53, s{d}, {FH + 512*c}"); a.e(f"v_lshlrev_b32 v{t+1}, 7, v1"); a.e(f"v_add_u32 v{t+1}, s53, v{t+1}")
    poll_core(a, t, t + 1, 3, cnt=16, nap=env('HSLEEP', 8))
    a.e(f"{D}:")
def out_addr(a, so, J, G, t, flip=False):
    a.e(f"v_and_b32 v{t}, 1, v{G}"); a.e(f"v_lshlrev_b32 v{so}, 16, v{t}"); a.e(f"v_lshrrev_b32 v{t}, 1, v{G}"); a.e(f"v_lshl_add_u32 v{so}, v{t}, 8, v{so}")
    a.e(f"v_lshl_add_u32 v{so}, v{J}, 4, v{so}")
    a.e("s_bfe_u32 s36, s30, 0x10001"); a.e("s_lshl1_add_u32 s36, s29, s36")
    if flip: a.e("s_xor_b32 s36, s36, 2")
    spread(a, 39, 36)
    a.e("s_and_b32 s36, s30, 1"); a.e("s_lshl_b32 s36, s36, 9"); a.e("s_add_u32 s39, s39, s36")

def window_x(a, g3_setup):
    T = Track(a); v = VA(6)
    t = v(); t2 = v(); J = v(); G = v(); ra = v(8, 2); rc = v()
    acc0 = v(16, 4); FR = v(48, 4); cs = v(4, 4); rec = v(16, 4); tp = v(8, 4); lead = v(); one = v(); so = v()
    assert v.hi <= WR0
    a.e(f"v_and_b32 v{J}, 15, v1"); a.e(f"v_lshrrev_b32 v{G}, 4, v1")
    a.e(f"v_xor_b32 v{t}, v{G}, v{J}"); a.e(f"v_lshlrev_b32 v{t2}, 8, v{J}")
    for k in range(4):
        a.e(f"v_xor_b32 v{ra+k}, {4*k}, v{t}"); a.e(f"v_lshl_add_u32 v{ra+k}, v{ra+k}, 4, v{t2}"); a.e(f"v_add_u32 v{ra+4+k}, {WINB}, v{ra+k}")
    a.e(f"v_lshlrev_b32 v{rc}, 4, v{J}"); a.e(f"v_add_u32 v{rc}, {REC}, v{rc}")
    lsrd(a, 16, oH, XSZ); out_addr(a, so, J, G, t, True)
    h_rot(a, 8); h_flag(a, 20)
    a.e(f"v_mov_b32 v{lead}, 0x7f000000"); a.e(f"v_writelane_b32 v{lead}, 0, 0"); a.e(f"v_mov_b32 v{one}, 1")
    a.e("s_and_b32 s40, s30, 1"); a.e("s_lshl1_add_u32 s40, s31, s40"); a.e("s_lshl_b32 s40, s40, 7"); a.e("s_add_u32 s40, s40, s55")
    for i in range(4): a.e(f"v_mov_b32 v{rec+i}, 0x3f803f80")
    def csum(js):
        for j in js:
            for kk in range(2): a.e(f"v_mfma_f32_16x16x32_bf16 {vr(cs,4)}, {vr(wreg(j,kk),4)}, {vr(rec,4)}, {0 if (j, kk) == (W1A[0], 0) else vr(cs,4)}")
    a.e("s_waitcnt lgkmcnt(0)"); csum(W1A)
    poll(a, ST_R, tp, wave=0, nap=env("NAPR", 3))
    assert all(WSLOT[s_] + 16384 <= WST + j * 8192 or WSLOT[s_] >= WST + (j + 1) * 8192 for s_ in WISSUE["F"] for j in W1B)
    wr_read(a, WAD, W1B)
    a.e("s_waitcnt lgkmcnt(12)"); csum(W1B[:3]); a.e("s_waitcnt lgkmcnt(0)"); csum(W1B[3:])
    def rd(d, s, k, q):
        x = WSLOT[s]; hi = x >= WINB
        return f"ds_read_b128 {vr(d,4)}, v{ra+4*hi+k} offset:{x - WINB*hi + 4096*q}"
    acc = lambda c: acc0 + 8 * (c & 1)
    def recs(c):
        for mt in range(2):
            for p in range(2): T.ds(f"ds_read_b128 {vr(rec+8*mt+4*p,4)}, v{rc} offset:{512*c + 256*mt + 2048*p}", "r")
    def epi(c, cut=None):
        T.wl("r")
        X = acc(c); P = [(X + i, tp + i, i & 2, [vr(rec + 2 * (i & 4) + 2 * e, 2) for e in range(4)]) for i in range(0, 8, 2)]
        for x, u, i, R in P: T.e(f"v_pk_fma_f32 {vr(x,2)}, {R[0]}, {vr(cs+i,2)}, {vr(x,2)}")
        for x, u, i, R in P: T.e(f"v_pk_mul_f32 {vr(u,2)}, {vr(x,2)}, {vr(x,2)}")
        for x, u, i, R in P: T.e(f"v_pk_fma_f32 {vr(u,2)}, {vr(u,2)}, {R[2]}, {R[1]}")
        for x, u, i, R in P: T.e(f"v_pk_mul_f32 {vr(u,2)}, {vr(u,2)}, {vr(x,2)}")
        if cut: cut()
        for i in range(8): T.e(f"v_exp_f32 v{tp+i}, v{tp+i}")
        for x, u, i, R in P: T.e(f"v_pk_fma_f32 {vr(u,2)}, {vr(u,2)}, {R[3]}, {R[3]}")
        for i in range(8): T.e(f"v_rcp_f32 v{tp+i}, v{tp+i}")
        for x, u, i, R in P: T.e(f"v_pk_mul_f32 {vr(x,2)}, {vr(x,2)}, {vr(u,2)}")
        for i in range(4): T.e(f"v_add_u32 v{X+2*i}, 0x10000, v{X+2*i}")
        for i in range(4): T.e(f"v_and_b32 v{X+2*i}, 0xfffe0000, v{X+2*i}")
        for i in range(4): T.e(f"v_cvt_pk_bf16_f32 v{tp+i}, v{X+2*i}, v{X+2*i+1}")
        T.e(f"s_add_u32 s36, s39, {c*131072}")
        for e in range(2): T.e(f"v_permlane16_swap_b32 v{tp+e}, v{tp+2+e}")
        T.vm(f"buffer_store_dwordx4 {vr(tp,4)}, v{so}, s[16:19], s36 offen {SC}", f"h{c}")
    def signal(c):
        T.wv(f"h{c}"); T.vm(f"buffer_atomic_add v{one}, v{lead}, s[56:59], s40 offen offset:{FH + 512*c} {SC}")
    pre, post, mid = {}, {}, {}
    add(post, 0, lambda: mstamp(a))
    for c in range(4):
        add(post, 4 * c + 4, lambda c=c: recs(c))
        if c: add(mid, SIG[c - 1], lambda c=c: signal(c - 1))
        if c < 3: add(mid, (4 * c + 4, 3), lambda c=c: epi(c))
    def duties(b):
        if b == SIG3: signal(3)
        for c in range(4):
            if TRY[c] >= 16 and CHK[c] == b: h_check(a, c, 20, cs)
        for c in range(4):
            if TRY[c] == b: h_try(a, c, 20)
        for s in WISSUE[b]: h_issue(T, s, 8, 16)
        for c in range(4):
            if TRY[c] == b + 0.5 and b != 16: h_try(a, c, 20)
    def bar(b):
        if WISSUE[b]: h_arm(T, WISSUE[b][0], 8)
        T.wv(b); T.e("s_barrier")
        if GSTW in ("w", "y") or os.environ.get("JIT"): mstamp(a, True)
    win_compute(T, 1, rd, acc, False, FR, pre, post, mid)
    mstamp(a)
    T.e(f"s_setprio {LPRIO}")
    T.wl("r"); duties(16)
    b0 = 17
    if env("CUT", 0): epi(3, lambda: bar(17)); duties(17); b0 = 18
    else: epi(3, (lambda: h_try(a, 1, 20)) if TRY[1] == 16.5 else None)
    mstamp(a)
    assert SIG3 < 28 and max(CHK) < 28 and not any(WISSUE[b] for b in (29, 30, 31))
    for b in range(b0, 32):
        bar(b); duties(b)
        for x in g3_setup.get(b, []): T.e(x)
    T.e("s_setprio 0")

def window_y(a):
    T = Track(a); v = VA(6)
    t = v(); t2 = v(); J = v(); G = v(); va = v(); vb = v(); xo = v(); so = v(); rb = v(2, 2); ow = v(); xr = v()
    xn = v(32, 4); FR = v(48, 4); S = v(8, 2); tp = v(8, 2)
    assert v.hi <= WVB[1], v.hi
    lo = FR + 20; ln = FR; o = FR + 8
    NB = env("NB", 2); assert W1L == W1B
    w_srd(a, 1, 80)
    a.e("s_cmp_lg_u32 s60, 0"); a.e("s_cbranch_scc1 WY_1")
    wr_read(a, WAD, range(NRAW), W2S); a.e("s_branch WY_2")
    a.e("WY_1:")
    w1_dma(a, W1B[:NB])
    a.e("WY_2:")
    a.e(f"v_and_b32 v{J}, 15, v1"); a.e(f"v_lshrrev_b32 v{G}, 4, v1")
    a.e("s_and_b32 s34, s30, 1"); a.e("s_and_b32 s37, s30, 3")
    a.e("s_lshr_b32 s38, s29, 3"); a.e("s_add_u32 s38, s38, 1"); a.e("s_sub_u32 s39, 0, s38"); a.e("s_bitcmp1_b32 s29, 2"); a.e("s_cselect_b32 s38, s38, s39")
    a.e("s_lshl_b32 s35, s28, 7")
    a.e("s_cmp_lt_u32 s37, 2"); a.e("s_cselect_b32 s36, s38, 0"); a.e("s_add_u32 s36, s36, s35"); a.e("s_lshl_b32 s45, s34, 6"); a.e("s_add_u32 s36, s36, s45")
    a.e(f"v_add_u32 v{lo}, s36, v1"); a.e("s_movk_i32 s45, 2048"); a.e(f"v_cmp_gt_u32 s[46:47], s45, v{lo}"); a.e(f"v_lshlrev_b32 v{lo}, 4, v{lo}")
    lns_srd(a, 20)
    a.e("s_lshl_b32 s36, s37, 2"); a.e(f"v_add_u32 v{t}, s36, v{G}"); a.e(f"v_xor_b32 v{va}, v{t}, v{J}")
    a.e("s_add_u32 s36, s35, s38"); a.e("s_add_u32 s36, s36, 16"); a.e(f"v_add_u32 v{t}, s36, v{t}")
    rowaddr(a, vb, t, t2); a.e(f"v_lshl_add_u32 v{vb}, v{va}, 4, v{vb}"); a.e(f"v_subrev_u32 v{va}, 65536, v{vb}")
    a.e("s_lshl_b32 s44, s37, 10")
    x3_srd(a, 12)
    a.e("s_cmp_lg_u32 s60, 0"); a.e(f"s_waitcnt vmcnt({2 * NB})"); a.e("s_cbranch_scc1 WY_6")
    a.e("s_waitcnt vmcnt(0) lgkmcnt(0)"); a.e("s_barrier")
    w1_dma(a, W1B[:NB]); a.e("s_branch WY_7")
    a.e("WY_6:")
    a.e("s_barrier")
    a.e("WY_7:")
    w1_dma(a, W1B[NB:], False)
    mstamp(a)
    ldl = f"buffer_load_dwordx4 {vr(ln,4)}, v{lo}, s[20:23], 0 offen {SC}"
    a.e(f"v_lshrrev_b32 v{t}, 3, v1"); a.e(f"v_and_b32 v{xr}, 7, v1"); a.e(f"v_xor_b32 v{xr}, v{xr}, v{t}")
    a.e("s_lshl_b32 s36, s37, 3"); a.e("s_add_u32 s36, s36, s35"); a.e(f"v_add_u32 v{t}, s36, v{t}"); rowaddr(a, xo, t, t2)
    a.e("s_lshl_b32 s36, s29, 7"); a.e(f"v_lshl_add_u32 v{xo}, v{xr}, 4, v{xo}"); a.e(f"v_add_u32 v{xo}, s36, v{xo}")
    a.e(f"v_lshrrev_b32 v{t}, 1, v{G}"); a.e("s_lshl_b32 s36, s37, 1"); a.e(f"v_add_u32 v{t}, s36, v{t}"); a.e(f"v_and_b32 v{t2}, 7, v{J}"); a.e(f"v_xor_b32 v{t}, v{t}, v{t2}")
    a.e(f"v_lshlrev_b32 v{xr}, 7, v{J}"); a.e(f"v_lshl_add_u32 v{xr}, v{t}, 4, v{xr}"); a.e(f"v_and_b32 v{t}, 1, v{G}"); a.e(f"v_lshl_add_u32 v{xr}, v{t}, 3, v{xr}")
    out_addr(a, so, J, G, t)
    a.e(f"v_mov_b32 v{rb}, v2"); a.e(f"v_add_u32 v{rb+1}, {WINB}, v2")
    a.e(f"v_lshrrev_b32 v{t}, 5, v{so}"); a.e(f"v_and_b32 v{t}, 2048, v{t}"); a.e(f"v_and_b32 v{ow}, 511, v{so}"); a.e(f"v_add_u32 v{ow}, v{ow}, v{t}")
    a.e("s_lshl_b32 s36, s37, 9"); a.e(f"v_add_u32 v{ow}, s36, v{ow}")
    lsrd(a, 16, oH, XSZ); lsrd(a, 24, oX1P, XSZ)
    h_rot(a, 78); h_flag(a, 84); w3_setup(a)
    a0 = a; a = Rec(); a.lab = a0.lab
    L = a.lab("lns"); D = a.lab("lnk")
    a.e("s_mov_b32 s53, 0")
    a.e(f"{L}:")
    a.e(f"v_cmp_eq_u32 vcc, s52, v{ln+1}"); a.e(f"v_cmp_eq_u32 s[50:51], s52, v{ln+3}"); a.e("s_and_b64 vcc, vcc, s[50:51]"); a.e("s_orn2_b64 vcc, vcc, s[46:47]")
    a.e("s_cmp_eq_u64 vcc, -1"); a.e(f"s_cbranch_scc1 {D}")
    a.e(ldl); a.e("s_waitcnt vmcnt(0)")
    a.e("s_add_u32 s53, s53, 1"); a.e("s_cmp_lt_u32 s53, s61"); a.e(f"s_cbranch_scc1 {L}")
    a.e("s_mov_b32 s61, 0")
    a.e(f"{D}:")
    unpack(a, ln + 4, ln + 5, ln); unpack(a, ln + 6, ln + 7, ln + 2)
    for r in (ln + 5, ln + 7): a.e(f"v_cndmask_b32 v{r}, 1.0, v{r}, s[46:47]")
    a.e("s_lshl_b32 s36, s34, 10"); a.e(f"s_add_u32 s36, s36, {REC}"); a.e(f"v_add_u32 v{t}, s36, v2")
    X = a.lab("lnx"); D = a.lab("lnd")
    a.e("s_cmp_ge_u32 s37, 2"); a.e(f"s_cbranch_scc1 {X}")
    a.e(f"v_mul_f32 v{o+6}, v{ln+5}, v{ln+7}"); a.e(f"v_fma_f32 v{o}, -v{ln+6}, v{ln+5}, -v{ln+4}"); a.e(f"v_rcp_f32 v{t2}, v{o+6}")
    a.e(f"v_mov_b32 v{o+7}, v{o+6}"); a.e(f"v_mov_b32 v{o+1}, v{o}")
    a.e(f"v_mul_f32 v{o+2}, {f32(GC1)}, v{t2}"); a.e(f"v_mul_f32 v{t2}, v{t2}, v{t2}"); a.e(f"v_mov_b32 v{o+3}, v{o+2}")
    a.e(f"v_mul_f32 v{t2}, {f32(0.044715)}, v{t2}"); a.e(f"v_mul_f32 v{o+4}, v{t2}, v{o+2}"); a.e(f"v_mov_b32 v{o+5}, v{o+4}")
    for p in range(2): a.e(f"ds_write_b128 v{t}, {vr(o+4*p,4)} offset:{2048*p}")
    a.e(f"s_branch {D}")
    a.e(f"{X}:")
    a.e(f"v_rcp_f32 v{o}, v{ln+5}"); a.e(f"v_mul_f32 v{o+2}, -v{ln+4}, v{o}"); a.e(f"v_mov_b32 v{o+1}, v{o}"); a.e(f"v_mov_b32 v{o+3}, v{o+2}")
    a.e(f"ds_write_b128 v{t}, {vr(o,4)} offset:{LNSL-REC}")
    a.e(f"{D}:")
    a.e(f"v_lshlrev_b32 v{t2}, 4, v{J}"); a.e(f"v_add_u32 v{t2}, {LNSL}, v{t2}")
    lns = a.l; a = a0
    def issue(s):
        if s >= 16: return h_issue(T, s, 78, 16)
        c, i = s // 4, s % 4
        if getattr(T, "armed", None) != s: arm(s)
        for mt in range(2):
            for kh in range(2):
                if mt or kh: T.e(f"s_add_u32 m0, s44, {WSLOT[s] + kh*8192 + mt*4096 - kh*1024}")
                T.vm(f"buffer_load_dwordx4 v{(va, vb)[mt]}, s[12:15], s49 offen offset:{1024*kh} {SC} lds", s)
                for x in T.fill[:5]: T.e(x)
                T.fill = T.fill[5:]
        if s == 3: T.e(f"v_mov_b32 v{va}, v{vb}"); T.e(f"v_add_u32 v{vb}, 65536, v{vb}")
    def arm(s):
        if s >= 16: return h_arm(T, s, 78)
        T.e(f"s_add_u32 m0, s44, {WSLOT[s]}"); T.e(f"s_mov_b32 s49, {max(0, s//4*2-1)*65536 + 256*(s%4)}"); T.armed = s
    def resld():
        for c in range(4):
            T.e(f"s_add_u32 m0, s44, {4096*c}"); T.e(f"s_mov_b32 s36, {c*131072}")
            T.vm(f"buffer_load_dwordx4 v{xo}, s[12:15], s36 offen {SC} lds", "x")
    def res1(c):
        for mt in range(2):
            a.e(f"ds_read_b64 {vr(xn+8*c+4*mt+2,2)}, v{xr} offset:{4096*c + 2048*mt}"); a.e(f"ds_read_b128 {vr(o+4*mt,4)}, v{t2} offset:{512*c + 256*mt}")
    def res2(c):
        b = Rec(); b.e("s_waitcnt lgkmcnt(0)")
        for mt in range(2):
            X = xn + 8 * c + 4 * mt
            for e in range(2): unpack(b, X + 2 * e, X + 2 * e + 1, X + 2 + e)
            for e in range(2): b.e(f"v_pk_fma_f32 {vr(X+2*e,2)}, {vr(X+2*e,2)}, {vr(o+4*mt,2)}, {vr(o+4*mt+2,2)}")
        T.fill = b.l
    RESAT = env("RESAT", 4); RESUSE = env("RESUSE", 7); T.fill = []
    a.e("s_waitcnt vmcnt(0) lgkmcnt(0)")
    a.e(f"s_setprio {LPRIO}")
    mstamp(a)
    arm(0)
    a.e("s_barrier")
    mstamp(a)
    T.vm(ldl, "l")
    LAT = env("LAT", 2)
    for s in WISSUE["F"][:LAT]: issue(s)
    T.wv("l")
    for x in lns: a.e(x)
    for s in WISSUE["F"][LAT:]: issue(s)
    for b in range(16):
        if b == 4: a.e("s_waitcnt lgkmcnt(0)")
        if WISSUE[b]: arm(WISSUE[b][0])
        if b == RESUSE: T.wv("x")
        T.wv(b); T.e("s_barrier")
        if GSTW in ("w", "y") or os.environ.get("JIT"): mstamp(a, True)
        for c in range(4):
            if TRY[c] < 16 and CHK[c] == b: h_check(a, c, 84, tp)
            assert TRY[c] >= 16 or (CHK[c] < 16 and TRY[c] >= RESUSE + 5)
        if b == CHK[0]: mstamp(a)
        for c in range(4):
            if TRY[c] == b: h_try(a, c, 84)
        if 1 <= b - RESUSE < 5: res2(b - RESUSE - 1)
        for s in WISSUE[b]: issue(s)
        assert not T.fill
        if 0 <= b - RESUSE < 4: res1(b - RESUSE)
        if b == RESAT: resld()
        for x in W3P.get(b, []): w3_piece(T, *x)
    a.e("s_setprio 0")
    def rd(d, s, k, q):
        x = WSLOT[s]; hi = x >= WINB
        return f"ds_read_b128 {vr(d,4)}, v{rb+hi} offset:{x - WINB*hi + 4096*q + 1024*k}"
    acc = lambda c: xn + 8 * c
    def epi(c):
        X = acc(c)
        for i in range(4): T.e(f"v_add_u32 v{X+2*i}, 0x10000, v{X+2*i}")
        for i in range(4): T.e(f"v_and_b32 v{X+2*i}, 0xfffe0000, v{X+2*i}")
        for i in range(4): T.e(f"v_cvt_pk_bf16_f32 v{X+i}, v{X+2*i}, v{X+2*i+1}")
        T.e(f"s_add_u32 s36, s39, {c*131072}")
        for e in range(2): T.e(f"v_permlane16_swap_b32 v{X+e}, v{X+2+e}")
    def ost(c):
        T.e(f"s_add_u32 s36, s39, {c*131072}"); T.vm(f"buffer_store_dwordx4 {vr(acc(c),4)}, v{so}, s[24:27], s36 offen {SC}", "o")
    def own(c): T.ds(f"ds_write_b128 v{ow}, {vr(acc(c),4)} offset:{4096*c}", "ow")
    def stats(c):
        X = tp; pp, qq = acc(c) + 4, acc(c) + 6
        for i in range(4): unpack(T, X + 2 * i, X + 2 * i + 1, acc(c) + i)
        T.e(f"v_pk_add_f32 {vr(pp,2)}, {vr(X,2)}, {vr(X+2,2)}"); T.e(f"v_pk_mul_f32 {vr(qq,2)}, {vr(X,2)}, {vr(X,2)}")
        for i in range(1, 4):
            if i > 1: T.e(f"v_pk_add_f32 {vr(pp,2)}, {vr(pp,2)}, {vr(X+2*i,2)}")
            T.e(f"v_pk_fma_f32 {vr(qq,2)}, {vr(X+2*i,2)}, {vr(X+2*i,2)}, {vr(qq,2)}")
        T.e(f"v_add_f32 v{S+2*c}, v{pp}, v{pp+1}"); T.e(f"v_add_f32 v{S+2*c+1}, v{qq}, v{qq+1}")
    pre, post, mid = {}, {}, {}
    add(post, 16, lambda: mstamp(a))
    for s in range(16, 32): add(pre, s, lambda s=s: T.wv(s))
    SLATE = env("SLATE", 1)
    for c in range(3):
        add(mid, (20 + 4 * c, 3), lambda c=c: (epi(c), SLATE or stats(c)))
        add(mid, (OST, 1 + c), lambda c=c: ost(c))
    for k_, l_ in W3P.items():
        if isinstance(k_, tuple): add(mid, k_, lambda l_=l_: [w3_piece(T, *x) for x in l_])
    add(mid, (32, 0), lambda: [own(c) for c in range(3)])
    win_compute(T, 2, rd, acc, True, FR, pre, post, mid)
    mstamp(a)
    T.e(f"s_setprio {env('LPRIO3', 0)}")
    epi(3); ost(3); own(3); T.wl("ow"); T.wv("w")
    T.e("s_barrier")
    mstamp(a)
    def rest(a_, which):
        T.a = a_
        for c in range(0 if SLATE else 3, 4): stats(c)
        T.e("s_and_b32 s36, s30, 3"); T.e("s_lshl_b32 s36, s36, 10"); T.e(f"s_add_u32 s36, s36, {REC}"); T.e(f"v_lshlrev_b32 v{t}, 3, v1"); T.e(f"v_add_u32 v{t}, s36, v{t}")
        for k in range(2): T.e(f"v_permlane32_swap_b32 v{S+k}, v{S+2+k}"); T.e(f"v_permlane32_swap_b32 v{S+4+k}, v{S+6+k}")
        T.e(f"v_pk_add_f32 {vr(S,2)}, {vr(S,2)}, {vr(S+2,2)}"); T.e(f"v_pk_add_f32 {vr(S+4,2)}, {vr(S+4,2)}, {vr(S+6,2)}")
        for k in range(2): T.e(f"ds_write_b64 v{t}, {vr(S+4*k,2)} offset:{512*k}")
    assert xn >= 18 and t == 6
    G2S.append(lambda: call_issue(a, rest, 2))

C2R = 230; SO3 = 254; SEL = 224; RX = [180, 200, 208, 216]
def g_compute(a, which):
    c = CFG[which]
    WM, WN, MT, NT, KBT, NS, NA, NW, TN16, STB, WB = [c[k] for k in "WM WN MT NT KBT NS NA NW TN16 STB WB".split()]
    v = VA(6, skip=which == 4); nm = f"G{which}"
    lane = 1; l16 = 2
    t = v(); t2 = v(); pt = v(4, 2)
    NTILE = 29 if which != 4 else 33
    a0 = v(); w0 = v(4, 1); aa = v(); wa = v(4, 1); J = v(); G = v(); NF = MT + NT
    if which == 3: acc = v(MT * NT * 4, 4); fX = v(NF * 4, 4); fY = v(NF * 4, 4); tmp = 255
    else: fX = v(NF * 4, 4); xf = v(); acc = v(MT * NT * 4, 4); fY = v(NF * 4, 4)
    assert v.hi <= SEL
    def A_(mt, nt): return acc + 4 * (mt * NT + nt)
    one, lead, oa, xo, so = pt, pt + 1, pt + 2, 255, SO3
    def signal(stage, wait):
        a.e(f"s_waitcnt vmcnt({wait})"); a.e(f"buffer_atomic_add v{one}, v{lead}, s[56:59], s49 offen offset:{(stage - ST_G3A) * 128} {SC}")
    s = Rec()
    if which == 3:
        s.e("s_lshr_b32 s34, s30, 1"); s.e("s_and_b32 s35, s30, 1")
        s.e(f"v_and_b32 v{J}, 15, v{lane}"); s.e(f"v_lshrrev_b32 v{G}, 4, v{lane}")
        s.e(f"s_mul_i32 s37, s34, {MT}")
        s.e(f"s_mul_i32 s36, s34, {MT*2048}"); s.e(f"v_add_u32 v{a0}, s36, v{l16}")
    nwr, wpos = w_bases(s, which, w0, 35, NT, wa, wa + 1)
    s.e("s_mov_b32 s42, 0"); s.e("s_mov_b32 s43, 0"); s.e("s_mov_b32 s48, 0")
    s.e(f"v_mov_b32 v{aa}, v{a0}")
    for i in range(nwr): s.e(f"v_mov_b32 v{wa+i}, v{w0+i}")
    if which == 3:
        b = Rec()
        b.e(f"s_load_dwordx2 s[6:7], s[0:1], {D_OUT}")
        lsrd(b, 16, oH2, H2SZ)
        b.e(f"s_mul_i32 s39, s37, {224*1024}"); b.e("s_mul_i32 s40, s29, 7"); b.e("s_lshl2_add_u32 s41, s35, s40")
        for P in range(4):
            b.e(f"s_add_u32 s36, s{41 if P < 3 else 40}, {P}"); spread(b, 44 + P, 36); b.e(f"s_add_u32 s{44+P}, s{44+P}, s39")
        b.e("s_lshl_b32 s36, s35, 9"); b.e("s_add_u32 s47, s47, s36")
        b.e("s_lshl1_add_u32 s49, s31, s34"); flag_off(b, 49, ST_G3A, 49)
        x3_srd(b, 84); lsrd(b, 88, oX1P, XSZ); lsrd(b, 24, oH, XSZ)
        b.e("s_lshl1_add_u32 s39, s33, s35"); b.e("s_lshl_b32 s36, s39, 1"); spread(b, 40, 36); b.e("s_lshl1_add_u32 s38, s31, s37"); b.e("s_lshl_b32 s36, s38, 16")
        b.e("s_add_u32 s40, s40, s36"); b.e("s_add_u32 s12, s40, 65536"); b.e("s_xor_b32 s41, s40, 0x20000"); b.e("s_lshl3_add_u32 s38, s28, s38"); b.e("s_lshl_b32 s39, s39, 7")
        b.e("s_lshl_b32 s13, s38, 16"); b.e("s_add_u32 s13, s13, s39"); b.e("s_add_u32 s14, s13, 65536")
        b.e("s_lshl_b32 s38, s38, 15"); b.e("s_add_u32 s38, s38, s39"); b.e(f"s_add_u32 s39, s38, {16*2048}"); b.e("s_mov_b32 s15, 0xffff0000")
        b.e("s_waitcnt lgkmcnt(0)"); b.srd(20, 6, 4 * MB)
        d = Rec()
        d.e(f"v_lshrrev_b32 v{so}, 1, v{G}"); d.e(f"v_lshlrev_b32 v{so}, 8, v{so}"); d.e(f"v_lshl_add_u32 v{so}, v{J}, 4, v{so}")
        d.e(f"v_and_b32 v{t}, 1, v{G}"); d.e(f"v_lshl_add_u32 v{so}, v{t}, 3, v{so}")
        d.e(f"v_lshrrev_b32 v{t}, 2, v{J}"); d.e(f"v_cmp_eq_u32 vcc, v{t}, v{G}"); d.e(f"v_and_b32 v{t}, 1, v{J}"); d.e(f"v_lshlrev_b32 v{t}, 4, v{t}")
        d.e(f"v_mov_b32 v{SEL}, 0x3f80"); d.e(f"v_lshlrev_b32 v{t}, v{t}, v{SEL}"); d.e(f"v_cndmask_b32 v{t}, 0, v{t}, vcc")
        d.e(f"v_and_b32 v{SEL}, 2, v{J}"); d.e(f"v_cmp_eq_u32 vcc, 0, v{SEL}")
        for i in (0, 1, 4, 5): d.e(f"v_mov_b32 v{SEL+i}, 0")
        d.e(f"v_cndmask_b32 v{SEL+2}, 0, v{t}, vcc"); d.e(f"v_cndmask_b32 v{SEL+3}, v{t}, v{SEL}, vcc")
        rowaddr(d, xo, J, t); d.e(f"v_lshl_add_u32 v{xo}, v{G}, 4, v{xo}")
        d.e(f"v_mov_b32 v{one}, 1"); d.e(f"v_mov_b32 v{lead}, 0x7f000000"); d.e(f"v_writelane_b32 v{lead}, 0, 0")
        e_ = Rec()
        e_.e(f"v_and_b32 v{oa+1}, 1, v{G}"); e_.e(f"v_lshlrev_b32 v{oa}, 11, v{J}"); e_.e(f"v_lshl_add_u32 v{oa}, v{oa+1}, 5, v{oa}")
        e_.e(f"v_lshrrev_b32 v{oa+1}, 1, v{G}"); e_.e(f"v_lshl_add_u32 v{oa}, v{oa+1}, 4, v{oa}")
        e_.e(f"v_cmp_gt_u32 s[50:51], 8, v{J}")
        e_.e(f"v_lshrrev_b32 v{oa+1}, 3, v{J}"); e_.e(f"v_mul_u32_u24 v{oa+1}, {8*2048 - 64}, v{oa+1}"); e_.e(f"v_sub_u32 v{oa}, v{oa}, v{oa+1}")
        e_.e(f"v_add_u32 v{oa+1}, {8*2048}, v{oa}")
        e_.e(f"s_mul_i32 s36, s35, {NT*64}"); e_.e(f"s_add_u32 s36, s36, {CSO[which]}"); e_.e(f"v_lshlrev_b32 v{t}, 4, v{G}"); e_.e(f"v_add_u32 v{t}, s36, v{t}")
        e_.e(f"s_lshl_b32 s36, s34, 10"); e_.e(f"s_add_u32 s36, s36, {AUX+1024}"); e_.e(f"v_lshlrev_b32 v{t2}, 4, v{J}"); e_.e(f"v_add_u32 v{t2}, s36, v{t2}")
        e_.e("s_lshl1_add_u32 s36, s37, s35"); e_.e("s_lshl2_add_u32 s36, s31, s36"); e_.e("s_lshl_b32 s36, s36, 10")
        e_.e(f"v_add_u32 v{J}, s36, v{l16}"); e_.e(f"v_xor_b32 v{G}, 4096, v{J}")
        window_x(a, {29: s.l}); idle = b.l + d.l + e_.l
    else:
        for x in s.l + [f"v_mov_b32 v{xf}, 0x10000"]: a.e(x)
    def reads(F, kk):
        o = []
        for mt in range(MT): o.append(f"ds_read_b128 {vr(F+4*mt,4)}, v{aa} offset:{mt*2048+kk*1024}")
        for nt in range(NT):
            for h in range(2):
                r, imm = wpos(nt, kk, h)
                o.append(f"ds_read_b64_tr_b16 {vr(F+4*(MT+nt)+2*h,2)}, v{wa+r} offset:{imm}")
        return o
    def mix(rd, ex):
        rd = list(rd)
        if len(ex) > 4: return rd + list(ex)
        for i, x in enumerate(ex): rd.insert(min(len(rd), (i + 1) * len(rd) // (len(ex) + 1)), x)
        return rd
    def mfmas(F, rd, tail=(), zero=False):
        n = MT * NT; k = 0; tot = len(rd); span = max(1, n * 3 // 4); done = 0; tail = list(tail); per = -(-len(tail) // max(1, n - span))
        for nt, mt in [(nt, mt if nt % 2 == 0 else MT - 1 - mt) for nt in range(NT) for mt in range(MT)]:
            cc = acc + 4 * (mt * NT + nt)
            a.e(f"v_mfma_f32_16x16x32_bf16 {vr(cc,4)}, {vr(F+4*(MT+nt),4)}, {vr(F+4*mt,4)}, {0 if zero and (which == 3 or mt >= 2) else vr(cc,4)}")
            k += 1
            while rd and done < (tot * k + span - 1) // span: a.e(rd.pop(0)); done += 1
            if k >= span and k < n:
                for _ in range(min(per, len(tail))): a.e(tail.pop(0))
        assert not rd and not tail
    def stage(ex=(), ey=(), lim=NS-1, late=False, zero=False):
        if str(which) in os.environ.get("GST", "") or os.environ.get("JIT"): mstamp(a, True)
        a.e("s_waitcnt lgkmcnt(0)")
        book = ["s_add_u32 s42, s42, 16384", f"s_cmp_eq_u32 s42, {NA*16384}", "s_cselect_b32 s42, 0, s42",
                f"s_add_u32 s48, s48, {STB}", f"s_cmp_eq_u32 s48, {NW*STB}", "s_cselect_b32 s48, 0, s48", f"v_add_u32 v{aa}, s42, v{a0}"]
        book += [f"v_add_u32 v{wa+i}, s48, v{w0+i}" for i in range(nwr)]
        mfmas(fX, mix(reads(fY, 1), ex), book, zero)
        if late:
            a.e("s_waitcnt lgkmcnt(0)"); mfmas(fY, [], ["s_add_u32 s43, s43, 1"])
            for x in idle: a.e(x)
            a.e("s_barrier")
            for x in reads(fX, 0): a.e(x)
            return
        a.e("s_waitcnt lgkmcnt(0)"); a.e("s_barrier")
        mfmas(fY, mix(reads(fX, 0), ey), ["s_add_u32 s43, s43, 1", f"s_cmp_lt_u32 s43, {lim}"])
    def addp(k, R, zero=False):
        for e in range(2): a.e(f"v_mfma_f32_16x16x32_bf16 {vr(A_(k>>1, 2*(k&1)+e),4)}, {vr(SEL+2-2*e,4)}, {vr(R,4)}, {0 if zero else vr(A_(k>>1, 2*(k&1)+e),4)}")
    a.e("s_waitcnt lgkmcnt(0)"); a.e("s_barrier")
    mstamp(a)
    for x in reads(fX, 0): a.e(x)
    if which == 4:
        for h in range(2):
            for k in range(4): addp(k, RX[k] + 4 * h, h == 0)
    if which == 4:
        def st2(j): return [f"s_add_u32 s36, s46, {j*224*1024}\nbuffer_store_dwordx4 {vr(C2R+4*j,4)}, v{l16}, s[16:19], s36 offen {SC}",
                            f"s_add_u32 s36, s47, {j*224*1024}\nbuffer_store_dwordx2 {vr(C2R+16+2*j,2)}, v{SO3}, s[16:19], s36 offen {SC}"]
        stage(st2(0), st2(1), zero=True); stage(st2(2), st2(3)); signal(ST_G3B, 8)
        L0 = a.lab("mm"); a.e(f"{L0}:"); stage(lim=PUB2); a.e(f"s_cbranch_scc1 {L0}")
        signal(ST_G3, 0)
    else: stage(late=True, zero=True); mstamp(a)
    L = a.lab("mm"); a.e(f"{L}:")
    stage(lim=NS - 1 if which == 3 else SP0 - 1)
    a.e(f"s_cbranch_scc1 {L}")
    a.e("s_waitcnt lgkmcnt(0)")
    if which == 4:
        def out(mt, so_, srd):
            if mt & 1: a.e(f"s_add_u32 s36, s{so_}, 65536")
            for p in range(2):
                B = A_(mt, 2 * p)
                for e in range(4): a.e(f"v_and_or_b32 v{B+2*e}, v{B+2*e}, s15, v{xf}")
                for e in range(4): a.e(f"v_cvt_pk_bf16_f32 v{B+e}, v{B+2*e}, v{B+2*e+1}")
                a.e(f"buffer_store_dwordx4 {vr(B,4)}, v{l16}, s[{srd}:{srd+3}], s{36 if mt & 1 else so_} offen offset:{p*1024} {SC}")
        FS = [[fX + 4 * i for i in range(8)] + [232 + 4 * i for i in range(4)], [fY + 4 * i for i in range(8)] + [RXA + 2 + 4 * i for i in range(4)]]
        def rds(n):
            t, j = n >> 1, n & 1; F = FS[j]; ws = (SP0 + 2 * (t % 3) + j) % 6; o = []
            for kk in range(2):
                for i in range(2): o.append(f"ds_read_b128 {vr(F[8+2*kk+i],4)}, v{a0} offset:{(SP0+t)%3*16384 + (2*j+i)*2048 + kk*1024}")
            for kk in range(2):
                for nt in range(4):
                    for h in range(2):
                        r, imm = wpos(nt, kk, h)
                        o.append(f"ds_read_b64_tr_b16 {vr(F[4*kk+nt]+2*h,2)}, v{(w0, wa)[ws//3]+r} offset:{imm + ws%3*16384}")
            return o
        def half(n, rd, hook=None):
            F = FS[n & 1]; m0_ = 2 if n < 6 else 0; rd = list(rd); tot = len(rd); done = 0
            for k, (kk, nt, i) in enumerate([(kk, nt, i ^ (nt & 1)) for kk in range(2) for nt in range(4) for i in range(2)]):
                if k == 8:
                    a.e(f"s_waitcnt lgkmcnt({done})")
                    if n == 11: a.e("s_barrier")
                a.e(f"v_mfma_f32_16x16x32_bf16 {vr(A_(m0_+i,nt),4)}, {vr(F[4*kk+nt],4)}, {vr(F[8+2*kk+i],4)}, {vr(A_(m0_+i,nt),4)}")
                while rd and done < (tot * (k + 1) + 15) // 16: a.e(rd.pop(0)); done += 1
                if hook and k == 3: hook()
        PX = A_(2, 0)
        pl = [f"buffer_load_dwordx4 {vr(PX+4*k,4)}, v{l16}, s[24:27], s{(40, 12)[k>>1]} offen offset:{(k&1)*1024} {SC}" for k in range(4)]
        mfmas(fX, reads(fY, 1), [f"v_add_u32 v{wa+i}, {3*16384}, v{w0+i}" for i in range(nwr)])
        a.e("s_waitcnt lgkmcnt(0)"); a.e("s_barrier")
        mfmas(fY, rds(0))
        PLN = env("PLN", 10)
        for n in range(12):
            a.e("s_waitcnt lgkmcnt(8)")
            if n & 1 and n < 11: a.e("s_barrier")
            if os.environ.get("JIT") or ("4" in GSTW and not n & 1): mstamp(a, True)
            half(n, rds(n + 1) if n < 11 else [], (lambda: (out(2, 41, 24), out(3, 41, 24))) if n == 6 else (lambda: [a.e(x) for x in pl]) if n == PLN else None)
        mstamp(a, "4" in GSTW)
        data_wait(a, pl, list(range(PX, PX + 16)), t, nap=env("NAPF", 1), first=False)
        mstamp(a)
        for k in range(4): addp(k, PX + 4 * k)
        a.e("s_cmp_eq_u32 s60, 1"); a.e("s_cbranch_scc1 G4_last")
        out(0, 40, 88); out(1, 40, 88)
        r_pre(a)
        mstamp(a)
        a.e("s_branch NEXT")
        a.e("G4_last:")
        for k in range(4):
            B = A_(k >> 1, 2 * (k & 1))
            for e in range(4): a.e(f"v_cvt_pk_bf16_f32 v{B+e}, v{B+2*e}, v{B+2*e+1}")
            for e in range(2): a.e(f"v_permlane16_swap_b32 v{B+e}, v{B+2+e}")
            if k & 1:
                X, Y_, T = B - 8, B, B + 4
                for e in range(4): a.e(f"v_cndmask_b32 v{T+e}, v{X+e}, v{Y_+e}, s[50:51]")
                for e in range(4): a.e(f"v_mov_b32_dpp v{X+4+e}, v{T+e} row_ror:8 row_mask:0xf bank_mask:0xf")
                for e in range(4): a.e(f"v_cndmask_b32 v{X+e}, v{X+4+e}, v{X+e}, s[50:51]"); a.e(f"v_cndmask_b32 v{Y_+e}, v{Y_+e}, v{X+4+e}, s[50:51]")
                a.e(f"buffer_store_dwordx4 {vr(X,4)}, v{oa}, s[20:23], s{38+(k>>1)} offen {os.environ.get('OS', SC).replace('_', ' ')}")
                a.e(f"buffer_store_dwordx4 {vr(Y_,4)}, v{oa+1}, s[20:23], s{38+(k>>1)} offen {os.environ.get('OS', SC).replace('_', ' ')}")
        a.e("s_branch K_fin")
        return
    mfmas(fX, reads(fY, 1))
    a.e("s_waitcnt lgkmcnt(0)")
    a.e("s_barrier")
    cs = fX; lns = fX + 4 * NT
    mfmas(fY, [f"ds_read_b128 {vr(cs+4*nt,4)}, v{t} offset:{nt*64}" for nt in range(NT)] + [f"ds_read_b128 {vr(lns+4*mt,4)}, v{t2} offset:{mt*256}" for mt in range(MT)])
    mstamp(a)
    if which == 3:
        tp = fY + 12
        def act(tiles):
            P_ = [(A_(mt, nt) + 2 * h, tp + 4 * i + 2 * h, vr(lns + 4 * mt, 2), vr(lns + 4 * mt + 2, 2), cs + 4 * nt + 2 * h) for i, (mt, nt) in enumerate(tiles) for h in range(2)]
            for x, u, L_, K_, c_ in P_: a.e(f"v_pk_fma_f32 {vr(x,2)}, {L_}, {vr(c_,2)}, {vr(x,2)} op_sel_hi:[0,1,1] neg_lo:[1,0,0] neg_hi:[1,0,0]")
            for x, u, L_, K_, c_ in P_: a.e(f"v_pk_mul_f32 {vr(u,2)}, {vr(x,2)}, {vr(x,2)}")
            for x, u, L_, K_, c_ in P_: a.e(f"v_pk_fma_f32 {vr(u,2)}, {vr(u,2)}, {K_}, {K_} op_sel:[0,1,0] op_sel_hi:[1,1,0]")
            for x, u, L_, K_, c_ in P_: a.e(f"v_pk_mul_f32 {vr(u,2)}, {vr(u,2)}, {vr(x,2)}")
            for i in range(8): a.e(f"v_exp_f32 v{tp+i}, v{tp+i}")
            for x, u, L_, K_, c_ in P_: a.e(f"v_pk_fma_f32 {vr(u,2)}, {vr(u,2)}, {L_}, {L_} op_sel:[0,1,1] op_sel_hi:[1,1,1]")
            for i in range(8): a.e(f"v_rcp_f32 v{tp+i}, v{tp+i}")
            for x, u, L_, K_, c_ in P_: a.e(f"v_pk_mul_f32 {vr(x,2)}, {vr(x,2)}, {vr(u,2)}")
        def group(mt, nts, dst=None):
            if len(nts) == 2: act([(mt, nt) for nt in nts])
            elif mt % 2 == 0: act([(mt, nts[0]), (mt + 1, nts[0])])
            P = nts[0] >> 1; B = A_(mt, nts[0]); D = B if dst is None else dst
            for k in range(2 * len(nts)): a.e(f"v_cvt_pk_bf16_f32 v{D+k}, v{B+2*k}, v{B+2*k+1}")
            return [f"s_add_u32 s36, s{44+P}, {mt*224*1024}", f"buffer_store_dwordx4 {vr(B,4)}, v{l16}, s[16:19], s36 offen {SC}"]
        def body():
            gs = [(0, 1), (2, 3), (4, 5), (6,)]
            k = 0; pend = []; sent = 0; RXK = env("RXK", 7); assert RXK >= C0PUB and RXK + 4 <= STQ + 1
            for gi_, g_ in enumerate(gs):
                for mt in range(MT):
                    if k == C0PUB: signal(ST_G3A, sent - 4); mstamp(a)
                    if RXK <= k < RXK + 4:
                        i, p = (k - RXK) >> 1, (k - RXK) & 1
                        a.e(f"buffer_load_dwordx4 {vr(RX[2*i+p],4)}, v{xo}, s[84:87], s{13+i} offen offset:{p*64} {SC}")
                        a.e(f"buffer_load_dwordx4 {vr(RX[2*i+p]+4,4)}, v{l16}, s[88:91], s{(40, 12)[i]} offen offset:{p*1024} {SC}")
                    st_ = group(mt, g_, None if gi_ < 2 else C2R + 4 * mt if gi_ == 2 else C2R + 16 + 2 * mt); k += 1
                    if gi_ < 3:
                        a.e(f"ds_write_b128 v{(J, G)[mt>>1]}, {vr(A_(mt, g_[0]) if gi_ < 2 else C2R + 4 * mt, 4)} offset:{gi_*16384 + (mt&1)*2048}")
                    if gi_ < 2: pend.append(st_)
                    n = len(pend) if (k <= 4 or k == 16) else 0 if k <= STQ else min(1, len(pend))
                    for _ in range(n):
                        for x in pend.pop(0): a.e(x)
                        sent += 1
            a.e("s_waitcnt vmcnt(4) lgkmcnt(0)")
        a.e("s_waitcnt lgkmcnt(0)"); a.e("s_nop 7")
        body()
        mstamp(a)

def k_mega(a):
    nm = KNAME; a.begin_kernel(nm)
    a.e("s_cmp_ge_u32 s2, 256"); a.e("s_cbranch_scc1 K_end")
    a.e(f"s_load_dwordx8 s[8:15], s[0:1], {A_K}"); a.e(f"s_load_dwordx2 s[6:7], s[0:1], {A_Q}"); a.e(f"s_load_dwordx8 s[68:75], s[0:1], {B_W1}")
    a.e(f"s_load_dwordx2 s[4:5], s[0:1], {D_WS}"); a.e(f"s_load_dwordx2 s[84:85], s[0:1], {D_DBG}"); a.e("s_memrealtime s[46:47]")
    a.e(f"s_load_dwordx2 s[76:77], s[0:1], {A_SSMD}")
    a.e("v_lshrrev_b32 v1, 6, v0"); a.e("v_readfirstlane_b32 s30, v1")
    CS = env("CS", 3)
    def codepf():
        a.e("s_getpc_b64 s[48:49]"); a.e("K_pc:")
        a.e("s_lshr_b32 s36, s2, 3"); a.e(f"s_lshl_b32 s36, s36, {9+CS}")
        a.e(f"v_lshlrev_b32 v252, {CS}, v0"); a.e("v_add_u32 v252, s36, v252")
        a.e("v_cmp_gt_u32 vcc, K_end-K_pc-8, v252"); a.e("s_and_saveexec_b64 s[36:37], vcc"); a.e("s_cbranch_execz K_3")
        a.e("v_mov_b32 v253, s49"); a.e("v_add_co_u32 v252, vcc, s48, v252"); a.e("v_addc_co_u32 v253, vcc, 0, v253, vcc")
        a.e("global_load_dword v250, v[252:253], off")
        a.e("K_3:"); a.e("s_mov_b64 exec, -1")
    if env("CPF", 0) == 0: codepf()
    front_loads(a)
    if env("CPF", 0) == 1: codepf()
    a.e("v_and_b32 v1, 63, v0"); a.e("v_lshlrev_b32 v2, 4, v1"); a.e("v_lshlrev_b32 v3, 2, v1")
    a.e("s_and_b32 s32, s2, 7"); a.e("s_lshr_b32 s33, s2, 3")
    a.e("s_and_b32 s28, s32, 2"); a.e("s_lshr_b32 s34, s32, 2"); a.e("s_or_b32 s28, s28, s34")
    a.e("s_lshl_b32 s28, s28, 2"); a.e("s_and_b32 s34, s33, 3"); a.e("s_add_u32 s28, s28, s34")
    a.e("s_and_b32 s31, s32, 1"); a.e("s_lshr_b32 s33, s33, 2")
    a.e("s_lshl_b32 s29, s31, 3"); a.e("s_add_u32 s29, s29, s33")
    a.e("s_mov_b32 s60, 0"); a.e("s_mov_b32 s61, 40000"); a.e("s_mov_b32 s52, 0")
    a.e("s_mov_b32 s55, 0"); a.e("s_mov_b32 s92, 0"); a.e("s_mov_b32 s93, 0"); a.e("s_mov_b32 s94, 0")
    a.srd(56, 4, X3G)
    a.e(f"s_add_u32 s62, s4, {LB0}"); a.e("s_addc_u32 s63, s5, 0")
    if STAMP:
        a.e("s_mov_b32 s66, 1"); a.e("v_mov_b32 v4, -1"); a.e("v_mov_b32 v5, 0"); a.e("s_mov_b32 s95, 0"); a.e("v_writelane_b32 v4, s46, 0")
    mstamp(a)
    front_a(a); mstamp(a)
    a.e("s_cmp_ge_u32 s30, 4"); a.e("s_cbranch_scc1 FR_b")
    front_conv(a)
    mstamp(a)
    a.e("s_waitcnt vmcnt(4)")
    a.e("s_branch FR_end")
    a.e("FR_b:")
    front_b(a)
    mstamp(a)
    a.e("FR_end:")
    r_stage(a, True)
    a.e("s_waitcnt lgkmcnt(0)"); a.e("s_barrier")
    mstamp(a)
    a.e("LAYER:")
    r_stage(a)
    mstamp(a)
    for w in (3, 4): g_compute(a, w)
    a.e("LOADERS:")
    window_y(a)
    a.e("s_cmp_ge_u32 s30, 6"); a.e("s_cbranch_scc1 WLOAD")
    for w in (3, 4): a_loader(a, w)
    a.e("WLOAD:")
    w_loader(a, 3); w_setup(a, 4); w_loader(a, 4)
    y_end(a)
    a.e("NEXT:")
    a.e("s_setprio 0")
    a.e("s_add_u32 s60, s60, 1"); a.e(f"s_add_u32 s55, s55, {LSTR}")
    a.e(f"s_add_u32 s62, s62, {LSTR}"); a.e("s_addc_u32 s63, s63, 0")
    a.e("s_branch LAYER")
    a.e("K_fin:")
    if STAMP:
        a.e("s_waitcnt vmcnt(0)")
        mstamp(a)
        a.srd(96, 4, 16 * MB, off=200 * MB)
        a.e("s_lshl_b32 s66, s2, 3"); a.e("s_add_u32 s66, s66, s30"); a.e("s_lshl_b32 s66, s66, 8")
        a.e("v_writelane_b32 v4, s95, 63")
        a.e("buffer_store_dword v4, v3, s[96:99], s66 offen")
        a.e("s_add_u32 s66, s66, 0x100000"); a.e("buffer_store_dword v5, v3, s[96:99], s66 offen")
    a.e("s_endpgm")
    emit_subs(a)
    a.e("K_end:")
    a.end_kernel(nm, 256)
    a.launches.append(f"; @launch grid=(256,1,1) block=(512,1,1) lds={LDS_TOTAL}")

HEADER = open("interleave_layers__ssm_conv_h3__mixer_s_mlp__prompt.s.ref").read().split("; Override launch")[0]
DOC = """; One persistent kernel, 256 workgroups x 8 waves (one per CU), generated by dev/gen31.py.
"""
def main(out):
    a = Asm()
    k_mega(a)
    notes = {
        "K_pc:": "each workgroup reads 4 KB of this kernel's code so that later instruction fetches are served on chip",
        "KV_t0:": "k / v / tap loads of the u^T tile (64 times x 128 channels); workgroup 0 has posted the launch tag (a clock value) in d_debug",
        "HB_1:": "u^T tile out, shifted filter copies into LDS, first part of the W2 slice",
        "CV_w:": "long causal convolution as Toeplitz MFMAs, one channel per wave",
        "FR_b:": "waves 4-7 beside the convolution: memory-locality vote (timed loads, layout choice only), weight loads",
        "LAYER:": "row stage: LayerNorm chain, x + LN(x)*y for 8 rows per workgroup",
        "LOADERS:": "waves 4-7: loads of G1, MFMAs of G2; then waves 4,5: activation tiles by LDS-DMA (after the producers' counters are complete)",
        "WLOAD:": "waves 6,7: weight tiles by LDS-DMA in their original layout (read back with transposing LDS loads)",
        "G4_last:": "last layer: write the output",
    }
    o = []
    for l in a.lines:
        if l.strip() in notes: o.append("; ---- " + notes[l.strip()])
        if l.strip().startswith("s_sleep"): l += "    ; back-off inside a wait loop"
        o.append(l)
    a.lines = o
    open(out, "w").write(a.text(HEADER + DOC))
    print("nops added:", a.nops_added, "| slots", [WSLOT[s] // KB for s in range(32)], "| issue", {k: x for k, x in WISSUE.items() if x})

if __name__ == "__main__":
    main(sys.argv[1] if len(sys.argv) > 1 else "interleave_layers__ssm_conv_h3__mixer_s_mlp__prompt.s")
```

```python
import sys, os, math, struct
sys.path.insert(0, "dev")
from asmgen import Asm

KNAME = "interleave_layers__ssm_conv_h3__mixer_s_mlp__prompt_kernel"
MB = 1 << 20; KB = 1024
UT, PRB = 24 * MB, 28 * MB; Y = UT
CSP3 = 20 * MB + 128 * 1024
A_Q, A_K, A_V, A_SH, A_SSMK, A_SSMD, B_X, B_W1, B_W2, B_W3, B_W4, D_OUT, D_DBG, D_WS = [8 * i for i in range(14)]
def env(k, d): return type(d)(os.environ.get(k, d)) if not isinstance(d, (list, dict, tuple)) else eval(os.environ.get(k, repr(d)))
STAMP = env("STAMP", 0)
def f32(x): return "0x%08x" % struct.unpack("<I", struct.pack("<f", x))[0]
GC1 = -2.0 * math.sqrt(2.0 / math.pi) * math.log2(math.e)

WAD = 74
RB0, RB1 = 78, 118
WR0 = 128
class VA:
    def __init__(self, start=1, skip=False): self.n = start; self.hi = start; self.skip = skip
    def __call__(self, cnt=1, al=None):
        if al is None: al = 2 if cnt > 1 else 1
        self.n = (self.n + al - 1) // al * al
        if self.skip and self.n < RB1 and self.n + cnt > RB0: self.n = (RB1 + al - 1) // al * al
        r = self.n; self.n += cnt; self.hi = max(self.hi, self.n); return r
def vr(b, n): return f"v[{b}:{b+n-1}]" if n > 1 else f"v{b}"

def unpack(a, lo, hi, src):
    a.e(f"v_lshlrev_b32 v{lo}, 16, v{src}")
    a.e(f"v_and_b32 v{hi}, 0xffff0000, v{src}")
def round2(a, x, y, tmp):
    a.e(f"v_cvt_pk_bf16_f32 v{tmp}, v{x}, v{y}")
    unpack(a, x, y, tmp)
def round1(a, x):
    a.e(f"v_cvt_pk_bf16_f32 v{x}, v{x}, v{x}")
    a.e(f"v_lshlrev_b32 v{x}, 16, v{x}")
def ln_finish(a, mean, var, rs):
    round1(a, mean); round1(a, var)
    a.e(f"v_add_f32 v{var}, {f32(1e-5)}, v{var}"); round1(a, var)
    a.e(f"v_sqrt_f32 v{var}, v{var}"); round1(a, var)
    if rs is not None: a.e(f"v_rcp_f32 v{rs}, v{var}")

FLG = 22 * MB
LB0, LSTR, GSTR = 32 * MB, 64 * MB, 8 * MB
oH2 = 0; oSM = 1792 * 1024; oST2 = oSM + 32768
oH, oX1P = [4 * MB + i * 512 * 1024 for i in range(2)]
XSZ = 512 * 1024 - 8192; H2SZ = 1792 * 1024 - 8192
X3G = 160 * MB
LNSG = FLG + 128 * KB
def spread(a, d, src):
    a.e(f"s_lshr_b32 s53, s{src}, 3"); a.e("s_lshl_b32 s53, s53, 14"); a.e(f"s_and_b32 s{d}, s{src}, 7"); a.e(f"s_lshl_b32 s{d}, s{d}, 10"); a.e(f"s_add_u32 s{d}, s{d}, s53")
ST_R, ST_G2, ST_G4, ST_G3A, ST_G3B, ST_G3, ST_G2S = 0, 8, 12, 32, 36, 40, 44
FH = 2048
F_KVT, F_FRONT, F_CS = FLG + 256 * KB, FLG + 512 * KB, FLG
LDS_TOTAL = 163840
AUX = LDS_TOTAL - 4096
SC = "sc1"
PSLEEP = env("PSLEEP", 5); PACE = env("PACE", 8); STQ = env("STQ", 12); FSLEEP = env("FSLEEP", 3)
NT = os.environ.get("NT", "nt"); NTK = NT; NTH = NT
PUB2 = env("PUB2", 4); MAP = env("MAP", 4); HSPLIT = env("HSPLIT", 2); PWAIT = env("PWAIT", 8)
PACES = env("PACES", {4: 8}); C0PUB = env("C0PUB", 7)
REC, LNSL = 152 * KB, AUX + 1024
WST = 24 * KB

CFG = {1: dict(KBT=32, NW=16, LDW=2048, TN16=4, WB=0),
       3: dict(WM=2, WN=2, MT=4, NT=7, KBT=32, NS=16, NA=3, NW=3, A=oX1P, LDW=7168, NPRE=2, WR=2),
       4: dict(WM=2, WN=2, MT=4, NT=4, KBT=112, NS=28, NA=3, NW=6, A=oH2, LDW=2048)}
for w, c in CFG.items():
    c.setdefault("NPRE", c["NW"]); c.setdefault("WR", 1)
    if w > 1: c["TN16"] = c["WN"] * c["NT"]; c["WB"] = c["NA"] * 16384
    c["STB"] = c["TN16"] * 2048; c["RB"] = c["TN16"] * 32
CFG[2] = CFG[1]
CSO = {3: AUX}

LW = AUX + 3072
def mstamp(a, force=False):
    if os.environ.get("JIT"):
        X = a.lab("jit")
        a.e("s_cselect_b32 s101, 1, 0"); a.e("s_memtime s[64:65]"); a.e("s_waitcnt lgkmcnt(0)"); a.e(f"s_and_b32 s64, s64, {os.environ['JIT']}"); a.e("s_cmp_lg_u32 s64, 0")
        a.e(f"s_cbranch_scc1 {X}"); a.e("s_sleep 50"); a.e(f"{X}:"); a.e("s_cmp_eq_u32 s101, 1")
        return
    if not STAMP or (os.environ.get("GST") and not force): return
    if STAMP == 1:
        fn = sys._getframe(1)
        while fn.f_code.co_name in ("<lambda>", "flag"): fn = fn.f_back
        if fn.f_code.co_name in ("front_b", "window_y", "w_setup", "w_loader", "a_loader", "wait2", "run", "front_a"): return
        if fn.f_code.co_name == "win_compute" and fn.f_locals["g"] == 2: return
        a.e("s_memrealtime s[64:65]"); a.e("s_mov_b32 s100, m0"); a.e("s_mov_b32 m0, s66"); a.e("s_waitcnt lgkmcnt(0)")
        a.e("v_writelane_b32 v4, s64, m0"); a.e("s_mov_b32 m0, s100"); a.e("s_add_u32 s66, s66, 1")
        return
    a.e("s_memrealtime s[64:65]"); a.e("s_memtime s[96:97]")
    a.e("s_mov_b32 s100, m0"); a.e("s_mov_b32 m0, s66"); a.e("s_waitcnt lgkmcnt(0)")
    a.e("v_writelane_b32 v4, s64, m0"); a.e("v_writelane_b32 v5, s96, m0")
    a.e("s_mov_b32 m0, s100"); a.e("s_add_u32 s66, s66, 1")

def lsrd(a, d, off, nbytes, prev=False):
    if prev:
        a.e(f"s_sub_u32 s{d}, s62, {LSTR - off:#x}"); a.e(f"s_subb_u32 s{d+1}, s63, 0")
        a.e(f"s_mov_b32 s{d+2}, {nbytes:#x}"); a.e(f"s_mov_b32 s{d+3}, 0x20000")
    else: a.srd(d, 62, nbytes, off=off)
def x3_srd(a, d):
    a.e(f"s_lshl_b32 s{d+2}, s60, 24"); a.e(f"s_lshl_b32 s{d+3}, s94, 13"); a.e(f"s_add_u32 s{d+2}, s{d+2}, s{d+3}"); a.e(f"s_add_u32 s{d+2}, s{d+2}, {X3G}")
    a.e(f"s_add_u32 s{d}, s4, s{d+2}"); a.e(f"s_addc_u32 s{d+1}, s5, 0"); a.e(f"s_mov_b32 s{d+2}, {8*MB - 8192}"); a.e(f"s_mov_b32 s{d+3}, 0x20000")
def lns_srd(a, d):
    a.e(f"s_lshl_b32 s{d+2}, s60, 15"); a.e(f"s_add_u32 s{d+2}, s{d+2}, {LNSG}")
    a.e(f"s_add_u32 s{d}, s4, s{d+2}"); a.e(f"s_addc_u32 s{d+1}, s5, 0"); a.e(f"s_mov_b32 s{d+2}, 32768"); a.e(f"s_mov_b32 s{d+3}, 0x20000")
def rowaddr(a, d, r, t):
    a.e(f"v_and_b32 v{t}, 3, v{r}"); a.e(f"v_lshrrev_b32 v{d}, 2, v{r}"); a.e(f"v_lshlrev_b32 v{d}, 14, v{d}"); a.e(f"v_lshl_add_u32 v{d}, v{t}, 11, v{d}")

def group_off(a, d, m):
    a.e(f"s_lshr_b32 s53, s{m}, 3"); a.e("s_lshl_b32 s53, s53, 2"); a.e(f"s_and_b32 s54, s{m}, 3"); a.e("s_add_u32 s53, s53, s54"); a.e("s_lshl_b32 s53, s53, 23")
    a.e(f"s_lshr_b32 s54, s{m}, 2"); a.e("s_xor_b32 s54, s54, s94"); a.e("s_and_b32 s54, s54, 1"); a.e("s_lshl_b32 s54, s54, 13")
    a.e(f"s_add_u32 s{d}, s53, s54"); a.e(f"s_add_u32 s{d}, s{d}, {LB0}")

def poll_core(a, t, ad, mask, cnt=0, nap=None):
    L = a.lab("poll"); D = a.lab("pok")
    a.e("s_mov_b32 s53, 0"); a.e(f"s_add_u32 s54, s52, {cnt}")
    a.e(f"s_bfm_b64 exec, {mask.bit_length()}, 0")
    a.e(f"{L}:")
    a.e(f"buffer_load_dword v{t}, v{ad}, s[56:59], 0 offen {SC}")
    a.e("s_waitcnt vmcnt(0)")
    a.e(f"v_cmp_eq_u32 vcc, s54, v{t}")
    a.e("s_cmp_eq_u64 vcc, exec"); a.e(f"s_cbranch_scc1 {D}")
    a.e(f"s_sleep {PSLEEP if nap is None else nap}")
    a.e("s_add_u32 s53, s53, 1"); a.e("s_cmp_lt_u32 s53, s61"); a.e(f"s_cbranch_scc1 {L}")
    a.e("s_mov_b32 s61, 0")
    a.e(f"{D}:")
    a.e("s_mov_b64 exec, -1")

def flag_off(a, d, stage, sub, prev=False):
    a.e(f"s_lshl_b32 s{d}, s{sub}, 7"); a.e(f"s_add_u32 s{d}, s{d}, s55")
    so = stage * 128 - (LSTR if prev else 0)
    if so: a.e(f"s_add_u32 s{d}, s{d}, {so & 0xffffffff:#x}")
def flag_in(a, d, stage, prev=False):
    if stage in (ST_R, ST_G2): a.e(f"s_add_u32 s{d}, s55, {stage*128}"); return 1 if stage == ST_R else 4
    if stage == ST_G4: a.e(f"s_lshl_b32 s{d}, s31, 1")
    else:
        a.e(f"s_and_b32 s{d}, s30, 1")
        if stage != ST_G2S: a.e(f"s_lshl1_add_u32 s{d}, s31, s{d}")
    flag_off(a, d, stage, d, prev)
    return 2 if stage == ST_G4 else 1
def flag_addr(a, r, stage, prev=False):
    n = flag_in(a, 54, stage, prev)
    if stage == ST_R:
        a.e("s_bitcmp1_b32 s29, 2"); a.e("s_cselect_b32 s53, s93, s92"); a.e("s_add_u32 s53, s53, s54")
        a.e(f"v_mov_b32 v{r}, s54"); a.e(f"v_writelane_b32 v{r}, s53, 1")
        return 3
    a.e(f"v_mov_b32 v{r}, s54")
    a.e(f"v_lshl_add_u32 v{r}, v1, 7, v{r}")
    return (1 << n) - 1
def flag_try(a, d, off): a.e(f"s_load_dword s{d}, s[4:5], s{off}")
def flag_check(a, d, off, t):
    D = a.lab("fok")
    a.e("s_add_u32 s54, s52, 16"); a.e("s_waitcnt lgkmcnt(0)"); a.e(f"s_cmp_eq_u32 s{d}, s54"); a.e(f"s_cbranch_scc1 {D}")
    a.e(f"v_mov_b32 v{t+1}, s{off}"); poll_core(a, t, t + 1, 1, cnt=16)
    a.e(f"{D}:")

def poll(a, stage, t, prev=False, wave=4, nap=None):
    D = a.lab("pdone")
    a.e(f"s_cmp_lg_u32 s30, {wave}"); a.e(f"s_cbranch_scc1 {D}")
    poll_core(a, t, t + 1, flag_addr(a, t + 1, stage, prev), cnt=16, nap=nap)
    a.e(f"{D}:")
    a.e("s_waitcnt lgkmcnt(0)"); a.e("s_barrier")

def publish(a, stage, t, off=None, wait=0):
    if off is None:
        off = 53
        if stage == ST_G4: flag_off(a, 53, stage, 30)
        else:
            a.e({ST_G2: "s_and_b32 s53, s30, 3", ST_G2S: "s_and_b32 s53, s30, 1"}.get(stage, "s_lshr_b32 s53, s30, 1"))
            if stage not in (ST_G2, ST_G2S): a.e("s_lshl1_add_u32 s53, s31, s53")
            flag_off(a, 53, stage, 53)
    a.e(f"v_mov_b32 v{t}, 1"); a.e(f"v_mov_b32 v{t+1}, 0")
    a.e("s_mov_b64 exec, 1")
    if wait is not None: a.e(f"s_waitcnt vmcnt({wait})")
    a.e(f"buffer_atomic_add v{t}, v{t+1}, s[56:59], s{off} offen {SC}")
    a.e("s_mov_b64 exec, -1")

def data_wait(a, loads, regs, t, between=None, nap=2, first=True):
    L = a.lab("dw"); D = a.lab("dok")
    for x in loads if first else []: a.e(x)
    if between: between()
    a.e("s_mov_b32 s53, 0")
    a.e(f"{L}:")
    a.e("s_waitcnt vmcnt(0)")
    h = len(regs) // 2
    for k, part in enumerate((regs[:h], regs[h:])): a.e(f"v_and_b32 v{t+k}, v{part[0]}, v{part[1]}")
    for i in range(2, h, 2):
        for k, part in enumerate((regs[:h], regs[h:])): a.e(f"v_bitop3_b32 v{t+k}, v{part[i]}, v{part[i+1]}, v{t+k} bitop3:0x80")
    a.e(f"v_bitop3_b32 v{t}, v{t}, v{t+1}, 1 bitop3:0x80"); a.e(f"v_cmp_eq_u32 vcc, 0, v{t}")
    a.e("s_cmp_eq_u64 vcc, 0"); a.e(f"s_cbranch_scc1 {D}")
    a.e("s_mov_b64 exec, vcc")
    a.e(f"s_sleep {nap}")
    for x in loads: a.e(x)
    a.e("s_add_u32 s53, s53, 1"); a.e("s_cmp_lt_u32 s53, s61"); a.e(f"s_cbranch_scc1 {L}")
    a.e("s_mov_b32 s61, 0"); a.e("s_waitcnt vmcnt(0)")
    a.e(f"{D}:")
    a.e("s_mov_b64 exec, -1")
    if STAMP: a.e("s_lshl_b32 s53, s53, 24"); a.e("s_add_u32 s95, s95, s53")
def lsb0(a, r):
    a.e(f"v_add_u32 v{r}, 0x10000, v{r}"); a.e(f"v_and_b32 v{r}, 0xfffe0000, v{r}")
MV = env("MV", ())
W1A, W1B = tuple(j for j in (11, 12, 15, 13, 14, 3, 4, 5, 6, 0) if j not in MV), (7, 8, 1, 2, 9, 10) + MV
W2S = (-3, -2, -1) + W1B
def lds_spin(a, addr, target, t, dst=53, nap=False):
    L = a.lab("spin")
    a.e(f"v_mov_b32 v{t}, {addr}")
    a.e(f"{L}:")
    if nap: a.e(f"s_sleep {int(nap)}")
    a.e(f"ds_read_b32 v{t+1}, v{t}"); a.e("s_waitcnt lgkmcnt(0)"); a.e(f"v_readfirstlane_b32 s{dst}, v{t+1}")
    a.e(f"s_cmp_ge_u32 s{dst}, {target}"); a.e(f"s_cbranch_scc0 {L}")
def lds_set(a, addr, val, t):
    a.e(f"v_mov_b32 v{t}, {addr}"); a.e(f"v_mov_b32 v{t+1}, {val}")
    a.e("s_waitcnt lgkmcnt(0)"); a.e(f"ds_write_b32 v{t}, v{t+1}")
def lds_inc(a, addr, t):
    a.e(f"v_mov_b32 v{t}, {addr}"); a.e(f"v_mov_b32 v{t+1}, 1")
    a.e("s_waitcnt lgkmcnt(0)")
    a.e("s_mov_b64 exec, 1"); a.e(f"ds_add_u32 v{t}, v{t+1}"); a.e("s_mov_b64 exec, -1")
def lbar(a, k, t, addr=LW + 8, nap=False):
    lds_inc(a, addr, t); lds_spin(a, addr, 4 * k, t, nap=nap)

class Rec:
    def __init__(s_): s_.l = []
    def e(s_, x): s_.l.append(x)
    srd = Asm.srd
class Track:
    def __init__(s, a): s.a = a; s.vq = []; s.lq = []
    def e(s, x): s.a.e(x)
    def vm(s, x, tag=None): s.a.e(x); s.vq.append(tag)
    def ds(s, x, tag=None): s.a.e(x); s.lq.append(tag)
    def _w(s, q, tag, nm, mx):
        if tag not in q: return
        i = max(k for k, x in enumerate(q) if x == tag); n = len(q) - 1 - i
        assert n <= mx
        s.a.e(f"s_waitcnt {nm}({n})"); del q[:i + 1]
    def wv(s, tag): s._w(s.vq, tag, "vmcnt", 63)
    def wl(s, tag): s._w(s.lq, tag, "lgkmcnt", 15)
    def nv(s, tag):
        return len(s.vq) - 1 - max(k for k, x in enumerate(s.vq) if x == tag)
NVOTE = 255
HSTR = 4160; CHB = 21504; UOFF = 4 * HSTR
RFO, RYO, RRO, RI, RXO, RT, RXA, RXB, RYF, RYY = 78, 79, 80, 81, 82, 84, 86, 94, 102, 110
WVB = {1: 118, 2: 118, 4: 119, 3: 121}

NRAW = env("NRAW", 8)
KL, VL = 96 * KB, 113 * KB
def front_loads(a):
    vA, vB, t, t2 = 6, 7, 8, 9
    a.e(f"v_bfe_u32 v{t}, v0, 4, 2"); a.e(f"v_and_b32 v{t2}, 15, v0"); a.e(f"v_lshlrev_b32 v{vA}, 11, v{t}"); a.e(f"v_lshlrev_b32 v{t}, 1, v{t}")
    a.e(f"v_xor_b32 v{t}, v{t}, v{t2}"); a.e(f"v_lshl_add_u32 v{t}, v{t}, 4, v{vA}")
    a.e("s_and_b32 s34, s2, 7"); a.e("s_lshr_b32 s35, s2, 3")
    a.e("s_lshl_b32 s36, s35, 17"); a.e("s_lshl_b32 s37, s34, 8"); a.e("s_add_u32 s36, s36, s37")
    a.e("s_lshl_b32 s37, s30, 6"); a.e("s_and_b32 s38, s37, 128"); a.e("s_add_u32 s37, s37, 64"); a.e("s_and_b32 s37, s37, 128")
    a.e(f"v_xor_b32 v{vA}, s38, v{t}"); a.e(f"v_xor_b32 v{vB}, s37, v{t}")
    a.e("s_lshl_b32 s37, s30, 14"); a.e("s_add_u32 s37, s37, s36"); a.e("s_add_u32 s38, s37, 8192"); a.e("s_lshl_b32 s39, s30, 11")
    a.e(f"s_mov_b32 s18, {4*MB}"); a.e("s_mov_b32 s19, 0x20000"); a.e("s_mov_b32 s22, s18"); a.e("s_mov_b32 s23, s19")
    a.e(f"s_add_u32 m0, s39, {KL + 1024}")
    a.e("s_waitcnt lgkmcnt(0)")
    a.e("s_mov_b64 s[16:17], s[8:9]"); a.e("s_mov_b64 s[20:21], s[10:11]")
    a.e(f"buffer_load_dwordx4 v{vA}, s[16:19], s37 offen {NT} lds"); a.e("s_add_u32 m0, m0, 1024")
    a.e(f"buffer_load_dwordx4 v{vB}, s[16:19], s38 offen {NT} lds"); a.e(f"s_add_u32 m0, s39, {VL}")
    a.e(f"buffer_load_dwordx4 v{vA}, s[20:23], s37 offen {NT} lds"); a.e("s_add_u32 m0, m0, 1024")
    a.e(f"buffer_load_dwordx4 v{vA}, s[20:23], s38 offen {NT} lds")
    a.e("s_mov_b32 s86, 256"); a.e("s_mov_b32 s87, 0x20000"); a.e(f"v_mov_b32 v{ZZ}, 0")
    a.e("s_cmp_lg_u32 s30, 0"); a.e("s_cbranch_scc1 KV_t0")
    a.e("s_sub_u32 s36, s36, 8192"); a.e(f"v_add_u32 v{t}, s36, v{t}"); a.e(f"s_mov_b32 m0, {KL}")
    a.e(f"buffer_load_dwordx4 v{t}, s[16:19], 0 offen {NT} lds")
    a.e("s_cmp_lg_u32 s2, 0"); a.e("s_cbranch_scc1 KV_t0")
    a.e("s_lshl_b32 s44, s46, 6"); a.e("s_or_b32 s44, s44, 1"); a.e(f"v_mov_b32 v{t2}, s44")
    a.e("s_mov_b64 exec, 1"); a.e(f"buffer_store_dword v{t2}, v{ZZ}, s[84:87], 0 offen {SC}"); a.e("s_mov_b64 exec, -1")
    a.e("KV_t0:")
    a.e("s_lshl_b32 s37, s34, 10"); a.e("s_lshl_b32 s38, s30, 7"); a.e("s_add_u32 s37, s37, s38"); a.e(f"v_and_b32 v{t2}, 15, v0"); a.e(f"v_lshlrev_b32 v{t2}, 3, v{t2}")
    a.srd(24, 12, 8192)
    a.e(f"buffer_load_dwordx2 {vr(TAP,2)}, v{t2}, s[24:27], s37 offen")
ZZ, TAP = 10, 12

def front_arrive(a):
    t = 6
    a.e("s_lshl_b32 s36, s2, 7"); a.e(f"s_add_u32 s36, s36, {F_FRONT}"); a.e("s_add_u32 s45, s45, s52"); a.e(f"v_mov_b32 v{t+2}, s45")
    a.e("s_mov_b64 exec, 1"); a.e(f"buffer_store_dword v{t+2}, v2, s[56:59], s36 offen {SC}"); a.e("s_mov_b64 exec, -1")
def front_a(a):
    T = Track(a); v = VA(14)
    t = v(); t2 = v(); ra = v(2, 2); go = v(); hw = v(); hw2 = v(); hoff = v(6, 2); d = v(18, 2); tf = v(4, 2); o = v(8, 4); z = v(4, 4)
    assert v.hi <= WAD
    v = VA(128); kr = v(10, 2); vv = v(8, 2); kf = v(20, 2); ks = v(16, 2); dm = 240
    a.e("s_cmp_lg_u32 s30, 4"); a.e("s_cbranch_scc1 HB_1")
    a.e(f"v_add_u32 v{t}, {LW}, v3"); a.e(f"ds_write_b32 v{t}, v{ZZ}")
    a.e("HB_1:")
    w_srd(a, 2, 88)
    a.e("s_lshl3_add_u32 s36, s2, s30"); a.e("s_lshl_b32 s36, s36, 10")
    w_srd(a, 1, 80); a.e("s_mov_b32 s50, s36")
    def wtouch(l=(88, 80)):
        for d_ in l: T.vm(f"buffer_load_dwordx4 {vr(dm,4)}, v2, s[{d_}:{d_+3}], s50 offen")
    WT = env("WT", 6)
    if WT == 0: wtouch()
    w_lanes(a, (1,), t, t2)
    for r in range(119, 128): a.e(f"v_mov_b32 v{r}, 0")
    a.e("s_lshl_b32 s48, s29, 7"); a.e("s_lshl_b32 s36, s30, 14"); a.e("s_add_u32 s48, s48, s36"); a.e("s_lshl_b32 s49, s30, 10")
    a.e(f"s_add_u32 s48, s48, {MB}")
    w2q = list(range(NRAW, 16))
    def w2(n):
        for _ in range(min(n, len(w2q))):
            j = w2q.pop(0)
            a.e(f"s_add_u32 s36, s48, {(j & 7) << 17}")
            a.e(f"s_add_u32 m0, s49, {WST + j * 8192}")
            T.vm(f"buffer_load_dwordx4 v{WVB[1]}, s[88:91], s36 offen lds")
    a.e("s_and_b32 s41, s30, 3"); chan_setup(a, 41)
    a.e("s_lshl_b32 s36, s39, 12")
    a.e("s_add_u32 s12, s14, s36"); a.e("s_addc_u32 s13, s15, 0"); a.e("s_mov_b32 s14, 4096"); a.e("s_mov_b32 s15, 0x20000")
    a.e("s_lshr_b32 s45, s30, 2"); a.e("s_lshl_b32 s45, s45, 11")
    for it in range(3):
        if it < 2: a.e(f"s_add_u32 s36, s45, {(1024*it - 64) & 0xffffffff:#x}")
        else: a.e(f"s_mov_b32 s36, {4096 - 64}")
        a.e(f"v_add_u32 v{hoff+2*it}, s36, v2"); a.e(f"v_add_u32 v{hoff+2*it+1}, 16, v{hoff+2*it}")
    def hld():
        for it in range(3):
            T.vm(f"buffer_load_dwordx4 {vr(d+6*it,4)}, v{hoff+2*it}, s[12:15], 0 offen {NTH}", "h")
            T.vm(f"buffer_load_dwordx2 {vr(d+6*it+4,2)}, v{hoff+2*it+1}, s[12:15], 0 offen {NTH}", "h")
    a.e(f"v_add_u32 v{hw}, s40, v2"); a.e(f"v_add_u32 v{hw2}, s45, v{hw}")
    conv_setup(a); r_addr(a)
    a.srd(8, 6, 4 * MB)
    for i in range(4): a.e(f"v_mov_b32 v{z+i}, 0")
    a.e("s_bfm_b64 exec, 40, 0"); a.e(f"ds_write_b128 v{hw}, {vr(z,4)} offset:{UOFF+4096}"); a.e("s_mov_b64 exec, -1")
    assert UOFF + 4096 + 640 <= CHB and 4 * CHB <= WST + NRAW * 8192
    a.e("s_and_b32 s34, s2, 7"); a.e("s_lshr_b32 s35, s2, 3")
    a.e(f"v_bfe_u32 v{t}, v1, 2, 3"); a.e(f"v_xor_b32 v{t}, s30, v{t}"); a.e(f"v_lshlrev_b32 v{ra}, 5, v{t}")
    a.e(f"v_and_b32 v{t}, 3, v1"); a.e(f"v_lshl_add_u32 v{ra}, v{t}, 3, v{ra}")
    a.e(f"v_bfe_u32 v{t}, v1, 2, 2"); a.e(f"v_lshl_add_u32 v{ra}, v{t}, 8, v{ra}"); a.e(f"v_lshrrev_b32 v{t}, 4, v1"); a.e(f"v_lshl_add_u32 v{ra}, v{t}, 12, v{ra}")
    a.e(f"v_add_u32 v{ra}, {KL}, v{ra}"); a.e(f"v_xor_b32 v{ra+1}, 128, v{ra}")
    a.srd(16, 4, 4 * MB, off=UT)
    a.e(f"v_bfe_u32 v{go}, v1, 2, 2"); a.e(f"v_lshlrev_b32 v{go}, 14, v{go}"); a.e(f"v_and_b32 v{t}, 3, v1"); a.e(f"v_lshl_add_u32 v{go}, v{t}, 6, v{go}")
    a.e(f"v_bfe_u32 v{t}, v1, 4, 1"); a.e(f"v_lshrrev_b32 v{t2}, 5, v1"); a.e(f"v_lshl_add_u32 v{t}, v{t}, 1, v{t2}"); a.e(f"v_xor_b32 v{t}, 3, v{t}"); a.e(f"v_lshl_add_u32 v{go}, v{t}, 4, v{go}")
    a.e("s_lshl3_add_u32 s42, s34, s30"); a.e("s_lshl_b32 s43, s42, 16"); a.e("s_sub_u32 s37, 31, s35"); a.e("s_lshl_b32 s37, s37, 9"); a.e("s_add_u32 s43, s43, s37")
    a.e("s_lshl_b32 s44, s42, 5"); a.e("s_add_u32 s44, s44, s35"); a.e("s_lshl_b32 s44, s44, 7"); a.e(f"s_add_u32 s44, s44, {F_KVT}")
    a.e("s_cmp_lt_u32 s30, 4"); a.e("s_cbranch_scc1 HB_4")
    w_lanes(a, (3, 4), t, t2)
    a.e("HB_4:")
    hld()
    if WT == 1: wtouch()
    if WT >= 4: wtouch((88,))
    a.e("s_cmp_ge_u32 s30, 4"); a.e("s_cbranch_scc1 HB_3")
    conv_setup2(a); a.e("s_waitcnt lgkmcnt(0)"); conv_diag(a)
    a.e("HB_3:")
    mstamp(a)
    a.e(f"s_waitcnt vmcnt({len(T.vq)}) lgkmcnt(0)"); a.e("s_barrier")
    mstamp(a)
    for i in range(5): a.e(f"ds_read_b64_tr_b16 {vr(kr+2*i,2)}, v{ra+i//4} offset:{1024*i}")
    for i in range(4): a.e(f"ds_read_b64_tr_b16 {vr(vv+2*i,2)}, v{ra} offset:{VL - KL + 1024*i}")
    a.e("s_load_dword s52, s[84:85], 0")
    unpack(a, tf, tf + 1, TAP); unpack(a, tf + 2, tf + 3, TAP + 1)
    a.e("s_waitcnt lgkmcnt(0)")
    b = Rec()
    for i in range(10): unpack(b, kf + 2 * i, kf + 2 * i + 1, kr + i)
    for i in range(16): b.e(f"v_mul_f32 v{ks+i}, v{kf+i+1}, v{tf+3}")
    for j in (2, 1, 0):
        for i in range(16): b.e(f"v_fmac_f32 v{ks+i}, v{kf+i+4-j}, v{tf+j}")
    for i in range(8): unpack(b, kf + 2 * i, kf + 2 * i + 1, vv + i)
    for i in range(16): b.e(f"v_mul_f32 v{ks+i}, v{ks+i}, v{kf+i}")
    for i in range(1, 16, 2): lsb0(b, ks + i)
    for i in range(8): b.e(f"v_cvt_pk_bf16_f32 v{o+i}, v{ks+8*(i//4)+7-2*(i%4)}, v{ks+8*(i//4)+6-2*(i%4)}")
    for x in b.l: a.e(x)
    a.e("s_cmp_lg_u32 s52, 0"); a.e("s_cbranch_scc1 HB_q")
    a.e("s_mov_b32 s53, 0")
    a.e("HB_p:")
    a.e(f"buffer_load_dword v{t}, v{ZZ}, s[84:87], 0 offen {SC}"); a.e("s_waitcnt vmcnt(0)")
    a.e(f"v_readfirstlane_b32 s52, v{t}"); a.e("s_cmp_lg_u32 s52, 0"); a.e("s_cbranch_scc1 HB_q")
    a.e("s_add_u32 s53, s53, 1"); a.e("s_cmp_lt_u32 s53, s61"); a.e("s_cbranch_scc1 HB_p")
    a.e("s_mov_b32 s52, 1"); a.e("s_mov_b32 s61, 0")
    a.e("HB_q:")
    for e in range(4): a.e(f"v_permlane32_swap_b32 v{o+e}, v{o+4+e}")
    a.e(f"v_mov_b32 v{t}, s52")
    for i in range(2): T.vm(f"buffer_store_dwordx4 {vr(o+4*i,4)}, v{go}, s[16:19], s43 offen offset:{256*(1-i)} {SC}", "u")
    mstamp(a)
    cc = kr
    T.wv("h")
    FL = env("FL", 2)
    def flag():
        T.wv("u")
        a.e("s_mov_b64 exec, 1"); T.vm(f"buffer_store_dword v{t}, v{ZZ}, s[56:59], s44 offen {SC}"); a.e("s_mov_b64 exec, -1")
        a.e("s_cmp_lg_u32 s30, 5"); a.e("s_cbranch_scc1 KV_n3")
        a.e("s_lshl_b32 s36, s2, 14"); a.e(f"s_add_u32 s36, s36, {PRB}"); a.e(f"v_lshrrev_b32 v{t2}, 3, v1"); a.e(f"v_mul_u32_u24 v{t2}, {8192 - 128}, v{t2}"); a.e(f"v_add_u32 v{t2}, v{t2}, v2")
        a.e("s_mov_b64 exec, 0xffff"); a.e(f"buffer_store_dwordx4 {vr(z,4)}, v{t2}, s[56:59], s36 offen {SC}"); a.e("s_mov_b64 exec, -1")
        a.e("KV_n3:")
        mstamp(a)
    for it in range(3):
        if it == FL: flag()
        D = d + 6 * it; c0 = cc + 12 * it; c1 = c0 + 4; c2 = c0 + 8
        for k in range(4):
            a.e(f"v_alignbit_b32 v{c0+k}, v{D+k+1}, v{D+k}, 16")
            a.e(f"v_mov_b32 v{c1+k}, v{D+k+1}")
            a.e(f"v_alignbit_b32 v{c2+k}, v{D+k+2}, v{D+k+1}, 16")
        if it == 2: a.e("s_mov_b64 exec, 0xf")
        ad, o0 = (hw2, 1024 * it) if it < 2 else (hw, 4096)
        a.e(f"ds_write_b128 v{ad}, {vr(c0,4)} offset:{o0}")
        a.e(f"ds_write_b128 v{ad}, {vr(c1,4)} offset:{HSTR+o0}")
        a.e(f"ds_write_b128 v{ad}, {vr(c2,4)} offset:{2*HSTR+o0}")
        a.e(f"ds_write_b128 v{ad}, {vr(D+2,4)} offset:{3*HSTR+o0}")
    a.e("s_mov_b64 exec, -1")
    if FL == 3: flag()
    a.e("s_waitcnt lgkmcnt(0)"); a.e("s_barrier")
    mstamp(a)
    w2(16)
def load_q(a):
    for j in range(4): a.e(f"buffer_load_dwordx2 {vr(RXA+2*j,2)}, v{RRO}, s[8:11], 0 offen offset:{128*(j>>1) + 32*(j&1)} {NTH}")
def chan_setup(a, wsg):
    a.e("s_and_b32 s38, s2, 7"); a.e("s_lshl_b32 s38, s38, 5"); a.e("s_lshr_b32 s39, s2, 3"); a.e("s_add_u32 s38, s38, s39")
    a.e("s_lshl_b32 s39, s38, 2"); a.e(f"s_add_u32 s39, s39, s{wsg}")
    a.e(f"s_mul_i32 s40, s{wsg}, {CHB}")

def touch(a, which, nbytes, r, i0=0, i1=99):
    n = nbytes // 1024 // 512
    a.e(f"s_mov_b64 s[48:49], s[{66+2*which}:{67+2*which}]")
    a.e("s_lshl_b32 s45, s2, 1"); a.e("s_and_b32 s50, s30, 1"); a.e("s_add_u32 s45, s45, s50"); a.e(f"s_mul_i32 s45, s45, {n*1024}")
    a.e(f"s_mov_b32 s50, {nbytes}"); a.e("s_mov_b32 s51, 0x20000")
    for i in range(n):
        if i and i % 4 == 0: a.e("s_add_u32 s45, s45, 4096")
        if i0 <= i < i1: a.e(f"buffer_load_dwordx4 {vr(r,4)}, v2, s[48:51], s45 offen offset:{(i&3)*1024}")
    return n

def cs_sum(a):
    N = 3584; CSEL, CFR, CAD, CACC, CO = 20, 48, 104, 108, 112
    X = a.lab("cs")
    a.e("s_cmp_lg_u32 s60, 0"); a.e(f"s_cbranch_scc1 {X}")
    a.e("s_and_b32 s35, s30, 1")
    nr, pos = w_bases(a, 3, CAD, 35, 7, CO, CO + 1)
    a.e("s_cmp_eq_u32 s28, s29"); a.e(f"s_cselect_b32 s36, 0, {CFG[3]['STB']}")
    for i in range(nr): a.e(f"v_add_u32 v{CAD+i}, s36, v{CAD+i}")
    for T in range(7):
        for kk in range(2):
            for h in range(2):
                r, imm = pos(T, kk, h)
                a.e(f"ds_read_b64_tr_b16 {vr(CFR+8*T+4*kk+2*h,2)}, v{CAD + r} offset:{imm}")
    a.e(f"v_and_b32 v{CO}, 15, v1"); a.e(f"v_mov_b32 v{CO+1}, 0x3f803f80")
    for T in range(7):
        a.e(f"v_cmp_eq_u32 vcc, {T}, v{CO}")
        for e in range(4): a.e(f"v_cndmask_b32 v{CSEL+4*T+e}, 0, v{CO+1}, vcc")
    a.e(f"v_and_b32 v{CO+2}, 48, v1"); a.e(f"v_lshl_add_u32 v{CO+2}, v{CO}, 6, v{CO+2}")
    a.e(f"v_mov_b32 v{CO+1}, 0x7f000000")
    a.e(f"v_cmp_gt_u32 vcc, 7, v{CO}"); a.e(f"v_cndmask_b32 v{CO+2}, v{CO+1}, v{CO+2}, vcc")
    a.srd(20, 4, 16 * N * 4, off=CSP3)
    a.e(f"s_mul_i32 s36, s28, {N*4}"); a.e("s_lshl1_add_u32 s35, s29, s35"); a.e(f"s_mul_i32 s35, s35, {7*64}"); a.e("s_add_u32 s35, s35, s36")
    a.e("s_waitcnt lgkmcnt(0)")
    for i in range(14): a.e(f"v_mfma_f32_16x16x32_bf16 {vr(CACC,4)}, {vr(CFR+4*i,4)}, {vr(CSEL+4*(i//2),4)}, {vr(CACC,4) if i else 0}")
    a.e(f"buffer_store_dwordx4 {vr(CACC,4)}, v{CO+2}, s[20:23], s35 offen {SC}")
    a.e(f"{X}:")
def cs_flag(a, d):
    a.e(f"s_and_b32 s{d}, s30, 1"); a.e(f"s_lshl_b32 s{d}, s{d}, 13"); a.e("s_lshl_b32 s53, s29, 7"); a.e(f"s_add_u32 s{d}, s{d}, s53"); a.e(f"s_add_u32 s{d}, s{d}, {F_CS}")
def cs_signal(a):
    X = a.lab("cs")
    a.e("s_cmp_lg_u32 s60, 0"); a.e(f"s_cbranch_scc1 {X}")
    cs_flag(a, 36)
    publish(a, None, 14, off=36, wait=None)
    a.e(f"{X}:")

def wr_addr(a, ad, t):
    a.e(f"v_lshrrev_b32 v{t}, 2, v1"); a.e(f"v_lshlrev_b32 v{ad}, 7, v{t}"); a.e(f"v_bfe_u32 v{t}, v{t}, 1, 2")
    a.e("s_and_b32 s35, s30, 2"); a.e(f"v_and_b32 v{t+1}, 1, v1"); a.e(f"v_or_b32 v{t+1}, s35, v{t+1}"); a.e(f"v_xor_b32 v{t}, v{t}, v{t+1}")
    a.e(f"v_lshl_add_u32 v{ad}, v{t}, 5, v{ad}"); a.e(f"v_and_b32 v{t}, 2, v1"); a.e(f"v_lshl_add_u32 v{ad}, v{t}, 2, v{ad}")
    a.e("s_and_b32 s35, s30, 1"); a.e("s_lshl_b32 s35, s35, 4")
    a.e(f"v_add_u32 v{ad}, s35, v{ad}"); a.e(f"v_add_u32 v{ad+1}, {64*KB}, v{ad}"); a.e(f"v_add_u32 v{ad+2}, {128*KB}, v{ad}")
    assert WST == 3 * 8192
def wreg(j, kk): return WR0 + 16 * (j & 7) + 8 * kk + 4 * (j >> 3)
def wr_read(a, ad, js, slots=None):
    for j, x in zip(js, slots or js):
        for kk in range(2):
            for h in range(2): a.e(f"ds_read_b64_tr_b16 {vr(wreg(j,kk)+2*h,2)}, v{ad+((x+3)>>3)} offset:{((x+3)&7)*8192 + (32*kk+16*h)*128}")

def front_b(a):
    pt, vd = 6, 8
    wr_addr(a, WAD, 10)
    a.e("s_and_b32 s36, s30, 3"); a.e("s_lshl_b32 s36, s36, 14"); a.e("s_lshl_b32 s48, s29, 7"); a.e("s_add_u32 s48, s48, s36")
    a.e("s_cmp_lg_u32 s30, 5"); a.e("s_cbranch_scc1 FB_np"); a.e(f"s_waitcnt vmcnt({16 - NRAW})")
    a.e("s_lshl_b32 s42, s2, 14"); a.e(f"s_add_u32 s42, s42, {PRB}")
    for i in range(2):
        a.e("s_memtime s[34:35]"); a.e("s_waitcnt lgkmcnt(0)")
        a.e(f"s_load_dword s32, s[4:5], s42 offset:{i * 8192} glc"); a.e("s_waitcnt lgkmcnt(0)")
        a.e("s_memtime s[40:41]"); a.e("s_waitcnt lgkmcnt(0)")
        a.e(f"s_sub_u32 s{46+i}, s40, s34")
    a.e("s_cmp_lt_u32 s47, s46"); a.e("s_cselect_b32 s45, 1, 0")
    a.e("s_lshr_b32 s46, s28, 2"); a.e("s_xor_b32 s45, s45, s46"); a.e("s_lshr_b32 s46, s2, 7"); a.e("s_xor_b32 s45, s45, s46"); a.e("s_and_b32 s45, s45, 1"); a.e("s_lshl_b32 s45, s45, 1")
    a.e("FB_np:")
    group_off(a, 37, 28); a.e("s_andn2_b32 s37, s37, 0x2000"); a.e("s_lshl_b32 s43, s29, 7"); a.e("s_add_u32 s37, s37, s43"); a.e(f"s_add_u32 s37, s37, {oSM}")
    a.e(f"s_add_u32 s43, s43, {F_CS}"); a.e(f"v_mov_b32 v{RYF}, s52")
    a.e(f"v_and_b32 v{RYF+1}, 1, v1"); a.e(f"v_lshlrev_b32 v{RYF+1}, 13, v{RYF+1}"); a.e(f"v_bfe_u32 v{RYF+2}, v1, 1, 1"); a.e(f"v_lshl_add_u32 v{RYF+1}, v{RYF+2}, 26, v{RYF+1}")
    a.e(f"v_lshrrev_b32 v{RYF+2}, 2, v1"); a.e(f"v_lshl_add_u32 v{RYF+1}, v{RYF+2}, 11, v{RYF+1}")
    a.e("s_waitcnt vmcnt(0) lgkmcnt(0)")
    a.e("s_barrier")
    wr_read(a, WAD, range(NRAW, 16))
    a.e("s_waitcnt lgkmcnt(0)")
    a.e("s_barrier")
    mstamp(a)
    a.e("s_cmp_lg_u32 s30, 5"); a.e("s_cbranch_scc1 FB_na")
    front_arrive(a)
    a.e("FB_na:")
    if env('WT', 6) == 6:
        for k in range(2): a.e(f"buffer_load_dwordx4 {vr(12,4)}, v2, s[80:83], s50 offen"); a.e("s_sub_u32 s50, s50, 4096")
    load_q(a)
    a.e(f"s_setprio {env('FPRIO', 0)}")
    def raw(srd, reg, js):
        for j in js:
            a.e(f"s_add_u32 s36, s48, {j << 17}")
            a.e(f"buffer_load_dwordx4 {vr(reg(j,0),4)}, v{WVB[1]}, s[{srd}:{srd+3}], s36 offen"); a.e("s_add_u32 s36, s36, 65536")
            a.e(f"buffer_load_dwordx4 {vr(reg(j,1),4)}, v{WVB[1]}, s[{srd}:{srd+3}], s36 offen")
    NW2 = env("NW2", 2)
    a.e("s_cmp_lg_u32 s30, 4"); a.e("s_cbranch_scc1 FB_ni")
    a.e("s_mov_b64 exec, 0xfff"); a.e(f"buffer_store_dword v{RYF}, v{RYF+1}, s[56:59], s37 offen {SC}")
    a.e("s_cmp_lg_u32 s28, 0"); a.e("s_cbranch_scc1 FB_n2")
    a.e("s_mov_b64 exec, 3"); a.e(f"buffer_store_dword v{RYF}, v{RYF+1}, s[56:59], s43 offen {SC}")
    a.e("FB_n2:"); a.e("s_mov_b64 exec, -1")
    a.e("FB_ni:")
    raw(88, wreg, range(NW2))
    w1_dma(a, W1A[:5])
    a.e(f"s_waitcnt vmcnt({10 + 2 * NW2})"); lds_inc(a, LW + 8, pt)
    raw(80, w1raw, W1A[5:])
    a.e("s_xor_b32 s48, s48, 128")
    FE = env("FE", 3)
    raw(88, wreg, range(NW2, NRAW - FE))
    a.e("s_and_b32 s42, s30, 3"); a.e("s_lshl_b32 s42, s42, 13"); a.e(f"s_add_u32 s42, s42, {F_FRONT}")
    a.e(f"v_lshlrev_b32 v{vd}, 7, v1")
    a.e(f"buffer_load_dword v{vd+2}, v{vd}, s[56:59], s42 offen {SC}")
    raw(88, wreg, range(NRAW - FE, NRAW))
    a.e("s_setprio 0")
    mstamp(a)
    pt = vd + 2
    a.e("s_mov_b32 s53, 0"); a.e(f"s_waitcnt vmcnt({2 * FE})")
    a.e("R_fp:")
    a.e(f"v_and_b32 v{pt+1}, -3, v{pt}"); a.e(f"v_cmp_eq_u32 vcc, s52, v{pt+1}")
    a.e("s_cmp_eq_u64 vcc, exec"); a.e("s_cbranch_scc1 R_fq")
    a.e(f"s_sleep {FSLEEP}")
    a.e(f"buffer_load_dword v{pt}, v{vd}, s[56:59], s42 offen {SC}"); a.e("s_waitcnt vmcnt(0)")
    a.e("s_add_u32 s53, s53, 1"); a.e("s_cmp_lt_u32 s53, s61"); a.e("s_cbranch_scc1 R_fp")
    a.e("s_mov_b32 s61, 0")
    a.e("R_fq:")
    a.e(f"v_cmp_ne_u32 vcc, s52, v{pt}"); a.e("s_bcnt1_i32_b64 s36, vcc"); a.e(f"v_mov_b32 v{pt}, s36"); a.e(f"v_mov_b32 v{pt+1}, {LW+28}")
    a.e("s_mov_b64 exec, 1"); a.e(f"ds_add_u32 v{pt+1}, v{pt}"); a.e("s_mov_b64 exec, -1")
def w1_dma(a, js, setup=True):
    if setup:
        a.e("s_and_b32 s49, s30, 3"); a.e("s_lshl_b32 s36, s49, 14"); a.e("s_lshl_b32 s48, s29, 7"); a.e("s_add_u32 s48, s48, s36"); a.e("s_lshl_b32 s49, s49, 10")
        a.e("s_xor_b32 s48, s48, 128")
    for j in js:
        a.e(f"s_add_u32 s36, s48, {j << 17}")
        for kk in range(2):
            a.e(f"s_add_u32 m0, s49, {WST + j * 8192 + 4096 * kk}")
            a.e(f"buffer_load_dwordx4 v{WVB[1]}, s[80:83], s36 offen lds")
            if kk == 0: a.e("s_add_u32 s36, s36, 65536")
def w1raw(j, kk):
    return (28, 36, 52, 60, RXB)[W1A[5:].index(j)] + 4 * kk
def w_dump(a, reg, t, js, slots=None):
    a.e("s_and_b32 s36, s30, 3"); a.e("s_lshl_b32 s36, s36, 10"); a.e(f"v_add_u32 v{t}, s36, v2"); a.e(f"v_add_u32 v{t+1}, {64*KB}, v{t}")
    if max(slots or js) > 12: a.e(f"v_add_u32 v{t+2}, {128*KB}, v{t}")
    for j, x in zip(js, slots or js):
        for kk in range(2): a.e(f"ds_write_b128 v{t+((x+3)>>3)}, {vr(reg(j,kk),4)} offset:{((x+3)&7)*8192 + 4096*kk}")

CV = {}
def conv_setup(a):
    v = VA(RXB); lane = 1
    t = v(); t2 = v(); t3 = v(); uo = v(); aa = v(); ba = v(); J = v(); G = v(); fl = v(); ta = v(); dop = v(4, 4); ya = v(4, 1)
    assert v.hi <= RB1
    CV.update(ta=ta, ya=ya, uo=uo, aa=aa, ba=ba, J=J, G=G, fl=fl, dop=dop, t=t)
    a.e("s_lshl_b32 s36, s38, 14"); a.e(f"s_add_u32 s36, s36, {UT}")
    a.e("s_add_u32 s20, s4, s36"); a.e("s_addc_u32 s21, s5, 0"); a.e("s_mov_b32 s22, 16384"); a.e("s_mov_b32 s23, 0x20000")
    a.e("s_lshl_b32 s36, s30, 6"); a.e(f"v_lshrrev_b32 v{t}, 2, v{lane}"); a.e(f"v_and_b32 v{uo}, 48, v2"); a.e(f"v_lshl_add_u32 v{uo}, v{t}, 8, v{uo}"); a.e(f"v_add_u32 v{uo}, s36, v{uo}")
    a.e("s_lshr_b32 s36, s39, 1"); a.e("s_lshl_b32 s36, s36, 2"); a.e("s_load_dword s41, s[76:77], s36")
    a.e(f"v_and_b32 v{J}, 15, v{lane}"); a.e(f"v_lshrrev_b32 v{G}, 4, v{lane}")
    a.e(f"v_and_b32 v{t}, 3, v{J}"); a.e(f"v_mul_u32_u24 v{aa}, {HSTR}, v{t}")
    a.e(f"v_lshl_add_u32 v{aa}, v{G}, 4, v{aa}"); a.e(f"v_lshrrev_b32 v{t}, 2, v{J}"); a.e(f"v_lshl_add_u32 v{aa}, v{t}, 3, v{aa}")
    a.e(f"v_add_u32 v{aa}, s40, v{aa}")
    a.e(f"v_sub_u32 v{t}, 15, v{J}"); a.e(f"v_lshlrev_b32 v{ba}, 5, v{t}"); a.e(f"v_add_u32 v{ba}, s40, v{ba}")
    a.e(f"v_lshl_add_u32 v{ba}, v{G}, 4, v{ba}")
    a.e("s_lshr_b32 s36, s38, 2"); a.e("s_lshl_b32 s36, s36, 12"); a.e(f"s_add_u32 s36, s36, {F_KVT}")
    a.e(f"v_lshlrev_b32 v{fl}, 7, v{lane}"); a.e(f"v_add_u32 v{fl}, s36, v{fl}")
def conv_setup2(a):
    t, J, G, ta, ya = [CV[k] for k in "t J G ta ya".split()]; lane = 1
    a.e(f"s_mul_i32 s36, s30, {CHB+64}")
    a.e(f"v_lshrrev_b32 v{t}, 1, v{J}"); a.e(f"v_mul_u32_u24 v{ya}, 72, v{t}"); a.e(f"v_and_b32 v{t}, 1, v{J}"); a.e(f"v_lshl_add_u32 v{ya}, v{t}, 4, v{ya}")
    a.e(f"v_lshl_add_u32 v{ya}, v{G}, 2, v{ya}"); a.e(f"v_add_u32 v{ya}, s36, v{ya}")
    for c_ in range(1, 4): a.e(f"v_add_u32 v{ya+c_}, {c_*16*72}, v{ya}")
    a.e(f"v_bfe_u32 v{t}, v{lane}, 2, 2"); a.e(f"v_mul_u32_u24 v{ta}, {CHB+64}, v{t}")
    a.e(f"v_mul_u32_u24 v{t}, 72, v{G}"); a.e(f"v_add_u32 v{ta}, v{ta}, v{t}")
    a.e(f"v_and_b32 v{t}, 3, v{lane}"); a.e(f"v_lshl_add_u32 v{ta}, v{t}, 3, v{ta}")
    a.e(f"s_mul_i32 s36, s30, {16*72}"); a.e(f"v_add_u32 v{ta}, s36, v{ta}")
def conv_diag(a):
    t, J, G, dop = CV["t"], CV["J"], CV["G"], CV["dop"]; t2, t3 = t + 1, t + 2
    a.e("s_bitcmp1_b32 s39, 0"); a.e("s_cselect_b32 s36, 0, 16"); a.e("s_lshl_b32 s41, s41, s36"); a.e("s_and_b32 s41, s41, 0xffff0000"); a.e("s_lshr_b32 s36, s41, 16")
    a.e(f"v_lshl_add_u32 v{t}, v{G}, 3, v{J}"); a.e(f"v_sub_u32 v{t}, 15, v{t}"); a.e(f"v_and_b32 v{t2}, 1, v{t}"); a.e(f"v_cmp_eq_u32 vcc, 1, v{t2}")
    a.e(f"v_mov_b32 v{t2}, s36"); a.e(f"v_mov_b32 v{t3}, s41"); a.e(f"v_cndmask_b32 v{t2}, v{t2}, v{t3}, vcc"); a.e(f"v_ashrrev_i32 v{t}, 1, v{t}")
    for i in range(4): a.e(f"v_cmp_eq_u32 vcc, {i}, v{t}"); a.e(f"v_cndmask_b32 v{dop+i}, 0, v{t2}, vcc")

def front_conv(a):
    v = VA(6, skip=True); lane = 1; l16 = 2
    t = v(); pt = v(4, 2)
    uo, aa, ba, J, G, fl, dop = [CV[k] for k in "uo aa ba J G fl dop".split()]
    ya, ta = CV["ya"], CV["ta"]
    acc = v(32, 4)
    fa = v(64, 4); fb = v(64, 4)
    def rdA(p, o):
        return [f"ds_read_b64 {vr(fa+32*p+4*s_+2*h,2)}, v{aa} offset:{64*(o+8*s_) + 32 + 8*h}" for s_ in range(8) for h in range(2)]
    def rdB(p, o):
        return [f"ds_read_b128 {vr(fb+32*p+4*k,4)}, v{ba} offset:{UOFF + 3584 - 512*k + 64*o}" for k in range(8)]
    a.e("s_lshl_b32 s44, s30, 12"); a.e("s_mov_b32 s45, 0x07060302")
    a.e("s_cmp_lg_u32 s30, 0"); a.e("s_cbranch_scc1 CV_w")
    poll_core(a, pt, fl, 0xffffffff, nap=env("NAPK", 5))
    a.e("CV_w:")
    a.e(f"s_add_u32 m0, s40, {UOFF}"); a.e("s_mov_b32 s36, 0")
    a.e("s_waitcnt vmcnt(0)"); a.e("s_barrier")
    mstamp(a)
    for it in range(4):
        a.e(f"buffer_load_dwordx4 v{uo}, s[20:23], s36 offen offset:{1024*it} {SC} lds")
        if it < 3: a.e("s_add_u32 s36, s36, 3072")
    a.e("s_barrier")
    load_q(a)
    for x in rdA(0, 0): a.e(x)
    a.e("s_waitcnt vmcnt(4)")
    mstamp(a)
    for x in rdB(0, 0): a.e(x)
    a.e("s_waitcnt lgkmcnt(0)")
    for c_ in range(8): a.e(f"v_mfma_f32_16x16x32_bf16 {vr(acc+4*c_,4)}, {vr(dop,4)}, {vr(fb+4*c_,4)}, 0")
    def step(p, nxt, tail):
        a.e("s_waitcnt lgkmcnt(0)")
        for i, (c_, s_) in enumerate([(c_, s_) for s_ in range(8) for c_ in range(s_, 8)]):
            a.e(f"v_mfma_f32_16x16x32_bf16 {vr(acc+4*c_,4)}, {vr(fa+32*p+4*s_,4)}, {vr(fb+32*p+4*(c_-s_),4)}, {vr(acc+4*c_,4)}")
            if nxt: a.e(nxt.pop(0))
            elif tail: a.e(tail.pop(0))
        assert not nxt and not tail
    NU = env("NU", 3)
    adv = [f"v_add_u32 v{aa}, 128, v{aa}", f"v_add_u32 v{ba}, 128, v{ba}", "s_add_u32 s43, s43, 1"]
    a.e("s_mov_b32 s43, 0")
    if NU:
        a.e("CV_r:")
        for p in range(2):
            rd_ = rdB(1 - p, p + 1) + rdA(1 - p, p + 1); HP = env("HP", 14)
            step(p, rd_[:HP], [])
            for x in rd_[HP:]: a.e(x)
        for x in adv + [f"s_cmp_lt_u32 s43, {NU}"]: a.e(x)
        a.e("s_cbranch_scc1 CV_r")
    if NU < 4:
        a.e("CV_l:")
        step(0, rdB(1, 1) + rdA(1, 1), [])
        step(1, rdB(0, 2) + rdA(0, 2), adv + ["s_cmp_lt_u32 s43, 4"])
        a.e("s_cbranch_scc1 CV_l")
    mstamp(a)
    a.e("s_bitcmp1_b32 s30, 0"); a.e("s_waitcnt lgkmcnt(0)"); a.e("s_cbranch_scc1 CV_o")
    for odd in range(2):
        for c_ in range(8):
            A = acc + 4 * c_
            for e in range(2):
                if odd: a.e(f"v_cvt_pk_bf16_f32 v{A+e}, v{A+e}, v{A+2+e}")
                else: a.e(f"v_perm_b32 v{A+e}, v{A+2+e}, v{A+e}, s45")
            for e in range(0 if odd else 2): a.e(f"v_or_b32 v{A+e}, 0x10001, v{A+e}")
            a.e(f"ds_write2_b32 v{ya+c_//2}, v{A}, v{A+1} offset0:{144*(c_&1)} offset1:{144*(c_&1)+8}")
        if not odd: a.e("s_branch CV_e"); a.e("CV_o:")
    a.e("CV_e:")
    lbar(a, 2, pt)
    for i in range(8): a.e(f"ds_read_b64_tr_b16 {vr(fa+2*i,2)}, v{ta} offset:{288*(i//2) + 32*(i&1)}")
    for i in range(4):
        a.e(f"s_waitcnt lgkmcnt({6-2*i})")
        a.e(f"buffer_store_dwordx4 {vr(fa+4*i,4)}, v{l16}, s[20:23], s44 offen offset:{1024*i} {SC}")
    assert v.hi <= 250

def r_addr(a):
    t, t2, I, fo, ro, yo, xo = RT, RT + 1, RI, RFO, RRO, RYO, RXO
    a.e(f"v_and_b32 v{I}, 7, v0")
    a.e(f"v_lshrrev_b32 v{t}, 6, v0"); a.e(f"v_lshlrev_b32 v{t}, 4, v{t}"); a.e(f"v_bfe_u32 v{t2}, v0, 3, 3"); a.e(f"v_add_u32 v{t}, v{t}, v{t2}")
    a.e("s_lshr_b32 s78, s29, 1"); a.e("s_lshl_b32 s78, s78, 16"); a.e("s_and_b32 s79, s29, 1"); a.e("s_lshl_b32 s79, s79, 7"); a.e("s_add_u32 s78, s78, s79")
    a.e("s_lshr_b32 s79, s30, 1"); a.e("s_lshl_b32 s79, s79, 13"); a.e("s_add_u32 s78, s78, s79")
    a.e(f"v_lshlrev_b32 v{fo}, 8, v{t}"); a.e(f"v_lshl_add_u32 v{fo}, v{I}, 4, v{fo}"); a.e(f"v_add_u32 v{fo}, s78, v{fo}")
    a.e("s_lshl_b32 s78, s28, 7"); a.e("s_lshl_b32 s79, s29, 3"); a.e("s_add_u32 s78, s78, s79")
    a.e(f"v_add_u32 v{yo}, s78, v{I}"); a.e(f"v_lshlrev_b32 v{ro}, 11, v{yo}")
    rowaddr(a, xo, yo, t2); a.e(f"v_lshl_add_u32 v{xo}, v{t}, 4, v{xo}")
    a.e(f"v_lshrrev_b32 v{t2}, 2, v{t}"); a.e(f"v_lshlrev_b32 v{t2}, 3, v{t2}"); a.e(f"v_and_b32 v{t}, 3, v{t}"); a.e(f"v_add_u32 v{t}, v{t}, v{t2}")
    a.e(f"v_lshl_add_u32 v{ro}, v{t}, 3, v{ro}")
    a.e(f"v_lshlrev_b32 v{yo}, 3, v{yo}"); a.e(f"v_lshl_add_u32 v{yo}, v{t}, 14, v{yo}")
def y_loads(): return [f"s_mov_b32 s78, {(16*j + 4*hh)*16384}\nbuffer_load_dwordx2 {vr(RYY+4*j+2*hh,2)}, v{RYO}, s[80:83], s78 offen {SC}" for j in range(2) for hh in range(2)]
def load_y(a):
    a.srd(80, 4, 4 * MB, off=Y)
    for x in y_loads(): a.e(x)
def r_pre(a):
    r_addr(a)
    load_y(a)

def w3_setup(a):
    w_srd(a, 3, 8)
    a.e("s_add_u32 s89, s29, 1"); a.e("s_and_b32 s89, s89, 15"); a.e("s_cmp_lg_u32 s28, s29"); a.e("s_cselect_b32 s89, s28, s89")
    a.e("s_and_b32 s90, s30, 3"); a.e("s_mul_i32 s36, s29, 448")
    for d, r in ((88, 29), (89, 89)): a.e(f"s_lshl2_add_u32 s{d}, s{r}, s90"); a.e(f"s_mul_i32 s{d}, s{d}, {16*7168}"); a.e(f"s_add_u32 s{d}, s{d}, s36")
    a.e("s_mul_i32 s90, s90, 7168")
def w3_piece(T, k, i0, i1):
    for i in range(i0, i1):
        T.e(f"s_add_u32 m0, s90, {CFG[3]['WB'] + k*CFG[3]['STB'] + 1024*i}"); T.vm(f"buffer_load_dwordx4 v{WVB[3]+i}, s[8:11], s{88+k} offen lds", "w")
def r_stage(a, pre=False):
    v = VA(6)
    t = v(); t2 = v(); I = RI; fo = RFO; pt = v(4, 2)
    xa = RXA; xb = RXB; yy = RYY; yf = RYF; x = v(16, 2); w = v(16, 2); tmp = v()
    S = v(2, 2); pp = v(2, 2); qq = v(2, 2); st = v(16, 4); mean = v(2, 2); rs = mean + 1; var = v(); sw = v(); sr = v(); wad = v(3, 2)
    assert v.hi <= RB0 and wad == WAD, v.hi
    def part(src, n, packed=False):
        if packed:
            a.e("s_mov_b32 s36, 0x3f803f80")
            for i in range(8):
                a.e(f"v_dot2_f32_bf16 v{pp+(i&1)}, v{src+i}, s36, {f'v{pp+(i&1)}' if i > 1 else 0}"); a.e(f"v_dot2_f32_bf16 v{qq+(i&1)}, v{src+i}, v{src+i}, {f'v{qq+(i&1)}' if i > 1 else 0}")
            a.e("s_nop 2")
        else:
            a.e(f"v_pk_add_f32 {vr(pp,2)}, {vr(src,2)}, {vr(src+2,2)}"); a.e(f"v_pk_mul_f32 {vr(qq,2)}, {vr(src,2)}, {vr(src,2)}")
        for i in range(1, 1 if packed else 8):
            if i > 1: a.e(f"v_pk_add_f32 {vr(pp,2)}, {vr(pp,2)}, {vr(src+2*i,2)}")
            a.e(f"v_pk_fma_f32 {vr(qq,2)}, {vr(src+2*i,2)}, {vr(src+2*i,2)}, {vr(qq,2)}")
        a.e(f"v_add_f32 v{S}, v{pp}, v{pp+1}"); a.e(f"v_add_f32 v{S+1}, v{qq}, v{qq+1}")
        for k in range(2): a.e(f"v_add_f32_dpp v{S+k}, v{S+k}, v{S+k} row_ror:8 row_mask:0xf bank_mask:0xf")
        for op in ("v_permlane16_swap_b32", "v_permlane32_swap_b32"):
            for k in range(2): a.e(f"v_mov_b32 v{pp+k}, v{S+k}")
            for k in range(2): a.e(f"{op} v{S+k}, v{pp+k}")
            a.e(f"v_pk_add_f32 {vr(S,2)}, {vr(S,2)}, {vr(pp,2)}")
        a.e(f"ds_write_b64 v{sw}, {vr(S,2)} offset:{n*1536}")
    def comb(n):
        for k in range(4): a.e(f"ds_read_b128 {vr(st+4*k,4)}, v{sr} offset:{n*1536+16*k}")
        a.e("s_waitcnt lgkmcnt(0)")
        for k in range(4): a.e(f"v_pk_add_f32 {vr(st+4*k,2)}, {vr(st+4*k,2)}, {vr(st+4*k+2,2)}")
        a.e(f"v_pk_add_f32 {vr(st,2)}, {vr(st,2)}, {vr(st+4,2)}"); a.e(f"v_pk_add_f32 {vr(st+8,2)}, {vr(st+8,2)}, {vr(st+12,2)}")
        a.e(f"v_pk_add_f32 {vr(st,2)}, {vr(st,2)}, {vr(st+8,2)}")
        a.e(f"v_mul_f32 v{mean}, {f32(1/1024)}, v{st}"); a.e(f"v_mul_f32 v{var}, {f32(1/1024)}, v{st+1}")
        a.e(f"v_fma_f32 v{var}, -v{mean}, v{mean}, v{var}"); a.e(f"v_max_f32 v{var}, 0, v{var}")
    def norm():
        if env("RSQ", 1): a.e(f"v_add_f32 v{var}, {f32(1e-5)}, v{var}"); a.e(f"v_rsq_f32 v{rs}, v{var}")
        else: ln_finish(a, mean, var, rs)
        a.e(f"v_mul_f32 v{mean}, -v{mean}, v{rs}")
        for i in range(8): a.e(f"v_pk_fma_f32 {vr(w+2*i,2)}, {vr(x+2*i,2)}, {vr(mean,2)}, {vr(mean,2)} op_sel:[0,1,0] op_sel_hi:[1,1,0]")
    a.e(f"v_and_b32 v{I}, 7, v0"); a.e(f"v_lshlrev_b32 v{sr}, 6, v{I}"); a.e(f"v_add_u32 v{sr}, {AUX+2048}, v{sr}")
    a.e(f"s_lshl_b32 s35, s30, 3"); a.e(f"v_add_u32 v{sw}, s35, v{sr}")
    if pre:
        for i in range(8): unpack(a, x + 2 * i, x + 2 * i + 1, xa + i)
        part(x, 0)
        return
    wr_addr(a, wad, t)
    a.e(f"s_cmp_eq_u32 s60, 0"); a.e(f"s_cbranch_scc1 R_l0")
    lsrd(a, 12, oX1P, XSZ, prev=True); x3_srd(a, 20)
    data_wait(a, [f"buffer_load_dwordx4 {vr(xa+4*j,4)}, v{fo}, s[12:15], 0 offen offset:{2048*j} {SC}" for j in range(2)], list(range(xa, xa + 8)), t,
              lambda: (a.e("s_waitcnt vmcnt(2)"), [unpack(a, yf + 2 * i, yf + 2 * i + 1, yy + i) for i in range(8)]), nap=env("NAP4", 2))
    mstamp(a)
    if env("DOT", 1): part(xa, 0, True)
    for i in range(8): unpack(a, x + 2 * i, x + 2 * i + 1, xa + i)
    if not env("DOT", 1): part(x, 0)
    a.e("s_waitcnt lgkmcnt(0)"); a.e("s_barrier")
    comb(0)
    norm()
    a.e("s_branch R_s2")
    a.e("R_l0:")
    def shadow():
        a.e("s_cmp_lt_u32 s30, 4"); a.e("s_cbranch_scc1 R_f2")
        w_dump(a, w1raw, pt, W1A[5:])
        a.e("R_f2:")
        a.e(f"v_mov_b32 v{t}, {LW+28}"); a.e(f"ds_read_b32 v{t2}, v{t}")
        comb(0)
        norm()
        a.e(f"v_readfirstlane_b32 s94, v{t2}")
        if STAMP: a.e("s_mov_b32 s95, s94")
        a.e(f"s_cmp_gt_u32 s94, {NVOTE // 2}"); a.e("s_cselect_b32 s94, 1, 0")
        group_off(a, 55, 28)
        a.e("s_add_u32 s62, s4, s55"); a.e("s_addc_u32 s63, s5, 0")
        a.e("s_sub_u32 s36, s28, 1"); a.e("s_max_i32 s36, s36, 0"); group_off(a, 92, 36); a.e("s_sub_u32 s92, s92, s55")
        a.e("s_add_u32 s36, s28, 1"); a.e("s_min_u32 s36, s36, 15"); group_off(a, 93, 36); a.e("s_sub_u32 s93, s93, s55")
        a.e(f"s_add_u32 s55, s55, {oSM}")
        x3_srd(a, 20)
    shadow()
    def w2d():
        a.e("s_cmp_lt_u32 s30, 4"); a.e("s_cbranch_scc1 R_f3")
        a.e("s_waitcnt vmcnt(4)")
        w_dump(a, wreg, pt, range(NRAW), W2S)
        a.e("R_f3:")
    a.srd(80, 4, 4 * MB, off=Y)
    mstamp(a)
    data_wait(a, y_loads(), list(range(yy, yy + 8)), t, w2d, nap=env("NAPY", 4))
    mstamp(a)
    for i in range(8): unpack(a, yf + 2 * i, yf + 2 * i + 1, yy + i)
    a.e("R_s2:")
    for i in range(8):
        a.e(f"v_pk_fma_f32 {vr(x+2*i,2)}, {vr(w+2*i,2)}, {vr(yf+2*i,2)}, {vr(x+2*i,2)}")
        if i % 4 == 3:
            for k in range(i - 3, i + 1): a.e(f"v_cvt_pk_bf16_f32 v{xa+k}, v{x+2*k}, v{x+2*k+1}")
            a.e(f"buffer_store_dwordx4 {vr(xa+i-3,4)}, v{RXO}, s[20:23], 0 offen offset:{128*(i//4)} {SC}")
    part(x, 1)
    a.e("s_waitcnt lgkmcnt(0)"); a.e("s_barrier")
    a.e("s_cmp_ge_u32 s30, 4"); a.e("s_cbranch_scc1 LOADERS")
    a.e("s_cmp_lg_u32 s30, 3"); a.e("s_cbranch_scc1 R_nl")
    comb(1)
    outv = w; m4 = w + 4; v4_ = w + 5
    a.e(f"v_mov_b32 v{m4}, v{mean}"); a.e(f"v_mov_b32 v{v4_}, v{var}")
    ln_finish(a, mean, var, rs)
    a.e(f"v_sub_f32 v{m4}, v{m4}, v{mean}"); a.e(f"v_mul_f32 v{m4}, v{m4}, v{rs}")
    a.e(f"v_mul_f32 v{v4_}, v{v4_}, v{rs}"); a.e(f"v_mul_f32 v{v4_}, v{v4_}, v{rs}")
    ln_finish(a, m4, v4_, None)
    a.e(f"v_cvt_pk_bf16_f32 v{outv}, v{mean}, v{var}"); a.e(f"v_cvt_pk_bf16_f32 v{outv+2}, v{m4}, v{v4_}")
    a.e(f"v_mov_b32 v{outv+1}, s52"); a.e(f"v_mov_b32 v{outv+3}, s52")
    lns_srd(a, 24)
    a.e("s_lshl_b32 s36, s28, 4"); a.e("s_add_u32 s36, s36, s29"); a.e("s_lshl_b32 s36, s36, 7")
    a.e("s_mov_b64 exec, 0xff")
    a.e(f"buffer_store_dwordx4 {vr(outv,4)}, v2, s[24:27], s36 offen {SC}")
    a.e("s_mov_b64 exec, -1")
    a.e("R_nl:")
    a.e(f"v_mov_b32 v{t}, 1"); a.e(f"v_mov_b32 v{t2}, 0")
    a.e("s_cmp_eq_u32 s30, 3"); a.e("s_waitcnt vmcnt(1)"); a.e("s_cbranch_scc1 R_n2")
    a.e("s_waitcnt vmcnt(0)")
    a.e("R_n2:")
    a.e("s_barrier")
    a.e("s_cmp_lg_u32 s30, 0"); a.e("s_cbranch_scc1 R_n3")
    a.e("s_mov_b64 exec, 1"); a.e(f"buffer_atomic_add v{t}, v{t2}, s[56:59], s55 offen {SC}"); a.e("s_mov_b64 exec, -1")
    a.e("R_n3:")
    wr_read(a, wad, W1A)
def rot_init(a, which):
    a.e("s_mov_b32 s44, s29" if which == 3 else "s_mov_b32 s44, 0")
def stage3(b, d):
    b.e("s_cmp_eq_u32 s44, s47"); b.e(f"s_cselect_b32 s{d}, s46, s44")
def stage3_init(a):
    a.e("s_add_u32 s46, s29, 1"); a.e("s_and_b32 s46, s46, 15"); a.e("s_cmp_eq_u32 s28, s29"); a.e("s_cselect_b32 s47, s46, s28")
def rot_next(a, which):
    a.e("s_add_u32 s44, s44, 1")
    if which != 4: a.e("s_and_b32 s44, s44, 15")
def kb4(a, d, lw):
    a.e("s_lshl_b32 s45, s44, 1"); a.e(f"s_add_u32 s45, s45, {lw}"); a.e("s_sub_u32 s45, s45, 32")
    a.e("s_mul_i32 s46, s45, 86"); a.e("s_lshr_b32 s46, s46, 8")
    a.e("s_mul_i32 s47, s46, 3"); a.e("s_sub_u32 s47, s45, s47"); a.e("s_lshl_b32 s47, s47, 2"); a.e("s_lshr_b32 s47, 0x362, s47"); a.e("s_and_b32 s47, s47, 7")
    a.e("s_cmp_ge_u32 s44, 10"); a.e("s_cselect_b32 s45, 9, 2"); a.e("s_cselect_b32 s51, 1, 0"); a.e("s_sub_u32 s45, s44, s45")
    a.e("s_cmp_lt_u32 s44, 3"); a.e("s_cselect_b32 s45, 0, s45"); a.e("s_cselect_b32 s51, s44, s51")
    a.e(f"s_lshl2_add_u32 s51, {lw}, s51")
    a.e("s_cmp_lt_u32 s44, 17"); a.e("s_cselect_b32 s47, s51, s47"); a.e("s_cselect_b32 s46, s45, s46")
    a.e("s_add_u32 s46, s46, s33"); a.e("s_and_b32 s46, s46, 7"); a.e("s_mul_i32 s46, s46, 7"); a.e(f"s_add_u32 s{d}, s46, s47")
assert all((q * 86) >> 8 == q // 3 for q in range(24))
def w_lanes(a, which, t, t2):
    if 1 in which:
        R = WVB[1]
        a.e(f"v_lshrrev_b32 v{t}, 3, v1"); a.e(f"v_lshlrev_b32 v{R}, 11, v{t}")
        a.e(f"v_and_b32 v{t}, 6, v{t}"); a.e(f"v_and_b32 v{t2}, 7, v1"); a.e(f"v_xor_b32 v{t}, v{t}, v{t2}"); a.e(f"v_lshl_add_u32 v{R}, v{t}, 4, v{R}")
        return
    R = WVB[4]
    for p in range(2):
        a.e(f"v_lshrrev_b32 v{t}, 4, v1"); a.e(f"v_lshlrev_b32 v{R+p}, 11, v{t}")
        a.e(f"v_add_u32 v{t}, {4*p}, v{t}"); a.e(f"v_lshlrev_b32 v{t}, 1, v{t}"); a.e(f"v_and_b32 v{t2}, 15, v1"); a.e(f"v_xor_b32 v{t}, v{t}, v{t2}")
        a.e(f"v_lshl_add_u32 v{R+p}, v{t}, 4, v{R+p}")
    R = WVB[3]
    assert all((p * 2341) >> 16 == p // 28 for p in range(448))
    for ii in range(7):
        a.e(f"v_add_u32 v{t2}, {64*ii}, v1"); a.e(f"v_mul_u32_u24 v{t}, 2341, v{t2}"); a.e(f"v_lshrrev_b32 v{t}, 16, v{t}")
        a.e(f"v_mul_u32_u24 v{R+ii}, 28, v{t}"); a.e(f"v_sub_u32 v{t2}, v{t2}, v{R+ii}")
        a.e(f"v_mul_u32_u24 v{R+ii}, 7168, v{t}")
        a.e(f"v_lshrrev_b32 v{t}, 1, v{t}"); a.e(f"v_and_b32 v{t}, 2, v{t}"); a.e(f"v_xor_b32 v{t2}, v{t2}, v{t}")
        a.e(f"v_lshl_add_u32 v{R+ii}, v{t2}, 4, v{R+ii}")
def w_srd(a, which, d=12):
    c = CFG[which]
    a.e(f"s_mov_b64 s[{d}:{d+1}], s[{66+2*which}:{67+2*which}]")
    a.e(f"s_mov_b32 s{d+2}, {c['KBT'] * 32 * c['LDW']}"); a.e(f"s_mov_b32 s{d+3}, 0x20000")
def w_setup(a, which, pre=True):
    c = CFG[which]; STB = c["STB"]; BW = STB // 2
    w_srd(a, which)
    a.e("s_and_b32 s35, s30, 1")
    a.e(f"s_mul_i32 s38, s{29 if which != 4 else 33}, {c['RB']}")
    if which == 1: a.e("s_xor_b32 s38, s38, 128")
    if which != 4: a.e(f"s_mul_i32 s41, s35, {32*c['LDW']}"); a.e("s_add_u32 s38, s38, s41")
    if which == 4: a.e(f"s_mul_i32 s41, s31, {1792*c['LDW']}"); a.e("s_add_u32 s38, s38, s41")
    a.e(f"s_mul_i32 s41, s35, {BW}")
    if c["WB"]: a.e(f"s_add_u32 s41, s41, {c['WB']}")
    a.e("s_mov_b32 s42, 0"); rot_init(a, which)
    if not pre: return
    NP = c["NPRE"]
    a.e("s_mov_b32 s49, s44"); a.e(f"s_and_b32 s43, s28, {3 * env('WROT', 0)}"); a.e(f"s_mul_i32 s43, s43, {NP}"); a.e("s_lshr_b32 s43, s43, 2"); a.e("s_mov_b32 s50, 0")
    L = a.lab("wpre"); a.e(f"{L}:")
    a.e(f"s_mul_i32 s42, s43, {STB}"); a.e("s_add_u32 s44, s49, s43")
    w_issue(a, which, pace=PACES.get(which, PACE))
    a.e("s_add_u32 s43, s43, 1"); a.e(f"s_cmp_eq_u32 s43, {NP}"); a.e("s_cselect_b32 s43, 0, s43")
    a.e("s_add_u32 s50, s50, 1"); a.e(f"s_cmp_lt_u32 s50, {NP}"); a.e(f"s_cbranch_scc1 {L}")
    mstamp(a)
    a.e(f"s_mov_b32 s42, {(NP % c['NW']) * STB}"); a.e(f"s_add_u32 s44, s49, {NP}")
def w_parts(which):
    c = CFG[which]; STB = c["STB"]; n = STB // 2048; LDW = c["LDW"]; b = Rec()
    b.e("s_add_u32 s19, s41, s42")
    arm = ["s_mov_b32 m0, s19", "s_mov_b32 s39, s16"]
    if which == 4:
        b.e("s_and_b32 s40, s30, 1"); kb4(b, 16, "s40")
        b.e(f"s_mul_i32 s16, s16, {32*LDW}"); b.e("s_add_u32 s16, s16, s38")
    elif which == 3:
        stage3(b, 16); b.e(f"s_mul_i32 s16, s16, {64*LDW}"); b.e("s_add_u32 s16, s16, s38")
    else:
        b.e(f"s_mul_i32 s16, s44, {64*LDW}"); b.e("s_add_u32 s16, s16, s38")
    if which > 2:
        rot_next(b, which)
        b.e(f"s_add_u32 s42, s42, {STB}"); b.e(f"s_cmp_eq_u32 s42, {c['NW']*STB}"); b.e("s_cselect_b32 s42, 0, s42")
    fire = []
    for i in range(n):
        g = []
        if i:
            g.append("s_add_u32 m0, m0, 1024")
            if which in (1, 2): g.append(f"s_add_u32 s39, s39, {8*LDW}")
            elif which == 4: g.append(f"s_add_u32 s39, s39, {4*LDW}")
            elif i == 7: g.append(f"s_add_u32 s39, s39, {16*LDW}")
        vo = WVB[which] + (0 if which in (1, 2) else (i & 1) if which == 4 else i % 7)
        fire.append(g + [f"buffer_load_dwordx4 v{vo}, s[12:15], s39 offen {os.environ.get('WF', '').replace('_', ' ')} lds"])
    return b.l, arm, fire
def w_issue(a, which, pace=0):
    prep, arm, fire = w_parts(which)
    for x in prep + arm: a.e(x)
    for i, g in enumerate(fire):
        for x in g: a.e(x)
        if pace and (i % 4 == 3 or i == len(fire) - 1): a.e(f"s_waitcnt vmcnt({pace})")

def w_bases(a, which, dst, swn, ntl, t, t2):
    c = CFG[which]; RB = c["RB"]
    a.e(f"v_lshrrev_b32 v{t}, 2, v1")
    a.e(f"v_mul_u32_u24 v{dst}, {RB}, v{t}"); a.e(f"v_and_b32 v{t2}, 3, v1"); a.e(f"v_lshl_add_u32 v{dst}, v{t2}, 3, v{dst}")
    if c["WB"]: a.e(f"v_add_u32 v{dst}, {c['WB']}, v{dst}")
    if which == 3:
        a.e(f"v_mul_u32_u24 v{dst+2}, {RB}, v{t}"); a.e(f"v_and_b32 v{t2}, 2, v1"); a.e(f"v_lshl_add_u32 v{dst+2}, v{t2}, 2, v{dst+2}")
        a.e(f"v_bfe_u32 v{t}, v1, 4, 1"); a.e(f"v_and_b32 v{t2}, 1, v1"); a.e(f"v_xor_b32 v{t2}, v{t2}, v{t}"); a.e(f"v_lshl_add_u32 v{dst+2}, v{t2}, 5, v{dst+2}")
        a.e(f"s_lshl_b32 s36, s{swn}, 4"); a.e(f"s_add_u32 s36, s36, {c['WB'] + 192}"); a.e(f"v_add_u32 v{dst+2}, s36, v{dst+2}")
        a.e(f"s_lshl_b32 s36, s{swn}, 8"); a.e(f"v_add_u32 v{dst}, s36, v{dst}"); a.e(f"v_lshlrev_b32 v{t}, 5, v{t}")
        a.e(f"v_sub_u32 v{dst+1}, v{dst}, v{t}"); a.e(f"v_add_u32 v{dst}, v{dst}, v{t}")
        return 3, lambda nt, kk, h: (nt & 1, (32 * kk + 16 * h) * RB + 32 * nt) if nt < 6 else (2, (32 * kk + 16 * h) * RB)
    if which == 4: a.e(f"v_and_b32 v{t}, 7, v{t}")
    else: a.e(f"v_bfe_u32 v{t}, v{t}, 1, 2")
    for nt in range(ntl - 1, -1, -1):
        a.e(f"s_mul_i32 s36, s{swn}, {ntl}"); a.e(f"s_add_u32 s36, s36, {nt}")
        a.e(f"v_xor_b32 v{t2}, s36, v{t}"); a.e(f"v_lshl_add_u32 v{dst+nt}, v{t2}, 5, v{dst}")
    return ntl, lambda nt, kk, h: (nt, (32 * kk + 16 * h) * RB)

def a_parts(which):
    c = CFG[which]; b = Rec()
    b.e("s_add_u32 s19, s41, s42")
    arm = ["s_mov_b32 m0, s19", "s_mov_b32 s39, s16"]; fire = []
    if which == 4:
        for lw in range(2):
            kb4(b, 16 + lw, lw); spread(b, 16 + lw, 16 + lw); b.e(f"s_add_u32 s{16+lw}, s{16+lw}, s38")
        arm.append("s_mov_b32 s40, s17")
        for i in range(4):
            for lw in range(2):
                fire.append((["s_add_u32 m0, m0, 1024"] if i or lw else []) + ([f"s_add_u32 s{39+lw}, s{39+lw}, {'s37' if i == 2 else c['KBT']*2048}"] if i else []) +
                            [f"buffer_load_dwordx4 v2, s[12:15], s{39+lw} offen {SC} lds"])
    else:
        stage3(b, 16); b.e("s_cmp_eq_u32 s44, s46"); b.e("s_cselect_b32 s16, s47, s16")
        b.e("s_lshr_b32 s45, s16, 2"); b.e("s_lshl_b32 s45, s45, 14"); b.e("s_and_b32 s16, s16, 3"); b.e("s_lshl_b32 s16, s16, 11")
        b.e("s_add_u32 s16, s16, s45"); b.e("s_add_u32 s16, s16, s38"); step = c['KBT'] * 2048
        for i in range(4):
            fire.append((["s_add_u32 m0, m0, 2048", f"s_add_u32 s39, s39, {step}"] if i else []) + [f"buffer_load_dwordx4 v2, s[12:15], s39 offen {SC} lds"])
            fire.append([f"buffer_load_dwordx4 v2, s[12:15], s39 offen offset:1024 {SC} lds"])
    rot_next(b, which)
    b.e(f"s_add_u32 s42, s42, 16384"); b.e(f"s_cmp_eq_u32 s42, {c['NA']*16384}"); b.e("s_cselect_b32 s42, 0, s42")
    return b.l, arm, fire
def a_issue(a, which):
    prep, arm, fire = a_parts(which)
    for x in prep + arm + sum(fire, []): a.e(x)
SUBS = {}
def call_issue(a, issue, which):
    nm = f"SUB_{issue.__name__}_{which}"; SUBS[nm] = (issue, which)
    a.e(f"s_call_b64 s[76:77], {nm}")
def emit_subs(a):
    for nm, (issue, which) in SUBS.items():
        a.e(f"{nm}:"); issue(a, which); a.e("s_setpc_b64 s[76:77]")
def ld_steps(a, which, N, per, issue, npre, rate=2, plan={}, lo=0, hi=None, last=None, hold=(), start=None, catch=()):
    NS = CFG[which]["NS"]
    prep, arm, fire = (w_parts if issue is w_issue else a_parts)(which); h = max(1, per * HSPLIT // 8)
    plan = {b: (x if isinstance(x, list) else [x]) for b, x in plan.items()}
    q = [s_ for s_ in range(npre) for _ in range(per)]
    def after(tag):
        if issue is w_issue and isinstance(tag, int) and tag < npre and (env('WROT', 0) or which == 3): tag = npre - 1
        return len(q) - 1 - max(i for i, x in enumerate(q) if x == tag)
    issued = npre; steps = []
    for b in range(NS):
        acts = plan.get(b, []); was = {}
        def do(pos):
            for n_, act in enumerate(acts):
                if act[0] != pos: continue
                if act[1] is not None: was[n_] = after(act[1])
                q.extend([act[4]] * act[3])
        do(True)
        k = 0
        if b > 0 and b not in hold: k = max(0, min(rate + (b in catch), min(NS, b - 1 + N) - issued))
        assert k or not any(x[0] == "mid" for x in acts)
        for j in range(k):
            q.extend([issued] * h)
            if j == 0: do("mid")
            q.extend([issued] * (per - h)); issued += 1
        do(False)
        w = after(b); assert w <= 63
        steps.append((k, w, b if acts else None, tuple(sorted(was.items())), issued < NS))
    def em(l):
        for x in l:
            a.e(x)
            if x == "s_barrier" and os.environ.get("JIT"): mstamp(a)
    F1, F2 = sum(fire[:h], []), sum(fire[h:], [])
    lprep = prep
    if len(prep) > 8:
        nm = f"PREP_{issue.__name__}_{which}"; SUBS[nm] = ((lambda a_, w_, l=prep: [a_.e(x) for x in l]), which)
        prep = [f"s_call_b64 s[76:77], {nm}"]
    if lo == 0 or start: em(prep + arm)
    i = lo; HI = NS if hi is None else hi
    while i < HI:
        j = i
        while j < HI and steps[j] == steps[i]: j += 1
        k, w, ab, was, more = steps[i]; n = j - i; was = dict(was)
        def run(pos):
            for n_, act in enumerate(plan.get(ab, [])):
                if act[0] != pos: continue
                if n_ in was: a.e(f"s_waitcnt vmcnt({was[n_]})")
                act[2]()
        tail = [f"s_waitcnt vmcnt({w})", "s_barrier"]
        if n > 2 and k == 1:
            em(F1); a.e("s_mov_b32 s43, 1"); L = a.lab("ld"); a.e(f"{L}:")
            em(lprep + F2 + arm + tail + F1)
            a.e("s_add_u32 s43, s43, 1"); a.e(f"s_cmp_lt_u32 s43, {n}"); a.e(f"s_cbranch_scc1 {L}")
            em(prep + F2 + arm + tail)
        else:
            for r in range(n):
                run(True)
                for jj in range(k):
                    nxt = more or jj < k - 1
                    em(F1)
                    if jj == 0: run("mid")
                    em((prep if nxt else []) + F2 + (arm if nxt else []))
                run(False)
                em(tail)
        i = j
    if hi is not None: return
    if last: last()
    if issue is a_issue and which == 3 and env("T4", 1):
        X = a.lab("tw4"); a.e("s_cmp_lg_u32 s60, 0"); a.e(f"s_cbranch_scc1 {X}"); touch(a, 4, 7 * MB, 90, env("T4A", 0)); a.e(f"{X}:")
    a.e("s_barrier")

SP0 = 22
W1T = env("W1T", {23: (3,), 24: (4, 5), 25: (6, 13), 26: (14, 0, 15), 27: (11, 12)})
W1T = {b: tuple(j for j in l if j not in MV) for b, l in W1T.items()}; W1T = {b: l for b, l in W1T.items() if l}
W1D = env("W1D", (15, 11, 12)); W1R = tuple(j for l in W1T.values() for j in l if j not in W1D); W1L = tuple(j for j in W1B if j not in W1R)
def w1raw2(j, kk):
    i = 2 * W1R.index(j) + kk
    return 12 + 4 * i if i < 16 else RXB + 4 * (i - 16)
def w1_tail_setup(a):
    w_srd(a, 1, 8)
    a.e("s_and_b32 s3, s30, 3"); a.e("s_lshl_b32 s36, s3, 14"); a.e("s_lshl_b32 s90, s29, 7"); a.e("s_add_u32 s90, s90, s36"); a.e("s_xor_b32 s90, s90, 128"); a.e("s_lshl_b32 s3, s3, 10")
def w1_piece(a, b):
    for j in W1T[b]:
        a.e(f"s_add_u32 s36, s90, {j << 17}")
        for kk in range(2):
            if j in W1R: a.e(f"buffer_load_dwordx4 {vr(w1raw2(j,kk),4)}, v{WVB[1]}, s[8:11], s36 offen")
            else: a.e(f"s_add_u32 m0, s3, {WST + j * 8192 + 4096 * kk}"); a.e(f"buffer_load_dwordx4 v{WVB[1]}, s[8:11], s36 offen lds")
            if kk == 0: a.e("s_add_u32 s36, s36, 65536")
def tail_steps(a, b0, q0, issue, need):
    q = [list(q0), list(q0)]
    def cnt(l, tag): return len(l) - 1 - max(i for i, x in enumerate(l) if x == tag) if tag in l else None
    for b in range(b0, 28):
        n = issue(b)
        for l in q: l += n
        if b in W1T:
            X = a.lab("tl"); Z = a.lab("tz")
            q[0] += ["w"] * (2 * len(W1T[b]))
            a.e("s_cmp_lg_u32 s60, 0"); a.e(f"s_cbranch_scc1 {X}")
            call_issue(a, w1_piece, b)
            if cnt(q[0], need(b)) is not None: a.e(f"s_waitcnt vmcnt({cnt(q[0], need(b))})"); a.e(f"s_branch {Z}")
            a.e(f"{X}:")
        if cnt(q[1], need(b)) is not None: a.e(f"s_waitcnt vmcnt({cnt(q[1], need(b))})")
        if b in W1T: a.e(f"{Z}:")
        for l in q:
            if need(b) in l: del l[:len(l) - cnt(l, need(b))]
        a.e("s_barrier")
        if os.environ.get("JIT"): mstamp(a)
    g4_end(a)
def g4_end(a):
    a.e("s_cmp_eq_u32 s60, 1"); a.e("s_cbranch_scc1 K_fin")
    a.e("s_branch Y_END")
def y_end(a):
    a.e("Y_END:")
    if 28 in W1T: w1_piece(a, 28)
    r_pre(a)
    o = [j for l in W1T.values() for j in l]
    a.e(f"s_waitcnt vmcnt({4 + 2 * (len(o) - 1 - o.index(W1R[-1]))})")
    a.e("s_barrier")
    w_dump(a, w1raw2, 8, W1R); a.e("s_waitcnt lgkmcnt(0)")
def a_loader(a, which):
    c = CFG[which]
    a.e("s_and_b32 s35, s30, 1")
    lsrd(a, 12, c["A"], XSZ if which != 4 else H2SZ)
    a.e(f"s_mul_i32 s38, s35, {4*c['KBT']*2048}")
    if which == 4:
        a.e(f"s_mul_i32 s36, s31, {7*16384 + 2*c['KBT']*2048}"); a.e("s_add_u32 s38, s38, s36")
        a.e(f"s_mul_i32 s37, s31, {4*c['KBT']*2048}"); a.e(f"s_sub_u32 s37, {c['KBT']*2048}, s37")
    a.e("s_lshl_b32 s41, s35, 13"); a.e("s_mov_b32 s42, 0"); rot_init(a, which)
    assert c["NA"] == 3
    if which == 4:
        flag_in(a, 34, ST_G3B); flag_in(a, 35, ST_G3)
        P4 = env("P4", 2)
        a.e(f"s_sub_u32 s48, s34, {(ST_G3B - ST_G3A) * 128}")
        plan = {**({1: [(True, None, lambda: flag_try(a, 32, 48), 0, None), (False, None, lambda: (flag_check(a, 32, 48, 8), mstamp(a)), 0, None)]} if P4 == 1 else
                   {1: (True, None, lambda: flag_try(a, 32, 48), 0, None), 2: (True, None, lambda: (flag_check(a, 32, 48, 8), mstamp(a)), 0, None)} if P4 == 2 else {}),
                7: ("mid", None, lambda: flag_try(a, 32, 34), 0, None), 8: ("mid", None, lambda: flag_check(a, 32, 34, 8), 0, None),
                14: ("mid", None, lambda: flag_try(a, 32, 35), 0, None), 15: ("mid", None, lambda: flag_check(a, 32, 35, 8), 0, None)}
        a.e("s_mov_b32 s44, 3")
        def offs():
            for i in range(12):
                q = 2 * SP0 + i - 32
                a.e(f"s_add_u32 s36, s33, {q // 3}"); a.e("s_and_b32 s36, s36, 7"); a.e("s_mul_i32 s36, s36, 7"); a.e(f"s_add_u32 s36, s36, {(2, 6, 3)[q % 3]}"); spread(a, 78 + i, 36)
        offs(); w1_tail_setup(a)
        ld_steps(a, which, 3, 8, a_issue, 3, plan=plan, hi=SP0 - 1)
        TS = c['KBT'] * 2048
        a.e(f"s_add_u32 s39, s38, s37"); a.e(f"s_add_u32 s39, s39, {TS}")
        def issue(b):
            t = b + 1 - SP0
            if t > 5: return []
            if t == 3: a.e("s_mov_b32 s39, s38")
            a.e(f"s_add_u32 m0, s41, {(b + 1) % 3 * 16384}")
            for j in range(2):
                for kk in range(2): a.e(f"s_add_u32 s{16+kk}, s39, s{78 + 4*(t%3) + 2*j + kk}")
                for i in range(2):
                    for kk in range(2):
                        if i: a.e(f"s_add_u32 s{16+kk}, s{16+kk}, {TS}")
                        a.e(f"buffer_load_dwordx4 v2, s[12:15], s{16+kk} offen {SC} lds")
                        if j + i + kk < 3: a.e("s_add_u32 m0, m0, 1024")
            return [b + 1] * 8
        return tail_steps(a, SP0 - 1, [SP0 - 1] * 8, issue, lambda b: b)
    mask = flag_addr(a, 9, ST_G2)
    def wait2(): g2_signal(a, 0); mstamp(a); poll_core(a, 8, 9, mask, cnt=16, nap=env("NAP2", 5)); mstamp(a)
    rot_next(a, 3); stage3_init(a); a.e("s_mov_b32 s42, 16384")
    plan = side_jobs(a)
    plan[1] = (True, None, wait2, 0, None)
    if env("T4A", 0):
        def early():
            X = a.lab("tw4"); a.e("s_cmp_lg_u32 s60, 0"); a.e(f"s_cbranch_scc1 {X}"); touch(a, 4, 7 * MB, 90, 0, env("T4A", 0)); a.e(f"{X}:")
        st_ = env("T4S", 15); o_ = plan.get(st_, []); plan[st_] = (o_ if isinstance(o_, list) else [o_]) + [(False, st_, early, 0, None)]
    ld_steps(a, which, 3, 8, a_issue, 1, plan=plan, lo=1, start=True)

def g2_signal(a, wait):
    publish(a, ST_G2, 14, wait=wait)
    G2S[0](); a.e("s_waitcnt lgkmcnt(0)")
G2S = []
def side_jobs(a):
    c = CFG[3]
    sv = 18; Q, tt, mean, rs, ad, fa, fr, co_, ct = 50, 51, 52, 53, 10, 11, 12, 13, 6
    cv = 54; N = 3584; HB = c["TN16"] * 32
    assert cv + 64 <= WVB[1]
    def cld(k0=0, k1=4):
        if k0 == 0:
            flag_check(a, 3, 40, 14)
            a.srd(24, 4, 16 * N * 4, off=CSP3)
            a.e("s_cmp_eq_u32 s60, 0"); a.e("s_cselect_b32 s26, s26, 0")
            a.e("s_and_b32 s36, s30, 1"); a.e(f"s_mul_i32 s36, s36, {HB}"); a.e(f"s_mul_i32 s37, s29, {2*HB}"); a.e("s_add_u32 s37, s36, s37")
            a.e(f"v_lshrrev_b32 v{co_}, 5, v1"); a.e(f"v_mul_u32_u24 v{co_}, {N*4}, v{co_}")
            a.e(f"v_and_b32 v{ct}, {16*31}, v2"); a.e(f"v_add_u32 v{co_}, v{co_}, v{ct}")
        for k in range(k0, k1):
            a.e(f"buffer_load_dwordx4 {vr(cv+4*k,4)}, v{co_}, s[24:27], s37 offen {SC}"); a.e(f"s_add_u32 s37, s37, {N*4*2}")
    def piece(lines, l0=False):
        def f():
            X = a.lab("pc")
            if l0: a.e("s_cmp_lg_u32 s60, 0"); a.e(f"s_cbranch_scc1 {X}")
            for x in lines: a.e(x)
            if l0: a.e(f"{X}:")
        return f
    def cadd(k0, k1): return [f"v_pk_add_f32 {vr(cv+2*h,2)}, {vr(cv+2*h,2)}, {vr(cv+4*k+2*h,2)}" for k in range(k0, k1) for h in range(2)]
    def sw(op): return [f"v_mov_b32 v{cv+4+e}, v{cv+e}" for e in range(4)] + [f"{op} v{cv+e}, v{cv+4+e}" for e in range(4)] + cadd(1, 2)
    cout = ["s_and_b32 s36, s30, 1", f"s_mul_i32 s36, s36, {HB}", f"s_add_u32 s36, s36, {CSO[3]}", f"v_add_u32 v{ct}, s36, v2",
            f"s_bfm_b64 exec, {HB//16}, 0", f"ds_write_b128 v{ct}, {vr(cv,4)}", "s_mov_b64 exec, -1", "s_waitcnt lgkmcnt(0)"]
    flag_in(a, 35, ST_G2S); cs_flag(a, 40)
    a.e(f"v_lshlrev_b32 v{ad}, 3, v1")
    lsrd(a, 20, oST2, 24576)
    a.e("s_and_b32 s34, s30, 1"); a.e("s_lshl_b32 s34, s34, 9")
    def sout():
        a.e(f"s_add_u32 s36, s34, {REC}"); a.e(f"v_add_u32 v{tt}, s36, v{ad}")
        for k in range(4): a.e(f"ds_read_b64 {vr(sv+2*k,2)}, v{tt} offset:{1024*k}")
        spread(a, 36, 29); a.e("s_add_u32 s36, s36, s34")
        a.e("s_waitcnt lgkmcnt(0)")
        for k in range(1, 4): a.e(f"v_pk_add_f32 {vr(sv,2)}, {vr(sv,2)}, {vr(sv+2*k,2)}")
        a.e(f"buffer_store_dwordx2 {vr(sv,2)}, v{ad}, s[20:23], s36 offen {SC}")
    def tries():
        flag_try(a, 32, 35); flag_try(a, 3, 40)
    def ld(k0):
        def f():
            if k0 == 0: flag_check(a, 32, 35, 14)
            a.e(f"s_add_u32 s36, s34, {k0*2048}")
            for k in range(k0, k0 + 8):
                if k % 8 == 4: a.e("s_add_u32 s36, s36, 4096")
                a.e(f"buffer_load_dwordx2 {vr(sv+2*k,2)}, v{ad}, s[20:23], s36 offen offset:{(k&3)*1024} {SC}")
        return f
    b = Rec()
    for st_ in (8, 4, 2, 1):
        for k in range(st_): b.e(f"v_pk_add_f32 {vr(sv+2*k,2)}, {vr(sv+2*k,2)}, {vr(sv+2*(k+st_),2)}")
    b.e(f"v_mul_f32 v{mean}, {f32(1/1024)}, v{sv}"); b.e(f"v_mul_f32 v{Q}, {f32(1/1024)}, v{sv+1}")
    b.e(f"v_fma_f32 v{Q}, -v{mean}, v{mean}, v{Q}"); b.e(f"v_max_f32 v{Q}, 0, v{Q}")
    ln_finish(b, mean, Q, rs)
    b.e(f"v_mov_b32 v{sv}, v{mean}"); b.e(f"v_mov_b32 v{sv+1}, v{Q}"); b.e(f"v_mul_f32 v{sv+2}, {f32(GC1)}, v{rs}"); b.e(f"v_mul_f32 v{rs}, v{rs}, v{rs}")
    b.e(f"v_mul_f32 v{rs}, {f32(0.044715)}, v{rs}"); b.e(f"v_mul_f32 v{sv+3}, v{rs}, v{sv+2}")
    b.e(f"s_lshl1_add_u32 s36, s34, {AUX+1024}"); b.e(f"v_add_u32 v{tt}, s36, v2")
    b.e(f"ds_write_b128 v{tt}, {vr(sv,4)}")
    def both(f, g):
        def h(): f(); g()
        return h
    return {2: (False, None, sout, 1, "s"),
            4: (False, "s", lambda: publish(a, ST_G2S, 14, wait=None), 1, "p"),
            8: (False, None, tries, 0, None),
            9: (False, None, ld(0), 8, "d"), 10: (False, None, ld(8), 8, "d"), 11: (False, None, lambda: cld(0, 8), 8, "c"),
            12: (False, "d", piece(b.l[:14]), 0, None), 13: (False, None, piece(b.l[14:28]), 0, None),
            14: (False, "c", both(piece(b.l[28:]), piece(cadd(1, 5), 1)), 0, None), 15: (False, None, both(piece(cadd(5, 8) + sw("v_permlane32_swap_b32") + cout, 1), piece(["s_waitcnt lgkmcnt(0)"])), 0, None)}

def w_loader(a, which):
    c = CFG[which]
    args = (a, which, c["NW"], c["STB"] // 2048, w_issue, c["NPRE"], c["WR"])
    if which == 3:
        w_setup(a, 3, pre=False); rot_next(a, 3); rot_next(a, 3); stage3_init(a); a.e(f"s_mov_b32 s42, {2*c['STB']}")
        ld_steps(*args, plan={1: [({"T": True, "M": "mid", "F": False}[env("PUBW", "T")], 1, lambda: g2_signal(a, None), 1, "p"), (False, None, lambda: cs_sum(a), 0, None)],
                                4: (False, 3, lambda: cs_signal(a), 0, None)}, lo=1, start=True)
        return
    assert c["NW"] == 6 and c["WB"] == WST + 3 * 8192
    w1_tail_setup(a)
    ld_steps(*args, hi=SP0, hold=env("HOLD", ()), catch=env("CATCH", ()))
    prep, arm, fire = w_parts(4)
    def issue(b):
        if b > SP0 + 1: return []
        for x in sum(fire, []) + (["s_call_b64 s[76:77], PREP_w_issue_4"] + arm if b == SP0 else []): a.e(x)
        return [b + 4] * 8
    tail_steps(a, SP0, [s_ for s_ in range(SP0, SP0 + 4) for _ in range(8)], issue, lambda b: min(27, 2 * b - SP0 + 1))
SLOTS = [120 * KB, 136 * KB, 16 * KB, 32 * KB, 104 * KB]; WINB = 104 * KB
W3P = env("W3P", {4: [(1, 0, 2)], 8: [(1, 2, 7), (0, 0, 1)], 12: [(0, 1, 7)]})
LAG = 2
DEP = env("DEP", 3); BURST0 = env("BURST0", 3)
SIG = env("SIG", [(8, 0), (12, 0), (15, 2)]); SIG3 = env("SIG3", 19)
TRY = env("TRY", [12, 16, 20, 24]); CHK = env("CHK", [13, 17, 21, 25])
OST = env("OST", 29); LPRIO = env("LPRIO", 1); RATE = env("RATE", 2); ISS = env("ISS", {})
def win_schedule():
    slot = {}; issue = {b: [] for b in ["F"] + list(range(32))}
    free = {x: -1 for x in SLOTS}
    nxt = 0
    for p in range(-1, 32):
        b = "F" if p < 0 else p
        while nxt < 32:
            if p < 0 and nxt >= BURST0: break
            if nxt >= 16 and p < CHK[(nxt - 16) // 4]: break
            if p in ISS:
                if len(issue[b]) >= ISS[p]: break
            elif p >= 0 and (nxt > p + DEP or len(issue[b]) >= RATE): break
            c_ = [x for x in SLOTS if free[x] <= p]
            if not c_: break
            x = min(c_, key=lambda x: free[x])
            slot[nxt] = x; issue[b].append(nxt); free[x] = nxt + 2
            assert nxt > p
            nxt += 1
    return slot, issue
WSLOT, WISSUE = win_schedule()
GSTW = os.environ.get("GST", "")

def win_compute(T, g, rd, acc, cinit, FR, pre, post, mid):
    s0 = 16 * (g - 1); steps = [(s, k) for s in range(s0, s0 + 17) for k in range(4)]; n = 64; nb = LAG + 1
    for i in range(n + LAG):
        s, k = steps[i]
        if k == 0 and s < 32:
            for f in pre.get(s, []): f()
            T.e("s_barrier")
            if GSTW == "w" or (GSTW == "y" and i == n) or os.environ.get("JIT"): mstamp(T.a, True)
            for f in post.get(s, []): f()
        for f in mid.get((s, k), []): f()
        r = [rd(FR + 16 * (i % nb) + 4 * q, s, k, q) for q in range(4)] if i < n else []
        j = i - LAG
        if j < 0:
            for x in r: T.ds(x, i)
            continue
        s, k = steps[j]; c = (s - s0) // 4; first = s % 4 == 0 and k == 0
        T.wl(j)
        for q in (0, 1, 3, 2):
            C = vr(acc(c) + 4 * (q & 1), 4)
            T.e(f"v_mfma_f32_16x16x32_bf16 {C}, {vr(WR0+8*(4*(s%4)+k)+4*(q>>1),4)}, {vr(FR+16*(j%nb)+4*q,4)}, {'0' if first and q < 2 and not cinit else C}")
            if r: T.ds(r.pop(0), i)
def add(d, k, f): d.setdefault(k, []).append(f)
def h_rot(a, d):
    a.e(f"s_and_b32 s{d}, s30, 3"); a.e(f"s_lshl_b32 s{d}, s{d}, 15")
    a.e("s_and_b32 s53, s30, 2"); a.e("s_lshl_b32 s53, s53, 11")
    a.e(f"s_and_b32 s{d+4}, s30, 1"); a.e(f"s_lshl_b32 s{d+4}, s{d+4}, 13"); a.e(f"s_add_u32 s{d+4}, s{d+4}, s53")
def h_arm(T, s, d):
    T.e(f"s_add_u32 m0, s{d+4}, {WSLOT[s]}"); T.e(f"s_add_u32 s49, s{d}, {(s-16)//4*131072 + (s&2)*8192 + (s&1)*4096}"); T.armed = s
def h_issue(T, s, d, srd):
    if getattr(T, "armed", None) != s: h_arm(T, s, d)
    for q in range(4): T.vm(f"buffer_load_dwordx4 v2, s[{srd}:{srd+3}], s49 offen offset:{1024*q} {SC} lds", s)
def h_flag(a, d):
    a.e(f"s_and_b32 s{d}, s30, 1"); a.e(f"s_lshl_b32 s{d}, s{d}, 8"); a.e(f"s_add_u32 s{d}, s{d}, s55"); a.e(f"s_add_u32 s{d+1}, s52, 16")
def h_try(a, c, d):
    for k in range(2): a.e(f"s_load_dword s{(32, 3)[k]}, s[4:5], s{d} offset:{FH + 512*c + 128*k} {os.environ.get('GLC', '')}")
def h_check(a, c, d, t):
    D = a.lab("hok")
    a.e("s_waitcnt lgkmcnt(0)"); a.e(f"s_cmp_eq_u32 s32, s{d+1}"); a.e(f"s_cselect_b32 s32, s3, 0"); a.e(f"s_cmp_eq_u32 s32, s{d+1}"); a.e(f"s_cbranch_scc1 {D}")
    if STAMP: a.e(f"s_add_u32 s95, s95, {1 << (8 + 4 * c)}")
    for _ in range(env("G2ND", 0)):
        for k in range(2): a.e(f"s_load_dword s{(32, 3)[k]}, s[4:5], s{d} offset:{FH + 512*c + 128*k} glc")
        a.e("s_waitcnt lgkmcnt(0)"); a.e(f"s_cmp_eq_u32 s32, s{d+1}"); a.e(f"s_cselect_b32 s32, s3, 0"); a.e(f"s_cmp_eq_u32 s32, s{d+1}"); a.e(f"s_cbranch_scc1 {D}")
    a.e(f"s_add_u32 s53, s{d}, {FH + 512*c}"); a.e(f"v_lshlrev_b32 v{t+1}, 7, v1"); a.e(f"v_add_u32 v{t+1}, s53, v{t+1}")
    poll_core(a, t, t + 1, 3, cnt=16, nap=env('HSLEEP', 8))
    a.e(f"{D}:")
def out_addr(a, so, J, G, t, flip=False):
    a.e(f"v_and_b32 v{t}, 1, v{G}"); a.e(f"v_lshlrev_b32 v{so}, 16, v{t}"); a.e(f"v_lshrrev_b32 v{t}, 1, v{G}"); a.e(f"v_lshl_add_u32 v{so}, v{t}, 8, v{so}")
    a.e(f"v_lshl_add_u32 v{so}, v{J}, 4, v{so}")
    a.e("s_bfe_u32 s36, s30, 0x10001"); a.e("s_lshl1_add_u32 s36, s29, s36")
    if flip: a.e("s_xor_b32 s36, s36, 2")
    spread(a, 39, 36)
    a.e("s_and_b32 s36, s30, 1"); a.e("s_lshl_b32 s36, s36, 9"); a.e("s_add_u32 s39, s39, s36")

def window_x(a, g3_setup):
    T = Track(a); v = VA(6)
    t = v(); t2 = v(); J = v(); G = v(); ra = v(8, 2); rc = v()
    acc0 = v(16, 4); FR = v(48, 4); cs = v(4, 4); rec = v(16, 4); tp = v(8, 4); lead = v(); one = v(); so = v()
    assert v.hi <= WR0
    a.e(f"v_and_b32 v{J}, 15, v1"); a.e(f"v_lshrrev_b32 v{G}, 4, v1")
    a.e(f"v_xor_b32 v{t}, v{G}, v{J}"); a.e(f"v_lshlrev_b32 v{t2}, 8, v{J}")
    for k in range(4):
        a.e(f"v_xor_b32 v{ra+k}, {4*k}, v{t}"); a.e(f"v_lshl_add_u32 v{ra+k}, v{ra+k}, 4, v{t2}"); a.e(f"v_add_u32 v{ra+4+k}, {WINB}, v{ra+k}")
    a.e(f"v_lshlrev_b32 v{rc}, 4, v{J}"); a.e(f"v_add_u32 v{rc}, {REC}, v{rc}")
    lsrd(a, 16, oH, XSZ); out_addr(a, so, J, G, t, True)
    h_rot(a, 8); h_flag(a, 20)
    a.e(f"v_mov_b32 v{lead}, 0x7f000000"); a.e(f"v_writelane_b32 v{lead}, 0, 0"); a.e(f"v_mov_b32 v{one}, 1")
    a.e("s_and_b32 s40, s30, 1"); a.e("s_lshl1_add_u32 s40, s31, s40"); a.e("s_lshl_b32 s40, s40, 7"); a.e("s_add_u32 s40, s40, s55")
    for i in range(4): a.e(f"v_mov_b32 v{rec+i}, 0x3f803f80")
    def csum(js):
        for j in js:
            for kk in range(2): a.e(f"v_mfma_f32_16x16x32_bf16 {vr(cs,4)}, {vr(wreg(j,kk),4)}, {vr(rec,4)}, {0 if (j, kk) == (W1A[0], 0) else vr(cs,4)}")
    a.e("s_waitcnt lgkmcnt(0)"); csum(W1A)
    poll(a, ST_R, tp, wave=0, nap=env("NAPR", 3))
    assert all(WSLOT[s_] + 16384 <= WST + j * 8192 or WSLOT[s_] >= WST + (j + 1) * 8192 for s_ in WISSUE["F"] for j in W1B)
    wr_read(a, WAD, W1B)
    a.e("s_waitcnt lgkmcnt(12)"); csum(W1B[:-3]); a.e("s_waitcnt lgkmcnt(0)"); csum(W1B[-3:])
    def rd(d, s, k, q):
        x = WSLOT[s]; hi = x >= WINB
        return f"ds_read_b128 {vr(d,4)}, v{ra+4*hi+k} offset:{x - WINB*hi + 4096*q}"
    acc = lambda c: acc0 + 8 * (c & 1)
    def recs(c):
        for mt in range(2):
            for p in range(2): T.ds(f"ds_read_b128 {vr(rec+8*mt+4*p,4)}, v{rc} offset:{512*c + 256*mt + 2048*p}", "r")
    def epi(c, cut=None):
        T.wl("r")
        X = acc(c); P = [(X + i, tp + i, i & 2, [vr(rec + 2 * (i & 4) + 2 * e, 2) for e in range(4)]) for i in range(0, 8, 2)]
        for x, u, i, R in P: T.e(f"v_pk_fma_f32 {vr(x,2)}, {R[0]}, {vr(cs+i,2)}, {vr(x,2)}")
        for x, u, i, R in P: T.e(f"v_pk_mul_f32 {vr(u,2)}, {vr(x,2)}, {vr(x,2)}")
        for x, u, i, R in P: T.e(f"v_pk_fma_f32 {vr(u,2)}, {vr(u,2)}, {R[2]}, {R[1]}")
        for x, u, i, R in P: T.e(f"v_pk_mul_f32 {vr(u,2)}, {vr(u,2)}, {vr(x,2)}")
        if cut: cut()
        for i in range(8): T.e(f"v_exp_f32 v{tp+i}, v{tp+i}")
        for x, u, i, R in P: T.e(f"v_pk_fma_f32 {vr(u,2)}, {vr(u,2)}, {R[3]}, {R[3]}")
        for i in range(8): T.e(f"v_rcp_f32 v{tp+i}, v{tp+i}")
        for x, u, i, R in P: T.e(f"v_pk_mul_f32 {vr(x,2)}, {vr(x,2)}, {vr(u,2)}")
        for i in range(4): T.e(f"v_add_u32 v{X+2*i}, 0x10000, v{X+2*i}")
        for i in range(4): T.e(f"v_and_b32 v{X+2*i}, 0xfffe0000, v{X+2*i}")
        for i in range(4): T.e(f"v_cvt_pk_bf16_f32 v{tp+i}, v{X+2*i}, v{X+2*i+1}")
        T.e(f"s_add_u32 s36, s39, {c*131072}")
        for e in range(2): T.e(f"v_permlane16_swap_b32 v{tp+e}, v{tp+2+e}")
        T.vm(f"buffer_store_dwordx4 {vr(tp,4)}, v{so}, s[16:19], s36 offen {SC}", f"h{c}")
    def signal(c):
        T.wv(f"h{c}"); T.vm(f"buffer_atomic_add v{one}, v{lead}, s[56:59], s40 offen offset:{FH + 512*c} {SC}")
    pre, post, mid = {}, {}, {}
    add(post, 0, lambda: mstamp(a))
    for c in range(4):
        add(post, 4 * c + 4, lambda c=c: recs(c))
        if c: add(mid, SIG[c - 1], lambda c=c: signal(c - 1))
        if c < 3: add(mid, (4 * c + 4, 3), lambda c=c: epi(c))
    def duties(b):
        if b == SIG3: signal(3)
        for c in range(4):
            if TRY[c] >= 16 and CHK[c] == b: h_check(a, c, 20, cs)
        for c in range(4):
            if TRY[c] == b: h_try(a, c, 20)
        for s in WISSUE[b]: h_issue(T, s, 8, 16)
        for c in range(4):
            if TRY[c] == b + 0.5 and b != 16: h_try(a, c, 20)
    def bar(b):
        if WISSUE[b]: h_arm(T, WISSUE[b][0], 8)
        T.wv(b); T.e("s_barrier")
        if GSTW in ("w", "y") or os.environ.get("JIT"): mstamp(a, True)
    win_compute(T, 1, rd, acc, False, FR, pre, post, mid)
    mstamp(a)
    T.e(f"s_setprio {LPRIO}")
    T.wl("r"); duties(16)
    b0 = 17
    if env("CUT", 0): epi(3, lambda: bar(17)); duties(17); b0 = 18
    else: epi(3, (lambda: h_try(a, 1, 20)) if TRY[1] == 16.5 else None)
    mstamp(a)
    assert SIG3 < 28 and max(CHK) < 28 and not any(WISSUE[b] for b in (29, 30, 31))
    for b in range(b0, 32):
        bar(b); duties(b)
        for x in g3_setup.get(b, []): T.e(x)
    T.e("s_setprio 0")

def window_y(a):
    T = Track(a); v = VA(6)
    t = v(); t2 = v(); J = v(); G = v(); va = v(); vb = v(); xo = v(); so = v(); rb = v(2, 2); ow = v(); xr = v()
    xn = v(32, 4); FR = v(48, 4); S = v(8, 2); tp = v(8, 2)
    assert v.hi <= WVB[1], v.hi
    lo = FR + 20; ln = FR; o = FR + 8
    NB = env("NB", 2); assert W1L == W1B
    w_srd(a, 1, 80)
    a.e("s_cmp_lg_u32 s60, 0"); a.e("s_cbranch_scc1 WY_1")
    wr_read(a, WAD, range(NRAW), W2S); a.e("s_branch WY_2")
    a.e("WY_1:")
    w1_dma(a, W1B[:NB])
    a.e("WY_2:")
    a.e(f"v_and_b32 v{J}, 15, v1"); a.e(f"v_lshrrev_b32 v{G}, 4, v1")
    a.e("s_and_b32 s34, s30, 1"); a.e("s_and_b32 s37, s30, 3")
    a.e("s_lshr_b32 s38, s29, 3"); a.e("s_add_u32 s38, s38, 1"); a.e("s_sub_u32 s39, 0, s38"); a.e("s_bitcmp1_b32 s29, 2"); a.e("s_cselect_b32 s38, s38, s39")
    a.e("s_lshl_b32 s35, s28, 7")
    a.e("s_cmp_lt_u32 s37, 2"); a.e("s_cselect_b32 s36, s38, 0"); a.e("s_add_u32 s36, s36, s35"); a.e("s_lshl_b32 s45, s34, 6"); a.e("s_add_u32 s36, s36, s45")
    a.e(f"v_add_u32 v{lo}, s36, v1"); a.e("s_movk_i32 s45, 2048"); a.e(f"v_cmp_gt_u32 s[46:47], s45, v{lo}"); a.e(f"v_lshlrev_b32 v{lo}, 4, v{lo}")
    lns_srd(a, 20)
    a.e("s_lshl_b32 s36, s37, 2"); a.e(f"v_add_u32 v{t}, s36, v{G}"); a.e(f"v_xor_b32 v{va}, v{t}, v{J}")
    a.e("s_add_u32 s36, s35, s38"); a.e("s_add_u32 s36, s36, 16"); a.e(f"v_add_u32 v{t}, s36, v{t}")
    rowaddr(a, vb, t, t2); a.e(f"v_lshl_add_u32 v{vb}, v{va}, 4, v{vb}"); a.e(f"v_subrev_u32 v{va}, 65536, v{vb}")
    a.e("s_lshl_b32 s44, s37, 10")
    x3_srd(a, 12)
    a.e("s_cmp_lg_u32 s60, 0"); a.e(f"s_waitcnt vmcnt({2 * NB})"); a.e("s_cbranch_scc1 WY_6")
    a.e("s_waitcnt vmcnt(0) lgkmcnt(0)"); a.e("s_barrier")
    w1_dma(a, W1B[:NB]); a.e("s_branch WY_7")
    a.e("WY_6:")
    a.e("s_barrier")
    a.e("WY_7:")
    w1_dma(a, W1B[NB:], False)
    mstamp(a)
    ldl = f"buffer_load_dwordx4 {vr(ln,4)}, v{lo}, s[20:23], 0 offen {SC}"
    a.e(f"v_lshrrev_b32 v{t}, 3, v1"); a.e(f"v_and_b32 v{xr}, 7, v1"); a.e(f"v_xor_b32 v{xr}, v{xr}, v{t}")
    a.e("s_lshl_b32 s36, s37, 3"); a.e("s_add_u32 s36, s36, s35"); a.e(f"v_add_u32 v{t}, s36, v{t}"); rowaddr(a, xo, t, t2)
    a.e("s_lshl_b32 s36, s29, 7"); a.e(f"v_lshl_add_u32 v{xo}, v{xr}, 4, v{xo}"); a.e(f"v_add_u32 v{xo}, s36, v{xo}")
    a.e(f"v_lshrrev_b32 v{t}, 1, v{G}"); a.e("s_lshl_b32 s36, s37, 1"); a.e(f"v_add_u32 v{t}, s36, v{t}"); a.e(f"v_and_b32 v{t2}, 7, v{J}"); a.e(f"v_xor_b32 v{t}, v{t}, v{t2}")
    a.e(f"v_lshlrev_b32 v{xr}, 7, v{J}"); a.e(f"v_lshl_add_u32 v{xr}, v{t}, 4, v{xr}"); a.e(f"v_and_b32 v{t}, 1, v{G}"); a.e(f"v_lshl_add_u32 v{xr}, v{t}, 3, v{xr}")
    out_addr(a, so, J, G, t)
    a.e(f"v_mov_b32 v{rb}, v2"); a.e(f"v_add_u32 v{rb+1}, {WINB}, v2")
    a.e(f"v_lshrrev_b32 v{t}, 5, v{so}"); a.e(f"v_and_b32 v{t}, 2048, v{t}"); a.e(f"v_and_b32 v{ow}, 511, v{so}"); a.e(f"v_add_u32 v{ow}, v{ow}, v{t}")
    a.e("s_lshl_b32 s36, s37, 9"); a.e(f"v_add_u32 v{ow}, s36, v{ow}")
    lsrd(a, 16, oH, XSZ); lsrd(a, 24, oX1P, XSZ)
    h_rot(a, 78); h_flag(a, 84); w3_setup(a)
    a0 = a; a = Rec(); a.lab = a0.lab
    L = a.lab("lns"); D = a.lab("lnk")
    a.e("s_mov_b32 s53, 0")
    a.e(f"{L}:")
    a.e(f"v_cmp_eq_u32 vcc, s52, v{ln+1}"); a.e(f"v_cmp_eq_u32 s[50:51], s52, v{ln+3}"); a.e("s_and_b64 vcc, vcc, s[50:51]"); a.e("s_orn2_b64 vcc, vcc, s[46:47]")
    a.e("s_cmp_eq_u64 vcc, -1"); a.e(f"s_cbranch_scc1 {D}")
    a.e(ldl); a.e("s_waitcnt vmcnt(0)")
    a.e("s_add_u32 s53, s53, 1"); a.e("s_cmp_lt_u32 s53, s61"); a.e(f"s_cbranch_scc1 {L}")
    a.e("s_mov_b32 s61, 0")
    a.e(f"{D}:")
    unpack(a, ln + 4, ln + 5, ln); unpack(a, ln + 6, ln + 7, ln + 2)
    for r in (ln + 5, ln + 7): a.e(f"v_cndmask_b32 v{r}, 1.0, v{r}, s[46:47]")
    a.e("s_lshl_b32 s36, s34, 10"); a.e(f"s_add_u32 s36, s36, {REC}"); a.e(f"v_add_u32 v{t}, s36, v2")
    X = a.lab("lnx"); D = a.lab("lnd")
    a.e("s_cmp_ge_u32 s37, 2"); a.e(f"s_cbranch_scc1 {X}")
    a.e(f"v_mul_f32 v{o+6}, v{ln+5}, v{ln+7}"); a.e(f"v_fma_f32 v{o}, -v{ln+6}, v{ln+5}, -v{ln+4}"); a.e(f"v_rcp_f32 v{t2}, v{o+6}")
    a.e(f"v_mov_b32 v{o+7}, v{o+6}"); a.e(f"v_mov_b32 v{o+1}, v{o}")
    a.e(f"v_mul_f32 v{o+2}, {f32(GC1)}, v{t2}"); a.e(f"v_mul_f32 v{t2}, v{t2}, v{t2}"); a.e(f"v_mov_b32 v{o+3}, v{o+2}")
    a.e(f"v_mul_f32 v{t2}, {f32(0.044715)}, v{t2}"); a.e(f"v_mul_f32 v{o+4}, v{t2}, v{o+2}"); a.e(f"v_mov_b32 v{o+5}, v{o+4}")
    for p in range(2): a.e(f"ds_write_b128 v{t}, {vr(o+4*p,4)} offset:{2048*p}")
    a.e(f"s_branch {D}")
    a.e(f"{X}:")
    a.e(f"v_rcp_f32 v{o}, v{ln+5}"); a.e(f"v_mul_f32 v{o+2}, -v{ln+4}, v{o}"); a.e(f"v_mov_b32 v{o+1}, v{o}"); a.e(f"v_mov_b32 v{o+3}, v{o+2}")
    a.e(f"ds_write_b128 v{t}, {vr(o,4)} offset:{LNSL-REC}")
    a.e(f"{D}:")
    a.e(f"v_lshlrev_b32 v{t2}, 4, v{J}"); a.e(f"v_add_u32 v{t2}, {LNSL}, v{t2}")
    lns = a.l; a = a0
    def issue(s):
        if s >= 16: return h_issue(T, s, 78, 16)
        c, i = s // 4, s % 4
        if getattr(T, "armed", None) != s: arm(s)
        for mt in range(2):
            for kh in range(2):
                if mt or kh: T.e(f"s_add_u32 m0, s44, {WSLOT[s] + kh*8192 + mt*4096 - kh*1024}")
                T.vm(f"buffer_load_dwordx4 v{(va, vb)[mt]}, s[12:15], s49 offen offset:{1024*kh} {SC} lds", s)
                for x in T.fill[:5]: T.e(x)
                T.fill = T.fill[5:]
        if s == 3: T.e(f"v_mov_b32 v{va}, v{vb}"); T.e(f"v_add_u32 v{vb}, 65536, v{vb}")
    def arm(s):
        if s >= 16: return h_arm(T, s, 78)
        T.e(f"s_add_u32 m0, s44, {WSLOT[s]}"); T.e(f"s_mov_b32 s49, {max(0, s//4*2-1)*65536 + 256*(s%4)}"); T.armed = s
    def resld():
        for c in range(4):
            T.e(f"s_add_u32 m0, s44, {4096*c}"); T.e(f"s_mov_b32 s36, {c*131072}")
            T.vm(f"buffer_load_dwordx4 v{xo}, s[12:15], s36 offen {SC} lds", "x")
    def res1(c):
        for mt in range(2):
            a.e(f"ds_read_b64 {vr(xn+8*c+4*mt+2,2)}, v{xr} offset:{4096*c + 2048*mt}"); a.e(f"ds_read_b128 {vr(o+4*mt,4)}, v{t2} offset:{512*c + 256*mt}")
    def res2(c):
        b = Rec(); b.e("s_waitcnt lgkmcnt(0)")
        for mt in range(2):
            X = xn + 8 * c + 4 * mt
            for e in range(2): unpack(b, X + 2 * e, X + 2 * e + 1, X + 2 + e)
            for e in range(2): b.e(f"v_pk_fma_f32 {vr(X+2*e,2)}, {vr(X+2*e,2)}, {vr(o+4*mt,2)}, {vr(o+4*mt+2,2)}")
        T.fill = b.l
    RESAT = env("RESAT", 4); RESUSE = env("RESUSE", 7); T.fill = []
    a.e("s_waitcnt vmcnt(0) lgkmcnt(0)")
    a.e(f"s_setprio {LPRIO}")
    mstamp(a)
    arm(0)
    a.e("s_barrier")
    mstamp(a)
    LAT = env("LAT", 9); LPOS = env("LPOS", 0)
    for s in WISSUE["F"][:LAT]:
        if s == LPOS: T.vm(ldl, "l")
        issue(s)
    def records():
        T.wv("l")
        for x in lns: a.e(x)
    if LAT < 9: records()
    for s in WISSUE["F"][LAT:]: issue(s)
    for b in range(16):
        if b == 4: a.e("s_waitcnt lgkmcnt(0)")
        if WISSUE[b]: arm(WISSUE[b][0])
        if b == RESUSE: T.wv("x")
        T.wv(b); T.e("s_barrier")
        if GSTW in ("w", "y") or os.environ.get("JIT"): mstamp(a, True)
        for c in range(4):
            if TRY[c] < 16 and CHK[c] == b: h_check(a, c, 84, tp)
            assert TRY[c] >= 16 or (CHK[c] < 16 and TRY[c] >= RESUSE + 5)
        if b == CHK[0]: mstamp(a)
        for c in range(4):
            if TRY[c] == b: h_try(a, c, 84)
        if 1 <= b - RESUSE < 5: res2(b - RESUSE - 1)
        for s in WISSUE[b]: issue(s)
        assert not T.fill
        if b == LAT - 9: records()
        if 0 <= b - RESUSE < 4: res1(b - RESUSE)
        if b == RESAT: resld()
        for x in W3P.get(b, []): w3_piece(T, *x)
    a.e("s_setprio 0")
    def rd(d, s, k, q):
        x = WSLOT[s]; hi = x >= WINB
        return f"ds_read_b128 {vr(d,4)}, v{rb+hi} offset:{x - WINB*hi + 4096*q + 1024*k}"
    acc = lambda c: xn + 8 * c
    def epi(c):
        X = acc(c)
        for i in range(4): T.e(f"v_add_u32 v{X+2*i}, 0x10000, v{X+2*i}")
        for i in range(4): T.e(f"v_and_b32 v{X+2*i}, 0xfffe0000, v{X+2*i}")
        for i in range(4): T.e(f"v_cvt_pk_bf16_f32 v{X+i}, v{X+2*i}, v{X+2*i+1}")
        T.e(f"s_add_u32 s36, s39, {c*131072}")
        for e in range(2): T.e(f"v_permlane16_swap_b32 v{X+e}, v{X+2+e}")
    def ost(c):
        T.e(f"s_add_u32 s36, s39, {c*131072}"); T.vm(f"buffer_store_dwordx4 {vr(acc(c),4)}, v{so}, s[24:27], s36 offen {SC}", "o")
    def own(c): T.ds(f"ds_write_b128 v{ow}, {vr(acc(c),4)} offset:{4096*c}", "ow")
    def stats(c):
        X = tp; pp, qq = acc(c) + 4, acc(c) + 6
        for i in range(4): unpack(T, X + 2 * i, X + 2 * i + 1, acc(c) + i)
        T.e(f"v_pk_add_f32 {vr(pp,2)}, {vr(X,2)}, {vr(X+2,2)}"); T.e(f"v_pk_mul_f32 {vr(qq,2)}, {vr(X,2)}, {vr(X,2)}")
        for i in range(1, 4):
            if i > 1: T.e(f"v_pk_add_f32 {vr(pp,2)}, {vr(pp,2)}, {vr(X+2*i,2)}")
            T.e(f"v_pk_fma_f32 {vr(qq,2)}, {vr(X+2*i,2)}, {vr(X+2*i,2)}, {vr(qq,2)}")
        T.e(f"v_add_f32 v{S+2*c}, v{pp}, v{pp+1}"); T.e(f"v_add_f32 v{S+2*c+1}, v{qq}, v{qq+1}")
    pre, post, mid = {}, {}, {}
    add(post, 16, lambda: mstamp(a))
    for s in range(16, 32): add(pre, s, lambda s=s: T.wv(s))
    SLATE = env("SLATE", 1)
    for c in range(3):
        add(mid, (20 + 4 * c, 3), lambda c=c: (epi(c), SLATE or stats(c)))
        add(mid, (OST, 1 + c), lambda c=c: ost(c))
    for k_, l_ in W3P.items():
        if isinstance(k_, tuple): add(mid, k_, lambda l_=l_: [w3_piece(T, *x) for x in l_])
    add(mid, (32, 0), lambda: [own(c) for c in range(3)])
    win_compute(T, 2, rd, acc, True, FR, pre, post, mid)
    mstamp(a)
    T.e(f"s_setprio {env('LPRIO3', 0)}")
    epi(3); ost(3); own(3); T.wl("ow"); T.wv("w")
    T.e("s_barrier")
    mstamp(a)
    def rest(a_, which):
        T.a = a_
        for c in range(0 if SLATE else 3, 4): stats(c)
        T.e("s_and_b32 s36, s30, 3"); T.e("s_lshl_b32 s36, s36, 10"); T.e(f"s_add_u32 s36, s36, {REC}"); T.e(f"v_lshlrev_b32 v{t}, 3, v1"); T.e(f"v_add_u32 v{t}, s36, v{t}")
        for k in range(2): T.e(f"v_permlane32_swap_b32 v{S+k}, v{S+2+k}"); T.e(f"v_permlane32_swap_b32 v{S+4+k}, v{S+6+k}")
        T.e(f"v_pk_add_f32 {vr(S,2)}, {vr(S,2)}, {vr(S+2,2)}"); T.e(f"v_pk_add_f32 {vr(S+4,2)}, {vr(S+4,2)}, {vr(S+6,2)}")
        for k in range(2): T.e(f"ds_write_b64 v{t}, {vr(S+4*k,2)} offset:{512*k}")
    assert xn >= 18 and t == 6
    G2S.append(lambda: call_issue(a, rest, 2))

C2R = 230; SO3 = 254; SEL = 224; RX = [180, 200, 208, 216]
def g_compute(a, which):
    c = CFG[which]
    WM, WN, MT, NT, KBT, NS, NA, NW, TN16, STB, WB = [c[k] for k in "WM WN MT NT KBT NS NA NW TN16 STB WB".split()]
    v = VA(6, skip=which == 4); nm = f"G{which}"
    lane = 1; l16 = 2
    t = v(); t2 = v(); pt = v(4, 2)
    NTILE = 29 if which != 4 else 33
    a0 = v(); w0 = v(4, 1); aa = v(); wa = v(4, 1); J = v(); G = v(); NF = MT + NT
    if which == 3: acc = v(MT * NT * 4, 4); fX = v(NF * 4, 4); fY = v(NF * 4, 4); tmp = 255
    else: fX = v(NF * 4, 4); xf = v(); acc = v(MT * NT * 4, 4); fY = v(NF * 4, 4)
    assert v.hi <= SEL
    def A_(mt, nt): return acc + 4 * (mt * NT + nt)
    one, lead, oa, xo, so = pt, pt + 1, pt + 2, 255, SO3
    def signal(stage, wait):
        a.e(f"s_waitcnt vmcnt({wait})"); a.e(f"buffer_atomic_add v{one}, v{lead}, s[56:59], s49 offen offset:{(stage - ST_G3A) * 128} {SC}")
    s = Rec()
    if which == 3:
        s.e("s_lshr_b32 s34, s30, 1"); s.e("s_and_b32 s35, s30, 1")
        s.e(f"v_and_b32 v{J}, 15, v{lane}"); s.e(f"v_lshrrev_b32 v{G}, 4, v{lane}")
        s.e(f"s_mul_i32 s37, s34, {MT}")
        s.e(f"s_mul_i32 s36, s34, {MT*2048}"); s.e(f"v_add_u32 v{a0}, s36, v{l16}")
    nwr, wpos = w_bases(s, which, w0, 35, NT, wa, wa + 1)
    s.e("s_mov_b32 s42, 0"); s.e("s_mov_b32 s43, 0"); s.e("s_mov_b32 s48, 0")
    s.e(f"v_mov_b32 v{aa}, v{a0}")
    for i in range(nwr): s.e(f"v_mov_b32 v{wa+i}, v{w0+i}")
    if which == 3:
        b = Rec()
        b.e(f"s_load_dwordx2 s[6:7], s[0:1], {D_OUT}")
        lsrd(b, 16, oH2, H2SZ)
        b.e(f"s_mul_i32 s39, s37, {224*1024}"); b.e("s_mul_i32 s40, s29, 7"); b.e("s_lshl2_add_u32 s41, s35, s40")
        for P in range(4):
            b.e(f"s_add_u32 s36, s{41 if P < 3 else 40}, {P}"); spread(b, 44 + P, 36); b.e(f"s_add_u32 s{44+P}, s{44+P}, s39")
        b.e("s_lshl_b32 s36, s35, 9"); b.e("s_add_u32 s47, s47, s36")
        b.e("s_lshl1_add_u32 s49, s31, s34"); flag_off(b, 49, ST_G3A, 49)
        x3_srd(b, 84); lsrd(b, 88, oX1P, XSZ); lsrd(b, 24, oH, XSZ)
        b.e("s_lshl1_add_u32 s39, s33, s35"); b.e("s_lshl_b32 s36, s39, 1"); spread(b, 40, 36); b.e("s_lshl1_add_u32 s38, s31, s37"); b.e("s_lshl_b32 s36, s38, 16")
        b.e("s_add_u32 s40, s40, s36"); b.e("s_add_u32 s12, s40, 65536"); b.e("s_xor_b32 s41, s40, 0x20000"); b.e("s_lshl3_add_u32 s38, s28, s38"); b.e("s_lshl_b32 s39, s39, 7")
        b.e("s_lshl_b32 s13, s38, 16"); b.e("s_add_u32 s13, s13, s39"); b.e("s_add_u32 s14, s13, 65536")
        b.e("s_lshl_b32 s38, s38, 15"); b.e("s_add_u32 s38, s38, s39"); b.e(f"s_add_u32 s39, s38, {16*2048}"); b.e("s_mov_b32 s15, 0xffff0000")
        b.e("s_waitcnt lgkmcnt(0)"); b.srd(20, 6, 4 * MB)
        d = Rec()
        d.e(f"v_lshrrev_b32 v{so}, 1, v{G}"); d.e(f"v_lshlrev_b32 v{so}, 8, v{so}"); d.e(f"v_lshl_add_u32 v{so}, v{J}, 4, v{so}")
        d.e(f"v_and_b32 v{t}, 1, v{G}"); d.e(f"v_lshl_add_u32 v{so}, v{t}, 3, v{so}")
        d.e(f"v_lshrrev_b32 v{t}, 2, v{J}"); d.e(f"v_cmp_eq_u32 vcc, v{t}, v{G}"); d.e(f"v_and_b32 v{t}, 1, v{J}"); d.e(f"v_lshlrev_b32 v{t}, 4, v{t}")
        d.e(f"v_mov_b32 v{SEL}, 0x3f80"); d.e(f"v_lshlrev_b32 v{t}, v{t}, v{SEL}"); d.e(f"v_cndmask_b32 v{t}, 0, v{t}, vcc")
        d.e(f"v_and_b32 v{SEL}, 2, v{J}"); d.e(f"v_cmp_eq_u32 vcc, 0, v{SEL}")
        for i in (0, 1, 4, 5): d.e(f"v_mov_b32 v{SEL+i}, 0")
        d.e(f"v_cndmask_b32 v{SEL+2}, 0, v{t}, vcc"); d.e(f"v_cndmask_b32 v{SEL+3}, v{t}, v{SEL}, vcc")
        rowaddr(d, xo, J, t); d.e(f"v_lshl_add_u32 v{xo}, v{G}, 4, v{xo}")
        d.e(f"v_mov_b32 v{one}, 1"); d.e(f"v_mov_b32 v{lead}, 0x7f000000"); d.e(f"v_writelane_b32 v{lead}, 0, 0")
        e_ = Rec()
        e_.e(f"v_and_b32 v{oa+1}, 1, v{G}"); e_.e(f"v_lshlrev_b32 v{oa}, 11, v{J}"); e_.e(f"v_lshl_add_u32 v{oa}, v{oa+1}, 5, v{oa}")
        e_.e(f"v_lshrrev_b32 v{oa+1}, 1, v{G}"); e_.e(f"v_lshl_add_u32 v{oa}, v{oa+1}, 4, v{oa}")
        e_.e(f"v_lshrrev_b32 v{oa+1}, 3, v{J}"); e_.e(f"v_mul_u32_u24 v{oa+1}, {8*2048 - 64}, v{oa+1}"); e_.e(f"v_sub_u32 v{oa}, v{oa}, v{oa+1}")
        e_.e(f"v_add_u32 v{oa+1}, {8*2048}, v{oa}")
        e_.e(f"s_mul_i32 s36, s35, {NT*64}"); e_.e(f"s_add_u32 s36, s36, {CSO[which]}"); e_.e(f"v_lshlrev_b32 v{t}, 4, v{G}"); e_.e(f"v_add_u32 v{t}, s36, v{t}")
        e_.e(f"s_lshl_b32 s36, s34, 10"); e_.e(f"s_add_u32 s36, s36, {AUX+1024}"); e_.e(f"v_lshlrev_b32 v{t2}, 4, v{J}"); e_.e(f"v_add_u32 v{t2}, s36, v{t2}")
        e_.e("s_lshl1_add_u32 s36, s37, s35"); e_.e("s_lshl2_add_u32 s36, s31, s36"); e_.e("s_lshl_b32 s36, s36, 10")
        e_.e(f"v_add_u32 v{J}, s36, v{l16}"); e_.e(f"v_xor_b32 v{G}, 4096, v{J}")
        window_x(a, {29: s.l}); idle = b.l + d.l + e_.l
    else:
        for x in s.l + [f"v_mov_b32 v{xf}, 0x10000"]: a.e(x)
    def reads(F, kk):
        o = []
        for mt in range(MT): o.append(f"ds_read_b128 {vr(F+4*mt,4)}, v{aa} offset:{mt*2048+kk*1024}")
        for nt in range(NT):
            for h in range(2):
                r, imm = wpos(nt, kk, h)
                o.append(f"ds_read_b64_tr_b16 {vr(F+4*(MT+nt)+2*h,2)}, v{wa+r} offset:{imm}")
        return o
    def mix(rd, ex):
        rd = list(rd)
        if len(ex) > 4: return rd + list(ex)
        for i, x in enumerate(ex): rd.insert(min(len(rd), (i + 1) * len(rd) // (len(ex) + 1)), x)
        return rd
    def mfmas(F, rd, tail=(), zero=False):
        n = MT * NT; k = 0; tot = len(rd); span = max(1, n * 3 // 4); done = 0; tail = list(tail); per = -(-len(tail) // max(1, n - span))
        for nt, mt in [(nt, mt if nt % 2 == 0 else MT - 1 - mt) for nt in range(NT) for mt in range(MT)]:
            cc = acc + 4 * (mt * NT + nt)
            a.e(f"v_mfma_f32_16x16x32_bf16 {vr(cc,4)}, {vr(F+4*(MT+nt),4)}, {vr(F+4*mt,4)}, {0 if zero and (which == 3 or mt >= 2) else vr(cc,4)}")
            k += 1
            while rd and done < (tot * k + span - 1) // span: a.e(rd.pop(0)); done += 1
            if k >= span and k < n:
                for _ in range(min(per, len(tail))): a.e(tail.pop(0))
        assert not rd and not tail
    def stage(ex=(), ey=(), lim=NS-1, late=False, zero=False):
        if str(which) in os.environ.get("GST", "") or os.environ.get("JIT"): mstamp(a, True)
        a.e("s_waitcnt lgkmcnt(0)")
        book = ["s_add_u32 s42, s42, 16384", f"s_cmp_eq_u32 s42, {NA*16384}", "s_cselect_b32 s42, 0, s42",
                f"s_add_u32 s48, s48, {STB}", f"s_cmp_eq_u32 s48, {NW*STB}", "s_cselect_b32 s48, 0, s48", f"v_add_u32 v{aa}, s42, v{a0}"]
        book += [f"v_add_u32 v{wa+i}, s48, v{w0+i}" for i in range(nwr)]
        mfmas(fX, mix(reads(fY, 1), ex), book, zero)
        if late:
            a.e("s_waitcnt lgkmcnt(0)"); mfmas(fY, [], ["s_add_u32 s43, s43, 1"])
            for x in idle: a.e(x)
            a.e("s_barrier")
            for x in reads(fX, 0): a.e(x)
            return
        a.e("s_waitcnt lgkmcnt(0)"); a.e("s_barrier")
        mfmas(fY, mix(reads(fX, 0), ey), ["s_add_u32 s43, s43, 1", f"s_cmp_lt_u32 s43, {lim}"])
    def addp(k, R, zero=False):
        for e in range(2): a.e(f"v_mfma_f32_16x16x32_bf16 {vr(A_(k>>1, 2*(k&1)+e),4)}, {vr(SEL+2-2*e,4)}, {vr(R,4)}, {0 if zero else vr(A_(k>>1, 2*(k&1)+e),4)}")
    a.e("s_waitcnt lgkmcnt(0)"); a.e("s_barrier")
    mstamp(a)
    for x in reads(fX, 0): a.e(x)
    if which == 4:
        for h in range(2):
            for k in range(4): addp(k, RX[k] + 4 * h, h == 0)
    if which == 4:
        def st2(j): return [f"s_add_u32 s36, s46, {j*224*1024}\nbuffer_store_dwordx4 {vr(C2R+4*j,4)}, v{l16}, s[16:19], s36 offen {SC}",
                            f"s_add_u32 s36, s47, {j*224*1024}\nbuffer_store_dwordx2 {vr(C2R+16+2*j,2)}, v{SO3}, s[16:19], s36 offen {SC}"]
        stage(st2(0), st2(1), zero=True); stage(st2(2), st2(3)); signal(ST_G3B, 8)
        L0 = a.lab("mm"); a.e(f"{L0}:"); stage(lim=PUB2); a.e(f"s_cbranch_scc1 {L0}")
        signal(ST_G3, 0)
    else: stage(late=True, zero=True); mstamp(a)
    L = a.lab("mm"); a.e(f"{L}:")
    stage(lim=NS - 1 if which == 3 else SP0 - 1)
    a.e(f"s_cbranch_scc1 {L}")
    a.e("s_waitcnt lgkmcnt(0)")
    if which == 4:
        def out(mt, so_, srd):
            if mt & 1: a.e(f"s_add_u32 s36, s{so_}, 65536")
            for p in range(2):
                B = A_(mt, 2 * p)
                for e in range(4): a.e(f"v_and_or_b32 v{B+2*e}, v{B+2*e}, s15, v{xf}")
                for e in range(4): a.e(f"v_cvt_pk_bf16_f32 v{B+e}, v{B+2*e}, v{B+2*e+1}")
                a.e(f"buffer_store_dwordx4 {vr(B,4)}, v{l16}, s[{srd}:{srd+3}], s{36 if mt & 1 else so_} offen offset:{p*1024} {SC}")
        FS = [[fX + 4 * i for i in range(8)] + [232 + 4 * i for i in range(4)], [fY + 4 * i for i in range(8)] + [RXA + 2 + 4 * i for i in range(4)]]
        def rds(n):
            t, j = n >> 1, n & 1; F = FS[j]; ws = (SP0 + 2 * (t % 3) + j) % 6; o = []
            for kk in range(2):
                for i in range(2): o.append(f"ds_read_b128 {vr(F[8+2*kk+i],4)}, v{a0} offset:{(SP0+t)%3*16384 + (2*j+i)*2048 + kk*1024}")
            for kk in range(2):
                for nt in range(4):
                    for h in range(2):
                        r, imm = wpos(nt, kk, h)
                        o.append(f"ds_read_b64_tr_b16 {vr(F[4*kk+nt]+2*h,2)}, v{(w0, wa)[ws//3]+r} offset:{imm + ws%3*16384}")
            return o
        def half(n, rd, hook=None):
            F = FS[n & 1]; m0_ = 2 if n < 6 else 0; rd = list(rd); tot = len(rd); done = 0
            for k, (kk, nt, i) in enumerate([(kk, nt, i ^ (nt & 1)) for kk in range(2) for nt in range(4) for i in range(2)]):
                if k == 8:
                    a.e(f"s_waitcnt lgkmcnt({done})")
                    if n == 11: a.e("s_barrier")
                a.e(f"v_mfma_f32_16x16x32_bf16 {vr(A_(m0_+i,nt),4)}, {vr(F[4*kk+nt],4)}, {vr(F[8+2*kk+i],4)}, {vr(A_(m0_+i,nt),4)}")
                while rd and done < (tot * (k + 1) + 15) // 16: a.e(rd.pop(0)); done += 1
                if hook and k == 3: hook()
        PX = A_(2, 0)
        pl = [f"buffer_load_dwordx4 {vr(PX+4*k,4)}, v{l16}, s[24:27], s{(40, 12)[k>>1]} offen offset:{(k&1)*1024} {SC}" for k in range(4)]
        mfmas(fX, reads(fY, 1), [f"v_add_u32 v{wa+i}, {3*16384}, v{w0+i}" for i in range(nwr)])
        a.e("s_waitcnt lgkmcnt(0)"); a.e("s_barrier")
        mfmas(fY, rds(0))
        PLN = env("PLN", 10)
        for n in range(12):
            a.e("s_waitcnt lgkmcnt(8)")
            if n & 1 and n < 11: a.e("s_barrier")
            if os.environ.get("JIT") or ("4" in GSTW and not n & 1): mstamp(a, True)
            half(n, rds(n + 1) if n < 11 else [], (lambda: (out(2, 41, 24), out(3, 41, 24))) if n == 6 else (lambda: [a.e(x) for x in pl]) if n == PLN else None)
        mstamp(a, "4" in GSTW)
        data_wait(a, pl, list(range(PX, PX + 16)), t, nap=env("NAPF", 1), first=False)
        mstamp(a)
        for k in range(4): addp(k, PX + 4 * k)
        a.e("s_cmp_eq_u32 s60, 1"); a.e("s_cbranch_scc1 G4_last")
        out(0, 40, 88); out(1, 40, 88)
        r_pre(a)
        mstamp(a)
        a.e("s_branch NEXT")
        a.e("G4_last:")
        for k in range(4):
            B = A_(k >> 1, 2 * (k & 1))
            for e in range(4): a.e(f"v_cvt_pk_bf16_f32 v{B+e}, v{B+2*e}, v{B+2*e+1}")
            for e in range(2): a.e(f"v_permlane16_swap_b32 v{B+e}, v{B+2+e}")
            if k & 1:
                X, Y_, T = B - 8, B, B + 4
                for e in range(4): a.e(f"v_mov_b32 v{T+e}, v{X+e}")
                for e in range(4): a.e(f"v_mov_b32_dpp v{X+e}, v{Y_+e} row_ror:8 row_mask:0xf bank_mask:0xc")
                for e in range(4): a.e(f"v_mov_b32_dpp v{Y_+e}, v{T+e} row_ror:8 row_mask:0xf bank_mask:0x3")
                a.e(f"buffer_store_dwordx4 {vr(X,4)}, v{oa}, s[20:23], s{38+(k>>1)} offen {os.environ.get('OS', SC).replace('_', ' ')}")
                a.e(f"buffer_store_dwordx4 {vr(Y_,4)}, v{oa+1}, s[20:23], s{38+(k>>1)} offen {os.environ.get('OS', SC).replace('_', ' ')}")
        a.e("s_branch K_fin")
        return
    mfmas(fX, reads(fY, 1))
    a.e("s_waitcnt lgkmcnt(0)")
    a.e("s_barrier")
    cs = fX; lns = fX + 4 * NT
    mfmas(fY, [f"ds_read_b128 {vr(cs+4*nt,4)}, v{t} offset:{nt*64}" for nt in range(NT)] + [f"ds_read_b128 {vr(lns+4*mt,4)}, v{t2} offset:{mt*256}" for mt in range(MT)])
    mstamp(a)
    if which == 3:
        tp = fY + 12
        def act(tiles):
            P_ = [(A_(mt, nt) + 2 * h, tp + 4 * i + 2 * h, vr(lns + 4 * mt, 2), vr(lns + 4 * mt + 2, 2), cs + 4 * nt + 2 * h) for i, (mt, nt) in enumerate(tiles) for h in range(2)]
            for x, u, L_, K_, c_ in P_: a.e(f"v_pk_fma_f32 {vr(x,2)}, {L_}, {vr(c_,2)}, {vr(x,2)} op_sel_hi:[0,1,1] neg_lo:[1,0,0] neg_hi:[1,0,0]")
            for x, u, L_, K_, c_ in P_: a.e(f"v_pk_mul_f32 {vr(u,2)}, {vr(x,2)}, {vr(x,2)}")
            for x, u, L_, K_, c_ in P_: a.e(f"v_pk_fma_f32 {vr(u,2)}, {vr(u,2)}, {K_}, {K_} op_sel:[0,1,0] op_sel_hi:[1,1,0]")
            for x, u, L_, K_, c_ in P_: a.e(f"v_pk_mul_f32 {vr(u,2)}, {vr(u,2)}, {vr(x,2)}")
            for i in range(8): a.e(f"v_exp_f32 v{tp+i}, v{tp+i}")
            for x, u, L_, K_, c_ in P_: a.e(f"v_pk_fma_f32 {vr(u,2)}, {vr(u,2)}, {L_}, {L_} op_sel:[0,1,1] op_sel_hi:[1,1,1]")
            for i in range(8): a.e(f"v_rcp_f32 v{tp+i}, v{tp+i}")
            for x, u, L_, K_, c_ in P_: a.e(f"v_pk_mul_f32 {vr(x,2)}, {vr(x,2)}, {vr(u,2)}")
        def group(mt, nts, dst=None):
            if len(nts) == 2: act([(mt, nt) for nt in nts])
            elif mt % 2 == 0: act([(mt, nts[0]), (mt + 1, nts[0])])
            P = nts[0] >> 1; B = A_(mt, nts[0]); D = B if dst is None else dst
            for k in range(2 * len(nts)): a.e(f"v_cvt_pk_bf16_f32 v{D+k}, v{B+2*k}, v{B+2*k+1}")
            return [f"s_add_u32 s36, s{44+P}, {mt*224*1024}", f"buffer_store_dwordx4 {vr(B,4)}, v{l16}, s[16:19], s36 offen {SC}"]
        def body():
            gs = [(0, 1), (2, 3), (4, 5), (6,)]
            k = 0; pend = []; sent = 0; RXK = env("RXK", 7); assert RXK >= C0PUB and RXK + 4 <= STQ + 1
            for gi_, g_ in enumerate(gs):
                for mt in range(MT):
                    if k == C0PUB: signal(ST_G3A, sent - 4); mstamp(a)
                    if RXK <= k < RXK + 4:
                        i, p = (k - RXK) >> 1, (k - RXK) & 1
                        a.e(f"buffer_load_dwordx4 {vr(RX[2*i+p],4)}, v{xo}, s[84:87], s{13+i} offen offset:{p*64} {SC}")
                        a.e(f"buffer_load_dwordx4 {vr(RX[2*i+p]+4,4)}, v{l16}, s[88:91], s{(40, 12)[i]} offen offset:{p*1024} {SC}")
                    st_ = group(mt, g_, None if gi_ < 2 else C2R + 4 * mt if gi_ == 2 else C2R + 16 + 2 * mt); k += 1
                    if gi_ < 3:
                        a.e(f"ds_write_b128 v{(J, G)[mt>>1]}, {vr(A_(mt, g_[0]) if gi_ < 2 else C2R + 4 * mt, 4)} offset:{gi_*16384 + (mt&1)*2048}")
                    if gi_ < 2: pend.append(st_)
                    n = len(pend) if (k <= 4 or k == 16) else 0 if k <= STQ else min(1, len(pend))
                    for _ in range(n):
                        for x in pend.pop(0): a.e(x)
                        sent += 1
            a.e("s_waitcnt vmcnt(4) lgkmcnt(0)")
        a.e("s_waitcnt lgkmcnt(0)"); a.e("s_nop 7")
        body()
        mstamp(a)

def k_mega(a):
    nm = KNAME; a.begin_kernel(nm)
    a.e("s_cmp_ge_u32 s2, 256"); a.e("s_cbranch_scc1 K_end")
    a.e(f"s_load_dwordx8 s[8:15], s[0:1], {A_K}"); a.e(f"s_load_dwordx2 s[6:7], s[0:1], {A_Q}"); a.e(f"s_load_dwordx8 s[68:75], s[0:1], {B_W1}")
    a.e(f"s_load_dwordx2 s[4:5], s[0:1], {D_WS}"); a.e(f"s_load_dwordx2 s[84:85], s[0:1], {D_DBG}"); a.e("s_memrealtime s[46:47]")
    a.e(f"s_load_dwordx2 s[76:77], s[0:1], {A_SSMD}")
    a.e("v_lshrrev_b32 v1, 6, v0"); a.e("v_readfirstlane_b32 s30, v1")
    CS = env("CS", 3)
    def codepf():
        a.e("s_getpc_b64 s[48:49]"); a.e("K_pc:")
        a.e("s_lshr_b32 s36, s2, 3"); a.e(f"s_lshl_b32 s36, s36, {9+CS}")
        a.e(f"v_lshlrev_b32 v252, {CS}, v0"); a.e("v_add_u32 v252, s36, v252")
        a.e("v_cmp_gt_u32 vcc, K_end-K_pc-8, v252"); a.e("s_and_saveexec_b64 s[36:37], vcc"); a.e("s_cbranch_execz K_3")
        a.e("v_mov_b32 v253, s49"); a.e("v_add_co_u32 v252, vcc, s48, v252"); a.e("v_addc_co_u32 v253, vcc, 0, v253, vcc")
        a.e("global_load_dword v250, v[252:253], off")
        a.e("K_3:"); a.e("s_mov_b64 exec, -1")
    if env("CPF", 0) == 0: codepf()
    front_loads(a)
    if env("CPF", 0) == 1: codepf()
    a.e("v_and_b32 v1, 63, v0"); a.e("v_lshlrev_b32 v2, 4, v1"); a.e("v_lshlrev_b32 v3, 2, v1")
    a.e("s_and_b32 s32, s2, 7"); a.e("s_lshr_b32 s33, s2, 3")
    a.e("s_and_b32 s28, s32, 2"); a.e("s_lshr_b32 s34, s32, 2"); a.e("s_or_b32 s28, s28, s34")
    a.e("s_lshl_b32 s28, s28, 2"); a.e("s_and_b32 s34, s33, 3"); a.e("s_add_u32 s28, s28, s34")
    a.e("s_and_b32 s31, s32, 1"); a.e("s_lshr_b32 s33, s33, 2")
    a.e("s_lshl_b32 s29, s31, 3"); a.e("s_add_u32 s29, s29, s33")
    a.e("s_mov_b32 s60, 0"); a.e("s_mov_b32 s61, 40000"); a.e("s_mov_b32 s52, 0")
    a.e("s_mov_b32 s55, 0"); a.e("s_mov_b32 s92, 0"); a.e("s_mov_b32 s93, 0"); a.e("s_mov_b32 s94, 0")
    a.srd(56, 4, X3G)
    a.e(f"s_add_u32 s62, s4, {LB0}"); a.e("s_addc_u32 s63, s5, 0")
    if STAMP:
        a.e("s_mov_b32 s66, 1"); a.e("v_mov_b32 v4, -1"); a.e("v_mov_b32 v5, 0"); a.e("s_mov_b32 s95, 0"); a.e("v_writelane_b32 v4, s46, 0")
    mstamp(a)
    front_a(a); mstamp(a)
    a.e("s_cmp_ge_u32 s30, 4"); a.e("s_cbranch_scc1 FR_b")
    front_conv(a)
    mstamp(a)
    a.e("s_waitcnt vmcnt(4)")
    a.e("s_branch FR_end")
    a.e("FR_b:")
    front_b(a)
    mstamp(a)
    a.e("FR_end:")
    r_stage(a, True)
    a.e("s_waitcnt lgkmcnt(0)"); a.e("s_barrier")
    mstamp(a)
    a.e("LAYER:")
    r_stage(a)
    mstamp(a)
    for w in (3, 4): g_compute(a, w)
    a.e("LOADERS:")
    window_y(a)
    a.e("s_cmp_ge_u32 s30, 6"); a.e("s_cbranch_scc1 WLOAD")
    for w in (3, 4): a_loader(a, w)
    a.e("WLOAD:")
    w_loader(a, 3); w_setup(a, 4); w_loader(a, 4)
    y_end(a)
    a.e("NEXT:")
    a.e("s_setprio 0")
    a.e("s_add_u32 s60, s60, 1"); a.e(f"s_add_u32 s55, s55, {LSTR}")
    a.e(f"s_add_u32 s62, s62, {LSTR}"); a.e("s_addc_u32 s63, s63, 0")
    a.e("s_branch LAYER")
    a.e("K_fin:")
    if STAMP:
        a.e("s_waitcnt vmcnt(0)")
        mstamp(a)
        a.srd(96, 4, 16 * MB, off=200 * MB)
        a.e("s_lshl_b32 s66, s2, 3"); a.e("s_add_u32 s66, s66, s30"); a.e("s_lshl_b32 s66, s66, 8")
        a.e("v_writelane_b32 v4, s95, 63")
        a.e("buffer_store_dword v4, v3, s[96:99], s66 offen")
        a.e("s_add_u32 s66, s66, 0x100000"); a.e("buffer_store_dword v5, v3, s[96:99], s66 offen")
    a.e("s_endpgm")
    emit_subs(a)
    a.e("K_end:")
    a.end_kernel(nm, 256)
    a.launches.append(f"; @launch grid=(256,1,1) block=(512,1,1) lds={LDS_TOTAL}")

HEADER = open("interleave_layers__ssm_conv_h3__mixer_s_mlp__prompt.s.ref").read().split("; Override launch")[0]
DOC = """; One persistent kernel, 256 workgroups x 8 waves (one per CU), generated by dev/gen32.py.
"""
def main(out):
    a = Asm()
    k_mega(a)
    notes = {
        "K_pc:": "each workgroup reads 4 KB of this kernel's code so that later instruction fetches are served on chip",
        "KV_t0:": "k / v / tap loads of the u^T tile (64 times x 128 channels); workgroup 0 has posted the launch tag (a clock value) in d_debug",
        "HB_1:": "u^T tile out, shifted filter copies into LDS, first part of the W2 slice",
        "CV_w:": "long causal convolution as Toeplitz MFMAs, one channel per wave",
        "FR_b:": "waves 4-7 beside the convolution: memory-locality vote (timed loads, layout choice only), weight loads",
        "LAYER:": "row stage: LayerNorm chain, x + LN(x)*y for 8 rows per workgroup",
        "LOADERS:": "waves 4-7: loads of G1, MFMAs of G2; then waves 4,5: activation tiles by LDS-DMA (after the producers' counters are complete)",
        "WLOAD:": "waves 6,7: weight tiles by LDS-DMA in their original layout (read back with transposing LDS loads)",
        "G4_last:": "last layer: write the output",
    }
    o = []
    for l in a.lines:
        if l.strip() in notes: o.append("; ---- " + notes[l.strip()])
        if l.strip().startswith("s_sleep"): l += "    ; back-off inside a wait loop"
        o.append(l)
    a.lines = o
    open(out, "w").write(a.text(HEADER + DOC))
    print("nops added:", a.nops_added, "| slots", [WSLOT[s] // KB for s in range(32)], "| issue", {k: x for k, x in WISSUE.items() if x})

if __name__ == "__main__":
    main(sys.argv[1] if len(sys.argv) > 1 else "interleave_layers__ssm_conv_h3__mixer_s_mlp__prompt.s")
```

```python
import sys, os, math, struct
sys.path.insert(0, "dev")
from asmgen import Asm

KNAME = "interleave_layers__ssm_conv_h3__mixer_s_mlp__prompt_kernel"
MB = 1 << 20; KB = 1024
UT, PRB = 24 * MB, 28 * MB; Y = UT
CSP3 = 20 * MB + 128 * 1024
A_Q, A_K, A_V, A_SH, A_SSMK, A_SSMD, B_X, B_W1, B_W2, B_W3, B_W4, D_OUT, D_DBG, D_WS = [8 * i for i in range(14)]
def env(k, d): return type(d)(os.environ.get(k, d)) if not isinstance(d, (list, dict, tuple)) else eval(os.environ.get(k, repr(d)))
STAMP = env("STAMP", 0)
def f32(x): return "0x%08x" % struct.unpack("<I", struct.pack("<f", x))[0]
GC1 = -2.0 * math.sqrt(2.0 / math.pi) * math.log2(math.e)

WAD = 74
RB0, RB1 = 78, 118
WR0 = 128
class VA:
    def __init__(self, start=1, skip=False): self.n = start; self.hi = start; self.skip = skip
    def __call__(self, cnt=1, al=None):
        if al is None: al = 2 if cnt > 1 else 1
        self.n = (self.n + al - 1) // al * al
        if self.skip and self.n < RB1 and self.n + cnt > RB0: self.n = (RB1 + al - 1) // al * al
        r = self.n; self.n += cnt; self.hi = max(self.hi, self.n); return r
def vr(b, n): return f"v[{b}:{b+n-1}]" if n > 1 else f"v{b}"

def unpack(a, lo, hi, src):
    a.e(f"v_lshlrev_b32 v{lo}, 16, v{src}")
    a.e(f"v_and_b32 v{hi}, 0xffff0000, v{src}")
def round2(a, x, y, tmp):
    a.e(f"v_cvt_pk_bf16_f32 v{tmp}, v{x}, v{y}")
    unpack(a, x, y, tmp)
def round1(a, x):
    a.e(f"v_cvt_pk_bf16_f32 v{x}, v{x}, v{x}")
    a.e(f"v_lshlrev_b32 v{x}, 16, v{x}")
def ln_finish(a, mean, var, rs):
    round1(a, mean); round1(a, var)
    a.e(f"v_add_f32 v{var}, {f32(1e-5)}, v{var}"); round1(a, var)
    a.e(f"v_sqrt_f32 v{var}, v{var}"); round1(a, var)
    if rs is not None: a.e(f"v_rcp_f32 v{rs}, v{var}")

FLG = 22 * MB
LB0, LSTR, GSTR = 32 * MB, 64 * MB, 8 * MB
oH2 = 0; oSM = 1792 * 1024; oST2 = oSM + 32768
oH, oX1P = [4 * MB + i * 512 * 1024 for i in range(2)]
XSZ = 512 * 1024 - 8192; H2SZ = 1792 * 1024 - 8192
X3G = 160 * MB
LNSG = FLG + 128 * KB
def spread(a, d, src):
    a.e(f"s_lshr_b32 s53, s{src}, 3"); a.e("s_lshl_b32 s53, s53, 14"); a.e(f"s_and_b32 s{d}, s{src}, 7"); a.e(f"s_lshl_b32 s{d}, s{d}, 10"); a.e(f"s_add_u32 s{d}, s{d}, s53")
ST_R, ST_G2, ST_G4, ST_G3A, ST_G3B, ST_G3, ST_G2S = 0, 8, 12, 32, 36, 40, 44
FH = 2048
F_KVT, F_FRONT, F_CS = FLG + 256 * KB, FLG + 512 * KB, FLG
LDS_TOTAL = 163840
AUX = LDS_TOTAL - 4096
SC = "sc1"
PSLEEP = env("PSLEEP", 5); PACE = env("PACE", 8); STQ = env("STQ", 12); FSLEEP = env("FSLEEP", 3)
NT = os.environ.get("NT", "nt"); NTK = NT; NTH = NT
PUB2 = env("PUB2", 4); MAP = env("MAP", 4); HSPLIT = env("HSPLIT", 2); PWAIT = env("PWAIT", 8)
PACES = env("PACES", {4: 8}); C0PUB = env("C0PUB", 7)
REC, LNSL = 152 * KB, AUX + 1024
WST = 24 * KB

CFG = {1: dict(KBT=32, NW=16, LDW=2048, TN16=4, WB=0),
       3: dict(WM=2, WN=2, MT=4, NT=7, KBT=32, NS=16, NA=3, NW=3, A=oX1P, LDW=7168, NPRE=2, WR=2),
       4: dict(WM=2, WN=2, MT=4, NT=4, KBT=112, NS=28, NA=3, NW=6, A=oH2, LDW=2048)}
for w, c in CFG.items():
    c.setdefault("NPRE", c["NW"]); c.setdefault("WR", 1)
    if w > 1: c["TN16"] = c["WN"] * c["NT"]; c["WB"] = c["NA"] * 16384
    c["STB"] = c["TN16"] * 2048; c["RB"] = c["TN16"] * 32
CFG[2] = CFG[1]
CSO = {3: AUX}

LW = AUX + 3072
def mstamp(a, force=False):
    if os.environ.get("JIT"):
        X = a.lab("jit")
        a.e("s_cselect_b32 s101, 1, 0"); a.e("s_memtime s[64:65]"); a.e("s_waitcnt lgkmcnt(0)"); a.e(f"s_and_b32 s64, s64, {os.environ['JIT']}"); a.e("s_cmp_lg_u32 s64, 0")
        a.e(f"s_cbranch_scc1 {X}"); a.e("s_sleep 50"); a.e(f"{X}:"); a.e("s_cmp_eq_u32 s101, 1")
        return
    if not STAMP or (os.environ.get("GST") and not force): return
    if STAMP == 1:
        fn = sys._getframe(1)
        while fn.f_code.co_name in ("<lambda>", "flag"): fn = fn.f_back
        if fn.f_code.co_name in ("front_b", "window_y", "w_setup", "w_loader", "a_loader", "wait2", "run", "front_a"): return
        if fn.f_code.co_name == "win_compute" and fn.f_locals["g"] == 2: return
        a.e("s_memrealtime s[64:65]"); a.e("s_mov_b32 s100, m0"); a.e("s_mov_b32 m0, s66"); a.e("s_waitcnt lgkmcnt(0)")
        a.e("v_writelane_b32 v4, s64, m0"); a.e("s_mov_b32 m0, s100"); a.e("s_add_u32 s66, s66, 1")
        return
    a.e("s_memrealtime s[64:65]"); a.e("s_memtime s[96:97]")
    a.e("s_mov_b32 s100, m0"); a.e("s_mov_b32 m0, s66"); a.e("s_waitcnt lgkmcnt(0)")
    a.e("v_writelane_b32 v4, s64, m0"); a.e("v_writelane_b32 v5, s96, m0")
    a.e("s_mov_b32 m0, s100"); a.e("s_add_u32 s66, s66, 1")

def lsrd(a, d, off, nbytes, prev=False):
    if prev:
        a.e(f"s_sub_u32 s{d}, s62, {LSTR - off:#x}"); a.e(f"s_subb_u32 s{d+1}, s63, 0")
        a.e(f"s_mov_b32 s{d+2}, {nbytes:#x}"); a.e(f"s_mov_b32 s{d+3}, 0x20000")
    else: a.srd(d, 62, nbytes, off=off)
def x3_srd(a, d):
    a.e(f"s_lshl_b32 s{d+2}, s60, 24"); a.e(f"s_lshl_b32 s{d+3}, s94, 13"); a.e(f"s_add_u32 s{d+2}, s{d+2}, s{d+3}"); a.e(f"s_add_u32 s{d+2}, s{d+2}, {X3G}")
    a.e(f"s_add_u32 s{d}, s4, s{d+2}"); a.e(f"s_addc_u32 s{d+1}, s5, 0"); a.e(f"s_mov_b32 s{d+2}, {8*MB - 8192}"); a.e(f"s_mov_b32 s{d+3}, 0x20000")
def lns_srd(a, d):
    a.e(f"s_lshl_b32 s{d+2}, s60, 15"); a.e(f"s_add_u32 s{d+2}, s{d+2}, {LNSG}")
    a.e(f"s_add_u32 s{d}, s4, s{d+2}"); a.e(f"s_addc_u32 s{d+1}, s5, 0"); a.e(f"s_mov_b32 s{d+2}, 32768"); a.e(f"s_mov_b32 s{d+3}, 0x20000")
def rowaddr(a, d, r, t):
    a.e(f"v_and_b32 v{t}, 3, v{r}"); a.e(f"v_lshrrev_b32 v{d}, 2, v{r}"); a.e(f"v_lshlrev_b32 v{d}, 14, v{d}"); a.e(f"v_lshl_add_u32 v{d}, v{t}, 11, v{d}")

def group_off(a, d, m):
    a.e(f"s_lshr_b32 s53, s{m}, 3"); a.e("s_lshl_b32 s53, s53, 2"); a.e(f"s_and_b32 s54, s{m}, 3"); a.e("s_add_u32 s53, s53, s54"); a.e("s_lshl_b32 s53, s53, 23")
    a.e(f"s_lshr_b32 s54, s{m}, 2"); a.e("s_xor_b32 s54, s54, s94"); a.e("s_and_b32 s54, s54, 1"); a.e("s_lshl_b32 s54, s54, 13")
    a.e(f"s_add_u32 s{d}, s53, s54"); a.e(f"s_add_u32 s{d}, s{d}, {LB0}")

def poll_core(a, t, ad, mask, cnt=0, nap=None):
    L = a.lab("poll"); D = a.lab("pok")
    a.e("s_mov_b32 s53, 0"); a.e(f"s_add_u32 s54, s52, {cnt}")
    a.e(f"s_bfm_b64 exec, {mask.bit_length()}, 0")
    a.e(f"{L}:")
    a.e(f"buffer_load_dword v{t}, v{ad}, s[56:59], 0 offen {SC}")
    a.e("s_waitcnt vmcnt(0)")
    a.e(f"v_cmp_eq_u32 vcc, s54, v{t}")
    a.e("s_cmp_eq_u64 vcc, exec"); a.e(f"s_cbranch_scc1 {D}")
    a.e(f"s_sleep {PSLEEP if nap is None else nap}")
    a.e("s_add_u32 s53, s53, 1"); a.e("s_cmp_lt_u32 s53, s61"); a.e(f"s_cbranch_scc1 {L}")
    a.e("s_mov_b32 s61, 0")
    a.e(f"{D}:")
    a.e("s_mov_b64 exec, -1")

def flag_off(a, d, stage, sub, prev=False):
    a.e(f"s_lshl_b32 s{d}, s{sub}, 7"); a.e(f"s_add_u32 s{d}, s{d}, s55")
    so = stage * 128 - (LSTR if prev else 0)
    if so: a.e(f"s_add_u32 s{d}, s{d}, {so & 0xffffffff:#x}")
def flag_in(a, d, stage, prev=False):
    if stage in (ST_R, ST_G2): a.e(f"s_add_u32 s{d}, s55, {stage*128}"); return 1 if stage == ST_R else 4
    if stage == ST_G4: a.e(f"s_lshl_b32 s{d}, s31, 1")
    else:
        a.e(f"s_and_b32 s{d}, s30, 1")
        if stage != ST_G2S: a.e(f"s_lshl1_add_u32 s{d}, s31, s{d}")
    flag_off(a, d, stage, d, prev)
    return 2 if stage == ST_G4 else 1
def flag_addr(a, r, stage, prev=False):
    n = flag_in(a, 54, stage, prev)
    if stage == ST_R:
        a.e("s_bitcmp1_b32 s29, 2"); a.e("s_cselect_b32 s53, s93, s92"); a.e("s_add_u32 s53, s53, s54")
        a.e(f"v_mov_b32 v{r}, s54"); a.e(f"v_writelane_b32 v{r}, s53, 1")
        return 3
    a.e(f"v_mov_b32 v{r}, s54")
    a.e(f"v_lshl_add_u32 v{r}, v1, 7, v{r}")
    return (1 << n) - 1
def flag_try(a, d, off): a.e(f"s_load_dword s{d}, s[4:5], s{off}")
def flag_check(a, d, off, t):
    D = a.lab("fok")
    a.e("s_add_u32 s54, s52, 16"); a.e("s_waitcnt lgkmcnt(0)"); a.e(f"s_cmp_eq_u32 s{d}, s54"); a.e(f"s_cbranch_scc1 {D}")
    a.e(f"v_mov_b32 v{t+1}, s{off}"); poll_core(a, t, t + 1, 1, cnt=16)
    a.e(f"{D}:")

def poll(a, stage, t, prev=False, wave=4, nap=None):
    D = a.lab("pdone")
    a.e(f"s_cmp_lg_u32 s30, {wave}"); a.e(f"s_cbranch_scc1 {D}")
    poll_core(a, t, t + 1, flag_addr(a, t + 1, stage, prev), cnt=16, nap=nap)
    a.e(f"{D}:")
    a.e("s_waitcnt lgkmcnt(0)"); a.e("s_barrier")

def publish(a, stage, t, off=None, wait=0):
    if off is None:
        off = 53
        if stage == ST_G4: flag_off(a, 53, stage, 30)
        else:
            a.e({ST_G2: "s_and_b32 s53, s30, 3", ST_G2S: "s_and_b32 s53, s30, 1"}.get(stage, "s_lshr_b32 s53, s30, 1"))
            if stage not in (ST_G2, ST_G2S): a.e("s_lshl1_add_u32 s53, s31, s53")
            flag_off(a, 53, stage, 53)
    a.e(f"v_mov_b32 v{t}, 1"); a.e(f"v_mov_b32 v{t+1}, 0")
    a.e("s_mov_b64 exec, 1")
    if wait is not None: a.e(f"s_waitcnt vmcnt({wait})")
    a.e(f"buffer_atomic_add v{t}, v{t+1}, s[56:59], s{off} offen {SC}")
    a.e("s_mov_b64 exec, -1")

def data_wait(a, loads, regs, t, between=None, nap=2, first=True):
    L = a.lab("dw"); D = a.lab("dok")
    for x in loads if first else []: a.e(x)
    if between: between()
    a.e("s_mov_b32 s53, 0")
    a.e(f"{L}:")
    a.e("s_waitcnt vmcnt(0)")
    h = len(regs) // 2
    for k, part in enumerate((regs[:h], regs[h:])): a.e(f"v_and_b32 v{t+k}, v{part[0]}, v{part[1]}")
    for i in range(2, h, 2):
        for k, part in enumerate((regs[:h], regs[h:])): a.e(f"v_bitop3_b32 v{t+k}, v{part[i]}, v{part[i+1]}, v{t+k} bitop3:0x80")
    a.e(f"v_bitop3_b32 v{t}, v{t}, v{t+1}, 1 bitop3:0x80"); a.e(f"v_cmp_eq_u32 vcc, 0, v{t}")
    a.e("s_cmp_eq_u64 vcc, 0"); a.e(f"s_cbranch_scc1 {D}")
    a.e("s_mov_b64 exec, vcc")
    a.e(f"s_sleep {nap}")
    for x in loads: a.e(x)
    a.e("s_add_u32 s53, s53, 1"); a.e("s_cmp_lt_u32 s53, s61"); a.e(f"s_cbranch_scc1 {L}")
    a.e("s_mov_b32 s61, 0"); a.e("s_waitcnt vmcnt(0)")
    a.e(f"{D}:")
    a.e("s_mov_b64 exec, -1")
    if STAMP: a.e("s_lshl_b32 s53, s53, 24"); a.e("s_add_u32 s95, s95, s53")
def lsb0(a, r):
    a.e(f"v_add_u32 v{r}, 0x10000, v{r}"); a.e(f"v_and_b32 v{r}, 0xfffe0000, v{r}")
MV = env("MV", ())
W1A, W1B = tuple(j for j in (11, 12, 15, 13, 14, 3, 4, 5, 6, 0) if j not in MV), (7, 8, 1, 2, 9, 10) + MV
W2S = (-3, -2, -1) + W1B
def lds_spin(a, addr, target, t, dst=53, nap=False):
    L = a.lab("spin")
    a.e(f"v_mov_b32 v{t}, {addr}")
    a.e(f"{L}:")
    if nap: a.e(f"s_sleep {int(nap)}")
    a.e(f"ds_read_b32 v{t+1}, v{t}"); a.e("s_waitcnt lgkmcnt(0)"); a.e(f"v_readfirstlane_b32 s{dst}, v{t+1}")
    a.e(f"s_cmp_ge_u32 s{dst}, {target}"); a.e(f"s_cbranch_scc0 {L}")
def lds_set(a, addr, val, t):
    a.e(f"v_mov_b32 v{t}, {addr}"); a.e(f"v_mov_b32 v{t+1}, {val}")
    a.e("s_waitcnt lgkmcnt(0)"); a.e(f"ds_write_b32 v{t}, v{t+1}")
def lds_inc(a, addr, t):
    a.e(f"v_mov_b32 v{t}, {addr}"); a.e(f"v_mov_b32 v{t+1}, 1")
    a.e("s_waitcnt lgkmcnt(0)")
    a.e("s_mov_b64 exec, 1"); a.e(f"ds_add_u32 v{t}, v{t+1}"); a.e("s_mov_b64 exec, -1")
def lbar(a, k, t, addr=LW + 8, nap=False):
    lds_inc(a, addr, t); lds_spin(a, addr, 4 * k, t, nap=nap)

class Rec:
    def __init__(s_): s_.l = []
    def e(s_, x): s_.l.append(x)
    srd = Asm.srd
class Track:
    def __init__(s, a): s.a = a; s.vq = []; s.lq = []
    def e(s, x): s.a.e(x)
    def vm(s, x, tag=None): s.a.e(x); s.vq.append(tag)
    def ds(s, x, tag=None): s.a.e(x); s.lq.append(tag)
    def _w(s, q, tag, nm, mx):
        if tag not in q: return
        i = max(k for k, x in enumerate(q) if x == tag); n = len(q) - 1 - i
        assert n <= mx
        s.a.e(f"s_waitcnt {nm}({n})"); del q[:i + 1]
    def wv(s, tag): s._w(s.vq, tag, "vmcnt", 63)
    def wl(s, tag): s._w(s.lq, tag, "lgkmcnt", 15)
    def nv(s, tag):
        return len(s.vq) - 1 - max(k for k, x in enumerate(s.vq) if x == tag)
NVOTE = 255
HSTR = 4160; CHB = 21504; UOFF = 4 * HSTR
RFO, RYO, RRO, RI, RXO, RT, RXA, RXB, RYF, RYY = 78, 79, 80, 81, 82, 84, 86, 94, 102, 110
WVB = {1: 118, 2: 118, 4: 119, 3: 121}

NRAW = env("NRAW", 8)
KL, VL = 96 * KB, 113 * KB
def front_loads(a):
    vA, vB, t, t2 = 6, 7, 8, 9
    a.e(f"v_bfe_u32 v{t}, v0, 4, 2"); a.e(f"v_and_b32 v{t2}, 15, v0"); a.e(f"v_lshlrev_b32 v{vA}, 11, v{t}"); a.e(f"v_lshlrev_b32 v{t}, 1, v{t}")
    a.e(f"v_xor_b32 v{t}, v{t}, v{t2}"); a.e(f"v_lshl_add_u32 v{t}, v{t}, 4, v{vA}")
    a.e("s_and_b32 s34, s2, 7"); a.e("s_lshr_b32 s35, s2, 3")
    a.e("s_lshl_b32 s36, s35, 17"); a.e("s_lshl_b32 s37, s34, 8"); a.e("s_add_u32 s36, s36, s37")
    a.e("s_lshl_b32 s37, s30, 6"); a.e("s_and_b32 s38, s37, 128"); a.e("s_add_u32 s37, s37, 64"); a.e("s_and_b32 s37, s37, 128")
    a.e(f"v_xor_b32 v{vA}, s38, v{t}"); a.e(f"v_xor_b32 v{vB}, s37, v{t}")
    a.e("s_lshl_b32 s37, s30, 14"); a.e("s_add_u32 s37, s37, s36"); a.e("s_add_u32 s38, s37, 8192"); a.e("s_lshl_b32 s39, s30, 11")
    a.e(f"s_mov_b32 s18, {4*MB}"); a.e("s_mov_b32 s19, 0x20000"); a.e("s_mov_b32 s22, s18"); a.e("s_mov_b32 s23, s19")
    a.e(f"s_add_u32 m0, s39, {KL + 1024}")
    a.e("s_waitcnt lgkmcnt(0)")
    a.e("s_mov_b64 s[16:17], s[8:9]"); a.e("s_mov_b64 s[20:21], s[10:11]")
    a.e(f"buffer_load_dwordx4 v{vA}, s[16:19], s37 offen {NT} lds"); a.e("s_add_u32 m0, m0, 1024")
    a.e(f"buffer_load_dwordx4 v{vB}, s[16:19], s38 offen {NT} lds"); a.e(f"s_add_u32 m0, s39, {VL}")
    a.e(f"buffer_load_dwordx4 v{vA}, s[20:23], s37 offen {NT} lds"); a.e("s_add_u32 m0, m0, 1024")
    a.e(f"buffer_load_dwordx4 v{vA}, s[20:23], s38 offen {NT} lds")
    a.e("s_mov_b32 s86, 256"); a.e("s_mov_b32 s87, 0x20000"); a.e(f"v_mov_b32 v{ZZ}, 0")
    a.e("s_cmp_lg_u32 s30, 0"); a.e("s_cbranch_scc1 KV_t0")
    a.e("s_sub_u32 s36, s36, 8192"); a.e(f"v_add_u32 v{t}, s36, v{t}"); a.e(f"s_mov_b32 m0, {KL}")
    a.e(f"buffer_load_dwordx4 v{t}, s[16:19], 0 offen {NT} lds")
    a.e("s_cmp_lg_u32 s2, 0"); a.e("s_cbranch_scc1 KV_t0")
    a.e("s_lshl_b32 s44, s46, 6"); a.e("s_or_b32 s44, s44, 1"); a.e(f"v_mov_b32 v{t2}, s44")
    a.e("s_mov_b64 exec, 1"); a.e(f"buffer_store_dword v{t2}, v{ZZ}, s[84:87], 0 offen {SC}"); a.e("s_mov_b64 exec, -1")
    a.e("KV_t0:")
    a.e("s_lshl_b32 s37, s34, 10"); a.e("s_lshl_b32 s38, s30, 7"); a.e("s_add_u32 s37, s37, s38"); a.e(f"v_and_b32 v{t2}, 15, v0"); a.e(f"v_lshlrev_b32 v{t2}, 3, v{t2}")
    a.srd(24, 12, 8192)
    a.e(f"buffer_load_dwordx2 {vr(TAP,2)}, v{t2}, s[24:27], s37 offen")
ZZ, TAP = 10, 12

def front_arrive(a):
    t = 6
    a.e("s_lshl_b32 s36, s2, 7"); a.e(f"s_add_u32 s36, s36, {F_FRONT}"); a.e("s_add_u32 s45, s45, s52")
    a.e("s_getreg_b32 s53, hwreg(HW_REG_XCC_ID, 0, 4)"); a.e("s_lshl2_add_u32 s45, s53, s45"); a.e(f"v_mov_b32 v{t+2}, s45")
    a.e("s_mov_b64 exec, 1"); a.e(f"buffer_store_dword v{t+2}, v2, s[56:59], s36 offen {SC}"); a.e("s_mov_b64 exec, -1")
def front_a(a):
    T = Track(a); v = VA(14)
    t = v(); t2 = v(); ra = v(2, 2); go = v(); hw = v(); hw2 = v(); hoff = v(6, 2); d = v(18, 2); tf = v(4, 2); o = v(8, 4); z = v(4, 4)
    assert v.hi <= WAD
    v = VA(128); kr = v(10, 2); vv = v(8, 2); kf = v(20, 2); ks = v(16, 2); dm = 240
    a.e("s_cmp_lg_u32 s30, 4"); a.e("s_cbranch_scc1 HB_1")
    a.e(f"v_add_u32 v{t}, {LW}, v3"); a.e(f"ds_write_b32 v{t}, v{ZZ}")
    a.e("HB_1:")
    w_srd(a, 2, 88)
    a.e("s_lshl3_add_u32 s36, s2, s30"); a.e("s_lshl_b32 s36, s36, 10")
    w_srd(a, 1, 80); a.e("s_mov_b32 s50, s36")
    def wtouch(l=(88, 80)):
        for d_ in l: T.vm(f"buffer_load_dwordx4 {vr(dm,4)}, v2, s[{d_}:{d_+3}], s50 offen")
    WT = env("WT", 6)
    if WT == 0: wtouch()
    w_lanes(a, (1,), t, t2)
    for r in range(119, 128): a.e(f"v_mov_b32 v{r}, 0")
    a.e("s_lshl_b32 s48, s29, 7"); a.e("s_lshl_b32 s36, s30, 14"); a.e("s_add_u32 s48, s48, s36"); a.e("s_lshl_b32 s49, s30, 10")
    a.e(f"s_add_u32 s48, s48, {MB}")
    w2q = list(range(NRAW, 16))
    def w2(n):
        for _ in range(min(n, len(w2q))):
            j = w2q.pop(0)
            a.e(f"s_add_u32 s36, s48, {(j & 7) << 17}")
            a.e(f"s_add_u32 m0, s49, {WST + j * 8192}")
            T.vm(f"buffer_load_dwordx4 v{WVB[1]}, s[88:91], s36 offen lds")
    a.e("s_and_b32 s41, s30, 3"); chan_setup(a, 41)
    a.e("s_lshl_b32 s36, s39, 12")
    a.e("s_add_u32 s12, s14, s36"); a.e("s_addc_u32 s13, s15, 0"); a.e("s_mov_b32 s14, 4096"); a.e("s_mov_b32 s15, 0x20000")
    a.e("s_lshr_b32 s45, s30, 2"); a.e("s_lshl_b32 s45, s45, 11")
    for it in range(3):
        if it < 2: a.e(f"s_add_u32 s36, s45, {(1024*it - 64) & 0xffffffff:#x}")
        else: a.e(f"s_mov_b32 s36, {4096 - 64}")
        a.e(f"v_add_u32 v{hoff+2*it}, s36, v2"); a.e(f"v_add_u32 v{hoff+2*it+1}, 16, v{hoff+2*it}")
    def hld():
        for it in range(3):
            T.vm(f"buffer_load_dwordx4 {vr(d+6*it,4)}, v{hoff+2*it}, s[12:15], 0 offen {NTH}", "h")
            T.vm(f"buffer_load_dwordx2 {vr(d+6*it+4,2)}, v{hoff+2*it+1}, s[12:15], 0 offen {NTH}", "h")
    a.e(f"v_add_u32 v{hw}, s40, v2"); a.e(f"v_add_u32 v{hw2}, s45, v{hw}")
    conv_setup(a); r_addr(a)
    a.srd(8, 6, 4 * MB)
    for i in range(4): a.e(f"v_mov_b32 v{z+i}, 0")
    a.e("s_bfm_b64 exec, 40, 0"); a.e(f"ds_write_b128 v{hw}, {vr(z,4)} offset:{UOFF+4096}"); a.e("s_mov_b64 exec, -1")
    assert UOFF + 4096 + 640 <= CHB and 4 * CHB <= WST + NRAW * 8192
    a.e("s_and_b32 s34, s2, 7"); a.e("s_lshr_b32 s35, s2, 3")
    a.e(f"v_bfe_u32 v{t}, v1, 2, 3"); a.e(f"v_xor_b32 v{t}, s30, v{t}"); a.e(f"v_lshlrev_b32 v{ra}, 5, v{t}")
    a.e(f"v_and_b32 v{t}, 3, v1"); a.e(f"v_lshl_add_u32 v{ra}, v{t}, 3, v{ra}")
    a.e(f"v_bfe_u32 v{t}, v1, 2, 2"); a.e(f"v_lshl_add_u32 v{ra}, v{t}, 8, v{ra}"); a.e(f"v_lshrrev_b32 v{t}, 4, v1"); a.e(f"v_lshl_add_u32 v{ra}, v{t}, 12, v{ra}")
    a.e(f"v_add_u32 v{ra}, {KL}, v{ra}"); a.e(f"v_xor_b32 v{ra+1}, 128, v{ra}")
    a.srd(16, 4, 4 * MB, off=UT)
    a.e(f"v_bfe_u32 v{go}, v1, 2, 2"); a.e(f"v_lshlrev_b32 v{go}, 14, v{go}"); a.e(f"v_and_b32 v{t}, 3, v1"); a.e(f"v_lshl_add_u32 v{go}, v{t}, 6, v{go}")
    a.e(f"v_bfe_u32 v{t}, v1, 4, 1"); a.e(f"v_lshrrev_b32 v{t2}, 5, v1"); a.e(f"v_lshl_add_u32 v{t}, v{t}, 1, v{t2}"); a.e(f"v_xor_b32 v{t}, 3, v{t}"); a.e(f"v_lshl_add_u32 v{go}, v{t}, 4, v{go}")
    a.e("s_lshl3_add_u32 s42, s34, s30"); a.e("s_lshl_b32 s43, s42, 16"); a.e("s_sub_u32 s37, 31, s35"); a.e("s_lshl_b32 s37, s37, 9"); a.e("s_add_u32 s43, s43, s37")
    a.e("s_lshl_b32 s44, s42, 5"); a.e("s_add_u32 s44, s44, s35"); a.e("s_lshl_b32 s44, s44, 7"); a.e(f"s_add_u32 s44, s44, {F_KVT}")
    a.e("s_cmp_lt_u32 s30, 4"); a.e("s_cbranch_scc1 HB_4")
    w_lanes(a, (3, 4), t, t2)
    a.e("HB_4:")
    hld()
    if WT == 1: wtouch()
    if WT >= 4: wtouch((88,))
    a.e("s_cmp_ge_u32 s30, 4"); a.e("s_cbranch_scc1 HB_3")
    conv_setup2(a); a.e("s_waitcnt lgkmcnt(0)"); conv_diag(a)
    a.e("HB_3:")
    mstamp(a)
    a.e(f"s_waitcnt vmcnt({len(T.vq)}) lgkmcnt(0)"); a.e("s_barrier")
    mstamp(a)
    for i in range(5): a.e(f"ds_read_b64_tr_b16 {vr(kr+2*i,2)}, v{ra+i//4} offset:{1024*i}")
    for i in range(4): a.e(f"ds_read_b64_tr_b16 {vr(vv+2*i,2)}, v{ra} offset:{VL - KL + 1024*i}")
    a.e("s_load_dword s52, s[84:85], 0")
    unpack(a, tf, tf + 1, TAP); unpack(a, tf + 2, tf + 3, TAP + 1)
    a.e("s_waitcnt lgkmcnt(0)")
    b = Rec()
    for i in range(10): unpack(b, kf + 2 * i, kf + 2 * i + 1, kr + i)
    for i in range(16): b.e(f"v_mul_f32 v{ks+i}, v{kf+i+1}, v{tf+3}")
    for j in (2, 1, 0):
        for i in range(16): b.e(f"v_fmac_f32 v{ks+i}, v{kf+i+4-j}, v{tf+j}")
    for i in range(8): unpack(b, kf + 2 * i, kf + 2 * i + 1, vv + i)
    for i in range(16): b.e(f"v_mul_f32 v{ks+i}, v{ks+i}, v{kf+i}")
    for i in range(1, 16, 2): lsb0(b, ks + i)
    for i in range(8): b.e(f"v_cvt_pk_bf16_f32 v{o+i}, v{ks+8*(i//4)+7-2*(i%4)}, v{ks+8*(i//4)+6-2*(i%4)}")
    for x in b.l: a.e(x)
    a.e("s_cmp_lg_u32 s52, 0"); a.e("s_cbranch_scc1 HB_q")
    a.e("s_mov_b32 s53, 0")
    a.e("HB_p:")
    a.e(f"buffer_load_dword v{t}, v{ZZ}, s[84:87], 0 offen {SC}"); a.e("s_waitcnt vmcnt(0)")
    a.e(f"v_readfirstlane_b32 s52, v{t}"); a.e("s_cmp_lg_u32 s52, 0"); a.e("s_cbranch_scc1 HB_q")
    a.e("s_add_u32 s53, s53, 1"); a.e("s_cmp_lt_u32 s53, s61"); a.e("s_cbranch_scc1 HB_p")
    a.e("s_mov_b32 s52, 1"); a.e("s_mov_b32 s61, 0")
    a.e("HB_q:")
    for e in range(4): a.e(f"v_permlane32_swap_b32 v{o+e}, v{o+4+e}")
    a.e(f"v_mov_b32 v{t}, s52")
    for i in range(2): T.vm(f"buffer_store_dwordx4 {vr(o+4*i,4)}, v{go}, s[16:19], s43 offen offset:{256*(1-i)} {SC}", "u")
    mstamp(a)
    cc = kr
    T.wv("h")
    FL = env("FL", 2)
    def flag():
        T.wv("u")
        a.e("s_mov_b64 exec, 1"); T.vm(f"buffer_store_dword v{t}, v{ZZ}, s[56:59], s44 offen {SC}"); a.e("s_mov_b64 exec, -1")
        a.e("s_cmp_lg_u32 s30, 5"); a.e("s_cbranch_scc1 KV_n3")
        a.e("s_lshl_b32 s36, s2, 14"); a.e(f"s_add_u32 s36, s36, {PRB}"); a.e(f"v_lshrrev_b32 v{t2}, 3, v1"); a.e(f"v_mul_u32_u24 v{t2}, {8192 - 128}, v{t2}"); a.e(f"v_add_u32 v{t2}, v{t2}, v2")
        a.e("s_mov_b64 exec, 0xffff"); a.e(f"buffer_store_dwordx4 {vr(z,4)}, v{t2}, s[56:59], s36 offen {SC}"); a.e("s_mov_b64 exec, -1")
        a.e("KV_n3:")
        mstamp(a)
    for it in range(3):
        if it == FL: flag()
        D = d + 6 * it; c0 = cc + 12 * it; c1 = c0 + 4; c2 = c0 + 8
        for k in range(4):
            a.e(f"v_alignbit_b32 v{c0+k}, v{D+k+1}, v{D+k}, 16")
            a.e(f"v_mov_b32 v{c1+k}, v{D+k+1}")
            a.e(f"v_alignbit_b32 v{c2+k}, v{D+k+2}, v{D+k+1}, 16")
        if it == 2: a.e("s_mov_b64 exec, 0xf")
        ad, o0 = (hw2, 1024 * it) if it < 2 else (hw, 4096)
        a.e(f"ds_write_b128 v{ad}, {vr(c0,4)} offset:{o0}")
        a.e(f"ds_write_b128 v{ad}, {vr(c1,4)} offset:{HSTR+o0}")
        a.e(f"ds_write_b128 v{ad}, {vr(c2,4)} offset:{2*HSTR+o0}")
        a.e(f"ds_write_b128 v{ad}, {vr(D+2,4)} offset:{3*HSTR+o0}")
    a.e("s_mov_b64 exec, -1")
    if FL == 3: flag()
    a.e("s_waitcnt lgkmcnt(0)"); a.e("s_barrier")
    mstamp(a)
    w2(16)
def load_q(a):
    for j in range(4): a.e(f"buffer_load_dwordx2 {vr(RXA+2*j,2)}, v{RRO}, s[8:11], 0 offen offset:{128*(j>>1) + 32*(j&1)} {NTH}")
def chan_setup(a, wsg):
    a.e("s_and_b32 s38, s2, 7"); a.e("s_lshl_b32 s38, s38, 5"); a.e("s_lshr_b32 s39, s2, 3"); a.e("s_add_u32 s38, s38, s39")
    a.e("s_lshl_b32 s39, s38, 2"); a.e(f"s_add_u32 s39, s39, s{wsg}")
    a.e(f"s_mul_i32 s40, s{wsg}, {CHB}")

def touch(a, which, nbytes, r, i0=0, i1=99):
    n = nbytes // 1024 // 512
    a.e(f"s_mov_b64 s[48:49], s[{66+2*which}:{67+2*which}]")
    a.e("s_lshl_b32 s45, s2, 1"); a.e("s_and_b32 s50, s30, 1"); a.e("s_add_u32 s45, s45, s50"); a.e(f"s_mul_i32 s45, s45, {n*1024}")
    a.e(f"s_mov_b32 s50, {nbytes}"); a.e("s_mov_b32 s51, 0x20000")
    for i in range(n):
        if i and i % 4 == 0: a.e("s_add_u32 s45, s45, 4096")
        if i0 <= i < i1: a.e(f"buffer_load_dwordx4 {vr(r,4)}, v2, s[48:51], s45 offen offset:{(i&3)*1024}")
    return n

def cs_sum(a):
    N = 3584; CSEL, CFR, CAD, CACC, CO = 20, 48, 104, 108, 112
    X = a.lab("cs")
    a.e("s_cmp_lg_u32 s60, 0"); a.e(f"s_cbranch_scc1 {X}")
    a.e("s_and_b32 s35, s30, 1")
    nr, pos = w_bases(a, 3, CAD, 35, 7, CO, CO + 1)
    a.e("s_cmp_eq_u32 s28, s29"); a.e(f"s_cselect_b32 s36, 0, {CFG[3]['STB']}")
    for i in range(nr): a.e(f"v_add_u32 v{CAD+i}, s36, v{CAD+i}")
    for T in range(7):
        for kk in range(2):
            for h in range(2):
                r, imm = pos(T, kk, h)
                a.e(f"ds_read_b64_tr_b16 {vr(CFR+8*T+4*kk+2*h,2)}, v{CAD + r} offset:{imm}")
    a.e(f"v_and_b32 v{CO}, 15, v1"); a.e(f"v_mov_b32 v{CO+1}, 0x3f803f80")
    for T in range(7):
        a.e(f"v_cmp_eq_u32 vcc, {T}, v{CO}")
        for e in range(4): a.e(f"v_cndmask_b32 v{CSEL+4*T+e}, 0, v{CO+1}, vcc")
    a.e(f"v_and_b32 v{CO+2}, 48, v1"); a.e(f"v_lshl_add_u32 v{CO+2}, v{CO}, 6, v{CO+2}")
    a.e(f"v_mov_b32 v{CO+1}, 0x7f000000")
    a.e(f"v_cmp_gt_u32 vcc, 7, v{CO}"); a.e(f"v_cndmask_b32 v{CO+2}, v{CO+1}, v{CO+2}, vcc")
    a.srd(20, 4, 16 * N * 4, off=CSP3)
    a.e(f"s_mul_i32 s36, s28, {N*4}"); a.e("s_lshl1_add_u32 s35, s29, s35"); a.e(f"s_mul_i32 s35, s35, {7*64}"); a.e("s_add_u32 s35, s35, s36")
    a.e("s_waitcnt lgkmcnt(0)")
    for i in range(14): a.e(f"v_mfma_f32_16x16x32_bf16 {vr(CACC,4)}, {vr(CFR+4*i,4)}, {vr(CSEL+4*(i//2),4)}, {vr(CACC,4) if i else 0}")
    a.e(f"buffer_store_dwordx4 {vr(CACC,4)}, v{CO+2}, s[20:23], s35 offen {SC}")
    a.e(f"{X}:")
def cs_flag(a, d):
    a.e(f"s_and_b32 s{d}, s30, 1"); a.e(f"s_lshl_b32 s{d}, s{d}, 13"); a.e("s_lshl_b32 s53, s29, 7"); a.e(f"s_add_u32 s{d}, s{d}, s53"); a.e(f"s_add_u32 s{d}, s{d}, {F_CS}")
def cs_signal(a):
    X = a.lab("cs")
    a.e("s_cmp_lg_u32 s60, 0"); a.e(f"s_cbranch_scc1 {X}")
    cs_flag(a, 36)
    publish(a, None, 14, off=36, wait=None)
    a.e(f"{X}:")

def wr_addr(a, ad, t):
    a.e(f"v_lshrrev_b32 v{t}, 2, v1"); a.e(f"v_lshlrev_b32 v{ad}, 7, v{t}"); a.e(f"v_bfe_u32 v{t}, v{t}, 1, 2")
    a.e("s_and_b32 s35, s30, 2"); a.e(f"v_and_b32 v{t+1}, 1, v1"); a.e(f"v_or_b32 v{t+1}, s35, v{t+1}"); a.e(f"v_xor_b32 v{t}, v{t}, v{t+1}")
    a.e(f"v_lshl_add_u32 v{ad}, v{t}, 5, v{ad}"); a.e(f"v_and_b32 v{t}, 2, v1"); a.e(f"v_lshl_add_u32 v{ad}, v{t}, 2, v{ad}")
    a.e("s_and_b32 s35, s30, 1"); a.e("s_lshl_b32 s35, s35, 4")
    a.e(f"v_add_u32 v{ad}, s35, v{ad}"); a.e(f"v_add_u32 v{ad+1}, {64*KB}, v{ad}"); a.e(f"v_add_u32 v{ad+2}, {128*KB}, v{ad}")
    assert WST == 3 * 8192
def wreg(j, kk): return WR0 + 16 * (j & 7) + 8 * kk + 4 * (j >> 3)
def wr_read(a, ad, js, slots=None):
    for j, x in zip(js, slots or js):
        for kk in range(2):
            for h in range(2): a.e(f"ds_read_b64_tr_b16 {vr(wreg(j,kk)+2*h,2)}, v{ad+((x+3)>>3)} offset:{((x+3)&7)*8192 + (32*kk+16*h)*128}")

def front_b(a):
    pt, vd = 6, 8
    wr_addr(a, WAD, 10)
    a.e("s_and_b32 s36, s30, 3"); a.e("s_lshl_b32 s36, s36, 14"); a.e("s_lshl_b32 s48, s29, 7"); a.e("s_add_u32 s48, s48, s36")
    a.e("s_cmp_lg_u32 s30, 5"); a.e("s_cbranch_scc1 FB_np"); a.e(f"s_waitcnt vmcnt({16 - NRAW})")
    a.e("s_lshl_b32 s42, s2, 14"); a.e(f"s_add_u32 s42, s42, {PRB}")
    for i in range(2):
        a.e("s_memtime s[34:35]"); a.e("s_waitcnt lgkmcnt(0)")
        a.e(f"s_load_dword s32, s[4:5], s42 offset:{i * 8192} glc"); a.e("s_waitcnt lgkmcnt(0)")
        a.e("s_memtime s[40:41]"); a.e("s_waitcnt lgkmcnt(0)")
        a.e(f"s_sub_u32 s{46+i}, s40, s34")
    a.e("s_cmp_lt_u32 s47, s46"); a.e("s_cselect_b32 s45, 1, 0")
    a.e("s_lshr_b32 s46, s28, 2"); a.e("s_xor_b32 s45, s45, s46"); a.e("s_lshr_b32 s46, s2, 7"); a.e("s_xor_b32 s45, s45, s46"); a.e("s_and_b32 s45, s45, 1"); a.e("s_lshl_b32 s45, s45, 1")
    a.e("FB_np:")
    group_off(a, 37, 28); a.e("s_andn2_b32 s37, s37, 0x2000"); a.e("s_lshl_b32 s43, s29, 7"); a.e("s_add_u32 s37, s37, s43"); a.e(f"s_add_u32 s37, s37, {oSM}")
    a.e(f"s_add_u32 s43, s43, {F_CS}"); a.e(f"v_mov_b32 v{RYF}, s52")
    a.e(f"v_and_b32 v{RYF+1}, 1, v1"); a.e(f"v_lshlrev_b32 v{RYF+1}, 13, v{RYF+1}"); a.e(f"v_bfe_u32 v{RYF+2}, v1, 1, 1"); a.e(f"v_lshl_add_u32 v{RYF+1}, v{RYF+2}, 26, v{RYF+1}")
    a.e(f"v_lshrrev_b32 v{RYF+2}, 2, v1"); a.e(f"v_lshl_add_u32 v{RYF+1}, v{RYF+2}, 11, v{RYF+1}")
    a.e("s_waitcnt vmcnt(0) lgkmcnt(0)")
    a.e("s_barrier")
    wr_read(a, WAD, range(NRAW, 16))
    a.e("s_waitcnt lgkmcnt(0)")
    a.e("s_barrier")
    mstamp(a)
    a.e("s_cmp_lg_u32 s30, 5"); a.e("s_cbranch_scc1 FB_na")
    front_arrive(a)
    a.e("FB_na:")
    if env('WT', 6) == 6:
        for k in range(2): a.e(f"buffer_load_dwordx4 {vr(12,4)}, v2, s[80:83], s50 offen"); a.e("s_sub_u32 s50, s50, 4096")
    load_q(a)
    a.e(f"s_setprio {env('FPRIO', 0)}")
    def raw(srd, reg, js):
        for j in js:
            a.e(f"s_add_u32 s36, s48, {j << 17}")
            a.e(f"buffer_load_dwordx4 {vr(reg(j,0),4)}, v{WVB[1]}, s[{srd}:{srd+3}], s36 offen"); a.e("s_add_u32 s36, s36, 65536")
            a.e(f"buffer_load_dwordx4 {vr(reg(j,1),4)}, v{WVB[1]}, s[{srd}:{srd+3}], s36 offen")
    NW2 = env("NW2", 2)
    a.e("s_cmp_lg_u32 s30, 4"); a.e("s_cbranch_scc1 FB_ni")
    a.e("s_mov_b64 exec, 0xfff"); a.e(f"buffer_store_dword v{RYF}, v{RYF+1}, s[56:59], s37 offen {SC}")
    a.e("s_cmp_lg_u32 s28, 0"); a.e("s_cbranch_scc1 FB_n2")
    a.e("s_mov_b64 exec, 3"); a.e(f"buffer_store_dword v{RYF}, v{RYF+1}, s[56:59], s43 offen {SC}")
    a.e("FB_n2:"); a.e("s_mov_b64 exec, -1")
    a.e("FB_ni:")
    raw(88, wreg, range(NW2))
    w1_dma(a, W1A[:5])
    a.e(f"s_waitcnt vmcnt({10 + 2 * NW2})"); lds_inc(a, LW + 8, pt)
    raw(80, w1raw, W1A[5:])
    a.e("s_xor_b32 s48, s48, 128")
    FE = env("FE", 3)
    raw(88, wreg, range(NW2, NRAW - FE))
    a.e("s_and_b32 s42, s30, 3"); a.e("s_lshl_b32 s42, s42, 13"); a.e(f"s_add_u32 s42, s42, {F_FRONT}")
    a.e(f"v_lshlrev_b32 v{vd}, 7, v1")
    a.e(f"buffer_load_dword v{vd+2}, v{vd}, s[56:59], s42 offen {SC}")
    raw(88, wreg, range(NRAW - FE, NRAW))
    a.e("s_setprio 0")
    mstamp(a)
    pt = vd + 2
    a.e("s_mov_b32 s53, 0"); a.e(f"s_waitcnt vmcnt({2 * FE})")
    a.e("R_fp:")
    a.e(f"v_and_b32 v{pt+1}, 0xffffffc1, v{pt}"); a.e(f"v_cmp_eq_u32 vcc, s52, v{pt+1}")
    a.e("s_cmp_eq_u64 vcc, exec"); a.e("s_cbranch_scc1 R_fq")
    a.e(f"s_sleep {FSLEEP}")
    a.e(f"buffer_load_dword v{pt}, v{vd}, s[56:59], s42 offen {SC}"); a.e("s_waitcnt vmcnt(0)")
    a.e("s_add_u32 s53, s53, 1"); a.e("s_cmp_lt_u32 s53, s61"); a.e("s_cbranch_scc1 R_fp")
    a.e("s_mov_b32 s61, 0")
    a.e("R_fq:")
    a.e("s_getreg_b32 s53, hwreg(HW_REG_XCC_ID, 0, 4)"); a.e(f"v_bfe_u32 v{pt+1}, v{pt}, 2, 4"); a.e(f"v_cmp_ne_u32 s[34:35], s53, v{pt+1}")
    a.e(f"v_and_b32 v{pt+1}, 2, v{pt}"); a.e(f"v_cmp_ne_u32 vcc, 0, v{pt+1}"); a.e("s_bcnt1_i32_b64 s36, vcc")
    a.e("s_or_b32 s34, s34, s35"); a.e("s_bitcmp1_b32 s34, s2"); a.e("s_cselect_b32 s34, 0x10000, 0"); a.e("s_add_u32 s36, s36, s34"); a.e(f"v_mov_b32 v{pt}, s36"); a.e(f"v_mov_b32 v{pt+1}, {LW+28}")
    a.e("s_mov_b64 exec, 1"); a.e(f"ds_add_u32 v{pt+1}, v{pt}"); a.e("s_mov_b64 exec, -1")
def w1_dma(a, js, setup=True):
    if setup:
        a.e("s_and_b32 s49, s30, 3"); a.e("s_lshl_b32 s36, s49, 14"); a.e("s_lshl_b32 s48, s29, 7"); a.e("s_add_u32 s48, s48, s36"); a.e("s_lshl_b32 s49, s49, 10")
        a.e("s_xor_b32 s48, s48, 128")
    for j in js:
        a.e(f"s_add_u32 s36, s48, {j << 17}")
        for kk in range(2):
            a.e(f"s_add_u32 m0, s49, {WST + j * 8192 + 4096 * kk}")
            a.e(f"buffer_load_dwordx4 v{WVB[1]}, s[80:83], s36 offen lds")
            if kk == 0: a.e("s_add_u32 s36, s36, 65536")
def w1raw(j, kk):
    return (28, 36, 52, 60, RXB)[W1A[5:].index(j)] + 4 * kk
def w_dump(a, reg, t, js, slots=None):
    a.e("s_and_b32 s36, s30, 3"); a.e("s_lshl_b32 s36, s36, 10"); a.e(f"v_add_u32 v{t}, s36, v2"); a.e(f"v_add_u32 v{t+1}, {64*KB}, v{t}")
    if max(slots or js) > 12: a.e(f"v_add_u32 v{t+2}, {128*KB}, v{t}")
    for j, x in zip(js, slots or js):
        for kk in range(2): a.e(f"ds_write_b128 v{t+((x+3)>>3)}, {vr(reg(j,kk),4)} offset:{((x+3)&7)*8192 + 4096*kk}")

CV = {}
def conv_setup(a):
    v = VA(RXB); lane = 1
    t = v(); t2 = v(); t3 = v(); uo = v(); aa = v(); ba = v(); J = v(); G = v(); fl = v(); ta = v(); dop = v(4, 4); ya = v(4, 1)
    assert v.hi <= RB1
    CV.update(ta=ta, ya=ya, uo=uo, aa=aa, ba=ba, J=J, G=G, fl=fl, dop=dop, t=t)
    a.e("s_lshl_b32 s36, s38, 14"); a.e(f"s_add_u32 s36, s36, {UT}")
    a.e("s_add_u32 s20, s4, s36"); a.e("s_addc_u32 s21, s5, 0"); a.e("s_mov_b32 s22, 16384"); a.e("s_mov_b32 s23, 0x20000")
    a.e("s_lshl_b32 s36, s30, 6"); a.e(f"v_lshrrev_b32 v{t}, 2, v{lane}"); a.e(f"v_and_b32 v{uo}, 48, v2"); a.e(f"v_lshl_add_u32 v{uo}, v{t}, 8, v{uo}"); a.e(f"v_add_u32 v{uo}, s36, v{uo}")
    a.e("s_lshr_b32 s36, s39, 1"); a.e("s_lshl_b32 s36, s36, 2"); a.e("s_load_dword s41, s[76:77], s36")
    a.e(f"v_and_b32 v{J}, 15, v{lane}"); a.e(f"v_lshrrev_b32 v{G}, 4, v{lane}")
    a.e(f"v_and_b32 v{t}, 3, v{J}"); a.e(f"v_mul_u32_u24 v{aa}, {HSTR}, v{t}")
    a.e(f"v_lshl_add_u32 v{aa}, v{G}, 4, v{aa}"); a.e(f"v_lshrrev_b32 v{t}, 2, v{J}"); a.e(f"v_lshl_add_u32 v{aa}, v{t}, 3, v{aa}")
    a.e(f"v_add_u32 v{aa}, s40, v{aa}")
    a.e(f"v_sub_u32 v{t}, 15, v{J}"); a.e(f"v_lshlrev_b32 v{ba}, 5, v{t}"); a.e(f"v_add_u32 v{ba}, s40, v{ba}")
    a.e(f"v_lshl_add_u32 v{ba}, v{G}, 4, v{ba}")
    a.e("s_lshr_b32 s36, s38, 2"); a.e("s_lshl_b32 s36, s36, 12"); a.e(f"s_add_u32 s36, s36, {F_KVT}")
    a.e(f"v_lshlrev_b32 v{fl}, 7, v{lane}"); a.e(f"v_add_u32 v{fl}, s36, v{fl}")
def conv_setup2(a):
    t, J, G, ta, ya = [CV[k] for k in "t J G ta ya".split()]; lane = 1
    a.e(f"s_mul_i32 s36, s30, {CHB+64}")
    a.e(f"v_lshrrev_b32 v{t}, 1, v{J}"); a.e(f"v_mul_u32_u24 v{ya}, 72, v{t}"); a.e(f"v_and_b32 v{t}, 1, v{J}"); a.e(f"v_lshl_add_u32 v{ya}, v{t}, 4, v{ya}")
    a.e(f"v_lshl_add_u32 v{ya}, v{G}, 2, v{ya}"); a.e(f"v_add_u32 v{ya}, s36, v{ya}")
    for c_ in range(1, 4): a.e(f"v_add_u32 v{ya+c_}, {c_*16*72}, v{ya}")
    a.e(f"v_bfe_u32 v{t}, v{lane}, 2, 2"); a.e(f"v_mul_u32_u24 v{ta}, {CHB+64}, v{t}")
    a.e(f"v_mul_u32_u24 v{t}, 72, v{G}"); a.e(f"v_add_u32 v{ta}, v{ta}, v{t}")
    a.e(f"v_and_b32 v{t}, 3, v{lane}"); a.e(f"v_lshl_add_u32 v{ta}, v{t}, 3, v{ta}")
    a.e(f"s_mul_i32 s36, s30, {16*72}"); a.e(f"v_add_u32 v{ta}, s36, v{ta}")
def conv_diag(a):
    t, J, G, dop = CV["t"], CV["J"], CV["G"], CV["dop"]; t2, t3 = t + 1, t + 2
    a.e("s_bitcmp1_b32 s39, 0"); a.e("s_cselect_b32 s36, 0, 16"); a.e("s_lshl_b32 s41, s41, s36"); a.e("s_and_b32 s41, s41, 0xffff0000"); a.e("s_lshr_b32 s36, s41, 16")
    a.e(f"v_lshl_add_u32 v{t}, v{G}, 3, v{J}"); a.e(f"v_sub_u32 v{t}, 15, v{t}"); a.e(f"v_and_b32 v{t2}, 1, v{t}"); a.e(f"v_cmp_eq_u32 vcc, 1, v{t2}")
    a.e(f"v_mov_b32 v{t2}, s36"); a.e(f"v_mov_b32 v{t3}, s41"); a.e(f"v_cndmask_b32 v{t2}, v{t2}, v{t3}, vcc"); a.e(f"v_ashrrev_i32 v{t}, 1, v{t}")
    for i in range(4): a.e(f"v_cmp_eq_u32 vcc, {i}, v{t}"); a.e(f"v_cndmask_b32 v{dop+i}, 0, v{t2}, vcc")

def front_conv(a):
    v = VA(6, skip=True); lane = 1; l16 = 2
    t = v(); pt = v(4, 2)
    uo, aa, ba, J, G, fl, dop = [CV[k] for k in "uo aa ba J G fl dop".split()]
    ya, ta = CV["ya"], CV["ta"]
    acc = v(32, 4)
    fa = v(64, 4); fb = v(64, 4)
    def rdA(p, o):
        return [f"ds_read_b64 {vr(fa+32*p+4*s_+2*h,2)}, v{aa} offset:{64*(o+8*s_) + 32 + 8*h}" for s_ in range(8) for h in range(2)]
    def rdB(p, o):
        return [f"ds_read_b128 {vr(fb+32*p+4*k,4)}, v{ba} offset:{UOFF + 3584 - 512*k + 64*o}" for k in range(8)]
    a.e("s_lshl_b32 s44, s30, 12"); a.e("s_mov_b32 s45, 0x07060302")
    a.e("s_cmp_lg_u32 s30, 0"); a.e("s_cbranch_scc1 CV_w")
    poll_core(a, pt, fl, 0xffffffff, nap=env("NAPK", 5))
    a.e("CV_w:")
    a.e(f"s_add_u32 m0, s40, {UOFF}"); a.e("s_mov_b32 s36, 0")
    a.e("s_waitcnt vmcnt(0)"); a.e("s_barrier")
    mstamp(a)
    for it in range(4):
        a.e(f"buffer_load_dwordx4 v{uo}, s[20:23], s36 offen offset:{1024*it} {SC} lds")
        if it < 3: a.e("s_add_u32 s36, s36, 3072")
    a.e("s_barrier")
    load_q(a)
    for x in rdA(0, 0): a.e(x)
    a.e("s_waitcnt vmcnt(4)")
    mstamp(a)
    for x in rdB(0, 0): a.e(x)
    a.e("s_waitcnt lgkmcnt(0)")
    for c_ in range(8): a.e(f"v_mfma_f32_16x16x32_bf16 {vr(acc+4*c_,4)}, {vr(dop,4)}, {vr(fb+4*c_,4)}, 0")
    def step(p, nxt, tail):
        a.e("s_waitcnt lgkmcnt(0)")
        for i, (c_, s_) in enumerate([(c_, s_) for s_ in range(8) for c_ in range(s_, 8)]):
            a.e(f"v_mfma_f32_16x16x32_bf16 {vr(acc+4*c_,4)}, {vr(fa+32*p+4*s_,4)}, {vr(fb+32*p+4*(c_-s_),4)}, {vr(acc+4*c_,4)}")
            if nxt: a.e(nxt.pop(0))
            elif tail: a.e(tail.pop(0))
        assert not nxt and not tail
    NU = env("NU", 3)
    adv = [f"v_add_u32 v{aa}, 128, v{aa}", f"v_add_u32 v{ba}, 128, v{ba}", "s_add_u32 s43, s43, 1"]
    a.e("s_mov_b32 s43, 0")
    if NU:
        a.e("CV_r:")
        for p in range(2):
            rd_ = rdB(1 - p, p + 1) + rdA(1 - p, p + 1); HP = env("HP", 14)
            step(p, rd_[:HP], [])
            for x in rd_[HP:]: a.e(x)
        for x in adv + [f"s_cmp_lt_u32 s43, {NU}"]: a.e(x)
        a.e("s_cbranch_scc1 CV_r")
    if NU < 4:
        a.e("CV_l:")
        step(0, rdB(1, 1) + rdA(1, 1), [])
        step(1, rdB(0, 2) + rdA(0, 2), adv + ["s_cmp_lt_u32 s43, 4"])
        a.e("s_cbranch_scc1 CV_l")
    mstamp(a)
    a.e("s_bitcmp1_b32 s30, 0"); a.e("s_waitcnt lgkmcnt(0)"); a.e("s_cbranch_scc1 CV_o")
    for odd in range(2):
        for c_ in range(8):
            A = acc + 4 * c_
            for e in range(2):
                if odd: a.e(f"v_cvt_pk_bf16_f32 v{A+e}, v{A+e}, v{A+2+e}")
                else: a.e(f"v_perm_b32 v{A+e}, v{A+2+e}, v{A+e}, s45")
            for e in range(0 if odd else 2): a.e(f"v_or_b32 v{A+e}, 0x10001, v{A+e}")
            a.e(f"ds_write2_b32 v{ya+c_//2}, v{A}, v{A+1} offset0:{144*(c_&1)} offset1:{144*(c_&1)+8}")
        if not odd: a.e("s_branch CV_e"); a.e("CV_o:")
    a.e("CV_e:")
    lbar(a, 2, pt)
    for i in range(8): a.e(f"ds_read_b64_tr_b16 {vr(fa+2*i,2)}, v{ta} offset:{288*(i//2) + 32*(i&1)}")
    for i in range(4):
        a.e(f"s_waitcnt lgkmcnt({6-2*i})")
        a.e(f"buffer_store_dwordx4 {vr(fa+4*i,4)}, v{l16}, s[20:23], s44 offen offset:{1024*i} {SC}")
    assert v.hi <= 250

def r_addr(a):
    t, t2, I, fo, ro, yo, xo = RT, RT + 1, RI, RFO, RRO, RYO, RXO
    a.e(f"v_and_b32 v{I}, 7, v0")
    a.e(f"v_lshrrev_b32 v{t}, 6, v0"); a.e(f"v_lshlrev_b32 v{t}, 4, v{t}"); a.e(f"v_bfe_u32 v{t2}, v0, 3, 3"); a.e(f"v_add_u32 v{t}, v{t}, v{t2}")
    a.e("s_lshr_b32 s78, s67, 1"); a.e("s_lshl_b32 s78, s78, 16"); a.e("s_and_b32 s79, s67, 1"); a.e("s_lshl_b32 s79, s79, 7"); a.e("s_add_u32 s78, s78, s79")
    a.e("s_lshr_b32 s79, s30, 1"); a.e("s_lshl_b32 s79, s79, 13"); a.e("s_add_u32 s78, s78, s79")
    a.e(f"v_lshlrev_b32 v{fo}, 8, v{t}"); a.e(f"v_lshl_add_u32 v{fo}, v{I}, 4, v{fo}"); a.e(f"v_add_u32 v{fo}, s78, v{fo}")
    a.e("s_lshl_b32 s78, s28, 7"); a.e("s_lshl_b32 s79, s67, 3"); a.e("s_add_u32 s78, s78, s79")
    a.e(f"v_add_u32 v{yo}, s78, v{I}"); a.e(f"v_lshlrev_b32 v{ro}, 11, v{yo}")
    rowaddr(a, xo, yo, t2); a.e(f"v_lshl_add_u32 v{xo}, v{t}, 4, v{xo}")
    a.e(f"v_lshrrev_b32 v{t2}, 2, v{t}"); a.e(f"v_lshlrev_b32 v{t2}, 3, v{t2}"); a.e(f"v_and_b32 v{t}, 3, v{t}"); a.e(f"v_add_u32 v{t}, v{t}, v{t2}")
    a.e(f"v_lshl_add_u32 v{ro}, v{t}, 3, v{ro}")
    a.e(f"v_lshlrev_b32 v{yo}, 3, v{yo}"); a.e(f"v_lshl_add_u32 v{yo}, v{t}, 14, v{yo}")
def y_loads(): return [f"s_mov_b32 s78, {(16*j + 4*hh)*16384}\nbuffer_load_dwordx2 {vr(RYY+4*j+2*hh,2)}, v{RYO}, s[80:83], s78 offen {SC}" for j in range(2) for hh in range(2)]
def load_y(a):
    a.srd(80, 4, 4 * MB, off=Y)
    for x in y_loads(): a.e(x)
def r_pre(a):
    r_addr(a)
    load_y(a)

def w3_setup(a):
    w_srd(a, 3, 8)
    a.e("s_add_u32 s89, s29, 1"); a.e("s_and_b32 s89, s89, 15"); a.e("s_cmp_lg_u32 s28, s29"); a.e("s_cselect_b32 s89, s28, s89")
    a.e("s_and_b32 s90, s30, 3"); a.e("s_mul_i32 s36, s29, 448")
    for d, r in ((88, 29), (89, 89)): a.e(f"s_lshl2_add_u32 s{d}, s{r}, s90"); a.e(f"s_mul_i32 s{d}, s{d}, {16*7168}"); a.e(f"s_add_u32 s{d}, s{d}, s36")
    a.e("s_mul_i32 s90, s90, 7168")
def w3_piece(T, k, i0, i1):
    for i in range(i0, i1):
        T.e(f"s_add_u32 m0, s90, {CFG[3]['WB'] + k*CFG[3]['STB'] + 1024*i}"); T.vm(f"buffer_load_dwordx4 v{WVB[3]+i}, s[8:11], s{88+k} offen lds", "w")
def r_stage(a, pre=False):
    v = VA(6)
    t = v(); t2 = v(); I = RI; fo = RFO; pt = v(4, 2)
    xa = RXA; xb = RXB; yy = RYY; yf = RYF; x = v(16, 2); w = v(16, 2); tmp = v()
    S = v(2, 2); pp = v(2, 2); qq = v(2, 2); st = v(16, 4); mean = v(2, 2); rs = mean + 1; var = v(); sw = v(); sr = v(); wad = v(3, 2)
    assert v.hi <= RB0 and wad == WAD, v.hi
    def part(src, n, packed=False):
        if packed:
            a.e("s_mov_b32 s36, 0x3f803f80")
            for i in range(8):
                a.e(f"v_dot2_f32_bf16 v{pp+(i&1)}, v{src+i}, s36, {f'v{pp+(i&1)}' if i > 1 else 0}"); a.e(f"v_dot2_f32_bf16 v{qq+(i&1)}, v{src+i}, v{src+i}, {f'v{qq+(i&1)}' if i > 1 else 0}")
            a.e("s_nop 2")
        else:
            a.e(f"v_pk_add_f32 {vr(pp,2)}, {vr(src,2)}, {vr(src+2,2)}"); a.e(f"v_pk_mul_f32 {vr(qq,2)}, {vr(src,2)}, {vr(src,2)}")
        for i in range(1, 1 if packed else 8):
            if i > 1: a.e(f"v_pk_add_f32 {vr(pp,2)}, {vr(pp,2)}, {vr(src+2*i,2)}")
            a.e(f"v_pk_fma_f32 {vr(qq,2)}, {vr(src+2*i,2)}, {vr(src+2*i,2)}, {vr(qq,2)}")
        a.e(f"v_add_f32 v{S}, v{pp}, v{pp+1}"); a.e(f"v_add_f32 v{S+1}, v{qq}, v{qq+1}")
        for k in range(2): a.e(f"v_add_f32_dpp v{S+k}, v{S+k}, v{S+k} row_ror:8 row_mask:0xf bank_mask:0xf")
        for op in ("v_permlane16_swap_b32", "v_permlane32_swap_b32"):
            for k in range(2): a.e(f"v_mov_b32 v{pp+k}, v{S+k}")
            for k in range(2): a.e(f"{op} v{S+k}, v{pp+k}")
            a.e(f"v_pk_add_f32 {vr(S,2)}, {vr(S,2)}, {vr(pp,2)}")
        a.e(f"ds_write_b64 v{sw}, {vr(S,2)} offset:{n*1536}")
    def comb(n):
        for k in range(4): a.e(f"ds_read_b128 {vr(st+4*k,4)}, v{sr} offset:{n*1536+16*k}")
        a.e("s_waitcnt lgkmcnt(0)")
        for k in range(4): a.e(f"v_pk_add_f32 {vr(st+4*k,2)}, {vr(st+4*k,2)}, {vr(st+4*k+2,2)}")
        a.e(f"v_pk_add_f32 {vr(st,2)}, {vr(st,2)}, {vr(st+4,2)}"); a.e(f"v_pk_add_f32 {vr(st+8,2)}, {vr(st+8,2)}, {vr(st+12,2)}")
        a.e(f"v_pk_add_f32 {vr(st,2)}, {vr(st,2)}, {vr(st+8,2)}")
        a.e(f"v_mul_f32 v{mean}, {f32(1/1024)}, v{st}"); a.e(f"v_mul_f32 v{var}, {f32(1/1024)}, v{st+1}")
        a.e(f"v_fma_f32 v{var}, -v{mean}, v{mean}, v{var}"); a.e(f"v_max_f32 v{var}, 0, v{var}")
    def norm():
        if env("RSQ", 1): a.e(f"v_add_f32 v{var}, {f32(1e-5)}, v{var}"); a.e(f"v_rsq_f32 v{rs}, v{var}")
        else: ln_finish(a, mean, var, rs)
        a.e(f"v_mul_f32 v{mean}, -v{mean}, v{rs}")
        for i in range(8): a.e(f"v_pk_fma_f32 {vr(w+2*i,2)}, {vr(x+2*i,2)}, {vr(mean,2)}, {vr(mean,2)} op_sel:[0,1,0] op_sel_hi:[1,1,0]")
    a.e(f"v_and_b32 v{I}, 7, v0"); a.e(f"v_lshlrev_b32 v{sr}, 6, v{I}"); a.e(f"v_add_u32 v{sr}, {AUX+2048}, v{sr}")
    a.e(f"s_lshl_b32 s35, s30, 3"); a.e(f"v_add_u32 v{sw}, s35, v{sr}")
    if pre:
        for i in range(8): unpack(a, x + 2 * i, x + 2 * i + 1, xa + i)
        part(x, 0)
        return
    wr_addr(a, wad, t)
    a.e(f"s_cmp_eq_u32 s60, 0"); a.e(f"s_cbranch_scc1 R_l0")
    lsrd(a, 12, oX1P, XSZ, prev=True); x3_srd(a, 20)
    data_wait(a, [f"buffer_load_dwordx4 {vr(xa+4*j,4)}, v{fo}, s[12:15], 0 offen offset:{2048*j} {SC}" for j in range(2)], list(range(xa, xa + 8)), t,
              lambda: (a.e("s_waitcnt vmcnt(2)"), [unpack(a, yf + 2 * i, yf + 2 * i + 1, yy + i) for i in range(8)]), nap=env("NAP4", 2))
    mstamp(a)
    if env("DOT", 1): part(xa, 0, True)
    for i in range(8): unpack(a, x + 2 * i, x + 2 * i + 1, xa + i)
    if not env("DOT", 1): part(x, 0)
    a.e("s_waitcnt lgkmcnt(0)"); a.e("s_barrier")
    comb(0)
    norm()
    a.e("s_branch R_s2")
    a.e("R_l0:")
    def shadow():
        a.e("s_cmp_lt_u32 s30, 4"); a.e("s_cbranch_scc1 R_f2")
        w_dump(a, w1raw, pt, W1A[5:])
        a.e("R_f2:")
        a.e(f"v_mov_b32 v{t}, {LW+28}"); a.e(f"ds_read_b32 v{t2}, v{t}")
        comb(0)
        norm()
        a.e(f"v_readfirstlane_b32 s94, v{t2}")
        a.e("s_lshr_b32 s98, s94, 16"); a.e("s_and_b32 s94, s94, 0xffff")
        if STAMP: a.e("s_mov_b32 s95, s94")
        a.e(f"s_cmp_gt_u32 s94, {NVOTE // 2}"); a.e("s_cselect_b32 s94, 1, 0")
        group_off(a, 55, 28)
        a.e("s_add_u32 s62, s4, s55"); a.e("s_addc_u32 s63, s5, 0")
        a.e("s_sub_u32 s36, s28, 1"); a.e("s_max_i32 s36, s36, 0"); group_off(a, 92, 36); a.e("s_sub_u32 s92, s92, s55")
        a.e("s_add_u32 s36, s28, 1"); a.e("s_min_u32 s36, s36, 15"); group_off(a, 93, 36); a.e("s_sub_u32 s93, s93, s55")
        a.e(f"s_add_u32 s55, s55, {oSM}")
        x3_srd(a, 20)
    shadow()
    def w2d():
        a.e("s_cmp_lt_u32 s30, 4"); a.e("s_cbranch_scc1 R_f3")
        a.e("s_waitcnt vmcnt(4)")
        w_dump(a, wreg, pt, range(NRAW), W2S)
        a.e("R_f3:")
    a.srd(80, 4, 4 * MB, off=Y)
    mstamp(a)
    data_wait(a, y_loads(), list(range(yy, yy + 8)), t, w2d, nap=env("NAPY", 4))
    mstamp(a)
    for i in range(8): unpack(a, yf + 2 * i, yf + 2 * i + 1, yy + i)
    a.e("R_s2:")
    for i in range(8):
        a.e(f"v_pk_fma_f32 {vr(x+2*i,2)}, {vr(w+2*i,2)}, {vr(yf+2*i,2)}, {vr(x+2*i,2)}")
        if i % 4 == 3:
            for k in range(i - 3, i + 1): a.e(f"v_cvt_pk_bf16_f32 v{xa+k}, v{x+2*k}, v{x+2*k+1}")
            a.e(f"buffer_store_dwordx4 {vr(xa+i-3,4)}, v{RXO}, s[20:23], 0 offen offset:{128*(i//4)} {SC}")
    part(x, 1)
    a.e("s_waitcnt lgkmcnt(0)"); a.e("s_barrier")
    a.e("s_cmp_ge_u32 s30, 4"); a.e("s_cbranch_scc1 LOADERS")
    a.e("s_cmp_lg_u32 s30, 3"); a.e("s_cbranch_scc1 R_nl")
    comb(1)
    outv = w; m4 = w + 4; v4_ = w + 5
    a.e(f"v_mov_b32 v{m4}, v{mean}"); a.e(f"v_mov_b32 v{v4_}, v{var}")
    ln_finish(a, mean, var, rs)
    a.e(f"v_sub_f32 v{m4}, v{m4}, v{mean}"); a.e(f"v_mul_f32 v{m4}, v{m4}, v{rs}")
    a.e(f"v_mul_f32 v{v4_}, v{v4_}, v{rs}"); a.e(f"v_mul_f32 v{v4_}, v{v4_}, v{rs}")
    ln_finish(a, m4, v4_, None)
    a.e(f"v_cvt_pk_bf16_f32 v{outv}, v{mean}, v{var}"); a.e(f"v_cvt_pk_bf16_f32 v{outv+2}, v{m4}, v{v4_}")
    a.e(f"v_mov_b32 v{outv+1}, s52"); a.e(f"v_mov_b32 v{outv+3}, s52")
    lns_srd(a, 24)
    a.e("s_lshl_b32 s36, s28, 4"); a.e("s_add_u32 s36, s36, s67"); a.e("s_lshl_b32 s36, s36, 7")
    a.e("s_mov_b64 exec, 0xff")
    a.e(f"buffer_store_dwordx4 {vr(outv,4)}, v2, s[24:27], s36 offen {SC}")
    a.e("s_mov_b64 exec, -1")
    a.e("R_nl:")
    a.e(f"v_mov_b32 v{t}, 1"); a.e(f"v_mov_b32 v{t2}, 0")
    a.e("s_cmp_eq_u32 s30, 3"); a.e("s_waitcnt vmcnt(1)"); a.e("s_cbranch_scc1 R_n2")
    a.e("s_waitcnt vmcnt(0)")
    a.e("R_n2:")
    a.e("s_barrier")
    a.e("s_cmp_lg_u32 s30, 0"); a.e("s_cbranch_scc1 R_n3")
    a.e("s_mov_b64 exec, 1"); a.e(f"buffer_atomic_add v{t}, v{t2}, s[56:59], s55 offen {SC}"); a.e("s_mov_b64 exec, -1")
    a.e("R_n3:")
    wr_read(a, wad, W1A)
def rot_init(a, which):
    a.e("s_mov_b32 s44, s29" if which == 3 else "s_mov_b32 s44, 0")
def stage3(b, d):
    b.e("s_cmp_eq_u32 s44, s47"); b.e(f"s_cselect_b32 s{d}, s46, s44")
def stage3_init(a):
    a.e("s_add_u32 s46, s29, 1"); a.e("s_and_b32 s46, s46, 15"); a.e("s_cmp_eq_u32 s28, s29"); a.e("s_cselect_b32 s47, s46, s28")
def rot_next(a, which):
    a.e("s_add_u32 s44, s44, 1")
    if which != 4: a.e("s_and_b32 s44, s44, 15")
def kb4(a, d, lw):
    a.e("s_lshl_b32 s45, s44, 1"); a.e(f"s_add_u32 s45, s45, {lw}"); a.e("s_sub_u32 s45, s45, 32")
    a.e("s_mul_i32 s46, s45, 86"); a.e("s_lshr_b32 s46, s46, 8")
    a.e("s_mul_i32 s47, s46, 3"); a.e("s_sub_u32 s47, s45, s47"); a.e("s_lshl_b32 s47, s47, 2"); a.e("s_lshr_b32 s47, 0x362, s47"); a.e("s_and_b32 s47, s47, 7")
    a.e("s_cmp_ge_u32 s44, 10"); a.e("s_cselect_b32 s45, 9, 2"); a.e("s_cselect_b32 s51, 1, 0"); a.e("s_sub_u32 s45, s44, s45")
    a.e("s_cmp_lt_u32 s44, 3"); a.e("s_cselect_b32 s45, 0, s45"); a.e("s_cselect_b32 s51, s44, s51")
    a.e(f"s_lshl2_add_u32 s51, {lw}, s51")
    a.e("s_cmp_lt_u32 s44, 17"); a.e("s_cselect_b32 s47, s51, s47"); a.e("s_cselect_b32 s46, s45, s46")
    a.e("s_add_u32 s46, s46, s33"); a.e("s_and_b32 s46, s46, 7"); a.e("s_mul_i32 s46, s46, 7"); a.e(f"s_add_u32 s{d}, s46, s47")
assert all((q * 86) >> 8 == q // 3 for q in range(24))
MIDF = env("MIDF", 1)
def w_lanes(a, which, t, t2, t3=200):
    if 1 in which:
        R = WVB[1]
        a.e(f"v_lshrrev_b32 v{t}, 3, v1"); a.e(f"v_lshlrev_b32 v{R}, 11, v{t}")
        a.e(f"v_and_b32 v{t}, 6, v{t}"); a.e(f"v_and_b32 v{t2}, 7, v1"); a.e(f"v_xor_b32 v{t}, v{t}, v{t2}"); a.e(f"v_lshl_add_u32 v{R}, v{t}, 4, v{R}")
        return
    R = WVB[4]
    for p in range(2):
        a.e(f"v_lshrrev_b32 v{t}, 4, v1"); a.e(f"v_lshlrev_b32 v{R+p}, 11, v{t}")
        a.e(f"v_add_u32 v{t}, {4*p}, v{t}"); a.e(f"v_lshlrev_b32 v{t}, 1, v{t}"); a.e(f"v_and_b32 v{t2}, 15, v1"); a.e(f"v_xor_b32 v{t}, v{t}, v{t2}")
        a.e(f"v_lshl_add_u32 v{R+p}, v{t}, 4, v{R+p}")
    R = WVB[3]
    assert all((p * 2341) >> 16 == p // 28 for p in range(448))
    for ii in range(7):
        a.e(f"v_add_u32 v{t2}, {64*ii}, v1"); a.e(f"v_mul_u32_u24 v{t}, 2341, v{t2}"); a.e(f"v_lshrrev_b32 v{t}, 16, v{t}")
        a.e(f"v_mul_u32_u24 v{R+ii}, 28, v{t}"); a.e(f"v_sub_u32 v{t2}, v{t2}, v{R+ii}")
        a.e(f"v_mul_u32_u24 v{R+ii}, 7168, v{t}")
        a.e(f"v_lshrrev_b32 v{t}, 1, v{t}"); a.e(f"v_and_b32 v{t}, 2, v{t}")
        if MIDF:
            a.e(f"v_lshrrev_b32 v{t3}, 2, v{t2}"); a.e(f"v_cmp_eq_u32 vcc, 3, v{t3}"); a.e(f"v_cndmask_b32 v{t3}, 0, 1, vcc"); a.e(f"v_lshrrev_b32 v{t}, v{t3}, v{t}")
        a.e(f"v_xor_b32 v{t2}, v{t2}, v{t}")
        a.e(f"v_lshl_add_u32 v{R+ii}, v{t2}, 4, v{R+ii}")
def w_srd(a, which, d=12):
    c = CFG[which]
    a.e(f"s_mov_b64 s[{d}:{d+1}], s[{66+2*which}:{67+2*which}]")
    a.e(f"s_mov_b32 s{d+2}, {c['KBT'] * 32 * c['LDW']}"); a.e(f"s_mov_b32 s{d+3}, 0x20000")
def w_setup(a, which, pre=True):
    c = CFG[which]; STB = c["STB"]; BW = STB // 2
    w_srd(a, which)
    a.e("s_and_b32 s35, s30, 1")
    a.e(f"s_mul_i32 s38, s{29 if which != 4 else 33}, {c['RB']}")
    if which == 1: a.e("s_xor_b32 s38, s38, 128")
    if which != 4: a.e(f"s_mul_i32 s41, s35, {32*c['LDW']}"); a.e("s_add_u32 s38, s38, s41")
    if which == 4: a.e(f"s_mul_i32 s41, s31, {1792*c['LDW']}"); a.e("s_add_u32 s38, s38, s41")
    a.e(f"s_mul_i32 s41, s35, {BW}")
    if c["WB"]: a.e(f"s_add_u32 s41, s41, {c['WB']}")
    a.e("s_mov_b32 s42, 0"); rot_init(a, which)
    if not pre: return
    NP = c["NPRE"]
    a.e("s_mov_b32 s49, s44"); a.e(f"s_and_b32 s43, s28, {3 * env('WROT', 0)}"); a.e(f"s_mul_i32 s43, s43, {NP}"); a.e("s_lshr_b32 s43, s43, 2"); a.e("s_mov_b32 s50, 0")
    L = a.lab("wpre"); a.e(f"{L}:")
    a.e(f"s_mul_i32 s42, s43, {STB}"); a.e("s_add_u32 s44, s49, s43")
    w_issue(a, which, pace=PACES.get(which, PACE))
    a.e("s_add_u32 s43, s43, 1"); a.e(f"s_cmp_eq_u32 s43, {NP}"); a.e("s_cselect_b32 s43, 0, s43")
    a.e("s_add_u32 s50, s50, 1"); a.e(f"s_cmp_lt_u32 s50, {NP}"); a.e(f"s_cbranch_scc1 {L}")
    mstamp(a)
    a.e(f"s_mov_b32 s42, {(NP % c['NW']) * STB}"); a.e(f"s_add_u32 s44, s49, {NP}")
def w_parts(which):
    c = CFG[which]; STB = c["STB"]; n = STB // 2048; LDW = c["LDW"]; b = Rec()
    b.e("s_add_u32 s19, s41, s42")
    arm = ["s_mov_b32 m0, s19", "s_mov_b32 s39, s16"]
    if which == 4:
        b.e("s_and_b32 s40, s30, 1"); kb4(b, 16, "s40")
        b.e(f"s_mul_i32 s16, s16, {32*LDW}"); b.e("s_add_u32 s16, s16, s38")
    elif which == 3:
        stage3(b, 16); b.e(f"s_mul_i32 s16, s16, {64*LDW}"); b.e("s_add_u32 s16, s16, s38")
    else:
        b.e(f"s_mul_i32 s16, s44, {64*LDW}"); b.e("s_add_u32 s16, s16, s38")
    if which > 2:
        rot_next(b, which)
        b.e(f"s_add_u32 s42, s42, {STB}"); b.e(f"s_cmp_eq_u32 s42, {c['NW']*STB}"); b.e("s_cselect_b32 s42, 0, s42")
    fire = []
    for i in range(n):
        g = []
        if i:
            g.append("s_add_u32 m0, m0, 1024")
            if which in (1, 2): g.append(f"s_add_u32 s39, s39, {8*LDW}")
            elif which == 4: g.append(f"s_add_u32 s39, s39, {4*LDW}")
            elif i == 7: g.append(f"s_add_u32 s39, s39, {16*LDW}")
        vo = WVB[which] + (0 if which in (1, 2) else (i & 1) if which == 4 else i % 7)
        fire.append(g + [f"buffer_load_dwordx4 v{vo}, s[12:15], s39 offen {os.environ.get('WF', '').replace('_', ' ')} lds"])
    return b.l, arm, fire
def w_issue(a, which, pace=0):
    prep, arm, fire = w_parts(which)
    for x in prep + arm: a.e(x)
    for i, g in enumerate(fire):
        for x in g: a.e(x)
        if pace and (i % 4 == 3 or i == len(fire) - 1): a.e(f"s_waitcnt vmcnt({pace})")

def w_bases(a, which, dst, swn, ntl, t, t2):
    c = CFG[which]; RB = c["RB"]
    a.e(f"v_lshrrev_b32 v{t}, 2, v1")
    a.e(f"v_mul_u32_u24 v{dst}, {RB}, v{t}"); a.e(f"v_and_b32 v{t2}, 3, v1"); a.e(f"v_lshl_add_u32 v{dst}, v{t2}, 3, v{dst}")
    if c["WB"]: a.e(f"v_add_u32 v{dst}, {c['WB']}, v{dst}")
    if which == 3:
        a.e(f"v_mul_u32_u24 v{dst+2}, {RB}, v{t}"); a.e(f"v_and_b32 v{t2}, 2, v1"); a.e(f"v_lshl_add_u32 v{dst+2}, v{t2}, 2, v{dst+2}")
        a.e(f"v_bfe_u32 v{t}, v1, 4, 1"); a.e(f"v_and_b32 v{t2}, 1, v1")
        if MIDF:
            a.e(f"v_lshl_add_u32 v{dst+2}, v{t2}, 5, v{dst+2}"); a.e(f"v_xor_b32 v{t2}, s{swn}, v{t}"); a.e(f"v_lshl_add_u32 v{dst+2}, v{t2}, 4, v{dst+2}")
            a.e(f"v_add_u32 v{dst+2}, {c['WB'] + 192}, v{dst+2}")
        else:
            a.e(f"v_xor_b32 v{t2}, v{t2}, v{t}"); a.e(f"v_lshl_add_u32 v{dst+2}, v{t2}, 5, v{dst+2}")
            a.e(f"s_lshl_b32 s36, s{swn}, 4"); a.e(f"s_add_u32 s36, s36, {c['WB'] + 192}"); a.e(f"v_add_u32 v{dst+2}, s36, v{dst+2}")
        a.e(f"s_lshl_b32 s36, s{swn}, 8"); a.e(f"v_add_u32 v{dst}, s36, v{dst}"); a.e(f"v_lshlrev_b32 v{t}, 5, v{t}")
        a.e(f"v_sub_u32 v{dst+1}, v{dst}, v{t}"); a.e(f"v_add_u32 v{dst}, v{dst}, v{t}")
        return 3, lambda nt, kk, h: (nt & 1, (32 * kk + 16 * h) * RB + 32 * nt) if nt < 6 else (2, (32 * kk + 16 * h) * RB)
    if which == 4: a.e(f"v_and_b32 v{t}, 7, v{t}")
    else: a.e(f"v_bfe_u32 v{t}, v{t}, 1, 2")
    for nt in range(ntl - 1, -1, -1):
        a.e(f"s_mul_i32 s36, s{swn}, {ntl}"); a.e(f"s_add_u32 s36, s36, {nt}")
        a.e(f"v_xor_b32 v{t2}, s36, v{t}"); a.e(f"v_lshl_add_u32 v{dst+nt}, v{t2}, 5, v{dst}")
    return ntl, lambda nt, kk, h: (nt, (32 * kk + 16 * h) * RB)

def a_parts(which):
    c = CFG[which]; b = Rec()
    b.e("s_add_u32 s19, s41, s42")
    arm = ["s_mov_b32 m0, s19", "s_mov_b32 s39, s16"]; fire = []
    if which == 4:
        for lw in range(2):
            kb4(b, 16 + lw, lw); spread(b, 16 + lw, 16 + lw); b.e(f"s_add_u32 s{16+lw}, s{16+lw}, s38")
        arm.append("s_mov_b32 s40, s17")
        for i in range(4):
            for lw in range(2):
                fire.append((["s_add_u32 m0, m0, 1024"] if i or lw else []) + ([f"s_add_u32 s{39+lw}, s{39+lw}, {'s37' if i == 2 else c['KBT']*2048}"] if i else []) +
                            [f"buffer_load_dwordx4 v2, s[12:15], s{39+lw} offen {SC} lds"])
    else:
        stage3(b, 16); b.e("s_cmp_eq_u32 s44, s46"); b.e("s_cselect_b32 s16, s47, s16")
        b.e("s_lshr_b32 s45, s16, 2"); b.e("s_lshl_b32 s45, s45, 14"); b.e("s_and_b32 s16, s16, 3"); b.e("s_lshl_b32 s16, s16, 11")
        b.e("s_add_u32 s16, s16, s45"); b.e("s_add_u32 s16, s16, s38"); step = c['KBT'] * 2048
        for i in range(4):
            fire.append((["s_add_u32 m0, m0, 2048", f"s_add_u32 s39, s39, {step}"] if i else []) + [f"buffer_load_dwordx4 v2, s[12:15], s39 offen {SC} lds"])
            fire.append([f"buffer_load_dwordx4 v2, s[12:15], s39 offen offset:1024 {SC} lds"])
    rot_next(b, which)
    b.e(f"s_add_u32 s42, s42, 16384"); b.e(f"s_cmp_eq_u32 s42, {c['NA']*16384}"); b.e("s_cselect_b32 s42, 0, s42")
    return b.l, arm, fire
def a_issue(a, which):
    prep, arm, fire = a_parts(which)
    for x in prep + arm + sum(fire, []): a.e(x)
SUBS = {}
def call_issue(a, issue, which):
    nm = f"SUB_{issue.__name__}_{which}"; SUBS[nm] = (issue, which)
    a.e(f"s_call_b64 s[76:77], {nm}")
def emit_subs(a):
    for nm, (issue, which) in SUBS.items():
        a.e(f"{nm}:"); issue(a, which); a.e("s_setpc_b64 s[76:77]")
def ld_steps(a, which, N, per, issue, npre, rate=2, plan={}, lo=0, hi=None, last=None, hold=(), start=None, catch=()):
    NS = CFG[which]["NS"]
    prep, arm, fire = (w_parts if issue is w_issue else a_parts)(which); h = max(1, per * HSPLIT // 8)
    plan = {b: (x if isinstance(x, list) else [x]) for b, x in plan.items()}
    q = [s_ for s_ in range(npre) for _ in range(per)]
    def after(tag):
        if issue is w_issue and isinstance(tag, int) and tag < npre and (env('WROT', 0) or which == 3): tag = npre - 1
        return len(q) - 1 - max(i for i, x in enumerate(q) if x == tag)
    issued = npre; steps = []
    for b in range(NS):
        acts = plan.get(b, []); was = {}
        def do(pos):
            for n_, act in enumerate(acts):
                if act[0] != pos: continue
                if act[1] is not None: was[n_] = after(act[1])
                q.extend([act[4]] * act[3])
        do(True)
        k = 0
        if b > 0 and b not in hold: k = max(0, min(rate + (b in catch), min(NS, b - 1 + N) - issued))
        assert k or not any(x[0] == "mid" for x in acts)
        for j in range(k):
            q.extend([issued] * h)
            if j == 0: do("mid")
            q.extend([issued] * (per - h)); issued += 1
        do(False)
        w = after(b); assert w <= 63
        steps.append((k, w, b if acts else None, tuple(sorted(was.items())), issued < NS))
    def em(l):
        for x in l:
            a.e(x)
            if x == "s_barrier" and os.environ.get("JIT"): mstamp(a)
    F1, F2 = sum(fire[:h], []), sum(fire[h:], [])
    lprep = prep
    if len(prep) > 8:
        nm = f"PREP_{issue.__name__}_{which}"; SUBS[nm] = ((lambda a_, w_, l=prep: [a_.e(x) for x in l]), which)
        prep = [f"s_call_b64 s[76:77], {nm}"]
    if lo == 0 or start: em(prep + arm)
    i = lo; HI = NS if hi is None else hi
    while i < HI:
        j = i
        while j < HI and steps[j] == steps[i]: j += 1
        k, w, ab, was, more = steps[i]; n = j - i; was = dict(was)
        def run(pos):
            for n_, act in enumerate(plan.get(ab, [])):
                if act[0] != pos: continue
                if n_ in was: a.e(f"s_waitcnt vmcnt({was[n_]})")
                act[2]()
        tail = [f"s_waitcnt vmcnt({w})", "s_barrier"]
        if n > 2 and k == 1:
            em(F1); a.e("s_mov_b32 s43, 1"); L = a.lab("ld"); a.e(f"{L}:")
            em(lprep + F2 + arm + tail + F1)
            a.e("s_add_u32 s43, s43, 1"); a.e(f"s_cmp_lt_u32 s43, {n}"); a.e(f"s_cbranch_scc1 {L}")
            em(prep + F2 + arm + tail)
        else:
            for r in range(n):
                run(True)
                for jj in range(k):
                    nxt = more or jj < k - 1
                    em(F1)
                    if jj == 0: run("mid")
                    em((prep if nxt else []) + F2 + (arm if nxt else []))
                run(False)
                em(tail)
        i = j
    if hi is not None: return
    if last: last()
    if issue is a_issue and which == 3 and env("T4", 1):
        X = a.lab("tw4"); a.e("s_cmp_lg_u32 s60, 0"); a.e(f"s_cbranch_scc1 {X}"); touch(a, 4, 7 * MB, 90, env("T4A", 0)); a.e(f"{X}:")
    a.e("s_barrier")

SP0 = 22
W1T = env("W1T", {23: (3,), 24: (4, 5), 25: (6, 13), 26: (14, 0, 15), 27: (11, 12)})
W1T = {b: tuple(j for j in l if j not in MV) for b, l in W1T.items()}; W1T = {b: l for b, l in W1T.items() if l}
W1D = env("W1D", (15, 11, 12)); W1R = tuple(j for l in W1T.values() for j in l if j not in W1D); W1L = tuple(j for j in W1B if j not in W1R)
def w1raw2(j, kk):
    i = 2 * W1R.index(j) + kk
    return 12 + 4 * i if i < 16 else RXB + 4 * (i - 16)
def w1_tail_setup(a):
    w_srd(a, 1, 8)
    a.e("s_and_b32 s3, s30, 3"); a.e("s_lshl_b32 s36, s3, 14"); a.e("s_lshl_b32 s90, s29, 7"); a.e("s_add_u32 s90, s90, s36"); a.e("s_xor_b32 s90, s90, 128"); a.e("s_lshl_b32 s3, s3, 10")
def w1_piece(a, b):
    for j in W1T[b]:
        a.e(f"s_add_u32 s36, s90, {j << 17}")
        for kk in range(2):
            if j in W1R: a.e(f"buffer_load_dwordx4 {vr(w1raw2(j,kk),4)}, v{WVB[1]}, s[8:11], s36 offen")
            else: a.e(f"s_add_u32 m0, s3, {WST + j * 8192 + 4096 * kk}"); a.e(f"buffer_load_dwordx4 v{WVB[1]}, s[8:11], s36 offen lds")
            if kk == 0: a.e("s_add_u32 s36, s36, 65536")
def tail_steps(a, b0, q0, issue, need):
    q = [list(q0), list(q0)]
    def cnt(l, tag): return len(l) - 1 - max(i for i, x in enumerate(l) if x == tag) if tag in l else None
    for b in range(b0, 28):
        n = issue(b)
        for l in q: l += n
        if b in W1T:
            X = a.lab("tl"); Z = a.lab("tz")
            q[0] += ["w"] * (2 * len(W1T[b]))
            a.e("s_cmp_lg_u32 s60, 0"); a.e(f"s_cbranch_scc1 {X}")
            call_issue(a, w1_piece, b)
            if cnt(q[0], need(b)) is not None: a.e(f"s_waitcnt vmcnt({cnt(q[0], need(b))})"); a.e(f"s_branch {Z}")
            a.e(f"{X}:")
        if cnt(q[1], need(b)) is not None: a.e(f"s_waitcnt vmcnt({cnt(q[1], need(b))})")
        if b in W1T: a.e(f"{Z}:")
        for l in q:
            if need(b) in l: del l[:len(l) - cnt(l, need(b))]
        a.e("s_barrier")
        if os.environ.get("JIT"): mstamp(a)
    g4_end(a)
def g4_end(a):
    a.e("s_cmp_eq_u32 s60, 1"); a.e("s_cbranch_scc1 K_fin")
    a.e("s_branch Y_END")
def y_end(a):
    a.e("Y_END:")
    if 28 in W1T: w1_piece(a, 28)
    r_pre(a)
    o = [j for l in W1T.values() for j in l]
    a.e(f"s_waitcnt vmcnt({4 + 2 * (len(o) - 1 - o.index(W1R[-1]))})")
    a.e("s_barrier")
    w_dump(a, w1raw2, 8, W1R); a.e("s_waitcnt lgkmcnt(0)")
def a_loader(a, which):
    c = CFG[which]
    a.e("s_and_b32 s35, s30, 1")
    lsrd(a, 12, c["A"], XSZ if which != 4 else H2SZ)
    a.e(f"s_mul_i32 s38, s35, {4*c['KBT']*2048}")
    if which == 4:
        a.e(f"s_mul_i32 s36, s31, {7*16384 + 2*c['KBT']*2048}"); a.e("s_add_u32 s38, s38, s36")
        a.e(f"s_mul_i32 s37, s31, {4*c['KBT']*2048}"); a.e(f"s_sub_u32 s37, {c['KBT']*2048}, s37")
    a.e("s_lshl_b32 s41, s35, 13"); a.e("s_mov_b32 s42, 0"); rot_init(a, which)
    assert c["NA"] == 3
    if which == 4:
        flag_in(a, 34, ST_G3B); flag_in(a, 35, ST_G3)
        P4 = env("P4", 2)
        a.e(f"s_sub_u32 s48, s34, {(ST_G3B - ST_G3A) * 128}")
        plan = {**({1: [(True, None, lambda: flag_try(a, 32, 48), 0, None), (False, None, lambda: (flag_check(a, 32, 48, 8), mstamp(a)), 0, None)]} if P4 == 1 else
                   {1: (True, None, lambda: flag_try(a, 32, 48), 0, None), 2: (True, None, lambda: (flag_check(a, 32, 48, 8), mstamp(a)), 0, None)} if P4 == 2 else {}),
                7: ("mid", None, lambda: flag_try(a, 32, 34), 0, None), 8: ("mid", None, lambda: flag_check(a, 32, 34, 8), 0, None),
                14: ("mid", None, lambda: flag_try(a, 32, 35), 0, None), 15: ("mid", None, lambda: flag_check(a, 32, 35, 8), 0, None)}
        a.e("s_mov_b32 s44, 3")
        def offs():
            for i in range(12):
                q = 2 * SP0 + i - 32
                a.e(f"s_add_u32 s36, s33, {q // 3}"); a.e("s_and_b32 s36, s36, 7"); a.e("s_mul_i32 s36, s36, 7"); a.e(f"s_add_u32 s36, s36, {(2, 6, 3)[q % 3]}"); spread(a, 78 + i, 36)
        offs(); w1_tail_setup(a)
        ld_steps(a, which, 3, 8, a_issue, 3, plan=plan, hi=SP0 - 1)
        TS = c['KBT'] * 2048
        a.e(f"s_add_u32 s39, s38, s37"); a.e(f"s_add_u32 s39, s39, {TS}")
        def issue(b):
            t = b + 1 - SP0
            if t > 5: return []
            if t == 3: a.e("s_mov_b32 s39, s38")
            a.e(f"s_add_u32 m0, s41, {(b + 1) % 3 * 16384}")
            for j in range(2):
                for kk in range(2): a.e(f"s_add_u32 s{16+kk}, s39, s{78 + 4*(t%3) + 2*j + kk}")
                for i in range(2):
                    for kk in range(2):
                        if i: a.e(f"s_add_u32 s{16+kk}, s{16+kk}, {TS}")
                        a.e(f"buffer_load_dwordx4 v2, s[12:15], s{16+kk} offen {SC} lds")
                        if j + i + kk < 3: a.e("s_add_u32 m0, m0, 1024")
            return [b + 1] * 8
        return tail_steps(a, SP0 - 1, [SP0 - 1] * 8, issue, lambda b: b)
    mask = flag_addr(a, 9, ST_G2)
    def wait2(): g2_signal(a, 0); mstamp(a); poll_core(a, 8, 9, mask, cnt=16, nap=env("NAP2", 5)); mstamp(a)
    rot_next(a, 3); stage3_init(a); a.e("s_mov_b32 s42, 16384")
    plan = side_jobs(a)
    plan[1] = (True, None, wait2, 0, None)
    if env("T4A", 0):
        def early():
            X = a.lab("tw4"); a.e("s_cmp_lg_u32 s60, 0"); a.e(f"s_cbranch_scc1 {X}"); touch(a, 4, 7 * MB, 90, 0, env("T4A", 0)); a.e(f"{X}:")
        st_ = env("T4S", 15); o_ = plan.get(st_, []); plan[st_] = (o_ if isinstance(o_, list) else [o_]) + [(False, st_, early, 0, None)]
    ld_steps(a, which, 3, 8, a_issue, 1, plan=plan, lo=1, start=True)

def g2_signal(a, wait):
    publish(a, ST_G2, 14, wait=wait)
    G2S[0](); a.e("s_waitcnt lgkmcnt(0)")
G2S = []
def side_jobs(a):
    c = CFG[3]
    sv = 18; Q, tt, mean, rs, ad, fa, fr, co_, ct = 50, 51, 52, 53, 10, 11, 12, 13, 6
    cv = 54; N = 3584; HB = c["TN16"] * 32
    assert cv + 64 <= WVB[1]
    def cld(k0=0, k1=4):
        if k0 == 0:
            flag_check(a, 3, 40, 14)
            a.srd(24, 4, 16 * N * 4, off=CSP3)
            a.e("s_cmp_eq_u32 s60, 0"); a.e("s_cselect_b32 s26, s26, 0")
            a.e("s_and_b32 s36, s30, 1"); a.e(f"s_mul_i32 s36, s36, {HB}"); a.e(f"s_mul_i32 s37, s29, {2*HB}"); a.e("s_add_u32 s37, s36, s37")
            a.e(f"v_lshrrev_b32 v{co_}, 5, v1"); a.e(f"v_mul_u32_u24 v{co_}, {N*4}, v{co_}")
            a.e(f"v_and_b32 v{ct}, {16*31}, v2"); a.e(f"v_add_u32 v{co_}, v{co_}, v{ct}")
        for k in range(k0, k1):
            a.e(f"buffer_load_dwordx4 {vr(cv+4*k,4)}, v{co_}, s[24:27], s37 offen {SC}"); a.e(f"s_add_u32 s37, s37, {N*4*2}")
    def piece(lines, l0=False):
        def f():
            X = a.lab("pc")
            if l0: a.e("s_cmp_lg_u32 s60, 0"); a.e(f"s_cbranch_scc1 {X}")
            for x in lines: a.e(x)
            if l0: a.e(f"{X}:")
        return f
    def cadd(k0, k1): return [f"v_pk_add_f32 {vr(cv+2*h,2)}, {vr(cv+2*h,2)}, {vr(cv+4*k+2*h,2)}" for k in range(k0, k1) for h in range(2)]
    def sw(op): return [f"v_mov_b32 v{cv+4+e}, v{cv+e}" for e in range(4)] + [f"{op} v{cv+e}, v{cv+4+e}" for e in range(4)] + cadd(1, 2)
    cout = ["s_and_b32 s36, s30, 1", f"s_mul_i32 s36, s36, {HB}", f"s_add_u32 s36, s36, {CSO[3]}", f"v_add_u32 v{ct}, s36, v2",
            f"s_bfm_b64 exec, {HB//16}, 0", f"ds_write_b128 v{ct}, {vr(cv,4)}", "s_mov_b64 exec, -1", "s_waitcnt lgkmcnt(0)"]
    flag_in(a, 35, ST_G2S); cs_flag(a, 40)
    a.e(f"v_lshlrev_b32 v{ad}, 3, v1")
    lsrd(a, 20, oST2, 24576)
    a.e("s_and_b32 s34, s30, 1"); a.e("s_lshl_b32 s34, s34, 9")
    def sout():
        a.e(f"s_add_u32 s36, s34, {REC}"); a.e(f"v_add_u32 v{tt}, s36, v{ad}")
        for k in range(4): a.e(f"ds_read_b64 {vr(sv+2*k,2)}, v{tt} offset:{1024*k}")
        spread(a, 36, 29); a.e("s_add_u32 s36, s36, s34")
        a.e("s_waitcnt lgkmcnt(0)")
        for k in range(1, 4): a.e(f"v_pk_add_f32 {vr(sv,2)}, {vr(sv,2)}, {vr(sv+2*k,2)}")
        a.e(f"buffer_store_dwordx2 {vr(sv,2)}, v{ad}, s[20:23], s36 offen {SC}")
    def tries():
        flag_try(a, 32, 35); flag_try(a, 3, 40)
    def ld(k0):
        def f():
            if k0 == 0: flag_check(a, 32, 35, 14)
            a.e(f"s_add_u32 s36, s34, {k0*2048}")
            for k in range(k0, k0 + 8):
                if k % 8 == 4: a.e("s_add_u32 s36, s36, 4096")
                a.e(f"buffer_load_dwordx2 {vr(sv+2*k,2)}, v{ad}, s[20:23], s36 offen offset:{(k&3)*1024} {SC}")
        return f
    b = Rec()
    for st_ in (8, 4, 2, 1):
        for k in range(st_): b.e(f"v_pk_add_f32 {vr(sv+2*k,2)}, {vr(sv+2*k,2)}, {vr(sv+2*(k+st_),2)}")
    b.e(f"v_mul_f32 v{mean}, {f32(1/1024)}, v{sv}"); b.e(f"v_mul_f32 v{Q}, {f32(1/1024)}, v{sv+1}")
    b.e(f"v_fma_f32 v{Q}, -v{mean}, v{mean}, v{Q}"); b.e(f"v_max_f32 v{Q}, 0, v{Q}")
    ln_finish(b, mean, Q, rs)
    b.e(f"v_mov_b32 v{sv}, v{mean}"); b.e(f"v_mov_b32 v{sv+1}, v{Q}"); b.e(f"v_mul_f32 v{sv+2}, {f32(GC1)}, v{rs}"); b.e(f"v_mul_f32 v{rs}, v{rs}, v{rs}")
    b.e(f"v_mul_f32 v{rs}, {f32(0.044715)}, v{rs}"); b.e(f"v_mul_f32 v{sv+3}, v{rs}, v{sv+2}")
    b.e(f"s_lshl1_add_u32 s36, s34, {AUX+1024}"); b.e(f"v_add_u32 v{tt}, s36, v2")
    b.e(f"ds_write_b128 v{tt}, {vr(sv,4)}")
    def both(f, g):
        def h(): f(); g()
        return h
    return {2: (False, None, sout, 1, "s"),
            4: (False, "s", lambda: publish(a, ST_G2S, 14, wait=None), 1, "p"),
            8: (False, None, tries, 0, None),
            9: (False, None, ld(0), 8, "d"), 10: (False, None, ld(8), 8, "d"), 11: (False, None, lambda: cld(0, 8), 8, "c"),
            12: (False, "d", piece(b.l[:14]), 0, None), 13: (False, None, piece(b.l[14:28]), 0, None),
            14: (False, "c", both(piece(b.l[28:]), piece(cadd(1, 5), 1)), 0, None), 15: (False, None, both(piece(cadd(5, 8) + sw("v_permlane32_swap_b32") + cout, 1), piece(["s_waitcnt lgkmcnt(0)"])), 0, None)}

def w_loader(a, which):
    c = CFG[which]
    args = (a, which, c["NW"], c["STB"] // 2048, w_issue, c["NPRE"], c["WR"])
    if which == 3:
        w_setup(a, 3, pre=False); rot_next(a, 3); rot_next(a, 3); stage3_init(a); a.e(f"s_mov_b32 s42, {2*c['STB']}")
        ld_steps(*args, plan={1: [({"T": True, "M": "mid", "F": False}[env("PUBW", "T")], 1, lambda: g2_signal(a, None), 1, "p"), (False, None, lambda: cs_sum(a), 0, None)],
                                4: (False, 3, lambda: cs_signal(a), 0, None)}, lo=1, start=True)
        return
    assert c["NW"] == 6 and c["WB"] == WST + 3 * 8192
    w1_tail_setup(a)
    ld_steps(*args, hi=SP0, hold=env("HOLD", ()), catch=env("CATCH", ()))
    prep, arm, fire = w_parts(4)
    def issue(b):
        if b > SP0 + 1: return []
        for x in sum(fire, []) + (["s_call_b64 s[76:77], PREP_w_issue_4"] + arm if b == SP0 else []): a.e(x)
        return [b + 4] * 8
    tail_steps(a, SP0, [s_ for s_ in range(SP0, SP0 + 4) for _ in range(8)], issue, lambda b: min(27, 2 * b - SP0 + 1))
SLOTS = [120 * KB, 136 * KB, 16 * KB, 32 * KB, 104 * KB]; WINB = 104 * KB
W3P = env("W3P", {4: [(1, 0, 2)], 8: [(1, 2, 7), (0, 0, 1)], 12: [(0, 1, 7)]})
LAG = 2
DEP = env("DEP", 3); BURST0 = env("BURST0", 3)
SIG = env("SIG", [(8, 0), (12, 0), (15, 2)]); SIG3 = env("SIG3", 19)
TRY = env("TRY", [12, 16, 20, 24]); CHK = env("CHK", [13, 17, 21, 25])
OST = env("OST", 29); LPRIO = env("LPRIO", 1); RATE = env("RATE", 2); ISS = env("ISS", {})
def win_schedule():
    slot = {}; issue = {b: [] for b in ["F"] + list(range(32))}
    free = {x: -1 for x in SLOTS}
    nxt = 0
    for p in range(-1, 32):
        b = "F" if p < 0 else p
        while nxt < 32:
            if p < 0 and nxt >= BURST0: break
            if nxt >= 16 and p < CHK[(nxt - 16) // 4]: break
            if p in ISS:
                if len(issue[b]) >= ISS[p]: break
            elif p >= 0 and (nxt > p + DEP or len(issue[b]) >= RATE): break
            c_ = [x for x in SLOTS if free[x] <= p]
            if not c_: break
            x = min(c_, key=lambda x: free[x])
            slot[nxt] = x; issue[b].append(nxt); free[x] = nxt + 2
            assert nxt > p
            nxt += 1
    return slot, issue
WSLOT, WISSUE = win_schedule()
GSTW = os.environ.get("GST", "")

def win_compute(T, g, rd, acc, cinit, FR, pre, post, mid):
    s0 = 16 * (g - 1); steps = [(s, k) for s in range(s0, s0 + 17) for k in range(4)]; n = 64; nb = LAG + 1
    for i in range(n + LAG):
        s, k = steps[i]
        if k == 0 and s < 32:
            for f in pre.get(s, []): f()
            T.e("s_barrier")
            if GSTW == "w" or (GSTW == "y" and i == n) or os.environ.get("JIT"): mstamp(T.a, True)
            for f in post.get(s, []): f()
        for f in mid.get((s, k), []): f()
        r = [rd(FR + 16 * (i % nb) + 4 * q, s, k, q) for q in range(4)] if i < n else []
        j = i - LAG
        if j < 0:
            for x in r: T.ds(x, i)
            continue
        s, k = steps[j]; c = (s - s0) // 4; first = s % 4 == 0 and k == 0
        T.wl(j)
        for q in (0, 1, 3, 2):
            C = vr(acc(c) + 4 * (q & 1), 4)
            T.e(f"v_mfma_f32_16x16x32_bf16 {C}, {vr(WR0+8*(4*(s%4)+k)+4*(q>>1),4)}, {vr(FR+16*(j%nb)+4*q,4)}, {'0' if first and q < 2 and not cinit else C}")
            if r: T.ds(r.pop(0), i)
def add(d, k, f): d.setdefault(k, []).append(f)
def h_rot(a, d):
    a.e(f"s_and_b32 s{d}, s30, 3"); a.e(f"s_lshl_b32 s{d}, s{d}, 15")
    a.e("s_and_b32 s53, s30, 2"); a.e("s_lshl_b32 s53, s53, 11")
    a.e(f"s_and_b32 s{d+4}, s30, 1"); a.e(f"s_lshl_b32 s{d+4}, s{d+4}, 13"); a.e(f"s_add_u32 s{d+4}, s{d+4}, s53")
def h_arm(T, s, d):
    T.e(f"s_add_u32 m0, s{d+4}, {WSLOT[s]}"); T.e(f"s_add_u32 s49, s{d}, {(s-16)//4*131072 + (s&2)*8192 + (s&1)*4096}"); T.armed = s
def h_issue(T, s, d, srd):
    if getattr(T, "armed", None) != s: h_arm(T, s, d)
    for q in range(4): T.vm(f"buffer_load_dwordx4 v2, s[{srd}:{srd+3}], s49 offen offset:{1024*q} {SC} lds", s)
def h_flag(a, d):
    a.e(f"s_and_b32 s{d}, s30, 1"); a.e(f"s_lshl_b32 s{d}, s{d}, 8"); a.e(f"s_add_u32 s{d}, s{d}, s55"); a.e(f"s_add_u32 s{d+1}, s52, 16")
def h_try(a, c, d):
    for k in range(2): a.e(f"s_load_dword s{(32, 3)[k]}, s[4:5], s{d} offset:{FH + 512*c + 128*k} {os.environ.get('GLC', '')}")
def h_check(a, c, d, t):
    D = a.lab("hok")
    a.e("s_waitcnt lgkmcnt(0)"); a.e(f"s_cmp_eq_u32 s32, s{d+1}"); a.e(f"s_cselect_b32 s32, s3, 0"); a.e(f"s_cmp_eq_u32 s32, s{d+1}"); a.e(f"s_cbranch_scc1 {D}")
    if STAMP: a.e(f"s_add_u32 s95, s95, {1 << (8 + 4 * c)}")
    for _ in range(env("G2ND", 0)):
        for k in range(2): a.e(f"s_load_dword s{(32, 3)[k]}, s[4:5], s{d} offset:{FH + 512*c + 128*k} glc")
        a.e("s_waitcnt lgkmcnt(0)"); a.e(f"s_cmp_eq_u32 s32, s{d+1}"); a.e(f"s_cselect_b32 s32, s3, 0"); a.e(f"s_cmp_eq_u32 s32, s{d+1}"); a.e(f"s_cbranch_scc1 {D}")
    a.e(f"s_add_u32 s53, s{d}, {FH + 512*c}"); a.e(f"v_lshlrev_b32 v{t+1}, 7, v1"); a.e(f"v_add_u32 v{t+1}, s53, v{t+1}")
    poll_core(a, t, t + 1, 3, cnt=16, nap=env('HSLEEP', 8))
    a.e(f"{D}:")
def out_addr(a, so, J, G, t, flip=False):
    a.e(f"v_and_b32 v{t}, 1, v{G}"); a.e(f"v_lshlrev_b32 v{so}, 16, v{t}"); a.e(f"v_lshrrev_b32 v{t}, 1, v{G}"); a.e(f"v_lshl_add_u32 v{so}, v{t}, 8, v{so}")
    a.e(f"v_lshl_add_u32 v{so}, v{J}, 4, v{so}")
    a.e("s_bfe_u32 s36, s30, 0x10001"); a.e("s_lshl1_add_u32 s36, s29, s36")
    if flip: a.e("s_xor_b32 s36, s36, 2")
    spread(a, 39, 36)
    a.e("s_and_b32 s36, s30, 1"); a.e("s_lshl_b32 s36, s36, 9"); a.e("s_add_u32 s39, s39, s36")

def window_x(a, g3_setup):
    T = Track(a); v = VA(6)
    t = v(); t2 = v(); J = v(); G = v(); ra = v(8, 2); rc = v()
    acc0 = v(16, 4); FR = v(48, 4); cs = v(4, 4); rec = v(16, 4); tp = v(8, 4); lead = v(); one = v(); so = v()
    assert v.hi <= WR0
    a.e(f"v_and_b32 v{J}, 15, v1"); a.e(f"v_lshrrev_b32 v{G}, 4, v1")
    a.e(f"v_xor_b32 v{t}, v{G}, v{J}"); a.e(f"v_lshlrev_b32 v{t2}, 8, v{J}")
    for k in range(4):
        a.e(f"v_xor_b32 v{ra+k}, {4*k}, v{t}"); a.e(f"v_lshl_add_u32 v{ra+k}, v{ra+k}, 4, v{t2}"); a.e(f"v_add_u32 v{ra+4+k}, {WINB}, v{ra+k}")
    a.e(f"v_lshlrev_b32 v{rc}, 4, v{J}"); a.e(f"v_add_u32 v{rc}, {REC}, v{rc}")
    lsrd(a, 16, oH, XSZ); out_addr(a, so, J, G, t, True)
    h_rot(a, 8); h_flag(a, 20)
    a.e(f"v_mov_b32 v{lead}, 0x7f000000"); a.e(f"v_writelane_b32 v{lead}, 0, 0"); a.e(f"v_mov_b32 v{one}, 1")
    a.e("s_and_b32 s40, s30, 1"); a.e("s_lshl1_add_u32 s40, s31, s40"); a.e("s_lshl_b32 s40, s40, 7"); a.e("s_add_u32 s40, s40, s55")
    for i in range(4): a.e(f"v_mov_b32 v{rec+i}, 0x3f803f80")
    def csum(js):
        for j in js:
            for kk in range(2): a.e(f"v_mfma_f32_16x16x32_bf16 {vr(cs,4)}, {vr(wreg(j,kk),4)}, {vr(rec,4)}, {0 if (j, kk) == (W1A[0], 0) else vr(cs,4)}")
    a.e("s_waitcnt lgkmcnt(0)"); csum(W1A)
    poll(a, ST_R, tp, wave=0, nap=env("NAPR", 3))
    assert all(WSLOT[s_] + 16384 <= WST + j * 8192 or WSLOT[s_] >= WST + (j + 1) * 8192 for s_ in WISSUE["F"] for j in W1B)
    wr_read(a, WAD, W1B)
    a.e("s_waitcnt lgkmcnt(12)"); csum(W1B[:-3]); a.e("s_waitcnt lgkmcnt(0)"); csum(W1B[-3:])
    def rd(d, s, k, q):
        x = WSLOT[s]; hi = x >= WINB
        return f"ds_read_b128 {vr(d,4)}, v{ra+4*hi+k} offset:{x - WINB*hi + 4096*q}"
    acc = lambda c: acc0 + 8 * (c & 1)
    def recs(c):
        for mt in range(2):
            for p in range(2): T.ds(f"ds_read_b128 {vr(rec+8*mt+4*p,4)}, v{rc} offset:{512*c + 256*mt + 2048*p}", "r")
    def epi(c, cut=None):
        T.wl("r")
        X = acc(c); P = [(X + i, tp + i, i & 2, [vr(rec + 2 * (i & 4) + 2 * e, 2) for e in range(4)]) for i in range(0, 8, 2)]
        for x, u, i, R in P: T.e(f"v_pk_fma_f32 {vr(x,2)}, {R[0]}, {vr(cs+i,2)}, {vr(x,2)}")
        for x, u, i, R in P: T.e(f"v_pk_mul_f32 {vr(u,2)}, {vr(x,2)}, {vr(x,2)}")
        for x, u, i, R in P: T.e(f"v_pk_fma_f32 {vr(u,2)}, {vr(u,2)}, {R[2]}, {R[1]}")
        for x, u, i, R in P: T.e(f"v_pk_mul_f32 {vr(u,2)}, {vr(u,2)}, {vr(x,2)}")
        if cut: cut()
        for i in range(8): T.e(f"v_exp_f32 v{tp+i}, v{tp+i}")
        for x, u, i, R in P: T.e(f"v_pk_fma_f32 {vr(u,2)}, {vr(u,2)}, {R[3]}, {R[3]}")
        for i in range(8): T.e(f"v_rcp_f32 v{tp+i}, v{tp+i}")
        for x, u, i, R in P: T.e(f"v_pk_mul_f32 {vr(x,2)}, {vr(x,2)}, {vr(u,2)}")
        for i in range(4): T.e(f"v_add_u32 v{X+2*i}, 0x10000, v{X+2*i}")
        for i in range(4): T.e(f"v_and_b32 v{X+2*i}, 0xfffe0000, v{X+2*i}")
        for i in range(4): T.e(f"v_cvt_pk_bf16_f32 v{tp+i}, v{X+2*i}, v{X+2*i+1}")
        T.e(f"s_add_u32 s36, s39, {c*131072}")
        for e in range(2): T.e(f"v_permlane16_swap_b32 v{tp+e}, v{tp+2+e}")
        T.vm(f"buffer_store_dwordx4 {vr(tp,4)}, v{so}, s[16:19], s36 offen {SC}", f"h{c}")
    def signal(c):
        T.wv(f"h{c}"); T.vm(f"buffer_atomic_add v{one}, v{lead}, s[56:59], s40 offen offset:{FH + 512*c} {SC}")
    pre, post, mid = {}, {}, {}
    add(post, 0, lambda: mstamp(a))
    for c in range(4):
        add(post, 4 * c + 4, lambda c=c: recs(c))
        if c: add(mid, SIG[c - 1], lambda c=c: signal(c - 1))
        if c < 3: add(mid, (4 * c + 4, 3), lambda c=c: epi(c))
    def duties(b):
        if b == SIG3: signal(3)
        for c in range(4):
            if TRY[c] >= 16 and CHK[c] == b: h_check(a, c, 20, cs)
        for c in range(4):
            if TRY[c] == b: h_try(a, c, 20)
        for s in WISSUE[b]: h_issue(T, s, 8, 16)
        for c in range(4):
            if TRY[c] == b + 0.5 and b != 16: h_try(a, c, 20)
    def bar(b):
        if WISSUE[b]: h_arm(T, WISSUE[b][0], 8)
        T.wv(b); T.e("s_barrier")
        if GSTW in ("w", "y") or os.environ.get("JIT"): mstamp(a, True)
    win_compute(T, 1, rd, acc, False, FR, pre, post, mid)
    mstamp(a)
    T.e(f"s_setprio {LPRIO}")
    T.wl("r"); duties(16)
    b0 = 17
    if env("CUT", 0): epi(3, lambda: bar(17)); duties(17); b0 = 18
    else: epi(3, (lambda: h_try(a, 1, 20)) if TRY[1] == 16.5 else None)
    mstamp(a)
    assert SIG3 < 28 and max(CHK) < 28 and not any(WISSUE[b] for b in (29, 30, 31))
    for b in range(b0, 32):
        bar(b); duties(b)
        for x in g3_setup.get(b, []): T.e(x)
    T.e("s_setprio 0")

def window_y(a):
    T = Track(a); v = VA(6)
    t = v(); t2 = v(); J = v(); G = v(); va = v(); vb = v(); xo = v(); so = v(); rb = v(2, 2); ow = v(); xr = v()
    xn = v(32, 4); FR = v(48, 4); S = v(8, 2); tp = v(8, 2)
    assert v.hi <= WVB[1], v.hi
    lo = FR + 20; ln = FR; o = FR + 8
    NB = env("NB", 2); assert W1L == W1B
    w_srd(a, 1, 80)
    a.e("s_cmp_lg_u32 s60, 0"); a.e("s_cbranch_scc1 WY_1")
    wr_read(a, WAD, range(NRAW), W2S); a.e("s_branch WY_2")
    a.e("WY_1:")
    w1_dma(a, W1B[:NB])
    a.e("WY_2:")
    a.e(f"v_and_b32 v{J}, 15, v1"); a.e(f"v_lshrrev_b32 v{G}, 4, v1")
    a.e("s_and_b32 s34, s30, 1"); a.e("s_and_b32 s37, s30, 3")
    a.e("s_lshr_b32 s38, s29, 3"); a.e("s_add_u32 s38, s38, 1"); a.e("s_sub_u32 s39, 0, s38"); a.e("s_bitcmp1_b32 s29, 2"); a.e("s_cselect_b32 s38, s38, s39")
    a.e("s_lshl_b32 s35, s28, 7")
    a.e("s_cmp_lt_u32 s37, 2"); a.e("s_cselect_b32 s36, s38, 0"); a.e("s_add_u32 s36, s36, s35"); a.e("s_lshl_b32 s45, s34, 6"); a.e("s_add_u32 s36, s36, s45")
    a.e(f"v_add_u32 v{lo}, s36, v1"); a.e("s_movk_i32 s45, 2048"); a.e(f"v_cmp_gt_u32 s[46:47], s45, v{lo}"); a.e(f"v_lshlrev_b32 v{lo}, 4, v{lo}")
    lns_srd(a, 20)
    a.e("s_lshl_b32 s36, s37, 2"); a.e(f"v_add_u32 v{t}, s36, v{G}"); a.e(f"v_xor_b32 v{va}, v{t}, v{J}")
    a.e("s_add_u32 s36, s35, s38"); a.e("s_add_u32 s36, s36, 16"); a.e(f"v_add_u32 v{t}, s36, v{t}")
    rowaddr(a, vb, t, t2); a.e(f"v_lshl_add_u32 v{vb}, v{va}, 4, v{vb}"); a.e(f"v_subrev_u32 v{va}, 65536, v{vb}")
    a.e("s_lshl_b32 s44, s37, 10")
    x3_srd(a, 12)
    a.e("s_cmp_lg_u32 s60, 0"); a.e(f"s_waitcnt vmcnt({2 * NB})"); a.e("s_cbranch_scc1 WY_6")
    a.e("s_waitcnt vmcnt(0) lgkmcnt(0)"); a.e("s_barrier")
    w1_dma(a, W1B[:NB]); a.e("s_branch WY_7")
    a.e("WY_6:")
    a.e("s_barrier")
    a.e("WY_7:")
    w1_dma(a, W1B[NB:], False)
    mstamp(a)
    ldl = f"buffer_load_dwordx4 {vr(ln,4)}, v{lo}, s[20:23], 0 offen {SC}"
    a.e(f"v_lshrrev_b32 v{t}, 3, v1"); a.e(f"v_and_b32 v{xr}, 7, v1"); a.e(f"v_xor_b32 v{xr}, v{xr}, v{t}")
    a.e("s_lshl_b32 s36, s37, 3"); a.e("s_add_u32 s36, s36, s35"); a.e(f"v_add_u32 v{t}, s36, v{t}"); rowaddr(a, xo, t, t2)
    a.e("s_lshl_b32 s36, s29, 7"); a.e(f"v_lshl_add_u32 v{xo}, v{xr}, 4, v{xo}"); a.e(f"v_add_u32 v{xo}, s36, v{xo}")
    a.e(f"v_lshrrev_b32 v{t}, 1, v{G}"); a.e("s_lshl_b32 s36, s37, 1"); a.e(f"v_add_u32 v{t}, s36, v{t}"); a.e(f"v_and_b32 v{t2}, 7, v{J}"); a.e(f"v_xor_b32 v{t}, v{t}, v{t2}")
    a.e(f"v_lshlrev_b32 v{xr}, 7, v{J}"); a.e(f"v_lshl_add_u32 v{xr}, v{t}, 4, v{xr}"); a.e(f"v_and_b32 v{t}, 1, v{G}"); a.e(f"v_lshl_add_u32 v{xr}, v{t}, 3, v{xr}")
    out_addr(a, so, J, G, t)
    a.e(f"v_mov_b32 v{rb}, v2"); a.e(f"v_add_u32 v{rb+1}, {WINB}, v2")
    a.e(f"v_lshrrev_b32 v{t}, 5, v{so}"); a.e(f"v_and_b32 v{t}, 2048, v{t}"); a.e(f"v_and_b32 v{ow}, 511, v{so}"); a.e(f"v_add_u32 v{ow}, v{ow}, v{t}")
    a.e("s_lshl_b32 s36, s37, 9"); a.e(f"v_add_u32 v{ow}, s36, v{ow}")
    lsrd(a, 16, oH, XSZ); lsrd(a, 24, oX1P, XSZ)
    h_rot(a, 78); h_flag(a, 84); w3_setup(a)
    a0 = a; a = Rec(); a.lab = a0.lab
    L = a.lab("lns"); D = a.lab("lnk")
    a.e("s_mov_b32 s53, 0")
    a.e(f"{L}:")
    a.e(f"v_cmp_eq_u32 vcc, s52, v{ln+1}"); a.e(f"v_cmp_eq_u32 s[50:51], s52, v{ln+3}"); a.e("s_and_b64 vcc, vcc, s[50:51]"); a.e("s_orn2_b64 vcc, vcc, s[46:47]")
    a.e("s_cmp_eq_u64 vcc, -1"); a.e(f"s_cbranch_scc1 {D}")
    a.e(ldl); a.e("s_waitcnt vmcnt(0)")
    a.e("s_add_u32 s53, s53, 1"); a.e("s_cmp_lt_u32 s53, s61"); a.e(f"s_cbranch_scc1 {L}")
    a.e("s_mov_b32 s61, 0")
    a.e(f"{D}:")
    unpack(a, ln + 4, ln + 5, ln); unpack(a, ln + 6, ln + 7, ln + 2)
    for r in (ln + 5, ln + 7): a.e(f"v_cndmask_b32 v{r}, 1.0, v{r}, s[46:47]")
    a.e("s_lshl_b32 s36, s34, 10"); a.e(f"s_add_u32 s36, s36, {REC}"); a.e(f"v_add_u32 v{t}, s36, v2")
    X = a.lab("lnx"); D = a.lab("lnd")
    a.e("s_cmp_ge_u32 s37, 2"); a.e(f"s_cbranch_scc1 {X}")
    a.e(f"v_mul_f32 v{o+6}, v{ln+5}, v{ln+7}"); a.e(f"v_fma_f32 v{o}, -v{ln+6}, v{ln+5}, -v{ln+4}"); a.e(f"v_rcp_f32 v{t2}, v{o+6}")
    a.e(f"v_mov_b32 v{o+7}, v{o+6}"); a.e(f"v_mov_b32 v{o+1}, v{o}")
    a.e(f"v_mul_f32 v{o+2}, {f32(GC1)}, v{t2}"); a.e(f"v_mul_f32 v{t2}, v{t2}, v{t2}"); a.e(f"v_mov_b32 v{o+3}, v{o+2}")
    a.e(f"v_mul_f32 v{t2}, {f32(0.044715)}, v{t2}"); a.e(f"v_mul_f32 v{o+4}, v{t2}, v{o+2}"); a.e(f"v_mov_b32 v{o+5}, v{o+4}")
    for p in range(2): a.e(f"ds_write_b128 v{t}, {vr(o+4*p,4)} offset:{2048*p}")
    a.e(f"s_branch {D}")
    a.e(f"{X}:")
    a.e(f"v_rcp_f32 v{o}, v{ln+5}"); a.e(f"v_mul_f32 v{o+2}, -v{ln+4}, v{o}"); a.e(f"v_mov_b32 v{o+1}, v{o}"); a.e(f"v_mov_b32 v{o+3}, v{o+2}")
    a.e(f"ds_write_b128 v{t}, {vr(o,4)} offset:{LNSL-REC}")
    a.e(f"{D}:")
    a.e(f"v_lshlrev_b32 v{t2}, 4, v{J}"); a.e(f"v_add_u32 v{t2}, {LNSL}, v{t2}")
    lns = a.l; a = a0
    def issue(s):
        if s >= 16: return h_issue(T, s, 78, 16)
        c, i = s // 4, s % 4
        if getattr(T, "armed", None) != s: arm(s)
        for mt in range(2):
            for kh in range(2):
                if mt or kh: T.e(f"s_add_u32 m0, s44, {WSLOT[s] + kh*8192 + mt*4096 - kh*1024}")
                T.vm(f"buffer_load_dwordx4 v{(va, vb)[mt]}, s[12:15], s49 offen offset:{1024*kh} {SC} lds", s)
                for x in T.fill[:5]: T.e(x)
                T.fill = T.fill[5:]
        if s == 3: T.e(f"v_mov_b32 v{va}, v{vb}"); T.e(f"v_add_u32 v{vb}, 65536, v{vb}")
    def arm(s):
        if s >= 16: return h_arm(T, s, 78)
        T.e(f"s_add_u32 m0, s44, {WSLOT[s]}"); T.e(f"s_mov_b32 s49, {max(0, s//4*2-1)*65536 + 256*(s%4)}"); T.armed = s
    def resld():
        for c in range(4):
            T.e(f"s_add_u32 m0, s44, {4096*c}"); T.e(f"s_mov_b32 s36, {c*131072}")
            T.vm(f"buffer_load_dwordx4 v{xo}, s[12:15], s36 offen {SC} lds", "x")
    def res1(c):
        for mt in range(2):
            a.e(f"ds_read_b64 {vr(xn+8*c+4*mt+2,2)}, v{xr} offset:{4096*c + 2048*mt}"); a.e(f"ds_read_b128 {vr(o+4*mt,4)}, v{t2} offset:{512*c + 256*mt}")
    def res2(c):
        b = Rec(); b.e("s_waitcnt lgkmcnt(0)")
        for mt in range(2):
            X = xn + 8 * c + 4 * mt
            for e in range(2): unpack(b, X + 2 * e, X + 2 * e + 1, X + 2 + e)
            for e in range(2): b.e(f"v_pk_fma_f32 {vr(X+2*e,2)}, {vr(X+2*e,2)}, {vr(o+4*mt,2)}, {vr(o+4*mt+2,2)}")
        T.fill = b.l
    RESAT = env("RESAT", 4); RESUSE = env("RESUSE", 7); T.fill = []
    a.e("s_waitcnt vmcnt(0) lgkmcnt(0)")
    a.e(f"s_setprio {LPRIO}")
    mstamp(a)
    arm(0)
    a.e("s_barrier")
    mstamp(a)
    LAT = env("LAT", 9); LPOS = env("LPOS", 0)
    for s in WISSUE["F"][:LAT]:
        if s == LPOS: T.vm(ldl, "l")
        issue(s)
    def records():
        T.wv("l")
        for x in lns: a.e(x)
    if LAT < 9: records()
    for s in WISSUE["F"][LAT:]: issue(s)
    for b in range(16):
        if b == 4: a.e("s_waitcnt lgkmcnt(0)")
        if WISSUE[b]: arm(WISSUE[b][0])
        if b == RESUSE: T.wv("x")
        T.wv(b); T.e("s_barrier")
        if GSTW in ("w", "y") or os.environ.get("JIT"): mstamp(a, True)
        for c in range(4):
            if TRY[c] < 16 and CHK[c] == b: h_check(a, c, 84, tp)
            assert TRY[c] >= 16 or (CHK[c] < 16 and TRY[c] >= RESUSE + 5)
        if b == CHK[0]: mstamp(a)
        for c in range(4):
            if TRY[c] == b: h_try(a, c, 84)
        if 1 <= b - RESUSE < 5: res2(b - RESUSE - 1)
        for s in WISSUE[b]: issue(s)
        assert not T.fill
        if b == LAT - 9: records()
        if 0 <= b - RESUSE < 4: res1(b - RESUSE)
        if b == RESAT: resld()
        for x in W3P.get(b, []): w3_piece(T, *x)
    a.e("s_setprio 0")
    def rd(d, s, k, q):
        x = WSLOT[s]; hi = x >= WINB
        return f"ds_read_b128 {vr(d,4)}, v{rb+hi} offset:{x - WINB*hi + 4096*q + 1024*k}"
    acc = lambda c: xn + 8 * c
    def epi(c):
        X = acc(c)
        for i in range(4): T.e(f"v_add_u32 v{X+2*i}, 0x10000, v{X+2*i}")
        for i in range(4): T.e(f"v_and_b32 v{X+2*i}, 0xfffe0000, v{X+2*i}")
        for i in range(4): T.e(f"v_cvt_pk_bf16_f32 v{X+i}, v{X+2*i}, v{X+2*i+1}")
        T.e(f"s_add_u32 s36, s39, {c*131072}")
        for e in range(2): T.e(f"v_permlane16_swap_b32 v{X+e}, v{X+2+e}")
    def ost(c):
        T.e(f"s_add_u32 s36, s39, {c*131072}"); T.vm(f"buffer_store_dwordx4 {vr(acc(c),4)}, v{so}, s[24:27], s36 offen {SC}", "o")
    def own(c): T.ds(f"ds_write_b128 v{ow}, {vr(acc(c),4)} offset:{4096*c}", "ow")
    def stats(c):
        X = tp; pp, qq = acc(c) + 4, acc(c) + 6
        for i in range(4): unpack(T, X + 2 * i, X + 2 * i + 1, acc(c) + i)
        T.e(f"v_pk_add_f32 {vr(pp,2)}, {vr(X,2)}, {vr(X+2,2)}"); T.e(f"v_pk_mul_f32 {vr(qq,2)}, {vr(X,2)}, {vr(X,2)}")
        for i in range(1, 4):
            if i > 1: T.e(f"v_pk_add_f32 {vr(pp,2)}, {vr(pp,2)}, {vr(X+2*i,2)}")
            T.e(f"v_pk_fma_f32 {vr(qq,2)}, {vr(X+2*i,2)}, {vr(X+2*i,2)}, {vr(qq,2)}")
        T.e(f"v_add_f32 v{S+2*c}, v{pp}, v{pp+1}"); T.e(f"v_add_f32 v{S+2*c+1}, v{qq}, v{qq+1}")
    pre, post, mid = {}, {}, {}
    add(post, 16, lambda: mstamp(a))
    for s in range(16, 32): add(pre, s, lambda s=s: T.wv(s))
    SLATE = env("SLATE", 1)
    for c in range(3):
        add(mid, (20 + 4 * c, 3), lambda c=c: (epi(c), SLATE or stats(c)))
        add(mid, (OST, 1 + c), lambda c=c: ost(c))
    for k_, l_ in W3P.items():
        if isinstance(k_, tuple): add(mid, k_, lambda l_=l_: [w3_piece(T, *x) for x in l_])
    add(mid, (32, 0), lambda: [own(c) for c in range(3)])
    win_compute(T, 2, rd, acc, True, FR, pre, post, mid)
    mstamp(a)
    T.e(f"s_setprio {env('LPRIO3', 0)}")
    epi(3); ost(3); own(3); T.wl("ow"); T.wv("w")
    T.e("s_barrier")
    mstamp(a)
    def rest(a_, which):
        T.a = a_
        for c in range(0 if SLATE else 3, 4): stats(c)
        T.e("s_and_b32 s36, s30, 3"); T.e("s_lshl_b32 s36, s36, 10"); T.e(f"s_add_u32 s36, s36, {REC}"); T.e(f"v_lshlrev_b32 v{t}, 3, v1"); T.e(f"v_add_u32 v{t}, s36, v{t}")
        for k in range(2): T.e(f"v_permlane32_swap_b32 v{S+k}, v{S+2+k}"); T.e(f"v_permlane32_swap_b32 v{S+4+k}, v{S+6+k}")
        T.e(f"v_pk_add_f32 {vr(S,2)}, {vr(S,2)}, {vr(S+2,2)}"); T.e(f"v_pk_add_f32 {vr(S+4,2)}, {vr(S+4,2)}, {vr(S+6,2)}")
        for k in range(2): T.e(f"ds_write_b64 v{t}, {vr(S+4*k,2)} offset:{512*k}")
    assert xn >= 18 and t == 6
    G2S.append(lambda: call_issue(a, rest, 2))

C2R = 230; SO3 = 254; SEL = 224; RX = [180, 200, 208, 216]
def g_compute(a, which):
    c = CFG[which]
    WM, WN, MT, NT, KBT, NS, NA, NW, TN16, STB, WB = [c[k] for k in "WM WN MT NT KBT NS NA NW TN16 STB WB".split()]
    v = VA(6, skip=which == 4); nm = f"G{which}"
    lane = 1; l16 = 2
    t = v(); t2 = v(); pt = v(4, 2)
    NTILE = 29 if which != 4 else 33
    a0 = v(); w0 = v(4, 1); aa = v(); wa = v(4, 1); J = v(); G = v(); NF = MT + NT
    if which == 3: acc = v(MT * NT * 4, 4); fX = v(NF * 4, 4); fY = v(NF * 4, 4); tmp = 255
    else: fX = v(NF * 4, 4); xf = v(); acc = v(MT * NT * 4, 4); fY = v(NF * 4, 4)
    assert v.hi <= SEL
    def A_(mt, nt): return acc + 4 * (mt * NT + nt)
    one, lead, oa, xo, so = pt, pt + 1, pt + 2, 255, SO3
    def signal(stage, wait):
        a.e(f"s_waitcnt vmcnt({wait})"); a.e(f"buffer_atomic_add v{one}, v{lead}, s[56:59], s49 offen offset:{(stage - ST_G3A) * 128} {SC}")
    s = Rec()
    if which == 3:
        s.e("s_lshr_b32 s34, s30, 1"); s.e("s_and_b32 s35, s30, 1")
        s.e(f"v_and_b32 v{J}, 15, v{lane}"); s.e(f"v_lshrrev_b32 v{G}, 4, v{lane}")
        s.e(f"s_mul_i32 s37, s34, {MT}")
        s.e(f"s_mul_i32 s36, s34, {MT*2048}"); s.e(f"v_add_u32 v{a0}, s36, v{l16}")
    nwr, wpos = w_bases(s, which, w0, 35, NT, wa, wa + 1)
    s.e("s_mov_b32 s42, 0"); s.e("s_mov_b32 s43, 0"); s.e("s_mov_b32 s48, 0")
    s.e(f"v_mov_b32 v{aa}, v{a0}")
    for i in range(nwr): s.e(f"v_mov_b32 v{wa+i}, v{w0+i}")
    if which == 3:
        b = Rec()
        b.e(f"s_load_dwordx2 s[6:7], s[0:1], {D_OUT}")
        lsrd(b, 16, oH2, H2SZ)
        b.e(f"s_mul_i32 s39, s37, {224*1024}"); b.e("s_mul_i32 s40, s29, 7"); b.e("s_lshl2_add_u32 s41, s35, s40")
        for P in range(4):
            b.e(f"s_add_u32 s36, s{41 if P < 3 else 40}, {P}"); spread(b, 44 + P, 36); b.e(f"s_add_u32 s{44+P}, s{44+P}, s39")
        b.e("s_lshl_b32 s36, s35, 9"); b.e("s_add_u32 s47, s47, s36")
        b.e("s_lshl1_add_u32 s49, s31, s34"); flag_off(b, 49, ST_G3A, 49)
        x3_srd(b, 84); lsrd(b, 88, oX1P, XSZ); lsrd(b, 24, oH, XSZ)
        b.e("s_lshl1_add_u32 s39, s33, s35"); b.e("s_lshl_b32 s36, s39, 1"); spread(b, 40, 36); b.e("s_lshl1_add_u32 s38, s31, s37"); b.e("s_lshl_b32 s36, s38, 16")
        b.e("s_add_u32 s40, s40, s36"); b.e("s_add_u32 s12, s40, 65536"); b.e("s_xor_b32 s41, s40, 0x20000"); b.e("s_lshl3_add_u32 s38, s28, s38"); b.e("s_lshl_b32 s39, s39, 7")
        b.e("s_lshl_b32 s13, s38, 16"); b.e("s_add_u32 s13, s13, s39"); b.e("s_add_u32 s14, s13, 65536")
        b.e("s_lshl_b32 s38, s38, 15"); b.e("s_add_u32 s38, s38, s39"); b.e(f"s_add_u32 s39, s38, {16*2048}"); b.e("s_mov_b32 s15, 0xffff0000")
        b.e("s_waitcnt lgkmcnt(0)"); b.srd(20, 6, 4 * MB)
        d = Rec()
        d.e(f"v_lshrrev_b32 v{so}, 1, v{G}"); d.e(f"v_lshlrev_b32 v{so}, 8, v{so}"); d.e(f"v_lshl_add_u32 v{so}, v{J}, 4, v{so}")
        d.e(f"v_and_b32 v{t}, 1, v{G}"); d.e(f"v_lshl_add_u32 v{so}, v{t}, 3, v{so}")
        d.e(f"v_lshrrev_b32 v{t}, 2, v{J}"); d.e(f"v_cmp_eq_u32 vcc, v{t}, v{G}"); d.e(f"v_and_b32 v{t}, 1, v{J}"); d.e(f"v_lshlrev_b32 v{t}, 4, v{t}")
        d.e(f"v_mov_b32 v{SEL}, 0x3f80"); d.e(f"v_lshlrev_b32 v{t}, v{t}, v{SEL}"); d.e(f"v_cndmask_b32 v{t}, 0, v{t}, vcc")
        d.e(f"v_and_b32 v{SEL}, 2, v{J}"); d.e(f"v_cmp_eq_u32 vcc, 0, v{SEL}")
        for i in (0, 1, 4, 5): d.e(f"v_mov_b32 v{SEL+i}, 0")
        d.e(f"v_cndmask_b32 v{SEL+2}, 0, v{t}, vcc"); d.e(f"v_cndmask_b32 v{SEL+3}, v{t}, v{SEL}, vcc")
        rowaddr(d, xo, J, t); d.e(f"v_lshl_add_u32 v{xo}, v{G}, 4, v{xo}")
        d.e(f"v_mov_b32 v{one}, 1"); d.e(f"v_mov_b32 v{lead}, 0x7f000000"); d.e(f"v_writelane_b32 v{lead}, 0, 0")
        e_ = Rec()
        e_.e(f"v_and_b32 v{oa+1}, 1, v{G}"); e_.e(f"v_lshlrev_b32 v{oa}, 11, v{J}"); e_.e(f"v_lshl_add_u32 v{oa}, v{oa+1}, 5, v{oa}")
        e_.e(f"v_lshrrev_b32 v{oa+1}, 1, v{G}"); e_.e(f"v_lshl_add_u32 v{oa}, v{oa+1}, 4, v{oa}")
        e_.e(f"v_lshrrev_b32 v{oa+1}, 3, v{J}"); e_.e(f"v_mul_u32_u24 v{oa+1}, {8*2048 - 64}, v{oa+1}"); e_.e(f"v_sub_u32 v{oa}, v{oa}, v{oa+1}")
        e_.e(f"v_add_u32 v{oa+1}, {8*2048}, v{oa}")
        e_.e(f"s_mul_i32 s36, s35, {NT*64}"); e_.e(f"s_add_u32 s36, s36, {CSO[which]}"); e_.e(f"v_lshlrev_b32 v{t}, 4, v{G}"); e_.e(f"v_add_u32 v{t}, s36, v{t}")
        e_.e(f"s_lshl_b32 s36, s34, 10"); e_.e(f"s_add_u32 s36, s36, {AUX+1024}"); e_.e(f"v_lshlrev_b32 v{t2}, 4, v{J}"); e_.e(f"v_add_u32 v{t2}, s36, v{t2}")
        e_.e("s_lshl1_add_u32 s36, s37, s35"); e_.e("s_lshl2_add_u32 s36, s31, s36"); e_.e("s_lshl_b32 s36, s36, 10")
        e_.e(f"v_add_u32 v{J}, s36, v{l16}"); e_.e(f"v_xor_b32 v{G}, 4096, v{J}")
        window_x(a, {29: s.l}); idle = b.l + d.l + e_.l
    else:
        for x in s.l + [f"v_mov_b32 v{xf}, 0x10000"]: a.e(x)
    def reads(F, kk, sl=None):
        if sl is not None:
            return [f"ds_read_b128 {vr(F+4*mt,4)}, v{a0} offset:{sl*16384+mt*2048+kk*1024}" for mt in range(MT)] + \
                   [f"ds_read_b64_tr_b16 {vr(F+4*(MT+nt)+2*h,2)}, v{(w0, wa)[sl//2]+wpos(nt,kk,h)[0]} offset:{wpos(nt,kk,h)[1]+(sl&1)*STB}" for nt in range(NT) for h in range(2)]
        o = []
        for mt in range(MT): o.append(f"ds_read_b128 {vr(F+4*mt,4)}, v{aa} offset:{mt*2048+kk*1024}")
        for nt in range(NT):
            for h in range(2):
                r, imm = wpos(nt, kk, h)
                o.append(f"ds_read_b64_tr_b16 {vr(F+4*(MT+nt)+2*h,2)}, v{wa+r} offset:{imm}")
        return o
    def mix(rd, ex):
        rd = list(rd)
        if len(ex) > 4: return rd + list(ex)
        for i, x in enumerate(ex): rd.insert(min(len(rd), (i + 1) * len(rd) // (len(ex) + 1)), x)
        return rd
    def mfmas(F, rd, tail=(), zero=False):
        n = MT * NT; k = 0; tot = len(rd); span = env('SPAN', {3: 21, 4: 12})[which]; done = 0; tail = list(tail); per = -(-len(tail) // max(1, n - span))
        for nt, mt in [(nt, mt if nt % 2 == 0 else MT - 1 - mt) for nt in range(NT) for mt in range(MT)]:
            cc = acc + 4 * (mt * NT + nt)
            a.e(f"v_mfma_f32_16x16x32_bf16 {vr(cc,4)}, {vr(F+4*(MT+nt),4)}, {vr(F+4*mt,4)}, {0 if zero and (which == 3 or mt >= 2) else vr(cc,4)}")
            k += 1
            while rd and done < (tot * k + span - 1) // span: a.e(rd.pop(0)); done += 1
            if k >= span and k < n:
                for _ in range(min(per, len(tail))): a.e(tail.pop(0))
        assert not rd and not tail
    def stage(ex=(), ey=(), lim=NS-1, late=False, zero=False):
        if str(which) in os.environ.get("GST", "") or os.environ.get("JIT"): mstamp(a, True)
        a.e("s_waitcnt lgkmcnt(0)")
        book = ["s_add_u32 s42, s42, 16384", f"s_cmp_eq_u32 s42, {NA*16384}", "s_cselect_b32 s42, 0, s42",
                f"s_add_u32 s48, s48, {STB}", f"s_cmp_eq_u32 s48, {NW*STB}", "s_cselect_b32 s48, 0, s48", f"v_add_u32 v{aa}, s42, v{a0}"]
        book += [f"v_add_u32 v{wa+i}, s48, v{w0+i}" for i in range(nwr)]
        mfmas(fX, mix(reads(fY, 1), ex), book, zero)
        if late:
            a.e("s_waitcnt lgkmcnt(0)"); mfmas(fY, [], ["s_add_u32 s43, s43, 1"])
            for x in idle: a.e(x)
            a.e("s_barrier")
            for x in reads(fX, 0): a.e(x)
            return
        a.e("s_waitcnt lgkmcnt(0)"); a.e("s_barrier")
        mfmas(fY, mix(reads(fX, 0), ey), ["s_add_u32 s43, s43, 1", f"s_cmp_lt_u32 s43, {lim}"])
    def addp(k, R, zero=False):
        for e in range(2): a.e(f"v_mfma_f32_16x16x32_bf16 {vr(A_(k>>1, 2*(k&1)+e),4)}, {vr(SEL+2-2*e,4)}, {vr(R,4)}, {0 if zero else vr(A_(k>>1, 2*(k&1)+e),4)}")
    a.e("s_waitcnt lgkmcnt(0)"); a.e("s_barrier")
    mstamp(a)
    for x in reads(fX, 0): a.e(x)
    if which == 4:
        for h in range(2):
            for k in range(4): addp(k, RX[k] + 4 * h, h == 0)
    if which == 4:
        def st2(j): return [f"s_add_u32 s36, s46, {j*224*1024}\nbuffer_store_dwordx4 {vr(C2R+4*j,4)}, v{l16}, s[16:19], s36 offen {SC}",
                            f"s_add_u32 s36, s47, {j*224*1024}\nbuffer_store_dwordx2 {vr(C2R+16+2*j,2)}, v{SO3}, s[16:19], s36 offen {SC}"]
        stage(st2(0), st2(1), zero=True); stage(st2(2), st2(3)); signal(ST_G3B, 8)
        L0 = a.lab("mm"); a.e(f"{L0}:"); stage(lim=PUB2); a.e(f"s_cbranch_scc1 {L0}")
        signal(ST_G3, 0)
    else: stage(late=True, zero=True); mstamp(a)
    L = a.lab("mm")
    U3 = which == 3 and env("U3", 0)
    if U3:
        for i in range(nwr): a.e(f"v_add_u32 v{wa+i}, {2*STB}, v{w0+i}")
        a.e(f"{L}:")
        for sl in (1, 2, 0):
            if "3" in GSTW or os.environ.get("JIT"): mstamp(a, True)
            a.e("s_waitcnt lgkmcnt(0)")
            mfmas(fX, reads(fY, 1, sl), ["s_add_u32 s43, s43, 3", "s_cmp_eq_u32 s43, 16"] if sl == 0 else [])
            a.e("s_waitcnt lgkmcnt(0)"); a.e("s_barrier")
            if sl == 0: a.e("s_cbranch_scc1 G3_fin")
            mfmas(fY, reads(fX, 0, (sl + 1) % 3))
        a.e(f"s_branch {L}")
        a.e("G3_fin:")
    else:
        a.e(f"{L}:")
        stage(lim=NS - 1 if which == 3 else SP0 - 1)
        a.e(f"s_cbranch_scc1 {L}")
        a.e("s_waitcnt lgkmcnt(0)")
    if which == 4:
        def out(mt, so_, srd, fl=SC):
            if mt & 1: a.e(f"s_add_u32 s36, s{so_}, 65536")
            for p in range(2):
                B = A_(mt, 2 * p)
                for e in range(4): a.e(f"v_and_or_b32 v{B+2*e}, v{B+2*e}, s15, v{xf}")
                for e in range(4): a.e(f"v_cvt_pk_bf16_f32 v{B+e}, v{B+2*e}, v{B+2*e+1}")
                a.e(f"buffer_store_dwordx4 {vr(B,4)}, v{l16}, s[{srd}:{srd+3}], s{36 if mt & 1 else so_} offen offset:{p*1024} {fl}")
        FS = [[fX + 4 * i for i in range(8)] + [232 + 4 * i for i in range(4)], [fY + 4 * i for i in range(8)] + [RXA + 2 + 4 * i for i in range(4)]]
        def rds(n):
            t, j = n >> 1, n & 1; F = FS[j]; ws = (SP0 + 2 * (t % 3) + j) % 6; o = []
            for kk in range(2):
                for i in range(2): o.append(f"ds_read_b128 {vr(F[8+2*kk+i],4)}, v{a0} offset:{(SP0+t)%3*16384 + (2*j+i)*2048 + kk*1024}")
            for kk in range(2):
                for nt in range(4):
                    for h in range(2):
                        r, imm = wpos(nt, kk, h)
                        o.append(f"ds_read_b64_tr_b16 {vr(F[4*kk+nt]+2*h,2)}, v{(w0, wa)[ws//3]+r} offset:{imm + ws%3*16384}")
            return o
        def half(n, rd, hook=None):
            F = FS[n & 1]; m0_ = 2 if n < 6 else 0; rd = list(rd); tot = len(rd); done = 0
            for k, (kk, nt, i) in enumerate([(kk, nt, i ^ (nt & 1)) for kk in range(2) for nt in range(4) for i in range(2)]):
                if k == 8:
                    a.e(f"s_waitcnt lgkmcnt({done})")
                    if n == 11: a.e("s_barrier")
                a.e(f"v_mfma_f32_16x16x32_bf16 {vr(A_(m0_+i,nt),4)}, {vr(F[4*kk+nt],4)}, {vr(F[8+2*kk+i],4)}, {vr(A_(m0_+i,nt),4)}")
                while rd and done < (tot * (k + 1) + 15) // 16: a.e(rd.pop(0)); done += 1
                if hook and k == 3: hook()
        PX = A_(2, 0)
        pl = [f"buffer_load_dwordx4 {vr(PX+4*k,4)}, v{l16}, s[24:27], s{(40, 12)[k>>1]} offen offset:{(k&1)*1024} {SC}" for k in range(4)]
        mfmas(fX, reads(fY, 1), [f"v_add_u32 v{wa+i}, {3*16384}, v{w0+i}" for i in range(nwr)])
        a.e("s_waitcnt lgkmcnt(0)"); a.e("s_barrier")
        mfmas(fY, rds(0))
        PLN = env("PLN", 10)
        for n in range(12):
            a.e("s_waitcnt lgkmcnt(8)")
            if n & 1 and n < 11: a.e("s_barrier")
            if os.environ.get("JIT") or ("4" in GSTW and not n & 1): mstamp(a, True)
            half(n, rds(n + 1) if n < 11 else [], (lambda: (out(2, 41, 24), out(3, 41, 24))) if n == 6 else (lambda: [a.e(x) for x in pl]) if n == PLN else None)
        mstamp(a, "4" in GSTW)
        data_wait(a, pl, list(range(PX, PX + 16)), t, nap=env("NAPF", 1), first=False)
        mstamp(a)
        for k in range(4): addp(k, PX + 4 * k)
        a.e("s_cmp_eq_u32 s60, 1"); a.e("s_cbranch_scc1 G4_last")
        a.e("s_cmp_eq_u32 s98, 0"); a.e("s_cbranch_scc1 G4_near")
        out(0, 40, 88); out(1, 40, 88); a.e("s_branch G4_out")
        a.e("G4_near:")
        out(0, 40, 88, ""); out(1, 40, 88, "")
        a.e("G4_out:")
        r_pre(a)
        mstamp(a)
        a.e("s_branch NEXT")
        a.e("G4_last:")
        for k in range(4):
            B = A_(k >> 1, 2 * (k & 1))
            for e in range(4): a.e(f"v_cvt_pk_bf16_f32 v{B+e}, v{B+2*e}, v{B+2*e+1}")
            for e in range(2): a.e(f"v_permlane16_swap_b32 v{B+e}, v{B+2+e}")
            if k & 1:
                X, Y_, T = B - 8, B, B + 4
                for e in range(4): a.e(f"v_mov_b32 v{T+e}, v{X+e}")
                for e in range(4): a.e(f"v_mov_b32_dpp v{X+e}, v{Y_+e} row_ror:8 row_mask:0xf bank_mask:0xc")
                for e in range(4): a.e(f"v_mov_b32_dpp v{Y_+e}, v{T+e} row_ror:8 row_mask:0xf bank_mask:0x3")
                a.e(f"buffer_store_dwordx4 {vr(X,4)}, v{oa}, s[20:23], s{38+(k>>1)} offen {os.environ.get('OS', SC).replace('_', ' ')}")
                a.e(f"buffer_store_dwordx4 {vr(Y_,4)}, v{oa+1}, s[20:23], s{38+(k>>1)} offen {os.environ.get('OS', SC).replace('_', ' ')}")
        a.e("s_branch K_fin")
        return
    if not U3:
        mfmas(fX, reads(fY, 1))
        a.e("s_waitcnt lgkmcnt(0)")
        a.e("s_barrier")
    cs = fX; lns = fX + 4 * NT
    mfmas(fY, [f"ds_read_b128 {vr(cs+4*nt,4)}, v{t} offset:{nt*64}" for nt in range(NT)] + [f"ds_read_b128 {vr(lns+4*mt,4)}, v{t2} offset:{mt*256}" for mt in range(MT)])
    mstamp(a)
    if which == 3:
        tp = fY + 12
        def act(tiles):
            P_ = [(A_(mt, nt) + 2 * h, tp + 4 * i + 2 * h, vr(lns + 4 * mt, 2), vr(lns + 4 * mt + 2, 2), cs + 4 * nt + 2 * h) for i, (mt, nt) in enumerate(tiles) for h in range(2)]
            for x, u, L_, K_, c_ in P_: a.e(f"v_pk_fma_f32 {vr(x,2)}, {L_}, {vr(c_,2)}, {vr(x,2)} op_sel_hi:[0,1,1] neg_lo:[1,0,0] neg_hi:[1,0,0]")
            for x, u, L_, K_, c_ in P_: a.e(f"v_pk_mul_f32 {vr(u,2)}, {vr(x,2)}, {vr(x,2)}")
            for x, u, L_, K_, c_ in P_: a.e(f"v_pk_fma_f32 {vr(u,2)}, {vr(u,2)}, {K_}, {K_} op_sel:[0,1,0] op_sel_hi:[1,1,0]")
            for x, u, L_, K_, c_ in P_: a.e(f"v_pk_mul_f32 {vr(u,2)}, {vr(u,2)}, {vr(x,2)}")
            for i in range(8): a.e(f"v_exp_f32 v{tp+i}, v{tp+i}")
            for x, u, L_, K_, c_ in P_: a.e(f"v_pk_fma_f32 {vr(u,2)}, {vr(u,2)}, {L_}, {L_} op_sel:[0,1,1] op_sel_hi:[1,1,1]")
            for i in range(8): a.e(f"v_rcp_f32 v{tp+i}, v{tp+i}")
            for x, u, L_, K_, c_ in P_: a.e(f"v_pk_mul_f32 {vr(x,2)}, {vr(x,2)}, {vr(u,2)}")
        def group(mt, nts, dst=None):
            if len(nts) == 2: act([(mt, nt) for nt in nts])
            elif mt % 2 == 0: act([(mt, nts[0]), (mt + 1, nts[0])])
            P = nts[0] >> 1; B = A_(mt, nts[0]); D = B if dst is None else dst
            for k in range(2 * len(nts)): a.e(f"v_cvt_pk_bf16_f32 v{D+k}, v{B+2*k}, v{B+2*k+1}")
            return [f"s_add_u32 s36, s{44+P}, {mt*224*1024}", f"buffer_store_dwordx4 {vr(B,4)}, v{l16}, s[16:19], s36 offen {SC}"]
        def body():
            gs = [(0, 1), (2, 3), (4, 5), (6,)]
            k = 0; pend = []; sent = 0; RXK = env("RXK", 7); assert RXK >= C0PUB and RXK + 4 <= STQ + 1
            for gi_, g_ in enumerate(gs):
                for mt in range(MT):
                    if k == C0PUB: signal(ST_G3A, sent - 4); mstamp(a)
                    if RXK <= k < RXK + 4:
                        i, p = (k - RXK) >> 1, (k - RXK) & 1
                        a.e(f"buffer_load_dwordx4 {vr(RX[2*i+p],4)}, v{xo}, s[84:87], s{13+i} offen offset:{p*64} {SC}")
                        a.e(f"buffer_load_dwordx4 {vr(RX[2*i+p]+4,4)}, v{l16}, s[88:91], s{(40, 12)[i]} offen offset:{p*1024} {SC}")
                    st_ = group(mt, g_, None if gi_ < 2 else C2R + 4 * mt if gi_ == 2 else C2R + 16 + 2 * mt); k += 1
                    if gi_ < 3:
                        a.e(f"ds_write_b128 v{(J, G)[mt>>1]}, {vr(A_(mt, g_[0]) if gi_ < 2 else C2R + 4 * mt, 4)} offset:{gi_*16384 + (mt&1)*2048}")
                    if gi_ < 2: pend.append(st_)
                    n = len(pend) if (k <= 4 or k == 16) else 0 if k <= STQ else min(1, len(pend))
                    for _ in range(n):
                        for x in pend.pop(0): a.e(x)
                        sent += 1
            a.e("s_waitcnt vmcnt(4) lgkmcnt(0)")
        a.e("s_waitcnt lgkmcnt(0)"); a.e("s_nop 7")
        body()
        mstamp(a)

def k_mega(a):
    nm = KNAME; a.begin_kernel(nm)
    a.e("s_cmp_ge_u32 s2, 256"); a.e("s_cbranch_scc1 K_end")
    a.e(f"s_load_dwordx8 s[8:15], s[0:1], {A_K}"); a.e(f"s_load_dwordx2 s[6:7], s[0:1], {A_Q}"); a.e(f"s_load_dwordx8 s[68:75], s[0:1], {B_W1}")
    a.e(f"s_load_dwordx2 s[4:5], s[0:1], {D_WS}"); a.e(f"s_load_dwordx2 s[84:85], s[0:1], {D_DBG}"); a.e("s_memrealtime s[46:47]")
    a.e(f"s_load_dwordx2 s[76:77], s[0:1], {A_SSMD}")
    a.e("v_lshrrev_b32 v1, 6, v0"); a.e("v_readfirstlane_b32 s30, v1")
    CS = env("CS", 3)
    def codepf():
        a.e("s_getpc_b64 s[48:49]"); a.e("K_pc:")
        a.e("s_lshr_b32 s36, s2, 3"); a.e(f"s_lshl_b32 s36, s36, {9+CS}")
        a.e(f"v_lshlrev_b32 v252, {CS}, v0"); a.e("v_add_u32 v252, s36, v252")
        a.e("v_cmp_gt_u32 vcc, K_end-K_pc-8, v252"); a.e("s_and_saveexec_b64 s[36:37], vcc"); a.e("s_cbranch_execz K_3")
        a.e("v_mov_b32 v253, s49"); a.e("v_add_co_u32 v252, vcc, s48, v252"); a.e("v_addc_co_u32 v253, vcc, 0, v253, vcc")
        a.e("global_load_dword v250, v[252:253], off")
        a.e("K_3:"); a.e("s_mov_b64 exec, -1")
    if env("CPF", 0) == 0: codepf()
    front_loads(a)
    if env("CPF", 0) == 1: codepf()
    a.e("v_and_b32 v1, 63, v0"); a.e("v_lshlrev_b32 v2, 4, v1"); a.e("v_lshlrev_b32 v3, 2, v1")
    a.e("s_and_b32 s32, s2, 7"); a.e("s_lshr_b32 s33, s2, 3")
    a.e("s_and_b32 s28, s32, 2"); a.e("s_lshr_b32 s34, s32, 2"); a.e("s_or_b32 s28, s28, s34")
    a.e("s_lshl_b32 s28, s28, 2"); a.e("s_and_b32 s34, s33, 3"); a.e("s_add_u32 s28, s28, s34")
    a.e("s_and_b32 s31, s32, 1"); a.e("s_lshr_b32 s33, s33, 2")
    a.e("s_lshl_b32 s29, s31, 3"); a.e("s_add_u32 s29, s29, s33")
    a.e("s_and_b32 s67, s33, 4"); a.e("s_add_u32 s67, s67, s33"); a.e("s_lshl2_add_u32 s67, s31, s67")
    a.e("s_mov_b32 s60, 0"); a.e("s_mov_b32 s61, 40000"); a.e("s_mov_b32 s52, 0")
    a.e("s_mov_b32 s55, 0"); a.e("s_mov_b32 s92, 0"); a.e("s_mov_b32 s93, 0"); a.e("s_mov_b32 s94, 0"); a.e("s_mov_b32 s98, 1")
    a.srd(56, 4, X3G)
    a.e(f"s_add_u32 s62, s4, {LB0}"); a.e("s_addc_u32 s63, s5, 0")
    if STAMP:
        a.e("s_mov_b32 s66, 1"); a.e("v_mov_b32 v4, -1"); a.e("v_mov_b32 v5, 0"); a.e("s_mov_b32 s95, 0"); a.e("v_writelane_b32 v4, s46, 0")
    mstamp(a)
    front_a(a); mstamp(a)
    a.e("s_cmp_ge_u32 s30, 4"); a.e("s_cbranch_scc1 FR_b")
    front_conv(a)
    mstamp(a)
    a.e("s_waitcnt vmcnt(4)")
    a.e("s_branch FR_end")
    a.e("FR_b:")
    front_b(a)
    mstamp(a)
    a.e("FR_end:")
    r_stage(a, True)
    a.e("s_waitcnt lgkmcnt(0)"); a.e("s_barrier")
    mstamp(a)
    a.e("LAYER:")
    r_stage(a)
    mstamp(a)
    for w in (3, 4): g_compute(a, w)
    a.e("LOADERS:")
    window_y(a)
    a.e("s_cmp_ge_u32 s30, 6"); a.e("s_cbranch_scc1 WLOAD")
    for w in (3, 4): a_loader(a, w)
    a.e("WLOAD:")
    w_loader(a, 3); w_setup(a, 4); w_loader(a, 4)
    y_end(a)
    a.e("NEXT:")
    a.e("s_setprio 0")
    a.e("s_add_u32 s60, s60, 1"); a.e(f"s_add_u32 s55, s55, {LSTR}")
    a.e(f"s_add_u32 s62, s62, {LSTR}"); a.e("s_addc_u32 s63, s63, 0")
    a.e("s_branch LAYER")
    a.e("K_fin:")
    if STAMP:
        a.e("s_waitcnt vmcnt(0)")
        mstamp(a)
        a.srd(96, 4, 16 * MB, off=200 * MB)
        a.e("s_lshl_b32 s66, s2, 3"); a.e("s_add_u32 s66, s66, s30"); a.e("s_lshl_b32 s66, s66, 8")
        a.e("v_writelane_b32 v4, s95, 63")
        a.e("buffer_store_dword v4, v3, s[96:99], s66 offen")
        a.e("s_add_u32 s66, s66, 0x100000"); a.e("buffer_store_dword v5, v3, s[96:99], s66 offen")
    a.e("s_endpgm")
    emit_subs(a)
    a.e("K_end:")
    a.end_kernel(nm, 256)
    a.launches.append(f"; @launch grid=(256,1,1) block=(512,1,1) lds={LDS_TOTAL}")

HEADER = open("interleave_layers__ssm_conv_h3__mixer_s_mlp__prompt.s.ref").read().split("; Override launch")[0]
DOC = """; One persistent kernel, 256 workgroups x 8 waves (one per CU), generated by dev/gen34.py.
"""
def main(out):
    a = Asm()
    k_mega(a)
    notes = {
        "K_pc:": "each workgroup reads 4 KB of this kernel's code so that later instruction fetches are served on chip",
        "KV_t0:": "k / v / tap loads of the u^T tile (64 times x 128 channels); workgroup 0 has posted the launch tag (a clock value) in d_debug",
        "HB_1:": "u^T tile out, shifted filter copies into LDS, first part of the W2 slice",
        "CV_w:": "long causal convolution as Toeplitz MFMAs, one channel per wave",
        "FR_b:": "waves 4-7 beside the convolution: memory-locality vote (timed loads, layout choice only), weight loads",
        "LAYER:": "row stage: LayerNorm chain, x + LN(x)*y for 8 rows per workgroup",
        "LOADERS:": "waves 4-7: loads of G1, MFMAs of G2; then waves 4,5: activation tiles by LDS-DMA (after the producers' counters are complete)",
        "WLOAD:": "waves 6,7: weight tiles by LDS-DMA in their original layout (read back with transposing LDS loads)",
        "G4_last:": "last layer: write the output",
    }
    o = []
    for l in a.lines:
        if l.strip() in notes: o.append("; ---- " + notes[l.strip()])
        if l.strip().startswith("s_sleep"): l += "    ; back-off inside a wait loop"
        o.append(l)
    a.lines = o
    open(out, "w").write(a.text(HEADER + DOC))
    print("nops added:", a.nops_added, "| slots", [WSLOT[s] // KB for s in range(32)], "| issue", {k: x for k, x in WISSUE.items() if x})

if __name__ == "__main__":
    main(sys.argv[1] if len(sys.argv) > 1 else "interleave_layers__ssm_conv_h3__mixer_s_mlp__prompt.s")
```

```python
import sys, os, math, struct
sys.path.insert(0, "dev")
from asmgen import Asm

KNAME = "interleave_layers__ssm_conv_h3__mixer_s_mlp__prompt_kernel"
MB = 1 << 20; KB = 1024
UT, PRB = 24 * MB, 28 * MB; Y = UT
CSP3 = 20 * MB + 128 * 1024
A_Q, A_K, A_V, A_SH, A_SSMK, A_SSMD, B_X, B_W1, B_W2, B_W3, B_W4, D_OUT, D_DBG, D_WS = [8 * i for i in range(14)]
def env(k, d): return type(d)(os.environ.get(k, d)) if not isinstance(d, (list, dict, tuple)) else eval(os.environ.get(k, repr(d)))
STAMP = env("STAMP", 0)
def f32(x): return "0x%08x" % struct.unpack("<I", struct.pack("<f", x))[0]
GC1 = -2.0 * math.sqrt(2.0 / math.pi) * math.log2(math.e)

WAD = 74
RB0, RB1 = 78, 118
WR0 = 128
class VA:
    def __init__(self, start=1, skip=False): self.n = start; self.hi = start; self.skip = skip
    def __call__(self, cnt=1, al=None):
        if al is None: al = 2 if cnt > 1 else 1
        self.n = (self.n + al - 1) // al * al
        if self.skip and self.n < RB1 and self.n + cnt > RB0: self.n = (RB1 + al - 1) // al * al
        r = self.n; self.n += cnt; self.hi = max(self.hi, self.n); return r
def vr(b, n): return f"v[{b}:{b+n-1}]" if n > 1 else f"v{b}"

def unpack(a, lo, hi, src):
    a.e(f"v_lshlrev_b32 v{lo}, 16, v{src}")
    a.e(f"v_and_b32 v{hi}, 0xffff0000, v{src}")
def round2(a, x, y, tmp):
    a.e(f"v_cvt_pk_bf16_f32 v{tmp}, v{x}, v{y}")
    unpack(a, x, y, tmp)
def round1(a, x):
    a.e(f"v_cvt_pk_bf16_f32 v{x}, v{x}, v{x}")
    a.e(f"v_lshlrev_b32 v{x}, 16, v{x}")
def ln_finish(a, mean, var, rs):
    round1(a, mean); round1(a, var)
    a.e(f"v_add_f32 v{var}, {f32(1e-5)}, v{var}"); round1(a, var)
    a.e(f"v_sqrt_f32 v{var}, v{var}"); round1(a, var)
    if rs is not None: a.e(f"v_rcp_f32 v{rs}, v{var}")

FLG = 22 * MB
LB0, LSTR, GSTR = 32 * MB, 64 * MB, 8 * MB
oH2 = 0; oSM = 1792 * 1024; oST2 = oSM + 32768
oH, oX1P = [4 * MB + i * 512 * 1024 for i in range(2)]
XSZ = 512 * 1024 - 8192; H2SZ = 1792 * 1024 - 8192
X3G = 160 * MB
LNSG = FLG + 128 * KB
def spread(a, d, src):
    a.e(f"s_lshr_b32 s53, s{src}, 3"); a.e("s_lshl_b32 s53, s53, 14"); a.e(f"s_and_b32 s{d}, s{src}, 7"); a.e(f"s_lshl_b32 s{d}, s{d}, 10"); a.e(f"s_add_u32 s{d}, s{d}, s53")
ST_R, ST_G2, ST_G4, ST_G3A, ST_G3B, ST_G3, ST_G2S = 0, 8, 12, 32, 36, 40, 44
FH = 2048
F_KVT, F_FRONT, F_CS = FLG + 256 * KB, FLG + 512 * KB, FLG
LDS_TOTAL = 163840
AUX = LDS_TOTAL - 4096
SC = "sc1"
PSLEEP = env("PSLEEP", 5); PACE = env("PACE", 8); STQ = env("STQ", 12); FSLEEP = env("FSLEEP", 3)
NT = os.environ.get("NT", "nt"); NTK = NT; NTH = NT
PUB2 = env("PUB2", 4); MAP = env("MAP", 4); HSPLIT = env("HSPLIT", 2); PWAIT = env("PWAIT", 8)
PACES = env("PACES", {4: 8}); C0PUB = env("C0PUB", 7)
REC, LNSL = 152 * KB, AUX + 1024
WST = 24 * KB

CFG = {1: dict(KBT=32, NW=16, LDW=2048, TN16=4, WB=0),
       3: dict(WM=2, WN=2, MT=4, NT=7, KBT=32, NS=16, NA=3, NW=3, A=oX1P, LDW=7168, NPRE=2, WR=2),
       4: dict(WM=2, WN=2, MT=4, NT=4, KBT=112, NS=28, NA=3, NW=6, A=oH2, LDW=2048)}
for w, c in CFG.items():
    c.setdefault("NPRE", c["NW"]); c.setdefault("WR", 1)
    if w > 1: c["TN16"] = c["WN"] * c["NT"]; c["WB"] = c["NA"] * 16384
    c["STB"] = c["TN16"] * 2048; c["RB"] = c["TN16"] * 32
CFG[2] = CFG[1]
CSO = {3: AUX}

LW = AUX + 3072
def mstamp(a, force=False):
    if os.environ.get("JIT"):
        X = a.lab("jit")
        a.e("s_cselect_b32 s101, 1, 0"); a.e("s_memtime s[64:65]"); a.e("s_waitcnt lgkmcnt(0)"); a.e(f"s_and_b32 s64, s64, {os.environ['JIT']}"); a.e("s_cmp_lg_u32 s64, 0")
        a.e(f"s_cbranch_scc1 {X}"); a.e("s_sleep 50"); a.e(f"{X}:"); a.e("s_cmp_eq_u32 s101, 1")
        return
    if not STAMP or (os.environ.get("GST") and not force): return
    if STAMP == 1:
        fn = sys._getframe(1)
        while fn.f_code.co_name in ("<lambda>", "flag"): fn = fn.f_back
        if fn.f_code.co_name in ("front_b", "window_y", "w_setup", "w_loader", "a_loader", "wait2", "run", "front_a"): return
        if fn.f_code.co_name == "win_compute" and fn.f_locals["g"] == 2: return
        a.e("s_memrealtime s[64:65]"); a.e("s_mov_b32 s100, m0"); a.e("s_mov_b32 m0, s66"); a.e("s_waitcnt lgkmcnt(0)")
        a.e("v_writelane_b32 v4, s64, m0"); a.e("s_mov_b32 m0, s100"); a.e("s_add_u32 s66, s66, 1")
        return
    a.e("s_memrealtime s[64:65]"); a.e("s_memtime s[96:97]")
    a.e("s_mov_b32 s100, m0"); a.e("s_mov_b32 m0, s66"); a.e("s_waitcnt lgkmcnt(0)")
    a.e("v_writelane_b32 v4, s64, m0"); a.e("v_writelane_b32 v5, s96, m0")
    a.e("s_mov_b32 m0, s100"); a.e("s_add_u32 s66, s66, 1")

def lsrd(a, d, off, nbytes, prev=False):
    if prev:
        a.e(f"s_sub_u32 s{d}, s62, {LSTR - off:#x}"); a.e(f"s_subb_u32 s{d+1}, s63, 0")
        a.e(f"s_mov_b32 s{d+2}, {nbytes:#x}"); a.e(f"s_mov_b32 s{d+3}, 0x20000")
    else: a.srd(d, 62, nbytes, off=off)
def x3_srd(a, d):
    a.e(f"s_lshl_b32 s{d+2}, s60, 24"); a.e(f"s_lshl_b32 s{d+3}, s94, 13"); a.e(f"s_add_u32 s{d+2}, s{d+2}, s{d+3}"); a.e(f"s_add_u32 s{d+2}, s{d+2}, {X3G}")
    a.e(f"s_add_u32 s{d}, s4, s{d+2}"); a.e(f"s_addc_u32 s{d+1}, s5, 0"); a.e(f"s_mov_b32 s{d+2}, {8*MB - 8192}"); a.e(f"s_mov_b32 s{d+3}, 0x20000")
def lns_srd(a, d):
    a.e(f"s_lshl_b32 s{d+2}, s60, 15"); a.e(f"s_add_u32 s{d+2}, s{d+2}, {LNSG}")
    a.e(f"s_add_u32 s{d}, s4, s{d+2}"); a.e(f"s_addc_u32 s{d+1}, s5, 0"); a.e(f"s_mov_b32 s{d+2}, 32768"); a.e(f"s_mov_b32 s{d+3}, 0x20000")
def rowaddr(a, d, r, t):
    a.e(f"v_and_b32 v{t}, 3, v{r}"); a.e(f"v_lshrrev_b32 v{d}, 2, v{r}"); a.e(f"v_lshlrev_b32 v{d}, 14, v{d}"); a.e(f"v_lshl_add_u32 v{d}, v{t}, 11, v{d}")

def group_off(a, d, m):
    a.e(f"s_lshr_b32 s53, s{m}, 3"); a.e("s_lshl_b32 s53, s53, 2"); a.e(f"s_and_b32 s54, s{m}, 3"); a.e("s_add_u32 s53, s53, s54"); a.e("s_lshl_b32 s53, s53, 23")
    a.e(f"s_lshr_b32 s54, s{m}, 2"); a.e("s_xor_b32 s54, s54, s94"); a.e("s_and_b32 s54, s54, 1"); a.e("s_lshl_b32 s54, s54, 13")
    a.e(f"s_add_u32 s{d}, s53, s54"); a.e(f"s_add_u32 s{d}, s{d}, {LB0}")

def poll_core(a, t, ad, mask, cnt=0, nap=None):
    L = a.lab("poll"); D = a.lab("pok")
    a.e("s_mov_b32 s53, 0"); a.e(f"s_add_u32 s54, s52, {cnt}")
    a.e(f"s_bfm_b64 exec, {mask.bit_length()}, 0")
    a.e(f"{L}:")
    a.e(f"buffer_load_dword v{t}, v{ad}, s[56:59], 0 offen {SC}")
    a.e("s_waitcnt vmcnt(0)")
    a.e(f"v_cmp_eq_u32 vcc, s54, v{t}")
    a.e("s_cmp_eq_u64 vcc, exec"); a.e(f"s_cbranch_scc1 {D}")
    a.e(f"s_sleep {PSLEEP if nap is None else nap}")
    a.e("s_add_u32 s53, s53, 1"); a.e("s_cmp_lt_u32 s53, s61"); a.e(f"s_cbranch_scc1 {L}")
    a.e("s_mov_b32 s61, 0")
    a.e(f"{D}:")
    a.e("s_mov_b64 exec, -1")

def flag_off(a, d, stage, sub, prev=False):
    a.e(f"s_lshl_b32 s{d}, s{sub}, 7"); a.e(f"s_add_u32 s{d}, s{d}, s55")
    so = stage * 128 - (LSTR if prev else 0)
    if so: a.e(f"s_add_u32 s{d}, s{d}, {so & 0xffffffff:#x}")
def flag_in(a, d, stage, prev=False):
    if stage in (ST_R, ST_G2): a.e(f"s_add_u32 s{d}, s55, {stage*128}"); return 1 if stage == ST_R else 4
    if stage == ST_G4: a.e(f"s_lshl_b32 s{d}, s31, 1")
    else:
        a.e(f"s_and_b32 s{d}, s30, 1")
        if stage != ST_G2S: a.e(f"s_lshl1_add_u32 s{d}, s31, s{d}")
    flag_off(a, d, stage, d, prev)
    return 2 if stage == ST_G4 else 1
def flag_addr(a, r, stage, prev=False):
    n = flag_in(a, 54, stage, prev)
    if stage == ST_R:
        a.e("s_bitcmp1_b32 s29, 2"); a.e("s_cselect_b32 s53, s93, s92"); a.e("s_add_u32 s53, s53, s54")
        a.e(f"v_mov_b32 v{r}, s54"); a.e(f"v_writelane_b32 v{r}, s53, 1")
        return 3
    a.e(f"v_mov_b32 v{r}, s54")
    a.e(f"v_lshl_add_u32 v{r}, v1, 7, v{r}")
    return (1 << n) - 1
def flag_try(a, d, off): a.e(f"s_load_dword s{d}, s[4:5], s{off}")
def flag_check(a, d, off, t):
    D = a.lab("fok")
    a.e("s_add_u32 s54, s52, 16"); a.e("s_waitcnt lgkmcnt(0)"); a.e(f"s_cmp_eq_u32 s{d}, s54"); a.e(f"s_cbranch_scc1 {D}")
    a.e(f"v_mov_b32 v{t+1}, s{off}"); poll_core(a, t, t + 1, 1, cnt=16)
    a.e(f"{D}:")

def poll(a, stage, t, prev=False, wave=4, nap=None):
    D = a.lab("pdone")
    a.e(f"s_cmp_lg_u32 s30, {wave}"); a.e(f"s_cbranch_scc1 {D}")
    poll_core(a, t, t + 1, flag_addr(a, t + 1, stage, prev), cnt=16, nap=nap)
    a.e(f"{D}:")
    a.e("s_waitcnt lgkmcnt(0)"); a.e("s_barrier")

def publish(a, stage, t, off=None, wait=0):
    if off is None:
        off = 53
        if stage == ST_G4: flag_off(a, 53, stage, 30)
        else:
            a.e({ST_G2: "s_and_b32 s53, s30, 3", ST_G2S: "s_and_b32 s53, s30, 1"}.get(stage, "s_lshr_b32 s53, s30, 1"))
            if stage not in (ST_G2, ST_G2S): a.e("s_lshl1_add_u32 s53, s31, s53")
            flag_off(a, 53, stage, 53)
    a.e(f"v_mov_b32 v{t}, 1"); a.e(f"v_mov_b32 v{t+1}, 0")
    a.e("s_mov_b64 exec, 1")
    if wait is not None: a.e(f"s_waitcnt vmcnt({wait})")
    a.e(f"buffer_atomic_add v{t}, v{t+1}, s[56:59], s{off} offen {SC}")
    a.e("s_mov_b64 exec, -1")

def data_wait(a, loads, regs, t, between=None, nap=2, first=True):
    L = a.lab("dw"); D = a.lab("dok")
    for x in loads if first else []: a.e(x)
    if between: between()
    a.e("s_mov_b32 s53, 0")
    a.e(f"{L}:")
    a.e("s_waitcnt vmcnt(0)")
    h = len(regs) // 2
    for k, part in enumerate((regs[:h], regs[h:])): a.e(f"v_and_b32 v{t+k}, v{part[0]}, v{part[1]}")
    for i in range(2, h, 2):
        for k, part in enumerate((regs[:h], regs[h:])): a.e(f"v_bitop3_b32 v{t+k}, v{part[i]}, v{part[i+1]}, v{t+k} bitop3:0x80")
    a.e(f"v_bitop3_b32 v{t}, v{t}, v{t+1}, 1 bitop3:0x80"); a.e(f"v_cmp_eq_u32 vcc, 0, v{t}")
    a.e("s_cmp_eq_u64 vcc, 0"); a.e(f"s_cbranch_scc1 {D}")
    a.e("s_mov_b64 exec, vcc")
    a.e(f"s_sleep {nap}")
    for x in loads: a.e(x)
    a.e("s_add_u32 s53, s53, 1"); a.e("s_cmp_lt_u32 s53, s61"); a.e(f"s_cbranch_scc1 {L}")
    a.e("s_mov_b32 s61, 0"); a.e("s_waitcnt vmcnt(0)")
    a.e(f"{D}:")
    a.e("s_mov_b64 exec, -1")
    if STAMP: a.e("s_lshl_b32 s53, s53, 24"); a.e("s_add_u32 s95, s95, s53")
def lsb0(a, r):
    a.e(f"v_add_u32 v{r}, 0x10000, v{r}"); a.e(f"v_and_b32 v{r}, 0xfffe0000, v{r}")
MV = env("MV", ())
W1A, W1B = tuple(j for j in (11, 12, 15, 13, 14, 3, 4, 5, 6, 0) if j not in MV), (7, 8, 1, 2, 9, 10) + MV
W2S = (-3, -2, -1) + W1B
def lds_spin(a, addr, target, t, dst=53, nap=False):
    L = a.lab("spin")
    a.e(f"v_mov_b32 v{t}, {addr}")
    a.e(f"{L}:")
    if nap: a.e(f"s_sleep {int(nap)}")
    a.e(f"ds_read_b32 v{t+1}, v{t}"); a.e("s_waitcnt lgkmcnt(0)"); a.e(f"v_readfirstlane_b32 s{dst}, v{t+1}")
    a.e(f"s_cmp_ge_u32 s{dst}, {target}"); a.e(f"s_cbranch_scc0 {L}")
def lds_set(a, addr, val, t):
    a.e(f"v_mov_b32 v{t}, {addr}"); a.e(f"v_mov_b32 v{t+1}, {val}")
    a.e("s_waitcnt lgkmcnt(0)"); a.e(f"ds_write_b32 v{t}, v{t+1}")
def lds_inc(a, addr, t):
    a.e(f"v_mov_b32 v{t}, {addr}"); a.e(f"v_mov_b32 v{t+1}, 1")
    a.e("s_waitcnt lgkmcnt(0)")
    a.e("s_mov_b64 exec, 1"); a.e(f"ds_add_u32 v{t}, v{t+1}"); a.e("s_mov_b64 exec, -1")
def lbar(a, k, t, addr=LW + 8, nap=False):
    lds_inc(a, addr, t); lds_spin(a, addr, 4 * k, t, nap=nap)

class Rec:
    def __init__(s_): s_.l = []
    def e(s_, x): s_.l.append(x)
    srd = Asm.srd
class Track:
    def __init__(s, a): s.a = a; s.vq = []; s.lq = []
    def e(s, x): s.a.e(x)
    def vm(s, x, tag=None): s.a.e(x); s.vq.append(tag)
    def ds(s, x, tag=None): s.a.e(x); s.lq.append(tag)
    def _w(s, q, tag, nm, mx):
        if tag not in q: return
        i = max(k for k, x in enumerate(q) if x == tag); n = len(q) - 1 - i
        assert n <= mx
        s.a.e(f"s_waitcnt {nm}({n})"); del q[:i + 1]
    def wv(s, tag): s._w(s.vq, tag, "vmcnt", 63)
    def wl(s, tag): s._w(s.lq, tag, "lgkmcnt", 15)
    def nv(s, tag):
        return len(s.vq) - 1 - max(k for k, x in enumerate(s.vq) if x == tag)
NVOTE = 255
HSTR = 4160; CHB = 21504; UOFF = 4 * HSTR
RFO, RYO, RRO, RI, RXO, RT, RXA, RXB, RYF, RYY = 78, 79, 80, 81, 82, 84, 86, 94, 102, 110
WVB = {1: 118, 2: 118, 4: 119, 3: 121}

NRAW = env("NRAW", 8)
KL, VL = 96 * KB, 113 * KB
def front_loads(a):
    vA, vB, t, t2 = 6, 7, 8, 9
    a.e(f"v_bfe_u32 v{t}, v0, 4, 2"); a.e(f"v_and_b32 v{t2}, 15, v0"); a.e(f"v_lshlrev_b32 v{vA}, 11, v{t}"); a.e(f"v_lshlrev_b32 v{t}, 1, v{t}")
    a.e(f"v_xor_b32 v{t}, v{t}, v{t2}"); a.e(f"v_lshl_add_u32 v{t}, v{t}, 4, v{vA}")
    a.e("s_and_b32 s34, s2, 7"); a.e("s_lshr_b32 s35, s2, 3")
    a.e("s_lshl_b32 s36, s35, 17"); a.e("s_lshl_b32 s37, s34, 8"); a.e("s_add_u32 s36, s36, s37")
    a.e("s_lshl_b32 s37, s30, 6"); a.e("s_and_b32 s38, s37, 128"); a.e("s_add_u32 s37, s37, 64"); a.e("s_and_b32 s37, s37, 128")
    a.e(f"v_xor_b32 v{vA}, s38, v{t}"); a.e(f"v_xor_b32 v{vB}, s37, v{t}")
    a.e("s_lshl_b32 s37, s30, 14"); a.e("s_add_u32 s37, s37, s36"); a.e("s_add_u32 s38, s37, 8192"); a.e("s_lshl_b32 s39, s30, 11")
    a.e(f"s_mov_b32 s18, {4*MB}"); a.e("s_mov_b32 s19, 0x20000"); a.e("s_mov_b32 s22, s18"); a.e("s_mov_b32 s23, s19")
    a.e(f"s_add_u32 m0, s39, {KL + 1024}")
    a.e("s_waitcnt lgkmcnt(0)")
    a.e("s_mov_b64 s[16:17], s[8:9]"); a.e("s_mov_b64 s[20:21], s[10:11]")
    a.e(f"buffer_load_dwordx4 v{vA}, s[16:19], s37 offen {NT} lds"); a.e("s_add_u32 m0, m0, 1024")
    a.e(f"buffer_load_dwordx4 v{vB}, s[16:19], s38 offen {NT} lds"); a.e(f"s_add_u32 m0, s39, {VL}")
    a.e(f"buffer_load_dwordx4 v{vA}, s[20:23], s37 offen {NT} lds"); a.e("s_add_u32 m0, m0, 1024")
    a.e(f"buffer_load_dwordx4 v{vA}, s[20:23], s38 offen {NT} lds")
    a.e("s_mov_b32 s86, 256"); a.e("s_mov_b32 s87, 0x20000"); a.e(f"v_mov_b32 v{ZZ}, 0")
    a.e("s_cmp_lg_u32 s30, 0"); a.e("s_cbranch_scc1 KV_t0")
    a.e("s_sub_u32 s36, s36, 8192"); a.e(f"v_add_u32 v{t}, s36, v{t}"); a.e(f"s_mov_b32 m0, {KL}")
    a.e(f"buffer_load_dwordx4 v{t}, s[16:19], 0 offen {NT} lds")
    a.e("s_cmp_lg_u32 s2, 0"); a.e("s_cbranch_scc1 KV_t0")
    a.e("s_lshl_b32 s44, s46, 6"); a.e("s_or_b32 s44, s44, 1"); a.e(f"v_mov_b32 v{t2}, s44")
    a.e("s_mov_b64 exec, 1"); a.e(f"buffer_store_dword v{t2}, v{ZZ}, s[84:87], 0 offen {SC}"); a.e("s_mov_b64 exec, -1")
    a.e("KV_t0:")
    a.e("s_lshl_b32 s37, s34, 10"); a.e("s_lshl_b32 s38, s30, 7"); a.e("s_add_u32 s37, s37, s38"); a.e(f"v_and_b32 v{t2}, 15, v0"); a.e(f"v_lshlrev_b32 v{t2}, 3, v{t2}")
    a.srd(24, 12, 8192)
    a.e(f"buffer_load_dwordx2 {vr(TAP,2)}, v{t2}, s[24:27], s37 offen")
ZZ, TAP = 10, 12

def front_arrive(a):
    t = 6
    a.e("s_lshl_b32 s36, s2, 7"); a.e(f"s_add_u32 s36, s36, {F_FRONT}"); a.e("s_add_u32 s45, s45, s52")
    a.e("s_getreg_b32 s53, hwreg(HW_REG_XCC_ID, 0, 4)"); a.e("s_lshl2_add_u32 s45, s53, s45"); a.e(f"v_mov_b32 v{t+2}, s45")
    a.e("s_mov_b64 exec, 1"); a.e(f"buffer_store_dword v{t+2}, v2, s[56:59], s36 offen {SC}"); a.e("s_mov_b64 exec, -1")
def front_a(a):
    T = Track(a); v = VA(14)
    t = v(); t2 = v(); ra = v(2, 2); go = v(); hw = v(); hw2 = v(); hoff = v(6, 2); d = v(18, 2); tf = v(4, 2); o = v(8, 4); z = v(4, 4)
    assert v.hi <= WAD
    v = VA(128); kr = v(10, 2); vv = v(8, 2); kf = v(20, 2); ks = v(16, 2); dm = 240
    a.e("s_cmp_lg_u32 s30, 4"); a.e("s_cbranch_scc1 HB_1")
    a.e(f"v_add_u32 v{t}, {LW}, v3"); a.e(f"ds_write_b32 v{t}, v{ZZ}")
    a.e("HB_1:")
    w_srd(a, 2, 88)
    a.e("s_lshl3_add_u32 s36, s2, s30"); a.e("s_lshl_b32 s36, s36, 10")
    w_srd(a, 1, 80); a.e("s_mov_b32 s50, s36")
    def wtouch(l=(88, 80)):
        for d_ in l: T.vm(f"buffer_load_dwordx4 {vr(dm,4)}, v2, s[{d_}:{d_+3}], s50 offen")
    WT = env("WT", 6)
    if WT == 0: wtouch()
    w_lanes(a, (1,), t, t2)
    for r in range(119, 128): a.e(f"v_mov_b32 v{r}, 0")
    a.e("s_lshl_b32 s48, s29, 7"); a.e("s_lshl_b32 s36, s30, 14"); a.e("s_add_u32 s48, s48, s36"); a.e("s_lshl_b32 s49, s30, 10")
    a.e(f"s_add_u32 s48, s48, {MB}")
    w2q = list(range(NRAW, 16))
    def w2(n):
        for _ in range(min(n, len(w2q))):
            j = w2q.pop(0)
            a.e(f"s_add_u32 s36, s48, {(j & 7) << 17}")
            a.e(f"s_add_u32 m0, s49, {WST + j * 8192}")
            T.vm(f"buffer_load_dwordx4 v{WVB[1]}, s[88:91], s36 offen lds")
    a.e("s_and_b32 s41, s30, 3"); chan_setup(a, 41)
    a.e("s_lshl_b32 s36, s39, 12")
    a.e("s_add_u32 s12, s14, s36"); a.e("s_addc_u32 s13, s15, 0"); a.e("s_mov_b32 s14, 4096"); a.e("s_mov_b32 s15, 0x20000")
    a.e("s_lshr_b32 s45, s30, 2"); a.e("s_lshl_b32 s45, s45, 11")
    for it in range(3):
        if it < 2: a.e(f"s_add_u32 s36, s45, {(1024*it - 64) & 0xffffffff:#x}")
        else: a.e(f"s_mov_b32 s36, {4096 - 64}")
        a.e(f"v_add_u32 v{hoff+2*it}, s36, v2"); a.e(f"v_add_u32 v{hoff+2*it+1}, 16, v{hoff+2*it}")
    def hld():
        for it in range(3):
            T.vm(f"buffer_load_dwordx4 {vr(d+6*it,4)}, v{hoff+2*it}, s[12:15], 0 offen {NTH}", "h")
            T.vm(f"buffer_load_dwordx2 {vr(d+6*it+4,2)}, v{hoff+2*it+1}, s[12:15], 0 offen {NTH}", "h")
    a.e(f"v_add_u32 v{hw}, s40, v2"); a.e(f"v_add_u32 v{hw2}, s45, v{hw}")
    conv_setup(a); r_addr(a)
    a.srd(8, 6, 4 * MB)
    for i in range(4): a.e(f"v_mov_b32 v{z+i}, 0")
    a.e("s_bfm_b64 exec, 40, 0"); a.e(f"ds_write_b128 v{hw}, {vr(z,4)} offset:{UOFF+4096}"); a.e("s_mov_b64 exec, -1")
    assert UOFF + 4096 + 640 <= CHB and 4 * CHB <= WST + NRAW * 8192
    a.e("s_and_b32 s34, s2, 7"); a.e("s_lshr_b32 s35, s2, 3")
    a.e(f"v_bfe_u32 v{t}, v1, 2, 3"); a.e(f"v_xor_b32 v{t}, s30, v{t}"); a.e(f"v_lshlrev_b32 v{ra}, 5, v{t}")
    a.e(f"v_and_b32 v{t}, 3, v1"); a.e(f"v_lshl_add_u32 v{ra}, v{t}, 3, v{ra}")
    a.e(f"v_bfe_u32 v{t}, v1, 2, 2"); a.e(f"v_lshl_add_u32 v{ra}, v{t}, 8, v{ra}"); a.e(f"v_lshrrev_b32 v{t}, 4, v1"); a.e(f"v_lshl_add_u32 v{ra}, v{t}, 12, v{ra}")
    a.e(f"v_add_u32 v{ra}, {KL}, v{ra}"); a.e(f"v_xor_b32 v{ra+1}, 128, v{ra}")
    a.srd(16, 4, 4 * MB, off=UT)
    a.e(f"v_bfe_u32 v{go}, v1, 2, 2"); a.e(f"v_lshlrev_b32 v{go}, 14, v{go}"); a.e(f"v_and_b32 v{t}, 3, v1"); a.e(f"v_lshl_add_u32 v{go}, v{t}, 6, v{go}")
    a.e(f"v_bfe_u32 v{t}, v1, 4, 1"); a.e(f"v_lshrrev_b32 v{t2}, 5, v1"); a.e(f"v_lshl_add_u32 v{t}, v{t}, 1, v{t2}"); a.e(f"v_xor_b32 v{t}, 3, v{t}"); a.e(f"v_lshl_add_u32 v{go}, v{t}, 4, v{go}")
    a.e("s_lshl3_add_u32 s42, s34, s30"); a.e("s_lshl_b32 s43, s42, 16"); a.e("s_sub_u32 s37, 31, s35"); a.e("s_lshl_b32 s37, s37, 9"); a.e("s_add_u32 s43, s43, s37")
    a.e("s_lshl_b32 s44, s42, 5"); a.e("s_add_u32 s44, s44, s35"); a.e("s_lshl_b32 s44, s44, 7"); a.e(f"s_add_u32 s44, s44, {F_KVT}")
    a.e("s_cmp_lt_u32 s30, 4"); a.e("s_cbranch_scc1 HB_4")
    w_lanes(a, (3, 4), t, t2)
    a.e("HB_4:")
    hld()
    if WT == 1: wtouch()
    if WT >= 4: wtouch((88,))
    a.e("s_cmp_ge_u32 s30, 4"); a.e("s_cbranch_scc1 HB_3")
    conv_setup2(a); a.e("s_waitcnt lgkmcnt(0)"); conv_diag(a)
    a.e("HB_3:")
    mstamp(a)
    a.e(f"s_waitcnt vmcnt({len(T.vq)}) lgkmcnt(0)"); a.e("s_barrier")
    mstamp(a)
    for i in range(5): a.e(f"ds_read_b64_tr_b16 {vr(kr+2*i,2)}, v{ra+i//4} offset:{1024*i}")
    for i in range(4): a.e(f"ds_read_b64_tr_b16 {vr(vv+2*i,2)}, v{ra} offset:{VL - KL + 1024*i}")
    a.e("s_load_dword s52, s[84:85], 0")
    unpack(a, tf, tf + 1, TAP); unpack(a, tf + 2, tf + 3, TAP + 1)
    a.e("s_waitcnt lgkmcnt(0)")
    b = Rec()
    for i in range(10): unpack(b, kf + 2 * i, kf + 2 * i + 1, kr + i)
    for i in range(16): b.e(f"v_mul_f32 v{ks+i}, v{kf+i+1}, v{tf+3}")
    for j in (2, 1, 0):
        for i in range(16): b.e(f"v_fmac_f32 v{ks+i}, v{kf+i+4-j}, v{tf+j}")
    for i in range(8): unpack(b, kf + 2 * i, kf + 2 * i + 1, vv + i)
    for i in range(16): b.e(f"v_mul_f32 v{ks+i}, v{ks+i}, v{kf+i}")
    for i in range(1, 16, 2): lsb0(b, ks + i)
    for i in range(8): b.e(f"v_cvt_pk_bf16_f32 v{o+i}, v{ks+8*(i//4)+7-2*(i%4)}, v{ks+8*(i//4)+6-2*(i%4)}")
    for x in b.l: a.e(x)
    a.e("s_cmp_lg_u32 s52, 0"); a.e("s_cbranch_scc1 HB_q")
    a.e("s_mov_b32 s53, 0")
    a.e("HB_p:")
    a.e(f"buffer_load_dword v{t}, v{ZZ}, s[84:87], 0 offen {SC}"); a.e("s_waitcnt vmcnt(0)")
    a.e(f"v_readfirstlane_b32 s52, v{t}"); a.e("s_cmp_lg_u32 s52, 0"); a.e("s_cbranch_scc1 HB_q")
    a.e("s_add_u32 s53, s53, 1"); a.e("s_cmp_lt_u32 s53, s61"); a.e("s_cbranch_scc1 HB_p")
    a.e("s_mov_b32 s52, 1"); a.e("s_mov_b32 s61, 0")
    a.e("HB_q:")
    for e in range(4): a.e(f"v_permlane32_swap_b32 v{o+e}, v{o+4+e}")
    a.e(f"v_mov_b32 v{t}, s52")
    for i in range(2): T.vm(f"buffer_store_dwordx4 {vr(o+4*i,4)}, v{go}, s[16:19], s43 offen offset:{256*(1-i)} {SC}", "u")
    mstamp(a)
    cc = kr
    T.wv("h")
    FL = env("FL", 2)
    def flag():
        T.wv("u")
        a.e("s_mov_b64 exec, 1"); T.vm(f"buffer_store_dword v{t}, v{ZZ}, s[56:59], s44 offen {SC}"); a.e("s_mov_b64 exec, -1")
        a.e("s_cmp_lg_u32 s30, 5"); a.e("s_cbranch_scc1 KV_n3")
        a.e("s_lshl_b32 s36, s2, 14"); a.e(f"s_add_u32 s36, s36, {PRB}"); a.e(f"v_lshrrev_b32 v{t2}, 3, v1"); a.e(f"v_mul_u32_u24 v{t2}, {8192 - 128}, v{t2}"); a.e(f"v_add_u32 v{t2}, v{t2}, v2")
        a.e("s_mov_b64 exec, 0xffff"); a.e(f"buffer_store_dwordx4 {vr(z,4)}, v{t2}, s[56:59], s36 offen {SC}"); a.e("s_mov_b64 exec, -1")
        a.e("KV_n3:")
        mstamp(a)
    for it in range(3):
        if it == FL: flag()
        D = d + 6 * it; c0 = cc + 12 * it; c1 = c0 + 4; c2 = c0 + 8
        for k in range(4):
            a.e(f"v_alignbit_b32 v{c0+k}, v{D+k+1}, v{D+k}, 16")
            a.e(f"v_mov_b32 v{c1+k}, v{D+k+1}")
            a.e(f"v_alignbit_b32 v{c2+k}, v{D+k+2}, v{D+k+1}, 16")
        if it == 2: a.e("s_mov_b64 exec, 0xf")
        ad, o0 = (hw2, 1024 * it) if it < 2 else (hw, 4096)
        a.e(f"ds_write_b128 v{ad}, {vr(c0,4)} offset:{o0}")
        a.e(f"ds_write_b128 v{ad}, {vr(c1,4)} offset:{HSTR+o0}")
        a.e(f"ds_write_b128 v{ad}, {vr(c2,4)} offset:{2*HSTR+o0}")
        a.e(f"ds_write_b128 v{ad}, {vr(D+2,4)} offset:{3*HSTR+o0}")
    a.e("s_mov_b64 exec, -1")
    if FL == 3: flag()
    a.e("s_waitcnt lgkmcnt(0)"); a.e("s_barrier")
    mstamp(a)
    w2(16)
def load_q(a):
    for j in range(4): a.e(f"buffer_load_dwordx2 {vr(RXA+2*j,2)}, v{RRO}, s[8:11], 0 offen offset:{128*(j>>1) + 32*(j&1)} {NTH}")
def chan_setup(a, wsg):
    a.e("s_and_b32 s38, s2, 7"); a.e("s_lshl_b32 s38, s38, 5"); a.e("s_lshr_b32 s39, s2, 3"); a.e("s_add_u32 s38, s38, s39")
    a.e("s_lshl_b32 s39, s38, 2"); a.e(f"s_add_u32 s39, s39, s{wsg}")
    a.e(f"s_mul_i32 s40, s{wsg}, {CHB}")

def touch(a, which, nbytes, r, i0=0, i1=99):
    n = nbytes // 1024 // 512
    a.e(f"s_mov_b64 s[48:49], s[{66+2*which}:{67+2*which}]")
    a.e("s_lshl_b32 s45, s2, 1"); a.e("s_and_b32 s50, s30, 1"); a.e("s_add_u32 s45, s45, s50"); a.e(f"s_mul_i32 s45, s45, {n*1024}")
    a.e(f"s_mov_b32 s50, {nbytes}"); a.e("s_mov_b32 s51, 0x20000")
    for i in range(n):
        if i and i % 4 == 0: a.e("s_add_u32 s45, s45, 4096")
        if i0 <= i < i1: a.e(f"buffer_load_dwordx4 {vr(r,4)}, v2, s[48:51], s45 offen offset:{(i&3)*1024}")
    return n

def cs_sum(a):
    N = 3584; CSEL, CFR, CAD, CACC, CO = 20, 48, 104, 108, 112
    X = a.lab("cs")
    a.e("s_cmp_lg_u32 s60, 0"); a.e(f"s_cbranch_scc1 {X}")
    a.e("s_and_b32 s35, s30, 1")
    nr, pos = w_bases(a, 3, CAD, 35, 7, CO, CO + 1)
    a.e("s_cmp_eq_u32 s28, s29"); a.e(f"s_cselect_b32 s36, 0, {CFG[3]['STB']}")
    for i in range(nr): a.e(f"v_add_u32 v{CAD+i}, s36, v{CAD+i}")
    for T in range(7):
        for kk in range(2):
            for h in range(2):
                r, imm = pos(T, kk, h)
                a.e(f"ds_read_b64_tr_b16 {vr(CFR+8*T+4*kk+2*h,2)}, v{CAD + r} offset:{imm}")
    a.e(f"v_and_b32 v{CO}, 15, v1"); a.e(f"v_mov_b32 v{CO+1}, 0x3f803f80")
    for T in range(7):
        a.e(f"v_cmp_eq_u32 vcc, {T}, v{CO}")
        for e in range(4): a.e(f"v_cndmask_b32 v{CSEL+4*T+e}, 0, v{CO+1}, vcc")
    a.e(f"v_and_b32 v{CO+2}, 48, v1"); a.e(f"v_lshl_add_u32 v{CO+2}, v{CO}, 6, v{CO+2}")
    a.e(f"v_mov_b32 v{CO+1}, 0x7f000000")
    a.e(f"v_cmp_gt_u32 vcc, 7, v{CO}"); a.e(f"v_cndmask_b32 v{CO+2}, v{CO+1}, v{CO+2}, vcc")
    a.srd(20, 4, 16 * N * 4, off=CSP3)
    a.e(f"s_mul_i32 s36, s28, {N*4}"); a.e("s_lshl1_add_u32 s35, s29, s35"); a.e(f"s_mul_i32 s35, s35, {7*64}"); a.e("s_add_u32 s35, s35, s36")
    a.e("s_waitcnt lgkmcnt(0)")
    for i in range(14): a.e(f"v_mfma_f32_16x16x32_bf16 {vr(CACC,4)}, {vr(CFR+4*i,4)}, {vr(CSEL+4*(i//2),4)}, {vr(CACC,4) if i else 0}")
    a.e(f"buffer_store_dwordx4 {vr(CACC,4)}, v{CO+2}, s[20:23], s35 offen {SC}")
    a.e(f"{X}:")
def cs_flag(a, d):
    a.e(f"s_and_b32 s{d}, s30, 1"); a.e(f"s_lshl_b32 s{d}, s{d}, 13"); a.e("s_lshl_b32 s53, s29, 7"); a.e(f"s_add_u32 s{d}, s{d}, s53"); a.e(f"s_add_u32 s{d}, s{d}, {F_CS}")
def cs_signal(a):
    X = a.lab("cs")
    a.e("s_cmp_lg_u32 s60, 0"); a.e(f"s_cbranch_scc1 {X}")
    cs_flag(a, 36)
    publish(a, None, 14, off=36, wait=None)
    a.e(f"{X}:")

def wr_addr(a, ad, t):
    a.e(f"v_lshrrev_b32 v{t}, 2, v1"); a.e(f"v_lshlrev_b32 v{ad}, 7, v{t}"); a.e(f"v_bfe_u32 v{t}, v{t}, 1, 2")
    a.e("s_and_b32 s35, s30, 2"); a.e(f"v_and_b32 v{t+1}, 1, v1"); a.e(f"v_or_b32 v{t+1}, s35, v{t+1}"); a.e(f"v_xor_b32 v{t}, v{t}, v{t+1}")
    a.e(f"v_lshl_add_u32 v{ad}, v{t}, 5, v{ad}"); a.e(f"v_and_b32 v{t}, 2, v1"); a.e(f"v_lshl_add_u32 v{ad}, v{t}, 2, v{ad}")
    a.e("s_and_b32 s35, s30, 1"); a.e("s_lshl_b32 s35, s35, 4")
    a.e(f"v_add_u32 v{ad}, s35, v{ad}"); a.e(f"v_add_u32 v{ad+1}, {64*KB}, v{ad}"); a.e(f"v_add_u32 v{ad+2}, {128*KB}, v{ad}")
    assert WST == 3 * 8192
def wreg(j, kk): return WR0 + 16 * (j & 7) + 8 * kk + 4 * (j >> 3)
def wr_read(a, ad, js, slots=None):
    for j, x in zip(js, slots or js):
        for kk in range(2):
            for h in range(2): a.e(f"ds_read_b64_tr_b16 {vr(wreg(j,kk)+2*h,2)}, v{ad+((x+3)>>3)} offset:{((x+3)&7)*8192 + (32*kk+16*h)*128}")

def front_b(a):
    pt, vd = 6, 8
    wr_addr(a, WAD, 10)
    a.e("s_and_b32 s36, s30, 3"); a.e("s_lshl_b32 s36, s36, 14"); a.e("s_lshl_b32 s48, s29, 7"); a.e("s_add_u32 s48, s48, s36")
    a.e("s_cmp_lg_u32 s30, 5"); a.e("s_cbranch_scc1 FB_np"); a.e(f"s_waitcnt vmcnt({16 - NRAW})")
    a.e("s_lshl_b32 s42, s2, 14"); a.e(f"s_add_u32 s42, s42, {PRB}")
    for i in range(2):
        a.e("s_memtime s[34:35]"); a.e("s_waitcnt lgkmcnt(0)")
        a.e(f"s_load_dword s32, s[4:5], s42 offset:{i * 8192} glc"); a.e("s_waitcnt lgkmcnt(0)")
        a.e("s_memtime s[40:41]"); a.e("s_waitcnt lgkmcnt(0)")
        a.e(f"s_sub_u32 s{46+i}, s40, s34")
    a.e("s_cmp_lt_u32 s47, s46"); a.e("s_cselect_b32 s45, 1, 0")
    a.e("s_lshr_b32 s46, s28, 2"); a.e("s_xor_b32 s45, s45, s46"); a.e("s_lshr_b32 s46, s2, 7"); a.e("s_xor_b32 s45, s45, s46"); a.e("s_and_b32 s45, s45, 1"); a.e("s_lshl_b32 s45, s45, 1")
    a.e("FB_np:")
    group_off(a, 37, 28); a.e("s_andn2_b32 s37, s37, 0x2000"); a.e("s_lshl_b32 s43, s29, 7"); a.e("s_add_u32 s37, s37, s43"); a.e(f"s_add_u32 s37, s37, {oSM}")
    a.e(f"s_add_u32 s43, s43, {F_CS}"); a.e(f"v_mov_b32 v{RYF}, s52")
    a.e(f"v_and_b32 v{RYF+1}, 1, v1"); a.e(f"v_lshlrev_b32 v{RYF+1}, 13, v{RYF+1}"); a.e(f"v_bfe_u32 v{RYF+2}, v1, 1, 1"); a.e(f"v_lshl_add_u32 v{RYF+1}, v{RYF+2}, 26, v{RYF+1}")
    a.e(f"v_lshrrev_b32 v{RYF+2}, 2, v1"); a.e(f"v_lshl_add_u32 v{RYF+1}, v{RYF+2}, 11, v{RYF+1}")
    a.e("s_waitcnt vmcnt(0) lgkmcnt(0)")
    a.e("s_barrier")
    wr_read(a, WAD, range(NRAW, 16))
    a.e("s_waitcnt lgkmcnt(0)")
    a.e("s_barrier")
    mstamp(a)
    a.e("s_cmp_lg_u32 s30, 5"); a.e("s_cbranch_scc1 FB_na")
    front_arrive(a)
    a.e("FB_na:")
    if env('WT', 6) == 6:
        for k in range(2): a.e(f"buffer_load_dwordx4 {vr(12,4)}, v2, s[80:83], s50 offen"); a.e("s_sub_u32 s50, s50, 4096")
    load_q(a)
    a.e(f"s_setprio {env('FPRIO', 0)}")
    def raw(srd, reg, js):
        for j in js:
            a.e(f"s_add_u32 s36, s48, {j << 17}")
            a.e(f"buffer_load_dwordx4 {vr(reg(j,0),4)}, v{WVB[1]}, s[{srd}:{srd+3}], s36 offen"); a.e("s_add_u32 s36, s36, 65536")
            a.e(f"buffer_load_dwordx4 {vr(reg(j,1),4)}, v{WVB[1]}, s[{srd}:{srd+3}], s36 offen")
    NW2 = env("NW2", 2)
    a.e("s_cmp_lg_u32 s30, 4"); a.e("s_cbranch_scc1 FB_ni")
    a.e("s_mov_b64 exec, 0xfff"); a.e(f"buffer_store_dword v{RYF}, v{RYF+1}, s[56:59], s37 offen {SC}")
    a.e("s_cmp_lg_u32 s28, 0"); a.e("s_cbranch_scc1 FB_n2")
    a.e("s_mov_b64 exec, 3"); a.e(f"buffer_store_dword v{RYF}, v{RYF+1}, s[56:59], s43 offen {SC}")
    a.e("FB_n2:"); a.e("s_mov_b64 exec, -1")
    a.e("FB_ni:")
    raw(88, wreg, range(NW2))
    w1_dma(a, W1A[:5])
    a.e(f"s_waitcnt vmcnt({10 + 2 * NW2})"); lds_inc(a, LW + 8, pt)
    raw(80, w1raw, W1A[5:])
    a.e("s_xor_b32 s48, s48, 128")
    FE = env("FE", 3)
    raw(88, wreg, range(NW2, NRAW - FE))
    a.e("s_and_b32 s42, s30, 3"); a.e("s_lshl_b32 s42, s42, 13"); a.e(f"s_add_u32 s42, s42, {F_FRONT}")
    a.e(f"v_lshlrev_b32 v{vd}, 7, v1")
    a.e(f"buffer_load_dword v{vd+2}, v{vd}, s[56:59], s42 offen {SC}")
    raw(88, wreg, range(NRAW - FE, NRAW))
    a.e("s_setprio 0")
    mstamp(a)
    pt = vd + 2
    a.e("s_mov_b32 s53, 0"); a.e(f"s_waitcnt vmcnt({2 * FE})")
    a.e("R_fp:")
    a.e(f"v_and_b32 v{pt+1}, 0xffffffc1, v{pt}"); a.e(f"v_cmp_eq_u32 vcc, s52, v{pt+1}")
    a.e("s_cmp_eq_u64 vcc, exec"); a.e("s_cbranch_scc1 R_fq")
    a.e(f"s_sleep {FSLEEP}")
    a.e(f"buffer_load_dword v{pt}, v{vd}, s[56:59], s42 offen {SC}"); a.e("s_waitcnt vmcnt(0)")
    a.e("s_add_u32 s53, s53, 1"); a.e("s_cmp_lt_u32 s53, s61"); a.e("s_cbranch_scc1 R_fp")
    a.e("s_mov_b32 s61, 0")
    a.e("R_fq:")
    a.e("s_getreg_b32 s53, hwreg(HW_REG_XCC_ID, 0, 4)"); a.e(f"v_bfe_u32 v{pt+1}, v{pt}, 2, 4"); a.e(f"v_cmp_ne_u32 s[34:35], s53, v{pt+1}")
    a.e(f"v_and_b32 v{pt+1}, 2, v{pt}"); a.e(f"v_cmp_ne_u32 vcc, 0, v{pt+1}"); a.e("s_bcnt1_i32_b64 s36, vcc")
    a.e("s_or_b32 s34, s34, s35"); a.e("s_bitcmp1_b32 s34, s2"); a.e("s_cselect_b32 s34, 0x10000, 0"); a.e("s_add_u32 s36, s36, s34"); a.e(f"v_mov_b32 v{pt}, s36"); a.e(f"v_mov_b32 v{pt+1}, {LW+28}")
    a.e("s_mov_b64 exec, 1"); a.e(f"ds_add_u32 v{pt+1}, v{pt}"); a.e("s_mov_b64 exec, -1")
def w1_dma(a, js, setup=True):
    if setup:
        a.e("s_and_b32 s49, s30, 3"); a.e("s_lshl_b32 s36, s49, 14"); a.e("s_lshl_b32 s48, s29, 7"); a.e("s_add_u32 s48, s48, s36"); a.e("s_lshl_b32 s49, s49, 10")
        a.e("s_xor_b32 s48, s48, 128")
    for j in js:
        a.e(f"s_add_u32 s36, s48, {j << 17}")
        for kk in range(2):
            a.e(f"s_add_u32 m0, s49, {WST + j * 8192 + 4096 * kk}")
            a.e(f"buffer_load_dwordx4 v{WVB[1]}, s[80:83], s36 offen lds")
            if kk == 0: a.e("s_add_u32 s36, s36, 65536")
def w1raw(j, kk):
    return (28, 36, 52, 60, RXB)[W1A[5:].index(j)] + 4 * kk
def w_dump(a, reg, t, js, slots=None):
    a.e("s_and_b32 s36, s30, 3"); a.e("s_lshl_b32 s36, s36, 10"); a.e(f"v_add_u32 v{t}, s36, v2"); a.e(f"v_add_u32 v{t+1}, {64*KB}, v{t}")
    if max(slots or js) > 12: a.e(f"v_add_u32 v{t+2}, {128*KB}, v{t}")
    for j, x in zip(js, slots or js):
        for kk in range(2): a.e(f"ds_write_b128 v{t+((x+3)>>3)}, {vr(reg(j,kk),4)} offset:{((x+3)&7)*8192 + 4096*kk}")

CV = {}
def conv_setup(a):
    v = VA(RXB); lane = 1
    t = v(); t2 = v(); t3 = v(); uo = v(); aa = v(); ba = v(); J = v(); G = v(); fl = v(); ta = v(); dop = v(4, 4); ya = v(4, 1)
    assert v.hi <= RB1
    CV.update(ta=ta, ya=ya, uo=uo, aa=aa, ba=ba, J=J, G=G, fl=fl, dop=dop, t=t)
    a.e("s_lshl_b32 s36, s38, 14"); a.e(f"s_add_u32 s36, s36, {UT}")
    a.e("s_add_u32 s20, s4, s36"); a.e("s_addc_u32 s21, s5, 0"); a.e("s_mov_b32 s22, 16384"); a.e("s_mov_b32 s23, 0x20000")
    a.e("s_lshl_b32 s36, s30, 6"); a.e(f"v_lshrrev_b32 v{t}, 2, v{lane}"); a.e(f"v_and_b32 v{uo}, 48, v2"); a.e(f"v_lshl_add_u32 v{uo}, v{t}, 8, v{uo}"); a.e(f"v_add_u32 v{uo}, s36, v{uo}")
    a.e("s_lshr_b32 s36, s39, 1"); a.e("s_lshl_b32 s36, s36, 2"); a.e("s_load_dword s41, s[76:77], s36")
    a.e(f"v_and_b32 v{J}, 15, v{lane}"); a.e(f"v_lshrrev_b32 v{G}, 4, v{lane}")
    a.e(f"v_and_b32 v{t}, 3, v{J}"); a.e(f"v_mul_u32_u24 v{aa}, {HSTR}, v{t}")
    a.e(f"v_lshl_add_u32 v{aa}, v{G}, 4, v{aa}"); a.e(f"v_lshrrev_b32 v{t}, 2, v{J}"); a.e(f"v_lshl_add_u32 v{aa}, v{t}, 3, v{aa}")
    a.e(f"v_add_u32 v{aa}, s40, v{aa}")
    a.e(f"v_sub_u32 v{t}, 15, v{J}"); a.e(f"v_lshlrev_b32 v{ba}, 5, v{t}"); a.e(f"v_add_u32 v{ba}, s40, v{ba}")
    a.e(f"v_lshl_add_u32 v{ba}, v{G}, 4, v{ba}")
    a.e("s_lshr_b32 s36, s38, 2"); a.e("s_lshl_b32 s36, s36, 12"); a.e(f"s_add_u32 s36, s36, {F_KVT}")
    a.e(f"v_lshlrev_b32 v{fl}, 7, v{lane}"); a.e(f"v_add_u32 v{fl}, s36, v{fl}")
def conv_setup2(a):
    t, J, G, ta, ya = [CV[k] for k in "t J G ta ya".split()]; lane = 1
    a.e(f"s_mul_i32 s36, s30, {CHB+64}")
    a.e(f"v_lshrrev_b32 v{t}, 1, v{J}"); a.e(f"v_mul_u32_u24 v{ya}, 72, v{t}"); a.e(f"v_and_b32 v{t}, 1, v{J}"); a.e(f"v_lshl_add_u32 v{ya}, v{t}, 4, v{ya}")
    a.e(f"v_lshl_add_u32 v{ya}, v{G}, 2, v{ya}"); a.e(f"v_add_u32 v{ya}, s36, v{ya}")
    for c_ in range(1, 4): a.e(f"v_add_u32 v{ya+c_}, {c_*16*72}, v{ya}")
    a.e(f"v_bfe_u32 v{t}, v{lane}, 2, 2"); a.e(f"v_mul_u32_u24 v{ta}, {CHB+64}, v{t}")
    a.e(f"v_mul_u32_u24 v{t}, 72, v{G}"); a.e(f"v_add_u32 v{ta}, v{ta}, v{t}")
    a.e(f"v_and_b32 v{t}, 3, v{lane}"); a.e(f"v_lshl_add_u32 v{ta}, v{t}, 3, v{ta}")
    a.e(f"s_mul_i32 s36, s30, {16*72}"); a.e(f"v_add_u32 v{ta}, s36, v{ta}")
def conv_diag(a):
    t, J, G, dop = CV["t"], CV["J"], CV["G"], CV["dop"]; t2, t3 = t + 1, t + 2
    a.e("s_bitcmp1_b32 s39, 0"); a.e("s_cselect_b32 s36, 0, 16"); a.e("s_lshl_b32 s41, s41, s36"); a.e("s_and_b32 s41, s41, 0xffff0000"); a.e("s_lshr_b32 s36, s41, 16")
    a.e(f"v_lshl_add_u32 v{t}, v{G}, 3, v{J}"); a.e(f"v_sub_u32 v{t}, 15, v{t}"); a.e(f"v_and_b32 v{t2}, 1, v{t}"); a.e(f"v_cmp_eq_u32 vcc, 1, v{t2}")
    a.e(f"v_mov_b32 v{t2}, s36"); a.e(f"v_mov_b32 v{t3}, s41"); a.e(f"v_cndmask_b32 v{t2}, v{t2}, v{t3}, vcc"); a.e(f"v_ashrrev_i32 v{t}, 1, v{t}")
    for i in range(4): a.e(f"v_cmp_eq_u32 vcc, {i}, v{t}"); a.e(f"v_cndmask_b32 v{dop+i}, 0, v{t2}, vcc")

def front_conv(a):
    v = VA(6, skip=True); lane = 1; l16 = 2
    t = v(); pt = v(4, 2)
    uo, aa, ba, J, G, fl, dop = [CV[k] for k in "uo aa ba J G fl dop".split()]
    ya, ta = CV["ya"], CV["ta"]
    acc = v(32, 4)
    fa = v(64, 4); fb = v(64, 4)
    def rdA(p, o):
        return [f"ds_read_b64 {vr(fa+32*p+4*s_+2*h,2)}, v{aa} offset:{64*(o+8*s_) + 32 + 8*h}" for s_ in range(8) for h in range(2)]
    def rdB(p, o):
        return [f"ds_read_b128 {vr(fb+32*p+4*k,4)}, v{ba} offset:{UOFF + 3584 - 512*k + 64*o}" for k in range(8)]
    a.e("s_lshl_b32 s44, s30, 12"); a.e("s_mov_b32 s45, 0x07060302")
    a.e("s_cmp_lg_u32 s30, 0"); a.e("s_cbranch_scc1 CV_w")
    poll_core(a, pt, fl, 0xffffffff, nap=env("NAPK", 5))
    a.e("CV_w:")
    a.e(f"s_add_u32 m0, s40, {UOFF}"); a.e("s_mov_b32 s36, 0")
    a.e("s_waitcnt vmcnt(0)"); a.e("s_barrier")
    mstamp(a)
    for it in range(4):
        a.e(f"buffer_load_dwordx4 v{uo}, s[20:23], s36 offen offset:{1024*it} {SC} lds")
        if it < 3: a.e("s_add_u32 s36, s36, 3072")
    a.e("s_barrier")
    load_q(a)
    for x in rdA(0, 0): a.e(x)
    a.e("s_waitcnt vmcnt(4)")
    mstamp(a)
    for x in rdB(0, 0): a.e(x)
    a.e("s_waitcnt lgkmcnt(0)")
    for c_ in range(8): a.e(f"v_mfma_f32_16x16x32_bf16 {vr(acc+4*c_,4)}, {vr(dop,4)}, {vr(fb+4*c_,4)}, 0")
    def step(p, nxt, tail):
        a.e("s_waitcnt lgkmcnt(0)")
        for i, (c_, s_) in enumerate([(c_, s_) for s_ in range(8) for c_ in range(s_, 8)]):
            a.e(f"v_mfma_f32_16x16x32_bf16 {vr(acc+4*c_,4)}, {vr(fa+32*p+4*s_,4)}, {vr(fb+32*p+4*(c_-s_),4)}, {vr(acc+4*c_,4)}")
            if nxt: a.e(nxt.pop(0))
            elif tail: a.e(tail.pop(0))
        assert not nxt and not tail
    NU = env("NU", 3)
    adv = [f"v_add_u32 v{aa}, 128, v{aa}", f"v_add_u32 v{ba}, 128, v{ba}", "s_add_u32 s43, s43, 1"]
    a.e("s_mov_b32 s43, 0")
    if NU:
        if env("FASTM", 0): a.e(f"s_bitcmp1_b32 {env('FASTM', 0)}, s33"); a.e("s_cbranch_scc1 CV_l")
        a.e("CV_r:")
        for p in range(2):
            rd_ = rdB(1 - p, p + 1) + rdA(1 - p, p + 1); HP = env("HP", 14)
            step(p, rd_[:HP], [])
            for x in rd_[HP:]: a.e(x)
        for x in adv + [f"s_cmp_lt_u32 s43, {NU}"]: a.e(x)
        a.e("s_cbranch_scc1 CV_r")
    if NU < 4:
        a.e("CV_l:")
        step(0, rdB(1, 1) + rdA(1, 1), [])
        step(1, rdB(0, 2) + rdA(0, 2), adv + ["s_cmp_lt_u32 s43, 4"])
        a.e("s_cbranch_scc1 CV_l")
    mstamp(a)
    a.e("s_bitcmp1_b32 s30, 0"); a.e("s_waitcnt lgkmcnt(0)"); a.e("s_cbranch_scc1 CV_o")
    for odd in range(2):
        for c_ in range(8):
            A = acc + 4 * c_
            for e in range(2):
                if odd: a.e(f"v_cvt_pk_bf16_f32 v{A+e}, v{A+e}, v{A+2+e}")
                else: a.e(f"v_perm_b32 v{A+e}, v{A+2+e}, v{A+e}, s45")
            for e in range(0 if odd else 2): a.e(f"v_or_b32 v{A+e}, 0x10001, v{A+e}")
            a.e(f"ds_write2_b32 v{ya+c_//2}, v{A}, v{A+1} offset0:{144*(c_&1)} offset1:{144*(c_&1)+8}")
        if not odd: a.e("s_branch CV_e"); a.e("CV_o:")
    a.e("CV_e:")
    lbar(a, 2, pt)
    for i in range(8): a.e(f"ds_read_b64_tr_b16 {vr(fa+2*i,2)}, v{ta} offset:{288*(i//2) + 32*(i&1)}")
    for i in range(4):
        a.e(f"s_waitcnt lgkmcnt({6-2*i})")
        a.e(f"buffer_store_dwordx4 {vr(fa+4*i,4)}, v{l16}, s[20:23], s44 offen offset:{1024*i} {SC}")
    assert v.hi <= 250

def r_addr(a):
    t, t2, I, fo, ro, yo, xo = RT, RT + 1, RI, RFO, RRO, RYO, RXO
    a.e(f"v_and_b32 v{I}, 7, v0")
    a.e(f"v_lshrrev_b32 v{t}, 6, v0"); a.e(f"v_lshlrev_b32 v{t}, 4, v{t}"); a.e(f"v_bfe_u32 v{t2}, v0, 3, 3"); a.e(f"v_add_u32 v{t}, v{t}, v{t2}")
    a.e("s_lshr_b32 s78, s67, 1"); a.e("s_lshl_b32 s78, s78, 16"); a.e("s_and_b32 s79, s67, 1"); a.e("s_lshl_b32 s79, s79, 7"); a.e("s_add_u32 s78, s78, s79")
    a.e("s_lshr_b32 s79, s30, 1"); a.e("s_lshl_b32 s79, s79, 13"); a.e("s_add_u32 s78, s78, s79")
    a.e(f"v_lshlrev_b32 v{fo}, 8, v{t}"); a.e(f"v_lshl_add_u32 v{fo}, v{I}, 4, v{fo}"); a.e(f"v_add_u32 v{fo}, s78, v{fo}")
    a.e("s_lshl_b32 s78, s28, 7"); a.e("s_lshl_b32 s79, s67, 3"); a.e("s_add_u32 s78, s78, s79")
    a.e(f"v_add_u32 v{yo}, s78, v{I}"); a.e(f"v_lshlrev_b32 v{ro}, 11, v{yo}")
    rowaddr(a, xo, yo, t2); a.e(f"v_lshl_add_u32 v{xo}, v{t}, 4, v{xo}")
    a.e(f"v_lshrrev_b32 v{t2}, 2, v{t}"); a.e(f"v_lshlrev_b32 v{t2}, 3, v{t2}"); a.e(f"v_and_b32 v{t}, 3, v{t}"); a.e(f"v_add_u32 v{t}, v{t}, v{t2}")
    a.e(f"v_lshl_add_u32 v{ro}, v{t}, 3, v{ro}")
    a.e(f"v_lshlrev_b32 v{yo}, 3, v{yo}"); a.e(f"v_lshl_add_u32 v{yo}, v{t}, 14, v{yo}")
def y_loads(): return [f"s_mov_b32 s78, {(16*j + 4*hh)*16384}\nbuffer_load_dwordx2 {vr(RYY+4*j+2*hh,2)}, v{RYO}, s[80:83], s78 offen {SC}" for j in range(2) for hh in range(2)]
def load_y(a):
    a.srd(80, 4, 4 * MB, off=Y)
    for x in y_loads(): a.e(x)
def r_pre(a):
    r_addr(a)
    load_y(a)

def w3_setup(a):
    w_srd(a, 3, 8)
    a.e("s_add_u32 s89, s29, 1"); a.e("s_and_b32 s89, s89, 15"); a.e("s_cmp_lg_u32 s28, s29"); a.e("s_cselect_b32 s89, s28, s89")
    a.e("s_and_b32 s90, s30, 3"); a.e("s_mul_i32 s36, s29, 448")
    for d, r in ((88, 29), (89, 89)): a.e(f"s_lshl2_add_u32 s{d}, s{r}, s90"); a.e(f"s_mul_i32 s{d}, s{d}, {16*7168}"); a.e(f"s_add_u32 s{d}, s{d}, s36")
    a.e("s_mul_i32 s90, s90, 7168")
def w3_piece(T, k, i0, i1):
    for i in range(i0, i1):
        T.e(f"s_add_u32 m0, s90, {CFG[3]['WB'] + k*CFG[3]['STB'] + 1024*i}"); T.vm(f"buffer_load_dwordx4 v{WVB[3]+i}, s[8:11], s{88+k} offen lds", "w")
def r_stage(a, pre=False):
    v = VA(6)
    t = v(); t2 = v(); I = RI; fo = RFO; pt = v(4, 2)
    xa = RXA; xb = RXB; yy = RYY; yf = RYF; x = v(16, 2); w = v(16, 2); tmp = v()
    S = v(2, 2); pp = v(2, 2); qq = v(2, 2); st = v(16, 4); mean = v(2, 2); rs = mean + 1; var = v(); sw = v(); sr = v(); wad = v(3, 2)
    assert v.hi <= RB0 and wad == WAD, v.hi
    def part(src, n, packed=False):
        if packed:
            a.e("s_mov_b32 s36, 0x3f803f80")
            for i in range(8):
                a.e(f"v_dot2_f32_bf16 v{pp+(i&1)}, v{src+i}, s36, {f'v{pp+(i&1)}' if i > 1 else 0}"); a.e(f"v_dot2_f32_bf16 v{qq+(i&1)}, v{src+i}, v{src+i}, {f'v{qq+(i&1)}' if i > 1 else 0}")
            a.e("s_nop 2")
        else:
            a.e(f"v_pk_add_f32 {vr(pp,2)}, {vr(src,2)}, {vr(src+2,2)}"); a.e(f"v_pk_mul_f32 {vr(qq,2)}, {vr(src,2)}, {vr(src,2)}")
        for i in range(1, 1 if packed else 8):
            if i > 1: a.e(f"v_pk_add_f32 {vr(pp,2)}, {vr(pp,2)}, {vr(src+2*i,2)}")
            a.e(f"v_pk_fma_f32 {vr(qq,2)}, {vr(src+2*i,2)}, {vr(src+2*i,2)}, {vr(qq,2)}")
        a.e(f"v_add_f32 v{S}, v{pp}, v{pp+1}"); a.e(f"v_add_f32 v{S+1}, v{qq}, v{qq+1}")
        for k in range(2): a.e(f"v_add_f32_dpp v{S+k}, v{S+k}, v{S+k} row_ror:8 row_mask:0xf bank_mask:0xf")
        for op in ("v_permlane16_swap_b32", "v_permlane32_swap_b32"):
            for k in range(2): a.e(f"v_mov_b32 v{pp+k}, v{S+k}")
            for k in range(2): a.e(f"{op} v{S+k}, v{pp+k}")
            a.e(f"v_pk_add_f32 {vr(S,2)}, {vr(S,2)}, {vr(pp,2)}")
        a.e(f"ds_write_b64 v{sw}, {vr(S,2)} offset:{n*1536}")
    def comb(n):
        for k in range(4): a.e(f"ds_read_b128 {vr(st+4*k,4)}, v{sr} offset:{n*1536+16*k}")
        a.e("s_waitcnt lgkmcnt(0)")
        for k in range(4): a.e(f"v_pk_add_f32 {vr(st+4*k,2)}, {vr(st+4*k,2)}, {vr(st+4*k+2,2)}")
        a.e(f"v_pk_add_f32 {vr(st,2)}, {vr(st,2)}, {vr(st+4,2)}"); a.e(f"v_pk_add_f32 {vr(st+8,2)}, {vr(st+8,2)}, {vr(st+12,2)}")
        a.e(f"v_pk_add_f32 {vr(st,2)}, {vr(st,2)}, {vr(st+8,2)}")
        a.e(f"v_mul_f32 v{mean}, {f32(1/1024)}, v{st}"); a.e(f"v_mul_f32 v{var}, {f32(1/1024)}, v{st+1}")
        a.e(f"v_fma_f32 v{var}, -v{mean}, v{mean}, v{var}"); a.e(f"v_max_f32 v{var}, 0, v{var}")
    def norm():
        if env("RSQ", 1): a.e(f"v_add_f32 v{var}, {f32(1e-5)}, v{var}"); a.e(f"v_rsq_f32 v{rs}, v{var}")
        else: ln_finish(a, mean, var, rs)
        a.e(f"v_mul_f32 v{mean}, -v{mean}, v{rs}")
        for i in range(8): a.e(f"v_pk_fma_f32 {vr(w+2*i,2)}, {vr(x+2*i,2)}, {vr(mean,2)}, {vr(mean,2)} op_sel:[0,1,0] op_sel_hi:[1,1,0]")
    a.e(f"v_and_b32 v{I}, 7, v0"); a.e(f"v_lshlrev_b32 v{sr}, 6, v{I}"); a.e(f"v_add_u32 v{sr}, {AUX+2048}, v{sr}")
    a.e(f"s_lshl_b32 s35, s30, 3"); a.e(f"v_add_u32 v{sw}, s35, v{sr}")
    if pre:
        for i in range(8): unpack(a, x + 2 * i, x + 2 * i + 1, xa + i)
        part(x, 0)
        return
    wr_addr(a, wad, t)
    a.e(f"s_cmp_eq_u32 s60, 0"); a.e(f"s_cbranch_scc1 R_l0")
    lsrd(a, 12, oX1P, XSZ, prev=True); x3_srd(a, 20)
    data_wait(a, [f"buffer_load_dwordx4 {vr(xa+4*j,4)}, v{fo}, s[12:15], 0 offen offset:{2048*j} {SC}" for j in range(2)], list(range(xa, xa + 8)), t,
              lambda: (a.e("s_waitcnt vmcnt(2)"), [unpack(a, yf + 2 * i, yf + 2 * i + 1, yy + i) for i in range(8)]), nap=env("NAP4", 2))
    mstamp(a)
    if env("DOT", 1): part(xa, 0, True)
    for i in range(8): unpack(a, x + 2 * i, x + 2 * i + 1, xa + i)
    if not env("DOT", 1): part(x, 0)
    a.e("s_waitcnt lgkmcnt(0)"); a.e("s_barrier")
    comb(0)
    norm()
    a.e("s_branch R_s2")
    a.e("R_l0:")
    def shadow():
        a.e("s_cmp_lt_u32 s30, 4"); a.e("s_cbranch_scc1 R_f2")
        w_dump(a, w1raw, pt, W1A[5:])
        a.e("R_f2:")
        a.e(f"v_mov_b32 v{t}, {LW+28}"); a.e(f"ds_read_b32 v{t2}, v{t}")
        comb(0)
        norm()
        a.e(f"v_readfirstlane_b32 s94, v{t2}")
        a.e("s_lshr_b32 s98, s94, 16"); a.e("s_and_b32 s94, s94, 0xffff")
        if STAMP: a.e("s_mov_b32 s95, s94")
        a.e(f"s_cmp_gt_u32 s94, {NVOTE // 2}"); a.e("s_cselect_b32 s94, 1, 0")
        group_off(a, 55, 28)
        a.e("s_add_u32 s62, s4, s55"); a.e("s_addc_u32 s63, s5, 0")
        a.e("s_sub_u32 s36, s28, 1"); a.e("s_max_i32 s36, s36, 0"); group_off(a, 92, 36); a.e("s_sub_u32 s92, s92, s55")
        a.e("s_add_u32 s36, s28, 1"); a.e("s_min_u32 s36, s36, 15"); group_off(a, 93, 36); a.e("s_sub_u32 s93, s93, s55")
        a.e(f"s_add_u32 s55, s55, {oSM}")
        x3_srd(a, 20)
    shadow()
    def w2d():
        a.e("s_cmp_lt_u32 s30, 4"); a.e("s_cbranch_scc1 R_f3")
        a.e("s_waitcnt vmcnt(4)")
        w_dump(a, wreg, pt, range(NRAW), W2S)
        a.e("R_f3:")
    a.srd(80, 4, 4 * MB, off=Y)
    mstamp(a)
    data_wait(a, y_loads(), list(range(yy, yy + 8)), t, w2d, nap=env("NAPY", 4))
    mstamp(a)
    for i in range(8): unpack(a, yf + 2 * i, yf + 2 * i + 1, yy + i)
    a.e("R_s2:")
    for i in range(8):
        a.e(f"v_pk_fma_f32 {vr(x+2*i,2)}, {vr(w+2*i,2)}, {vr(yf+2*i,2)}, {vr(x+2*i,2)}")
        if i % 4 == 3:
            for k in range(i - 3, i + 1): a.e(f"v_cvt_pk_bf16_f32 v{xa+k}, v{x+2*k}, v{x+2*k+1}")
            a.e(f"buffer_store_dwordx4 {vr(xa+i-3,4)}, v{RXO}, s[20:23], 0 offen offset:{128*(i//4)} {SC}")
    part(x, 1)
    a.e("s_waitcnt lgkmcnt(0)"); a.e("s_barrier")
    a.e("s_cmp_ge_u32 s30, 4"); a.e("s_cbranch_scc1 LOADERS")
    a.e("s_cmp_lg_u32 s30, 3"); a.e("s_cbranch_scc1 R_nl")
    comb(1)
    outv = w; m4 = w + 4; v4_ = w + 5
    a.e(f"v_mov_b32 v{m4}, v{mean}"); a.e(f"v_mov_b32 v{v4_}, v{var}")
    ln_finish(a, mean, var, rs)
    a.e(f"v_sub_f32 v{m4}, v{m4}, v{mean}"); a.e(f"v_mul_f32 v{m4}, v{m4}, v{rs}")
    a.e(f"v_mul_f32 v{v4_}, v{v4_}, v{rs}"); a.e(f"v_mul_f32 v{v4_}, v{v4_}, v{rs}")
    ln_finish(a, m4, v4_, None)
    a.e(f"v_cvt_pk_bf16_f32 v{outv}, v{mean}, v{var}"); a.e(f"v_cvt_pk_bf16_f32 v{outv+2}, v{m4}, v{v4_}")
    a.e(f"v_mov_b32 v{outv+1}, s52"); a.e(f"v_mov_b32 v{outv+3}, s52")
    lns_srd(a, 24)
    a.e("s_lshl_b32 s36, s28, 4"); a.e("s_add_u32 s36, s36, s67"); a.e("s_lshl_b32 s36, s36, 7")
    a.e("s_mov_b64 exec, 0xff")
    a.e(f"buffer_store_dwordx4 {vr(outv,4)}, v2, s[24:27], s36 offen {SC}")
    a.e("s_mov_b64 exec, -1")
    a.e("R_nl:")
    a.e(f"v_mov_b32 v{t}, 1"); a.e(f"v_mov_b32 v{t2}, 0")
    a.e("s_cmp_eq_u32 s30, 3"); a.e("s_waitcnt vmcnt(1)"); a.e("s_cbranch_scc1 R_n2")
    a.e("s_waitcnt vmcnt(0)")
    a.e("R_n2:")
    a.e("s_barrier")
    a.e("s_cmp_lg_u32 s30, 0"); a.e("s_cbranch_scc1 R_n3")
    a.e("s_mov_b64 exec, 1"); a.e(f"buffer_atomic_add v{t}, v{t2}, s[56:59], s55 offen {SC}"); a.e("s_mov_b64 exec, -1")
    a.e("R_n3:")
    wr_read(a, wad, W1A)
def rot_init(a, which):
    a.e("s_mov_b32 s44, s29" if which == 3 else "s_mov_b32 s44, 0")
def stage3(b, d):
    b.e("s_cmp_eq_u32 s44, s47"); b.e(f"s_cselect_b32 s{d}, s46, s44")
def stage3_init(a):
    a.e("s_add_u32 s46, s29, 1"); a.e("s_and_b32 s46, s46, 15"); a.e("s_cmp_eq_u32 s28, s29"); a.e("s_cselect_b32 s47, s46, s28")
def rot_next(a, which):
    a.e("s_add_u32 s44, s44, 1")
    if which != 4: a.e("s_and_b32 s44, s44, 15")
def kb4(a, d, lw):
    a.e("s_lshl_b32 s45, s44, 1"); a.e(f"s_add_u32 s45, s45, {lw}"); a.e("s_sub_u32 s45, s45, 32")
    a.e("s_mul_i32 s46, s45, 86"); a.e("s_lshr_b32 s46, s46, 8")
    a.e("s_mul_i32 s47, s46, 3"); a.e("s_sub_u32 s47, s45, s47"); a.e("s_lshl_b32 s47, s47, 2"); a.e("s_lshr_b32 s47, 0x362, s47"); a.e("s_and_b32 s47, s47, 7")
    a.e("s_cmp_ge_u32 s44, 10"); a.e("s_cselect_b32 s45, 9, 2"); a.e("s_cselect_b32 s51, 1, 0"); a.e("s_sub_u32 s45, s44, s45")
    a.e("s_cmp_lt_u32 s44, 3"); a.e("s_cselect_b32 s45, 0, s45"); a.e("s_cselect_b32 s51, s44, s51")
    a.e(f"s_lshl2_add_u32 s51, {lw}, s51")
    a.e("s_cmp_lt_u32 s44, 17"); a.e("s_cselect_b32 s47, s51, s47"); a.e("s_cselect_b32 s46, s45, s46")
    a.e("s_add_u32 s46, s46, s33"); a.e("s_and_b32 s46, s46, 7"); a.e("s_mul_i32 s46, s46, 7"); a.e(f"s_add_u32 s{d}, s46, s47")
assert all((q * 86) >> 8 == q // 3 for q in range(24))
MIDF = env("MIDF", 1)
def w_lanes(a, which, t, t2, t3=200):
    if 1 in which:
        R = WVB[1]
        a.e(f"v_lshrrev_b32 v{t}, 3, v1"); a.e(f"v_lshlrev_b32 v{R}, 11, v{t}")
        a.e(f"v_and_b32 v{t}, 6, v{t}"); a.e(f"v_and_b32 v{t2}, 7, v1"); a.e(f"v_xor_b32 v{t}, v{t}, v{t2}"); a.e(f"v_lshl_add_u32 v{R}, v{t}, 4, v{R}")
        return
    R = WVB[4]
    for p in range(2):
        a.e(f"v_lshrrev_b32 v{t}, 4, v1"); a.e(f"v_lshlrev_b32 v{R+p}, 11, v{t}")
        a.e(f"v_add_u32 v{t}, {4*p}, v{t}"); a.e(f"v_lshlrev_b32 v{t}, 1, v{t}"); a.e(f"v_and_b32 v{t2}, 15, v1"); a.e(f"v_xor_b32 v{t}, v{t}, v{t2}")
        a.e(f"v_lshl_add_u32 v{R+p}, v{t}, 4, v{R+p}")
    R = WVB[3]
    assert all((p * 2341) >> 16 == p // 28 for p in range(448))
    for ii in range(7):
        a.e(f"v_add_u32 v{t2}, {64*ii}, v1"); a.e(f"v_mul_u32_u24 v{t}, 2341, v{t2}"); a.e(f"v_lshrrev_b32 v{t}, 16, v{t}")
        a.e(f"v_mul_u32_u24 v{R+ii}, 28, v{t}"); a.e(f"v_sub_u32 v{t2}, v{t2}, v{R+ii}")
        a.e(f"v_mul_u32_u24 v{R+ii}, 7168, v{t}")
        a.e(f"v_lshrrev_b32 v{t}, 1, v{t}"); a.e(f"v_and_b32 v{t}, 2, v{t}")
        if MIDF:
            a.e(f"v_lshrrev_b32 v{t3}, 2, v{t2}"); a.e(f"v_cmp_eq_u32 vcc, 3, v{t3}"); a.e(f"v_cndmask_b32 v{t3}, 0, 1, vcc"); a.e(f"v_lshrrev_b32 v{t}, v{t3}, v{t}")
        a.e(f"v_xor_b32 v{t2}, v{t2}, v{t}")
        a.e(f"v_lshl_add_u32 v{R+ii}, v{t2}, 4, v{R+ii}")
def w_srd(a, which, d=12):
    c = CFG[which]
    a.e(f"s_mov_b64 s[{d}:{d+1}], s[{66+2*which}:{67+2*which}]")
    a.e(f"s_mov_b32 s{d+2}, {c['KBT'] * 32 * c['LDW']}"); a.e(f"s_mov_b32 s{d+3}, 0x20000")
def w_setup(a, which, pre=True):
    c = CFG[which]; STB = c["STB"]; BW = STB // 2
    w_srd(a, which)
    a.e("s_and_b32 s35, s30, 1")
    a.e(f"s_mul_i32 s38, s{29 if which != 4 else 33}, {c['RB']}")
    if which == 1: a.e("s_xor_b32 s38, s38, 128")
    if which != 4: a.e(f"s_mul_i32 s41, s35, {32*c['LDW']}"); a.e("s_add_u32 s38, s38, s41")
    if which == 4: a.e(f"s_mul_i32 s41, s31, {1792*c['LDW']}"); a.e("s_add_u32 s38, s38, s41")
    a.e(f"s_mul_i32 s41, s35, {BW}")
    if c["WB"]: a.e(f"s_add_u32 s41, s41, {c['WB']}")
    a.e("s_mov_b32 s42, 0"); rot_init(a, which)
    if not pre: return
    NP = c["NPRE"]
    a.e("s_mov_b32 s49, s44"); a.e(f"s_and_b32 s43, s28, {3 * env('WROT', 0)}"); a.e(f"s_mul_i32 s43, s43, {NP}"); a.e("s_lshr_b32 s43, s43, 2"); a.e("s_mov_b32 s50, 0")
    L = a.lab("wpre"); a.e(f"{L}:")
    a.e(f"s_mul_i32 s42, s43, {STB}"); a.e("s_add_u32 s44, s49, s43")
    w_issue(a, which, pace=PACES.get(which, PACE))
    a.e("s_add_u32 s43, s43, 1"); a.e(f"s_cmp_eq_u32 s43, {NP}"); a.e("s_cselect_b32 s43, 0, s43")
    a.e("s_add_u32 s50, s50, 1"); a.e(f"s_cmp_lt_u32 s50, {NP}"); a.e(f"s_cbranch_scc1 {L}")
    mstamp(a)
    a.e(f"s_mov_b32 s42, {(NP % c['NW']) * STB}"); a.e(f"s_add_u32 s44, s49, {NP}")
def w_parts(which):
    c = CFG[which]; STB = c["STB"]; n = STB // 2048; LDW = c["LDW"]; b = Rec()
    b.e("s_add_u32 s19, s41, s42")
    arm = ["s_mov_b32 m0, s19", "s_mov_b32 s39, s16"]
    if which == 4:
        b.e("s_and_b32 s40, s30, 1"); kb4(b, 16, "s40")
        b.e(f"s_mul_i32 s16, s16, {32*LDW}"); b.e("s_add_u32 s16, s16, s38")
    elif which == 3:
        stage3(b, 16); b.e(f"s_mul_i32 s16, s16, {64*LDW}"); b.e("s_add_u32 s16, s16, s38")
    else:
        b.e(f"s_mul_i32 s16, s44, {64*LDW}"); b.e("s_add_u32 s16, s16, s38")
    if which > 2:
        rot_next(b, which)
        b.e(f"s_add_u32 s42, s42, {STB}"); b.e(f"s_cmp_eq_u32 s42, {c['NW']*STB}"); b.e("s_cselect_b32 s42, 0, s42")
    fire = []
    for i in range(n):
        g = []
        if i:
            g.append("s_add_u32 m0, m0, 1024")
            if which in (1, 2): g.append(f"s_add_u32 s39, s39, {8*LDW}")
            elif which == 4: g.append(f"s_add_u32 s39, s39, {4*LDW}")
            elif i == 7: g.append(f"s_add_u32 s39, s39, {16*LDW}")
        vo = WVB[which] + (0 if which in (1, 2) else (i & 1) if which == 4 else i % 7)
        fire.append(g + [f"buffer_load_dwordx4 v{vo}, s[12:15], s39 offen {os.environ.get('WF', '').replace('_', ' ')} lds"])
    return b.l, arm, fire
def w_issue(a, which, pace=0):
    prep, arm, fire = w_parts(which)
    for x in prep + arm: a.e(x)
    for i, g in enumerate(fire):
        for x in g: a.e(x)
        if pace and (i % 4 == 3 or i == len(fire) - 1): a.e(f"s_waitcnt vmcnt({pace})")

def w_bases(a, which, dst, swn, ntl, t, t2):
    c = CFG[which]; RB = c["RB"]
    a.e(f"v_lshrrev_b32 v{t}, 2, v1")
    a.e(f"v_mul_u32_u24 v{dst}, {RB}, v{t}"); a.e(f"v_and_b32 v{t2}, 3, v1"); a.e(f"v_lshl_add_u32 v{dst}, v{t2}, 3, v{dst}")
    if c["WB"]: a.e(f"v_add_u32 v{dst}, {c['WB']}, v{dst}")
    if which == 3:
        a.e(f"v_mul_u32_u24 v{dst+2}, {RB}, v{t}"); a.e(f"v_and_b32 v{t2}, 2, v1"); a.e(f"v_lshl_add_u32 v{dst+2}, v{t2}, 2, v{dst+2}")
        a.e(f"v_bfe_u32 v{t}, v1, 4, 1"); a.e(f"v_and_b32 v{t2}, 1, v1")
        if MIDF:
            a.e(f"v_lshl_add_u32 v{dst+2}, v{t2}, 5, v{dst+2}"); a.e(f"v_xor_b32 v{t2}, s{swn}, v{t}"); a.e(f"v_lshl_add_u32 v{dst+2}, v{t2}, 4, v{dst+2}")
            a.e(f"v_add_u32 v{dst+2}, {c['WB'] + 192}, v{dst+2}")
        else:
            a.e(f"v_xor_b32 v{t2}, v{t2}, v{t}"); a.e(f"v_lshl_add_u32 v{dst+2}, v{t2}, 5, v{dst+2}")
            a.e(f"s_lshl_b32 s36, s{swn}, 4"); a.e(f"s_add_u32 s36, s36, {c['WB'] + 192}"); a.e(f"v_add_u32 v{dst+2}, s36, v{dst+2}")
        a.e(f"s_lshl_b32 s36, s{swn}, 8"); a.e(f"v_add_u32 v{dst}, s36, v{dst}"); a.e(f"v_lshlrev_b32 v{t}, 5, v{t}")
        a.e(f"v_sub_u32 v{dst+1}, v{dst}, v{t}"); a.e(f"v_add_u32 v{dst}, v{dst}, v{t}")
        return 3, lambda nt, kk, h: (nt & 1, (32 * kk + 16 * h) * RB + 32 * nt) if nt < 6 else (2, (32 * kk + 16 * h) * RB)
    if which == 4: a.e(f"v_and_b32 v{t}, 7, v{t}")
    else: a.e(f"v_bfe_u32 v{t}, v{t}, 1, 2")
    for nt in range(ntl - 1, -1, -1):
        a.e(f"s_mul_i32 s36, s{swn}, {ntl}"); a.e(f"s_add_u32 s36, s36, {nt}")
        a.e(f"v_xor_b32 v{t2}, s36, v{t}"); a.e(f"v_lshl_add_u32 v{dst+nt}, v{t2}, 5, v{dst}")
    return ntl, lambda nt, kk, h: (nt, (32 * kk + 16 * h) * RB)

def a_parts(which):
    c = CFG[which]; b = Rec()
    b.e("s_add_u32 s19, s41, s42")
    arm = ["s_mov_b32 m0, s19", "s_mov_b32 s39, s16"]; fire = []
    if which == 4:
        for lw in range(2):
            kb4(b, 16 + lw, lw); spread(b, 16 + lw, 16 + lw); b.e(f"s_add_u32 s{16+lw}, s{16+lw}, s38")
        arm.append("s_mov_b32 s40, s17")
        for i in range(4):
            for lw in range(2):
                fire.append((["s_add_u32 m0, m0, 1024"] if i or lw else []) + ([f"s_add_u32 s{39+lw}, s{39+lw}, {'s37' if i == 2 else c['KBT']*2048}"] if i else []) +
                            [f"buffer_load_dwordx4 v2, s[12:15], s{39+lw} offen {SC} lds"])
    else:
        stage3(b, 16); b.e("s_cmp_eq_u32 s44, s46"); b.e("s_cselect_b32 s16, s47, s16")
        b.e("s_lshr_b32 s45, s16, 2"); b.e("s_lshl_b32 s45, s45, 14"); b.e("s_and_b32 s16, s16, 3"); b.e("s_lshl_b32 s16, s16, 11")
        b.e("s_add_u32 s16, s16, s45"); b.e("s_add_u32 s16, s16, s38"); step = c['KBT'] * 2048
        for i in range(4):
            fire.append((["s_add_u32 m0, m0, 2048", f"s_add_u32 s39, s39, {step}"] if i else []) + [f"buffer_load_dwordx4 v2, s[12:15], s39 offen {SC} lds"])
            fire.append([f"buffer_load_dwordx4 v2, s[12:15], s39 offen offset:1024 {SC} lds"])
    rot_next(b, which)
    b.e(f"s_add_u32 s42, s42, 16384"); b.e(f"s_cmp_eq_u32 s42, {c['NA']*16384}"); b.e("s_cselect_b32 s42, 0, s42")
    return b.l, arm, fire
def a_issue(a, which):
    prep, arm, fire = a_parts(which)
    for x in prep + arm + sum(fire, []): a.e(x)
SUBS = {}
def call_issue(a, issue, which):
    nm = f"SUB_{issue.__name__}_{which}"; SUBS[nm] = (issue, which)
    a.e(f"s_call_b64 s[76:77], {nm}")
def emit_subs(a):
    for nm, (issue, which) in SUBS.items():
        a.e(f"{nm}:"); issue(a, which); a.e("s_setpc_b64 s[76:77]")
def ld_steps(a, which, N, per, issue, npre, rate=2, plan={}, lo=0, hi=None, last=None, hold=(), start=None, catch=()):
    NS = CFG[which]["NS"]
    prep, arm, fire = (w_parts if issue is w_issue else a_parts)(which); h = max(1, per * HSPLIT // 8)
    plan = {b: (x if isinstance(x, list) else [x]) for b, x in plan.items()}
    q = [s_ for s_ in range(npre) for _ in range(per)]
    def after(tag):
        if issue is w_issue and isinstance(tag, int) and tag < npre and (env('WROT', 0) or which == 3): tag = npre - 1
        return len(q) - 1 - max(i for i, x in enumerate(q) if x == tag)
    issued = npre; steps = []
    for b in range(NS):
        acts = plan.get(b, []); was = {}
        def do(pos):
            for n_, act in enumerate(acts):
                if act[0] != pos: continue
                if act[1] is not None: was[n_] = after(act[1])
                q.extend([act[4]] * act[3])
        do(True)
        k = 0
        if b > 0 and b not in hold: k = max(0, min(rate + (b in catch), min(NS, b - 1 + N) - issued))
        assert k or not any(x[0] == "mid" for x in acts)
        for j in range(k):
            q.extend([issued] * h)
            if j == 0: do("mid")
            q.extend([issued] * (per - h)); issued += 1
        do(False)
        w = after(b); assert w <= 63
        steps.append((k, w, b if acts else None, tuple(sorted(was.items())), issued < NS))
    def em(l):
        for x in l:
            a.e(x)
            if x == "s_barrier" and os.environ.get("JIT"): mstamp(a)
    F1, F2 = sum(fire[:h], []), sum(fire[h:], [])
    lprep = prep
    if len(prep) > 8:
        nm = f"PREP_{issue.__name__}_{which}"; SUBS[nm] = ((lambda a_, w_, l=prep: [a_.e(x) for x in l]), which)
        prep = [f"s_call_b64 s[76:77], {nm}"]
    if lo == 0 or start: em(prep + arm)
    i = lo; HI = NS if hi is None else hi
    while i < HI:
        j = i
        while j < HI and steps[j] == steps[i]: j += 1
        k, w, ab, was, more = steps[i]; n = j - i; was = dict(was)
        def run(pos):
            for n_, act in enumerate(plan.get(ab, [])):
                if act[0] != pos: continue
                if n_ in was: a.e(f"s_waitcnt vmcnt({was[n_]})")
                act[2]()
        tail = [f"s_waitcnt vmcnt({w})", "s_barrier"]
        if n > 2 and k == 1:
            em(F1); a.e("s_mov_b32 s43, 1"); L = a.lab("ld"); a.e(f"{L}:")
            em(lprep + F2 + arm + tail + F1)
            a.e("s_add_u32 s43, s43, 1"); a.e(f"s_cmp_lt_u32 s43, {n}"); a.e(f"s_cbranch_scc1 {L}")
            em(prep + F2 + arm + tail)
        else:
            for r in range(n):
                run(True)
                for jj in range(k):
                    nxt = more or jj < k - 1
                    em(F1)
                    if jj == 0: run("mid")
                    em((prep if nxt else []) + F2 + (arm if nxt else []))
                run(False)
                em(tail)
        i = j
    if hi is not None: return
    if last: last()
    if issue is a_issue and which == 3 and env("T4", 1):
        X = a.lab("tw4"); a.e("s_cmp_lg_u32 s60, 0"); a.e(f"s_cbranch_scc1 {X}"); touch(a, 4, 7 * MB, 90, env("T4A", 0)); a.e(f"{X}:")
    a.e("s_barrier")

SP0 = 22
W1T = env("W1T", {23: (3,), 24: (4, 5), 25: (6, 13), 26: (14, 0, 15), 27: (11, 12)})
W1T = {b: tuple(j for j in l if j not in MV) for b, l in W1T.items()}; W1T = {b: l for b, l in W1T.items() if l}
W1D = env("W1D", (15, 11, 12)); W1R = tuple(j for l in W1T.values() for j in l if j not in W1D); W1L = tuple(j for j in W1B if j not in W1R)
def w1raw2(j, kk):
    i = 2 * W1R.index(j) + kk
    return 12 + 4 * i if i < 16 else RXB + 4 * (i - 16)
def w1_tail_setup(a):
    w_srd(a, 1, 8)
    a.e("s_and_b32 s3, s30, 3"); a.e("s_lshl_b32 s36, s3, 14"); a.e("s_lshl_b32 s90, s29, 7"); a.e("s_add_u32 s90, s90, s36"); a.e("s_xor_b32 s90, s90, 128"); a.e("s_lshl_b32 s3, s3, 10")
def w1_piece(a, b):
    for j in W1T[b]:
        a.e(f"s_add_u32 s36, s90, {j << 17}")
        for kk in range(2):
            if j in W1R: a.e(f"buffer_load_dwordx4 {vr(w1raw2(j,kk),4)}, v{WVB[1]}, s[8:11], s36 offen")
            else: a.e(f"s_add_u32 m0, s3, {WST + j * 8192 + 4096 * kk}"); a.e(f"buffer_load_dwordx4 v{WVB[1]}, s[8:11], s36 offen lds")
            if kk == 0: a.e("s_add_u32 s36, s36, 65536")
def tail_steps(a, b0, q0, issue, need):
    q = [list(q0), list(q0)]
    def cnt(l, tag): return len(l) - 1 - max(i for i, x in enumerate(l) if x == tag) if tag in l else None
    for b in range(b0, 28):
        n = issue(b)
        for l in q: l += n
        if b in W1T:
            X = a.lab("tl"); Z = a.lab("tz")
            q[0] += ["w"] * (2 * len(W1T[b]))
            a.e("s_cmp_lg_u32 s60, 0"); a.e(f"s_cbranch_scc1 {X}")
            call_issue(a, w1_piece, b)
            if cnt(q[0], need(b)) is not None: a.e(f"s_waitcnt vmcnt({cnt(q[0], need(b))})"); a.e(f"s_branch {Z}")
            a.e(f"{X}:")
        if cnt(q[1], need(b)) is not None: a.e(f"s_waitcnt vmcnt({cnt(q[1], need(b))})")
        if b in W1T: a.e(f"{Z}:")
        for l in q:
            if need(b) in l: del l[:len(l) - cnt(l, need(b))]
        a.e("s_barrier")
        if os.environ.get("JIT"): mstamp(a)
    g4_end(a)
def g4_end(a):
    a.e("s_cmp_eq_u32 s60, 1"); a.e("s_cbranch_scc1 K_fin")
    a.e("s_branch Y_END")
def y_end(a):
    a.e("Y_END:")
    if 28 in W1T: w1_piece(a, 28)
    r_pre(a)
    o = [j for l in W1T.values() for j in l]
    a.e(f"s_waitcnt vmcnt({4 + 2 * (len(o) - 1 - o.index(W1R[-1]))})")
    a.e("s_barrier")
    w_dump(a, w1raw2, 8, W1R); a.e("s_waitcnt lgkmcnt(0)")
def a_loader(a, which):
    c = CFG[which]
    a.e("s_and_b32 s35, s30, 1")
    lsrd(a, 12, c["A"], XSZ if which != 4 else H2SZ)
    a.e(f"s_mul_i32 s38, s35, {4*c['KBT']*2048}")
    if which == 4:
        a.e(f"s_mul_i32 s36, s31, {7*16384 + 2*c['KBT']*2048}"); a.e("s_add_u32 s38, s38, s36")
        a.e(f"s_mul_i32 s37, s31, {4*c['KBT']*2048}"); a.e(f"s_sub_u32 s37, {c['KBT']*2048}, s37")
    a.e("s_lshl_b32 s41, s35, 13"); a.e("s_mov_b32 s42, 0"); rot_init(a, which)
    assert c["NA"] == 3
    if which == 4:
        flag_in(a, 34, ST_G3B); flag_in(a, 35, ST_G3)
        P4 = env("P4", 2)
        a.e(f"s_sub_u32 s48, s34, {(ST_G3B - ST_G3A) * 128}")
        plan = {**({1: [(True, None, lambda: flag_try(a, 32, 48), 0, None), (False, None, lambda: (flag_check(a, 32, 48, 8), mstamp(a)), 0, None)]} if P4 == 1 else
                   {1: (True, None, lambda: flag_try(a, 32, 48), 0, None), 2: (True, None, lambda: (flag_check(a, 32, 48, 8), mstamp(a)), 0, None)} if P4 == 2 else {}),
                7: ("mid", None, lambda: flag_try(a, 32, 34), 0, None), 8: ("mid", None, lambda: flag_check(a, 32, 34, 8), 0, None),
                14: ("mid", None, lambda: flag_try(a, 32, 35), 0, None), 15: ("mid", None, lambda: flag_check(a, 32, 35, 8), 0, None)}
        a.e("s_mov_b32 s44, 3")
        def offs():
            for i in range(12):
                q = 2 * SP0 + i - 32
                a.e(f"s_add_u32 s36, s33, {q // 3}"); a.e("s_and_b32 s36, s36, 7"); a.e("s_mul_i32 s36, s36, 7"); a.e(f"s_add_u32 s36, s36, {(2, 6, 3)[q % 3]}"); spread(a, 78 + i, 36)
        offs(); w1_tail_setup(a)
        ld_steps(a, which, 3, 8, a_issue, 3, plan=plan, hi=SP0 - 1)
        TS = c['KBT'] * 2048
        a.e(f"s_add_u32 s39, s38, s37"); a.e(f"s_add_u32 s39, s39, {TS}")
        def issue(b):
            t = b + 1 - SP0
            if t > 5: return []
            if t == 3: a.e("s_mov_b32 s39, s38")
            a.e(f"s_add_u32 m0, s41, {(b + 1) % 3 * 16384}")
            for j in range(2):
                for kk in range(2): a.e(f"s_add_u32 s{16+kk}, s39, s{78 + 4*(t%3) + 2*j + kk}")
                for i in range(2):
                    for kk in range(2):
                        if i: a.e(f"s_add_u32 s{16+kk}, s{16+kk}, {TS}")
                        a.e(f"buffer_load_dwordx4 v2, s[12:15], s{16+kk} offen {SC} lds")
                        if j + i + kk < 3: a.e("s_add_u32 m0, m0, 1024")
            return [b + 1] * 8
        return tail_steps(a, SP0 - 1, [SP0 - 1] * 8, issue, lambda b: b)
    mask = flag_addr(a, 9, ST_G2)
    def wait2(): g2_signal(a, 0); mstamp(a); poll_core(a, 8, 9, mask, cnt=16, nap=env("NAP2", 5)); mstamp(a)
    rot_next(a, 3); stage3_init(a); a.e("s_mov_b32 s42, 16384")
    plan = side_jobs(a)
    plan[1] = (True, None, wait2, 0, None)
    if env("T4A", 0):
        def early():
            X = a.lab("tw4"); a.e("s_cmp_lg_u32 s60, 0"); a.e(f"s_cbranch_scc1 {X}"); touch(a, 4, 7 * MB, 90, 0, env("T4A", 0)); a.e(f"{X}:")
        st_ = env("T4S", 15); o_ = plan.get(st_, []); plan[st_] = (o_ if isinstance(o_, list) else [o_]) + [(False, st_, early, 0, None)]
    ld_steps(a, which, 3, 8, a_issue, 1, plan=plan, lo=1, start=True)

def g2_signal(a, wait):
    publish(a, ST_G2, 14, wait=wait)
    G2S[0](); a.e("s_waitcnt lgkmcnt(0)")
G2S = []
def side_jobs(a):
    c = CFG[3]
    sv = 18; Q, tt, mean, rs, ad, fa, fr, co_, ct = 50, 51, 52, 53, 10, 11, 12, 13, 6
    cv = 54; N = 3584; HB = c["TN16"] * 32
    assert cv + 64 <= WVB[1]
    def cld(k0=0, k1=4):
        if k0 == 0:
            flag_check(a, 3, 40, 14)
            a.srd(24, 4, 16 * N * 4, off=CSP3)
            a.e("s_cmp_eq_u32 s60, 0"); a.e("s_cselect_b32 s26, s26, 0")
            a.e("s_and_b32 s36, s30, 1"); a.e(f"s_mul_i32 s36, s36, {HB}"); a.e(f"s_mul_i32 s37, s29, {2*HB}"); a.e("s_add_u32 s37, s36, s37")
            a.e(f"v_lshrrev_b32 v{co_}, 5, v1"); a.e(f"v_mul_u32_u24 v{co_}, {N*4}, v{co_}")
            a.e(f"v_and_b32 v{ct}, {16*31}, v2"); a.e(f"v_add_u32 v{co_}, v{co_}, v{ct}")
        for k in range(k0, k1):
            a.e(f"buffer_load_dwordx4 {vr(cv+4*k,4)}, v{co_}, s[24:27], s37 offen {SC}"); a.e(f"s_add_u32 s37, s37, {N*4*2}")
    def piece(lines, l0=False):
        def f():
            X = a.lab("pc")
            if l0: a.e("s_cmp_lg_u32 s60, 0"); a.e(f"s_cbranch_scc1 {X}")
            for x in lines: a.e(x)
            if l0: a.e(f"{X}:")
        return f
    def cadd(k0, k1): return [f"v_pk_add_f32 {vr(cv+2*h,2)}, {vr(cv+2*h,2)}, {vr(cv+4*k+2*h,2)}" for k in range(k0, k1) for h in range(2)]
    def sw(op): return [f"v_mov_b32 v{cv+4+e}, v{cv+e}" for e in range(4)] + [f"{op} v{cv+e}, v{cv+4+e}" for e in range(4)] + cadd(1, 2)
    cout = ["s_and_b32 s36, s30, 1", f"s_mul_i32 s36, s36, {HB}", f"s_add_u32 s36, s36, {CSO[3]}", f"v_add_u32 v{ct}, s36, v2",
            f"s_bfm_b64 exec, {HB//16}, 0", f"ds_write_b128 v{ct}, {vr(cv,4)}", "s_mov_b64 exec, -1", "s_waitcnt lgkmcnt(0)"]
    flag_in(a, 35, ST_G2S); cs_flag(a, 40)
    a.e(f"v_lshlrev_b32 v{ad}, 3, v1")
    lsrd(a, 20, oST2, 24576)
    a.e("s_and_b32 s34, s30, 1"); a.e("s_lshl_b32 s34, s34, 9")
    def sout():
        a.e(f"s_add_u32 s36, s34, {REC}"); a.e(f"v_add_u32 v{tt}, s36, v{ad}")
        for k in range(4): a.e(f"ds_read_b64 {vr(sv+2*k,2)}, v{tt} offset:{1024*k}")
        spread(a, 36, 29); a.e("s_add_u32 s36, s36, s34")
        a.e("s_waitcnt lgkmcnt(0)")
        for k in range(1, 4): a.e(f"v_pk_add_f32 {vr(sv,2)}, {vr(sv,2)}, {vr(sv+2*k,2)}")
        a.e(f"buffer_store_dwordx2 {vr(sv,2)}, v{ad}, s[20:23], s36 offen {SC}")
    def tries():
        flag_try(a, 32, 35); flag_try(a, 3, 40)
    def ld(k0):
        def f():
            if k0 == 0: flag_check(a, 32, 35, 14)
            a.e(f"s_add_u32 s36, s34, {k0*2048}")
            for k in range(k0, k0 + 8):
                if k % 8 == 4: a.e("s_add_u32 s36, s36, 4096")
                a.e(f"buffer_load_dwordx2 {vr(sv+2*k,2)}, v{ad}, s[20:23], s36 offen offset:{(k&3)*1024} {SC}")
        return f
    b = Rec()
    for st_ in (8, 4, 2, 1):
        for k in range(st_): b.e(f"v_pk_add_f32 {vr(sv+2*k,2)}, {vr(sv+2*k,2)}, {vr(sv+2*(k+st_),2)}")
    b.e(f"v_mul_f32 v{mean}, {f32(1/1024)}, v{sv}"); b.e(f"v_mul_f32 v{Q}, {f32(1/1024)}, v{sv+1}")
    b.e(f"v_fma_f32 v{Q}, -v{mean}, v{mean}, v{Q}"); b.e(f"v_max_f32 v{Q}, 0, v{Q}")
    ln_finish(b, mean, Q, rs)
    b.e(f"v_mov_b32 v{sv}, v{mean}"); b.e(f"v_mov_b32 v{sv+1}, v{Q}"); b.e(f"v_mul_f32 v{sv+2}, {f32(GC1)}, v{rs}"); b.e(f"v_mul_f32 v{rs}, v{rs}, v{rs}")
    b.e(f"v_mul_f32 v{rs}, {f32(0.044715)}, v{rs}"); b.e(f"v_mul_f32 v{sv+3}, v{rs}, v{sv+2}")
    b.e(f"s_lshl1_add_u32 s36, s34, {AUX+1024}"); b.e(f"v_add_u32 v{tt}, s36, v2")
    b.e(f"ds_write_b128 v{tt}, {vr(sv,4)}")
    def both(f, g):
        def h(): f(); g()
        return h
    return {2: (False, None, sout, 1, "s"),
            4: (False, "s", lambda: publish(a, ST_G2S, 14, wait=None), 1, "p"),
            8: (False, None, tries, 0, None),
            9: (False, None, ld(0), 8, "d"), 10: (False, None, ld(8), 8, "d"), 11: (False, None, lambda: cld(0, 8), 8, "c"),
            12: (False, "d", piece(b.l[:14]), 0, None), 13: (False, None, piece(b.l[14:28]), 0, None),
            14: (False, "c", both(piece(b.l[28:]), piece(cadd(1, 5), 1)), 0, None), 15: (False, None, both(piece(cadd(5, 8) + sw("v_permlane32_swap_b32") + cout, 1), piece(["s_waitcnt lgkmcnt(0)"])), 0, None)}

def w_loader(a, which):
    c = CFG[which]
    args = (a, which, c["NW"], c["STB"] // 2048, w_issue, c["NPRE"], c["WR"])
    if which == 3:
        w_setup(a, 3, pre=False); rot_next(a, 3); rot_next(a, 3); stage3_init(a); a.e(f"s_mov_b32 s42, {2*c['STB']}")
        ld_steps(*args, plan={1: [({"T": True, "M": "mid", "F": False}[env("PUBW", "T")], 1, lambda: g2_signal(a, None), 1, "p"), (False, None, lambda: cs_sum(a), 0, None)],
                                4: (False, 3, lambda: cs_signal(a), 0, None)}, lo=1, start=True)
        return
    assert c["NW"] == 6 and c["WB"] == WST + 3 * 8192
    w1_tail_setup(a)
    ld_steps(*args, hi=SP0, hold=env("HOLD", ()), catch=env("CATCH", ()))
    prep, arm, fire = w_parts(4)
    def issue(b):
        if b > SP0 + 1: return []
        for x in sum(fire, []) + (["s_call_b64 s[76:77], PREP_w_issue_4"] + arm if b == SP0 else []): a.e(x)
        return [b + 4] * 8
    tail_steps(a, SP0, [s_ for s_ in range(SP0, SP0 + 4) for _ in range(8)], issue, lambda b: min(27, 2 * b - SP0 + 1))
SLOTS = [120 * KB, 136 * KB, 16 * KB, 32 * KB, 104 * KB]; WINB = 104 * KB
W3P = env("W3P", {4: [(1, 0, 2)], 8: [(1, 2, 7), (0, 0, 1)], 12: [(0, 1, 7)]})
LAG = 2
DEP = env("DEP", 3); BURST0 = env("BURST0", 3)
SIG = env("SIG", [(8, 0), (12, 0), (15, 2)]); SIG3 = env("SIG3", 19)
TRY = env("TRY", [12, 16, 20, 24]); CHK = env("CHK", [13, 17, 21, 25])
OST = env("OST", 29); LPRIO = env("LPRIO", 1); RATE = env("RATE", 2); ISS = env("ISS", {})
def win_schedule():
    slot = {}; issue = {b: [] for b in ["F"] + list(range(32))}
    free = {x: -1 for x in SLOTS}
    nxt = 0
    for p in range(-1, 32):
        b = "F" if p < 0 else p
        while nxt < 32:
            if p < 0 and nxt >= BURST0: break
            if nxt >= 16 and p < CHK[(nxt - 16) // 4]: break
            if p in ISS:
                if len(issue[b]) >= ISS[p]: break
            elif p >= 0 and (nxt > p + DEP or len(issue[b]) >= RATE): break
            c_ = [x for x in SLOTS if free[x] <= p]
            if not c_: break
            x = min(c_, key=lambda x: free[x])
            slot[nxt] = x; issue[b].append(nxt); free[x] = nxt + 2
            assert nxt > p
            nxt += 1
    return slot, issue
WSLOT, WISSUE = win_schedule()
GSTW = os.environ.get("GST", "")

def win_compute(T, g, rd, acc, cinit, FR, pre, post, mid):
    s0 = 16 * (g - 1); steps = [(s, k) for s in range(s0, s0 + 17) for k in range(4)]; n = 64; nb = LAG + 1
    for i in range(n + LAG):
        s, k = steps[i]
        if k == 0 and s < 32:
            for f in pre.get(s, []): f()
            T.e("s_barrier")
            if GSTW == "w" or (GSTW == "y" and i == n) or os.environ.get("JIT"): mstamp(T.a, True)
            for f in post.get(s, []): f()
        for f in mid.get((s, k), []): f()
        r = [rd(FR + 16 * (i % nb) + 4 * q, s, k, q) for q in range(4)] if i < n else []
        j = i - LAG
        if j < 0:
            for x in r: T.ds(x, i)
            continue
        s, k = steps[j]; c = (s - s0) // 4; first = s % 4 == 0 and k == 0
        T.wl(j)
        for q in (0, 1, 3, 2):
            C = vr(acc(c) + 4 * (q & 1), 4)
            T.e(f"v_mfma_f32_16x16x32_bf16 {C}, {vr(WR0+8*(4*(s%4)+k)+4*(q>>1),4)}, {vr(FR+16*(j%nb)+4*q,4)}, {'0' if first and q < 2 and not cinit else C}")
            if r: T.ds(r.pop(0), i)
def add(d, k, f): d.setdefault(k, []).append(f)
def h_rot(a, d):
    a.e(f"s_and_b32 s{d}, s30, 3"); a.e(f"s_lshl_b32 s{d}, s{d}, 15")
    a.e("s_and_b32 s53, s30, 2"); a.e("s_lshl_b32 s53, s53, 11")
    a.e(f"s_and_b32 s{d+4}, s30, 1"); a.e(f"s_lshl_b32 s{d+4}, s{d+4}, 13"); a.e(f"s_add_u32 s{d+4}, s{d+4}, s53")
def h_arm(T, s, d):
    T.e(f"s_add_u32 m0, s{d+4}, {WSLOT[s]}"); T.e(f"s_add_u32 s49, s{d}, {(s-16)//4*131072 + (s&2)*8192 + (s&1)*4096}"); T.armed = s
def h_issue(T, s, d, srd):
    if getattr(T, "armed", None) != s: h_arm(T, s, d)
    for q in range(4): T.vm(f"buffer_load_dwordx4 v2, s[{srd}:{srd+3}], s49 offen offset:{1024*q} {SC} lds", s)
def h_flag(a, d):
    a.e(f"s_and_b32 s{d}, s30, 1"); a.e(f"s_lshl_b32 s{d}, s{d}, 8"); a.e(f"s_add_u32 s{d}, s{d}, s55"); a.e(f"s_add_u32 s{d+1}, s52, 16")
def h_try(a, c, d):
    for k in range(2): a.e(f"s_load_dword s{(32, 3)[k]}, s[4:5], s{d} offset:{FH + 512*c + 128*k} {os.environ.get('GLC', '')}")
def h_check(a, c, d, t):
    D = a.lab("hok")
    a.e("s_waitcnt lgkmcnt(0)"); a.e(f"s_cmp_eq_u32 s32, s{d+1}"); a.e(f"s_cselect_b32 s32, s3, 0"); a.e(f"s_cmp_eq_u32 s32, s{d+1}"); a.e(f"s_cbranch_scc1 {D}")
    if STAMP: a.e(f"s_add_u32 s95, s95, {1 << (8 + 4 * c)}")
    for _ in range(env("G2ND", 0)):
        for k in range(2): a.e(f"s_load_dword s{(32, 3)[k]}, s[4:5], s{d} offset:{FH + 512*c + 128*k} glc")
        a.e("s_waitcnt lgkmcnt(0)"); a.e(f"s_cmp_eq_u32 s32, s{d+1}"); a.e(f"s_cselect_b32 s32, s3, 0"); a.e(f"s_cmp_eq_u32 s32, s{d+1}"); a.e(f"s_cbranch_scc1 {D}")
    a.e(f"s_add_u32 s53, s{d}, {FH + 512*c}"); a.e(f"v_lshlrev_b32 v{t+1}, 7, v1"); a.e(f"v_add_u32 v{t+1}, s53, v{t+1}")
    poll_core(a, t, t + 1, 3, cnt=16, nap=env('HSLEEP', 8))
    a.e(f"{D}:")
def out_addr(a, so, J, G, t, flip=False):
    a.e(f"v_and_b32 v{t}, 1, v{G}"); a.e(f"v_lshlrev_b32 v{so}, 16, v{t}"); a.e(f"v_lshrrev_b32 v{t}, 1, v{G}"); a.e(f"v_lshl_add_u32 v{so}, v{t}, 8, v{so}")
    a.e(f"v_lshl_add_u32 v{so}, v{J}, 4, v{so}")
    a.e("s_bfe_u32 s36, s30, 0x10001"); a.e("s_lshl1_add_u32 s36, s29, s36")
    if flip: a.e("s_xor_b32 s36, s36, 2")
    spread(a, 39, 36)
    a.e("s_and_b32 s36, s30, 1"); a.e("s_lshl_b32 s36, s36, 9"); a.e("s_add_u32 s39, s39, s36")

def window_x(a, g3_setup):
    T = Track(a); v = VA(6)
    t = v(); t2 = v(); J = v(); G = v(); ra = v(8, 2); rc = v()
    acc0 = v(16, 4); FR = v(48, 4); cs = v(4, 4); rec = v(16, 4); tp = v(8, 4); lead = v(); one = v(); so = v()
    assert v.hi <= WR0
    a.e(f"v_and_b32 v{J}, 15, v1"); a.e(f"v_lshrrev_b32 v{G}, 4, v1")
    a.e(f"v_xor_b32 v{t}, v{G}, v{J}"); a.e(f"v_lshlrev_b32 v{t2}, 8, v{J}")
    for k in range(4):
        a.e(f"v_xor_b32 v{ra+k}, {4*k}, v{t}"); a.e(f"v_lshl_add_u32 v{ra+k}, v{ra+k}, 4, v{t2}"); a.e(f"v_add_u32 v{ra+4+k}, {WINB}, v{ra+k}")
    a.e(f"v_lshlrev_b32 v{rc}, 4, v{J}"); a.e(f"v_add_u32 v{rc}, {REC}, v{rc}")
    lsrd(a, 16, oH, XSZ); out_addr(a, so, J, G, t, True)
    h_rot(a, 8); h_flag(a, 20)
    a.e(f"v_mov_b32 v{lead}, 0x7f000000"); a.e(f"v_writelane_b32 v{lead}, 0, 0"); a.e(f"v_mov_b32 v{one}, 1")
    a.e("s_and_b32 s40, s30, 1"); a.e("s_lshl1_add_u32 s40, s31, s40"); a.e("s_lshl_b32 s40, s40, 7"); a.e("s_add_u32 s40, s40, s55")
    for i in range(4): a.e(f"v_mov_b32 v{rec+i}, 0x3f803f80")
    def csum(js):
        for j in js:
            for kk in range(2): a.e(f"v_mfma_f32_16x16x32_bf16 {vr(cs,4)}, {vr(wreg(j,kk),4)}, {vr(rec,4)}, {0 if (j, kk) == (W1A[0], 0) else vr(cs,4)}")
    a.e("s_waitcnt lgkmcnt(0)"); csum(W1A)
    poll(a, ST_R, tp, wave=0, nap=env("NAPR", 3))
    assert all(WSLOT[s_] + 16384 <= WST + j * 8192 or WSLOT[s_] >= WST + (j + 1) * 8192 for s_ in WISSUE["F"] for j in W1B)
    wr_read(a, WAD, W1B)
    a.e("s_waitcnt lgkmcnt(12)"); csum(W1B[:-3]); a.e("s_waitcnt lgkmcnt(0)"); csum(W1B[-3:])
    def rd(d, s, k, q):
        x = WSLOT[s]; hi = x >= WINB
        return f"ds_read_b128 {vr(d,4)}, v{ra+4*hi+k} offset:{x - WINB*hi + 4096*q}"
    acc = lambda c: acc0 + 8 * (c & 1)
    def recs(c):
        for mt in range(2):
            for p in range(2): T.ds(f"ds_read_b128 {vr(rec+8*mt+4*p,4)}, v{rc} offset:{512*c + 256*mt + 2048*p}", "r")
    def epi(c, cut=None):
        T.wl("r")
        X = acc(c); P = [(X + i, tp + i, i & 2, [vr(rec + 2 * (i & 4) + 2 * e, 2) for e in range(4)]) for i in range(0, 8, 2)]
        for x, u, i, R in P: T.e(f"v_pk_fma_f32 {vr(x,2)}, {R[0]}, {vr(cs+i,2)}, {vr(x,2)}")
        for x, u, i, R in P: T.e(f"v_pk_mul_f32 {vr(u,2)}, {vr(x,2)}, {vr(x,2)}")
        for x, u, i, R in P: T.e(f"v_pk_fma_f32 {vr(u,2)}, {vr(u,2)}, {R[2]}, {R[1]}")
        for x, u, i, R in P: T.e(f"v_pk_mul_f32 {vr(u,2)}, {vr(u,2)}, {vr(x,2)}")
        if cut: cut()
        for i in range(8): T.e(f"v_exp_f32 v{tp+i}, v{tp+i}")
        for x, u, i, R in P: T.e(f"v_pk_fma_f32 {vr(u,2)}, {vr(u,2)}, {R[3]}, {R[3]}")
        for i in range(8): T.e(f"v_rcp_f32 v{tp+i}, v{tp+i}")
        for x, u, i, R in P: T.e(f"v_pk_mul_f32 {vr(x,2)}, {vr(x,2)}, {vr(u,2)}")
        for i in range(4): T.e(f"v_add_u32 v{X+2*i}, 0x10000, v{X+2*i}")
        for i in range(4): T.e(f"v_and_b32 v{X+2*i}, 0xfffe0000, v{X+2*i}")
        for i in range(4): T.e(f"v_cvt_pk_bf16_f32 v{tp+i}, v{X+2*i}, v{X+2*i+1}")
        T.e(f"s_add_u32 s36, s39, {c*131072}")
        for e in range(2): T.e(f"v_permlane16_swap_b32 v{tp+e}, v{tp+2+e}")
        T.vm(f"buffer_store_dwordx4 {vr(tp,4)}, v{so}, s[16:19], s36 offen {SC}", f"h{c}")
    def signal(c):
        T.wv(f"h{c}"); T.vm(f"buffer_atomic_add v{one}, v{lead}, s[56:59], s40 offen offset:{FH + 512*c} {SC}")
    pre, post, mid = {}, {}, {}
    add(post, 0, lambda: mstamp(a))
    for c in range(4):
        add(post, 4 * c + 4, lambda c=c: recs(c))
        if c: add(mid, SIG[c - 1], lambda c=c: signal(c - 1))
        if c < 3: add(mid, (4 * c + 4, 3), lambda c=c: epi(c))
    def duties(b):
        if b == SIG3: signal(3)
        for c in range(4):
            if TRY[c] >= 16 and CHK[c] == b: h_check(a, c, 20, cs)
        for c in range(4):
            if TRY[c] == b: h_try(a, c, 20)
        for s in WISSUE[b]: h_issue(T, s, 8, 16)
        for c in range(4):
            if TRY[c] == b + 0.5 and b != 16: h_try(a, c, 20)
    def bar(b):
        if WISSUE[b]: h_arm(T, WISSUE[b][0], 8)
        T.wv(b); T.e("s_barrier")
        if GSTW in ("w", "y") or os.environ.get("JIT"): mstamp(a, True)
    win_compute(T, 1, rd, acc, False, FR, pre, post, mid)
    mstamp(a)
    T.e(f"s_setprio {LPRIO}")
    T.wl("r"); duties(16)
    b0 = 17
    if env("CUT", 0): epi(3, lambda: bar(17)); duties(17); b0 = 18
    else: epi(3, (lambda: h_try(a, 1, 20)) if TRY[1] == 16.5 else None)
    mstamp(a)
    assert SIG3 < 28 and max(CHK) < 28 and not any(WISSUE[b] for b in (29, 30, 31))
    for b in range(b0, 32):
        bar(b); duties(b)
        for x in g3_setup.get(b, []): T.e(x)
    T.e("s_setprio 0")

def window_y(a):
    T = Track(a); v = VA(6)
    t = v(); t2 = v(); J = v(); G = v(); va = v(); vb = v(); xo = v(); so = v(); rb = v(2, 2); ow = v(); xr = v()
    xn = v(32, 4); FR = v(48, 4); S = v(8, 2); tp = v(8, 2)
    assert v.hi <= WVB[1], v.hi
    lo = FR + 20; ln = FR; o = FR + 8
    NB = env("NB", 2); assert W1L == W1B
    w_srd(a, 1, 80)
    a.e("s_cmp_lg_u32 s60, 0"); a.e("s_cbranch_scc1 WY_1")
    wr_read(a, WAD, range(NRAW), W2S); a.e("s_branch WY_2")
    a.e("WY_1:")
    w1_dma(a, W1B[:NB])
    a.e("WY_2:")
    a.e(f"v_and_b32 v{J}, 15, v1"); a.e(f"v_lshrrev_b32 v{G}, 4, v1")
    a.e("s_and_b32 s34, s30, 1"); a.e("s_and_b32 s37, s30, 3")
    a.e("s_lshr_b32 s38, s29, 3"); a.e("s_add_u32 s38, s38, 1"); a.e("s_sub_u32 s39, 0, s38"); a.e("s_bitcmp1_b32 s29, 2"); a.e("s_cselect_b32 s38, s38, s39")
    a.e("s_lshl_b32 s35, s28, 7")
    a.e("s_cmp_lt_u32 s37, 2"); a.e("s_cselect_b32 s36, s38, 0"); a.e("s_add_u32 s36, s36, s35"); a.e("s_lshl_b32 s45, s34, 6"); a.e("s_add_u32 s36, s36, s45")
    a.e(f"v_add_u32 v{lo}, s36, v1"); a.e("s_movk_i32 s45, 2048"); a.e(f"v_cmp_gt_u32 s[46:47], s45, v{lo}"); a.e(f"v_lshlrev_b32 v{lo}, 4, v{lo}")
    lns_srd(a, 20)
    a.e("s_lshl_b32 s36, s37, 2"); a.e(f"v_add_u32 v{t}, s36, v{G}"); a.e(f"v_xor_b32 v{va}, v{t}, v{J}")
    a.e("s_add_u32 s36, s35, s38"); a.e("s_add_u32 s36, s36, 16"); a.e(f"v_add_u32 v{t}, s36, v{t}")
    rowaddr(a, vb, t, t2); a.e(f"v_lshl_add_u32 v{vb}, v{va}, 4, v{vb}"); a.e(f"v_subrev_u32 v{va}, 65536, v{vb}")
    a.e("s_lshl_b32 s44, s37, 10")
    x3_srd(a, 12)
    a.e("s_cmp_lg_u32 s60, 0"); a.e(f"s_waitcnt vmcnt({2 * NB})"); a.e("s_cbranch_scc1 WY_6")
    a.e("s_waitcnt vmcnt(0) lgkmcnt(0)"); a.e("s_barrier")
    w1_dma(a, W1B[:NB]); a.e("s_branch WY_7")
    a.e("WY_6:")
    a.e("s_barrier")
    a.e("WY_7:")
    w1_dma(a, W1B[NB:], False)
    mstamp(a)
    ldl = f"buffer_load_dwordx4 {vr(ln,4)}, v{lo}, s[20:23], 0 offen {SC}"
    a.e(f"v_lshrrev_b32 v{t}, 3, v1"); a.e(f"v_and_b32 v{xr}, 7, v1"); a.e(f"v_xor_b32 v{xr}, v{xr}, v{t}")
    a.e("s_lshl_b32 s36, s37, 3"); a.e("s_add_u32 s36, s36, s35"); a.e(f"v_add_u32 v{t}, s36, v{t}"); rowaddr(a, xo, t, t2)
    a.e("s_lshl_b32 s36, s29, 7"); a.e(f"v_lshl_add_u32 v{xo}, v{xr}, 4, v{xo}"); a.e(f"v_add_u32 v{xo}, s36, v{xo}")
    a.e(f"v_lshrrev_b32 v{t}, 1, v{G}"); a.e("s_lshl_b32 s36, s37, 1"); a.e(f"v_add_u32 v{t}, s36, v{t}"); a.e(f"v_and_b32 v{t2}, 7, v{J}"); a.e(f"v_xor_b32 v{t}, v{t}, v{t2}")
    a.e(f"v_lshlrev_b32 v{xr}, 7, v{J}"); a.e(f"v_lshl_add_u32 v{xr}, v{t}, 4, v{xr}"); a.e(f"v_and_b32 v{t}, 1, v{G}"); a.e(f"v_lshl_add_u32 v{xr}, v{t}, 3, v{xr}")
    out_addr(a, so, J, G, t)
    a.e(f"v_mov_b32 v{rb}, v2"); a.e(f"v_add_u32 v{rb+1}, {WINB}, v2")
    a.e(f"v_lshrrev_b32 v{t}, 5, v{so}"); a.e(f"v_and_b32 v{t}, 2048, v{t}"); a.e(f"v_and_b32 v{ow}, 511, v{so}"); a.e(f"v_add_u32 v{ow}, v{ow}, v{t}")
    a.e("s_lshl_b32 s36, s37, 9"); a.e(f"v_add_u32 v{ow}, s36, v{ow}")
    lsrd(a, 16, oH, XSZ); lsrd(a, 24, oX1P, XSZ)
    h_rot(a, 78); h_flag(a, 84); w3_setup(a)
    a0 = a; a = Rec(); a.lab = a0.lab
    L = a.lab("lns"); D = a.lab("lnk")
    a.e("s_mov_b32 s53, 0")
    a.e(f"{L}:")
    a.e(f"v_cmp_eq_u32 vcc, s52, v{ln+1}"); a.e(f"v_cmp_eq_u32 s[50:51], s52, v{ln+3}"); a.e("s_and_b64 vcc, vcc, s[50:51]"); a.e("s_orn2_b64 vcc, vcc, s[46:47]")
    a.e("s_cmp_eq_u64 vcc, -1"); a.e(f"s_cbranch_scc1 {D}")
    a.e(ldl); a.e("s_waitcnt vmcnt(0)")
    a.e("s_add_u32 s53, s53, 1"); a.e("s_cmp_lt_u32 s53, s61"); a.e(f"s_cbranch_scc1 {L}")
    a.e("s_mov_b32 s61, 0")
    a.e(f"{D}:")
    unpack(a, ln + 4, ln + 5, ln); unpack(a, ln + 6, ln + 7, ln + 2)
    for r in (ln + 5, ln + 7): a.e(f"v_cndmask_b32 v{r}, 1.0, v{r}, s[46:47]")
    a.e("s_lshl_b32 s36, s34, 10"); a.e(f"s_add_u32 s36, s36, {REC}"); a.e(f"v_add_u32 v{t}, s36, v2")
    X = a.lab("lnx"); D = a.lab("lnd")
    a.e("s_cmp_ge_u32 s37, 2"); a.e(f"s_cbranch_scc1 {X}")
    a.e(f"v_mul_f32 v{o+6}, v{ln+5}, v{ln+7}"); a.e(f"v_fma_f32 v{o}, -v{ln+6}, v{ln+5}, -v{ln+4}"); a.e(f"v_rcp_f32 v{t2}, v{o+6}")
    a.e(f"v_mov_b32 v{o+7}, v{o+6}"); a.e(f"v_mov_b32 v{o+1}, v{o}")
    a.e(f"v_mul_f32 v{o+2}, {f32(GC1)}, v{t2}"); a.e(f"v_mul_f32 v{t2}, v{t2}, v{t2}"); a.e(f"v_mov_b32 v{o+3}, v{o+2}")
    a.e(f"v_mul_f32 v{t2}, {f32(0.044715)}, v{t2}"); a.e(f"v_mul_f32 v{o+4}, v{t2}, v{o+2}"); a.e(f"v_mov_b32 v{o+5}, v{o+4}")
    for p in range(2): a.e(f"ds_write_b128 v{t}, {vr(o+4*p,4)} offset:{2048*p}")
    a.e(f"s_branch {D}")
    a.e(f"{X}:")
    a.e(f"v_rcp_f32 v{o}, v{ln+5}"); a.e(f"v_mul_f32 v{o+2}, -v{ln+4}, v{o}"); a.e(f"v_mov_b32 v{o+1}, v{o}"); a.e(f"v_mov_b32 v{o+3}, v{o+2}")
    a.e(f"ds_write_b128 v{t}, {vr(o,4)} offset:{LNSL-REC}")
    a.e(f"{D}:")
    a.e(f"v_lshlrev_b32 v{t2}, 4, v{J}"); a.e(f"v_add_u32 v{t2}, {LNSL}, v{t2}")
    lns = a.l; a = a0
    def issue(s):
        if s >= 16: return h_issue(T, s, 78, 16)
        c, i = s // 4, s % 4
        if getattr(T, "armed", None) != s: arm(s)
        for mt in range(2):
            for kh in range(2):
                if mt or kh: T.e(f"s_add_u32 m0, s44, {WSLOT[s] + kh*8192 + mt*4096 - kh*1024}")
                T.vm(f"buffer_load_dwordx4 v{(va, vb)[mt]}, s[12:15], s49 offen offset:{1024*kh} {SC} lds", s)
                for x in T.fill[:5]: T.e(x)
                T.fill = T.fill[5:]
        if s == 3: T.e(f"v_mov_b32 v{va}, v{vb}"); T.e(f"v_add_u32 v{vb}, 65536, v{vb}")
    def arm(s):
        if s >= 16: return h_arm(T, s, 78)
        T.e(f"s_add_u32 m0, s44, {WSLOT[s]}"); T.e(f"s_mov_b32 s49, {max(0, s//4*2-1)*65536 + 256*(s%4)}"); T.armed = s
    def resld():
        for c in range(4):
            T.e(f"s_add_u32 m0, s44, {4096*c}"); T.e(f"s_mov_b32 s36, {c*131072}")
            T.vm(f"buffer_load_dwordx4 v{xo}, s[12:15], s36 offen {SC} lds", "x")
    def res1(c):
        for mt in range(2):
            a.e(f"ds_read_b64 {vr(xn+8*c+4*mt+2,2)}, v{xr} offset:{4096*c + 2048*mt}"); a.e(f"ds_read_b128 {vr(o+4*mt,4)}, v{t2} offset:{512*c + 256*mt}")
    def res2(c):
        b = Rec(); b.e("s_waitcnt lgkmcnt(0)")
        for mt in range(2):
            X = xn + 8 * c + 4 * mt
            for e in range(2): unpack(b, X + 2 * e, X + 2 * e + 1, X + 2 + e)
            for e in range(2): b.e(f"v_pk_fma_f32 {vr(X+2*e,2)}, {vr(X+2*e,2)}, {vr(o+4*mt,2)}, {vr(o+4*mt+2,2)}")
        T.fill = b.l
    RESAT = env("RESAT", 4); RESUSE = env("RESUSE", 7); T.fill = []
    a.e("s_waitcnt vmcnt(0) lgkmcnt(0)")
    a.e(f"s_setprio {LPRIO}")
    mstamp(a)
    arm(0)
    a.e("s_barrier")
    mstamp(a)
    LAT = env("LAT", 9); LPOS = env("LPOS", 0)
    for s in WISSUE["F"][:LAT]:
        if s == LPOS: T.vm(ldl, "l")
        issue(s)
    def records():
        T.wv("l")
        for x in lns: a.e(x)
    if LAT < 9: records()
    for s in WISSUE["F"][LAT:]: issue(s)
    for b in range(16):
        if b == 4: a.e("s_waitcnt lgkmcnt(0)")
        if WISSUE[b]: arm(WISSUE[b][0])
        if b == RESUSE: T.wv("x")
        T.wv(b); T.e("s_barrier")
        if GSTW in ("w", "y") or os.environ.get("JIT"): mstamp(a, True)
        for c in range(4):
            if TRY[c] < 16 and CHK[c] == b: h_check(a, c, 84, tp)
            assert TRY[c] >= 16 or (CHK[c] < 16 and TRY[c] >= RESUSE + 5)
        if b == CHK[0]: mstamp(a)
        for c in range(4):
            if TRY[c] == b: h_try(a, c, 84)
        if 1 <= b - RESUSE < 5: res2(b - RESUSE - 1)
        for s in WISSUE[b]: issue(s)
        assert not T.fill
        if b == LAT - 9: records()
        if 0 <= b - RESUSE < 4: res1(b - RESUSE)
        if b == RESAT: resld()
        for x in W3P.get(b, []): w3_piece(T, *x)
    a.e("s_setprio 0")
    def rd(d, s, k, q):
        x = WSLOT[s]; hi = x >= WINB
        return f"ds_read_b128 {vr(d,4)}, v{rb+hi} offset:{x - WINB*hi + 4096*q + 1024*k}"
    acc = lambda c: xn + 8 * c
    def epi(c):
        X = acc(c)
        for i in range(4): T.e(f"v_add_u32 v{X+2*i}, 0x10000, v{X+2*i}")
        for i in range(4): T.e(f"v_and_b32 v{X+2*i}, 0xfffe0000, v{X+2*i}")
        for i in range(4): T.e(f"v_cvt_pk_bf16_f32 v{X+i}, v{X+2*i}, v{X+2*i+1}")
        T.e(f"s_add_u32 s36, s39, {c*131072}")
        for e in range(2): T.e(f"v_permlane16_swap_b32 v{X+e}, v{X+2+e}")
    def ost(c):
        T.e(f"s_add_u32 s36, s39, {c*131072}"); T.vm(f"buffer_store_dwordx4 {vr(acc(c),4)}, v{so}, s[24:27], s36 offen {SC}", "o")
    def own(c): T.ds(f"ds_write_b128 v{ow}, {vr(acc(c),4)} offset:{4096*c}", "ow")
    def stats(c):
        X = tp; pp, qq = acc(c) + 4, acc(c) + 6
        for i in range(4): unpack(T, X + 2 * i, X + 2 * i + 1, acc(c) + i)
        T.e(f"v_pk_add_f32 {vr(pp,2)}, {vr(X,2)}, {vr(X+2,2)}"); T.e(f"v_pk_mul_f32 {vr(qq,2)}, {vr(X,2)}, {vr(X,2)}")
        for i in range(1, 4):
            if i > 1: T.e(f"v_pk_add_f32 {vr(pp,2)}, {vr(pp,2)}, {vr(X+2*i,2)}")
            T.e(f"v_pk_fma_f32 {vr(qq,2)}, {vr(X+2*i,2)}, {vr(X+2*i,2)}, {vr(qq,2)}")
        T.e(f"v_add_f32 v{S+2*c}, v{pp}, v{pp+1}"); T.e(f"v_add_f32 v{S+2*c+1}, v{qq}, v{qq+1}")
    pre, post, mid = {}, {}, {}
    add(post, 16, lambda: mstamp(a))
    for s in range(16, 32): add(pre, s, lambda s=s: T.wv(s))
    SLATE = env("SLATE", 1)
    for c in range(3):
        add(mid, (20 + 4 * c, 3), lambda c=c: (epi(c), SLATE or stats(c)))
        add(mid, (OST, 1 + c), lambda c=c: ost(c))
    for k_, l_ in W3P.items():
        if isinstance(k_, tuple): add(mid, k_, lambda l_=l_: [w3_piece(T, *x) for x in l_])
    add(mid, (32, 0), lambda: [own(c) for c in range(3)])
    win_compute(T, 2, rd, acc, True, FR, pre, post, mid)
    mstamp(a)
    T.e(f"s_setprio {env('LPRIO3', 0)}")
    epi(3); ost(3); own(3); T.wl("ow"); T.wv("w")
    T.e("s_barrier")
    mstamp(a)
    def rest(a_, which):
        T.a = a_
        for c in range(0 if SLATE else 3, 4): stats(c)
        T.e("s_and_b32 s36, s30, 3"); T.e("s_lshl_b32 s36, s36, 10"); T.e(f"s_add_u32 s36, s36, {REC}"); T.e(f"v_lshlrev_b32 v{t}, 3, v1"); T.e(f"v_add_u32 v{t}, s36, v{t}")
        for k in range(2): T.e(f"v_permlane32_swap_b32 v{S+k}, v{S+2+k}"); T.e(f"v_permlane32_swap_b32 v{S+4+k}, v{S+6+k}")
        T.e(f"v_pk_add_f32 {vr(S,2)}, {vr(S,2)}, {vr(S+2,2)}"); T.e(f"v_pk_add_f32 {vr(S+4,2)}, {vr(S+4,2)}, {vr(S+6,2)}")
        for k in range(2): T.e(f"ds_write_b64 v{t}, {vr(S+4*k,2)} offset:{512*k}")
    assert xn >= 18 and t == 6
    G2S.append(lambda: call_issue(a, rest, 2))

C2R = 230; SO3 = 254; SEL = 224; RX = [180, 200, 208, 216]
def g_compute(a, which):
    c = CFG[which]
    WM, WN, MT, NT, KBT, NS, NA, NW, TN16, STB, WB = [c[k] for k in "WM WN MT NT KBT NS NA NW TN16 STB WB".split()]
    v = VA(6, skip=which == 4); nm = f"G{which}"
    lane = 1; l16 = 2
    t = v(); t2 = v(); pt = v(4, 2)
    NTILE = 29 if which != 4 else 33
    a0 = v(); w0 = v(4, 1); aa = v(); wa = v(4, 1); J = v(); G = v(); NF = MT + NT
    if which == 3: acc = v(MT * NT * 4, 4); fX = v(NF * 4, 4); fY = v(NF * 4, 4); tmp = 255
    else: fX = v(NF * 4, 4); xf = v(); acc = v(MT * NT * 4, 4); fY = v(NF * 4, 4)
    assert v.hi <= SEL
    def A_(mt, nt): return acc + 4 * (mt * NT + nt)
    one, lead, oa, xo, so = pt, pt + 1, pt + 2, 255, SO3
    def signal(stage, wait):
        a.e(f"s_waitcnt vmcnt({wait})"); a.e(f"buffer_atomic_add v{one}, v{lead}, s[56:59], s49 offen offset:{(stage - ST_G3A) * 128} {SC}")
    s = Rec()
    if which == 3:
        s.e("s_lshr_b32 s34, s30, 1"); s.e("s_and_b32 s35, s30, 1")
        s.e(f"v_and_b32 v{J}, 15, v{lane}"); s.e(f"v_lshrrev_b32 v{G}, 4, v{lane}")
        s.e(f"s_mul_i32 s37, s34, {MT}")
        s.e(f"s_mul_i32 s36, s34, {MT*2048}"); s.e(f"v_add_u32 v{a0}, s36, v{l16}")
    nwr, wpos = w_bases(s, which, w0, 35, NT, wa, wa + 1)
    s.e("s_mov_b32 s42, 0"); s.e("s_mov_b32 s43, 0"); s.e("s_mov_b32 s48, 0")
    s.e(f"v_mov_b32 v{aa}, v{a0}")
    for i in range(nwr): s.e(f"v_mov_b32 v{wa+i}, v{w0+i}")
    if which == 3:
        b = Rec()
        b.e(f"s_load_dwordx2 s[6:7], s[0:1], {D_OUT}")
        lsrd(b, 16, oH2, H2SZ)
        b.e(f"s_mul_i32 s39, s37, {224*1024}"); b.e("s_mul_i32 s40, s29, 7"); b.e("s_lshl2_add_u32 s41, s35, s40")
        for P in range(4):
            b.e(f"s_add_u32 s36, s{41 if P < 3 else 40}, {P}"); spread(b, 44 + P, 36); b.e(f"s_add_u32 s{44+P}, s{44+P}, s39")
        b.e("s_lshl_b32 s36, s35, 9"); b.e("s_add_u32 s47, s47, s36")
        b.e("s_lshl1_add_u32 s49, s31, s34"); flag_off(b, 49, ST_G3A, 49)
        x3_srd(b, 84); lsrd(b, 88, oX1P, XSZ); lsrd(b, 24, oH, XSZ)
        b.e("s_lshl1_add_u32 s39, s33, s35"); b.e("s_lshl_b32 s36, s39, 1"); spread(b, 40, 36); b.e("s_lshl1_add_u32 s38, s31, s37"); b.e("s_lshl_b32 s36, s38, 16")
        b.e("s_add_u32 s40, s40, s36"); b.e("s_add_u32 s12, s40, 65536"); b.e("s_xor_b32 s41, s40, 0x20000"); b.e("s_lshl3_add_u32 s38, s28, s38"); b.e("s_lshl_b32 s39, s39, 7")
        b.e("s_lshl_b32 s13, s38, 16"); b.e("s_add_u32 s13, s13, s39"); b.e("s_add_u32 s14, s13, 65536")
        b.e("s_lshl_b32 s38, s38, 15"); b.e("s_add_u32 s38, s38, s39"); b.e(f"s_add_u32 s39, s38, {16*2048}"); b.e("s_mov_b32 s15, 0xffff0000")
        b.e("s_waitcnt lgkmcnt(0)"); b.srd(20, 6, 4 * MB)
        d = Rec()
        d.e(f"v_lshrrev_b32 v{so}, 1, v{G}"); d.e(f"v_lshlrev_b32 v{so}, 8, v{so}"); d.e(f"v_lshl_add_u32 v{so}, v{J}, 4, v{so}")
        d.e(f"v_and_b32 v{t}, 1, v{G}"); d.e(f"v_lshl_add_u32 v{so}, v{t}, 3, v{so}")
        d.e(f"v_lshrrev_b32 v{t}, 2, v{J}"); d.e(f"v_cmp_eq_u32 vcc, v{t}, v{G}"); d.e(f"v_and_b32 v{t}, 1, v{J}"); d.e(f"v_lshlrev_b32 v{t}, 4, v{t}")
        d.e(f"v_mov_b32 v{SEL}, 0x3f80"); d.e(f"v_lshlrev_b32 v{t}, v{t}, v{SEL}"); d.e(f"v_cndmask_b32 v{t}, 0, v{t}, vcc")
        d.e(f"v_and_b32 v{SEL}, 2, v{J}"); d.e(f"v_cmp_eq_u32 vcc, 0, v{SEL}")
        for i in (0, 1, 4, 5): d.e(f"v_mov_b32 v{SEL+i}, 0")
        d.e(f"v_cndmask_b32 v{SEL+2}, 0, v{t}, vcc"); d.e(f"v_cndmask_b32 v{SEL+3}, v{t}, v{SEL}, vcc")
        rowaddr(d, xo, J, t); d.e(f"v_lshl_add_u32 v{xo}, v{G}, 4, v{xo}")
        d.e(f"v_mov_b32 v{one}, 1"); d.e(f"v_mov_b32 v{lead}, 0x7f000000"); d.e(f"v_writelane_b32 v{lead}, 0, 0")
        e_ = Rec()
        e_.e(f"v_and_b32 v{oa+1}, 1, v{G}"); e_.e(f"v_lshlrev_b32 v{oa}, 11, v{J}"); e_.e(f"v_lshl_add_u32 v{oa}, v{oa+1}, 5, v{oa}")
        e_.e(f"v_lshrrev_b32 v{oa+1}, 1, v{G}"); e_.e(f"v_lshl_add_u32 v{oa}, v{oa+1}, 4, v{oa}")
        e_.e(f"v_lshrrev_b32 v{oa+1}, 3, v{J}"); e_.e(f"v_mul_u32_u24 v{oa+1}, {8*2048 - 64}, v{oa+1}"); e_.e(f"v_sub_u32 v{oa}, v{oa}, v{oa+1}")
        e_.e(f"v_add_u32 v{oa+1}, {8*2048}, v{oa}")
        e_.e(f"s_mul_i32 s36, s35, {NT*64}"); e_.e(f"s_add_u32 s36, s36, {CSO[which]}"); e_.e(f"v_lshlrev_b32 v{t}, 4, v{G}"); e_.e(f"v_add_u32 v{t}, s36, v{t}")
        e_.e(f"s_lshl_b32 s36, s34, 10"); e_.e(f"s_add_u32 s36, s36, {AUX+1024}"); e_.e(f"v_lshlrev_b32 v{t2}, 4, v{J}"); e_.e(f"v_add_u32 v{t2}, s36, v{t2}")
        e_.e("s_lshl1_add_u32 s36, s37, s35"); e_.e("s_lshl2_add_u32 s36, s31, s36"); e_.e("s_lshl_b32 s36, s36, 10")
        e_.e(f"v_add_u32 v{J}, s36, v{l16}"); e_.e(f"v_xor_b32 v{G}, 4096, v{J}")
        window_x(a, {29: s.l}); idle = b.l + d.l + e_.l
    else:
        for x in s.l + [f"v_mov_b32 v{xf}, 0x10000"]: a.e(x)
    def reads(F, kk, sl=None):
        if sl is not None:
            return [f"ds_read_b128 {vr(F+4*mt,4)}, v{a0} offset:{sl*16384+mt*2048+kk*1024}" for mt in range(MT)] + \
                   [f"ds_read_b64_tr_b16 {vr(F+4*(MT+nt)+2*h,2)}, v{(w0, wa)[sl//2]+wpos(nt,kk,h)[0]} offset:{wpos(nt,kk,h)[1]+(sl&1)*STB}" for nt in range(NT) for h in range(2)]
        o = []
        for mt in range(MT): o.append(f"ds_read_b128 {vr(F+4*mt,4)}, v{aa} offset:{mt*2048+kk*1024}")
        for nt in range(NT):
            for h in range(2):
                r, imm = wpos(nt, kk, h)
                o.append(f"ds_read_b64_tr_b16 {vr(F+4*(MT+nt)+2*h,2)}, v{wa+r} offset:{imm}")
        return o
    def mix(rd, ex):
        rd = list(rd)
        if len(ex) > 4: return rd + list(ex)
        for i, x in enumerate(ex): rd.insert(min(len(rd), (i + 1) * len(rd) // (len(ex) + 1)), x)
        return rd
    def mfmas(F, rd, tail=(), zero=False):
        n = MT * NT; k = 0; tot = len(rd); span = env('SPAN', {3: 21, 4: 12})[which]; done = 0; tail = list(tail); per = -(-len(tail) // max(1, n - span))
        for nt, mt in [(nt, mt if nt % 2 == 0 else MT - 1 - mt) for nt in range(NT) for mt in range(MT)]:
            cc = acc + 4 * (mt * NT + nt)
            a.e(f"v_mfma_f32_16x16x32_bf16 {vr(cc,4)}, {vr(F+4*(MT+nt),4)}, {vr(F+4*mt,4)}, {0 if zero and (which == 3 or mt >= 2) else vr(cc,4)}")
            k += 1
            while rd and done < (tot * k + span - 1) // span: a.e(rd.pop(0)); done += 1
            if k >= span and k < n:
                for _ in range(min(per, len(tail))): a.e(tail.pop(0))
        assert not rd and not tail
    def stage(ex=(), ey=(), lim=NS-1, late=False, zero=False):
        if str(which) in os.environ.get("GST", "") or os.environ.get("JIT"): mstamp(a, True)
        a.e("s_waitcnt lgkmcnt(0)")
        book = ["s_add_u32 s42, s42, 16384", f"s_cmp_eq_u32 s42, {NA*16384}", "s_cselect_b32 s42, 0, s42",
                f"s_add_u32 s48, s48, {STB}", f"s_cmp_eq_u32 s48, {NW*STB}", "s_cselect_b32 s48, 0, s48", f"v_add_u32 v{aa}, s42, v{a0}"]
        book += [f"v_add_u32 v{wa+i}, s48, v{w0+i}" for i in range(nwr)]
        mfmas(fX, mix(reads(fY, 1), ex), book, zero)
        if late:
            a.e("s_waitcnt lgkmcnt(0)"); mfmas(fY, [], ["s_add_u32 s43, s43, 1"])
            for x in idle: a.e(x)
            a.e("s_barrier")
            for x in reads(fX, 0): a.e(x)
            return
        a.e("s_waitcnt lgkmcnt(0)"); a.e("s_barrier")
        mfmas(fY, mix(reads(fX, 0), ey), ["s_add_u32 s43, s43, 1", f"s_cmp_lt_u32 s43, {lim}"])
    def addp(k, R, zero=False):
        for e in range(2): a.e(f"v_mfma_f32_16x16x32_bf16 {vr(A_(k>>1, 2*(k&1)+e),4)}, {vr(SEL+2-2*e,4)}, {vr(R,4)}, {0 if zero else vr(A_(k>>1, 2*(k&1)+e),4)}")
    a.e("s_waitcnt lgkmcnt(0)"); a.e("s_barrier")
    mstamp(a)
    for x in reads(fX, 0): a.e(x)
    if which == 4:
        for h in range(2):
            for k in range(4): addp(k, RX[k] + 4 * h, h == 0)
    if which == 4:
        def st2(j): return [f"s_add_u32 s36, s46, {j*224*1024}\nbuffer_store_dwordx4 {vr(C2R+4*j,4)}, v{l16}, s[16:19], s36 offen {SC}",
                            f"s_add_u32 s36, s47, {j*224*1024}\nbuffer_store_dwordx2 {vr(C2R+16+2*j,2)}, v{SO3}, s[16:19], s36 offen {SC}"]
        ST0 = env("ST0", 0)
        if ST0 == 0: stage(st2(0), st2(1), zero=True); stage(st2(2), st2(3)); signal(ST_G3B, 8)
        if ST0 == 1: stage(st2(0) + st2(1), st2(2) + st2(3), zero=True); stage(); signal(ST_G3B, 8)
        if ST0 == 2:
            for j in range(4):
                for x in st2(j): a.e(x)
            stage(zero=True); stage(); signal(ST_G3B, 8)
        if ST0 == 3: stage(st2(0) + st2(1), st2(2) + st2(3), zero=True); stage()
        L0 = a.lab("mm"); a.e(f"{L0}:"); stage(lim=PUB2); a.e(f"s_cbranch_scc1 {L0}")
        signal(ST_G3, 0)
        if ST0 == 3: signal(ST_G3B, 1)
    else: stage(late=True, zero=True); mstamp(a)
    L = a.lab("mm")
    U3 = which == 3 and env("U3", 0)
    if U3:
        for i in range(nwr): a.e(f"v_add_u32 v{wa+i}, {2*STB}, v{w0+i}")
        a.e(f"{L}:")
        for sl in (1, 2, 0):
            if "3" in GSTW or os.environ.get("JIT"): mstamp(a, True)
            a.e("s_waitcnt lgkmcnt(0)")
            mfmas(fX, reads(fY, 1, sl), ["s_add_u32 s43, s43, 3", "s_cmp_eq_u32 s43, 16"] if sl == 0 else [])
            a.e("s_waitcnt lgkmcnt(0)"); a.e("s_barrier")
            if sl == 0: a.e("s_cbranch_scc1 G3_fin")
            mfmas(fY, reads(fX, 0, (sl + 1) % 3))
        a.e(f"s_branch {L}")
        a.e("G3_fin:")
    else:
        a.e(f"{L}:")
        stage(lim=NS - 1 if which == 3 else SP0 - 1)
        a.e(f"s_cbranch_scc1 {L}")
        a.e("s_waitcnt lgkmcnt(0)")
    if which == 4:
        def out(mt, so_, srd, fl=SC):
            if mt & 1: a.e(f"s_add_u32 s36, s{so_}, 65536")
            for p in range(2):
                B = A_(mt, 2 * p)
                for e in range(4): a.e(f"v_and_or_b32 v{B+2*e}, v{B+2*e}, s15, v{xf}")
                for e in range(4): a.e(f"v_cvt_pk_bf16_f32 v{B+e}, v{B+2*e}, v{B+2*e+1}")
                a.e(f"buffer_store_dwordx4 {vr(B,4)}, v{l16}, s[{srd}:{srd+3}], s{36 if mt & 1 else so_} offen offset:{p*1024} {fl}")
        FS = [[fX + 4 * i for i in range(8)] + [232 + 4 * i for i in range(4)], [fY + 4 * i for i in range(8)] + [RXA + 2 + 4 * i for i in range(4)]]
        def rds(n):
            t, j = n >> 1, n & 1; F = FS[j]; ws = (SP0 + 2 * (t % 3) + j) % 6; o = []
            for kk in range(2):
                for i in range(2): o.append(f"ds_read_b128 {vr(F[8+2*kk+i],4)}, v{a0} offset:{(SP0+t)%3*16384 + (2*j+i)*2048 + kk*1024}")
            for kk in range(2):
                for nt in range(4):
                    for h in range(2):
                        r, imm = wpos(nt, kk, h)
                        o.append(f"ds_read_b64_tr_b16 {vr(F[4*kk+nt]+2*h,2)}, v{(w0, wa)[ws//3]+r} offset:{imm + ws%3*16384}")
            return o
        def half(n, rd, hook=None):
            F = FS[n & 1]; m0_ = 2 if n < 6 else 0; rd = list(rd); tot = len(rd); done = 0
            for k, (kk, nt, i) in enumerate([(kk, nt, i ^ (nt & 1)) for kk in range(2) for nt in range(4) for i in range(2)]):
                if k == 8:
                    a.e(f"s_waitcnt lgkmcnt({done})")
                    if n == 11: a.e("s_barrier")
                a.e(f"v_mfma_f32_16x16x32_bf16 {vr(A_(m0_+i,nt),4)}, {vr(F[4*kk+nt],4)}, {vr(F[8+2*kk+i],4)}, {vr(A_(m0_+i,nt),4)}")
                while rd and done < (tot * (k + 1) + 15) // 16: a.e(rd.pop(0)); done += 1
                if hook and k == 3: hook()
        PX = A_(2, 0)
        pl = [f"buffer_load_dwordx4 {vr(PX+4*k,4)}, v{l16}, s[24:27], s{(40, 12)[k>>1]} offen offset:{(k&1)*1024} {SC}" for k in range(4)]
        mfmas(fX, reads(fY, 1), [f"v_add_u32 v{wa+i}, {3*16384}, v{w0+i}" for i in range(nwr)])
        a.e("s_waitcnt lgkmcnt(0)"); a.e("s_barrier")
        mfmas(fY, rds(0))
        PLN = env("PLN", 10)
        for n in range(12):
            a.e("s_waitcnt lgkmcnt(8)")
            if n & 1 and n < 11: a.e("s_barrier")
            if os.environ.get("JIT") or ("4" in GSTW and not n & 1): mstamp(a, True)
            half(n, rds(n + 1) if n < 11 else [], (lambda: (out(2, 41, 24), out(3, 41, 24))) if n == 6 else (lambda: [a.e(x) for x in pl]) if n == PLN else None)
        mstamp(a, "4" in GSTW)
        data_wait(a, pl, list(range(PX, PX + 16)), t, nap=env("NAPF", 1), first=False)
        mstamp(a)
        for k in range(4): addp(k, PX + 4 * k)
        a.e("s_cmp_eq_u32 s60, 1"); a.e("s_cbranch_scc1 G4_last")
        a.e("s_cmp_eq_u32 s98, 0"); a.e("s_cbranch_scc1 G4_near")
        out(0, 40, 88); out(1, 40, 88); a.e("s_branch G4_out")
        a.e("G4_near:")
        out(0, 40, 88, ""); out(1, 40, 88, "")
        a.e("G4_out:")
        r_pre(a)
        mstamp(a)
        a.e("s_branch NEXT")
        a.e("G4_last:")
        for k in range(4):
            B = A_(k >> 1, 2 * (k & 1))
            for e in range(4): a.e(f"v_cvt_pk_bf16_f32 v{B+e}, v{B+2*e}, v{B+2*e+1}")
            for e in range(2): a.e(f"v_permlane16_swap_b32 v{B+e}, v{B+2+e}")
            if k & 1:
                X, Y_, T = B - 8, B, B + 4
                for e in range(4): a.e(f"v_mov_b32 v{T+e}, v{X+e}")
                for e in range(4): a.e(f"v_mov_b32_dpp v{X+e}, v{Y_+e} row_ror:8 row_mask:0xf bank_mask:0xc")
                for e in range(4): a.e(f"v_mov_b32_dpp v{Y_+e}, v{T+e} row_ror:8 row_mask:0xf bank_mask:0x3")
                a.e(f"buffer_store_dwordx4 {vr(X,4)}, v{oa}, s[20:23], s{38+(k>>1)} offen {os.environ.get('OS', SC).replace('_', ' ')}")
                a.e(f"buffer_store_dwordx4 {vr(Y_,4)}, v{oa+1}, s[20:23], s{38+(k>>1)} offen {os.environ.get('OS', SC).replace('_', ' ')}")
        a.e("s_branch K_fin")
        return
    if not U3:
        mfmas(fX, reads(fY, 1))
        a.e("s_waitcnt lgkmcnt(0)")
        a.e("s_barrier")
    cs = fX; lns = fX + 4 * NT
    mfmas(fY, [f"ds_read_b128 {vr(cs+4*nt,4)}, v{t} offset:{nt*64}" for nt in range(NT)] + [f"ds_read_b128 {vr(lns+4*mt,4)}, v{t2} offset:{mt*256}" for mt in range(MT)])
    mstamp(a)
    if which == 3:
        tp = fY + 12
        def act(tiles):
            P_ = [(A_(mt, nt) + 2 * h, tp + 4 * i + 2 * h, vr(lns + 4 * mt, 2), vr(lns + 4 * mt + 2, 2), cs + 4 * nt + 2 * h) for i, (mt, nt) in enumerate(tiles) for h in range(2)]
            for x, u, L_, K_, c_ in P_: a.e(f"v_pk_fma_f32 {vr(x,2)}, {L_}, {vr(c_,2)}, {vr(x,2)} op_sel_hi:[0,1,1] neg_lo:[1,0,0] neg_hi:[1,0,0]")
            for x, u, L_, K_, c_ in P_: a.e(f"v_pk_mul_f32 {vr(u,2)}, {vr(x,2)}, {vr(x,2)}")
            for x, u, L_, K_, c_ in P_: a.e(f"v_pk_fma_f32 {vr(u,2)}, {vr(u,2)}, {K_}, {K_} op_sel:[0,1,0] op_sel_hi:[1,1,0]")
            for x, u, L_, K_, c_ in P_: a.e(f"v_pk_mul_f32 {vr(u,2)}, {vr(u,2)}, {vr(x,2)}")
            for i in range(8): a.e(f"v_exp_f32 v{tp+i}, v{tp+i}")
            for x, u, L_, K_, c_ in P_: a.e(f"v_pk_fma_f32 {vr(u,2)}, {vr(u,2)}, {L_}, {L_} op_sel:[0,1,1] op_sel_hi:[1,1,1]")
            for i in range(8): a.e(f"v_rcp_f32 v{tp+i}, v{tp+i}")
            for x, u, L_, K_, c_ in P_: a.e(f"v_pk_mul_f32 {vr(x,2)}, {vr(x,2)}, {vr(u,2)}")
        def group(mt, nts, dst=None):
            if len(nts) == 2: act([(mt, nt) for nt in nts])
            elif mt % 2 == 0: act([(mt, nts[0]), (mt + 1, nts[0])])
            P = nts[0] >> 1; B = A_(mt, nts[0]); D = B if dst is None else dst
            for k in range(2 * len(nts)): a.e(f"v_cvt_pk_bf16_f32 v{D+k}, v{B+2*k}, v{B+2*k+1}")
            return [f"s_add_u32 s36, s{44+P}, {mt*224*1024}", f"buffer_store_dwordx4 {vr(B,4)}, v{l16}, s[16:19], s36 offen {SC}"]
        def body():
            gs = [(0, 1), (2, 3), (4, 5), (6,)]
            k = 0; pend = []; sent = 0; RXK = env("RXK", 7); assert RXK >= C0PUB and RXK + 4 <= STQ + 1
            for gi_, g_ in enumerate(gs):
                for mt in range(MT):
                    if k == C0PUB: signal(ST_G3A, sent - 4); mstamp(a)
                    if RXK <= k < RXK + 4:
                        i, p = (k - RXK) >> 1, (k - RXK) & 1
                        a.e(f"buffer_load_dwordx4 {vr(RX[2*i+p],4)}, v{xo}, s[84:87], s{13+i} offen offset:{p*64} {SC}")
                        a.e(f"buffer_load_dwordx4 {vr(RX[2*i+p]+4,4)}, v{l16}, s[88:91], s{(40, 12)[i]} offen offset:{p*1024} {SC}")
                    st_ = group(mt, g_, None if gi_ < 2 else C2R + 4 * mt if gi_ == 2 else C2R + 16 + 2 * mt); k += 1
                    if gi_ < 3:
                        a.e(f"ds_write_b128 v{(J, G)[mt>>1]}, {vr(A_(mt, g_[0]) if gi_ < 2 else C2R + 4 * mt, 4)} offset:{gi_*16384 + (mt&1)*2048}")
                    if gi_ < 2: pend.append(st_)
                    n = len(pend) if (k <= 4 or k == 16) else 0 if k <= STQ else min(1, len(pend))
                    for _ in range(n):
                        for x in pend.pop(0): a.e(x)
                        sent += 1
            a.e("s_waitcnt vmcnt(4) lgkmcnt(0)")
        a.e("s_waitcnt lgkmcnt(0)"); a.e("s_nop 7")
        body()
        mstamp(a)

def k_mega(a):
    nm = KNAME; a.begin_kernel(nm)
    a.e("s_cmp_ge_u32 s2, 256"); a.e("s_cbranch_scc1 K_end")
    a.e(f"s_load_dwordx8 s[8:15], s[0:1], {A_K}"); a.e(f"s_load_dwordx2 s[6:7], s[0:1], {A_Q}"); a.e(f"s_load_dwordx8 s[68:75], s[0:1], {B_W1}")
    a.e(f"s_load_dwordx2 s[4:5], s[0:1], {D_WS}"); a.e(f"s_load_dwordx2 s[84:85], s[0:1], {D_DBG}"); a.e("s_memrealtime s[46:47]")
    a.e(f"s_load_dwordx2 s[76:77], s[0:1], {A_SSMD}")
    a.e("v_lshrrev_b32 v1, 6, v0"); a.e("v_readfirstlane_b32 s30, v1")
    CS = env("CS", 3)
    def codepf():
        a.e("s_getpc_b64 s[48:49]"); a.e("K_pc:")
        a.e("s_lshr_b32 s36, s2, 3"); a.e(f"s_lshl_b32 s36, s36, {9+CS}")
        a.e(f"v_lshlrev_b32 v252, {CS}, v0"); a.e("v_add_u32 v252, s36, v252")
        a.e("v_cmp_gt_u32 vcc, K_end-K_pc-8, v252"); a.e("s_and_saveexec_b64 s[36:37], vcc"); a.e("s_cbranch_execz K_3")
        a.e("v_mov_b32 v253, s49"); a.e("v_add_co_u32 v252, vcc, s48, v252"); a.e("v_addc_co_u32 v253, vcc, 0, v253, vcc")
        a.e("global_load_dword v250, v[252:253], off")
        a.e("K_3:"); a.e("s_mov_b64 exec, -1")
    if env("CPF", 0) == 0: codepf()
    front_loads(a)
    if env("CPF", 0) == 1: codepf()
    a.e("v_and_b32 v1, 63, v0"); a.e("v_lshlrev_b32 v2, 4, v1"); a.e("v_lshlrev_b32 v3, 2, v1")
    a.e("s_and_b32 s32, s2, 7"); a.e("s_lshr_b32 s33, s2, 3")
    a.e("s_and_b32 s28, s32, 2"); a.e("s_lshr_b32 s34, s32, 2"); a.e("s_or_b32 s28, s28, s34")
    a.e("s_lshl_b32 s28, s28, 2"); a.e("s_and_b32 s34, s33, 3"); a.e("s_add_u32 s28, s28, s34")
    a.e("s_and_b32 s31, s32, 1"); a.e("s_lshr_b32 s33, s33, 2")
    a.e("s_lshl_b32 s29, s31, 3"); a.e("s_add_u32 s29, s29, s33")
    a.e("s_and_b32 s67, s33, 4"); a.e("s_add_u32 s67, s67, s33"); a.e("s_lshl2_add_u32 s67, s31, s67")
    a.e("s_mov_b32 s60, 0"); a.e("s_mov_b32 s61, 40000"); a.e("s_mov_b32 s52, 0")
    a.e("s_mov_b32 s55, 0"); a.e("s_mov_b32 s92, 0"); a.e("s_mov_b32 s93, 0"); a.e("s_mov_b32 s94, 0"); a.e("s_mov_b32 s98, 1")
    a.srd(56, 4, X3G)
    a.e(f"s_add_u32 s62, s4, {LB0}"); a.e("s_addc_u32 s63, s5, 0")
    if STAMP:
        a.e("s_mov_b32 s66, 1"); a.e("v_mov_b32 v4, -1"); a.e("v_mov_b32 v5, 0"); a.e("s_mov_b32 s95, 0"); a.e("v_writelane_b32 v4, s46, 0")
    mstamp(a)
    front_a(a); mstamp(a)
    a.e("s_cmp_ge_u32 s30, 4"); a.e("s_cbranch_scc1 FR_b")
    front_conv(a)
    mstamp(a)
    a.e("s_waitcnt vmcnt(4)")
    a.e("s_branch FR_end")
    a.e("FR_b:")
    front_b(a)
    mstamp(a)
    a.e("FR_end:")
    r_stage(a, True)
    a.e("s_waitcnt lgkmcnt(0)"); a.e("s_barrier")
    mstamp(a)
    a.e("LAYER:")
    r_stage(a)
    mstamp(a)
    for w in (3, 4): g_compute(a, w)
    a.e("LOADERS:")
    window_y(a)
    a.e("s_cmp_ge_u32 s30, 6"); a.e("s_cbranch_scc1 WLOAD")
    for w in (3, 4): a_loader(a, w)
    a.e("WLOAD:")
    w_loader(a, 3); w_setup(a, 4); w_loader(a, 4)
    y_end(a)
    a.e("NEXT:")
    a.e("s_setprio 0")
    a.e("s_add_u32 s60, s60, 1"); a.e(f"s_add_u32 s55, s55, {LSTR}")
    a.e(f"s_add_u32 s62, s62, {LSTR}"); a.e("s_addc_u32 s63, s63, 0")
    a.e("s_branch LAYER")
    a.e("K_fin:")
    if STAMP:
        a.e("s_waitcnt vmcnt(0)")
        mstamp(a)
        a.srd(96, 4, 16 * MB, off=200 * MB)
        a.e("s_lshl_b32 s66, s2, 3"); a.e("s_add_u32 s66, s66, s30"); a.e("s_lshl_b32 s66, s66, 8")
        a.e("v_writelane_b32 v4, s95, 63")
        a.e("buffer_store_dword v4, v3, s[96:99], s66 offen")
        a.e("s_add_u32 s66, s66, 0x100000"); a.e("buffer_store_dword v5, v3, s[96:99], s66 offen")
    a.e("s_endpgm")
    emit_subs(a)
    a.e("K_end:")
    a.end_kernel(nm, 256)
    a.launches.append(f"; @launch grid=(256,1,1) block=(512,1,1) lds={LDS_TOTAL}")

HEADER = open("interleave_layers__ssm_conv_h3__mixer_s_mlp__prompt.s.ref").read().split("; Override launch")[0]
DOC = """; One persistent kernel, 256 workgroups x 8 waves (one per CU), generated by dev/gen35.py.
"""
def main(out):
    a = Asm()
    k_mega(a)
    notes = {
        "K_pc:": "each workgroup reads 4 KB of this kernel's code so that later instruction fetches are served on chip",
        "KV_t0:": "k / v / tap loads of the u^T tile (64 times x 128 channels); workgroup 0 has posted the launch tag (a clock value) in d_debug",
        "HB_1:": "u^T tile out, shifted filter copies into LDS, first part of the W2 slice",
        "CV_w:": "long causal convolution as Toeplitz MFMAs, one channel per wave",
        "FR_b:": "waves 4-7 beside the convolution: memory-locality vote (timed loads, layout choice only), weight loads",
        "LAYER:": "row stage: LayerNorm chain, x + LN(x)*y for 8 rows per workgroup",
        "LOADERS:": "waves 4-7: loads of G1, MFMAs of G2; then waves 4,5: activation tiles by LDS-DMA (after the producers' counters are complete)",
        "WLOAD:": "waves 6,7: weight tiles by LDS-DMA in their original layout (read back with transposing LDS loads)",
        "G4_last:": "last layer: write the output",
    }
    o = []
    for l in a.lines:
        if l.strip() in notes: o.append("; ---- " + notes[l.strip()])
        if l.strip().startswith("s_sleep"): l += "    ; back-off inside a wait loop"
        o.append(l)
    a.lines = o
    open(out, "w").write(a.text(HEADER + DOC))
    print("nops added:", a.nops_added, "| slots", [WSLOT[s] // KB for s in range(32)], "| issue", {k: x for k, x in WISSUE.items() if x})

if __name__ == "__main__":
    main(sys.argv[1] if len(sys.argv) > 1 else "interleave_layers__ssm_conv_h3__mixer_s_mlp__prompt.s")
```
